```python
import torch

def _softmax(x, axis=-1):
    return torch.softmax(x, dim=axis)
def _gelu(x):
    return torch.nn.functional.gelu(x, approximate="tanh")
def _silu(x):
    return torch.nn.functional.silu(x)
def _sigmoid(x):
    return torch.sigmoid(x)
def _layernorm(x, axis=-1, eps=1e-5):
    m = x.mean(dim=axis, keepdim=True)
    v = x.var(dim=axis, keepdim=True, unbiased=False)
    return (x - m) / torch.sqrt(v + eps)
def _scatter_add(tgt, idx, src, axis=0):
    return tgt.clone().index_add_(axis, idx, src)
def _segment_sum(src, seg, n):
    out = torch.zeros((n,) + src.shape[1:], dtype=src.dtype)
    return out.index_add_(0, seg, src)
def _pad(x, pw):
    flat = tuple(v for pair in reversed(pw) for v in pair)
    return torch.nn.functional.pad(x, flat)

kernel_name = 'gated_mix__linear_kernel_hedgehog__mixer_token_mlp__prompt'

def setup_inputs():

    _w = (lambda a: (lambda t: t.to(torch.bfloat16) if t.is_floating_point() else t)(torch.as_tensor(a)))
    def _A_setup():
        B, S, D, H = 1, 2048, 1024, 32
        Dh = D // H
        return {
            "x": _w((lambda *s: torch.randn(*s, dtype=torch.bfloat16) * 0.05)(B, S, D)),
            "wqkv": _w((lambda *s: torch.randn(*s, dtype=torch.bfloat16) * 0.8)(D, 3 * D)),
            "w_phi": _w((lambda *s: torch.randn(*s, dtype=torch.bfloat16) * 0.8)(H, Dh, Dh) * (Dh ** -0.5)),
            "wo": _w((lambda *s: torch.randn(*s, dtype=torch.bfloat16) * 0.05)(D, D)),
        }
    _A_in = _A_setup()

    def _B_setup():
        B, S, D, F = 1, 2048, 1024, 3584
        return {
            "x": _w((lambda *s: torch.randn(*s, dtype=torch.bfloat16) * 0.05)(B, S, D)),
            "w1": _w((lambda *s: torch.randn(*s, dtype=torch.bfloat16) * 0.8)(S, F) * (S ** -0.5)),
            "b1": _w((lambda *s: torch.randn(*s, dtype=torch.bfloat16) * 12.8)(F) * 0.02),
            "w2": _w((lambda *s: torch.randn(*s, dtype=torch.bfloat16) * 0.05)(F, S) * (F ** -0.5)),
            "b2": _w((lambda *s: torch.randn(*s, dtype=torch.bfloat16) * 0.8)(S) * 0.02),
        }
    _B_in = _B_setup()

    return {
        "A_x": _A_in["x"],
        "A_wqkv": _A_in["wqkv"],
        "A_w_phi": _A_in["w_phi"],
        "A_wo": _A_in["wo"],
        "B_x": _B_in["x"],
        "B_w1": _B_in["w1"],
        "B_b1": _B_in["b1"],
        "B_w2": _B_in["w2"],
        "B_b2": _B_in["b2"],
        "gate_w": _w((lambda *s: torch.randn(*s, dtype=torch.bfloat16) * 0.05)(1024) * 16.0),
    }

def reference(A_x, A_wqkv, A_w_phi, A_wo, B_x, B_w1, B_b1, B_w2, B_b2, gate_w):
    def _A_ref(x, wqkv, w_phi, wo):
        B, S, D = x.shape
        H = 32; Dh = D // H
        qkv = (lambda x, *d: x.permute(*d))((x @ wqkv).reshape(B, S, 3, H, Dh), 2, 0, 3, 1, 4)
        q, k, v = qkv[0], qkv[1], qkv[2]
        pq = torch.einsum("bhsd,hdf->bhsf", q, w_phi)
        pk = torch.einsum("bhsd,hdf->bhsf", k, w_phi)
        phi_q = torch.concatenate([_softmax(pq, axis=-1), _softmax(-pq, axis=-1)], axis=-1)
        phi_k = torch.concatenate([_softmax(pk, axis=-1), _softmax(-pk, axis=-1)], axis=-1)
        kv = torch.einsum("bhsf,bhsd->bhfd", phi_k, v)
        z  = torch.einsum("bhsf->bhf", phi_k)
        num = torch.einsum("bhqf,bhfd->bhqd", phi_q, kv)
        den = torch.einsum("bhqf,bhf->bhq", phi_q, z)[..., None] + 1e-6
        o = num / den
        return (lambda x, *d: x.permute(*d))(o, 0, 2, 1, 3).reshape(B, S, D) @ wo

    def _B_ref(x, w1, b1, w2, b2):
        B, S, D = x.shape
        h = _layernorm(x, axis=-1)
        u = torch.einsum("bsd,sf->bdf", h, w1) + b1
        u = _gelu(u)
        y = torch.einsum("bdf,fs->bds", u, w2) + b2
        return (lambda x, *d: x.permute(*d))(y, 0, 2, 1)

    x = A_x
    g = _sigmoid((x * gate_w).sum(-1, keepdims=True))
    a = _A_ref(x, A_wqkv, A_w_phi, A_wo)
    b = _B_ref(x, B_w1, B_b1, B_w2, B_b2)
    return g * a + (1 - g) * b
```

```python
HEADER_COMMENT = open("gated_mix__linear_kernel_hedgehog__mixer_token_mlp__prompt.s.ref").read().split("; Override launch")[0]

KA = dict(x=0, wqkv=8, wphi=16, wo=24, bx=32, w1=40, b1=48, w2=56, b2=64, gw=72, out=80, dbg=88, ws=96)

class Kern:
    def __init__(self, name, grid, block, lds, vgpr=256, sgpr=102, accum=None):
        self.name = name; self.grid = grid; self.block = block; self.lds = lds
        self.vgpr = vgpr; self.sgpr = sgpr; self.accum = accum
        self.lines = []
        self._lab = 0
    def e(self, s):
        for l in s.strip("\n").split("\n"):
            self.lines.append("  " + l.strip() if not l.strip().endswith(":") else l.strip())
    def lab(self, base="L"):
        self._lab += 1
        return f"{self.name}_{base}{self._lab}"
    def srd(self, d, base, nbytes, add=None):
        if add:
            self.e(f"s_add_u32 s{d}, s{base}, {add:#x}")
            self.e(f"s_addc_u32 s{d+1}, s{base+1}, 0")
        else:
            self.e(f"s_mov_b32 s{d}, s{base}")
            self.e(f"s_mov_b32 s{d+1}, s{base+1}")
        self.e(f"s_mov_b32 s{d+2}, {nbytes:#x}")
        self.e(f"s_mov_b32 s{d+3}, 0x00020000")
    def text(self):
        out = [f".globl {self.name}", ".p2align 8", f".type {self.name},@function", f"{self.name}:"]
        out += self.lines
        out += ["  s_endpgm"]
        return "\n".join(out)
    def desc(self):
        accum = self.accum if self.accum is not None else min(256, (self.vgpr + 3) // 4 * 4)
        return "\n".join([
            ".p2align 6",
            f".amdhsa_kernel {self.name}",
            f"  .amdhsa_next_free_vgpr {self.vgpr}",
            f"  .amdhsa_next_free_sgpr {self.sgpr}",
            f"  .amdhsa_accum_offset {accum}",
            "  .amdhsa_group_segment_fixed_size 0",
            "  .amdhsa_kernarg_size 104",
            "  .amdhsa_user_sgpr_count 2",
            "  .amdhsa_user_sgpr_kernarg_segment_ptr 1",
            "  .amdhsa_system_sgpr_workgroup_id_x 1",
            ".end_amdhsa_kernel"])

def write_file(path, kerns, order=None, single=False):
    order = order or kerns
    out = [HEADER_COMMENT.rstrip("\n")]
    for k in order:
        out.append(f"; @launch {'' if single else 'kernel=' + k.name + ' '}grid=({k.grid},1,1) block=({k.block},1,1) lds={k.lds}")
    out.append('.amdgcn_target "amdgcn-amd-amdhsa--gfx950"')
    out.append(".text")
    for k in kerns:
        out.append(k.text())
    out.append('.section .rodata,"a"')
    for k in kerns:
        out.append(k.desc())
    open(path, "w").write("\n".join(out) + "\n")
```

```python
import sys
from asmlib import *

WS_XT = 0x0000000
WS_HT = 0x0400000
WS_UT = 0x0800000
WS_OT = 0x1000000
WS_G = 0x1400000
WS_FLAG = 0x1480000
WS_KVP = 0x1500000
WS_PART = 0x2000000
WS_STAMP = 0x8000000

S_, D_, F_ = 2048, 1024, 3584
LOG2E = 1.4426950408889634

import struct
def f32(x):
    return "0x%08x" % struct.unpack("<I", struct.pack("<f", x))[0]

def dpp_reduce_sum(e, v):
    for sh in (1, 2, 4, 8):
        e(f"s_nop 1")
        e(f"v_add_f32_dpp v{v}, v{v}, v{v} row_shr:{sh} row_mask:0xf bank_mask:0xf bound_ctrl:0")
    e("s_nop 1")
    e(f"v_add_f32_dpp v{v}, v{v}, v{v} row_bcast:15 row_mask:0xa bank_mask:0xf")
    e("s_nop 1")
    e(f"v_add_f32_dpp v{v}, v{v}, v{v} row_bcast:31 row_mask:0xc bank_mask:0xf")

def dpp_reduce_sum_multi(e, vs):
    steps = [f"row_shr:{sh} row_mask:0xf bank_mask:0xf bound_ctrl:0" for sh in (1, 2, 4, 8)]
    steps += ["row_bcast:15 row_mask:0xa bank_mask:0xf", "row_bcast:31 row_mask:0xc bank_mask:0xf"]
    for st in steps:
        if len(vs) < 3: e("s_nop 1")
        for v in vs:
            e(f"v_add_f32_dpp v{v}, v{v}, v{v} {st}")

def gen_pre():
    k = Kern("pre_kernel", 256, 256, 8*2112 + 8*2080, vgpr=96, sgpr=48)
    e = k.e
    HP, XP = 2112, 2080
    XB = 8*HP
    e("s_cmp_ge_u32 s2, 256"); e("s_cbranch_scc1 pre_end")
    e("s_load_dwordx2 s[4:5], s[0:1], 0")
    e("s_load_dwordx2 s[6:7], s[0:1], 72")
    e("s_load_dwordx2 s[8:9], s[0:1], 96")
    e("v_and_b32 v1, 63, v0")
    e("v_lshrrev_b32 v2, 6, v0")
    e("v_lshlrev_b32 v3, 4, v1")
    e("v_lshl_add_u32 v4, v2, 12, v3")
    e("s_lshl_b32 s3, s2, 14")
    e("s_waitcnt lgkmcnt(0)")
    k.srd(12, 4, S_*D_*2)
    k.srd(16, 6, D_*2)
    k.srd(20, 8, 0x1800000)
    e("buffer_load_dwordx4 v[8:11], v4, s[12:15], s3 offen")
    e("buffer_load_dwordx4 v[12:15], v4, s[12:15], s3 offen offset:1024")
    e("buffer_load_dwordx4 v[16:19], v4, s[12:15], s3 offen offset:2048")
    e("buffer_load_dwordx4 v[20:23], v4, s[12:15], s3 offen offset:3072")
    e("buffer_load_dwordx4 v[24:27], v3, s[16:19], 0 offen")
    e("buffer_load_dwordx4 v[28:31], v3, s[16:19], 0 offen offset:1024")
    e("v_mov_b32 v5, 0")
    e(f"s_lshl_b32 s24, s2, 10"); e(f"s_add_u32 s24, s24, {WS_FLAG:#x}")
    e("v_lshlrev_b32 v6, 2, v0")
    e("buffer_store_dword v5, v6, s[20:23], s24 offen")
    e(f"v_mul_u32_u24 v6, {2*HP}, v2"); e("v_add_u32 v6, v6, v3")
    e(f"v_mul_u32_u24 v7, {2*XP}, v2"); e("v_add_u32 v7, v7, v3")
    e(f"v_add_u32 v7, {XB}, v7")
    e("s_mov_b32 s25, 0xffff0000")
    e("s_waitcnt vmcnt(3)")
    e("ds_write_b128 v7, v[8:11]"); e("ds_write_b128 v7, v[12:15] offset:1024")
    e(f"ds_write_b128 v7, v[16:19] offset:{XP}"); e(f"ds_write_b128 v7, v[20:23] offset:{XP+1024}")
    for r in range(2):
        for i in range(8):
            src = 8 + 8*r + i
            e(f"v_lshlrev_b32 v{32+16*r+2*i}, 16, v{src}")
            e(f"v_and_b32 v{33+16*r+2*i}, s25, v{src}")
    e("s_waitcnt vmcnt(1)")
    for i in range(8):
        e(f"v_lshlrev_b32 v{64+2*i}, 16, v{24+i}")
        e(f"v_and_b32 v{65+2*i}, s25, v{24+i}")
    for r in range(2):
        b = 32 + 16*r
        e(f"v_add_f32 v{80+r}, v{b}, v{b+1}")
        e(f"v_mul_f32 v{82+r}, v{b}, v64")
    for i in range(2, 16):
        for r in range(2):
            b = 32 + 16*r
            e(f"v_add_f32 v{80+r}, v{80+r}, v{b+i}")
    for i in range(1, 16):
        for r in range(2):
            b = 32 + 16*r
            e(f"v_fmac_f32 v{82+r}, v{b+i}, v{64+i}")
    dpp_reduce_sum_multi(e, [80, 81, 82, 83])
    e("s_nop 1")
    for i in range(4):
        e(f"v_readlane_b32 s{26+i}, v{80+i}, 63")
    e(f"s_mov_b32 s30, {f32(-1.0/1024)}")
    e("s_nop 1")
    e("v_mov_b32 v84, s26"); e("v_mov_b32 v85, s27")
    e("v_mul_f32 v84, s30, v84"); e("v_mul_f32 v85, s30, v85")
    for i in range(16):
        for r in range(2):
            b = 32 + 16*r
            e(f"v_add_f32 v{b+i}, v{b+i}, v{84+r}")
    for r in range(2):
        b = 32 + 16*r
        e(f"v_mul_f32 v{80+r}, v{b}, v{b}")
    for i in range(1, 16):
        for r in range(2):
            b = 32 + 16*r
            e(f"v_fmac_f32 v{80+r}, v{b+i}, v{b+i}")
    e("v_mov_b32 v86, s28"); e("v_mov_b32 v87, s29")
    e("v_cmp_eq_u32 vcc, 1, v1"); e("s_nop 1"); e("v_cndmask_b32 v86, v86, v87, vcc")
    e(f"v_mul_f32 v86, {f32(-LOG2E)}, v86")
    e("v_exp_f32 v86, v86"); e("s_nop 0"); e("v_add_f32 v86, 1.0, v86"); e("v_rcp_f32 v86, v86")
    dpp_reduce_sum_multi(e, [80, 81])
    e("s_nop 1")
    e("v_readlane_b32 s26, v80, 63"); e("v_readlane_b32 s27, v81, 63")
    e(f"s_mov_b32 s30, {f32(1.0/1024)}")
    e(f"v_mov_b32 v88, {f32(1e-5)}")
    e("v_mov_b32 v84, s26"); e("v_mov_b32 v85, s27")
    e("v_fma_f32 v84, v84, s30, v88"); e("v_fma_f32 v85, v85, s30, v88")
    e("v_rsq_f32 v84, v84"); e("v_rsq_f32 v85, v85")
    e("v_lshl_add_u32 v87, v2, 1, v1"); e("v_lshlrev_b32 v87, 2, v87")
    e(f"s_lshl_b32 s24, s2, 5"); e(f"s_add_u32 s24, s24, {WS_G:#x}")
    e("v_cmp_gt_u32 vcc, 2, v1"); e("s_and_saveexec_b64 s[32:33], vcc")
    e("buffer_store_dword v86, v87, s[20:23], s24 offen")
    e("s_mov_b64 exec, s[32:33]")
    for r in range(2):
        b = 32 + 16*r
        for i in range(16):
            e(f"v_mul_f32 v{b+i}, v{b+i}, v{84+r}")
        for i in range(8):
            e(f"v_cvt_pk_bf16_f32 v{8+8*r+i}, v{b+2*i}, v{b+2*i+1}")
    e("ds_write_b128 v6, v[8:11]"); e("ds_write_b128 v6, v[12:15] offset:1024")
    e(f"ds_write_b128 v6, v[16:19] offset:{HP}"); e(f"ds_write_b128 v6, v[20:23] offset:{HP+1024}")
    e("v_and_b32 v32, 15, v0"); e("v_lshrrev_b32 v33, 2, v32")
    e(f"v_mul_u32_u24 v33, {HP}, v33")
    e("v_and_b32 v34, 3, v0"); e("v_lshlrev_b32 v34, 3, v34")
    e("v_lshrrev_b32 v35, 4, v0"); e("v_lshlrev_b32 v35, 5, v35")
    e("v_add3_u32 v33, v33, v34, v35")
    e("v_lshlrev_b32 v36, 4, v0")
    e(f"s_add_u32 s24, s3, {WS_HT:#x}")
    e("v_and_b32 v37, 7, v0"); e(f"v_mul_u32_u24 v38, {XP}, v37")
    e("v_lshrrev_b32 v39, 3, v0"); e("v_lshl_add_u32 v38, v39, 4, v38"); e(f"v_add_u32 v38, {XB}, v38")
    e("v_lshlrev_b32 v39, 15, v39"); e("v_lshl_add_u32 v39, v37, 4, v39")
    e("s_lshl_b32 s25, s2, 7")
    e("s_waitcnt lgkmcnt(0)"); e("s_barrier")
    for j in range(4):
        e(f"ds_read_b128 v[{64+4*j}:{67+4*j}], v38 offset:{512*j}")
    for j in range(4):
        e(f"ds_read_b64_tr_b16 v[{40+4*j}:{41+4*j}], v33 offset:{512*j}")
        e(f"ds_read_b64_tr_b16 v[{42+4*j}:{43+4*j}], v33 offset:{512*j+4*HP}")
    for j in range(4):
        e(f"s_waitcnt lgkmcnt({11-j})")
        e(f"s_add_u32 s26, s25, {WS_XT + j*32*32768:#x}")
        e(f"buffer_store_dwordx4 v[{64+4*j}:{67+4*j}], v39, s[20:23], s26 offen")
    for j in range(4):
        e(f"s_waitcnt lgkmcnt({6-2*j})")
        e(f"s_add_u32 s26, s24, {j*4096}")
        e(f"buffer_store_dwordx4 v[{40+4*j}:{43+4*j}], v36, s[20:23], s26 offen")
    e("pre_end:")
    return k

class Sched:
    def __init__(self):
        self.items = []
    def read(self, text, dst):
        self.items.append(("rd", text, dst))
    def mfma(self, text, srcs):
        self.items.append(("mf", text, srcs))
    def other(self, text):
        self.items.append(("ot", text, None))
    def drain(self):
        self.items.append(("dr", None, None))
    def render(self, cyclic=True):
        items = self.items
        n = len(items)
        seq = items + items if cyclic else items
        out = []
        issued = 0
        last_write = {}
        done = 0
        for idx, (kind, text, info) in enumerate(seq):
            emit = (idx >= n) if cyclic else True
            if kind == "rd":
                issued += 1; last_write[info] = issued
                if emit: out.append(text)
            elif kind == "mf":
                need = max([last_write.get(t, 0) for t in info] + [0])
                if need > done:
                    cnt = issued - need
                    assert cnt <= 15 or True
                    cnt = min(cnt, 15)
                    done = issued - cnt
                    if emit: out.append(f"s_waitcnt lgkmcnt({cnt})")
                if emit: out.append(text)
            elif kind == "dr":
                if done < issued:
                    done = issued
                    if emit: out.append("s_waitcnt lgkmcnt(0)")
            else:
                if emit: out.append(text)
        return out


class GemmCfg:
    def __init__(self, BM, nseg, NS, BK=32, base=0, prow=False):
        self.BM = BM; self.nseg = nseg; self.NS = NS; self.BK = BK; self.base = base; self.prow = prow
        self.PB = (BK//8)*BM*16
        self.TB = nseg*BK*128
        self.SB = self.PB + self.TB
        self.perP = self.PB // 4096
        self.perT = self.TB // 4096
        self.per = self.perP + self.perT

def producer_issue(e, c, R, flags=("", "")):
    sL = R["sLds"]
    if not c.prow:
        for cg in range(c.BK//32):
            if cg == 0: e(f"s_mov_b32 m0, s{sL}")
            else: e(f"s_add_u32 m0, s{sL}, {cg*4*c.BM*16}")
            e("s_nop 0")
            for rb in range(c.BM//64):
                e(f"buffer_load_dwordx4 v{R['vP'][cg]}, s[{R['srdP']}:{R['srdP']+3}], s{R['sP']} offen offset:{rb*1024}{flags[0]} lds")
    else:
        for rb in range(c.BM//32):
            e(f"s_add_u32 m0, s{sL}, {rb*1024}")
            e("s_nop 0")
            e(f"buffer_load_dwordx4 v{R['vP'][rb]}, s[{R['srdP']}:{R['srdP']+3}], s{R['sP']} offen{flags[0]} lds")
    n = 0
    for sg in range(c.nseg):
        for kg in range(c.BK//32):
            e(f"s_add_u32 m0, s{sL+1}, {sg*c.BK*128 + kg*4096}")
            e("s_nop 0")
            e(f"buffer_load_dwordx4 v{R['vT'][n]}, s[{R['srdT']}:{R['srdT']+3}], s{R['sT']} offen{flags[1]} lds")
            n += 1
    if "rot" in R:
        sk, nst, bP, bT, tmp = R["rot"]
        e(f"s_add_u32 s{sk}, s{sk}, 1"); e(f"s_and_b32 s{sk}, s{sk}, {nst-1}")
        e(f"s_mul_i32 s{tmp}, s{sk}, {R['stepP']}"); e(f"s_add_u32 s{R['sP']}, s{bP}, s{tmp}")
        e(f"s_mul_i32 s{tmp}, s{sk}, {R['stepT']}"); e(f"s_add_u32 s{R['sT']}, s{bT}, s{tmp}")
    else:
        e(f"s_add_u32 s{R['sP']}, s{R['sP']}, {R['stepP']}")
        e(f"s_add_u32 s{R['sT']}, s{R['sT']}, {R['stepT']}")

def ring_advance(e, c, R):
    st = R["sStage"]
    e(f"s_add_u32 s{st}, s{st}, {c.SB}")
    e(f"s_cmp_ge_u32 s{st}, {c.SB*c.NS}")
    e(f"s_cselect_b32 s{st}, 0, s{st}")
    e(f"s_add_u32 s{R['sLds']}, s{st}, s{R['sBase']}")
    e(f"s_add_u32 s{R['sLds']+1}, s{st}, s{R['sBase']+1}")

def producer_loop(k, c, nstages, R, noload=False, inject=None, unroll_until=0, after_prologue=(), tail_extra=0, flags=("", "")):
    e = k.e
    NS = c.NS
    inject = inject or {}
    srcs = R if isinstance(R, list) else [(nstages, R)]
    assert sum(n for n, _ in srcs) == nstages and srcs[0][0] >= NS
    R = srcs[0][1]
    assert (NS-1)*c.per + tail_extra <= 63
    e(f"s_mov_b32 s{R['sStage']}, 0")
    e(f"s_mov_b32 s{R['sLds']}, s{R['sBase']}"); e(f"s_mov_b32 s{R['sLds']+1}, s{R['sBase']+1}")
    for t in range(NS):
        producer_issue(e, c, R, flags)
        ring_advance(e, c, R)
    for l in after_prologue: e(l)
    e(f"s_waitcnt vmcnt({(NS-1)*c.per})")
    e("s_barrier")
    def it(Rx):
        e(f"s_waitcnt vmcnt({(NS-2)*c.per})")
        e("s_barrier")
        if not noload:
            producer_issue(e, c, Rx, flags)
            ring_advance(e, c, Rx)
    t = 0
    for si, (n, Rx) in enumerate(srcs):
        if si == 0: n -= NS
        nun = min(max(unroll_until - t, 0), n)
        for _ in range(nun):
            it(Rx)
            for l in inject.get(t, []): e(l)
            t += 1
        if n > nun:
            L = k.lab("ploop")
            e(f"s_mov_b32 s{Rx['sCnt']}, {n - nun}")
            e(f"{L}:")
            it(Rx)
            e(f"s_sub_u32 s{Rx['sCnt']}, s{Rx['sCnt']}, 1"); e(f"s_cmp_lg_u32 s{Rx['sCnt']}, 0"); e(f"s_cbranch_scc1 {L}")
            t += n - nun
    for r in range(NS):
        left = max(NS-2-r, 0)
        e(f"s_waitcnt vmcnt({left*c.per + tail_extra})")
        e("s_barrier")
        for l in inject.get(t + r, []): e(l)

def build_consumer(c, shape, nP, nT, p_off, t_desc, acc, pbufs, tbufs, vP, vT, swap, order, bar_pos, rpg, salu, valu, tail, accfmt="v"):
    import math
    nPb, nTb = len(pbufs), len(tbufs)
    U = 1
    while (U*nP) % nPb or (U*nT) % nTb: U += 1
    M = len(order)
    NSIM = 4*U
    first = {}; last = {}
    for s in range(NSIM + 1):
        for pos, (i, j, _, _) in enumerate(order):
            g = s*M + pos
            for key in (("P", s, i), ("T", s, j)):
                first.setdefault(key, g); last[key] = g
    def buf(key):
        kind, s, idx = key
        return pbufs[(s*nP + idx) % nPb] if kind == "P" else tbufs[(s*nT + idx) % nTb]
    def prev_key(key):
        kind, s, idx = key
        n, nb = (nP, nPb) if kind == "P" else (nT, nTb)
        lin = s*n + idx - nb
        return None if lin < 0 else (kind, lin // n, lin % n)
    earliest = {}
    for key in first:
        kind, s, idx = key
        eg = -1 if s == 0 else (s-1)*M + bar_pos - 1
        if s > 0: eg = (s-1)*M + bar_pos
        pk = prev_key(key)
        if pk is not None: eg = max(eg, last[pk])
        earliest[key] = eg
    instrs = []
    for key in first:
        kind, s, idx = key
        r = buf(key)
        if kind == "P":
            instrs.append((first[key], earliest[key], f"ds_read_b128 v[{r}:{r+3}], v{vP[p_off[idx][0]]} offset:{p_off[idx][1]}", (key, 0), s))
        else:
            sel, off = t_desc[idx]
            for t in range(2):
                instrs.append((first[key], earliest[key], f"ds_read_b64_tr_b16 v[{r+2*t}:{r+2*t+1}], v{vT[sel]} offset:{off + t*512}", (key, t), s))
    instrs.sort(key=lambda x: (x[0], x[3][1]))
    slots = {}
    pending = list(instrs)
    for g in range(-1, NSIM*M):
        cap = 1000 if g == -1 else rpg
        take = []
        for ins in pending:
            if len(take) >= cap: break
            if ins[1] <= g: take.append(ins)
        for ins in take:
            pending.remove(ins)
            assert g < ins[0], ("read not before first use", ins, g)
            assert g < ins[4]*M + bar_pos, ("stage read after its barrier", ins, g)
        slots[g] = take
    extra = {}
    for s in range(NSIM):
        b = s*M + bar_pos
        for n, u in enumerate(salu): extra.setdefault(b + 1 + n, []).append(u)
        lr = max([g for g in range(-1, b) if slots.get(g)] + [-1])
        gaps = list(range(max(lr, b - len(valu), 0), b))
        for n, u in enumerate(valu):
            g = gaps[min(max(n - (len(valu) - len(gaps)), 0), len(gaps) - 1)] if gaps else None
            if g is not None: extra.setdefault(g, []).append(u)
        if (s + 1) % U == 0:
            for n, u in enumerate(tail): extra.setdefault((s+1)*M - 1 - len(tail) + n, []).append(u)
    assert bar_pos + 1 + len(salu) <= M - 1 - len(tail)
    lines = []
    issued = 0; done = 0; lastw = {}
    def rd(s, ins):
        nonlocal issued
        issued += 1; lastw[ins[3]] = issued; lines.append((s, ins[2]))
    pro = [ins[2] for ins in slots[-1]]
    for ins in slots[-1]: issued += 1; lastw[ins[3]] = issued
    done = issued
    mn = "v_mfma_f32_16x16x32_bf16" if shape == 16 else "v_mfma_f32_32x32x16_bf16"
    aw = 4 if shape == 16 else 16
    for s in range(NSIM):
        for pos, (i, j, ai, aj) in enumerate(order):
            g = s*M + pos
            if pos == bar_pos:
                if done < issued:
                    lines.append((s, "s_waitcnt lgkmcnt(0)")); done = issued
                lines.append((s, "s_barrier"))
            need = max(lastw[(("P", s, i), 0)], lastw[(("T", s, j), 0)], lastw[(("T", s, j), 1)])
            if need > done:
                cnt = min(issued - need, 15); done = issued - cnt
                lines.append((s, f"s_waitcnt lgkmcnt({cnt})"))
            a = acc[ai][aj]; p = buf(("P", s, i)); t = buf(("T", s, j))
            sw = swap(ai, aj) if callable(swap) else swap
            A, B = (p, t) if sw else (t, p)
            lines.append((s, f"{mn} {accfmt}[{a}:{a+aw-1}], v[{A}:{A+3}], v[{B}:{B+3}], {accfmt}[{a}:{a+aw-1}]"))
            for ins in slots[g]: rd(s, ins)
            for u in extra.get(g, []): lines.append((s, u))
    per = lambda a: [t for s, t in lines if a*U <= s < (a+1)*U]
    assert per(1) == per(2), "schedule not periodic"
    ahead = [ins[2] for g in range(U*M, 2*U*M) for ins in slots[g] if ins[4] >= 2*U]
    return ahead, per(2), U

def consumer_loop(k, c, segs, shape, nP, nT, p_off, t_desc, acc, pbufs, tbufs, vP, vT, swap, order, sStage, sDelta, sCnt,
                  rpg=2, bar_pos=1, accfmt="v", slot0=None, stage_extra=()):
    e = k.e
    if isinstance(segs, int): segs = [(segs, [])]
    salu = [f"s_add_u32 s{sStage}, s{sStage}, 1",
            f"s_cmp_eq_u32 s{sStage}, {c.NS-1}",
            f"s_cselect_b32 s{sDelta}, s{sDelta+2}, {c.SB}",
            f"s_cselect_b32 s{sStage}, -1, s{sStage}"]
    salu = salu + list(stage_extra)
    valu = [f"v_add_u32 v{v}, s{sDelta}, v{v}" for v in sorted(set(vP)) + sorted(set(vT))]
    tail = [f"s_sub_u32 s{sCnt}, s{sCnt}, 1", f"s_cmp_lg_u32 s{sCnt}, 0"]
    ahead, body, U = build_consumer(c, shape, nP, nT, p_off, t_desc, acc, pbufs, tbufs, vP, vT, swap, order, bar_pos, rpg, salu, valu, tail, accfmt)
    nb = body.index("s_barrier")
    pre_valu = [u for u in valu if u not in body[:nb]]
    e(f"s_mov_b32 s{sDelta+2}, {(-(c.NS-1)*c.SB) & 0xffffffff:#x}")
    if slot0 is None:
        e(f"s_mov_b32 s{sStage}, 0"); e(f"s_mov_b32 s{sDelta}, {c.SB}")
        e("s_barrier")
    elif slot0 < c.NS - 1:
        e(f"s_mov_b32 s{sStage}, {slot0}"); e(f"s_mov_b32 s{sDelta}, {c.SB}")
    else:
        e(f"s_mov_b32 s{sStage}, -1"); e(f"s_mov_b32 s{sDelta}, s{sDelta+2}")
    for txt in ahead: e(txt)
    for u in pre_valu: e(u)
    e("s_waitcnt lgkmcnt(0)")
    for n, post in segs:
        assert n % U == 0, (n, U)
        L = k.lab("cloop")
        e(f"s_mov_b32 s{sCnt}, {n//U}")
        e(".p2align 3")
        e(f"{L}:")
        for l in body: e(l)
        e(f"s_cbranch_scc1 {L}")
        for l in post: e(l)

def lane_T_dma_off(e, shape, vdst, vlane, vtmp, ld, sP):
    e(f"v_lshrrev_b32 v{vtmp}, 3, v{vlane}")
    e(f"s_lshl_b32 s61, s{sP}, 3")
    e(f"v_add_u32 v{vdst}, s61, v{vtmp}")
    e(f"s_mov_b32 s60, {ld}")
    e(f"v_mul_lo_u32 v{vdst}, v{vdst}, s60")
    if shape == 32:
        e(f"v_lshlrev_b32 v{vtmp}, 1, v{vtmp}")
        e(f"v_and_b32 v{vtmp}, 4, v{vtmp}")
    else:
        e(f"v_and_b32 v{vtmp}, 2, v{vtmp}")
        e(f"s_and_b32 s61, s{sP}, 1"); e("s_lshl_b32 s61, s61, 2")
        e(f"v_or_b32 v{vtmp}, s61, v{vtmp}")
    e(f"v_xor_b32 v{vtmp}, v{vtmp}, v{vlane}")
    e(f"v_and_b32 v{vtmp}, 7, v{vtmp}")
    e(f"v_lshl_add_u32 v{vdst}, v{vtmp}, 4, v{vdst}")

def lane_T_read_off(e, shape, vdst, vlane, vt1, vt2):
    if shape == 32:
        e(f"v_lshrrev_b32 v{vdst}, 5, v{vlane}"); e(f"v_lshlrev_b32 v{vdst}, 10, v{vdst}")
        e(f"v_bfe_u32 v{vt1}, v{vlane}, 2, 2")
        e(f"v_lshl_add_u32 v{vdst}, v{vt1}, 7, v{vdst}")
        e(f"v_lshrrev_b32 v{vt1}, 1, v{vt1}"); e(f"v_lshl_add_u32 v{vdst}, v{vt1}, 6, v{vdst}")
        e(f"v_bfe_u32 v{vt2}, v{vlane}, 4, 1"); e(f"v_lshl_add_u32 v{vdst}, v{vt2}, 5, v{vdst}")
        e(f"v_and_b32 v{vt2}, 3, v{vlane}"); e(f"v_lshl_add_u32 v{vdst}, v{vt2}, 3, v{vdst}")
    else:
        e(f"v_lshrrev_b32 v{vdst}, 4, v{vlane}"); e(f"v_lshlrev_b32 v{vdst}, 10, v{vdst}")
        e(f"v_bfe_u32 v{vt1}, v{vlane}, 2, 2")
        e(f"v_lshl_add_u32 v{vdst}, v{vt1}, 7, v{vdst}")
        e(f"v_lshrrev_b32 v{vt1}, 1, v{vt1}"); e(f"v_lshl_add_u32 v{vdst}, v{vt1}, 5, v{vdst}")
        e(f"v_bfe_u32 v{vt2}, v{vlane}, 4, 1"); e(f"v_lshl_add_u32 v{vdst}, v{vt2}, 6, v{vdst}")
        e(f"v_and_b32 v{vt2}, 3, v{vlane}"); e(f"v_lshl_add_u32 v{vdst}, v{vt2}, 3, v{vdst}")

GELU_K1 = -2.0 * 0.7978845608028654 * LOG2E
GELU_K3 = GELU_K1 * 0.044715

def gelu_block(e, srcs, t, o):
    for q, a in enumerate(srcs): e(f"v_pk_mul_f32 v[{t+2*q}:{t+2*q+1}], v[{a}:{a+1}], v[{a}:{a+1}]")
    for q, a in enumerate(srcs): e(f"v_pk_fma_f32 v[{t+2*q}:{t+2*q+1}], v[{t+2*q}:{t+2*q+1}], s[42:43], v[10:11]")
    for q, a in enumerate(srcs): e(f"v_pk_mul_f32 v[{t+2*q}:{t+2*q+1}], v[{t+2*q}:{t+2*q+1}], v[{a}:{a+1}]")
    for q in range(16): e(f"v_exp_f32 v{t+q}, v{t+q}")
    for q, a in enumerate(srcs): e(f"v_pk_add_f32 v[{t+2*q}:{t+2*q+1}], v[{t+2*q}:{t+2*q+1}], 1.0 op_sel_hi:[1,0]")
    for q in range(16): e(f"v_rcp_f32 v{t+q}, v{t+q}")
    for q, a in enumerate(srcs): e(f"v_pk_mul_f32 v[{t+2*q}:{t+2*q+1}], v[{t+2*q}:{t+2*q+1}], v[{a}:{a+1}]")
    for q in range(8): e(f"v_cvt_pk_bf16_f32 v{o+q}, v{t+2*q}, v{t+2*q+1}")

def emit_stamp_store(e, endlab, ws=4):
    e("s_waitcnt vmcnt(0)")
    e("s_memrealtime s[86:87]"); e("s_waitcnt lgkmcnt(0)")
    e("v_mov_b32 v8, s80"); e("v_mov_b32 v9, s82"); e("v_mov_b32 v10, s84"); e("v_mov_b32 v11, s86")
    e("s_sub_u32 s90, s90, s88"); e("v_mov_b32 v12, s90")
    e("s_lshl_b32 s41, s92, 5"); e(f"s_add_u32 s41, s41, {WS_STAMP:#x}"); e("v_mov_b32 v7, s41")
    e("v_cmp_eq_u32 vcc, 0, v0"); e("s_and_saveexec_b64 s[42:43], vcc"); e(f"s_cbranch_execz {endlab}")
    e(f"global_store_dwordx4 v7, v[8:11], s[{ws}:{ws+1}]")
    e(f"global_store_dword v7, v12, s[{ws}:{ws+1}] offset:16")

def gen_g2test(opts):
    BM = opts.get("BM", 128); BKk = opts.get("BK", 64); NS2 = opts.get("NS2", 4)
    c2 = GemmCfg(BM, 2, NS2, BKk)
    lds = NS2 * c2.SB
    ndb = D_ // BM
    nG2 = ndb * 28
    ngrid = 256 if opts.get("dup256") else nG2
    k = Kern("l1_kernel", ngrid, 512, lds, vgpr=256, sgpr=96)
    e = k.e
    stamps = opts.get("stamps", False)
    e(f"s_cmp_ge_u32 s2, {ngrid}"); e("s_cbranch_scc1 l1_end")
    e("s_mov_b32 s92, s2")
    if opts.get("dup256"):
        for _ in range(2):
            e(f"s_cmp_ge_u32 s2, {nG2}"); e(f"s_cselect_b32 s3, {nG2}, 0"); e("s_sub_u32 s2, s2, s3")
    e("s_load_dwordx2 s[4:5], s[0:1], 96")
    e("s_load_dwordx2 s[6:7], s[0:1], 40")
    e("s_load_dwordx2 s[8:9], s[0:1], 48")
    if stamps: e("s_memrealtime s[80:81]")
    e("v_lshrrev_b32 v1, 6, v0"); e("v_and_b32 v2, 63, v0")
    e("s_nop 0"); e("v_readfirstlane_b32 s3, v1")
    h = ndb // 2; lh = h.bit_length() - 1
    e("s_and_b32 s10, s2, 1"); e(f"s_lshl_b32 s10, s10, {lh}"); e(f"s_bfe_u32 s11, s2, {(lh << 16) | 3:#x}"); e("s_add_u32 s10, s10, s11")
    e("s_bfe_u32 s11, s2, 0x20001"); e("s_mul_i32 s11, s11, 7"); e(f"s_lshr_b32 s12, s2, {3+lh}"); e("s_add_u32 s11, s11, s12")
    e("s_waitcnt lgkmcnt(0)")
    k.srd(16, 4, 0x1800000)
    k.srd(20, 6, S_*F_*2)
    k.srd(24, 8, F_*2)
    e("s_cmp_ge_u32 s3, 4"); e("s_cbranch_scc0 l1_g2_cons")
    e("s_sub_u32 s3, s3, 4")
    nkg = BKk // 32
    vPs = [8 + i for i in range(nkg)]; vTs = [12 + i for i in range(2*nkg)]
    e("v_lshlrev_b32 v8, 4, v2")
    for cg in range(1, nkg): e(f"v_add_u32 v{8+cg}, {cg*4*D_*16}, v8")
    e(f"s_lshl_b32 s13, s3, 14")
    e(f"s_mul_i32 s28, s10, {BM*16}"); e("s_add_u32 s28, s28, s13"); e(f"s_add_u32 s28, s28, {WS_HT:#x}")
    lane_T_dma_off(e, 16, 12, 2, 6, F_*2, 3)
    for sg in range(2):
        for kg in range(nkg):
            n = sg*nkg + kg
            if n: e(f"v_add_u32 v{12+n}, {sg*128 + kg*32*F_*2}, v12")
    e("s_lshl_b32 s29, s11, 8")
    e(f"s_mul_i32 s30, s3, {c2.BM*16}")
    e(f"s_lshl_b32 s31, s3, 10"); e(f"s_add_u32 s31, s31, {c2.PB}")
    R = dict(vP=vPs, vT=vTs, sP=28, sT=29, srdP=16, srdT=20, sBase=30, sLds=32, sStage=34, sCnt=35, stepP=(BKk//8)*D_*16, stepT=BKk*F_*2)
    producer_loop(k, c2, S_//BKk, R, noload=opts.get("noload"))
    e("s_endpgm")
    e("l1_g2_cons:")
    e("s_lshr_b32 s12, s3, 1"); e("s_and_b32 s13, s3, 1")
    e("v_lshrrev_b32 v6, 5, v2"); e("v_and_b32 v8, 31, v2")
    e("s_mov_b32 s40, 0xffff0000")
    mt = BM // 32
    acc = [[128 + (i*4+j)*4 for j in range(4)] for i in range(mt)]
    vP = [4]; vT = [5, 3]
    e("v_lshrrev_b32 v9, 4, v2"); e("v_lshlrev_b32 v7, 3, v9")
    e("s_lshl_b32 s14, s11, 8"); e("s_lshl_b32 s15, s13, 6"); e("s_add_u32 s14, s14, s15")
    for j in range(4):
        r = 64 + j*2
        e(f"buffer_load_dwordx2 v[{r}:{r+1}], v7, s[24:27], s14 offen offset:{(j//2)*128 + (j%2)*32}")
    e(f"v_mul_u32_u24 v4, {c2.BM*16}, v9"); e("v_and_b32 v10, 15, v2"); e(f"v_lshl_add_u32 v4, v10, 4, v4")
    e(f"s_mul_i32 s15, s12, {BM*8}"); e(f"v_add_u32 v4, s15, v4")
    lane_T_read_off(e, 16, 5, 2, 9, 10)
    e("s_lshl_b32 s15, s13, 6"); e(f"v_xor_b32 v5, s15, v5"); e("v_xor_b32 v3, 32, v5")
    e("s_waitcnt vmcnt(0)")
    for j in range(4):
        for hh in range(2):
            src = 64 + j*2 + hh
            d0 = acc[0][j] + hh*2
            e(f"v_lshlrev_b32 v{d0}, 16, v{src}")
            e(f"v_and_b32 v{d0+1}, s40, v{src}")
        for i in range(1, mt):
            for q in range(0, 4, 2):
                e(f"v_mov_b64 v[{acc[i][j]+q}:{acc[i][j]+q+1}], v[{acc[0][j]+q}:{acc[0][j]+q+1}]")
    nP, nT = mt*nkg, 4*nkg
    p_off = [(0, kk*4*BM*16 + i*256) for kk in range(nkg) for i in range(mt)]
    t_desc = [(j % 2, c2.PB + (j//2)*BKk*128 + kk*4096) for kk in range(nkg) for j in range(4)]
    order = [(kk*mt+i, kk*4+j, i, j) for kk in range(nkg) for i in range(mt) for j in range(4)]
    npb = opts.get("npb", 2*mt); ntb = opts.get("ntb", 8)
    pbufs = [16 + 4*i for i in range(npb)]; tbufs = [16 + 4*npb + 4*j for j in range(ntb)]
    assert 16 + 4*npb + 4*ntb <= 128
    bar_pos = opts.get("bar_pos", (nkg-1)*mt*4 + 2); rpg = opts.get("rpg", 1)
    if stamps: e("s_memrealtime s[82:83]"); e("s_memtime s[88:89]")
    consumer_loop(k, c2, S_//BKk, 16, nP, nT, p_off, t_desc, acc, pbufs, tbufs, vP, vT, False, order, 36, 37, 38, rpg=rpg, bar_pos=bar_pos)
    if stamps: e("s_memrealtime s[84:85]"); e("s_memtime s[90:91]")
    e("s_waitcnt lgkmcnt(0)")
    e("s_nop 15")
    e("v_lshlrev_b32 v7, 14, v6"); e("v_lshl_add_u32 v7, v8, 4, v7")
    e("s_lshl_b32 s14, s11, 18"); e("s_lshl_b32 s15, s13, 16"); e("s_add_u32 s14, s14, s15")
    e(f"s_mul_i32 s15, s10, {BM*16}"); e("s_add_u32 s14, s14, s15"); e(f"s_mul_i32 s15, s12, {BM*8}"); e("s_add_u32 s14, s14, s15")
    e(f"s_add_u32 s14, s14, {WS_UT:#x}")
    e(f"s_mov_b32 s42, {f32(GELU_K3)}"); e(f"s_mov_b32 s43, {f32(GELU_K3)}")
    e(f"v_mov_b32 v10, {f32(GELU_K1)}"); e(f"v_mov_b32 v11, {f32(GELU_K1)}")
    blk = 0
    for j in range(4):
        e(f"s_add_u32 s15, s14, {((j//2)*8 + (j%2)*2)*16384}")
        for i in range(0, mt, 4):
            t = 16 + (blk % 2) * 24; o = t + 16; blk += 1
            gelu_block(e, [acc[i+b][j] + q for b in range(4) for q in (0, 2)], t, o)
            e("s_nop 1")
            for pr in range(2):
                e(f"v_permlane16_swap_b32 v{o+4*pr}, v{o+4*pr+2}")
                e(f"v_permlane16_swap_b32 v{o+4*pr+1}, v{o+4*pr+3}")
            for pr in range(2):
                e(f"buffer_store_dwordx4 v[{o+4*pr}:{o+4*pr+3}], v7, s[16:19], s15 offen offset:{(i+2*pr)*256}")
    if stamps: emit_stamp_store(e, "l1_end")
    e("l1_end:")
    return k

if __name__ == "__main__":
    out = sys.argv[1]
    opts = eval("dict(" + (sys.argv[2] if len(sys.argv) > 2 else "") + ")")
    write_file(out, [gen_pre(), gen_g2test(opts)])
```

```python
import sys
from gen import *

WS_QOP = 0x0000000
WS_KVP = 0x1500000
NQ = 9
WS_PART = 0x2400000
WS_SIZE = 0x4000000
DBG, WS, X, WQKV, WPHI, WO, W1, B1, GW, OUT = 4, 6, 64, 66, 68, 70, 72, 74, 76, 78
SCR = 128*1024

def softmax_units(e, units, sL, norm):
    U = units
    xs = lambda u: [u["x"][0]+i for i in range(4)] + [u["x"][1]+i for i in range(4)]
    for u in U:
        x = xs(u); a = u["st"]; e(f"v_max3_f32 v{a}, v{x[0]}, v{x[1]}, v{x[2]}"); e(f"v_min3_f32 v{a+1}, v{x[0]}, v{x[1]}, v{x[2]}")
    for n in (3, 5):
        for u in U:
            x = xs(u); a = u["st"]; e(f"v_max3_f32 v{a}, v{a}, v{x[n]}, v{x[n+1]}"); e(f"v_min3_f32 v{a+1}, v{a+1}, v{x[n]}, v{x[n+1]}")
    for u in U:
        x = xs(u); a = u["st"]; e(f"v_max_f32 v{a}, v{a}, v{x[7]}"); e(f"v_max_f32_e64 v{a+1}, -v{a+1}, -v{x[7]}")
    def cross(op):
        pad = (lambda: e("s_nop 1")) if len(U) < 3 else (lambda: None)
        pad()
        for u in U: a = u["st"]; e(f"v_permlane32_swap_b32 v{a}, v{a+1}")
        for u in U: a = u["st"]; e(f"{op} v{a}, v{a}, v{a+1}")
        for u in U: a = u["st"]; e(f"v_mov_b32 v{a+1}, v{a}")
        pad()
        for u in U: a = u["st"]; e(f"v_permlane16_swap_b32 v{a}, v{a+1}")
        for u in U: a = u["st"]; e(f"{op} v{a}, v{a}, v{a+1}")
        for u in U: a = u["st"]; e(f"v_mov_b32 v{a+1}, v{a}")
        pad()
        for u in U: a = u["st"]; e(f"v_permlane32_swap_b32 v{a}, v{a+1}")
    cross("v_max_f32")
    for u in U:
        a = u["st"]; e(f"v_pk_mul_f32 v[{a}:{a+1}], v[{a}:{a+1}], s[{sL}:{sL+1}]")
    for u in U:
        a = u["st"]
        for h in range(2):
            for q in (0, 2):
                x = u["x"][h] + q; n = h*4 + q
                e(f"v_pk_fma_f32 v[{u['ep']+n}:{u['ep']+n+1}], v[{x}:{x+1}], s[{sL}:{sL+1}], v[{a}:{a+1}] op_sel:[0,0,0] op_sel_hi:[1,1,0] neg_lo:[0,0,1] neg_hi:[0,0,1]")
                e(f"v_pk_fma_f32 v[{u['em']+n}:{u['em']+n+1}], v[{x}:{x+1}], s[{sL}:{sL+1}], v[{a}:{a+1}] op_sel:[0,0,1] op_sel_hi:[1,1,1] neg_lo:[1,0,1] neg_hi:[1,0,1]")
    for u in U:
        for n in range(8): e(f"v_exp_f32 v{u['ep']+n}, v{u['ep']+n}")
        for n in range(8): e(f"v_exp_f32 v{u['em']+n}, v{u['em']+n}")
    if norm:
        for u in U:
            a = u["st"]
            e(f"v_pk_add_f32 v[{a}:{a+1}], v[{u['ep']}:{u['ep']+1}], v[{u['ep']+2}:{u['ep']+3}]")
            e(f"v_pk_add_f32 v[{a+2}:{a+3}], v[{u['em']}:{u['em']+1}], v[{u['em']+2}:{u['em']+3}]")
        for n in (4, 6):
            for u in U:
                a = u["st"]
                e(f"v_pk_add_f32 v[{a}:{a+1}], v[{a}:{a+1}], v[{u['ep']+n}:{u['ep']+n+1}]")
                e(f"v_pk_add_f32 v[{a+2}:{a+3}], v[{a+2}:{a+3}], v[{u['em']+n}:{u['em']+n+1}]")
        for u in U:
            a = u["st"]; e(f"v_add_f32 v{a}, v{a}, v{a+1}"); e(f"v_add_f32 v{a+1}, v{a+2}, v{a+3}")
        cross("v_add_f32")
        for u in U:
            a = u["st"]; e(f"v_rcp_f32 v{a}, v{a}"); e(f"v_rcp_f32 v{a+1}, v{a+1}")
        if len(U) < 2: e("s_nop 0")
        for u in U:
            a = u["st"]
            for n in range(0, 8, 2):
                e(f"v_pk_mul_f32 v[{u['ep']+n}:{u['ep']+n+1}], v[{u['ep']+n}:{u['ep']+n+1}], v[{a}:{a+1}] op_sel:[0,0] op_sel_hi:[1,0]")
                e(f"v_pk_mul_f32 v[{u['em']+n}:{u['em']+n+1}], v[{u['em']+n}:{u['em']+n+1}], v[{a}:{a+1}] op_sel:[0,1] op_sel_hi:[1,1]")
    else:
        e("s_nop 0")
    for u in U:
        for n in range(4): e(f"v_cvt_pk_bf16_f32 v{u['out']+n}, v{u['ep']+2*n}, v{u['ep']+2*n+1}")
        for n in range(4): e(f"v_cvt_pk_bf16_f32 v{u['out']+4+n}, v{u['em']+2*n}, v{u['em']+2*n+1}")

def load_wphi(e, tmp, srd, sOff, vt):
    e(f"v_lshrrev_b32 v{vt}, 4, v2"); e(f"v_lshlrev_b32 v{vt}, 8, v{vt}")
    e(f"v_and_b32 v{vt+1}, 15, v2"); e(f"v_lshl_add_u32 v{vt}, v{vt+1}, 1, v{vt}")
    for fb in range(2):
        for j in range(8):
            d = j if j < 4 else 16 + j - 4
            e(f"buffer_load_ushort v{tmp+fb*8+j}, v{vt}, s[{srd}:{srd+3}], s{sOff} offen offset:{d*64 + fb*32}")

def pack_wphi(e, dst, tmp):
    for n in range(8): e(f"v_lshl_or_b32 v{dst+n}, v{tmp+2*n+1}, 16, v{tmp+2*n}")

def spin_until(k, vtmp, voff, srd, off, target, stmp, sleep=4):
    e = k.e
    L = k.lab("spin"); Lok = k.lab("spinok")
    e(f"s_mov_b32 s{stmp+1}, 0x100000")
    e(f"{L}:")
    e(f"v_readfirstlane_b32 s{stmp}, v{vtmp}")
    e(f"s_sub_u32 s{stmp+1}, s{stmp+1}, 1")
    e(f"s_cbranch_scc1 {Lok}")
    e(f"s_cmp_ge_u32 s{stmp}, {target}")
    e(f"s_cbranch_scc1 {Lok}")
    e(f"s_sleep {sleep}")
    e(f"buffer_load_dword v{vtmp}, v{voff}, s[{srd}:{srd+3}], {off} offen sc1")
    e("s_waitcnt vmcnt(0)")
    e(f"s_branch {L}")
    e(f"{Lok}:")

def gen_a(opts):
    c1 = GemmCfg(128, 3, 3, 64, prow=True)
    c2 = GemmCfg(128, 2, 4, 64)
    k = Kern("a_kernel", 256, 512, 160*1024, vgpr=256, sgpr=100)
    e = k.e
    stamps = opts.get("stamps", False)
    upto = opts.get("upto", 9)
    EST = opts.get("est", " sc1")
    e("s_cmp_ge_u32 s2, 256"); e("s_cbranch_scc1 a_end")
    e("s_load_dwordx8 s[64:71], s[0:1], 0")
    e("s_load_dwordx4 s[72:75], s[0:1], 40")
    e("s_load_dwordx4 s[76:79], s[0:1], 72")
    e("s_load_dwordx4 s[4:7], s[0:1], 88")
    if stamps: e("s_memrealtime s[80:81]")
    e("s_mov_b32 s92, s2")
    e("v_lshrrev_b32 v1, 6, v0"); e("v_and_b32 v2, 63, v0")
    e("s_lshr_b32 s56, s2, 3")
    e("v_readfirstlane_b32 s3, v1")
    if opts.get("map1", "8x4") == "8x4":
        e("s_and_b32 s52, s2, 1"); e("s_lshl_b32 s52, s52, 3"); e("s_and_b32 s60, s56, 7"); e("s_add_u32 s52, s52, s60")
        e("s_bfe_u32 s53, s2, 0x20001"); e("s_lshl_b32 s53, s53, 2"); e("s_lshr_b32 s60, s56, 3"); e("s_add_u32 s53, s53, s60")
    else:
        e("s_and_b32 s52, s2, 3"); e("s_lshl_b32 s52, s52, 2"); e("s_and_b32 s60, s56, 3"); e("s_add_u32 s52, s52, s60")
        e("s_bfe_u32 s53, s2, 0x10002"); e("s_lshl_b32 s53, s53, 3"); e("s_lshr_b32 s60, s56, 2"); e("s_add_u32 s53, s53, s60")
    e("s_and_b32 s54, s2, 1"); e("s_lshl_b32 s54, s54, 2"); e("s_and_b32 s60, s56, 3"); e("s_add_u32 s54, s54, s60")
    e("s_bfe_u32 s55, s2, 0x20001"); e("s_mul_i32 s55, s55, 7"); e("s_lshr_b32 s60, s56, 2"); e("s_add_u32 s55, s55, s60")
    e("s_waitcnt lgkmcnt(0)")
    k.srd(16, WS, WS_SIZE)
    k.srd(20, X, S_*D_*2)
    k.srd(40, DBG, 256)
    e("s_cmp_ge_u32 s3, 4"); e("s_cbranch_scc0 a_cons")
    k.srd(24, WQKV, D_*3*D_*2)
    e("s_sub_u32 s3, s3, 4")
    e("v_lshrrev_b32 v3, 3, v2")
    e("s_lshl_b32 s60, s3, 5"); e("v_add_u32 v4, s60, v3"); e("v_lshlrev_b32 v4, 11, v4")
    e("v_lshrrev_b32 v5, 1, v3"); e("v_xor_b32 v5, v5, v2"); e("v_and_b32 v5, 7, v5")
    e("v_lshl_add_u32 v8, v5, 4, v4")
    e("v_xor_b32 v9, 64, v8"); e(f"v_add_u32 v9, {8*2048}, v9")
    e(f"v_add_u32 v10, {16*2048}, v8"); e(f"v_add_u32 v11, {16*2048}, v9")
    lane_T_dma_off(e, 16, 12, 2, 6, 6144, 3)
    for n in range(1, 6):
        sg, kg = divmod(n, 2)
        e(f"v_add_u32 v{12+n}, {sg*2048 + kg*32*6144}, v12")
    e("s_lshl_b32 s28, s52, 18")
    e("s_lshl_b32 s29, s53, 7")
    e("s_lshl_b32 s30, s3, 12")
    e("s_lshl_b32 s31, s3, 10"); e(f"s_add_u32 s31, s31, {c1.PB}")
    e("v_mov_b32 v20, 0"); e("v_mov_b32 v21, 1")
    R1 = dict(vP=[8, 9, 10, 11], vT=list(range(12, 18)), sP=28, sT=29, srdP=20, srdT=24, sBase=30, sLds=32, sStage=34, sCnt=35, stepP=128, stepT=64*6144)
    rot = opts.get("rot1")
    if rot:
        mask, mul = rot
        e(f"s_and_b32 s8, s52, {mask}"); e(f"s_mul_i32 s8, s8, {mul}"); e("s_and_b32 s8, s8, 15")
        e("s_mov_b32 s9, s28"); e("s_mov_b32 s10, s29")
        e("s_lshl_b32 s11, s8, 7"); e("s_add_u32 s28, s28, s11"); e(f"s_mul_i32 s11, s8, {64*6144}"); e("s_add_u32 s29, s29, s11")
        R1["rot"] = (8, 16, 9, 10, 11)
    def signal(off_sgpr_or_imm, lab):
        return [f"s_cmp_lg_u32 s3, 0", f"s_cbranch_scc1 {lab}", "s_mov_b64 s[62:63], exec", "s_mov_b64 exec, 1",
                f"buffer_atomic_add v21, v20, s[40:43], {off_sgpr_or_imm} offen sc1", "s_mov_b64 exec, s[62:63]", f"{lab}:"]
    inj1 = {3: signal("0", "a_sig1"), 12: ["buffer_load_dword v22, v20, s[40:43], 0 offen sc1"]}
    producer_loop(k, c1, 16, R1, noload=opts.get("noload1"), inject=inj1, unroll_until=13, after_prologue=["s_barrier"], tail_extra=1)
    if upto >= 2:
        e("s_cmp_ge_u32 s56, 28"); e("s_cbranch_scc1 a_ostage_p")
        k.srd(24, W1, S_*F_*2)
        e("v_lshlrev_b32 v8, 4, v2"); e(f"v_add_u32 v9, {4*D_*16}, v8")
        e("s_lshl_b32 s60, s3, 14")
        e(f"s_lshl_b32 s28, s54, 11"); e("s_add_u32 s28, s28, s60"); e(f"s_add_u32 s28, s28, {WS_HT:#x}")
        lane_T_dma_off(e, 16, 12, 2, 6, F_*2, 3)
        for n in range(1, 4):
            sg, kg = divmod(n, 2)
            e(f"v_add_u32 v{12+n}, {sg*128 + kg*32*F_*2}, v12")
        e("s_lshl_b32 s29, s55, 8")
        e("s_lshl_b32 s30, s3, 11")
        e("s_lshl_b32 s31, s3, 10"); e(f"s_add_u32 s31, s31, {c2.PB}")
        e("s_lshl_b32 s59, s53, 2"); e("s_add_u32 s59, s59, 64")
        e("s_waitcnt vmcnt(0)")
        spin_until(k, 22, 20, 40, "0", 256, 60)
        R2 = dict(vP=[8, 9], vT=[12, 13, 14, 15], sP=28, sT=29, srdP=16, srdT=24, sBase=30, sLds=32, sStage=34, sCnt=35, stepP=8*D_*16, stepT=64*F_*2)
        producer_loop(k, c2, 32, R2, inject={opts.get("sig2", 2): signal("s59", "a_sig2")}, unroll_until=opts.get("sig2", 2)+1, flags=(" sc1" if opts.get("hsc1", True) else "", ""))
    e("s_endpgm")
    e("a_cons:")
    e("s_lshr_b32 s57, s3, 1"); e("s_and_b32 s58, s3, 1")
    HP = 2112
    e("v_lshlrev_b32 v3, 4, v2")
    e("v_lshl_add_u32 v4, v1, 12, v3")
    e("s_lshl_b32 s33, s2, 14")
    e("buffer_load_dwordx4 v[8:11], v4, s[20:23], s33 offen")
    e("buffer_load_dwordx4 v[12:15], v4, s[20:23], s33 offen offset:1024")
    e("buffer_load_dwordx4 v[16:19], v4, s[20:23], s33 offen offset:2048")
    e("buffer_load_dwordx4 v[20:23], v4, s[20:23], s33 offen offset:3072")
    k.srd(24, GW, D_*2)
    e("buffer_load_dwordx4 v[24:27], v3, s[24:27], 0 offen")
    e("buffer_load_dwordx4 v[28:31], v3, s[24:27], 0 offen offset:1024")
    k.srd(44, WPHI, 32*2048)
    e("s_lshl_b32 s59, s53, 1"); e("s_add_u32 s59, s59, s58")
    e("s_lshl_b32 s60, s59, 11")
    load_wphi(e, 96, 44, 60, 5)
    k.srd(48, B1, F_*2)
    e("v_lshrrev_b32 v7, 4, v2"); e("v_lshlrev_b32 v7, 3, v7")
    e("s_lshl_b32 s60, s55, 8"); e("s_lshl_b32 s61, s58, 6"); e("s_add_u32 s60, s60, s61")
    for j in range(4):
        e(f"buffer_load_dwordx2 v[{152+2*j}:{153+2*j}], v7, s[48:51], s60 offen offset:{(j//2)*128 + (j%2)*32}")
    e("v_mov_b32 v5, 0"); e("v_lshlrev_b32 v6, 2, v0")
    e(f"s_lshl_b32 s60, s2, 10"); e(f"s_add_u32 s60, s60, {WS_FLAG:#x}")
    e("buffer_store_dword v5, v6, s[16:19], s60 offen")
    acc = [[160 + (i*6+j)*4 for j in range(6)] for i in range(4)]
    for r in range(160, 256, 2): e(f"v_mov_b64 v[{r}:{r+1}], 0")
    e(f"v_mul_u32_u24 v6, {2*HP}, v1"); e("v_add_u32 v6, v6, v3"); e(f"v_add_u32 v6, {SCR}, v6")
    e("s_mov_b32 s36, 0xffff0000")
    e("s_waitcnt vmcnt(23)")
    for r in range(2):
        for i in range(8):
            src = 8 + 8*r + i
            e(f"v_lshlrev_b32 v{32+16*r+2*i}, 16, v{src}")
            e(f"v_and_b32 v{33+16*r+2*i}, s36, v{src}")
    e("s_waitcnt vmcnt(21)")
    for i in range(8):
        e(f"v_lshlrev_b32 v{64+2*i}, 16, v{24+i}")
        e(f"v_and_b32 v{65+2*i}, s36, v{24+i}")
    for r in range(2):
        b = 32 + 16*r
        e(f"v_pk_add_f32 v[{80+2*r}:{81+2*r}], v[{b}:{b+1}], v[{b+2}:{b+3}]")
        e(f"v_pk_mul_f32 v[{84+2*r}:{85+2*r}], v[{b}:{b+1}], v[64:65]")
    for i in range(4, 16, 2):
        for r in range(2):
            b = 32 + 16*r
            e(f"v_pk_add_f32 v[{80+2*r}:{81+2*r}], v[{80+2*r}:{81+2*r}], v[{b+i}:{b+i+1}]")
    for i in range(2, 16, 2):
        for r in range(2):
            b = 32 + 16*r
            e(f"v_pk_fma_f32 v[{84+2*r}:{85+2*r}], v[{b+i}:{b+i+1}], v[{64+i}:{65+i}], v[{84+2*r}:{85+2*r}]")
    for n in range(4): e(f"v_add_f32 v{80+2*n}, v{80+2*n}, v{81+2*n}")
    dpp_reduce_sum_multi(e, [80, 82, 84, 86])
    e("s_nop 1")
    for n in range(4): e(f"v_readlane_b32 s{28+n}, v{80+2*n}, 63")
    e(f"s_mov_b32 s32, {f32(-1.0/1024)}")
    e("s_nop 0")
    e("v_mov_b32 v88, s28"); e("v_mov_b32 v90, s29")
    e("v_mul_f32 v88, s32, v88"); e("v_mul_f32 v90, s32, v90")
    for i in range(0, 16, 2):
        for r in range(2):
            b = 32 + 16*r
            e(f"v_pk_add_f32 v[{b+i}:{b+i+1}], v[{b+i}:{b+i+1}], v[{88+2*r}:{89+2*r}] op_sel_hi:[1,0]")
    for r in range(2):
        b = 32 + 16*r
        e(f"v_pk_mul_f32 v[{80+2*r}:{81+2*r}], v[{b}:{b+1}], v[{b}:{b+1}]")
    for i in range(2, 16, 2):
        for r in range(2):
            b = 32 + 16*r
            e(f"v_pk_fma_f32 v[{80+2*r}:{81+2*r}], v[{b+i}:{b+i+1}], v[{b+i}:{b+i+1}], v[{80+2*r}:{81+2*r}]")
    e("v_add_f32 v80, v80, v81"); e("v_add_f32 v82, v82, v83")
    e("v_mov_b32 v86, s30"); e("v_mov_b32 v87, s31")
    e("v_cmp_eq_u32 vcc, 1, v2"); e("s_nop 1"); e("v_cndmask_b32 v86, v86, v87, vcc")
    e(f"v_mul_f32 v86, {f32(-LOG2E)}, v86")
    e("v_exp_f32 v86, v86"); e("s_nop 0"); e("v_add_f32 v86, 1.0, v86"); e("v_rcp_f32 v86, v86")
    dpp_reduce_sum_multi(e, [80, 82])
    e("s_nop 1")
    e("v_readlane_b32 s28, v80, 63"); e("v_readlane_b32 s29, v82, 63")
    e(f"s_mov_b32 s32, {f32(1.0/1024)}")
    e(f"v_mov_b32 v84, {f32(1e-5)}")
    e("v_mov_b32 v88, s28"); e("v_mov_b32 v90, s29")
    e("v_fma_f32 v88, v88, s32, v84"); e("v_fma_f32 v90, v90, s32, v84")
    e("v_rsq_f32 v88, v88"); e("v_rsq_f32 v90, v90")
    e("v_lshl_add_u32 v87, v1, 1, v2"); e("v_lshlrev_b32 v87, 2, v87")
    e(f"s_lshl_b32 s60, s2, 5"); e(f"s_add_u32 s60, s60, {WS_G:#x}")
    e("s_mov_b64 exec, 3")
    e("buffer_store_dword v86, v87, s[16:19], s60 offen sc1")
    e("s_mov_b64 exec, -1")
    for r in range(2):
        b = 32 + 16*r
        for i in range(0, 16, 2):
            e(f"v_pk_mul_f32 v[{b+i}:{b+i+1}], v[{b+i}:{b+i+1}], v[{88+2*r}:{89+2*r}] op_sel_hi:[1,0]")
        for i in range(8):
            e(f"v_cvt_pk_bf16_f32 v{8+8*r+i}, v{b+2*i}, v{b+2*i+1}")
    e("ds_write_b128 v6, v[8:11]"); e("ds_write_b128 v6, v[12:15] offset:1024")
    e(f"ds_write_b128 v6, v[16:19] offset:{HP}"); e(f"ds_write_b128 v6, v[20:23] offset:{HP+1024}")
    e("v_and_b32 v32, 15, v0"); e("v_lshrrev_b32 v33, 2, v32")
    e(f"v_mul_u32_u24 v33, {HP}, v33")
    e("v_and_b32 v34, 3, v0"); e("v_lshlrev_b32 v34, 3, v34")
    e("v_lshrrev_b32 v35, 4, v0"); e("v_lshlrev_b32 v35, 5, v35")
    e("v_add3_u32 v33, v33, v34, v35"); e(f"v_add_u32 v33, {SCR}, v33")
    e("v_lshlrev_b32 v36, 4, v0")
    e(f"s_add_u32 s33, s33, {WS_HT:#x}")
    e("v_and_b32 v37, 15, v2"); e("v_lshrrev_b32 v38, 4, v2")
    e("v_lshrrev_b32 v39, 1, v37"); e("v_xor_b32 v39, v39, v38")
    e("s_lshl_b32 s60, s57, 6"); e("v_add_u32 v4, s60, v37"); e("v_lshlrev_b32 v4, 7, v4"); e("v_lshl_add_u32 v4, v39, 4, v4")
    e("v_xor_b32 v5, 64, v4")
    e("s_waitcnt lgkmcnt(0)"); e("s_barrier")
    for j in range(4):
        e(f"ds_read_b64_tr_b16 v[{40+4*j}:{41+4*j}], v33 offset:{512*j}")
        e(f"ds_read_b64_tr_b16 v[{42+4*j}:{43+4*j}], v33 offset:{512*j+4*HP}")
    lane_T_read_off(e, 16, 6, 2, 37, 38)
    e("s_lshl_b32 s60, s58, 6"); e("v_xor_b32 v6, s60, v6"); e("v_xor_b32 v7, 32, v6")
    for j in range(4):
        e(f"s_waitcnt lgkmcnt({6-2*j})")
        e(f"buffer_store_dwordx4 v[{40+4*j}:{43+4*j}], v36, s[16:19], s33 offen sc1")
        if j < 3: e(f"s_add_u32 s33, s33, 4096")
    e("s_nop 1")
    p_off = [(kk, i*2048) for kk in range(2) for i in range(4)]
    t_desc = [(j % 2, c1.PB + (j//2)*8192 + kk*4096) for kk in range(2) for j in range(6)]
    order = [(kk*4+i, kk*6+j, i, j) for kk in range(2) for i in range(4) for j in range(6)]
    pbufs = [16 + 4*i for i in range(8)]; tbufs = [48 + 4*j for j in range(12)]
    if stamps: e("s_memrealtime s[82:83]"); e("s_memtime s[94:95]")
    consumer_loop(k, c1, [(3, ["s_waitcnt vmcnt(0)"]), (13, [])], 16, 8, 12, p_off, t_desc, acc, pbufs, tbufs, [4, 5], [6, 7],
                  lambda i, j: j >= 4, order, 36, 37, 38, rpg=opts.get("rpg1", 1), bar_pos=opts.get("bar1", 26))
    if stamps: e("s_memrealtime s[84:85]"); e("s_memtime s[96:97]")
    e("s_waitcnt lgkmcnt(0)")
    e("s_nop 7")
    Q, K, V, PK, KV, EF = 16, 32, 48, 64, 96, 240
    pack_wphi(e, 144, 96)
    for sb in range(4):
        for db in range(2):
            a = acc[sb][2+db]
            e(f"v_cvt_pk_bf16_f32 v{K+sb*4+db*2}, v{a}, v{a+1}"); e(f"v_cvt_pk_bf16_f32 v{K+sb*4+db*2+1}, v{a+2}, v{a+3}")
    for sb in range(4):
        for db in range(2):
            a = acc[sb][db]
            e(f"v_cvt_pk_bf16_f32 v{Q+sb*4+db*2}, v{a}, v{a+1}"); e(f"v_cvt_pk_bf16_f32 v{Q+sb*4+db*2+1}, v{a+2}, v{a+3}")
    for sb in range(4):
        for fb in range(2):
            d = PK + (sb*2+fb)*4
            e(f"v_mfma_f32_16x16x32_bf16 v[{d}:{d+3}], v[{144+fb*4}:{147+fb*4}], v[{K+sb*4}:{K+sb*4+3}], 0")
    e("s_lshl_b32 s60, s59, 17"); e("s_lshl_b32 s61, s52, 13"); e("s_add_u32 s60, s60, s61"); e("s_lshl_b32 s61, s57, 12"); e("s_add_u32 s60, s60, s61")
    for sb in range(4):
        e(f"buffer_store_dwordx4 v[{Q+sb*4}:{Q+sb*4+3}], v3, s[16:19], s60 offen offset:{sb*1024}{EST}") if EST != "none" else None
    for p in range(2):
        for db in range(2):
            for h in range(2):
                a = acc[2*p+h][4+db]; d = V + (p*2+db)*4 + h*2
                e(f"v_cvt_pk_bf16_f32 v{d}, v{a}, v{a+1}"); e(f"v_cvt_pk_bf16_f32 v{d+1}, v{a+2}, v{a+3}")
    e(f"s_mov_b32 s62, {f32(LOG2E)}"); e(f"s_mov_b32 s63, {f32(LOG2E)}")
    e("v_and_b32 v14, 15, v2"); e("v_lshrrev_b32 v15, 4, v2")
    e(f"s_mul_i32 s60, s3, 5120"); e(f"s_add_u32 s60, s60, {SCR}")
    e("v_mul_u32_u24 v12, 160, v14"); e("v_lshl_add_u32 v12, v15, 3, v12"); e("v_add_u32 v12, s60, v12")
    e("v_lshrrev_b32 v14, 2, v14"); e("v_lshl_add_u32 v14, v15, 2, v14"); e("v_mul_u32_u24 v13, 160, v14")
    e("v_and_b32 v14, 3, v2"); e("v_lshl_add_u32 v13, v14, 3, v13"); e("v_add_u32 v13, s60, v13")
    units = [dict(x=[PK+sb*8, PK+sb*8+4], ep=160+sb*16, em=168+sb*16, st=224+sb*4, out=PK+sb*8) for sb in range(4)]
    softmax_units(e, units, 62, True)
    ZB = 160
    e("v_and_b32 v14, 3, v2"); e("v_mov_b32 v15, 0x3f803f80")
    for fbk in range(4):
        e(f"v_cmp_eq_u32 vcc, {fbk}, v14"); e("s_nop 1"); e(f"v_cndmask_b32 v{ZB+4*fbk}, 0, v15, vcc")
        for r in range(1, 4): e(f"v_mov_b32 v{ZB+4*fbk+r}, v{ZB+4*fbk}")
    for p in range(2):
        for h in range(2):
            o = units[2*p+h]["out"]
            for fbk in range(4):
                e(f"ds_write_b64 v12, v[{o+2*fbk}:{o+2*fbk+1}] offset:{h*16*160 + fbk*32}")
        e("s_waitcnt lgkmcnt(0)")
        for fbk in range(4):
            for t in range(2):
                e(f"ds_read_b64_tr_b16 v[{EF+fbk*4+2*t}:{EF+fbk*4+2*t+1}], v13 offset:{t*16*160 + fbk*32}")
        for fbk in range(4):
            e(f"s_waitcnt lgkmcnt({6-2*fbk})")
            for db in range(3):
                d = KV + (fbk*2+db)*4 if db < 2 else KV + 32
                b = V + (p*2+db)*4 if db < 2 else ZB + 4*fbk
                cc = "0" if (p == 0 and (db < 2 or fbk == 0)) else f"v[{d}:{d+3}]"
                e(f"v_mfma_f32_16x16x32_bf16 v[{d}:{d+3}], v[{EF+fbk*4}:{EF+fbk*4+3}], v[{b}:{b+3}], {cc}")
    e("s_lshl_b32 s60, s59, 5"); e("s_lshl_b32 s61, s52, 1"); e("s_add_u32 s60, s60, s61"); e("s_add_u32 s60, s60, s57")
    e(f"s_mul_i32 s60, s60, {NQ*1024}"); e(f"s_add_u32 s60, s60, {WS_KVP:#x}")
    e("s_nop 7")
    for qd in range(NQ):
        if qd and qd % 4 == 0: e("s_add_u32 s60, s60, 4096")
        e(f"buffer_store_dwordx4 v[{KV+qd*4}:{KV+qd*4+3}], v3, s[16:19], s60 offen offset:{(qd%4)*1024}{EST}") if EST != "none" else None
    if stamps: e("s_memrealtime s[88:89]"); e("s_memtime s[98:99]")
    if upto >= 2:
        e("s_cmp_ge_u32 s56, 28"); e("s_cbranch_scc1 a_ostage_c")
        acc2 = [[192 + (i*4+j)*4 for j in range(4)] for i in range(4)]
        e("s_mov_b32 s36, 0xffff0000")
        for j in range(4):
            for hh in range(2):
                src = 152 + j*2 + hh; d0 = acc2[0][j] + hh*2
                e(f"v_lshlrev_b32 v{d0}, 16, v{src}"); e(f"v_and_b32 v{d0+1}, s36, v{src}")
            for i in range(1, 4):
                for q in (0, 2): e(f"v_mov_b64 v[{acc2[i][j]+q}:{acc2[i][j]+q+1}], v[{acc2[0][j]+q}:{acc2[0][j]+q+1}]")
        e("v_lshrrev_b32 v14, 4, v2"); e("v_lshlrev_b32 v4, 11, v14"); e("v_and_b32 v15, 15, v2"); e("v_lshl_add_u32 v4, v15, 4, v4")
        e("s_lshl_b32 s60, s57, 10"); e("v_add_u32 v4, s60, v4")
        lane_T_read_off(e, 16, 6, 2, 14, 15)
        e("s_lshl_b32 s60, s58, 6"); e("v_xor_b32 v6, s60, v6"); e("v_xor_b32 v7, 32, v6")
        p_off = [(0, kk*8192 + i*256) for kk in range(2) for i in range(4)]
        t_desc = [(j % 2, c2.PB + (j//2)*8192 + kk*4096) for kk in range(2) for j in range(4)]
        order = [(kk*4+i, kk*4+j, i, j) for kk in range(2) for i in range(4) for j in range(4)]
        pbufs = [16 + 4*i for i in range(8)]; tbufs = [48 + 4*j for j in range(8)]
        dbgw = ["s_memtime s[94:95]", "s_waitcnt lgkmcnt(0)", "s_sub_u32 s96, s94, s98", "s_waitcnt vmcnt(0)", "s_memtime s[98:99]", "s_waitcnt lgkmcnt(0)", "s_add_u32 s96, s96, s94", "s_add_u32 s98, s98, s96", "s_sub_u32 s98, s98, s94"] if opts.get("dbgw") else ["s_waitcnt vmcnt(0)"]
        n1 = opts.get("sig2", 2)
        consumer_loop(k, c2, [(n1, dbgw), (32-n1, [])], 16, 8, 8, p_off, t_desc, acc2, pbufs, tbufs, [4], [6, 7],
                      False, order, 36, 37, 38, rpg=1, bar_pos=18)
        if stamps: e("s_memrealtime s[90:91]")
        e("s_waitcnt lgkmcnt(0)")
        e("s_nop 7")
        e("v_lshrrev_b32 v8, 5, v2"); e("v_lshlrev_b32 v7, 14, v8"); e("v_and_b32 v8, 31, v2"); e("v_lshl_add_u32 v7, v8, 4, v7")
        e("s_lshl_b32 s14, s55, 18"); e("s_lshl_b32 s15, s58, 16"); e("s_add_u32 s14, s14, s15")
        e("s_lshl_b32 s15, s54, 11"); e("s_add_u32 s14, s14, s15"); e("s_lshl_b32 s15, s57, 10"); e("s_add_u32 s14, s14, s15")
        e(f"s_add_u32 s14, s14, {WS_UT:#x}")
        e(f"s_mov_b32 s42, {f32(GELU_K3)}"); e(f"s_mov_b32 s43, {f32(GELU_K3)}")
        e(f"v_mov_b32 v10, {f32(GELU_K1)}"); e(f"v_mov_b32 v11, {f32(GELU_K1)}")
        for j in range(4):
            e(f"s_add_u32 s15, s14, {((j//2)*8 + (j%2)*2)*16384}")
            t = 16 + (j % 2) * 24; o = t + 16
            gelu_block(e, [acc2[b][j] + q for b in range(4) for q in (0, 2)], t, o)
            e("s_nop 1")
            for pr in range(2):
                e(f"v_permlane16_swap_b32 v{o+4*pr}, v{o+4*pr+2}")
                e(f"v_permlane16_swap_b32 v{o+4*pr+1}, v{o+4*pr+3}")
            for pr in range(2):
                e(f"buffer_store_dwordx4 v[{o+4*pr}:{o+4*pr+3}], v7, s[16:19], s15 offen offset:{2*pr*256}")
    e("a_stamp:")
    if stamps:
        e("s_waitcnt vmcnt(0)")
        e("s_memrealtime s[86:87]"); e("s_waitcnt lgkmcnt(0)")
        for n, sr in enumerate((80, 82, 84, 88, 90, 86)): e(f"v_mov_b32 v{8+n}, s{sr}")
        e("s_sub_u32 s98, s98, s96"); e("s_sub_u32 s96, s96, s94"); e("v_mov_b32 v14, s96"); e("v_mov_b32 v15, s98")
        e("s_lshl_b32 s41, s92, 5"); e(f"s_add_u32 s41, s41, {WS_STAMP:#x}"); e("v_mov_b32 v7, s41")
        e("v_cmp_eq_u32 vcc, 0, v0"); e("s_and_saveexec_b64 s[42:43], vcc"); e(f"s_cbranch_execz a_end")
        e(f"global_store_dwordx4 v7, v[8:11], s[{WS}:{WS+1}]")
        e(f"global_store_dwordx4 v7, v[12:15], s[{WS}:{WS+1}] offset:16")
    e("s_endpgm")
    if upto >= 2:
        gen_ostage(k, opts)
    e("a_end:")
    return k

def gen_ostage(k, opts):
    e = k.e
    stamps = opts.get("stamps", False)
    e("a_ostage_p:")
    e("s_add_u32 s3, s3, 4")
    e("v_lshlrev_b32 v3, 4, v2")
    e("a_ostage_c:")
    if opts.get("ocut") == 0: e("s_branch a_stamp")
    e("s_and_b32 s59, s92, 7"); e("s_lshl_b32 s59, s59, 2"); e("s_add_u32 s59, s59, s56"); e("s_sub_u32 s59, s59, 28")
    k.srd(44, WPHI, 32*2048)
    e("s_waitcnt vmcnt(0)")
    e("s_barrier")
    WP, Q, G, KO, ZO, FQ, ST, PK, EP = 8, 16, 80, 96, 112, 120, 152, 160, 192
    e("s_lshl_b32 s60, s59, 11")
    load_wphi(e, 96, 44, 60, 5)
    e("v_mov_b32 v4, 0"); e("v_mov_b32 v5, 1")
    e("s_cmp_lg_u32 s3, 0"); e("s_cbranch_scc1 a_o_wait")
    e("s_lshl_b32 s60, s53, 2"); e("s_add_u32 s60, s60, 64")
    e("s_mov_b64 exec, 1")
    e("buffer_atomic_add v5, v4, s[40:43], s60 offen sc1")
    e("s_mov_b64 exec, -1")
    e("s_lshr_b32 s61, s59, 1"); e("s_lshl_b32 s61, s61, 2"); e("s_add_u32 s61, s61, 64")
    e("buffer_load_dword v6, v4, s[40:43], s61 offen sc1"); e("s_waitcnt vmcnt(0)")
    spin_until(k, 6, 4, 40, "s61", 16, 62, sleep=opts.get("osleep", 4))
    e("buffer_load_dword v6, v4, s[40:43], 0 offen sc1"); e("s_waitcnt vmcnt(0)")
    spin_until(k, 6, 4, 40, "0", 256, 62)
    e("a_o_wait:")
    e("s_waitcnt vmcnt(0)")
    pack_wphi(e, WP, 96)
    e("s_barrier")
    if stamps: e("s_memrealtime s[90:91]")
    if opts.get("ocut") == 1: e("s_branch a_stamp")
    e("s_lshl_b32 s60, s59, 5"); e("s_lshl_b32 s61, s3, 2"); e("s_add_u32 s60, s60, s61")
    e(f"s_mul_i32 s60, s60, {NQ*1024}"); e(f"s_add_u32 s60, s60, {WS_KVP:#x}")
    for n in range(4*NQ):
        if n and n % 4 == 0: e("s_add_u32 s60, s60, 4096")
        e(f"buffer_load_dwordx4 v[{112+4*n}:{115+4*n}], v3, s[16:19], s60 offen offset:{(n%4)*1024} sc1")
    e("s_lshl_b32 s60, s59, 17"); e("s_lshl_b32 s61, s3, 14"); e("s_add_u32 s60, s60, s61")
    for n in range(16):
        if n and n % 4 == 0: e("s_add_u32 s60, s60, 4096")
        e(f"buffer_load_dwordx4 v[{Q+4*n}:{Q+4*n+3}], v3, s[16:19], s60 offen offset:{(n%4)*1024} sc1")
    e("s_waitcnt vmcnt(16)")
    e("v_and_b32 v6, 15, v2"); e("v_lshlrev_b32 v6, 2, v6")
    e("s_lshl_b32 s60, s3, 10"); e(f"s_add_u32 s60, s60, {WS_G:#x}")
    for n in range(16):
        e(f"buffer_load_dword v{G+n}, v6, s[16:19], s60 offen offset:{n*64} sc1")
    nr = 4*NQ
    for r in range(0, nr, 2):
        e(f"v_pk_add_f32 v[{112+r}:{113+r}], v[{112+r}:{113+r}], v[{112+nr+r}:{113+nr+r}]")
        e(f"v_pk_add_f32 v[{112+2*nr+r}:{113+2*nr+r}], v[{112+2*nr+r}:{113+2*nr+r}], v[{112+3*nr+r}:{113+3*nr+r}]")
    for r in range(0, nr, 2):
        e(f"v_pk_add_f32 v[{112+r}:{113+r}], v[{112+r}:{113+r}], v[{112+2*nr+r}:{113+2*nr+r}]")
    e(f"s_mul_i32 s60, s3, {NQ*1024}"); e("v_add_u32 v7, s60, v3")
    for qd in range(NQ): e(f"ds_write_b128 v7, v[{112+4*qd}:{115+4*qd}] offset:{qd*1024}")
    e("s_waitcnt lgkmcnt(0)"); e("s_barrier")
    e("s_lshl_b32 s60, s3, 10"); e("v_add_u32 v7, s60, v3")
    def sum8(addr, extra):
        for w in range(8):
            off = w*NQ*1024 + extra
            if off < 65536: e(f"ds_read_b128 v[{160+4*w}:{163+4*w}], v{addr} offset:{off}")
            else: e(f"ds_read_b128 v[{160+4*w}:{163+4*w}], v{addr+1} offset:{off-32768}")
        e("s_waitcnt lgkmcnt(0)")
        for st in (16, 8, 4):
            for r in range(0, st, 2):
                e(f"v_pk_add_f32 v[{160+r}:{161+r}], v[{160+r}:{161+r}], v[{160+st+r}:{161+st+r}]")
    e("v_mov_b32 v6, v7"); e("v_add_u32 v7, 0x8000, v6")
    sum8(6, 0)
    e(f"v_add_u32 v5, {80*1024}, v6")
    e(f"ds_write_b128 v5, v[160:163]")
    e("s_cmp_lg_u32 s3, 0"); e("s_cbranch_scc1 a_o_l2")
    sum8(6, 8*1024)
    e(f"ds_write_b128 v5, v[160:163] offset:8192")
    e("a_o_l2:")
    e("s_waitcnt lgkmcnt(0)"); e("s_barrier")
    e(f"v_add_u32 v5, {80*1024}, v3")
    for qd in range(NQ): e(f"ds_read_b128 v[{FQ+4*qd}:{FQ+4*qd+3}], v5 offset:{qd*1024}")
    e("s_waitcnt lgkmcnt(0)")
    for sg in range(2):
        for db in range(2):
            d = KO + (sg*2+db)*4
            for fb in range(2):
                a = FQ + ((sg*2+fb)*2+db)*4
                e(f"v_cvt_pk_bf16_f32 v{d+2*fb}, v{a}, v{a+1}"); e(f"v_cvt_pk_bf16_f32 v{d+2*fb+1}, v{a+2}, v{a+3}")
    zq = FQ + 32
    for fbk in range(4):
        for r in range(4):
            e(f"v_mov_b32_dpp v{160+fbk*4+r}, v{zq+r} quad_perm:[{fbk},{fbk},{fbk},{fbk}] row_mask:0xf bank_mask:0xf")
    e("v_and_b32 v6, 3, v2"); e("v_mov_b32 v7, 0x3f803f80")
    e("v_cmp_eq_u32 vcc, 1, v6"); e("s_nop 1"); e("v_cndmask_b32 v7, 0, v7, vcc")
    e("v_cmp_eq_u32 vcc, 0, v6")
    for n in range(8): e(f"v_cvt_pk_bf16_f32 v{ZO+n}, v{160+2*n}, v{161+2*n}")
    for n in range(8): e(f"v_cndmask_b32 v{ZO+n}, v7, v{ZO+n}, vcc")
    e(f"s_mov_b32 s62, {f32(LOG2E)}"); e(f"s_mov_b32 s63, {f32(LOG2E)}")
    e("v_lshrrev_b32 v6, 5, v2"); e("v_lshlrev_b32 v7, 15, v6"); e("v_and_b32 v6, 31, v2"); e("v_lshl_add_u32 v7, v6, 4, v7")
    e("s_lshl_b32 s60, s59, 17"); e("s_lshl_b32 s61, s3, 12"); e("s_add_u32 s60, s60, s61"); e(f"s_add_u32 s60, s60, {WS_OT:#x}")
    e(f"s_add_u32 s61, s60, 0x10000")
    e(f"v_mov_b32 v4, {f32(1e-6)}")
    e("s_waitcnt vmcnt(0)")
    nq = [192+4*n for n in range(16)] + [120+4*n for n in range(8)]
    for rd in range(4):
        for u in range(4):
            for fb in range(2):
                d = PK + (u*2+fb)*4; q = Q + (rd*4+u)*4
                e(f"v_mfma_f32_16x16x32_bf16 v[{d}:{d+3}], v[{WP+fb*4}:{WP+fb*4+3}], v[{q}:{q+3}], 0")
        e("s_nop 4")
        units = [dict(x=[PK+u*8, PK+u*8+4], ep=EP+u*16, em=EP+8+u*16, st=ST+u*2, out=PK+u*8) for u in range(4)]
        softmax_units(e, units, 62, False)
        e("s_nop 1")
        for u in range(4):
            for sg in range(2):
                b = PK + u*8 + sg*4
                for db in range(3):
                    d = nq[u*6 + sg*3 + db]
                    a = KO + (sg*2+db)*4 if db < 2 else ZO + sg*4
                    e(f"v_mfma_f32_16x16x32_bf16 v[{d}:{d+3}], v[{a}:{a+3}], v[{b}:{b+3}], 0")
        e("s_nop 4")
        for u in range(4):
            xp, xm = nq[u*6+2], nq[u*6+5]
            e(f"v_rcp_f32 v{xp+2}, v{xp+1}"); e(f"v_rcp_f32 v{xp+3}, v{xm+1}")
        for u in range(4):
            xp, xm = nq[u*6+2], nq[u*6+5]
            e(f"v_fma_f32 v{xp}, v{xp}, v{xp+2}, v4"); e(f"v_fma_f32 v{xp}, v{xm}, v{xp+3}, v{xp}")
        for u in range(4):
            xp = nq[u*6+2]; e(f"v_rcp_f32 v{xp}, v{xp}")
        for u in range(4):
            xp = nq[u*6+2]; e(f"v_mul_f32 v{xp}, v{xp}, v{G+rd*4+u}")
        for u in range(4):
            xp = nq[u*6+2]; e(f"v_pk_mul_f32 v[{xp+2}:{xp+3}], v[{xp+2}:{xp+3}], v[{xp}:{xp+1}] op_sel_hi:[1,0]")
        for u in range(4):
            xp = nq[u*6+2]
            for db in range(2):
                np_, nm = nq[u*6+db], nq[u*6+3+db]
                for q in (0, 2):
                    e(f"v_pk_mul_f32 v[{np_+q}:{np_+q+1}], v[{np_+q}:{np_+q+1}], v[{xp+2}:{xp+3}] op_sel:[0,0] op_sel_hi:[1,0]")
                    e(f"v_pk_fma_f32 v[{np_+q}:{np_+q+1}], v[{nm+q}:{nm+q+1}], v[{xp+2}:{xp+3}], v[{np_+q}:{np_+q+1}] op_sel:[0,1,0] op_sel_hi:[1,1,1]")
        for u in range(4):
            for db in range(2):
                np_ = nq[u*6+db]; o = PK + ((u//2)*2+db)*4 + (u % 2)*2
                e(f"v_cvt_pk_bf16_f32 v{o}, v{np_}, v{np_+1}"); e(f"v_cvt_pk_bf16_f32 v{o+1}, v{np_+2}, v{np_+3}")
        e("s_nop 1")
        for n in range(4):
            o = PK + n*4
            e(f"v_permlane16_swap_b32 v{o}, v{o+2}"); e(f"v_permlane16_swap_b32 v{o+1}, v{o+3}")
        for n in range(4):
            o = PK + n*4; pr, db = divmod(n, 2)
            e(f"buffer_store_dwordx4 v[{o}:{o+3}], v7, s[16:19], s{60+db} offen offset:{rd*1024 + pr*512}")
        e("s_nop 1")
    e("s_branch a_stamp")

def gen_b(opts):
    NS = opts.get("NSb", 5)
    c = GemmCfg(128, 2, NS, 64)
    k = Kern("b_kernel", 256, 512, NS*c.SB, vgpr=160, sgpr=100)
    e = k.e
    stamps = opts.get("stamps", False)
    W2, B2 = 72, 74
    e("s_cmp_ge_u32 s2, 256"); e("s_cbranch_scc1 b_end")
    e("s_load_dwordx2 s[70:71], s[0:1], 24")
    e("s_load_dwordx4 s[72:75], s[0:1], 56")
    e("s_load_dwordx2 s[78:79], s[0:1], 80")
    e("s_load_dwordx2 s[6:7], s[0:1], 96")
    if stamps: e("s_memrealtime s[80:81]")
    e("s_mov_b32 s92, s2")
    e("v_lshrrev_b32 v1, 6, v0"); e("v_and_b32 v2, 63, v0")
    e("s_lshr_b32 s56, s2, 3")
    e("v_readfirstlane_b32 s3, v1")
    e("s_and_b32 s52, s2, 1")
    e("s_bfe_u32 s54, s2, 0x10001"); e("s_lshl_b32 s54, s54, 2"); e("s_and_b32 s60, s56, 3"); e("s_add_u32 s54, s54, s60")
    e("s_bfe_u32 s55, s2, 0x10002"); e("s_lshl_b32 s55, s55, 3"); e("s_lshr_b32 s60, s56, 2"); e("s_add_u32 s55, s55, s60")
    e("s_waitcnt lgkmcnt(0)")
    k.srd(16, WS, WS_SIZE)
    e("s_cmp_ge_u32 s3, 4"); e("s_cbranch_scc0 b_cons")
    k.srd(24, W2, F_*S_*2)
    k.srd(20, WO, D_*D_*2)
    e("s_sub_u32 s3, s3, 4")
    e("v_lshlrev_b32 v8, 4, v2"); e(f"v_add_u32 v9, {4*D_*16}, v8"); e(f"v_add_u32 v10, {4*S_*16}, v8")
    lane_T_dma_off(e, 16, 12, 2, 6, S_*2, 3)
    for n in range(1, 4):
        sg, kg = divmod(n, 2); e(f"v_add_u32 v{12+n}, {sg*128 + kg*32*S_*2}, v12")
    e("s_mul_i32 s28, s52, 288"); e("s_add_u32 s28, s28, s3"); e("s_lshl_b32 s28, s28, 14"); e("s_lshl_b32 s60, s54, 11"); e("s_add_u32 s28, s28, s60")
    e(f"s_add_u32 s28, s28, {WS_UT:#x}")
    e(f"s_mul_i32 s29, s52, {2304*4096}"); e("s_lshl_b32 s60, s55, 8"); e("s_add_u32 s29, s29, s60")
    e("s_lshl_b32 s30, s3, 11")
    e("s_lshl_b32 s31, s3, 10"); e(f"s_add_u32 s31, s31, {c.PB}")
    R3 = dict(vP=[8, 9], vT=[12, 13, 14, 15], sP=28, sT=29, srdP=16, srdT=24, sBase=30, sLds=32, sStage=34, sCnt=35, stepP=8*D_*16, stepT=64*S_*2)
    e("s_cmp_eq_u32 s52, 0"); e("s_cbranch_scc0 b_prod1")
    producer_loop(k, c, 36, R3)
    e("s_endpgm")
    e("b_prod1:")
    lane_T_dma_off(e, 16, 16, 2, 6, D_*2, 3)
    for n in range(1, 4):
        sg, kg = divmod(n, 2); e(f"v_add_u32 v{16+n}, {sg*128 + kg*32*D_*2}, v16")
    e("s_lshl_b32 s36, s3, 15"); e("s_lshl_b32 s60, s55, 11"); e("s_add_u32 s36, s36, s60"); e(f"s_add_u32 s36, s36, {WS_OT:#x}")
    e("s_lshl_b32 s37, s54, 8")
    R4 = dict(R3, vP=[8, 10], vT=[16, 17, 18, 19], sP=36, sT=37, srdT=20, stepP=8*S_*16, stepT=64*D_*2)
    producer_loop(k, c, 36, [(20, R3), (16, R4)])
    e("s_endpgm")
    e("b_cons:")
    e("s_lshr_b32 s57, s3, 1"); e("s_and_b32 s58, s3, 1")
    k.srd(24, B2, S_*2)
    k.srd(20, OUT, S_*D_*2)
    e("v_and_b32 v15, 15, v2"); e("v_lshrrev_b32 v14, 4, v2")
    e("s_lshl_b32 s60, s55, 7"); e("s_lshl_b32 s61, s58, 5"); e("s_add_u32 s60, s60, s61"); e("v_add_u32 v8, s60, v15")
    e("v_lshlrev_b32 v9, 2, v8"); e("v_lshlrev_b32 v8, 1, v8")
    e(f"s_mov_b32 s60, {WS_G:#x}")
    GO, BO = 80, 88
    for j in range(4):
        e(f"buffer_load_dword v{GO+2*j}, v9, s[16:19], s60 offen offset:{((j//2)*64 + (j%2)*16)*4}")
        e(f"buffer_load_ushort v{BO+j}, v8, s[24:27], 0 offen offset:{((j//2)*64 + (j%2)*16)*2}")
    acc = [[96 + (i*4+j)*4 for j in range(4)] for i in range(4)]
    e("v_lshlrev_b32 v4, 11, v14"); e("v_lshl_add_u32 v4, v15, 4, v4")
    e("v_mov_b32 v5, v4")
    e("s_lshl_b32 s60, s57, 10"); e("v_add_u32 v4, s60, v4")
    lane_T_read_off(e, 16, 10, 2, 12, 13)
    e("s_lshl_b32 s60, s58, 6"); e("v_xor_b32 v6, s60, v10"); e("v_xor_b32 v7, 32, v6")
    e("v_lshlrev_b32 v3, 4, v2")
    e("s_waitcnt vmcnt(0)")
    e("s_cmp_eq_u32 s52, 0"); e("s_cselect_b32 s60, -65536, 0")
    for j in range(4):
        e(f"v_sub_f32 v{GO+2*j}, 1.0, v{GO+2*j}")
        e(f"v_lshlrev_b32 v{BO+j}, 16, v{BO+j}"); e(f"v_and_b32 v{BO+j}, s60, v{BO+j}")
        for i in range(4):
            for q in range(4): e(f"v_mov_b32 v{acc[i][j]+q}, v{BO+j}")
    p_off = [(0, kk*8192 + i*256) for kk in range(2) for i in range(4)]
    t_desc = [(j % 2, c.PB + (j//2)*8192 + kk*4096) for kk in range(2) for j in range(4)]
    order = [(kk*4+i, kk*4+j, i, j) for kk in range(2) for i in range(4) for j in range(4)]
    pbufs = [16 + 4*i for i in range(8)]; tbufs = [48 + 4*j for j in range(8)]
    def scale():
        e("s_waitcnt lgkmcnt(0)"); e("s_nop 7")
        for j in range(4):
            for i in range(4):
                for q in (0, 2):
                    a = acc[i][j] + q
                    e(f"v_pk_mul_f32 v[{a}:{a+1}], v[{a}:{a+1}], v[{GO+2*j}:{GO+2*j+1}] op_sel_hi:[1,0]")
    if stamps: e("s_memrealtime s[82:83]")
    e("s_cmp_eq_u32 s52, 0"); e("s_cbranch_scc0 b_cons1")
    consumer_loop(k, c, 36, 16, 8, 8, p_off, t_desc, acc, pbufs, tbufs, [4], [6, 7], True, order, 36, 37, 38, rpg=1, bar_pos=18)
    scale()
    e("s_branch b_exch")
    e("b_cons1:")
    consumer_loop(k, c, 20, 16, 8, 8, p_off, t_desc, acc, pbufs, tbufs, [4], [6, 7], True, order, 36, 37, 38, rpg=1, bar_pos=18)
    slot = 20 % NS
    e("s_lshl_b32 s60, s58, 9"); e(f"s_add_u32 s60, s60, {slot*c.SB}"); e("v_add_u32 v4, s60, v5")
    e("s_lshl_b32 s60, s57, 13"); e(f"s_add_u32 s60, s60, {slot*c.SB}"); e("v_add_u32 v10, s60, v10")
    for q in range(1, 4): e(f"v_xor_b32 v{10+q}, {32*q}, v10")
    scale()
    p_off4 = [(0, kk*8192 + (j//2)*1024 + (j%2)*256) for kk in range(2) for j in range(4)]
    t_desc4 = [(i, c.PB + kk*4096) for kk in range(2) for i in range(4)]
    order4 = [(kk*4+j, kk*4+i, i, j) for kk in range(2) for j in range(4) for i in range(4)]
    consumer_loop(k, c, 16, 16, 8, 8, p_off4, t_desc4, acc, pbufs, tbufs, [4], [10, 11, 12, 13], False, order4, 36, 37, 38, rpg=1, bar_pos=18, slot0=slot)
    e("s_waitcnt lgkmcnt(0)"); e("s_nop 7")
    e("b_exch:")
    if stamps: e("s_memrealtime s[84:85]")
    e("s_lshl_b32 s60, s2, 2"); e("s_add_u32 s60, s60, s3"); e("s_lshl_b32 s60, s60, 13"); e(f"s_add_u32 s60, s60, {WS_PART:#x}")
    e("s_add_u32 s61, s60, 4096")
    e("s_xor_b32 s62, s60, 0x8000"); e("s_add_u32 s63, s62, 4096")
    e("s_lshl_b32 s40, s2, 10"); e(f"s_add_u32 s40, s40, {WS_FLAG:#x}"); e("s_xor_b32 s41, s40, 0x400")
    e("v_mov_b32 v8, 0"); e("v_mov_b32 v9, 1")
    def exch(hk, lab):
        snd = [acc[i][2*(1-hk)+jj] for jj in range(2) for i in range(4)]
        keep = [acc[i][2*hk+jj] for jj in range(2) for i in range(4)]
        for n, a in enumerate(snd):
            e(f"buffer_store_dwordx4 v[{a}:{a+3}], v3, s[16:19], s{60 + n//4} offen offset:{(n%4)*1024} sc1")
        e("s_waitcnt vmcnt(0)"); e("s_barrier")
        e("s_cmp_lg_u32 s3, 0"); e(f"s_cbranch_scc1 {lab}_ns")
        e("s_mov_b64 exec, 1"); e("buffer_store_dword v9, v8, s[16:19], s40 offen sc1"); e("s_mov_b64 exec, -1")
        e(f"{lab}_ns:")
        e("buffer_load_dword v10, v8, s[16:19], s41 offen sc1"); e("s_waitcnt vmcnt(0)")
        spin_until(k, 10, 8, 16, "s41", 1, 42, sleep=1)
        for n in range(8):
            e(f"buffer_load_dwordx4 v[{16+4*n}:{19+4*n}], v3, s[16:19], s{62 + n//4} offen offset:{(n%4)*1024} sc1")
        for n, a in enumerate(keep):
            e(f"s_waitcnt vmcnt({7-n})")
            for q in (0, 2): e(f"v_pk_add_f32 v[{a+q}:{a+q+1}], v[{a+q}:{a+q+1}], v[{16+4*n+q}:{17+4*n+q}]")
        for i in range(4):
            for jj in range(2):
                a = acc[i][2*hk+jj]; o = 48 + i*4 + jj*2
                e(f"v_cvt_pk_bf16_f32 v{o}, v{a}, v{a+1}"); e(f"v_cvt_pk_bf16_f32 v{o+1}, v{a+2}, v{a+3}")
    e("s_cmp_eq_u32 s52, 0"); e("s_cbranch_scc0 b_ex1")
    exch(0, "b_ex0")
    e("s_branch b_fin")
    e("b_ex1:")
    exch(1, "b_ex1")
    e("b_fin:")
    e("v_and_b32 v8, 31, v2"); e("v_lshlrev_b32 v8, 11, v8"); e("v_lshrrev_b32 v9, 5, v2"); e("v_lshl_add_u32 v8, v9, 4, v8")
    e("s_lshl_b32 s60, s55, 2"); e("s_lshl_b32 s61, s52, 1"); e("s_add_u32 s60, s60, s61"); e("s_add_u32 s60, s60, s58"); e("s_lshl_b32 s60, s60, 16")
    e("s_lshl_b32 s61, s54, 8"); e("s_add_u32 s60, s60, s61"); e("s_lshl_b32 s61, s57, 7"); e("s_add_u32 s60, s60, s61")
    for i in range(4):
        o = 48 + i*4
        e(f"v_permlane16_swap_b32 v{o}, v{o+2}"); e(f"v_permlane16_swap_b32 v{o+1}, v{o+3}")
    for i in range(4):
        o = 48 + i*4
        e(f"buffer_store_dwordx4 v[{o}:{o+3}], v8, s[20:23], s60 offen offset:{i*32}")
    if stamps:
        e("s_waitcnt vmcnt(0)")
        e("s_memrealtime s[86:87]"); e("s_waitcnt lgkmcnt(0)")
        for n, sr in enumerate((80, 82, 84, 86)): e(f"v_mov_b32 v{8+n}, s{sr}")
        e("s_lshl_b32 s41, s92, 5"); e(f"s_add_u32 s41, s41, {WS_STAMP+0x10000:#x}"); e("v_mov_b32 v7, s41")
        e("v_cmp_eq_u32 vcc, 0, v0"); e("s_and_saveexec_b64 s[42:43], vcc"); e(f"s_cbranch_execz b_end")
        e(f"global_store_dwordx4 v7, v[8:11], s[{WS}:{WS+1}]")
    e("b_end:")
    return k

if __name__ == "__main__":
    out = sys.argv[1]
    opts = eval("dict(" + (sys.argv[2] if len(sys.argv) > 2 else "") + ")")
    ks = [gen_a(opts)]
    if opts.get("upto", 9) >= 3: ks.append(gen_b(opts))
    write_file(out, ks)
```

```python
import sys
from gen import *

WS_QOP = 0x0000000
WS_KVP = 0x1500000
NQ = 9
WS_PART = 0x2400000
WS_SIZE = 0x4000000
WS_FLAG1 = 0x14C0000
DBG, WS, X, WQKV, WPHI, WO, W1, B1, GW, OUT = 4, 6, 64, 66, 68, 70, 72, 74, 76, 78
SCR = 128*1024

def softmax_units(e, units, sL, norm):
    U = units
    xs = lambda u: [u["x"][0]+i for i in range(4)] + [u["x"][1]+i for i in range(4)]
    for u in U:
        x = xs(u); a = u["st"]; e(f"v_max3_f32 v{a}, v{x[0]}, v{x[1]}, v{x[2]}"); e(f"v_min3_f32 v{a+1}, v{x[0]}, v{x[1]}, v{x[2]}")
    for n in (3, 5):
        for u in U:
            x = xs(u); a = u["st"]; e(f"v_max3_f32 v{a}, v{a}, v{x[n]}, v{x[n+1]}"); e(f"v_min3_f32 v{a+1}, v{a+1}, v{x[n]}, v{x[n+1]}")
    for u in U:
        x = xs(u); a = u["st"]; e(f"v_max_f32 v{a}, v{a}, v{x[7]}"); e(f"v_max_f32_e64 v{a+1}, -v{a+1}, -v{x[7]}")
    def cross(op):
        pad = (lambda: e("s_nop 1")) if len(U) < 3 else (lambda: None)
        pad()
        for u in U: a = u["st"]; e(f"v_permlane32_swap_b32 v{a}, v{a+1}")
        for u in U: a = u["st"]; e(f"{op} v{a}, v{a}, v{a+1}")
        for u in U: a = u["st"]; e(f"v_mov_b32 v{a+1}, v{a}")
        pad()
        for u in U: a = u["st"]; e(f"v_permlane16_swap_b32 v{a}, v{a+1}")
        for u in U: a = u["st"]; e(f"{op} v{a}, v{a}, v{a+1}")
        for u in U: a = u["st"]; e(f"v_mov_b32 v{a+1}, v{a}")
        pad()
        for u in U: a = u["st"]; e(f"v_permlane32_swap_b32 v{a}, v{a+1}")
    cross("v_max_f32")
    for u in U:
        a = u["st"]; e(f"v_pk_mul_f32 v[{a}:{a+1}], v[{a}:{a+1}], s[{sL}:{sL+1}]")
    for u in U:
        a = u["st"]
        for h in range(2):
            for q in (0, 2):
                x = u["x"][h] + q; n = h*4 + q
                e(f"v_pk_fma_f32 v[{u['ep']+n}:{u['ep']+n+1}], v[{x}:{x+1}], s[{sL}:{sL+1}], v[{a}:{a+1}] op_sel:[0,0,0] op_sel_hi:[1,1,0] neg_lo:[0,0,1] neg_hi:[0,0,1]")
                e(f"v_pk_fma_f32 v[{u['em']+n}:{u['em']+n+1}], v[{x}:{x+1}], s[{sL}:{sL+1}], v[{a}:{a+1}] op_sel:[0,0,1] op_sel_hi:[1,1,1] neg_lo:[1,0,1] neg_hi:[1,0,1]")
    for u in U:
        for n in range(8): e(f"v_exp_f32 v{u['ep']+n}, v{u['ep']+n}")
        for n in range(8): e(f"v_exp_f32 v{u['em']+n}, v{u['em']+n}")
    if norm:
        for u in U:
            a = u["st"]
            e(f"v_pk_add_f32 v[{a}:{a+1}], v[{u['ep']}:{u['ep']+1}], v[{u['ep']+2}:{u['ep']+3}]")
            e(f"v_pk_add_f32 v[{a+2}:{a+3}], v[{u['em']}:{u['em']+1}], v[{u['em']+2}:{u['em']+3}]")
        for n in (4, 6):
            for u in U:
                a = u["st"]
                e(f"v_pk_add_f32 v[{a}:{a+1}], v[{a}:{a+1}], v[{u['ep']+n}:{u['ep']+n+1}]")
                e(f"v_pk_add_f32 v[{a+2}:{a+3}], v[{a+2}:{a+3}], v[{u['em']+n}:{u['em']+n+1}]")
        for u in U:
            a = u["st"]; e(f"v_add_f32 v{a}, v{a}, v{a+1}"); e(f"v_add_f32 v{a+1}, v{a+2}, v{a+3}")
        cross("v_add_f32")
        for u in U:
            a = u["st"]; e(f"v_rcp_f32 v{a}, v{a}"); e(f"v_rcp_f32 v{a+1}, v{a+1}")
        if len(U) < 2: e("s_nop 0")
        for u in U:
            a = u["st"]
            for n in range(0, 8, 2):
                e(f"v_pk_mul_f32 v[{u['ep']+n}:{u['ep']+n+1}], v[{u['ep']+n}:{u['ep']+n+1}], v[{a}:{a+1}] op_sel:[0,0] op_sel_hi:[1,0]")
                e(f"v_pk_mul_f32 v[{u['em']+n}:{u['em']+n+1}], v[{u['em']+n}:{u['em']+n+1}], v[{a}:{a+1}] op_sel:[0,1] op_sel_hi:[1,1]")
    else:
        e("s_nop 0")
    for u in U:
        for n in range(4): e(f"v_cvt_pk_bf16_f32 v{u['out']+n}, v{u['ep']+2*n}, v{u['ep']+2*n+1}")
        for n in range(4): e(f"v_cvt_pk_bf16_f32 v{u['out']+4+n}, v{u['em']+2*n}, v{u['em']+2*n+1}")

def load_wphi(e, tmp, srd, sOff, vt):
    e(f"v_lshrrev_b32 v{vt}, 4, v2"); e(f"v_lshlrev_b32 v{vt}, 8, v{vt}")
    e(f"v_and_b32 v{vt+1}, 15, v2"); e(f"v_lshl_add_u32 v{vt}, v{vt+1}, 1, v{vt}")
    for fb in range(2):
        for j in range(8):
            d = j if j < 4 else 16 + j - 4
            e(f"buffer_load_ushort v{tmp+fb*8+j}, v{vt}, s[{srd}:{srd+3}], s{sOff} offen offset:{d*64 + fb*32}")

def pack_wphi(e, dst, tmp):
    for n in range(8): e(f"v_lshl_or_b32 v{dst+n}, v{tmp+2*n+1}, 16, v{tmp+2*n}")

def spin_until(k, vtmp, voff, srd, off, target, stmp, sleep=4):
    e = k.e
    L = k.lab("spin"); Lok = k.lab("spinok")
    e(f"s_mov_b32 s{stmp+1}, 0x100000")
    e(f"{L}:")
    e(f"v_readfirstlane_b32 s{stmp}, v{vtmp}")
    e(f"s_sub_u32 s{stmp+1}, s{stmp+1}, 1")
    e(f"s_cbranch_scc1 {Lok}")
    e(f"s_cmp_ge_u32 s{stmp}, {target}")
    e(f"s_cbranch_scc1 {Lok}")
    e(f"s_sleep {sleep}")
    e(f"buffer_load_dword v{vtmp}, v{voff}, s[{srd}:{srd+3}], {off} offen sc1")
    e("s_waitcnt vmcnt(0)")
    e(f"s_branch {L}")
    e(f"{Lok}:")

def gen_a(opts):
    c1 = GemmCfg(128, 3, 3, 64, prow=True)
    c2 = GemmCfg(128, 2, 4, 64)
    k = Kern("a_kernel", 256, 512, 160*1024, vgpr=256, sgpr=100)
    e = k.e
    stamps = opts.get("stamps", False)
    upto = opts.get("upto", 9)
    EST = opts.get("est", " sc1")
    e("s_cmp_ge_u32 s2, 256"); e("s_cbranch_scc1 a_end")
    e("s_load_dwordx8 s[64:71], s[0:1], 0")
    e("s_load_dwordx4 s[72:75], s[0:1], 40")
    e("s_load_dwordx4 s[76:79], s[0:1], 72")
    e("s_load_dwordx4 s[4:7], s[0:1], 88")
    if stamps: e("s_memrealtime s[80:81]")
    e("s_mov_b32 s92, s2")
    e("v_lshrrev_b32 v1, 6, v0"); e("v_and_b32 v2, 63, v0")
    e("s_lshr_b32 s56, s2, 3")
    e("v_readfirstlane_b32 s3, v1")
    if opts.get("map1", "8x4") == "8x4":
        e("s_and_b32 s52, s2, 1"); e("s_lshl_b32 s52, s52, 3"); e("s_and_b32 s60, s56, 7"); e("s_add_u32 s52, s52, s60")
        e("s_bfe_u32 s53, s2, 0x20001"); e("s_lshl_b32 s53, s53, 2"); e("s_lshr_b32 s60, s56, 3"); e("s_add_u32 s53, s53, s60")
    else:
        e("s_and_b32 s52, s2, 3"); e("s_lshl_b32 s52, s52, 2"); e("s_and_b32 s60, s56, 3"); e("s_add_u32 s52, s52, s60")
        e("s_bfe_u32 s53, s2, 0x10002"); e("s_lshl_b32 s53, s53, 3"); e("s_lshr_b32 s60, s56, 2"); e("s_add_u32 s53, s53, s60")
    e("s_and_b32 s54, s2, 1"); e("s_lshl_b32 s54, s54, 2"); e("s_and_b32 s60, s56, 3"); e("s_add_u32 s54, s54, s60")
    e("s_bfe_u32 s55, s2, 0x20001"); e("s_mul_i32 s55, s55, 7"); e("s_lshr_b32 s60, s56, 2"); e("s_add_u32 s55, s55, s60")
    e("s_waitcnt lgkmcnt(0)")
    k.srd(16, WS, WS_SIZE)
    k.srd(20, X, S_*D_*2)
    k.srd(40, DBG, 256)
    e("s_cmp_ge_u32 s3, 4"); e("s_cbranch_scc0 a_cons")
    k.srd(24, WQKV, D_*3*D_*2)
    e("s_sub_u32 s3, s3, 4")
    e("v_lshrrev_b32 v3, 3, v2")
    e("s_lshl_b32 s60, s3, 5"); e("v_add_u32 v4, s60, v3"); e("v_lshlrev_b32 v4, 11, v4")
    e("v_lshrrev_b32 v5, 1, v3"); e("v_xor_b32 v5, v5, v2"); e("v_and_b32 v5, 7, v5")
    e("v_lshl_add_u32 v8, v5, 4, v4")
    e("v_xor_b32 v9, 64, v8"); e(f"v_add_u32 v9, {8*2048}, v9")
    e(f"v_add_u32 v10, {16*2048}, v8"); e(f"v_add_u32 v11, {16*2048}, v9")
    lane_T_dma_off(e, 16, 12, 2, 6, 6144, 3)
    for n in range(1, 6):
        sg, kg = divmod(n, 2)
        e(f"v_add_u32 v{12+n}, {sg*2048 + kg*32*6144}, v12")
    e("s_lshl_b32 s28, s52, 18")
    e("s_lshl_b32 s29, s53, 7")
    e("s_lshl_b32 s30, s3, 12")
    e("s_lshl_b32 s31, s3, 10"); e(f"s_add_u32 s31, s31, {c1.PB}")
    e("v_mov_b32 v20, 0"); e("v_mov_b32 v21, 1")
    R1 = dict(vP=[8, 9, 10, 11], vT=list(range(12, 18)), sP=28, sT=29, srdP=20, srdT=24, sBase=30, sLds=32, sStage=34, sCnt=35, stepP=128, stepT=64*6144)
    rot = opts.get("rot1")
    if rot:
        mask, mul = rot
        e(f"s_and_b32 s8, s52, {mask}"); e(f"s_mul_i32 s8, s8, {mul}"); e("s_and_b32 s8, s8, 15")
        e("s_mov_b32 s9, s28"); e("s_mov_b32 s10, s29")
        e("s_lshl_b32 s11, s8, 7"); e("s_add_u32 s28, s28, s11"); e(f"s_mul_i32 s11, s8, {64*6144}"); e("s_add_u32 s29, s29, s11")
        R1["rot"] = (8, 16, 9, 10, 11)
    def signal(off_sgpr_or_imm, lab):
        return [f"s_cmp_lg_u32 s3, 0", f"s_cbranch_scc1 {lab}", "s_mov_b64 s[62:63], exec", "s_mov_b64 exec, 1",
                f"buffer_atomic_add v21, v20, s[40:43], {off_sgpr_or_imm} offen sc1", "s_mov_b64 exec, s[62:63]", f"{lab}:"]
    inj1 = {3: signal("0", "a_sig1"), 12: ["buffer_load_dword v22, v20, s[40:43], 0 offen sc1"]}
    producer_loop(k, c1, 16, R1, noload=opts.get("noload1"), inject=inj1, unroll_until=13, after_prologue=["s_barrier"], tail_extra=1)
    if upto >= 2:
        e("s_cmp_ge_u32 s56, 28"); e("s_cbranch_scc1 a_ostage_p")
        k.srd(24, W1, S_*F_*2)
        e("v_lshlrev_b32 v8, 4, v2"); e(f"v_add_u32 v9, {4*D_*16}, v8")
        e("s_lshl_b32 s60, s3, 14")
        e(f"s_lshl_b32 s28, s54, 11"); e("s_add_u32 s28, s28, s60"); e(f"s_add_u32 s28, s28, {WS_HT:#x}")
        lane_T_dma_off(e, 16, 12, 2, 6, F_*2, 3)
        for n in range(1, 4):
            sg, kg = divmod(n, 2)
            e(f"v_add_u32 v{12+n}, {sg*128 + kg*32*F_*2}, v12")
        e("s_lshl_b32 s29, s55, 8")
        e("s_lshl_b32 s30, s3, 11")
        e("s_lshl_b32 s31, s3, 10"); e(f"s_add_u32 s31, s31, {c2.PB}")
        e("s_lshl_b32 s59, s53, 4"); e("s_add_u32 s59, s59, s52"); e("s_lshl_b32 s59, s59, 7"); e(f"s_add_u32 s59, s59, {WS_FLAG1:#x}")
        e("s_waitcnt vmcnt(0)")
        spin_until(k, 22, 20, 40, "0", 256, 60)
        R2 = dict(vP=[8, 9], vT=[12, 13, 14, 15], sP=28, sT=29, srdP=16, srdT=24, sBase=30, sLds=32, sStage=34, sCnt=35, stepP=8*D_*16, stepT=64*F_*2)
        producer_loop(k, c2, 32, R2, inject={opts.get("sig2", 2): [l.replace("buffer_atomic_add v21, v20, s[40:43]", "buffer_store_dword v21, v20, s[16:19]") for l in signal("s59", "a_sig2")]}, unroll_until=opts.get("sig2", 2)+1, flags=(" sc1" if opts.get("hsc1", True) else "", ""))
    e("s_endpgm")
    e("a_cons:")
    e("s_lshr_b32 s57, s3, 1"); e("s_and_b32 s58, s3, 1")
    HP = 2112
    e("v_lshlrev_b32 v3, 4, v2")
    e("v_lshl_add_u32 v4, v1, 12, v3")
    e("s_lshl_b32 s33, s2, 14")
    e("buffer_load_dwordx4 v[8:11], v4, s[20:23], s33 offen")
    e("buffer_load_dwordx4 v[12:15], v4, s[20:23], s33 offen offset:1024")
    e("buffer_load_dwordx4 v[16:19], v4, s[20:23], s33 offen offset:2048")
    e("buffer_load_dwordx4 v[20:23], v4, s[20:23], s33 offen offset:3072")
    k.srd(24, GW, D_*2)
    e("buffer_load_dwordx4 v[24:27], v3, s[24:27], 0 offen")
    e("buffer_load_dwordx4 v[28:31], v3, s[24:27], 0 offen offset:1024")
    k.srd(44, WPHI, 32*2048)
    e("s_lshl_b32 s59, s53, 1"); e("s_add_u32 s59, s59, s58")
    e("s_lshl_b32 s60, s59, 11")
    load_wphi(e, 96, 44, 60, 5)
    k.srd(48, B1, F_*2)
    e("v_lshrrev_b32 v7, 4, v2"); e("v_lshlrev_b32 v7, 3, v7")
    e("s_lshl_b32 s60, s55, 8"); e("s_lshl_b32 s61, s58, 6"); e("s_add_u32 s60, s60, s61")
    for j in range(4):
        e(f"buffer_load_dwordx2 v[{152+2*j}:{153+2*j}], v7, s[48:51], s60 offen offset:{(j//2)*128 + (j%2)*32}")
    e("v_mov_b32 v5, 0")
    e(f"s_lshl_b32 s60, s2, 10"); e(f"s_add_u32 s60, s60, {WS_FLAG:#x}")
    e("s_lshl_b32 s61, s53, 4"); e("s_add_u32 s61, s61, s52"); e("s_lshl_b32 s61, s61, 7"); e(f"s_add_u32 s61, s61, {WS_FLAG1:#x}")
    e("v_mov_b32 v6, s60"); e("v_writelane_b32 v6, s61, 1")
    e("s_mov_b64 exec, 3")
    e("buffer_store_dword v5, v6, s[16:19], 0 offen sc1")
    e("s_mov_b64 exec, -1")
    acc = [[160 + (i*6+j)*4 for j in range(6)] for i in range(4)]
    for r in range(160, 256, 2): e(f"v_mov_b64 v[{r}:{r+1}], 0")
    e(f"v_mul_u32_u24 v6, {2*HP}, v1"); e("v_add_u32 v6, v6, v3"); e(f"v_add_u32 v6, {SCR}, v6")
    e("s_mov_b32 s36, 0xffff0000")
    e("s_waitcnt vmcnt(23)")
    for r in range(2):
        for i in range(8):
            src = 8 + 8*r + i
            e(f"v_lshlrev_b32 v{32+16*r+2*i}, 16, v{src}")
            e(f"v_and_b32 v{33+16*r+2*i}, s36, v{src}")
    e("s_waitcnt vmcnt(21)")
    for i in range(8):
        e(f"v_lshlrev_b32 v{64+2*i}, 16, v{24+i}")
        e(f"v_and_b32 v{65+2*i}, s36, v{24+i}")
    for r in range(2):
        b = 32 + 16*r
        e(f"v_pk_add_f32 v[{80+2*r}:{81+2*r}], v[{b}:{b+1}], v[{b+2}:{b+3}]")
        e(f"v_pk_mul_f32 v[{84+2*r}:{85+2*r}], v[{b}:{b+1}], v[64:65]")
    for i in range(4, 16, 2):
        for r in range(2):
            b = 32 + 16*r
            e(f"v_pk_add_f32 v[{80+2*r}:{81+2*r}], v[{80+2*r}:{81+2*r}], v[{b+i}:{b+i+1}]")
    for i in range(2, 16, 2):
        for r in range(2):
            b = 32 + 16*r
            e(f"v_pk_fma_f32 v[{84+2*r}:{85+2*r}], v[{b+i}:{b+i+1}], v[{64+i}:{65+i}], v[{84+2*r}:{85+2*r}]")
    for n in range(4): e(f"v_add_f32 v{80+2*n}, v{80+2*n}, v{81+2*n}")
    dpp_reduce_sum_multi(e, [80, 82, 84, 86])
    e("s_nop 1")
    for n in range(4): e(f"v_readlane_b32 s{28+n}, v{80+2*n}, 63")
    e(f"s_mov_b32 s32, {f32(-1.0/1024)}")
    e("s_nop 0")
    e("v_mov_b32 v88, s28"); e("v_mov_b32 v90, s29")
    e("v_mul_f32 v88, s32, v88"); e("v_mul_f32 v90, s32, v90")
    for i in range(0, 16, 2):
        for r in range(2):
            b = 32 + 16*r
            e(f"v_pk_add_f32 v[{b+i}:{b+i+1}], v[{b+i}:{b+i+1}], v[{88+2*r}:{89+2*r}] op_sel_hi:[1,0]")
    for r in range(2):
        b = 32 + 16*r
        e(f"v_pk_mul_f32 v[{80+2*r}:{81+2*r}], v[{b}:{b+1}], v[{b}:{b+1}]")
    for i in range(2, 16, 2):
        for r in range(2):
            b = 32 + 16*r
            e(f"v_pk_fma_f32 v[{80+2*r}:{81+2*r}], v[{b+i}:{b+i+1}], v[{b+i}:{b+i+1}], v[{80+2*r}:{81+2*r}]")
    e("v_add_f32 v80, v80, v81"); e("v_add_f32 v82, v82, v83")
    e("v_mov_b32 v86, s30"); e("v_mov_b32 v87, s31")
    e("v_cmp_eq_u32 vcc, 1, v2"); e("s_nop 1"); e("v_cndmask_b32 v86, v86, v87, vcc")
    e(f"v_mul_f32 v86, {f32(-LOG2E)}, v86")
    e("v_exp_f32 v86, v86"); e("s_nop 0"); e("v_add_f32 v86, 1.0, v86"); e("v_rcp_f32 v86, v86")
    dpp_reduce_sum_multi(e, [80, 82])
    e("s_nop 1")
    e("v_readlane_b32 s28, v80, 63"); e("v_readlane_b32 s29, v82, 63")
    e(f"s_mov_b32 s32, {f32(1.0/1024)}")
    e(f"v_mov_b32 v84, {f32(1e-5)}")
    e("v_mov_b32 v88, s28"); e("v_mov_b32 v90, s29")
    e("v_fma_f32 v88, v88, s32, v84"); e("v_fma_f32 v90, v90, s32, v84")
    e("v_rsq_f32 v88, v88"); e("v_rsq_f32 v90, v90")
    e("v_lshl_add_u32 v87, v1, 1, v2"); e("v_lshlrev_b32 v87, 2, v87")
    e(f"s_lshl_b32 s60, s2, 5"); e(f"s_add_u32 s60, s60, {WS_G:#x}")
    e("s_mov_b64 exec, 3")
    e("buffer_store_dword v86, v87, s[16:19], s60 offen sc1")
    e("s_mov_b64 exec, -1")
    for r in range(2):
        b = 32 + 16*r
        for i in range(0, 16, 2):
            e(f"v_pk_mul_f32 v[{b+i}:{b+i+1}], v[{b+i}:{b+i+1}], v[{88+2*r}:{89+2*r}] op_sel_hi:[1,0]")
        for i in range(8):
            e(f"v_cvt_pk_bf16_f32 v{8+8*r+i}, v{b+2*i}, v{b+2*i+1}")
    e("ds_write_b128 v6, v[8:11]"); e("ds_write_b128 v6, v[12:15] offset:1024")
    e(f"ds_write_b128 v6, v[16:19] offset:{HP}"); e(f"ds_write_b128 v6, v[20:23] offset:{HP+1024}")
    e("v_and_b32 v32, 15, v0"); e("v_lshrrev_b32 v33, 2, v32")
    e(f"v_mul_u32_u24 v33, {HP}, v33")
    e("v_and_b32 v34, 3, v0"); e("v_lshlrev_b32 v34, 3, v34")
    e("v_lshrrev_b32 v35, 4, v0"); e("v_lshlrev_b32 v35, 5, v35")
    e("v_add3_u32 v33, v33, v34, v35"); e(f"v_add_u32 v33, {SCR}, v33")
    e("v_lshlrev_b32 v36, 4, v0")
    e(f"s_add_u32 s33, s33, {WS_HT:#x}")
    e("v_and_b32 v37, 15, v2"); e("v_lshrrev_b32 v38, 4, v2")
    e("v_lshrrev_b32 v39, 1, v37"); e("v_xor_b32 v39, v39, v38")
    e("s_lshl_b32 s60, s57, 6"); e("v_add_u32 v4, s60, v37"); e("v_lshlrev_b32 v4, 7, v4"); e("v_lshl_add_u32 v4, v39, 4, v4")
    e("v_xor_b32 v5, 64, v4")
    e("s_waitcnt lgkmcnt(0)"); e("s_barrier")
    for j in range(4):
        e(f"ds_read_b64_tr_b16 v[{40+4*j}:{41+4*j}], v33 offset:{512*j}")
        e(f"ds_read_b64_tr_b16 v[{42+4*j}:{43+4*j}], v33 offset:{512*j+4*HP}")
    lane_T_read_off(e, 16, 6, 2, 37, 38)
    e("s_lshl_b32 s60, s58, 6"); e("v_xor_b32 v6, s60, v6"); e("v_xor_b32 v7, 32, v6")
    for j in range(4):
        e(f"s_waitcnt lgkmcnt({6-2*j})")
        e(f"buffer_store_dwordx4 v[{40+4*j}:{43+4*j}], v36, s[16:19], s33 offen sc1")
        if j < 3: e(f"s_add_u32 s33, s33, 4096")
    e("s_nop 1")
    pf1 = []; pf2 = []
    if opts.get("pf", True):
        k.srd(44, W1, S_*F_*2)
        e("s_load_dwordx2 s[12:13], s[0:1], 56")
        e("v_lshlrev_b32 v143, 7, v2")
        e("s_lshl_b32 s8, s2, 2"); e("s_add_u32 s8, s8, s3")
        e("s_mul_i32 s9, s8, 14336"); e("s_add_u32 s10, s9, 8192"); e("s_lshl_b32 s11, s8, 11")
        e("s_waitcnt lgkmcnt(0)")
        k.srd(48, 12, S_*F_*2)
        k.srd(24, WO, D_*D_*2)
        pf1 = ["buffer_load_dword v142, v143, s[44:47], s9 offen", "buffer_load_dword v142, v143, s[44:47], s10 offen"]
        pf2 = ["buffer_load_dword v142, v143, s[48:51], s9 offen", "buffer_load_dword v142, v143, s[48:51], s10 offen",
               "s_mov_b64 exec, 0xffff", "buffer_load_dword v142, v143, s[24:27], s11 offen", "s_mov_b64 exec, -1"]
    p_off = [(kk, i*2048) for kk in range(2) for i in range(4)]
    t_desc = [(j % 2, c1.PB + (j//2)*8192 + kk*4096) for kk in range(2) for j in range(6)]
    order = [(kk*4+i, kk*6+j, i, j) for kk in range(2) for i in range(4) for j in range(6)]
    pbufs = [16 + 4*i for i in range(8)]; tbufs = [48 + 4*j for j in range(12)]
    if stamps: e("s_memrealtime s[82:83]"); e("s_memtime s[94:95]")
    consumer_loop(k, c1, [(3, ["s_waitcnt vmcnt(0)"] + pf1), (13, [])], 16, 8, 12, p_off, t_desc, acc, pbufs, tbufs, [4, 5], [6, 7],
                  lambda i, j: j >= 4, order, 36, 37, 38, rpg=opts.get("rpg1", 1), bar_pos=opts.get("bar1", 26))
    if stamps: e("s_memrealtime s[84:85]"); e("s_memtime s[96:97]")
    e("s_waitcnt lgkmcnt(0)")
    e("s_nop 7")
    Q, K, V, PK, KV, EF = 16, 32, 48, 64, 96, 240
    pack_wphi(e, 144, 96)
    for sb in range(4):
        for db in range(2):
            a = acc[sb][2+db]
            e(f"v_cvt_pk_bf16_f32 v{K+sb*4+db*2}, v{a}, v{a+1}"); e(f"v_cvt_pk_bf16_f32 v{K+sb*4+db*2+1}, v{a+2}, v{a+3}")
    for sb in range(4):
        for db in range(2):
            a = acc[sb][db]
            e(f"v_cvt_pk_bf16_f32 v{Q+sb*4+db*2}, v{a}, v{a+1}"); e(f"v_cvt_pk_bf16_f32 v{Q+sb*4+db*2+1}, v{a+2}, v{a+3}")
    for sb in range(4):
        for fb in range(2):
            d = PK + (sb*2+fb)*4
            e(f"v_mfma_f32_16x16x32_bf16 v[{d}:{d+3}], v[{144+fb*4}:{147+fb*4}], v[{K+sb*4}:{K+sb*4+3}], 0")
    e("s_lshl_b32 s60, s59, 17"); e("s_lshl_b32 s61, s52, 13"); e("s_add_u32 s60, s60, s61"); e("s_lshl_b32 s61, s57, 12"); e("s_add_u32 s60, s60, s61")
    for sb in range(4):
        e(f"buffer_store_dwordx4 v[{Q+sb*4}:{Q+sb*4+3}], v3, s[16:19], s60 offen offset:{sb*1024}{EST}") if EST != "none" else None
    for p in range(2):
        for db in range(2):
            for h in range(2):
                a = acc[2*p+h][4+db]; d = V + (p*2+db)*4 + h*2
                e(f"v_cvt_pk_bf16_f32 v{d}, v{a}, v{a+1}"); e(f"v_cvt_pk_bf16_f32 v{d+1}, v{a+2}, v{a+3}")
    e(f"s_mov_b32 s62, {f32(LOG2E)}"); e(f"s_mov_b32 s63, {f32(LOG2E)}")
    e("v_and_b32 v14, 15, v2"); e("v_lshrrev_b32 v15, 4, v2")
    e(f"s_mul_i32 s60, s3, 5120"); e(f"s_add_u32 s60, s60, {SCR}")
    e("v_mul_u32_u24 v12, 160, v14"); e("v_lshl_add_u32 v12, v15, 3, v12"); e("v_add_u32 v12, s60, v12")
    e("v_lshrrev_b32 v14, 2, v14"); e("v_lshl_add_u32 v14, v15, 2, v14"); e("v_mul_u32_u24 v13, 160, v14")
    e("v_and_b32 v14, 3, v2"); e("v_lshl_add_u32 v13, v14, 3, v13"); e("v_add_u32 v13, s60, v13")
    units = [dict(x=[PK+sb*8, PK+sb*8+4], ep=160+sb*16, em=168+sb*16, st=224+sb*4, out=PK+sb*8) for sb in range(4)]
    softmax_units(e, units, 62, True)
    ZB = 160
    e("v_and_b32 v14, 3, v2"); e("v_mov_b32 v15, 0x3f803f80")
    for fbk in range(4):
        e(f"v_cmp_eq_u32 vcc, {fbk}, v14"); e("s_nop 1"); e(f"v_cndmask_b32 v{ZB+4*fbk}, 0, v15, vcc")
        for r in range(1, 4): e(f"v_mov_b32 v{ZB+4*fbk+r}, v{ZB+4*fbk}")
    for p in range(2):
        for h in range(2):
            o = units[2*p+h]["out"]
            for fbk in range(4):
                e(f"ds_write_b64 v12, v[{o+2*fbk}:{o+2*fbk+1}] offset:{h*16*160 + fbk*32}")
        e("s_waitcnt lgkmcnt(0)")
        for fbk in range(4):
            for t in range(2):
                e(f"ds_read_b64_tr_b16 v[{EF+fbk*4+2*t}:{EF+fbk*4+2*t+1}], v13 offset:{t*16*160 + fbk*32}")
        for fbk in range(4):
            e(f"s_waitcnt lgkmcnt({6-2*fbk})")
            for db in range(3):
                d = KV + (fbk*2+db)*4 if db < 2 else KV + 32
                b = V + (p*2+db)*4 if db < 2 else ZB + 4*fbk
                cc = "0" if (p == 0 and (db < 2 or fbk == 0)) else f"v[{d}:{d+3}]"
                e(f"v_mfma_f32_16x16x32_bf16 v[{d}:{d+3}], v[{EF+fbk*4}:{EF+fbk*4+3}], v[{b}:{b+3}], {cc}")
    e("s_lshl_b32 s60, s59, 5"); e("s_lshl_b32 s61, s52, 1"); e("s_add_u32 s60, s60, s61"); e("s_add_u32 s60, s60, s57")
    e(f"s_mul_i32 s60, s60, {NQ*1024}"); e(f"s_add_u32 s60, s60, {WS_KVP:#x}")
    e("s_nop 7")
    for qd in range(NQ):
        if qd and qd % 4 == 0: e("s_add_u32 s60, s60, 4096")
        e(f"buffer_store_dwordx4 v[{KV+qd*4}:{KV+qd*4+3}], v3, s[16:19], s60 offen offset:{(qd%4)*1024}{EST}") if EST != "none" else None
    if stamps: e("s_memrealtime s[88:89]"); e("s_memtime s[98:99]")
    if upto >= 2:
        e("s_cmp_ge_u32 s56, 28"); e("s_cbranch_scc1 a_ostage_c")
        acc2 = [[192 + (i*4+j)*4 for j in range(4)] for i in range(4)]
        e("s_mov_b32 s36, 0xffff0000")
        for j in range(4):
            for hh in range(2):
                src = 152 + j*2 + hh; d0 = acc2[0][j] + hh*2
                e(f"v_lshlrev_b32 v{d0}, 16, v{src}"); e(f"v_and_b32 v{d0+1}, s36, v{src}")
            for i in range(1, 4):
                for q in (0, 2): e(f"v_mov_b64 v[{acc2[i][j]+q}:{acc2[i][j]+q+1}], v[{acc2[0][j]+q}:{acc2[0][j]+q+1}]")
        e("v_lshrrev_b32 v14, 4, v2"); e("v_lshlrev_b32 v4, 11, v14"); e("v_and_b32 v15, 15, v2"); e("v_lshl_add_u32 v4, v15, 4, v4")
        e("s_lshl_b32 s60, s57, 10"); e("v_add_u32 v4, s60, v4")
        lane_T_read_off(e, 16, 6, 2, 14, 15)
        e("s_lshl_b32 s60, s58, 6"); e("v_xor_b32 v6, s60, v6"); e("v_xor_b32 v7, 32, v6")
        p_off = [(0, kk*8192 + i*256) for kk in range(2) for i in range(4)]
        t_desc = [(j % 2, c2.PB + (j//2)*8192 + kk*4096) for kk in range(2) for j in range(4)]
        order = [(kk*4+i, kk*4+j, i, j) for kk in range(2) for i in range(4) for j in range(4)]
        pbufs = [16 + 4*i for i in range(8)]; tbufs = [48 + 4*j for j in range(8)]
        dbgw = ["s_memtime s[94:95]", "s_waitcnt lgkmcnt(0)", "s_sub_u32 s96, s94, s98", "s_waitcnt vmcnt(0)", "s_memtime s[98:99]", "s_waitcnt lgkmcnt(0)", "s_add_u32 s96, s96, s94", "s_add_u32 s98, s98, s96", "s_sub_u32 s98, s98, s94"] if opts.get("dbgw") else ["s_waitcnt vmcnt(0)"]
        n1 = opts.get("sig2", 2)
        consumer_loop(k, c2, [(n1, dbgw + pf2), (32-n1, [])], 16, 8, 8, p_off, t_desc, acc2, pbufs, tbufs, [4], [6, 7],
                      False, order, 36, 37, 38, rpg=1, bar_pos=18)
        if stamps: e("s_memrealtime s[90:91]")
        e("s_waitcnt lgkmcnt(0)")
        e("s_nop 7")
        e("v_lshrrev_b32 v8, 5, v2"); e("v_lshlrev_b32 v7, 14, v8"); e("v_and_b32 v8, 31, v2"); e("v_lshl_add_u32 v7, v8, 4, v7")
        e("s_lshl_b32 s14, s55, 18"); e("s_lshl_b32 s15, s58, 16"); e("s_add_u32 s14, s14, s15")
        e("s_lshl_b32 s15, s54, 11"); e("s_add_u32 s14, s14, s15"); e("s_lshl_b32 s15, s57, 10"); e("s_add_u32 s14, s14, s15")
        e(f"s_add_u32 s14, s14, {WS_UT:#x}")
        e(f"s_mov_b32 s42, {f32(GELU_K3)}"); e(f"s_mov_b32 s43, {f32(GELU_K3)}")
        e(f"v_mov_b32 v10, {f32(GELU_K1)}"); e(f"v_mov_b32 v11, {f32(GELU_K1)}")
        for j in range(4):
            e(f"s_add_u32 s15, s14, {((j//2)*8 + (j%2)*2)*16384}")
            t = 16 + (j % 2) * 24; o = t + 16
            gelu_block(e, [acc2[b][j] + q for b in range(4) for q in (0, 2)], t, o)
            e("s_nop 1")
            for pr in range(2):
                e(f"v_permlane16_swap_b32 v{o+4*pr}, v{o+4*pr+2}")
                e(f"v_permlane16_swap_b32 v{o+4*pr+1}, v{o+4*pr+3}")
            for pr in range(2):
                e(f"buffer_store_dwordx4 v[{o+4*pr}:{o+4*pr+3}], v7, s[16:19], s15 offen offset:{2*pr*256}")
    e("a_stamp:")
    if stamps:
        e("s_waitcnt vmcnt(0)")
        e("s_memrealtime s[86:87]"); e("s_waitcnt lgkmcnt(0)")
        for n, sr in enumerate((80, 82, 84, 88, 90, 86)): e(f"v_mov_b32 v{8+n}, s{sr}")
        e("s_sub_u32 s98, s98, s96"); e("s_sub_u32 s96, s96, s94"); e("v_mov_b32 v14, s96"); e("v_mov_b32 v15, s98")
        e("s_lshl_b32 s41, s92, 5"); e(f"s_add_u32 s41, s41, {WS_STAMP:#x}"); e("v_mov_b32 v7, s41")
        e("v_cmp_eq_u32 vcc, 0, v0"); e("s_and_saveexec_b64 s[42:43], vcc"); e(f"s_cbranch_execz a_end")
        e(f"global_store_dwordx4 v7, v[8:11], s[{WS}:{WS+1}]")
        e(f"global_store_dwordx4 v7, v[12:15], s[{WS}:{WS+1}] offset:16")
    e("s_endpgm")
    if upto >= 2:
        gen_ostage(k, opts)
    e("a_end:")
    return k

def gen_ostage(k, opts):
    e = k.e
    stamps = opts.get("stamps", False)
    e("a_ostage_p:")
    e("s_add_u32 s3, s3, 4")
    e("v_lshlrev_b32 v3, 4, v2")
    e("a_ostage_c:")
    if opts.get("ocut") == 0: e("s_branch a_stamp")
    e("s_and_b32 s59, s92, 7"); e("s_lshl_b32 s59, s59, 2"); e("s_add_u32 s59, s59, s56"); e("s_sub_u32 s59, s59, 28")
    k.srd(44, WPHI, 32*2048)
    e("s_waitcnt vmcnt(0)")
    e("s_barrier")
    WP, Q, G, KO, ZO, FQ, ST, PK, EP = 8, 16, 80, 96, 112, 120, 152, 160, 192
    e("s_lshl_b32 s60, s59, 11")
    load_wphi(e, 96, 44, 60, 5)
    e("v_mov_b32 v4, 0"); e("v_mov_b32 v5, 1")
    e("s_cmp_lg_u32 s3, 0"); e("s_cbranch_scc1 a_o_wait")
    e("s_lshl_b32 s60, s53, 4"); e("s_add_u32 s60, s60, s52"); e("s_lshl_b32 s60, s60, 7"); e(f"s_add_u32 s60, s60, {WS_FLAG1:#x}")
    e("s_mov_b64 exec, 1")
    e("buffer_store_dword v5, v4, s[16:19], s60 offen sc1")
    e("s_mov_b64 exec, -1")
    e("buffer_load_dword v6, v4, s[40:43], 0 offen sc1"); e("s_waitcnt vmcnt(0)")
    spin_until(k, 6, 4, 40, "0", 256, 62)
    e("s_lshr_b32 s61, s59, 1"); e("s_lshl_b32 s61, s61, 11"); e(f"s_add_u32 s61, s61, {WS_FLAG1:#x}")
    e("v_and_b32 v7, 15, v2"); e("v_lshlrev_b32 v7, 7, v7")
    e("s_mov_b32 s63, 0x100000")
    e("a_o_poll:")
    e("buffer_load_dword v6, v7, s[16:19], s61 offen sc1"); e("s_waitcnt vmcnt(0)")
    e("v_cmp_eq_u32 vcc, 0, v6")
    e("s_sub_u32 s63, s63, 1"); e("s_cbranch_scc1 a_o_wait")
    e("s_cbranch_vccz a_o_wait")
    e(f"s_sleep {opts.get('osleep', 8)}")
    e("s_branch a_o_poll")
    e("a_o_wait:")
    e("s_waitcnt vmcnt(0)")
    pack_wphi(e, WP, 96)
    e("s_barrier")
    if stamps: e("s_memrealtime s[90:91]")
    if opts.get("ocut") == 1: e("s_branch a_stamp")
    e("s_lshl_b32 s60, s59, 5"); e("s_lshl_b32 s61, s3, 2"); e("s_add_u32 s60, s60, s61")
    e(f"s_mul_i32 s60, s60, {NQ*1024}"); e(f"s_add_u32 s60, s60, {WS_KVP:#x}")
    for n in range(4*NQ):
        if n and n % 4 == 0: e("s_add_u32 s60, s60, 4096")
        e(f"buffer_load_dwordx4 v[{112+4*n}:{115+4*n}], v3, s[16:19], s60 offen offset:{(n%4)*1024} sc1")
    e("s_lshl_b32 s60, s59, 17"); e("s_lshl_b32 s61, s3, 14"); e("s_add_u32 s60, s60, s61")
    for n in range(16):
        if n and n % 4 == 0: e("s_add_u32 s60, s60, 4096")
        e(f"buffer_load_dwordx4 v[{Q+4*n}:{Q+4*n+3}], v3, s[16:19], s60 offen offset:{(n%4)*1024} sc1")
    e("s_waitcnt vmcnt(16)")
    e("v_and_b32 v6, 15, v2"); e("v_lshlrev_b32 v6, 2, v6")
    e("s_lshl_b32 s60, s3, 10"); e(f"s_add_u32 s60, s60, {WS_G:#x}")
    for n in range(16):
        e(f"buffer_load_dword v{G+n}, v6, s[16:19], s60 offen offset:{n*64} sc1")
    nr = 4*NQ
    for r in range(0, nr, 2):
        e(f"v_pk_add_f32 v[{112+r}:{113+r}], v[{112+r}:{113+r}], v[{112+nr+r}:{113+nr+r}]")
        e(f"v_pk_add_f32 v[{112+2*nr+r}:{113+2*nr+r}], v[{112+2*nr+r}:{113+2*nr+r}], v[{112+3*nr+r}:{113+3*nr+r}]")
    for r in range(0, nr, 2):
        e(f"v_pk_add_f32 v[{112+r}:{113+r}], v[{112+r}:{113+r}], v[{112+2*nr+r}:{113+2*nr+r}]")
    e(f"s_mul_i32 s60, s3, {NQ*1024}"); e("v_add_u32 v7, s60, v3")
    for qd in range(NQ): e(f"ds_write_b128 v7, v[{112+4*qd}:{115+4*qd}] offset:{qd*1024}")
    e("s_waitcnt lgkmcnt(0)"); e("s_barrier")
    e("s_lshl_b32 s60, s3, 10"); e("v_add_u32 v7, s60, v3")
    def sum8(addr, extra):
        for w in range(8):
            off = w*NQ*1024 + extra
            if off < 65536: e(f"ds_read_b128 v[{160+4*w}:{163+4*w}], v{addr} offset:{off}")
            else: e(f"ds_read_b128 v[{160+4*w}:{163+4*w}], v{addr+1} offset:{off-32768}")
        e("s_waitcnt lgkmcnt(0)")
        for st in (16, 8, 4):
            for r in range(0, st, 2):
                e(f"v_pk_add_f32 v[{160+r}:{161+r}], v[{160+r}:{161+r}], v[{160+st+r}:{161+st+r}]")
    e("v_mov_b32 v6, v7"); e("v_add_u32 v7, 0x8000, v6")
    sum8(6, 0)
    e(f"v_add_u32 v5, {80*1024}, v6")
    e(f"ds_write_b128 v5, v[160:163]")
    e("s_cmp_lg_u32 s3, 0"); e("s_cbranch_scc1 a_o_l2")
    sum8(6, 8*1024)
    e(f"ds_write_b128 v5, v[160:163] offset:8192")
    e("a_o_l2:")
    e("s_waitcnt lgkmcnt(0)"); e("s_barrier")
    e(f"v_add_u32 v5, {80*1024}, v3")
    for qd in range(NQ): e(f"ds_read_b128 v[{FQ+4*qd}:{FQ+4*qd+3}], v5 offset:{qd*1024}")
    e("s_waitcnt lgkmcnt(0)")
    for sg in range(2):
        for db in range(2):
            d = KO + (sg*2+db)*4
            for fb in range(2):
                a = FQ + ((sg*2+fb)*2+db)*4
                e(f"v_cvt_pk_bf16_f32 v{d+2*fb}, v{a}, v{a+1}"); e(f"v_cvt_pk_bf16_f32 v{d+2*fb+1}, v{a+2}, v{a+3}")
    zq = FQ + 32
    for fbk in range(4):
        for r in range(4):
            e(f"v_mov_b32_dpp v{160+fbk*4+r}, v{zq+r} quad_perm:[{fbk},{fbk},{fbk},{fbk}] row_mask:0xf bank_mask:0xf")
    e("v_and_b32 v6, 3, v2"); e("v_mov_b32 v7, 0x3f803f80")
    e("v_cmp_eq_u32 vcc, 1, v6"); e("s_nop 1"); e("v_cndmask_b32 v7, 0, v7, vcc")
    e("v_cmp_eq_u32 vcc, 0, v6")
    for n in range(8): e(f"v_cvt_pk_bf16_f32 v{ZO+n}, v{160+2*n}, v{161+2*n}")
    for n in range(8): e(f"v_cndmask_b32 v{ZO+n}, v7, v{ZO+n}, vcc")
    e(f"s_mov_b32 s62, {f32(LOG2E)}"); e(f"s_mov_b32 s63, {f32(LOG2E)}")
    e("v_lshrrev_b32 v6, 5, v2"); e("v_lshlrev_b32 v7, 15, v6"); e("v_and_b32 v6, 31, v2"); e("v_lshl_add_u32 v7, v6, 4, v7")
    e("s_lshl_b32 s60, s59, 17"); e("s_lshl_b32 s61, s3, 12"); e("s_add_u32 s60, s60, s61"); e(f"s_add_u32 s60, s60, {WS_OT:#x}")
    e(f"s_add_u32 s61, s60, 0x10000")
    e(f"v_mov_b32 v4, {f32(1e-6)}")
    e("s_waitcnt vmcnt(0)")
    nq = [192+4*n for n in range(16)] + [120+4*n for n in range(8)]
    for rd in range(4):
        for u in range(4):
            for fb in range(2):
                d = PK + (u*2+fb)*4; q = Q + (rd*4+u)*4
                e(f"v_mfma_f32_16x16x32_bf16 v[{d}:{d+3}], v[{WP+fb*4}:{WP+fb*4+3}], v[{q}:{q+3}], 0")
        e("s_nop 4")
        units = [dict(x=[PK+u*8, PK+u*8+4], ep=EP+u*16, em=EP+8+u*16, st=ST+u*2, out=PK+u*8) for u in range(4)]
        softmax_units(e, units, 62, False)
        e("s_nop 1")
        for u in range(4):
            for sg in range(2):
                b = PK + u*8 + sg*4
                for db in range(3):
                    d = nq[u*6 + sg*3 + db]
                    a = KO + (sg*2+db)*4 if db < 2 else ZO + sg*4
                    e(f"v_mfma_f32_16x16x32_bf16 v[{d}:{d+3}], v[{a}:{a+3}], v[{b}:{b+3}], 0")
        e("s_nop 4")
        for u in range(4):
            xp, xm = nq[u*6+2], nq[u*6+5]
            e(f"v_rcp_f32 v{xp+2}, v{xp+1}"); e(f"v_rcp_f32 v{xp+3}, v{xm+1}")
        for u in range(4):
            xp, xm = nq[u*6+2], nq[u*6+5]
            e(f"v_fma_f32 v{xp}, v{xp}, v{xp+2}, v4"); e(f"v_fma_f32 v{xp}, v{xm}, v{xp+3}, v{xp}")
        for u in range(4):
            xp = nq[u*6+2]; e(f"v_rcp_f32 v{xp}, v{xp}")
        for u in range(4):
            xp = nq[u*6+2]; e(f"v_mul_f32 v{xp}, v{xp}, v{G+rd*4+u}")
        for u in range(4):
            xp = nq[u*6+2]; e(f"v_pk_mul_f32 v[{xp+2}:{xp+3}], v[{xp+2}:{xp+3}], v[{xp}:{xp+1}] op_sel_hi:[1,0]")
        for u in range(4):
            xp = nq[u*6+2]
            for db in range(2):
                np_, nm = nq[u*6+db], nq[u*6+3+db]
                for q in (0, 2):
                    e(f"v_pk_mul_f32 v[{np_+q}:{np_+q+1}], v[{np_+q}:{np_+q+1}], v[{xp+2}:{xp+3}] op_sel:[0,0] op_sel_hi:[1,0]")
                    e(f"v_pk_fma_f32 v[{np_+q}:{np_+q+1}], v[{nm+q}:{nm+q+1}], v[{xp+2}:{xp+3}], v[{np_+q}:{np_+q+1}] op_sel:[0,1,0] op_sel_hi:[1,1,1]")
        for u in range(4):
            for db in range(2):
                np_ = nq[u*6+db]; o = PK + ((u//2)*2+db)*4 + (u % 2)*2
                e(f"v_cvt_pk_bf16_f32 v{o}, v{np_}, v{np_+1}"); e(f"v_cvt_pk_bf16_f32 v{o+1}, v{np_+2}, v{np_+3}")
        e("s_nop 1")
        for n in range(4):
            o = PK + n*4
            e(f"v_permlane16_swap_b32 v{o}, v{o+2}"); e(f"v_permlane16_swap_b32 v{o+1}, v{o+3}")
        for n in range(4):
            o = PK + n*4; pr, db = divmod(n, 2)
            e(f"buffer_store_dwordx4 v[{o}:{o+3}], v7, s[16:19], s{60+db} offen offset:{rd*1024 + pr*512}")
        e("s_nop 1")
    e("s_branch a_stamp")

def gen_b(opts):
    NS = opts.get("NSb", 5)
    c = GemmCfg(128, 2, NS, 64)
    k = Kern("b_kernel", 256, 512, NS*c.SB, vgpr=160, sgpr=100)
    e = k.e
    stamps = opts.get("stamps", False)
    W2, B2 = 72, 74
    e("s_cmp_ge_u32 s2, 256"); e("s_cbranch_scc1 b_end")
    e("s_load_dwordx2 s[70:71], s[0:1], 24")
    e("s_load_dwordx4 s[72:75], s[0:1], 56")
    e("s_load_dwordx2 s[78:79], s[0:1], 80")
    e("s_load_dwordx2 s[6:7], s[0:1], 96")
    if stamps: e("s_memrealtime s[80:81]")
    e("s_mov_b32 s92, s2")
    e("v_lshrrev_b32 v1, 6, v0"); e("v_and_b32 v2, 63, v0")
    e("s_lshr_b32 s56, s2, 3")
    e("v_readfirstlane_b32 s3, v1")
    e("s_and_b32 s52, s2, 1")
    e("s_bfe_u32 s54, s2, 0x10001"); e("s_lshl_b32 s54, s54, 2"); e("s_and_b32 s60, s56, 3"); e("s_add_u32 s54, s54, s60")
    e("s_bfe_u32 s55, s2, 0x10002"); e("s_lshl_b32 s55, s55, 3"); e("s_lshr_b32 s60, s56, 2"); e("s_add_u32 s55, s55, s60")
    e("s_waitcnt lgkmcnt(0)")
    k.srd(16, WS, WS_SIZE)
    e("s_cmp_ge_u32 s3, 4"); e("s_cbranch_scc0 b_cons")
    k.srd(24, W2, F_*S_*2)
    k.srd(20, WO, D_*D_*2)
    e("s_sub_u32 s3, s3, 4")
    e("v_lshlrev_b32 v8, 4, v2"); e(f"v_add_u32 v9, {4*D_*16}, v8"); e(f"v_add_u32 v10, {4*S_*16}, v8")
    lane_T_dma_off(e, 16, 12, 2, 6, S_*2, 3)
    for n in range(1, 4):
        sg, kg = divmod(n, 2); e(f"v_add_u32 v{12+n}, {sg*128 + kg*32*S_*2}, v12")
    e("s_mul_i32 s28, s52, 288"); e("s_add_u32 s28, s28, s3"); e("s_lshl_b32 s28, s28, 14"); e("s_lshl_b32 s60, s54, 11"); e("s_add_u32 s28, s28, s60")
    e(f"s_add_u32 s28, s28, {WS_UT:#x}")
    e(f"s_mul_i32 s29, s52, {2304*4096}"); e("s_lshl_b32 s60, s55, 8"); e("s_add_u32 s29, s29, s60")
    e("s_lshl_b32 s30, s3, 11")
    e("s_lshl_b32 s31, s3, 10"); e(f"s_add_u32 s31, s31, {c.PB}")
    R3 = dict(vP=[8, 9], vT=[12, 13, 14, 15], sP=28, sT=29, srdP=16, srdT=24, sBase=30, sLds=32, sStage=34, sCnt=35, stepP=8*D_*16, stepT=64*S_*2)
    e("s_cmp_eq_u32 s52, 0"); e("s_cbranch_scc0 b_prod1")
    producer_loop(k, c, 36, R3)
    e("s_endpgm")
    e("b_prod1:")
    lane_T_dma_off(e, 16, 16, 2, 6, D_*2, 3)
    for n in range(1, 4):
        sg, kg = divmod(n, 2); e(f"v_add_u32 v{16+n}, {sg*128 + kg*32*D_*2}, v16")
    e("s_lshl_b32 s36, s3, 15"); e("s_lshl_b32 s60, s55, 11"); e("s_add_u32 s36, s36, s60"); e(f"s_add_u32 s36, s36, {WS_OT:#x}")
    e("s_lshl_b32 s37, s54, 8")
    R4 = dict(R3, vP=[8, 10], vT=[16, 17, 18, 19], sP=36, sT=37, srdT=20, stepP=8*S_*16, stepT=64*D_*2)
    producer_loop(k, c, 36, [(20, R3), (16, R4)])
    e("s_endpgm")
    e("b_cons:")
    e("s_lshr_b32 s57, s3, 1"); e("s_and_b32 s58, s3, 1")
    k.srd(24, B2, S_*2)
    k.srd(20, OUT, S_*D_*2)
    e("v_and_b32 v15, 15, v2"); e("v_lshrrev_b32 v14, 4, v2")
    e("s_lshl_b32 s60, s55, 7"); e("s_lshl_b32 s61, s58, 5"); e("s_add_u32 s60, s60, s61"); e("v_add_u32 v8, s60, v15")
    e("v_lshlrev_b32 v9, 2, v8"); e("v_lshlrev_b32 v8, 1, v8")
    e(f"s_mov_b32 s60, {WS_G:#x}")
    GO, BO = 80, 88
    for j in range(4):
        e(f"buffer_load_dword v{GO+2*j}, v9, s[16:19], s60 offen offset:{((j//2)*64 + (j%2)*16)*4}")
        e(f"buffer_load_ushort v{BO+j}, v8, s[24:27], 0 offen offset:{((j//2)*64 + (j%2)*16)*2}")
    acc = [[96 + (i*4+j)*4 for j in range(4)] for i in range(4)]
    e("v_lshlrev_b32 v4, 11, v14"); e("v_lshl_add_u32 v4, v15, 4, v4")
    e("v_mov_b32 v5, v4")
    e("s_lshl_b32 s60, s57, 10"); e("v_add_u32 v4, s60, v4")
    lane_T_read_off(e, 16, 10, 2, 12, 13)
    e("s_lshl_b32 s60, s58, 6"); e("v_xor_b32 v6, s60, v10"); e("v_xor_b32 v7, 32, v6")
    e("v_lshlrev_b32 v3, 4, v2")
    e("s_waitcnt vmcnt(0)")
    e("s_cmp_eq_u32 s52, 0"); e("s_cselect_b32 s60, -65536, 0")
    for j in range(4):
        e(f"v_sub_f32 v{GO+2*j}, 1.0, v{GO+2*j}")
        e(f"v_lshlrev_b32 v{BO+j}, 16, v{BO+j}"); e(f"v_and_b32 v{BO+j}, s60, v{BO+j}")
        for i in range(4):
            for q in range(4): e(f"v_mov_b32 v{acc[i][j]+q}, v{BO+j}")
    p_off = [(0, kk*8192 + i*256) for kk in range(2) for i in range(4)]
    t_desc = [(j % 2, c.PB + (j//2)*8192 + kk*4096) for kk in range(2) for j in range(4)]
    order = [(kk*4+i, kk*4+j, i, j) for kk in range(2) for i in range(4) for j in range(4)]
    pbufs = [16 + 4*i for i in range(8)]; tbufs = [48 + 4*j for j in range(8)]
    def scale():
        e("s_waitcnt lgkmcnt(0)"); e("s_nop 7")
        for j in range(4):
            for i in range(4):
                for q in (0, 2):
                    a = acc[i][j] + q
                    e(f"v_pk_mul_f32 v[{a}:{a+1}], v[{a}:{a+1}], v[{GO+2*j}:{GO+2*j+1}] op_sel_hi:[1,0]")
    if stamps: e("s_memrealtime s[82:83]")
    e("s_cmp_eq_u32 s52, 0"); e("s_cbranch_scc0 b_cons1")
    consumer_loop(k, c, 36, 16, 8, 8, p_off, t_desc, acc, pbufs, tbufs, [4], [6, 7], True, order, 36, 37, 38, rpg=1, bar_pos=18)
    scale()
    e("s_branch b_exch")
    e("b_cons1:")
    consumer_loop(k, c, 20, 16, 8, 8, p_off, t_desc, acc, pbufs, tbufs, [4], [6, 7], True, order, 36, 37, 38, rpg=1, bar_pos=18)
    slot = 20 % NS
    e("s_lshl_b32 s60, s58, 9"); e(f"s_add_u32 s60, s60, {slot*c.SB}"); e("v_add_u32 v4, s60, v5")
    e("s_lshl_b32 s60, s57, 13"); e(f"s_add_u32 s60, s60, {slot*c.SB}"); e("v_add_u32 v10, s60, v10")
    for q in range(1, 4): e(f"v_xor_b32 v{10+q}, {32*q}, v10")
    scale()
    p_off4 = [(0, kk*8192 + (j//2)*1024 + (j%2)*256) for kk in range(2) for j in range(4)]
    t_desc4 = [(i, c.PB + kk*4096) for kk in range(2) for i in range(4)]
    order4 = [(kk*4+j, kk*4+i, i, j) for kk in range(2) for j in range(4) for i in range(4)]
    consumer_loop(k, c, 16, 16, 8, 8, p_off4, t_desc4, acc, pbufs, tbufs, [4], [10, 11, 12, 13], False, order4, 36, 37, 38, rpg=1, bar_pos=18, slot0=slot)
    e("s_waitcnt lgkmcnt(0)"); e("s_nop 7")
    e("b_exch:")
    if stamps: e("s_memrealtime s[84:85]")
    e("s_lshl_b32 s60, s2, 2"); e("s_add_u32 s60, s60, s3"); e("s_lshl_b32 s60, s60, 13"); e(f"s_add_u32 s60, s60, {WS_PART:#x}")
    e("s_add_u32 s61, s60, 4096")
    e("s_xor_b32 s62, s60, 0x8000"); e("s_add_u32 s63, s62, 4096")
    e("s_lshl_b32 s40, s2, 10"); e(f"s_add_u32 s40, s40, {WS_FLAG:#x}"); e("s_xor_b32 s41, s40, 0x400")
    e("v_mov_b32 v8, 0"); e("v_mov_b32 v9, 1")
    def exch(hk, lab):
        snd = [acc[i][2*(1-hk)+jj] for jj in range(2) for i in range(4)]
        keep = [acc[i][2*hk+jj] for jj in range(2) for i in range(4)]
        for n, a in enumerate(snd):
            e(f"buffer_store_dwordx4 v[{a}:{a+3}], v3, s[16:19], s{60 + n//4} offen offset:{(n%4)*1024} sc1")
        e("s_waitcnt vmcnt(0)"); e("s_barrier")
        e("s_cmp_lg_u32 s3, 0"); e(f"s_cbranch_scc1 {lab}_ns")
        e("s_mov_b64 exec, 1"); e("buffer_store_dword v9, v8, s[16:19], s40 offen sc1"); e("s_mov_b64 exec, -1")
        e(f"{lab}_ns:")
        e("buffer_load_dword v10, v8, s[16:19], s41 offen sc1"); e("s_waitcnt vmcnt(0)")
        spin_until(k, 10, 8, 16, "s41", 1, 42, sleep=1)
        for n in range(8):
            e(f"buffer_load_dwordx4 v[{16+4*n}:{19+4*n}], v3, s[16:19], s{62 + n//4} offen offset:{(n%4)*1024} sc1")
        for n, a in enumerate(keep):
            e(f"s_waitcnt vmcnt({7-n})")
            for q in (0, 2): e(f"v_pk_add_f32 v[{a+q}:{a+q+1}], v[{a+q}:{a+q+1}], v[{16+4*n+q}:{17+4*n+q}]")
        for i in range(4):
            for jj in range(2):
                a = acc[i][2*hk+jj]; o = 48 + i*4 + jj*2
                e(f"v_cvt_pk_bf16_f32 v{o}, v{a}, v{a+1}"); e(f"v_cvt_pk_bf16_f32 v{o+1}, v{a+2}, v{a+3}")
    e("s_cmp_eq_u32 s52, 0"); e("s_cbranch_scc0 b_ex1")
    exch(0, "b_ex0")
    e("s_branch b_fin")
    e("b_ex1:")
    exch(1, "b_ex1")
    e("b_fin:")
    e("v_and_b32 v8, 31, v2"); e("v_lshlrev_b32 v8, 11, v8"); e("v_lshrrev_b32 v9, 5, v2"); e("v_lshl_add_u32 v8, v9, 4, v8")
    e("s_lshl_b32 s60, s55, 2"); e("s_lshl_b32 s61, s52, 1"); e("s_add_u32 s60, s60, s61"); e("s_add_u32 s60, s60, s58"); e("s_lshl_b32 s60, s60, 16")
    e("s_lshl_b32 s61, s54, 8"); e("s_add_u32 s60, s60, s61"); e("s_lshl_b32 s61, s57, 7"); e("s_add_u32 s60, s60, s61")
    for i in range(4):
        o = 48 + i*4
        e(f"v_permlane16_swap_b32 v{o}, v{o+2}"); e(f"v_permlane16_swap_b32 v{o+1}, v{o+3}")
    for i in range(4):
        o = 48 + i*4
        e(f"buffer_store_dwordx4 v[{o}:{o+3}], v8, s[20:23], s60 offen offset:{i*32}")
    if stamps:
        e("s_waitcnt vmcnt(0)")
        e("s_memrealtime s[86:87]"); e("s_waitcnt lgkmcnt(0)")
        for n, sr in enumerate((80, 82, 84, 86)): e(f"v_mov_b32 v{8+n}, s{sr}")
        e("s_lshl_b32 s41, s92, 5"); e(f"s_add_u32 s41, s41, {WS_STAMP+0x10000:#x}"); e("v_mov_b32 v7, s41")
        e("v_cmp_eq_u32 vcc, 0, v0"); e("s_and_saveexec_b64 s[42:43], vcc"); e(f"s_cbranch_execz b_end")
        e(f"global_store_dwordx4 v7, v[8:11], s[{WS}:{WS+1}]")
    e("b_end:")
    return k

if __name__ == "__main__":
    out = sys.argv[1]
    opts = eval("dict(" + (sys.argv[2] if len(sys.argv) > 2 else "") + ")")
    ks = [gen_a(opts)]
    if opts.get("upto", 9) >= 3: ks.append(gen_b(opts))
    write_file(out, ks)
```

```python
import sys
from gen import *
import gen2
from gen2 import softmax_units, spin_until, gen_b, DBG, WS, X, WQKV, WPHI, WO, W1, B1, GW, OUT, WS_SIZE, WS_FLAG1, WS_KVP, NQ

WS_KVF = 0x1440000
WS_FLAG2 = 0x14D0000
SCR = 128*1024
DUMP = 112*1024

def cost(l):
    op = l.split()[0]
    if op.startswith(("v_exp", "v_rcp", "v_rsq", "v_log")): return 16
    if op.startswith(("v_pk_", "v_cvt_pk", "v_permlane", "v_mov_b64")): return 8
    if op.startswith("v_mfma"): return 16
    if op.startswith("s_nop"): return 4*(int(l.split()[1]) + 1)
    if op.startswith(("buffer_", "global_")): return 16
    if op.startswith("ds_"): return 8
    if op.startswith("s_waitcnt"): return 40
    return 4

class Stream:
    def __init__(self, k):
        self.k = k; self.nvm = 0; self.tags = {}; self.done = 0
    def e(self, l):
        for x in l.split("\n"):
            x = x.strip()
            if not x: continue
            if x.startswith("@wait "):
                idx = self.tags[x.split()[1]]
                if idx <= self.done: continue
                n = self.nvm - idx
                assert n <= 63, n
                self.done = idx
                self.k.e(f"s_waitcnt vmcnt({n})")
                continue
            tag = None
            if x.startswith("@nc "):
                self.k.e(x[4:]); continue
            if x.startswith("@vm "):
                _, tag, x = x.split(" ", 2)
            if x.startswith(("buffer_load", "buffer_store", "buffer_atomic", "global_load", "global_store")):
                self.nvm += 1
                if tag: self.tags[tag] = self.nvm
            self.k.e(x)
    def mark(self, tag): self.tags[tag] = self.nvm

class Work:
    def __init__(self): self.q = []
    def e(self, l): self.q.append(l)
    def bar(self): self.q.append("#bar")
    def take(self, st, budget):
        used = 0
        while self.q:
            it = self.q[0]
            if it == "#bar":
                self.q.pop(0); break
            c = sum(cost(x.split(" ", 2)[2] if x.strip().startswith("@vm ") else (x if not x.strip().startswith("@wait") else "s_waitcnt")) for x in it.split("\n") if x.strip())
            if used and used + c > budget: break
            st.e(it); used += c; self.q.pop(0)
    def flush(self, st):
        for it in self.q:
            assert it != "#bar"
            st.e(it)
        self.q = []

def ln_work(w, k_):
    e = w.e
    HP = 2112
    XR, GWR, XF, GF, A = 48, 64, 72, 104, 120
    e("@wait lng")
    for r in range(2):
        for i in range(8):
            e(f"v_lshlrev_b32 v{XF+16*r+2*i}, 16, v{XR+8*r+i}"); e(f"v_and_b32 v{XF+1+16*r+2*i}, s36, v{XR+8*r+i}")
    for i in range(8):
        e(f"v_lshlrev_b32 v{GF+2*i}, 16, v{GWR+i}"); e(f"v_and_b32 v{GF+1+2*i}, s36, v{GWR+i}")
    for r in range(2):
        b = XF + 16*r
        e(f"v_add_f32 v{A+r}, v{b}, v{b+1}"); e(f"v_mul_f32 v{A+2+r}, v{b}, v{GF}")
    for i in range(2, 16):
        for r in range(2): e(f"v_add_f32 v{A+r}, v{A+r}, v{XF+16*r+i}")
    for i in range(1, 16):
        for r in range(2): e(f"v_fmac_f32 v{A+2+r}, v{XF+16*r+i}, v{GF+i}")
    dpp_reduce_sum_multi(e, [A, A+1, A+2, A+3])
    e("s_nop 1\n" + "\n".join(f"v_readlane_b32 s{12+n}, v{A+n}, 63" for n in range(4)) + f"\ns_mov_b32 s37, {f32(-1.0/1024)}\ns_nop 0")
    e(f"v_mov_b32 v{A+4}, s12"); e(f"v_mov_b32 v{A+5}, s13")
    e(f"v_mul_f32 v{A+4}, s37, v{A+4}"); e(f"v_mul_f32 v{A+5}, s37, v{A+5}")
    for i in range(16):
        for r in range(2): e(f"v_add_f32 v{XF+16*r+i}, v{XF+16*r+i}, v{A+4+r}")
    for r in range(2): e(f"v_mul_f32 v{A+r}, v{XF+16*r}, v{XF+16*r}")
    for i in range(1, 16):
        for r in range(2): e(f"v_fmac_f32 v{A+r}, v{XF+16*r+i}, v{XF+16*r+i}")
    e(f"v_mov_b32 v{A+6}, s14"); e(f"v_mov_b32 v{A+7}, s15")
    e(f"v_cmp_eq_u32 vcc, 1, v2\ns_nop 1\nv_cndmask_b32 v{A+6}, v{A+6}, v{A+7}, vcc")
    e(f"v_mul_f32 v{A+6}, {f32(-LOG2E)}, v{A+6}")
    e(f"v_exp_f32 v{A+6}, v{A+6}\ns_nop 0\nv_add_f32 v{A+6}, 1.0, v{A+6}\nv_rcp_f32 v{A+6}, v{A+6}")
    dpp_reduce_sum_multi(e, [A, A+1])
    e(f"s_nop 1\nv_readlane_b32 s12, v{A}, 63\nv_readlane_b32 s13, v{A+1}, 63\ns_mov_b32 s37, {f32(1.0/1024)}\nv_mov_b32 v{A+7}, {f32(1e-5)}")
    e(f"v_mov_b32 v{A+4}, s12"); e(f"v_mov_b32 v{A+5}, s13")
    e(f"v_fma_f32 v{A+4}, v{A+4}, s37, v{A+7}"); e(f"v_fma_f32 v{A+5}, v{A+5}, s37, v{A+7}")
    e(f"v_rsq_f32 v{A+4}, v{A+4}\nv_rsq_f32 v{A+5}, v{A+5}\ns_nop 0")
    for r in range(2):
        for i in range(16): e(f"v_mul_f32 v{XF+16*r+i}, v{XF+16*r+i}, v{A+4+r}")
        for i in range(8): e(f"v_cvt_pk_bf16_f32 v{XR+8*r+i}, v{XF+16*r+2*i}, v{XF+16*r+2*i+1}")
    e(f"s_mul_i32 s37, s3, {2*HP}\ns_add_u32 s37, s37, {SCR}\nv_add_u32 v{A}, s37, v3")
    e(f"ds_write_b128 v{A}, v[{XR}:{XR+3}]"); e(f"ds_write_b128 v{A}, v[{XR+4}:{XR+7}] offset:1024")
    e(f"ds_write_b128 v{A}, v[{XR+8}:{XR+11}] offset:{HP}"); e(f"ds_write_b128 v{A}, v[{XR+12}:{XR+15}] offset:{HP+1024}")
    e(f"v_lshlrev_b32 v{A+7}, 2, v2\ns_lshl_b32 s37, s2, 5\ns_lshl_b32 s38, s3, 3\ns_add_u32 s37, s37, s38\ns_add_u32 s37, s37, {WS_G:#x}\n"
      f"s_mov_b64 exec, 3\nbuffer_store_dword v{A+6}, v{A+7}, s[16:19], s37 offen sc1\ns_mov_b64 exec, -1")
    e(f"v_bfe_u32 v{A+1}, v2, 2, 2\nv_mul_u32_u24 v{A+1}, {HP}, v{A+1}\nv_and_b32 v{A+2}, 3, v2\nv_lshl_add_u32 v{A+1}, v{A+2}, 3, v{A+1}")
    e(f"v_lshrrev_b32 v{A+2}, 4, v2\nv_lshl_add_u32 v{A+1}, v{A+2}, 5, v{A+1}\ns_lshl_b32 s37, s3, 7\ns_add_u32 s37, s37, {SCR}\nv_add_u32 v{A+1}, s37, v{A+1}")
    e("s_waitcnt lgkmcnt(0)")
    w.bar()
    for j in range(4):
        e(f"ds_read_b64_tr_b16 v[{XF+4*j}:{XF+1+4*j}], v{A+1} offset:{512*j}")
        e(f"ds_read_b64_tr_b16 v[{XF+2+4*j}:{XF+3+4*j}], v{A+1} offset:{512*j+4*HP}")
    e(f"s_lshl_b32 s37, s2, 14\ns_lshl_b32 s38, s3, 10\ns_add_u32 s37, s37, s38\ns_add_u32 s37, s37, {WS_HT:#x}")
    for j in range(4):
        e(f"s_waitcnt lgkmcnt({6-2*j})\n@vm lnst buffer_store_dwordx4 v[{XF+4*j}:{XF+3+4*j}], v3, s[16:19], s37 offen sc1\ns_add_u32 s37, s37, 4096")

WP, Q, K, V, PK, EP, ST, ZB, EF, KV = 24, 48, 64, 80, 96, 128, 192, 208, 224, 128
KO, ZO, GG = 208, 224, 232

def kq_work(w):
    e = w.e
    for sb in range(4):
        for fb in range(2):
            d = PK + (sb*2+fb)*4
            e(f"v_mfma_f32_16x16x32_bf16 v[{d}:{d+3}], v[{WP+fb*4}:{WP+3+fb*4}], v[{K+sb*4}:{K+sb*4+3}], 0")
    e(f"s_mov_b32 s62, {f32(LOG2E)}\ns_mov_b32 s63, {f32(LOG2E)}")
    e(f"v_and_b32 v{EF}, 15, v2\nv_lshrrev_b32 v{EF+1}, 4, v2\ns_lshl_b32 s37, s3, 13\ns_add_u32 s37, s37, {SCR}")
    e(f"v_mul_u32_u24 v22, 160, v{EF}\nv_lshl_add_u32 v22, v{EF+1}, 3, v22\nv_add_u32 v22, s37, v22")
    e(f"v_lshrrev_b32 v{EF}, 2, v{EF}\nv_lshl_add_u32 v{EF}, v{EF+1}, 2, v{EF}\nv_mul_u32_u24 v23, 160, v{EF}")
    e(f"v_and_b32 v{EF}, 3, v2\nv_lshl_add_u32 v23, v{EF}, 3, v23\nv_add_u32 v23, s37, v23\nv_mov_b32 v{EF+1}, 0x3f803f80")
    for fbk in range(4):
        e(f"v_cmp_eq_u32 vcc, {fbk}, v{EF}\ns_nop 1\nv_cndmask_b32 v{ZB+4*fbk}, 0, v{EF+1}, vcc")
        for r in range(1, 4): e(f"v_mov_b32 v{ZB+4*fbk+r}, v{ZB+4*fbk}")
    units = [dict(x=[PK+sb*8, PK+sb*8+4], ep=EP+sb*16, em=EP+8+sb*16, st=ST+sb*4, out=PK+sb*8) for sb in range(4)]
    softmax_units(e, units, 62, True)
    for p in range(2):
        for h in range(2):
            o = units[2*p+h]["out"]
            for fbk in range(4): e(f"ds_write_b64 v22, v[{o+2*fbk}:{o+2*fbk+1}] offset:{h*16*160 + fbk*32}")
        e("s_waitcnt lgkmcnt(0)")
        for fbk in range(4):
            for t in range(2): e(f"ds_read_b64_tr_b16 v[{EF+fbk*4+2*t}:{EF+fbk*4+2*t+1}], v23 offset:{t*16*160 + fbk*32}")
        if p == 1:
            for sb in range(4):
                for fb in range(2):
                    d = PK + (sb*2+fb)*4
                    e(f"v_mfma_f32_16x16x32_bf16 v[{d}:{d+3}], v[{WP+fb*4}:{WP+3+fb*4}], v[{Q+sb*4}:{Q+sb*4+3}], 0")
        for fbk in range(4):
            e(f"s_waitcnt lgkmcnt({6-2*fbk})")
            for db in range(3):
                d = KV + (fbk*2+db)*4 if db < 2 else KV + 32
                b = V + (p*2+db)*4 if db < 2 else ZB + 4*fbk
                cc = "0" if (p == 0 and (db < 2 or fbk == 0)) else f"v[{d}:{d+3}]"
                e(f"v_mfma_f32_16x16x32_bf16 v[{d}:{d+3}], v[{EF+fbk*4}:{EF+fbk*4+3}], v[{b}:{b+3}], {cc}")
    e(f"s_lshl_b32 s37, s59, 5\ns_lshl_b32 s38, s52, 1\ns_add_u32 s37, s37, s38\ns_lshr_b32 s38, s3, 1\ns_add_u32 s37, s37, s38\n"
      f"s_mul_i32 s37, s37, {NQ*1024}\ns_add_u32 s37, s37, {WS_KVP:#x}\ns_nop 3")
    for qd in range(NQ):
        pre = "s_add_u32 s37, s37, 4096\n" if qd and qd % 4 == 0 else ""
        e(pre + f"@vm kvst buffer_store_dwordx4 v[{KV+qd*4}:{KV+qd*4+3}], v3, s[16:19], s37 offen offset:{(qd%4)*1024} sc1")
    e("s_nop 1")
    e("#kvdone")
    softmax_units(e, units, 62, False)

def o_loads(e):
    e(f"s_mul_i32 s37, s59, 6144"); e(f"s_add_u32 s37, s37, {WS_KVF:#x}"); e("s_add_u32 s38, s37, 4096")
    for n in range(6):
        e(f"buffer_load_dwordx4 v[{KO+4*n}:{KO+4*n+3}], v3, s[16:19], s{37 + n//4} offen offset:{(n%4)*1024} sc1")
    e("v_and_b32 v22, 15, v2"); e("v_lshlrev_b32 v22, 2, v22")
    e("s_lshl_b32 s37, s52, 9"); e("s_lshr_b32 s38, s3, 1"); e("s_lshl_b32 s38, s38, 8"); e("s_add_u32 s37, s37, s38"); e(f"s_add_u32 s37, s37, {WS_G:#x}")
    for u in range(4): e(f"buffer_load_dword v{GG+u}, v22, s[16:19], s37 offen offset:{u*64} sc1")

def o_final(e):
    nq = [128+4*n for n in range(20)] + [48+4*n for n in range(4)]
    e("v_lshrrev_b32 v22, 5, v2"); e("v_lshlrev_b32 v23, 15, v22"); e("v_and_b32 v22, 31, v2"); e("v_lshl_add_u32 v23, v22, 4, v23")
    e("s_lshl_b32 s37, s59, 17"); e("s_lshl_b32 s38, s52, 11"); e("s_add_u32 s37, s37, s38"); e("s_lshr_b32 s38, s3, 1"); e("s_lshl_b32 s38, s38, 10")
    e("s_add_u32 s37, s37, s38"); e(f"s_add_u32 s37, s37, {WS_OT:#x}"); e("s_add_u32 s38, s37, 0x10000")
    e(f"v_mov_b32 v22, {f32(1e-6)}")
    e("s_waitcnt vmcnt(0)")
    for u in range(4):
        for sg in range(2):
            b = PK + u*8 + sg*4
            for db in (2, 0, 1):
                d = nq[u*6 + sg*3 + db]
                a = KO + (sg*2+db)*4 if db < 2 else ZO + sg*4
                e(f"v_mfma_f32_16x16x32_bf16 v[{d}:{d+3}], v[{a}:{a+3}], v[{b}:{b+3}], 0")
    e("s_nop 1")
    for u in range(4):
        xp, xm = nq[u*6+2], nq[u*6+5]
        e(f"v_rcp_f32 v{xp+2}, v{xp+1}"); e(f"v_rcp_f32 v{xp+3}, v{xm+1}")
    for u in range(4):
        xp, xm = nq[u*6+2], nq[u*6+5]
        e(f"v_fma_f32 v{xp}, v{xp}, v{xp+2}, v22"); e(f"v_fma_f32 v{xp}, v{xm}, v{xp+3}, v{xp}")
    for u in range(4): xp = nq[u*6+2]; e(f"v_rcp_f32 v{xp}, v{xp}")
    for u in range(4): xp = nq[u*6+2]; e(f"v_mul_f32 v{xp}, v{xp}, v{GG+u}")
    for u in range(4):
        xp = nq[u*6+2]; e(f"v_mul_f32 v{xp+2}, v{xp+2}, v{xp}"); e(f"v_mul_f32 v{xp+3}, v{xp+3}, v{xp}")
    for u in range(4):
        xp = nq[u*6+2]
        for db in range(2):
            np_, nm = nq[u*6+db], nq[u*6+3+db]
            for q in range(4): e(f"v_mul_f32 v{np_+q}, v{np_+q}, v{xp+2}")
            for q in range(4): e(f"v_fmac_f32 v{np_+q}, v{nm+q}, v{xp+3}")
    for u in range(4):
        for db in range(2):
            np_ = nq[u*6+db]; o = 64 + ((u//2)*2+db)*4 + (u % 2)*2
            e(f"v_cvt_pk_bf16_f32 v{o}, v{np_}, v{np_+1}"); e(f"v_cvt_pk_bf16_f32 v{o+1}, v{np_+2}, v{np_+3}")
    e("s_nop 1")
    for n in range(4):
        o = 64 + n*4
        e(f"v_permlane16_swap_b32 v{o}, v{o+2}"); e(f"v_permlane16_swap_b32 v{o+1}, v{o+3}")
    for n in range(4):
        o = 64 + n*4; pr, db = divmod(n, 2)
        e(f"buffer_store_dwordx4 v[{o}:{o+3}], v23, s[16:19], s{37+db} offen offset:{pr*512}")

def one_lane(lab, body, nc="@nc "):
    body = body.replace("buffer_", nc + "buffer_")
    return f"s_cmp_lg_u32 s3, 0\ns_cbranch_scc1 {lab}\ns_mov_b64 exec, 1\n{body}\ns_mov_b64 exec, -1\n{lab}:"

def gen_a(opts):
    c1 = GemmCfg(128, 3, 3, 64, prow=True)
    c2 = GemmCfg(128, 2, 4, 64)
    k = Kern("a_kernel", 256, 512, 160*1024, vgpr=256, sgpr=100)
    e = k.e
    stamps = opts.get("stamps", False)
    bud1 = opts.get("bud1", 400); bud2 = opts.get("bud2", 300)
    e("s_cmp_ge_u32 s2, 256"); e("s_cbranch_scc1 a_end")
    e("s_load_dwordx8 s[64:71], s[0:1], 0")
    e("s_load_dwordx4 s[72:75], s[0:1], 40")
    e("s_load_dwordx4 s[76:79], s[0:1], 72")
    e("s_load_dwordx4 s[4:7], s[0:1], 88")
    e("s_load_dwordx2 s[12:13], s[0:1], 56")
    if stamps: e("s_memrealtime s[80:81]")
    e("s_mov_b32 s92, s2")
    e("v_lshrrev_b32 v1, 6, v0"); e("v_and_b32 v2, 63, v0"); e("v_lshlrev_b32 v3, 4, v2")
    e("s_lshr_b32 s56, s2, 3")
    e("v_readfirstlane_b32 s3, v1")
    e("s_and_b32 s52, s2, 1"); e("s_lshl_b32 s52, s52, 3"); e("s_and_b32 s60, s56, 7"); e("s_add_u32 s52, s52, s60")
    e("s_bfe_u32 s53, s2, 0x20001"); e("s_lshl_b32 s53, s53, 2"); e("s_lshr_b32 s60, s56, 3"); e("s_add_u32 s53, s53, s60")
    e("s_and_b32 s54, s2, 1"); e("s_lshl_b32 s54, s54, 2"); e("s_and_b32 s60, s56, 3"); e("s_add_u32 s54, s54, s60")
    e("s_bfe_u32 s55, s2, 0x20001"); e("s_mul_i32 s55, s55, 7"); e("s_lshr_b32 s60, s56, 2"); e("s_add_u32 s55, s55, s60")
    e("s_waitcnt lgkmcnt(0)")
    k.srd(16, WS, WS_SIZE)
    k.srd(40, DBG, 256)
    e("s_cmp_ge_u32 s3, 4"); e("s_cbranch_scc0 a_cons")
    st = Stream(k)
    k.srd(20, X, S_*D_*2)
    k.srd(24, WQKV, D_*3*D_*2)
    e("s_sub_u32 s3, s3, 4")
    e("v_lshrrev_b32 v7, 3, v2")
    e("s_lshl_b32 s60, s3, 5"); e("v_add_u32 v4, s60, v7"); e("v_lshlrev_b32 v4, 11, v4")
    e("v_lshrrev_b32 v5, 1, v7"); e("v_xor_b32 v5, v5, v2"); e("v_and_b32 v5, 7, v5")
    e("v_lshl_add_u32 v8, v5, 4, v4")
    e("v_xor_b32 v9, 64, v8"); e(f"v_add_u32 v9, {8*2048}, v9")
    e(f"v_add_u32 v10, {16*2048}, v8"); e(f"v_add_u32 v11, {16*2048}, v9")
    lane_T_dma_off(e, 16, 12, 2, 6, 6144, 3)
    for n in range(1, 6):
        sg, kg = divmod(n, 2)
        e(f"v_add_u32 v{12+n}, {sg*2048 + kg*32*6144}, v12")
    e("s_lshl_b32 s9, s52, 18"); e("s_lshl_b32 s10, s53, 7")
    e("s_and_b32 s8, s52, 7")
    e("s_lshl_b32 s11, s8, 7"); e("s_add_u32 s28, s9, s11"); e(f"s_mul_i32 s11, s8, {64*6144}"); e("s_add_u32 s29, s10, s11")
    e("s_lshl_b32 s30, s3, 12")
    e("s_lshl_b32 s31, s3, 10"); e(f"s_add_u32 s31, s31, {c1.PB}")
    R1 = dict(vP=[8, 9, 10, 11], vT=list(range(12, 18)), sP=28, sT=29, srdP=20, srdT=24, sBase=30, sLds=32, sStage=34, sCnt=35, stepP=128, stepT=64*6144, rot=(8, 16, 9, 10, 11))
    e("s_mov_b32 s34, 0"); e("s_mov_b32 s32, s30"); e("s_mov_b32 s33, s31")
    def issue(c, R, tag, flags=("", "")):
        producer_issue(st.e, c, R, flags); st.mark(tag); ring_advance(st.e, c, R)
    for t in range(3): issue(c1, R1, f"a{t}")
    e("s_lshl_b32 s37, s2, 14"); e("s_lshl_b32 s38, s3, 12"); e("s_add_u32 s37, s37, s38")
    for n in range(4): st.e(f"buffer_load_dwordx4 v[{48+4*n}:{51+4*n}], v3, s[20:23], s37 offen offset:{n*1024}")
    k.srd(44, GW, D_*2)
    st.e("buffer_load_dwordx4 v[64:67], v3, s[44:47], 0 offen"); st.e("@vm lng buffer_load_dwordx4 v[68:71], v3, s[44:47], 0 offen offset:1024")
    k.srd(48, WPHI, 32*2048)
    e("s_and_b32 s60, s3, 1"); e("s_lshl_b32 s59, s53, 1"); e("s_add_u32 s59, s59, s60")
    e("s_lshl_b32 s60, s59, 11")
    gen2.load_wphi(st.e, 32, 48, 60, 5); st.mark("wphi")
    e("v_mov_b32 v20, 0"); e("v_mov_b32 v21, 1")
    e(f"s_lshl_b32 s60, s2, 10"); e(f"s_add_u32 s60, s60, {WS_FLAG:#x}")
    e("s_lshl_b32 s58, s53, 4"); e("s_add_u32 s58, s58, s52"); e("s_lshl_b32 s58, s58, 7"); e(f"s_add_u32 s58, s58, {WS_FLAG1:#x}")
    e("s_and_b32 s61, s2, 31"); e("s_lshl_b32 s61, s61, 7"); e(f"s_add_u32 s61, s61, {WS_FLAG2:#x}")
    e("v_mov_b32 v6, s60"); e("v_writelane_b32 v6, s58, 1"); e("v_writelane_b32 v6, s61, 2")
    st.e(one_lane("a_z", "s_mov_b64 exec, 7\nbuffer_store_dword v20, v6, s[16:19], 0 offen sc1"))
    e("s_mov_b32 s36, 0xffff0000")
    w = Work(); ln_work(w, k)
    w.e("@wait wphi"); gen2.pack_wphi(w.e, WP, 32)
    st.e("@wait a0"); e("s_barrier")
    sig_at = None
    for t in range(16):
        if t + 1 < 16: st.e(f"@wait a{t+1}")
        e("s_barrier")
        if t + 3 < 16: issue(c1, R1, f"a{t+3}")
        if sig_at == t: st.e(one_lane("a_sig1", "buffer_atomic_add v21, v20, s[40:43], 0 offen sc1"))
        if t >= 1 and w.q:
            w.take(st, bud1)
            if not w.q: sig_at = t + 3
    assert not w.q and sig_at <= 13, sig_at
    print("LN signal at G1 stage", sig_at)
    e("s_cmp_ge_u32 s56, 28"); e("s_cbranch_scc1 a_red_h")
    st.e("@vm lnpoll buffer_load_dword v22, v20, s[40:43], 0 offen sc1")
    k.srd(24, W1, S_*F_*2)
    e(f"v_add_u32 v9, {4*D_*16}, v3")
    e("s_lshl_b32 s60, s3, 14")
    e(f"s_lshl_b32 s28, s54, 11"); e("s_add_u32 s28, s28, s60"); e(f"s_add_u32 s28, s28, {WS_HT:#x}")
    lane_T_dma_off(e, 16, 12, 2, 6, F_*2, 3)
    for n in range(1, 4):
        sg, kg = divmod(n, 2)
        e(f"v_add_u32 v{12+n}, {sg*128 + kg*32*F_*2}, v12")
    e("s_lshl_b32 s29, s55, 8")
    e("s_lshl_b32 s30, s3, 11")
    e("s_lshl_b32 s31, s3, 10"); e(f"s_add_u32 s31, s31, {c2.PB}")
    R2 = dict(vP=[3, 9], vT=[12, 13, 14, 15], sP=28, sT=29, srdP=16, srdT=24, sBase=30, sLds=32, sStage=34, sCnt=35, stepP=8*D_*16, stepT=64*F_*2)
    for t in range(3):
        for n in range(4):
            sg, kg = divmod(n, 2)
            e(f"s_add_u32 m0, s31, {t*c2.SB + sg*8192 + kg*4096}"); e("s_nop 0")
            st.e(f"buffer_load_dwordx4 v{12+n}, s[24:27], s29 offen lds")
        e(f"s_add_u32 s29, s29, {R2['stepT']}")
    st.e("@wait lnpoll")
    spin_until(k, 22, 20, 40, "0", 256, 60)
    for t in range(3):
        for cg in range(2):
            e(f"s_add_u32 m0, s30, {t*c2.SB + cg*8192}"); e("s_nop 0")
            for rb in range(2): st.e(f"buffer_load_dwordx4 v{R2['vP'][cg]}, s[16:19], s28 offen offset:{rb*1024} sc1 lds")
        st.mark(f"b{t}")
        e(f"s_add_u32 s28, s28, {R2['stepP']}")
    e(f"s_mov_b32 s34, {3*c2.SB}"); e("s_add_u32 s32, s34, s30"); e("s_add_u32 s33, s34, s31")
    e(f"s_mul_i32 s60, s3, 12288"); e(f"s_add_u32 s60, s60, {DUMP}"); e("v_add_u32 v22, s60, v3")
    st.e("@wait b0"); e("s_barrier")
    for n in range(12): e(f"ds_read_b128 v[{Q+4*n}:{Q+4*n+3}], v22 offset:{n*1024}")
    e("s_waitcnt lgkmcnt(0)")
    w = Work(); kq_work(w)
    sig_at = None
    fl = (" sc1", "")
    for t in range(32):
        if t + 1 < 32: st.e(f"@wait b{t+1}")
        e("s_barrier")
        if t == 0: issue(c2, R2, "b3", fl)
        if t + 4 < 32: issue(c2, R2, f"b{t+4}", fl)
        if sig_at == t: st.e(one_lane("a_sig2", "buffer_store_dword v21, v20, s[16:19], s58 offen sc1"))
        used = False
        while w.q and not used:
            if "#kvdone" in w.q:
                n = w.q.index("#kvdone")
                pre = Work(); pre.q = w.q[:n]
                if n == 0:
                    w.q.pop(0); sig_at = t + 4; print("kv stores done at G2 stage", t); continue
                pre.take(st, bud2); w.q = pre.q + w.q[n:]
            else:
                w.take(st, bud2)
                if not w.q: print("q path done at G2 stage", t)
            used = True
        if t == 27:
            e("s_lshl_b32 s61, s59, 7"); e(f"s_add_u32 s61, s61, {WS_FLAG2:#x}")
            st.e("@vm kvpoll buffer_load_dword v4, v20, s[16:19], s61 offen sc1")
        if t == 29:
            st.e("@wait kvpoll")
            e("v_readfirstlane_b32 s39, v4"); e("s_cmp_eq_u32 s39, 0"); e("s_cbranch_scc1 a_nokv")
            o_loads(e)
            e("a_nokv:")
    assert not w.q
    e("s_cmp_lg_u32 s39, 0"); e("s_cbranch_scc1 a_ofin")
    e("a_owait:")
    e("buffer_load_dword v4, v20, s[16:19], s61 offen sc1"); e("s_waitcnt vmcnt(0)")
    spin_until(k, 4, 20, 16, "s61", 1, 62)
    o_loads(e)
    e("a_ofin:")
    o_final(e)
    if stamps and opts.get("hstamp"):
        e("s_waitcnt vmcnt(0)"); e("s_memrealtime s[86:87]"); e("s_waitcnt lgkmcnt(0)")
        e("v_mov_b32 v8, s86"); e("s_lshl_b32 s41, s92, 5"); e(f"s_add_u32 s41, s41, {WS_STAMP+28:#x}"); e("v_mov_b32 v7, s41")
        e(one_lane("a_hs", f"global_store_dword v7, v8, s[{WS}:{WS+1}]"))
    e("s_endpgm")
    e("a_red_h:")
    e(f"s_mul_i32 s60, s3, 12288"); e(f"s_add_u32 s60, s60, {DUMP}"); e("v_add_u32 v22, s60, v3")
    e("s_barrier")
    for n in range(12): e(f"ds_read_b128 v[{Q+4*n}:{Q+4*n+3}], v22 offset:{n*1024}")
    e("s_waitcnt lgkmcnt(0)")
    e("s_barrier")
    w = Work(); kq_work(w)
    st2 = Stream(k)
    for it in w.q:
        if it == "#kvdone":
            e("s_waitcnt vmcnt(0)"); e("s_barrier")
            st2.e(one_lane("a_sig3", "buffer_store_dword v21, v20, s[16:19], s58 offen sc1"))
        else: st2.e(it)
    e("s_barrier"); e("s_barrier"); e("s_barrier")
    e("s_lshl_b32 s61, s59, 7"); e(f"s_add_u32 s61, s61, {WS_FLAG2:#x}")
    e("s_branch a_owait")
    e("a_cons:")
    e("s_lshr_b32 s57, s3, 1"); e("s_and_b32 s58, s3, 1")
    k.srd(48, B1, F_*2)
    e("v_lshrrev_b32 v7, 4, v2"); e("v_lshlrev_b32 v7, 3, v7")
    e("s_lshl_b32 s60, s55, 8"); e("s_lshl_b32 s61, s58, 6"); e("s_add_u32 s60, s60, s61")
    for j in range(4):
        e(f"buffer_load_dwordx2 v[{152+2*j}:{153+2*j}], v7, s[48:51], s60 offen offset:{(j//2)*128 + (j%2)*32}")
    acc = [[160 + (i*6+j)*4 for j in range(6)] for i in range(4)]
    for r in range(160, 256): e(f"v_mov_b32 v{r}, 0")
    e("v_and_b32 v37, 15, v2"); e("v_lshrrev_b32 v38, 4, v2")
    e("v_lshrrev_b32 v39, 1, v37"); e("v_xor_b32 v39, v39, v38")
    e("s_lshl_b32 s60, s57, 6"); e("v_add_u32 v4, s60, v37"); e("v_lshlrev_b32 v4, 7, v4"); e("v_lshl_add_u32 v4, v39, 4, v4")
    e("v_xor_b32 v5, 64, v4")
    lane_T_read_off(e, 16, 6, 2, 37, 38)
    e("s_lshl_b32 s60, s58, 6"); e("v_xor_b32 v6, s60, v6"); e("v_xor_b32 v7, 32, v6")
    k.srd(44, W1, S_*F_*2)
    k.srd(20, 12, S_*F_*2)
    k.srd(24, WO, D_*D_*2)
    e("v_lshlrev_b32 v143, 7, v2"); e("v_mov_b32 v141, 0x7fffff00")
    e("v_cmp_gt_u32 vcc, 7, v2"); e("s_nop 1"); e("v_cndmask_b32 v142, v141, v143, vcc")
    e("v_cmp_gt_u32 vcc, 4, v2"); e("s_nop 1"); e("v_cndmask_b32 v141, v141, v143, vcc")
    e("s_lshl_b32 s8, s2, 2"); e("s_add_u32 s8, s8, s3"); e("s_mul_i32 s9, s8, 14336"); e("s_lshl_b32 s10, s8, 14")
    pf1 = ["buffer_load_dword v140, v142, s[44:47], s9 offen", "s_add_u32 s9, s9, 896"] if opts.get("pf", True) else []
    pf2 = ["buffer_load_dword v140, v141, s[20:23], s10 offen", "s_add_u32 s10, s10, 512"] if opts.get("pf", True) else []
    p_off = [(kk, i*2048) for kk in range(2) for i in range(4)]
    t_desc = [(j % 2, c1.PB + (j//2)*8192 + kk*4096) for kk in range(2) for j in range(6)]
    order = [(kk*4+i, kk*6+j, i, j) for kk in range(2) for i in range(4) for j in range(6)]
    pbufs = [16 + 4*i for i in range(8)]; tbufs = [48 + 4*j for j in range(12)]
    if opts.get("prio"): e(f"s_setprio {opts['prio']}")
    if stamps: e("s_memrealtime s[82:83]")
    consumer_loop(k, c1, 16, 16, 8, 12, p_off, t_desc, acc, pbufs, tbufs, [4, 5], [6, 7],
                  lambda i, j: j >= 4, order, 36, 37, 38, rpg=1, bar_pos=opts.get("bar1", 28), stage_extra=pf1)
    if stamps: e("s_memrealtime s[84:85]")
    e(f"s_mul_i32 s60, s3, 12288"); e(f"s_add_u32 s60, s60, {DUMP}"); e("v_add_u32 v8, s60, v3")
    e("s_waitcnt lgkmcnt(0)")
    e("s_nop 4")
    for part in range(2):
        for sb in range(4):
            o = 16 + (part*4+sb)*4
            for db in range(2):
                a = acc[sb][part*2+db]
                e(f"v_cvt_pk_bf16_f32 v{o+db*2}, v{a}, v{a+1}"); e(f"v_cvt_pk_bf16_f32 v{o+db*2+1}, v{a+2}, v{a+3}")
            e(f"ds_write_b128 v8, v[{o}:{o+3}] offset:{(part*4+sb)*1024}")
    for p in range(2):
        for db in range(2):
            o = 48 + (p*2+db)*4
            for h in range(2):
                a = acc[2*p+h][4+db]
                e(f"v_cvt_pk_bf16_f32 v{o+h*2}, v{a}, v{a+1}"); e(f"v_cvt_pk_bf16_f32 v{o+h*2+1}, v{a+2}, v{a+3}")
            e(f"ds_write_b128 v8, v[{o}:{o+3}] offset:{(8+p*2+db)*1024}")
    e("s_cmp_ge_u32 s56, 28"); e("s_cbranch_scc1 a_red_c")
    acc2 = [[192 + (i*4+j)*4 for j in range(4)] for i in range(4)]
    e("s_mov_b32 s36, 0xffff0000")
    e("s_waitcnt vmcnt(16)" if opts.get("pf", True) else "s_waitcnt vmcnt(0)")
    for j in range(4):
        for hh in range(2):
            src = 152 + j*2 + hh; d0 = acc2[0][j] + hh*2
            e(f"v_lshlrev_b32 v{d0}, 16, v{src}"); e(f"v_and_b32 v{d0+1}, s36, v{src}")
        for i in range(1, 4):
            for q in range(4): e(f"v_mov_b32 v{acc2[i][j]+q}, v{acc2[0][j]+q}")
    e("v_lshrrev_b32 v14, 4, v2"); e("v_lshlrev_b32 v4, 11, v14"); e("v_and_b32 v15, 15, v2"); e("v_lshl_add_u32 v4, v15, 4, v4")
    e("s_lshl_b32 s60, s57, 10"); e("v_add_u32 v4, s60, v4")
    lane_T_read_off(e, 16, 6, 2, 14, 15)
    e("s_lshl_b32 s60, s58, 6"); e("v_xor_b32 v6, s60, v6"); e("v_xor_b32 v7, 32, v6")
    p_off = [(0, kk*8192 + i*256) for kk in range(2) for i in range(4)]
    t_desc = [(j % 2, c2.PB + (j//2)*8192 + kk*4096) for kk in range(2) for j in range(4)]
    order = [(kk*4+i, kk*4+j, i, j) for kk in range(2) for i in range(4) for j in range(4)]
    pbufs = [16 + 4*i for i in range(8)]; tbufs = [48 + 4*j for j in range(8)]
    e("s_waitcnt lgkmcnt(0)")
    if stamps: e("s_memrealtime s[88:89]")
    consumer_loop(k, c2, 32, 16, 8, 8, p_off, t_desc, acc2, pbufs, tbufs, [4], [6, 7],
                  False, order, 36, 37, 38, rpg=1, bar_pos=18, stage_extra=pf2)
    if stamps: e("s_memrealtime s[90:91]")
    e("s_waitcnt lgkmcnt(0)")
    e("v_lshrrev_b32 v8, 5, v2"); e("v_lshlrev_b32 v7, 14, v8"); e("v_and_b32 v8, 31, v2"); e("v_lshl_add_u32 v7, v8, 4, v7")
    e("s_lshl_b32 s14, s55, 18"); e("s_lshl_b32 s15, s58, 16"); e("s_add_u32 s14, s14, s15")
    e("s_lshl_b32 s15, s54, 11"); e("s_add_u32 s14, s14, s15"); e("s_lshl_b32 s15, s57, 10"); e("s_add_u32 s14, s14, s15")
    e(f"s_add_u32 s14, s14, {WS_UT:#x}")
    e(f"s_mov_b32 s42, {f32(GELU_K3)}"); e(f"s_mov_b32 s43, {f32(GELU_K3)}")
    e(f"v_mov_b32 v10, {f32(GELU_K1)}"); e(f"v_mov_b32 v11, {f32(GELU_K1)}")
    for j in range(4):
        e(f"s_add_u32 s15, s14, {((j//2)*8 + (j%2)*2)*16384}")
        t = 16 + (j % 2) * 24; o = t + 16
        gelu_block(e, [acc2[b][j] + q for b in range(4) for q in (0, 2)], t, o)
        e("s_nop 1")
        for pr in range(2):
            e(f"v_permlane16_swap_b32 v{o+4*pr}, v{o+4*pr+2}")
            e(f"v_permlane16_swap_b32 v{o+4*pr+1}, v{o+4*pr+3}")
        for pr in range(2):
            e(f"buffer_store_dwordx4 v[{o+4*pr}:{o+4*pr+3}], v7, s[16:19], s15 offen offset:{2*pr*256}")
    e("a_stamp:")
    if stamps:
        e("s_waitcnt vmcnt(0)")
        e("s_memrealtime s[86:87]"); e("s_waitcnt lgkmcnt(0)")
        for n, sr in enumerate((80, 82, 84, 88, 90, 86)): e(f"v_mov_b32 v{8+n}, s{sr}")
        e("s_lshl_b32 s41, s92, 5"); e(f"s_add_u32 s41, s41, {WS_STAMP:#x}"); e("v_mov_b32 v7, s41")
        e("v_cmp_eq_u32 vcc, 0, v0"); e("s_and_saveexec_b64 s[42:43], vcc"); e(f"s_cbranch_execz a_end")
        e(f"global_store_dwordx4 v7, v[8:11], s[{WS}:{WS+1}]")
        e(f"global_store_dwordx2 v7, v[12:13], s[{WS}:{WS+1}] offset:16")
    e("s_endpgm")
    e("a_red_c:")
    e("s_waitcnt lgkmcnt(0)"); e("s_barrier")
    e("s_and_b32 s59, s92, 7"); e("s_lshl_b32 s59, s59, 2"); e("s_add_u32 s59, s59, s56"); e("s_sub_u32 s59, s59, 28")
    e("s_lshl_b32 s60, s59, 2"); e("s_add_u32 s60, s60, s3"); e("s_lshl_b32 s60, s60, 14")
    e("buffer_load_dword v140, v143, s[24:27], s60 offen"); e("s_add_u32 s60, s60, 8192"); e("buffer_load_dword v140, v143, s[24:27], s60 offen")
    e("s_barrier")
    e("s_barrier")
    if stamps: e("s_memrealtime s[88:89]")
    e("v_mov_b32 v4, 0"); e("v_mov_b32 v5, 1")
    e("buffer_load_dword v6, v4, s[40:43], 0 offen sc1"); e("s_waitcnt vmcnt(0)")
    spin_until(k, 6, 4, 40, "0", 256, 62)
    e("s_lshr_b32 s61, s59, 1"); e("s_lshl_b32 s61, s61, 11"); e(f"s_add_u32 s61, s61, {WS_FLAG1:#x}")
    e("v_and_b32 v7, 3, v2"); e("s_lshl_b32 s60, s3, 2"); e("v_add_u32 v7, s60, v7"); e("v_lshlrev_b32 v7, 7, v7")
    e("s_mov_b32 s63, 0x100000")
    e("a_r_poll:")
    e("buffer_load_dword v6, v7, s[16:19], s61 offen sc1"); e("s_waitcnt vmcnt(0)")
    e("v_cmp_eq_u32 vcc, 0, v6")
    e("s_sub_u32 s63, s63, 1"); e("s_cbranch_scc1 a_r_go")
    e("s_cbranch_vccz a_r_go")
    e(f"s_sleep {opts.get('osleep', 8)}")
    e("s_branch a_r_poll")
    e("a_r_go:")
    if stamps: e("s_memrealtime s[90:91]")
    e("s_lshl_b32 s60, s59, 5"); e("s_lshl_b32 s61, s3, 3"); e("s_add_u32 s60, s60, s61")
    e(f"s_mul_i32 s60, s60, {NQ*1024}"); e(f"s_add_u32 s60, s60, {WS_KVP:#x}")
    nr = 4*NQ
    B0 = 16
    for n in range(6*NQ):
        if n and n % 4 == 0: e("s_add_u32 s60, s60, 4096")
        e(f"buffer_load_dwordx4 v[{B0+4*n}:{B0+3+4*n}], v3, s[16:19], s60 offen offset:{(n%4)*1024} sc1")
    e(f"s_waitcnt vmcnt({3*NQ})")
    for pp in (1, 2):
        for r in range(nr): e(f"v_add_f32 v{B0+r}, v{B0+r}, v{B0+pp*nr+r}")
    for n in range(6*NQ, 8*NQ):
        if n % 4 == 0: e("s_add_u32 s60, s60, 4096")
        d = B0 + nr + 4*(n - 6*NQ)
        e(f"buffer_load_dwordx4 v[{d}:{d+3}], v3, s[16:19], s60 offen offset:{(n%4)*1024} sc1")
    e(f"s_waitcnt vmcnt({2*NQ})")
    for pp in (3, 4, 5):
        for r in range(nr): e(f"v_add_f32 v{B0+r}, v{B0+r}, v{B0+pp*nr+r}")
    e("s_waitcnt vmcnt(0)")
    for pp in (1, 2):
        for r in range(nr): e(f"v_add_f32 v{B0+r}, v{B0+r}, v{B0+pp*nr+r}")
    e(f"s_mul_i32 s60, s3, {NQ*1024}"); e("v_add_u32 v7, s60, v3")
    for qd in range(NQ): e(f"ds_write_b128 v7, v[{B0+4*qd}:{B0+3+4*qd}] offset:{qd*1024}")
    e("s_waitcnt lgkmcnt(0)"); e("s_barrier")
    e("s_cmp_lg_u32 s3, 0"); e("s_cbranch_scc1 a_r_skip")
    for w_ in range(1, 4):
        for qd in range(NQ): e(f"ds_read_b128 v[{B0+w_*nr+4*qd}:{B0+w_*nr+3+4*qd}], v3 offset:{(w_*NQ+qd)*1024}")
    e("s_waitcnt lgkmcnt(0)")
    for pp in (1, 2, 3):
        for r in range(nr): e(f"v_add_f32 v{B0+r}, v{B0+r}, v{B0+pp*nr+r}")
    FQ, KO_, ZO_ = B0, 64, 80
    for sg in range(2):
        for db in range(2):
            d = KO_ + (sg*2+db)*4
            for fb in range(2):
                a = FQ + ((sg*2+fb)*2+db)*4
                e(f"v_cvt_pk_bf16_f32 v{d+2*fb}, v{a}, v{a+1}"); e(f"v_cvt_pk_bf16_f32 v{d+2*fb+1}, v{a+2}, v{a+3}")
    zq = FQ + 32
    for fbk in range(4):
        for r in range(4):
            e(f"v_mov_b32_dpp v{96+fbk*4+r}, v{zq+r} quad_perm:[{fbk},{fbk},{fbk},{fbk}] row_mask:0xf bank_mask:0xf")
    e("v_and_b32 v6, 3, v2"); e("v_mov_b32 v7, 0x3f803f80")
    e("v_cmp_eq_u32 vcc, 1, v6"); e("s_nop 1"); e("v_cndmask_b32 v7, 0, v7, vcc")
    e("v_cmp_eq_u32 vcc, 0, v6")
    for n in range(8): e(f"v_cvt_pk_bf16_f32 v{ZO_+n}, v{96+2*n}, v{97+2*n}")
    for n in range(8): e(f"v_cndmask_b32 v{ZO_+n}, v7, v{ZO_+n}, vcc")
    e(f"s_mul_i32 s60, s59, 6144"); e(f"s_add_u32 s60, s60, {WS_KVF:#x}"); e("s_add_u32 s61, s60, 4096")
    for n in range(6):
        e(f"buffer_store_dwordx4 v[{KO_+4*n}:{KO_+3+4*n}], v3, s[16:19], s{60 + n//4} offen offset:{(n%4)*1024} sc1")
    e("s_lshl_b32 s61, s59, 7"); e(f"s_add_u32 s61, s61, {WS_FLAG2:#x}")
    e("s_waitcnt vmcnt(0)")
    e("s_mov_b64 exec, 1"); e("buffer_store_dword v5, v4, s[16:19], s61 offen sc1"); e("s_mov_b64 exec, -1")
    e("a_r_skip:")
    e("s_barrier"); e("s_barrier")
    e("s_branch a_stamp")
    e("a_end:")
    return k

if __name__ == "__main__":
    out = sys.argv[1]
    opts = eval("dict(" + (sys.argv[2] if len(sys.argv) > 2 else "") + ")")
    write_file(out, [gen_a(opts), gen_b(opts)])
```

```python
import sys
from asmlib import *

WS_XT = 0x0000000
WS_HT = 0x0400000
WS_UT = 0x0800000
WS_OT = 0x1000000
WS_G = 0x1400000
WS_FLAG = 0x1480000
WS_KVP = 0x1500000
WS_PART = 0x2000000
WS_STAMP = 0x8000000

S_, D_, F_ = 2048, 1024, 3584
ALIGN = [3]
LOG2E = 1.4426950408889634

import struct
def f32(x):
    return "0x%08x" % struct.unpack("<I", struct.pack("<f", x))[0]

def dpp_reduce_sum(e, v):
    for sh in (1, 2, 4, 8):
        e(f"s_nop 1")
        e(f"v_add_f32_dpp v{v}, v{v}, v{v} row_shr:{sh} row_mask:0xf bank_mask:0xf bound_ctrl:0")
    e("s_nop 1")
    e(f"v_add_f32_dpp v{v}, v{v}, v{v} row_bcast:15 row_mask:0xa bank_mask:0xf")
    e("s_nop 1")
    e(f"v_add_f32_dpp v{v}, v{v}, v{v} row_bcast:31 row_mask:0xc bank_mask:0xf")

def dpp_reduce_sum_multi(e, vs):
    steps = [f"row_shr:{sh} row_mask:0xf bank_mask:0xf bound_ctrl:0" for sh in (1, 2, 4, 8)]
    steps += ["row_bcast:15 row_mask:0xa bank_mask:0xf", "row_bcast:31 row_mask:0xc bank_mask:0xf"]
    for st in steps:
        if len(vs) < 3: e("s_nop 1")
        for v in vs:
            e(f"v_add_f32_dpp v{v}, v{v}, v{v} {st}")

def gen_pre():
    k = Kern("pre_kernel", 256, 256, 8*2112 + 8*2080, vgpr=96, sgpr=48)
    e = k.e
    HP, XP = 2112, 2080
    XB = 8*HP
    e("s_cmp_ge_u32 s2, 256"); e("s_cbranch_scc1 pre_end")
    e("s_load_dwordx2 s[4:5], s[0:1], 0")
    e("s_load_dwordx2 s[6:7], s[0:1], 72")
    e("s_load_dwordx2 s[8:9], s[0:1], 96")
    e("v_and_b32 v1, 63, v0")
    e("v_lshrrev_b32 v2, 6, v0")
    e("v_lshlrev_b32 v3, 4, v1")
    e("v_lshl_add_u32 v4, v2, 12, v3")
    e("s_lshl_b32 s3, s2, 14")
    e("s_waitcnt lgkmcnt(0)")
    k.srd(12, 4, S_*D_*2)
    k.srd(16, 6, D_*2)
    k.srd(20, 8, 0x1800000)
    e("buffer_load_dwordx4 v[8:11], v4, s[12:15], s3 offen")
    e("buffer_load_dwordx4 v[12:15], v4, s[12:15], s3 offen offset:1024")
    e("buffer_load_dwordx4 v[16:19], v4, s[12:15], s3 offen offset:2048")
    e("buffer_load_dwordx4 v[20:23], v4, s[12:15], s3 offen offset:3072")
    e("buffer_load_dwordx4 v[24:27], v3, s[16:19], 0 offen")
    e("buffer_load_dwordx4 v[28:31], v3, s[16:19], 0 offen offset:1024")
    e("v_mov_b32 v5, 0")
    e(f"s_lshl_b32 s24, s2, 10"); e(f"s_add_u32 s24, s24, {WS_FLAG:#x}")
    e("v_lshlrev_b32 v6, 2, v0")
    e("buffer_store_dword v5, v6, s[20:23], s24 offen")
    e(f"v_mul_u32_u24 v6, {2*HP}, v2"); e("v_add_u32 v6, v6, v3")
    e(f"v_mul_u32_u24 v7, {2*XP}, v2"); e("v_add_u32 v7, v7, v3")
    e(f"v_add_u32 v7, {XB}, v7")
    e("s_mov_b32 s25, 0xffff0000")
    e("s_waitcnt vmcnt(3)")
    e("ds_write_b128 v7, v[8:11]"); e("ds_write_b128 v7, v[12:15] offset:1024")
    e(f"ds_write_b128 v7, v[16:19] offset:{XP}"); e(f"ds_write_b128 v7, v[20:23] offset:{XP+1024}")
    for r in range(2):
        for i in range(8):
            src = 8 + 8*r + i
            e(f"v_lshlrev_b32 v{32+16*r+2*i}, 16, v{src}")
            e(f"v_and_b32 v{33+16*r+2*i}, s25, v{src}")
    e("s_waitcnt vmcnt(1)")
    for i in range(8):
        e(f"v_lshlrev_b32 v{64+2*i}, 16, v{24+i}")
        e(f"v_and_b32 v{65+2*i}, s25, v{24+i}")
    for r in range(2):
        b = 32 + 16*r
        e(f"v_add_f32 v{80+r}, v{b}, v{b+1}")
        e(f"v_mul_f32 v{82+r}, v{b}, v64")
    for i in range(2, 16):
        for r in range(2):
            b = 32 + 16*r
            e(f"v_add_f32 v{80+r}, v{80+r}, v{b+i}")
    for i in range(1, 16):
        for r in range(2):
            b = 32 + 16*r
            e(f"v_fmac_f32 v{82+r}, v{b+i}, v{64+i}")
    dpp_reduce_sum_multi(e, [80, 81, 82, 83])
    e("s_nop 1")
    for i in range(4):
        e(f"v_readlane_b32 s{26+i}, v{80+i}, 63")
    e(f"s_mov_b32 s30, {f32(-1.0/1024)}")
    e("s_nop 1")
    e("v_mov_b32 v84, s26"); e("v_mov_b32 v85, s27")
    e("v_mul_f32 v84, s30, v84"); e("v_mul_f32 v85, s30, v85")
    for i in range(16):
        for r in range(2):
            b = 32 + 16*r
            e(f"v_add_f32 v{b+i}, v{b+i}, v{84+r}")
    for r in range(2):
        b = 32 + 16*r
        e(f"v_mul_f32 v{80+r}, v{b}, v{b}")
    for i in range(1, 16):
        for r in range(2):
            b = 32 + 16*r
            e(f"v_fmac_f32 v{80+r}, v{b+i}, v{b+i}")
    e("v_mov_b32 v86, s28"); e("v_mov_b32 v87, s29")
    e("v_cmp_eq_u32 vcc, 1, v1"); e("s_nop 1"); e("v_cndmask_b32 v86, v86, v87, vcc")
    e(f"v_mul_f32 v86, {f32(-LOG2E)}, v86")
    e("v_exp_f32 v86, v86"); e("s_nop 0"); e("v_add_f32 v86, 1.0, v86"); e("v_rcp_f32 v86, v86")
    dpp_reduce_sum_multi(e, [80, 81])
    e("s_nop 1")
    e("v_readlane_b32 s26, v80, 63"); e("v_readlane_b32 s27, v81, 63")
    e(f"s_mov_b32 s30, {f32(1.0/1024)}")
    e(f"v_mov_b32 v88, {f32(1e-5)}")
    e("v_mov_b32 v84, s26"); e("v_mov_b32 v85, s27")
    e("v_fma_f32 v84, v84, s30, v88"); e("v_fma_f32 v85, v85, s30, v88")
    e("v_rsq_f32 v84, v84"); e("v_rsq_f32 v85, v85")
    e("v_lshl_add_u32 v87, v2, 1, v1"); e("v_lshlrev_b32 v87, 2, v87")
    e(f"s_lshl_b32 s24, s2, 5"); e(f"s_add_u32 s24, s24, {WS_G:#x}")
    e("v_cmp_gt_u32 vcc, 2, v1"); e("s_and_saveexec_b64 s[32:33], vcc")
    e("buffer_store_dword v86, v87, s[20:23], s24 offen")
    e("s_mov_b64 exec, s[32:33]")
    for r in range(2):
        b = 32 + 16*r
        for i in range(16):
            e(f"v_mul_f32 v{b+i}, v{b+i}, v{84+r}")
        for i in range(8):
            e(f"v_cvt_pk_bf16_f32 v{8+8*r+i}, v{b+2*i}, v{b+2*i+1}")
    e("ds_write_b128 v6, v[8:11]"); e("ds_write_b128 v6, v[12:15] offset:1024")
    e(f"ds_write_b128 v6, v[16:19] offset:{HP}"); e(f"ds_write_b128 v6, v[20:23] offset:{HP+1024}")
    e("v_and_b32 v32, 15, v0"); e("v_lshrrev_b32 v33, 2, v32")
    e(f"v_mul_u32_u24 v33, {HP}, v33")
    e("v_and_b32 v34, 3, v0"); e("v_lshlrev_b32 v34, 3, v34")
    e("v_lshrrev_b32 v35, 4, v0"); e("v_lshlrev_b32 v35, 5, v35")
    e("v_add3_u32 v33, v33, v34, v35")
    e("v_lshlrev_b32 v36, 4, v0")
    e(f"s_add_u32 s24, s3, {WS_HT:#x}")
    e("v_and_b32 v37, 7, v0"); e(f"v_mul_u32_u24 v38, {XP}, v37")
    e("v_lshrrev_b32 v39, 3, v0"); e("v_lshl_add_u32 v38, v39, 4, v38"); e(f"v_add_u32 v38, {XB}, v38")
    e("v_lshlrev_b32 v39, 15, v39"); e("v_lshl_add_u32 v39, v37, 4, v39")
    e("s_lshl_b32 s25, s2, 7")
    e("s_waitcnt lgkmcnt(0)"); e("s_barrier")
    for j in range(4):
        e(f"ds_read_b128 v[{64+4*j}:{67+4*j}], v38 offset:{512*j}")
    for j in range(4):
        e(f"ds_read_b64_tr_b16 v[{40+4*j}:{41+4*j}], v33 offset:{512*j}")
        e(f"ds_read_b64_tr_b16 v[{42+4*j}:{43+4*j}], v33 offset:{512*j+4*HP}")
    for j in range(4):
        e(f"s_waitcnt lgkmcnt({11-j})")
        e(f"s_add_u32 s26, s25, {WS_XT + j*32*32768:#x}")
        e(f"buffer_store_dwordx4 v[{64+4*j}:{67+4*j}], v39, s[20:23], s26 offen")
    for j in range(4):
        e(f"s_waitcnt lgkmcnt({6-2*j})")
        e(f"s_add_u32 s26, s24, {j*4096}")
        e(f"buffer_store_dwordx4 v[{40+4*j}:{43+4*j}], v36, s[20:23], s26 offen")
    e("pre_end:")
    return k

class Sched:
    def __init__(self):
        self.items = []
    def read(self, text, dst):
        self.items.append(("rd", text, dst))
    def mfma(self, text, srcs):
        self.items.append(("mf", text, srcs))
    def other(self, text):
        self.items.append(("ot", text, None))
    def drain(self):
        self.items.append(("dr", None, None))
    def render(self, cyclic=True):
        items = self.items
        n = len(items)
        seq = items + items if cyclic else items
        out = []
        issued = 0
        last_write = {}
        done = 0
        for idx, (kind, text, info) in enumerate(seq):
            emit = (idx >= n) if cyclic else True
            if kind == "rd":
                issued += 1; last_write[info] = issued
                if emit: out.append(text)
            elif kind == "mf":
                need = max([last_write.get(t, 0) for t in info] + [0])
                if need > done:
                    cnt = issued - need
                    assert cnt <= 15 or True
                    cnt = min(cnt, 15)
                    done = issued - cnt
                    if emit: out.append(f"s_waitcnt lgkmcnt({cnt})")
                if emit: out.append(text)
            elif kind == "dr":
                if done < issued:
                    done = issued
                    if emit: out.append("s_waitcnt lgkmcnt(0)")
            else:
                if emit: out.append(text)
        return out


class GemmCfg:
    def __init__(self, BM, nseg, NS, BK=32, base=0, prow=False):
        self.BM = BM; self.nseg = nseg; self.NS = NS; self.BK = BK; self.base = base; self.prow = prow
        self.PB = (BK//8)*BM*16
        self.TB = nseg*BK*128
        self.SB = self.PB + self.TB
        self.perP = self.PB // 4096
        self.perT = self.TB // 4096
        self.per = self.perP + self.perT

def producer_issue(e, c, R, flags=("", ""), part="PT", lds_extra=0):
    sL = R["sLds"]; nsl = R.get("nsl", 1); pstep = 4 // nsl if nsl > 1 else 0
    if "P" in part:
        n = 0
        for sl in range(nsl):
            if not c.prow:
                for cg in range(c.BK//32):
                    e(f"s_add_u32 m0, s{sL}, {lds_extra + (cg*4 + sl*pstep)*c.BM*16}")
                    e("s_nop 0")
                    for rb in range(c.BM//64):
                        e(f"buffer_load_dwordx4 v{R['vP'][n]}, s[{R['srdP']}:{R['srdP']+3}], s{R['sP']} offen offset:{rb*1024}{flags[0]} lds")
                    n += 1
            else:
                for rb in range(c.BM//32):
                    e(f"s_add_u32 m0, s{sL}, {lds_extra + sl*pstep*c.BM*32 + rb*1024}")
                    e("s_nop 0")
                    e(f"buffer_load_dwordx4 v{R['vP'][n]}, s[{R['srdP']}:{R['srdP']+3}], s{R['sP']} offen{flags[0]} lds")
                    n += 1
    if "T" in part:
        n = 0
        for sl in range(nsl):
            for sg in range(c.nseg):
                for kg in range(c.BK//32):
                    e(f"s_add_u32 m0, s{sL+1}, {lds_extra + sg*c.BK*128 + kg*4096 + sl*pstep*1024}")
                    e("s_nop 0")
                    e(f"buffer_load_dwordx4 v{R['vT'][n]}, s[{R['srdT']}:{R['srdT']+3}], s{R['sT']} offen{flags[1]} lds")
                    n += 1
    if "rot" in R:
        sk, nst, bP, bT, tmp = R["rot"]
        e(f"s_add_u32 s{sk}, s{sk}, 1"); e(f"s_and_b32 s{sk}, s{sk}, {nst-1}")
        e(f"s_mul_i32 s{tmp}, s{sk}, {R['stepP']}"); e(f"s_add_u32 s{R['sP']}, s{bP}, s{tmp}")
        e(f"s_mul_i32 s{tmp}, s{sk}, {R['stepT']}"); e(f"s_add_u32 s{R['sT']}, s{bT}, s{tmp}")
    else:
        if "P" in part: e(f"s_add_u32 s{R['sP']}, s{R['sP']}, {R['stepP']}")
        if "T" in part: e(f"s_add_u32 s{R['sT']}, s{R['sT']}, {R['stepT']}")

def ring_advance(e, c, R):
    st = R["sStage"]
    e(f"s_add_u32 s{st}, s{st}, {c.SB}")
    e(f"s_cmp_ge_u32 s{st}, {c.SB*c.NS}")
    e(f"s_cselect_b32 s{st}, 0, s{st}")
    e(f"s_add_u32 s{R['sLds']}, s{st}, s{R['sBase']}")
    e(f"s_add_u32 s{R['sLds']+1}, s{st}, s{R['sBase']+1}")

def producer_loop(k, c, nstages, R, noload=False, inject=None, unroll_until=0, after_prologue=(), tail_extra=0, flags=("", "")):
    e = k.e
    NS = c.NS
    inject = inject or {}
    srcs = R if isinstance(R, list) else [(nstages, R)]
    assert sum(n for n, _ in srcs) == nstages and srcs[0][0] >= NS
    R = srcs[0][1]
    per = c.per * R.get("nsl", 1)
    vm = lambda n: min(n, 63)
    e(f"s_mov_b32 s{R['sStage']}, 0")
    e(f"s_mov_b32 s{R['sLds']}, s{R['sBase']}"); e(f"s_mov_b32 s{R['sLds']+1}, s{R['sBase']+1}")
    for t in range(NS):
        producer_issue(e, c, R, R.get("flags", flags))
        ring_advance(e, c, R)
    for l in after_prologue: e(l)
    e(f"s_waitcnt vmcnt({vm((NS-1)*per)})")
    e("s_barrier")
    def it(Rx):
        e(f"s_waitcnt vmcnt({vm((NS-2)*per)})")
        e("s_barrier")
        if not noload:
            producer_issue(e, c, Rx, Rx.get("flags", flags))
            ring_advance(e, c, Rx)
    t = 0
    for si, (n, Rx) in enumerate(srcs):
        if si == 0: n -= NS
        nun = min(max(unroll_until - t, 0), n)
        for _ in range(nun):
            it(Rx)
            for l in inject.get(t, []): e(l)
            t += 1
        if n > nun:
            L = k.lab("ploop")
            e(f"s_mov_b32 s{Rx['sCnt']}, {n - nun}")
            e(f"{L}:")
            it(Rx)
            e(f"s_sub_u32 s{Rx['sCnt']}, s{Rx['sCnt']}, 1"); e(f"s_cmp_lg_u32 s{Rx['sCnt']}, 0"); e(f"s_cbranch_scc1 {L}")
            t += n - nun
    for r in range(NS):
        left = max(NS-2-r, 0)
        e(f"s_waitcnt vmcnt({vm(left*per + tail_extra)})")
        e("s_barrier")
        for l in inject.get(t + r, []): e(l)

def build_consumer(c, shape, nP, nT, p_off, t_desc, acc, pbufs, tbufs, vP, vT, swap, order, bar_pos, rpg, salu, valu, tail, accfmt="v", minU=1, salu_at=None):
    import math
    nPb, nTb = len(pbufs), len(tbufs)
    U = minU
    while (U*nP) % nPb or (U*nT) % nTb: U += minU
    saluf = salu if callable(salu) else (lambda s: salu)
    valuf = valu if callable(valu) else (lambda s: valu)
    M = len(order)
    NSIM = 4*U
    first = {}; last = {}
    for s in range(NSIM + 1):
        for pos, (i, j, _, _) in enumerate(order):
            g = s*M + pos
            for key in (("P", s, i), ("T", s, j)):
                first.setdefault(key, g); last[key] = g
    def buf(key):
        kind, s, idx = key
        return pbufs[(s*nP + idx) % nPb] if kind == "P" else tbufs[(s*nT + idx) % nTb]
    def prev_key(key):
        kind, s, idx = key
        n, nb = (nP, nPb) if kind == "P" else (nT, nTb)
        lin = s*n + idx - nb
        return None if lin < 0 else (kind, lin // n, lin % n)
    earliest = {}
    for key in first:
        kind, s, idx = key
        eg = -1 if s == 0 else (s-1)*M + bar_pos - 1
        if s > 0: eg = (s-1)*M + bar_pos
        pk = prev_key(key)
        if pk is not None: eg = max(eg, last[pk])
        earliest[key] = eg
    instrs = []
    for key in first:
        kind, s, idx = key
        r = buf(key)
        if kind == "P":
            instrs.append((first[key], earliest[key], f"ds_read_b128 v[{r}:{r+3}], v{vP[p_off[idx][0]]} offset:{p_off[idx][1]}", (key, 0), s))
        else:
            sel, off = t_desc[idx]
            for t in range(2):
                instrs.append((first[key], earliest[key], f"ds_read_b64_tr_b16 v[{r+2*t}:{r+2*t+1}], v{vT[sel]} offset:{off + t*512}", (key, t), s))
    instrs.sort(key=lambda x: (x[0], x[3][1]))
    slots = {}
    pending = list(instrs)
    for g in range(-1, NSIM*M):
        cap = 1000 if g == -1 else rpg
        take = []
        for ins in pending:
            if len(take) >= cap: break
            if ins[1] <= g: take.append(ins)
        for ins in take:
            pending.remove(ins)
            assert g < ins[0], ("read not before first use", ins, g)
            assert g < ins[4]*M + bar_pos, ("stage read after its barrier", ins, g)
        slots[g] = take
    extra = {}
    for s in range(NSIM):
        b = s*M + bar_pos
        salu = saluf(s); valu = valuf(s)
        s0 = b + 1 if salu_at is None else s*M + salu_at
        assert s0 - s*M + len(salu) <= (M - 1 - len(tail) if salu_at is None else bar_pos - len(valu))
        for n, u in enumerate(salu): extra.setdefault(s0 + n, []).append(u)
        lr = max([g for g in range(-1, b) if slots.get(g)] + [-1])
        gaps = list(range(max(lr, b - len(valu), 0), b))
        for n, u in enumerate(valu):
            g = gaps[min(max(n - (len(valu) - len(gaps)), 0), len(gaps) - 1)] if gaps else None
            if g is not None: extra.setdefault(g, []).append(u)
        if (s + 1) % U == 0:
            for n, u in enumerate(tail): extra.setdefault((s+1)*M - 1 - len(tail) + n, []).append(u)
    lines = []
    issued = 0; done = 0; lastw = {}
    def rd(s, ins):
        nonlocal issued
        issued += 1; lastw[ins[3]] = issued; lines.append((s, ins[2]))
    pro = [ins[2] for ins in slots[-1]]
    for ins in slots[-1]: issued += 1; lastw[ins[3]] = issued
    done = issued
    mn = "v_mfma_f32_16x16x32_bf16" if shape == 16 else "v_mfma_f32_32x32x16_bf16"
    aw = 4 if shape == 16 else 16
    for s in range(NSIM):
        for pos, (i, j, ai, aj) in enumerate(order):
            g = s*M + pos
            if pos == bar_pos:
                if done < issued:
                    lines.append((s, "s_waitcnt lgkmcnt(0)")); done = issued
                lines.append((s, "s_barrier"))
            need = max(lastw[(("P", s, i), 0)], lastw[(("T", s, j), 0)], lastw[(("T", s, j), 1)])
            if need > done:
                cnt = min(issued - need, 15); done = issued - cnt
                lines.append((s, f"s_waitcnt lgkmcnt({cnt})"))
            a = acc[ai][aj]; p = buf(("P", s, i)); t = buf(("T", s, j))
            sw = swap(ai, aj) if callable(swap) else swap
            A, B = (p, t) if sw else (t, p)
            lines.append((s, f"{mn} {accfmt}[{a}:{a+aw-1}], v[{A}:{A+3}], v[{B}:{B+3}], {accfmt}[{a}:{a+aw-1}]"))
            for ins in slots[g]: rd(s, ins)
            for u in extra.get(g, []): lines.append((s, u))
    per = lambda a: [t for s, t in lines if a*U <= s < (a+1)*U]
    assert per(1) == per(2), "schedule not periodic"
    ahead = [ins[2] for g in range(U*M, 2*U*M) for ins in slots[g] if ins[4] >= 2*U]
    return ahead, per(2), U

def consumer_loop(k, c, segs, shape, nP, nT, p_off, t_desc, acc, pbufs, tbufs, vP, vT, swap, order, sStage, sDelta, sCnt,
                  rpg=2, bar_pos=1, accfmt="v", slot0=None, stage_extra=()):
    e = k.e
    if isinstance(segs, int): segs = [(segs, [])]
    salu = [f"s_add_u32 s{sStage}, s{sStage}, 1",
            f"s_cmp_eq_u32 s{sStage}, {c.NS-1}",
            f"s_cselect_b32 s{sDelta}, s{sDelta+2}, {c.SB}",
            f"s_cselect_b32 s{sStage}, -1, s{sStage}"]
    salu = salu + list(stage_extra)
    valu = [f"v_add_u32 v{v}, s{sDelta}, v{v}" for v in sorted(set(vP)) + sorted(set(vT))]
    tail = [f"s_sub_u32 s{sCnt}, s{sCnt}, 1", f"s_cmp_lg_u32 s{sCnt}, 0"]
    ahead, body, U = build_consumer(c, shape, nP, nT, p_off, t_desc, acc, pbufs, tbufs, vP, vT, swap, order, bar_pos, rpg, salu, valu, tail, accfmt)
    nb = body.index("s_barrier")
    pre_valu = [u for u in valu if u not in body[:nb]]
    e(f"s_mov_b32 s{sDelta+2}, {(-(c.NS-1)*c.SB) & 0xffffffff:#x}")
    if slot0 is None:
        e(f"s_mov_b32 s{sStage}, 0"); e(f"s_mov_b32 s{sDelta}, {c.SB}")
        e("s_barrier")
    elif slot0 < c.NS - 1:
        e(f"s_mov_b32 s{sStage}, {slot0}"); e(f"s_mov_b32 s{sDelta}, {c.SB}")
    else:
        e(f"s_mov_b32 s{sStage}, -1"); e(f"s_mov_b32 s{sDelta}, s{sDelta+2}")
    for txt in ahead: e(txt)
    for u in pre_valu: e(u)
    e("s_waitcnt lgkmcnt(0)")
    for n, post in segs:
        assert n % U == 0, (n, U)
        L = k.lab("cloop")
        e(f"s_mov_b32 s{sCnt}, {n//U}")
        e(f".p2align {ALIGN[0]}")
        e(f"{L}:")
        for l in body: e(l)
        e(f"s_cbranch_scc1 {L}")
        for l in post: e(l)

def lane_T_dma_off(e, shape, vdst, vlane, vtmp, ld, sP):
    e(f"v_lshrrev_b32 v{vtmp}, 3, v{vlane}")
    e(f"s_lshl_b32 s61, s{sP}, 3")
    e(f"v_add_u32 v{vdst}, s61, v{vtmp}")
    e(f"s_mov_b32 s60, {ld}")
    e(f"v_mul_lo_u32 v{vdst}, v{vdst}, s60")
    if shape == 32:
        e(f"v_lshlrev_b32 v{vtmp}, 1, v{vtmp}")
        e(f"v_and_b32 v{vtmp}, 4, v{vtmp}")
    else:
        e(f"v_and_b32 v{vtmp}, 2, v{vtmp}")
        e(f"s_and_b32 s61, s{sP}, 1"); e("s_lshl_b32 s61, s61, 2")
        e(f"v_or_b32 v{vtmp}, s61, v{vtmp}")
    e(f"v_xor_b32 v{vtmp}, v{vtmp}, v{vlane}")
    e(f"v_and_b32 v{vtmp}, 7, v{vtmp}")
    e(f"v_lshl_add_u32 v{vdst}, v{vtmp}, 4, v{vdst}")

def lane_T_read_off(e, shape, vdst, vlane, vt1, vt2):
    if shape == 32:
        e(f"v_lshrrev_b32 v{vdst}, 5, v{vlane}"); e(f"v_lshlrev_b32 v{vdst}, 10, v{vdst}")
        e(f"v_bfe_u32 v{vt1}, v{vlane}, 2, 2")
        e(f"v_lshl_add_u32 v{vdst}, v{vt1}, 7, v{vdst}")
        e(f"v_lshrrev_b32 v{vt1}, 1, v{vt1}"); e(f"v_lshl_add_u32 v{vdst}, v{vt1}, 6, v{vdst}")
        e(f"v_bfe_u32 v{vt2}, v{vlane}, 4, 1"); e(f"v_lshl_add_u32 v{vdst}, v{vt2}, 5, v{vdst}")
        e(f"v_and_b32 v{vt2}, 3, v{vlane}"); e(f"v_lshl_add_u32 v{vdst}, v{vt2}, 3, v{vdst}")
    else:
        e(f"v_lshrrev_b32 v{vdst}, 4, v{vlane}"); e(f"v_lshlrev_b32 v{vdst}, 10, v{vdst}")
        e(f"v_bfe_u32 v{vt1}, v{vlane}, 2, 2")
        e(f"v_lshl_add_u32 v{vdst}, v{vt1}, 7, v{vdst}")
        e(f"v_lshrrev_b32 v{vt1}, 1, v{vt1}"); e(f"v_lshl_add_u32 v{vdst}, v{vt1}, 5, v{vdst}")
        e(f"v_bfe_u32 v{vt2}, v{vlane}, 4, 1"); e(f"v_lshl_add_u32 v{vdst}, v{vt2}, 6, v{vdst}")
        e(f"v_and_b32 v{vt2}, 3, v{vlane}"); e(f"v_lshl_add_u32 v{vdst}, v{vt2}, 3, v{vdst}")

GELU_K1 = -2.0 * 0.7978845608028654 * LOG2E
GELU_K3 = GELU_K1 * 0.044715

def gelu_block(e, srcs, t, o):
    for q, a in enumerate(srcs): e(f"v_pk_mul_f32 v[{t+2*q}:{t+2*q+1}], v[{a}:{a+1}], v[{a}:{a+1}]")
    for q, a in enumerate(srcs): e(f"v_pk_fma_f32 v[{t+2*q}:{t+2*q+1}], v[{t+2*q}:{t+2*q+1}], s[42:43], v[10:11]")
    for q, a in enumerate(srcs): e(f"v_pk_mul_f32 v[{t+2*q}:{t+2*q+1}], v[{t+2*q}:{t+2*q+1}], v[{a}:{a+1}]")
    for q in range(16): e(f"v_exp_f32 v{t+q}, v{t+q}")
    for q, a in enumerate(srcs): e(f"v_pk_add_f32 v[{t+2*q}:{t+2*q+1}], v[{t+2*q}:{t+2*q+1}], 1.0 op_sel_hi:[1,0]")
    for q in range(16): e(f"v_rcp_f32 v{t+q}, v{t+q}")
    for q, a in enumerate(srcs): e(f"v_pk_mul_f32 v[{t+2*q}:{t+2*q+1}], v[{t+2*q}:{t+2*q+1}], v[{a}:{a+1}]")
    for q in range(8): e(f"v_cvt_pk_bf16_f32 v{o+q}, v{t+2*q}, v{t+2*q+1}")

def emit_stamp_store(e, endlab, ws=4):
    e("s_waitcnt vmcnt(0)")
    e("s_memrealtime s[86:87]"); e("s_waitcnt lgkmcnt(0)")
    e("v_mov_b32 v8, s80"); e("v_mov_b32 v9, s82"); e("v_mov_b32 v10, s84"); e("v_mov_b32 v11, s86")
    e("s_sub_u32 s90, s90, s88"); e("v_mov_b32 v12, s90")
    e("s_lshl_b32 s41, s92, 5"); e(f"s_add_u32 s41, s41, {WS_STAMP:#x}"); e("v_mov_b32 v7, s41")
    e("v_cmp_eq_u32 vcc, 0, v0"); e("s_and_saveexec_b64 s[42:43], vcc"); e(f"s_cbranch_execz {endlab}")
    e(f"global_store_dwordx4 v7, v[8:11], s[{ws}:{ws+1}]")
    e(f"global_store_dword v7, v12, s[{ws}:{ws+1}] offset:16")

def gen_g2test(opts):
    BM = opts.get("BM", 128); BKk = opts.get("BK", 64); NS2 = opts.get("NS2", 4)
    c2 = GemmCfg(BM, 2, NS2, BKk)
    lds = NS2 * c2.SB
    ndb = D_ // BM
    nG2 = ndb * 28
    ngrid = 256 if opts.get("dup256") else nG2
    k = Kern("l1_kernel", ngrid, 512, lds, vgpr=256, sgpr=96)
    e = k.e
    stamps = opts.get("stamps", False)
    e(f"s_cmp_ge_u32 s2, {ngrid}"); e("s_cbranch_scc1 l1_end")
    e("s_mov_b32 s92, s2")
    if opts.get("dup256"):
        for _ in range(2):
            e(f"s_cmp_ge_u32 s2, {nG2}"); e(f"s_cselect_b32 s3, {nG2}, 0"); e("s_sub_u32 s2, s2, s3")
    e("s_load_dwordx2 s[4:5], s[0:1], 96")
    e("s_load_dwordx2 s[6:7], s[0:1], 40")
    e("s_load_dwordx2 s[8:9], s[0:1], 48")
    if stamps: e("s_memrealtime s[80:81]")
    e("v_lshrrev_b32 v1, 6, v0"); e("v_and_b32 v2, 63, v0")
    e("s_nop 0"); e("v_readfirstlane_b32 s3, v1")
    h = ndb // 2; lh = h.bit_length() - 1
    e("s_and_b32 s10, s2, 1"); e(f"s_lshl_b32 s10, s10, {lh}"); e(f"s_bfe_u32 s11, s2, {(lh << 16) | 3:#x}"); e("s_add_u32 s10, s10, s11")
    e("s_bfe_u32 s11, s2, 0x20001"); e("s_mul_i32 s11, s11, 7"); e(f"s_lshr_b32 s12, s2, {3+lh}"); e("s_add_u32 s11, s11, s12")
    e("s_waitcnt lgkmcnt(0)")
    k.srd(16, 4, 0x1800000)
    k.srd(20, 6, S_*F_*2)
    k.srd(24, 8, F_*2)
    e("s_cmp_ge_u32 s3, 4"); e("s_cbranch_scc0 l1_g2_cons")
    e("s_sub_u32 s3, s3, 4")
    nkg = BKk // 32
    vPs = [8 + i for i in range(nkg)]; vTs = [12 + i for i in range(2*nkg)]
    e("v_lshlrev_b32 v8, 4, v2")
    for cg in range(1, nkg): e(f"v_add_u32 v{8+cg}, {cg*4*D_*16}, v8")
    e(f"s_lshl_b32 s13, s3, 14")
    e(f"s_mul_i32 s28, s10, {BM*16}"); e("s_add_u32 s28, s28, s13"); e(f"s_add_u32 s28, s28, {WS_HT:#x}")
    lane_T_dma_off(e, 16, 12, 2, 6, F_*2, 3)
    for sg in range(2):
        for kg in range(nkg):
            n = sg*nkg + kg
            if n: e(f"v_add_u32 v{12+n}, {sg*128 + kg*32*F_*2}, v12")
    e("s_lshl_b32 s29, s11, 8")
    e(f"s_mul_i32 s30, s3, {c2.BM*16}")
    e(f"s_lshl_b32 s31, s3, 10"); e(f"s_add_u32 s31, s31, {c2.PB}")
    R = dict(vP=vPs, vT=vTs, sP=28, sT=29, srdP=16, srdT=20, sBase=30, sLds=32, sStage=34, sCnt=35, stepP=(BKk//8)*D_*16, stepT=BKk*F_*2)
    producer_loop(k, c2, S_//BKk, R, noload=opts.get("noload"))
    e("s_endpgm")
    e("l1_g2_cons:")
    e("s_lshr_b32 s12, s3, 1"); e("s_and_b32 s13, s3, 1")
    e("v_lshrrev_b32 v6, 5, v2"); e("v_and_b32 v8, 31, v2")
    e("s_mov_b32 s40, 0xffff0000")
    mt = BM // 32
    acc = [[128 + (i*4+j)*4 for j in range(4)] for i in range(mt)]
    vP = [4]; vT = [5, 3]
    e("v_lshrrev_b32 v9, 4, v2"); e("v_lshlrev_b32 v7, 3, v9")
    e("s_lshl_b32 s14, s11, 8"); e("s_lshl_b32 s15, s13, 6"); e("s_add_u32 s14, s14, s15")
    for j in range(4):
        r = 64 + j*2
        e(f"buffer_load_dwordx2 v[{r}:{r+1}], v7, s[24:27], s14 offen offset:{(j//2)*128 + (j%2)*32}")
    e(f"v_mul_u32_u24 v4, {c2.BM*16}, v9"); e("v_and_b32 v10, 15, v2"); e(f"v_lshl_add_u32 v4, v10, 4, v4")
    e(f"s_mul_i32 s15, s12, {BM*8}"); e(f"v_add_u32 v4, s15, v4")
    lane_T_read_off(e, 16, 5, 2, 9, 10)
    e("s_lshl_b32 s15, s13, 6"); e(f"v_xor_b32 v5, s15, v5"); e("v_xor_b32 v3, 32, v5")
    e("s_waitcnt vmcnt(0)")
    for j in range(4):
        for hh in range(2):
            src = 64 + j*2 + hh
            d0 = acc[0][j] + hh*2
            e(f"v_lshlrev_b32 v{d0}, 16, v{src}")
            e(f"v_and_b32 v{d0+1}, s40, v{src}")
        for i in range(1, mt):
            for q in range(0, 4, 2):
                e(f"v_mov_b64 v[{acc[i][j]+q}:{acc[i][j]+q+1}], v[{acc[0][j]+q}:{acc[0][j]+q+1}]")
    nP, nT = mt*nkg, 4*nkg
    p_off = [(0, kk*4*BM*16 + i*256) for kk in range(nkg) for i in range(mt)]
    t_desc = [(j % 2, c2.PB + (j//2)*BKk*128 + kk*4096) for kk in range(nkg) for j in range(4)]
    order = [(kk*mt+i, kk*4+j, i, j) for kk in range(nkg) for i in range(mt) for j in range(4)]
    npb = opts.get("npb", 2*mt); ntb = opts.get("ntb", 8)
    pbufs = [16 + 4*i for i in range(npb)]; tbufs = [16 + 4*npb + 4*j for j in range(ntb)]
    assert 16 + 4*npb + 4*ntb <= 128
    bar_pos = opts.get("bar_pos", (nkg-1)*mt*4 + 2); rpg = opts.get("rpg", 1)
    if stamps: e("s_memrealtime s[82:83]"); e("s_memtime s[88:89]")
    consumer_loop(k, c2, S_//BKk, 16, nP, nT, p_off, t_desc, acc, pbufs, tbufs, vP, vT, False, order, 36, 37, 38, rpg=rpg, bar_pos=bar_pos)
    if stamps: e("s_memrealtime s[84:85]"); e("s_memtime s[90:91]")
    e("s_waitcnt lgkmcnt(0)")
    e("s_nop 15")
    e("v_lshlrev_b32 v7, 14, v6"); e("v_lshl_add_u32 v7, v8, 4, v7")
    e("s_lshl_b32 s14, s11, 18"); e("s_lshl_b32 s15, s13, 16"); e("s_add_u32 s14, s14, s15")
    e(f"s_mul_i32 s15, s10, {BM*16}"); e("s_add_u32 s14, s14, s15"); e(f"s_mul_i32 s15, s12, {BM*8}"); e("s_add_u32 s14, s14, s15")
    e(f"s_add_u32 s14, s14, {WS_UT:#x}")
    e(f"s_mov_b32 s42, {f32(GELU_K3)}"); e(f"s_mov_b32 s43, {f32(GELU_K3)}")
    e(f"v_mov_b32 v10, {f32(GELU_K1)}"); e(f"v_mov_b32 v11, {f32(GELU_K1)}")
    blk = 0
    for j in range(4):
        e(f"s_add_u32 s15, s14, {((j//2)*8 + (j%2)*2)*16384}")
        for i in range(0, mt, 4):
            t = 16 + (blk % 2) * 24; o = t + 16; blk += 1
            gelu_block(e, [acc[i+b][j] + q for b in range(4) for q in (0, 2)], t, o)
            e("s_nop 1")
            for pr in range(2):
                e(f"v_permlane16_swap_b32 v{o+4*pr}, v{o+4*pr+2}")
                e(f"v_permlane16_swap_b32 v{o+4*pr+1}, v{o+4*pr+3}")
            for pr in range(2):
                e(f"buffer_store_dwordx4 v[{o+4*pr}:{o+4*pr+3}], v7, s[16:19], s15 offen offset:{(i+2*pr)*256}")
    if stamps: emit_stamp_store(e, "l1_end")
    e("l1_end:")
    return k

if __name__ == "__main__":
    out = sys.argv[1]
    opts = eval("dict(" + (sys.argv[2] if len(sys.argv) > 2 else "") + ")")
    write_file(out, [gen_pre(), gen_g2test(opts)])
```

```python
import sys
from gen import *
import gen2
from gen2 import softmax_units, spin_until, DBG, WS, X, WQKV, WPHI, WO, W1, B1, GW, OUT, WS_SIZE, WS_KVP, WS_PART, NQ
from gen3 import Stream, Work, WS_KVF, WS_FLAG2, SCR, DUMP
import gen3

WS_FLAG1 = 0x14C0000
WS_FLAG2 = 0x14D0000
OOB = 0x7fffff00

def cost(l):
    op = l.split()[0]
    if op.startswith(("v_exp", "v_rcp", "v_rsq", "v_log")): return 10
    if op.startswith("v_permlane"): return 8
    if op.startswith("v_mfma"): return 20
    if op.startswith("s_nop"): return 4*(int(l.split()[1]) + 1)
    if op.startswith(("buffer_", "global_")): return 40
    if op.startswith("ds_"): return 8
    if op.startswith("s_waitcnt"): return 60
    return 5
gen3.cost = cost

HP = 2112
HST = ' sc1'
def ln_rows(w, XR, m):
    e = w.e
    XF, GF, A = 144, 104, 120
    for r in range(2):
        for i in range(8):
            e(f"v_lshlrev_b32 v{XF+16*r+2*i}, 16, v{XR+8*r+i}"); e(f"v_and_b32 v{XF+1+16*r+2*i}, s36, v{XR+8*r+i}")
    for r in range(2):
        b = XF + 16*r
        e(f"v_pk_add_f32 v[{A+2*r}:{A+1+2*r}], v[{b}:{b+1}], v[{b+2}:{b+3}]")
        e(f"v_pk_mul_f32 v[{A+4+2*r}:{A+5+2*r}], v[{b}:{b+1}], v[{GF}:{GF+1}]")
    for i in range(4, 16, 2):
        for r in range(2):
            b = XF + 16*r
            e(f"v_pk_add_f32 v[{A+2*r}:{A+1+2*r}], v[{A+2*r}:{A+1+2*r}], v[{b+i}:{b+i+1}]")
    for i in range(2, 16, 2):
        for r in range(2):
            b = XF + 16*r
            e(f"v_pk_fma_f32 v[{A+4+2*r}:{A+5+2*r}], v[{b+i}:{b+i+1}], v[{GF+i}:{GF+i+1}], v[{A+4+2*r}:{A+5+2*r}]")
    for n in range(4): e(f"v_add_f32 v{A+2*n}, v{A+2*n}, v{A+1+2*n}")
    dpp_reduce_sum_multi(e, [A, A+2, A+4, A+6])
    e("s_nop 1\n" + "\n".join(f"v_readlane_b32 s{12+n}, v{A+2*n}, 63" for n in range(4)) + f"\ns_mov_b32 s37, {f32(-1.0/1024)}\ns_nop 0")
    e(f"v_mov_b32 v{A+8}, s12"); e(f"v_mov_b32 v{A+10}, s13")
    e(f"v_mul_f32 v{A+8}, s37, v{A+8}"); e(f"v_mul_f32 v{A+10}, s37, v{A+10}")
    for i in range(0, 16, 2):
        for r in range(2):
            b = XF + 16*r
            e(f"v_pk_add_f32 v[{b+i}:{b+i+1}], v[{b+i}:{b+i+1}], v[{A+8+2*r}:{A+9+2*r}] op_sel_hi:[1,0]")
    for r in range(2):
        b = XF + 16*r
        e(f"v_pk_mul_f32 v[{A+2*r}:{A+1+2*r}], v[{b}:{b+1}], v[{b}:{b+1}]")
    for i in range(2, 16, 2):
        for r in range(2):
            b = XF + 16*r
            e(f"v_pk_fma_f32 v[{A+2*r}:{A+1+2*r}], v[{b+i}:{b+i+1}], v[{b+i}:{b+i+1}], v[{A+2*r}:{A+1+2*r}]")
    e(f"v_add_f32 v{A}, v{A}, v{A+1}"); e(f"v_add_f32 v{A+2}, v{A+2}, v{A+3}")
    e(f"v_mov_b32 v{A+6}, s14"); e(f"v_mov_b32 v{A+7}, s15")
    e(f"v_cmp_eq_u32 vcc, 1, v2\ns_nop 1\nv_cndmask_b32 v{A+6}, v{A+6}, v{A+7}, vcc")
    e(f"v_mul_f32 v{A+6}, {f32(-LOG2E)}, v{A+6}")
    e(f"v_exp_f32 v{A+6}, v{A+6}\ns_nop 0\nv_add_f32 v{A+6}, 1.0, v{A+6}\nv_rcp_f32 v{A+6}, v{A+6}")
    dpp_reduce_sum_multi(e, [A, A+2])
    e(f"s_nop 1\nv_readlane_b32 s12, v{A}, 63\nv_readlane_b32 s13, v{A+2}, 63\ns_mov_b32 s37, {f32(1.0/1024)}\nv_mov_b32 v{A+7}, {f32(1e-5)}")
    e(f"v_mov_b32 v{A+8}, s12"); e(f"v_mov_b32 v{A+10}, s13")
    e(f"v_fma_f32 v{A+8}, v{A+8}, s37, v{A+7}"); e(f"v_fma_f32 v{A+10}, v{A+10}, s37, v{A+7}")
    e(f"v_rsq_f32 v{A+8}, v{A+8}\nv_rsq_f32 v{A+10}, v{A+10}\ns_nop 0")
    for r in range(2):
        b = XF + 16*r
        for i in range(0, 16, 2): e(f"v_pk_mul_f32 v[{b+i}:{b+i+1}], v[{b+i}:{b+i+1}], v[{A+8+2*r}:{A+9+2*r}] op_sel_hi:[1,0]")
        for i in range(8): e(f"v_cvt_pk_bf16_f32 v{XR+8*r+i}, v{b+2*i}, v{b+2*i+1}")
    for r in range(2):
        for hh in range(2):
            e(f"ds_write_b128 v22, v[{XR+8*r+4*hh}:{XR+8*r+4*hh+3}] offset:{(2*m+r)*HP + hh*1024}")
    e(f"v_lshlrev_b32 v{A+7}, 2, v2\ns_lshl_b32 s37, s2, 5\ns_lshl_b32 s38, s3, 4\ns_add_u32 s37, s37, s38\ns_add_u32 s37, s37, {WS_G + 8*m:#x}\n"
      f"s_mov_b64 exec, 3\nbuffer_store_dword v{A+6}, v{A+7}, s[16:19], s37 offen sc1\ns_mov_b64 exec, -1")

def ln_work(w):
    e = w.e
    e(f"s_mul_i32 s37, s3, {4*HP}\ns_add_u32 s37, s37, {SCR}\nv_add_u32 v22, s37, v3")
    e(f"v_bfe_u32 v23, v2, 2, 2\nv_mul_u32_u24 v23, {HP}, v23\nv_and_b32 v120, 3, v2\nv_lshl_add_u32 v23, v120, 3, v23")
    e(f"v_lshrrev_b32 v120, 4, v2\nv_lshl_add_u32 v23, v120, 5, v23\ns_lshl_b32 s37, s3, 10\ns_add_u32 s37, s37, {SCR}\nv_add_u32 v23, s37, v23")
    e("@wait lng")
    for i in range(8):
        e(f"v_lshlrev_b32 v{104+2*i}, 16, v{80+i}"); e(f"v_and_b32 v{105+2*i}, s36, v{80+i}")
    ln_rows(w, 48, 0)
    ln_rows(w, 64, 1)
    e("s_waitcnt lgkmcnt(0)")
    w.bar()
    for j in range(8):
        e(f"ds_read_b64_tr_b16 v[{144+4*j}:{145+4*j}], v23 offset:{128*j}")
        e(f"ds_read_b64_tr_b16 v[{146+4*j}:{147+4*j}], v23 offset:{128*j+4*HP}")
    e(f"s_lshl_b32 s37, s2, 14\ns_lshl_b32 s38, s3, 13\ns_add_u32 s37, s37, s38\ns_add_u32 s37, s37, {WS_HT:#x}\ns_add_u32 s38, s37, 4096")
    for j in range(8):
        e(f"s_waitcnt lgkmcnt({14-2*j})\n@vm lnst buffer_store_dwordx4 v[{144+4*j}:{147+4*j}], v3, s[16:19], s{37+j//4} offen offset:{(j%4)*1024}{HST}")

WP, ZB, Q, K, V, PK, EP, ST, EF, KV = 24, 32, 48, 80, 112, 144, 160, 192, 200, 216
EO = 80
KO, ZO, GG = 48, 64, 72

def read_dump(e):
    e(f"s_mul_i32 s60, s3, 12288"); e(f"s_add_u32 s60, s60, {DUMP}"); e("v_add_u32 v22, s60, v3")
    for wm in range(2):
        for part, base in enumerate((Q, K, V)):
            for n in range(4):
                d = base + wm*16 + n*4
                e(f"ds_read_b128 v[{d}:{d+3}], v22 offset:{wm*24576 + (part*4+n)*1024}")
    e("s_waitcnt lgkmcnt(0)")

def kq_work(w):
    e = w.e
    e(f"s_mov_b32 s62, {f32(LOG2E)}\ns_mov_b32 s63, {f32(LOG2E)}")
    e(f"v_and_b32 v{EF}, 15, v2\nv_lshrrev_b32 v{EF+1}, 4, v2\ns_lshl_b32 s37, s3, 13\ns_add_u32 s37, s37, {SCR}")
    e(f"v_mul_u32_u24 v22, 160, v{EF}\nv_lshl_add_u32 v22, v{EF+1}, 3, v22\nv_add_u32 v22, s37, v22")
    e(f"v_lshrrev_b32 v{EF}, 2, v{EF}\nv_lshl_add_u32 v{EF}, v{EF+1}, 2, v{EF}\nv_mul_u32_u24 v23, 160, v{EF}")
    e(f"v_and_b32 v{EF}, 3, v2\nv_lshl_add_u32 v23, v{EF}, 3, v23\nv_add_u32 v23, s37, v23\nv_mov_b32 v{EF+1}, 0x3f803f80")
    for fbk in range(4):
        e(f"v_cmp_eq_u32 vcc, {fbk}, v{EF}\ns_nop 1\nv_cndmask_b32 v{ZB+4*fbk}, 0, v{EF+1}, vcc")
        for r in range(1, 4): e(f"v_mov_b32 v{ZB+4*fbk+r}, v{ZB+4*fbk}")
    def pmfma(src, p):
        for h in range(2):
            for fb in range(2):
                d = PK + (h*2+fb)*4; s = src + (2*p+h)*4
                e(f"v_mfma_f32_16x16x32_bf16 v[{d}:{d+3}], v[{WP+fb*4}:{WP+3+fb*4}], v[{s}:{s+3}], 0")
    pmfma(K, 0)
    e("s_nop 7")
    for p in range(4):
        units = [dict(x=[PK+h*8, PK+h*8+4], ep=EP+h*16, em=EP+8+h*16, st=ST+h*4, out=EP+h*16) for h in range(2)]
        softmax_units(e, units, 62, True)
        for h in range(2):
            o = units[h]["out"]
            for fbk in range(4): e(f"ds_write_b64 v22, v[{o+2*fbk}:{o+2*fbk+1}] offset:{h*16*160 + fbk*32}")
        pmfma(K if p < 3 else Q, p + 1 if p < 3 else 0)
        e("s_waitcnt lgkmcnt(0)")
        for fbk in range(4):
            for t in range(2): e(f"ds_read_b64_tr_b16 v[{EF+fbk*4+2*t}:{EF+fbk*4+2*t+1}], v23 offset:{t*16*160 + fbk*32}")
        for fbk in range(4):
            e(f"s_waitcnt lgkmcnt({6-2*fbk})")
            for db in range(3):
                d = KV + (fbk*2+db)*4 if db < 2 else KV + 32
                b = V + (p*2+db)*4 if db < 2 else ZB + 4*fbk
                cc = "0" if (p == 0 and (db < 2 or fbk == 0)) else f"v[{d}:{d+3}]"
                e(f"v_mfma_f32_16x16x32_bf16 v[{d}:{d+3}], v[{EF+fbk*4}:{EF+fbk*4+3}], v[{b}:{b+3}], {cc}")
    e(f"s_lshl_b32 s37, s59, 4\ns_add_u32 s37, s37, s52\ns_mul_i32 s37, s37, {NQ*1024}\ns_add_u32 s37, s37, {WS_KVP:#x}\ns_nop 4")
    for qd in range(NQ):
        pre = "s_add_u32 s37, s37, 4096\n" if qd and qd % 4 == 0 else ""
        e(pre + f"@vm kvst buffer_store_dwordx4 v[{KV+qd*4}:{KV+qd*4+3}], v3, s[16:19], s37 offen offset:{(qd%4)*1024} sc1")
    e("#kvdone")
    for p in range(4):
        units = [dict(x=[PK+h*8, PK+h*8+4], ep=EP+h*16, em=EP+8+h*16, st=ST+h*4, out=EO+(2*p+h)*8) for h in range(2)]
        softmax_units(e, units, 62, False)
        if p < 3:
            pmfma(Q, p + 1); e("s_nop 7")

def o_loads(e):
    e(f"s_mul_i32 s37, s59, 6144"); e(f"s_add_u32 s37, s37, {WS_KVF:#x}"); e("s_add_u32 s38, s37, 4096")
    for n in range(6):
        e(f"buffer_load_dwordx4 v[{KO+4*n}:{KO+4*n+3}], v3, s[16:19], s{37 + n//4} offen offset:{(n%4)*1024} sc1")
    e("v_and_b32 v22, 15, v2"); e("v_lshlrev_b32 v22, 2, v22")
    e("s_lshl_b32 s37, s52, 9"); e(f"s_add_u32 s37, s37, {WS_G:#x}")
    for u in range(8): e(f"buffer_load_dword v{GG+u}, v22, s[16:19], s37 offen offset:{u*64} sc1")

def o_final(e):
    nq = [144+4*n for n in range(24)]
    e("v_lshrrev_b32 v22, 5, v2"); e("v_lshlrev_b32 v23, 15, v22"); e("v_and_b32 v22, 31, v2"); e("v_lshl_add_u32 v23, v22, 4, v23")
    e("s_lshl_b32 s37, s59, 17"); e("s_lshl_b32 s38, s52, 11"); e("s_add_u32 s37, s37, s38")
    e(f"s_add_u32 s37, s37, {WS_OT:#x}"); e("s_add_u32 s38, s37, 0x10000")
    e(f"v_mov_b32 v22, {f32(1e-6)}")
    e("s_waitcnt vmcnt(0)")
    for rd in range(2):
        for u in range(4):
            for sg in range(2):
                b = EO + (rd*4+u)*8 + sg*4
                for db in (2, 0, 1):
                    d = nq[u*6 + sg*3 + db]
                    a = KO + (sg*2+db)*4 if db < 2 else ZO + sg*4
                    e(f"v_mfma_f32_16x16x32_bf16 v[{d}:{d+3}], v[{a}:{a+3}], v[{b}:{b+3}], 0")
        e("s_nop 1")
        for u in range(4):
            xp, xm = nq[u*6+2], nq[u*6+5]
            e(f"v_rcp_f32 v{xp+2}, v{xp+1}"); e(f"v_rcp_f32 v{xp+3}, v{xm+1}")
        for u in range(4):
            xp, xm = nq[u*6+2], nq[u*6+5]
            e(f"v_fma_f32 v{xp}, v{xp}, v{xp+2}, v22"); e(f"v_fma_f32 v{xp}, v{xm}, v{xp+3}, v{xp}")
        for u in range(4): xp = nq[u*6+2]; e(f"v_rcp_f32 v{xp}, v{xp}")
        for u in range(4): xp = nq[u*6+2]; e(f"v_mul_f32 v{xp}, v{xp}, v{GG+rd*4+u}")
        for u in range(4):
            xp = nq[u*6+2]; e(f"v_pk_mul_f32 v[{xp+2}:{xp+3}], v[{xp+2}:{xp+3}], v[{xp}:{xp+1}] op_sel_hi:[1,0]")
        for u in range(4):
            xp = nq[u*6+2]
            for db in range(2):
                np_, nm = nq[u*6+db], nq[u*6+3+db]
                for q in (0, 2):
                    e(f"v_pk_mul_f32 v[{np_+q}:{np_+q+1}], v[{np_+q}:{np_+q+1}], v[{xp+2}:{xp+3}] op_sel:[0,0] op_sel_hi:[1,0]")
                    e(f"v_pk_fma_f32 v[{np_+q}:{np_+q+1}], v[{nm+q}:{nm+q+1}], v[{xp+2}:{xp+3}], v[{np_+q}:{np_+q+1}] op_sel:[0,1,0] op_sel_hi:[1,1,1]")
        for u in range(4):
            for db in range(2):
                np_ = nq[u*6+db]; o = 240 + ((u//2)*2+db)*4 + (u % 2)*2
                e(f"v_cvt_pk_bf16_f32 v{o}, v{np_}, v{np_+1}"); e(f"v_cvt_pk_bf16_f32 v{o+1}, v{np_+2}, v{np_+3}")
        e("s_nop 1")
        for n in range(4):
            o = 240 + n*4
            e(f"v_permlane16_swap_b32 v{o}, v{o+2}"); e(f"v_permlane16_swap_b32 v{o+1}, v{o+3}")
        for n in range(4):
            o = 240 + n*4; pr, db = divmod(n, 2)
            e(f"buffer_store_dwordx4 v[{o}:{o+3}], v23, s[16:19], s{37+db} offen offset:{rd*1024 + pr*512}")

def lane0(body):
    return f"s_mov_b64 exec, 1\n{body}\ns_mov_b64 exec, -1"

def gen_a(opts):
    global HST
    HST = opts.get("hst", " sc1")
    c1 = GemmCfg(128, 3, 3, 64, prow=True)
    c2 = GemmCfg(128, 2, 4, 64)
    k = Kern("a_kernel", 256, 512, 160*1024, vgpr=256, sgpr=100)
    e = k.e
    stamps = opts.get("stamps", False)
    bud1 = opts.get("bud1", 560); bud2 = opts.get("bud2", 380)
    NT = " nt" if opts.get("nt", False) else ""
    NTT = " nt" if opts.get("ntt", False) else ""
    pf = opts.get("pf", True)
    e("s_cmp_ge_u32 s2, 256"); e("s_cbranch_scc1 a_end")
    e("s_load_dwordx8 s[64:71], s[0:1], 0")
    e("s_load_dwordx4 s[72:75], s[0:1], 40")
    e("s_load_dwordx4 s[76:79], s[0:1], 72")
    e("s_load_dwordx4 s[4:7], s[0:1], 88")
    e("s_load_dwordx2 s[12:13], s[0:1], 56")
    if stamps: e("s_memrealtime s[80:81]")
    e("s_mov_b32 s92, s2")
    e("v_lshrrev_b32 v1, 6, v0"); e("v_and_b32 v2, 63, v0"); e("v_lshlrev_b32 v3, 4, v2")
    e("s_lshr_b32 s56, s2, 3"); e("s_and_b32 s57, s2, 7")
    e("v_readfirstlane_b32 s3, v1")
    e("s_and_b32 s52, s56, 15")
    e("s_lshl_b32 s53, s57, 1"); e("s_lshr_b32 s60, s56, 4"); e("s_add_u32 s53, s53, s60")
    e("s_mul_i32 s60, s57, 28"); e("s_add_u32 s60, s60, s56")
    e("s_and_b32 s54, s60, 7"); e("s_lshr_b32 s55, s60, 3")
    e("s_waitcnt lgkmcnt(0)")
    k.srd(16, WS, WS_SIZE)
    k.srd(40, DBG, 256)
    e("s_cmp_lt_u32 s3, 4"); e("s_cbranch_scc1 a_cons")
    k.srd(20, X, S_*D_*2)
    k.srd(24, WQKV, D_*3*D_*2)
    e("v_mov_b32 v20, 0"); e("v_mov_b32 v21, 1")
    e("s_cmp_ge_u32 s3, 6"); e("s_cbranch_scc1 a_work")
    e("s_sub_u32 s3, s3, 4")
    e("v_lshrrev_b32 v7, 3, v2")
    e("s_lshl_b32 s60, s3, 5"); e("v_add_u32 v4, s60, v7"); e("v_lshlrev_b32 v4, 11, v4")
    e("v_lshrrev_b32 v5, 1, v7"); e("v_xor_b32 v5, v5, v2"); e("v_and_b32 v5, 7, v5")
    e("v_lshl_add_u32 v8, v5, 4, v4")
    e("v_xor_b32 v9, 64, v8"); e(f"v_add_u32 v9, {8*2048}, v9")
    e(f"v_add_u32 v10, {16*2048}, v8"); e(f"v_add_u32 v11, {16*2048}, v9")
    for n in range(4): e(f"v_add_u32 v{12+n}, {64*2048}, v{8+n}")
    lane_T_dma_off(e, 16, 24, 2, 6, 6144, 3)
    for n in range(1, 12):
        sl, r = divmod(n, 6); sg, kg = divmod(r, 2)
        e(f"v_add_u32 v{24+n}, {sg*2048 + kg*32*6144 + sl*16*6144}, v24")
    e("s_lshl_b32 s9, s52, 18"); e("s_lshl_b32 s10, s53, 7")
    e("s_and_b32 s8, s52, 7")
    e("s_lshl_b32 s11, s8, 7"); e("s_add_u32 s28, s9, s11"); e(f"s_mul_i32 s11, s8, {64*6144}"); e("s_add_u32 s29, s10, s11")
    e("s_lshl_b32 s30, s3, 12")
    e("s_lshl_b32 s31, s3, 10"); e(f"s_add_u32 s31, s31, {c1.PB}")
    R1 = dict(nsl=2, vP=list(range(8, 16)), vT=list(range(24, 36)), sP=28, sT=29, srdP=20, srdT=24, sBase=30, sLds=32, sStage=34, sCnt=35,
              stepP=128, stepT=64*6144, rot=(8, 16, 9, 10, 11), flags=("", NT))
    producer_loop(k, c1, 16, R1)
    e("s_cmp_ge_u32 s56, 28"); e("s_cbranch_scc1 a_end")
    st = Stream(k)
    st.e("@vm lnpoll buffer_load_dword v22, v20, s[40:43], 0 offen sc1")
    k.srd(24, W1, S_*F_*2)
    for n in range(1, 4):
        sl, cg = divmod(n, 2); e(f"v_add_u32 v{8+n}, {(cg*4+sl*2)*D_*16}, v3")
    e("s_lshl_b32 s60, s3, 14")
    e(f"s_lshl_b32 s28, s54, 11"); e("s_add_u32 s28, s28, s60"); e(f"s_add_u32 s28, s28, {WS_HT if not opts.get('px') else 0:#x}")
    lane_T_dma_off(e, 16, 24, 2, 6, F_*2, 3)
    for n in range(1, 8):
        sl, r = divmod(n, 4); sg, kg = divmod(r, 2)
        e(f"v_add_u32 v{24+n}, {sg*128 + kg*32*F_*2 + sl*16*F_*2}, v24")
    e("s_lshl_b32 s29, s55, 8")
    e("s_lshl_b32 s30, s3, 11")
    e("s_lshl_b32 s31, s3, 10"); e(f"s_add_u32 s31, s31, {c2.PB}")
    fl = (" sc1" if opts.get("hsc1", True) else "", NT)
    R2 = dict(nsl=2, vP=[3, 9, 10, 11], vT=list(range(24, 32)), sP=28, sT=29, srdP=16 if not opts.get('px') else 20, srdT=24, sBase=30, sLds=32, sStage=34, sCnt=35, stepP=8*D_*16, stepT=64*F_*2 if not opts.get('tfix') else 0)
    e("s_mov_b32 s32, s30"); e("s_mov_b32 s33, s31")
    for t in range(3): producer_issue(st.e, c2, R2, fl, "T", t*c2.SB)
    st.e("@wait lnpoll")
    spin_until(k, 22, 20, 40, "0", 256, 60)
    for t in range(3):
        producer_issue(st.e, c2, R2, fl, "P", t*c2.SB); st.mark(f"b{t}")
    e(f"s_mov_b32 s34, {3*c2.SB}"); e("s_add_u32 s32, s34, s30"); e("s_add_u32 s33, s34, s31")
    st.e("@wait b0"); e("s_barrier")
    st.e("@wait b1"); e("s_barrier")
    for t in (3, 4):
        producer_issue(e, c2, R2, fl); ring_advance(e, c2, R2)
    e("s_mov_b32 s35, 27")
    e("a_l2:")
    e("s_waitcnt vmcnt(32)"); e("s_barrier")
    producer_issue(e, c2, R2, fl); ring_advance(e, c2, R2)
    e("s_sub_u32 s35, s35, 1"); e("s_cmp_lg_u32 s35, 0"); e("s_cbranch_scc1 a_l2")
    e("s_waitcnt vmcnt(32)"); e("s_barrier")
    e("s_waitcnt vmcnt(16)"); e("s_barrier")
    e("s_waitcnt vmcnt(0)"); e("s_barrier")
    e("s_barrier")
    e("s_endpgm")
    e("a_work:")
    st = Stream(k)
    e("s_sub_u32 s3, s3, 6")
    e("s_lshl_b32 s37, s2, 14"); e("s_lshl_b32 s38, s3, 13"); e("s_add_u32 s37, s37, s38"); e("s_add_u32 s38, s37, 4096")
    for n in range(8): st.e(f"buffer_load_dwordx4 v[{48+4*n}:{51+4*n}], v3, s[20:23], s{37+n//4} offen offset:{(n%4)*1024}")
    k.srd(44, GW, D_*2)
    st.e("buffer_load_dwordx4 v[80:83], v3, s[44:47], 0 offen"); st.e("@vm lng buffer_load_dwordx4 v[84:87], v3, s[44:47], 0 offen offset:1024")
    if pf:
        e("s_lshl_b32 s60, s56, 1"); e("s_add_u32 s60, s60, s3"); e("s_lshl_b32 s60, s60, 4")
        e("v_and_b32 v4, 15, v2"); e("v_add_u32 v4, s60, v4"); e("v_mul_u32_u24 v4, 6144, v4")
        e("v_lshrrev_b32 v5, 4, v2"); e("v_lshl_add_u32 v4, v5, 11, v4")
        e("s_lshl_b32 s60, s57, 8"); e("s_mov_b32 exec_hi, 0xffff")
        st.e(f"buffer_load_dword v19, v4, s[24:27], s60 offen{NTT}"); st.e(f"buffer_load_dword v19, v4, s[24:27], s60 offen offset:128{NTT}")
        e("s_mov_b32 exec_hi, -1")
    k.srd(48, WPHI, 32*2048)
    e("s_lshl_b32 s59, s53, 1"); e("s_add_u32 s59, s59, s3")
    e("s_lshl_b32 s60, s59, 11")
    gen2.load_wphi(st.e, 32, 48, 60, 5); st.mark("wphi")
    e(f"s_lshl_b32 s60, s2, 10"); e(f"s_add_u32 s60, s60, {WS_FLAG:#x}")
    e("s_lshl_b32 s58, s59, 4"); e("s_add_u32 s58, s58, s52"); e("s_lshl_b32 s58, s58, 7"); e(f"s_add_u32 s58, s58, {WS_FLAG1:#x}")
    e("s_lshl_b32 s61, s59, 7"); e(f"s_add_u32 s61, s61, {WS_FLAG2:#x}")
    e("v_lshlrev_b32 v6, 7, v2"); e("v_add_u32 v6, s60, v6"); e("v_writelane_b32 v6, s58, 4"); e("v_writelane_b32 v6, s61, 5")
    st.e("s_mov_b64 exec, 63\nbuffer_store_dword v20, v6, s[16:19], 0 offen sc1\ns_mov_b64 exec, -1")
    k.srd(44, W1, S_*F_*2)
    k.srd(48, 12, S_*F_*2)
    e("v_and_b32 v4, 7, v2"); e("s_lshl_b32 s60, s54, 3"); e("v_add_u32 v4, s60, v4")
    e("v_and_b32 v5, 8, v2"); e("v_lshlrev_b32 v5, 2, v5"); e("v_xor_b32 v4, v4, v5")
    e("v_mul_u32_u24 v17, 7168, v4")
    e("s_mul_i32 s60, s55, 37"); e("s_lshr_b32 s60, s60, 8"); e("s_mul_i32 s60, s60, 7"); e("s_sub_u32 s60, s55, s60")
    e("s_cmp_eq_u32 s60, 3"); e("s_cselect_b32 s60, 16, 8")
    e("s_cmp_ge_u32 s56, 28"); e("s_cselect_b32 s60, 0, s60")
    e(f"v_mov_b32 v5, {OOB:#x}")
    e("v_cmp_gt_u32 vcc, s60, v2"); e("s_nop 1"); e("v_cndmask_b32 v17, v5, v17, vcc")
    e("s_lshl_b32 s39, s55, 8"); e("s_lshl_b32 s60, s3, 7"); e("s_add_u32 s39, s39, s60")
    e("v_lshlrev_b32 v18, 7, v2"); e("v_cmp_gt_u32 vcc, 8, v2"); e("s_nop 1"); e("v_cndmask_b32 v18, v5, v18, vcc")
    e("s_and_b32 s35, s57, 1"); e("s_mul_i32 s35, s35, 2304"); e("s_lshl_b32 s60, s56, 1"); e("s_add_u32 s35, s35, s60"); e("s_add_u32 s35, s35, s3")
    e("s_lshl_b32 s35, s35, 12"); e("s_lshr_b32 s60, s57, 1"); e("s_lshl_b32 s60, s60, 10"); e("s_add_u32 s35, s35, s60")
    t1 = f"buffer_load_dword v19, v17, s[44:47], s39 offen{NTT}\ns_add_u32 s39, s39, {64*7168}"
    t2 = f"buffer_load_dword v19, v18, s[48:51], s35 offen{NTT}\ns_add_u32 s35, s35, {56*4096}"
    e("s_mov_b32 s36, 0xffff0000")
    w = Work(); ln_work(w)
    w.e("@wait wphi"); gen2.pack_wphi(w.e, WP, 32)
    w.take(st, opts.get("bud0", 600))
    e("s_barrier")
    w.take(st, bud1)
    sig_at = None
    for t in range(16):
        if sig_at == t: st.e("@wait lnst")
        e("s_barrier")
        if sig_at == t:
            e("s_cmp_lg_u32 s3, 0"); e("s_cbranch_scc1 a_sig1"); e(lane0("buffer_atomic_add v21, v20, s[40:43], 0 offen sc1")); e("a_sig1:")
        if pf: st.e(t1)
        if w.q:
            w.take(st, bud1)
            if not w.q: sig_at = t + opts.get("sigd", 3)
    assert not w.q and sig_at <= 13, sig_at
    print("LN signal at G1 stage", sig_at)
    e("s_cmp_ge_u32 s56, 28"); e("s_cbranch_scc1 a_red_w")
    e("s_barrier")
    read_dump(e)
    w = Work(); kq_work(w)
    if opts.get("nowork"): w.q = []
    sig_at = None if not opts.get("nowork") else 1
    st.mark("kvst")
    for t in range(32):
        e("s_barrier")
        if pf: st.e(t1 if t < 16 else t2)
        if sig_at == t:
            st.e("@wait kvst"); st.e(lane0("buffer_store_dword v21, v20, s[16:19], s58 offen sc1"))
        if w.q:
            if w.q[0] == "#kvdone": w.q.pop(0)
            if "#kvdone" in w.q:
                n = w.q.index("#kvdone")
                pre = Work(); pre.q = w.q[:n]; pre.take(st, bud2); w.q = pre.q + w.q[n:]
                if not pre.q: sig_at = t + opts.get("sigd", 3); print("kv stores at G2 stage", t)
            else:
                w.take(st, bud2)
                if not w.q: print("q path done at G2 stage", t)
        if t == 28: st.e("@vm kvpoll buffer_load_dword v4, v20, s[16:19], s61 offen sc1")
        if t == 30:
            assert not w.q
            st.e("@wait kvpoll")
            e("v_readfirstlane_b32 s39, v4"); e("s_cmp_eq_u32 s39, 0"); e("s_cbranch_scc1 a_nokv")
            o_loads(e)
            e("a_nokv:")
    assert not w.q
    if opts.get("nored"): e("s_endpgm")
    e("s_cmp_lg_u32 s39, 0"); e("s_cbranch_scc1 a_ofin")
    e("a_owait:")
    e("buffer_load_dword v4, v20, s[16:19], s61 offen sc1"); e("s_waitcnt vmcnt(0)")
    spin_until(k, 4, 20, 16, "s61", 1, 62)
    o_loads(e)
    e("a_ofin:")
    o_final(e)
    if stamps:
        e("s_waitcnt vmcnt(0)"); e("s_memrealtime s[86:87]"); e("s_waitcnt lgkmcnt(0)")
        e("v_mov_b32 v8, s86"); e("s_lshl_b32 s41, s92, 5"); e("s_lshl_b32 s42, s3, 2"); e("s_add_u32 s41, s41, s42"); e(f"s_add_u32 s41, s41, {WS_STAMP+24:#x}"); e("v_mov_b32 v7, s41")
        e(lane0(f"global_store_dword v7, v8, s[{WS}:{WS+1}]"))
    e("s_endpgm")
    e("a_red_w:")
    if opts.get("nored"): e("s_endpgm")
    e("s_barrier")
    read_dump(e)
    e("s_barrier")
    w = Work(); kq_work(w)
    st2 = Stream(k)
    for it in w.q:
        if it == "#kvdone":
            e("s_waitcnt vmcnt(0)"); e(lane0("buffer_store_dword v21, v20, s[16:19], s58 offen sc1"))
        else: st2.e(it)
    e("s_barrier")
    e("s_branch a_owait")
    e("a_cons:")
    e("s_lshr_b32 s57, s3, 1"); e("s_and_b32 s58, s3, 1")
    k.srd(48, B1, F_*2)
    e("v_lshrrev_b32 v7, 4, v2"); e("v_lshlrev_b32 v7, 3, v7")
    e("s_lshl_b32 s60, s55, 8"); e("s_lshl_b32 s61, s58, 6"); e("s_add_u32 s60, s60, s61")
    for j in range(4):
        e(f"buffer_load_dwordx2 v[{152+2*j}:{153+2*j}], v7, s[48:51], s60 offen offset:{(j//2)*128 + (j%2)*32}")
    acc = [[160 + (i*6+j)*4 for j in range(6)] for i in range(4)]
    for r in range(160, 256, 2): e(f"v_mov_b64 v[{r}:{r+1}], 0")
    e("v_and_b32 v37, 15, v2"); e("v_lshrrev_b32 v38, 4, v2")
    e("v_lshrrev_b32 v39, 1, v37"); e("v_xor_b32 v39, v39, v38")
    e("s_lshl_b32 s60, s57, 6"); e("v_add_u32 v4, s60, v37"); e("v_lshlrev_b32 v4, 7, v4"); e("v_lshl_add_u32 v4, v39, 4, v4")
    e("v_xor_b32 v5, 64, v4")
    lane_T_read_off(e, 16, 6, 2, 37, 38)
    e("s_lshl_b32 s60, s58, 6"); e("v_xor_b32 v6, s60, v6"); e("v_xor_b32 v7, 32, v6")
    p_off = [(kk, i*2048) for kk in range(2) for i in range(4)]
    t_desc = [(j % 2, c1.PB + (j//2)*8192 + kk*4096) for kk in range(2) for j in range(6)]
    order = [(kk*4+i, kk*6+j, i, j) for kk in range(2) for i in range(4) for j in range(6)]
    pbufs = [16 + 4*i for i in range(8)]; tbufs = [48 + 4*j for j in range(12)]
    if opts.get("prio"): e(f"s_setprio {opts['prio']}")
    if stamps: e("s_memrealtime s[82:83]"); e("s_memtime s[94:95]")
    consumer_loop(k, c1, 16, 16, 8, 12, p_off, t_desc, acc, pbufs, tbufs, [4, 5], [6, 7],
                  lambda i, j: j >= 4, order, 36, 37, 38, rpg=1, bar_pos=opts.get("bar1", 28))
    if stamps: e("s_memrealtime s[84:85]"); e("s_memtime s[96:97]"); e("s_waitcnt lgkmcnt(0)"); e("s_sub_u32 s93, s96, s94")
    e(f"s_mul_i32 s60, s3, 12288"); e(f"s_add_u32 s60, s60, {DUMP}"); e("v_add_u32 v8, s60, v3")
    e("s_waitcnt lgkmcnt(0)")
    e("s_nop 4")
    for part in range(2):
        for sb in range(4):
            o = 16 + (part*4+sb)*4
            for db in range(2):
                a = acc[sb][part*2+db]
                e(f"v_cvt_pk_bf16_f32 v{o+db*2}, v{a}, v{a+1}"); e(f"v_cvt_pk_bf16_f32 v{o+db*2+1}, v{a+2}, v{a+3}")
            e(f"ds_write_b128 v8, v[{o}:{o+3}] offset:{(part*4+sb)*1024}")
    for p in range(2):
        for db in range(2):
            o = 48 + (p*2+db)*4
            for h in range(2):
                a = acc[2*p+h][4+db]
                e(f"v_cvt_pk_bf16_f32 v{o+h*2}, v{a}, v{a+1}"); e(f"v_cvt_pk_bf16_f32 v{o+h*2+1}, v{a+2}, v{a+3}")
            e(f"ds_write_b128 v8, v[{o}:{o+3}] offset:{(8+p*2+db)*1024}")
    e("s_cmp_ge_u32 s56, 28"); e("s_cbranch_scc1 a_red_c")
    acc2 = [[192 + (i*4+j)*4 for j in range(4)] for i in range(4)]
    e("s_mov_b32 s36, 0xffff0000")
    e("s_waitcnt vmcnt(0)")
    for j in range(4):
        for hh in range(2):
            src = 152 + j*2 + hh; d0 = acc2[0][j] + hh*2
            e(f"v_lshlrev_b32 v{d0}, 16, v{src}"); e(f"v_and_b32 v{d0+1}, s36, v{src}")
        for i in range(1, 4):
            for q in (0, 2): e(f"v_mov_b64 v[{acc2[i][j]+q}:{acc2[i][j]+q+1}], v[{acc2[0][j]+q}:{acc2[0][j]+q+1}]")
    e("v_lshrrev_b32 v14, 4, v2"); e("v_lshlrev_b32 v4, 11, v14"); e("v_and_b32 v15, 15, v2"); e("v_lshl_add_u32 v4, v15, 4, v4")
    e("s_lshl_b32 s60, s57, 10"); e("v_add_u32 v4, s60, v4")
    lane_T_read_off(e, 16, 6, 2, 14, 15)
    e("s_lshl_b32 s60, s58, 6"); e("v_xor_b32 v6, s60, v6"); e("v_xor_b32 v7, 32, v6")
    p_off = [(0, kk*8192 + i*256) for kk in range(2) for i in range(4)]
    t_desc = [(j % 2, c2.PB + (j//2)*8192 + kk*4096) for kk in range(2) for j in range(4)]
    order = [(kk*4+i, kk*4+j, i, j) for kk in range(2) for i in range(4) for j in range(4)]
    pbufs = [16 + 4*i for i in range(8)]; tbufs = [48 + 4*j for j in range(8)]
    e("s_waitcnt lgkmcnt(0)")
    if stamps: e("s_memrealtime s[88:89]"); e("s_memtime s[94:95]")
    consumer_loop(k, c2, 32, 16, 8, 8, p_off, t_desc, acc2, pbufs, tbufs, [4], [6, 7],
                  False, order, 36, 37, 38, rpg=1, bar_pos=18)
    if stamps: e("s_memrealtime s[90:91]"); e("s_memtime s[96:97]")
    e("s_waitcnt lgkmcnt(0)")
    e("v_lshrrev_b32 v8, 5, v2"); e("v_lshlrev_b32 v7, 14, v8"); e("v_and_b32 v8, 31, v2"); e("v_lshl_add_u32 v7, v8, 4, v7")
    e("s_lshl_b32 s14, s55, 18"); e("s_lshl_b32 s15, s58, 16"); e("s_add_u32 s14, s14, s15")
    e("s_lshl_b32 s15, s54, 11"); e("s_add_u32 s14, s14, s15"); e("s_lshl_b32 s15, s57, 10"); e("s_add_u32 s14, s14, s15")
    e(f"s_add_u32 s14, s14, {WS_UT:#x}")
    e(f"s_mov_b32 s42, {f32(GELU_K3)}"); e(f"s_mov_b32 s43, {f32(GELU_K3)}")
    e(f"v_mov_b32 v10, {f32(GELU_K1)}"); e(f"v_mov_b32 v11, {f32(GELU_K1)}")
    for j in range(4):
        e(f"s_add_u32 s15, s14, {((j//2)*8 + (j%2)*2)*16384}")
        t = 16 + (j % 2) * 24; o = t + 16
        gelu_block(e, [acc2[b][j] + q for b in range(4) for q in (0, 2)], t, o)
        e("s_nop 1")
        for pr in range(2):
            e(f"v_permlane16_swap_b32 v{o+4*pr}, v{o+4*pr+2}")
            e(f"v_permlane16_swap_b32 v{o+4*pr+1}, v{o+4*pr+3}")
        for pr in range(2):
            e(f"buffer_store_dwordx4 v[{o+4*pr}:{o+4*pr+3}], v7, s[16:19], s15 offen offset:{2*pr*256}")
    e("a_stamp:")
    if stamps:
        e("s_waitcnt vmcnt(0)")
        e("s_memrealtime s[86:87]"); e("s_waitcnt lgkmcnt(0)")
        for n, sr in enumerate((80, 82, 84, 88, 90, 86)): e(f"v_mov_b32 v{8+n}, s{sr}")
        e("s_lshl_b32 s41, s92, 5"); e(f"s_add_u32 s41, s41, {WS_STAMP:#x}"); e("v_mov_b32 v7, s41")
        e("v_cmp_eq_u32 vcc, 0, v0"); e("s_and_saveexec_b64 s[42:43], vcc"); e(f"s_cbranch_execz a_end")
        e(f"global_store_dwordx4 v7, v[8:11], s[{WS}:{WS+1}]")
        e(f"global_store_dwordx2 v7, v[12:13], s[{WS}:{WS+1}] offset:16")
        e("s_sub_u32 s96, s96, s94"); e("v_mov_b32 v8, s93"); e("v_mov_b32 v9, s96"); e("v_add_u32 v7, 0x20000, v7")
        e(f"global_store_dwordx2 v7, v[8:9], s[{WS}:{WS+1}]")
    e("s_endpgm")
    e("a_red_c:")
    if opts.get("nored"): e("s_endpgm")
    e("s_waitcnt lgkmcnt(0)"); e("s_barrier")
    e("s_and_b32 s59, s92, 7"); e("s_lshl_b32 s59, s59, 2"); e("s_add_u32 s59, s59, s56"); e("s_sub_u32 s59, s59, 28")
    k.srd(24, WO, D_*D_*2)
    e("v_lshlrev_b32 v143, 7, v2")
    e("s_lshl_b32 s60, s59, 2"); e("s_add_u32 s60, s60, s3"); e("s_lshl_b32 s60, s60, 14")
    e("buffer_load_dword v140, v143, s[24:27], s60 offen"); e("s_add_u32 s60, s60, 8192"); e("buffer_load_dword v140, v143, s[24:27], s60 offen")
    e("s_barrier")
    if stamps: e("s_memrealtime s[88:89]")
    e("v_mov_b32 v4, 0"); e("v_mov_b32 v5, 1")
    e("buffer_load_dword v6, v4, s[40:43], 0 offen sc1"); e("s_waitcnt vmcnt(0)")
    spin_until(k, 6, 4, 40, "0", 256, 62)
    e("s_lshl_b32 s61, s59, 11"); e(f"s_add_u32 s61, s61, {WS_FLAG1:#x}")
    e("v_and_b32 v7, 3, v2"); e("s_lshl_b32 s60, s3, 2"); e("v_add_u32 v7, s60, v7"); e("v_lshlrev_b32 v7, 7, v7")
    e("s_mov_b32 s63, 0x100000")
    e("a_r_poll:")
    e("buffer_load_dword v6, v7, s[16:19], s61 offen sc1"); e("s_waitcnt vmcnt(0)")
    e("v_cmp_eq_u32 vcc, 0, v6")
    e("s_sub_u32 s63, s63, 1"); e("s_cbranch_scc1 a_r_go")
    e("s_cbranch_vccz a_r_go")
    e(f"s_sleep {opts.get('osleep', 8)}")
    e("s_branch a_r_poll")
    e("a_r_go:")
    if stamps: e("s_memrealtime s[90:91]")
    e("s_lshl_b32 s60, s59, 4"); e("s_lshl_b32 s61, s3, 2"); e("s_add_u32 s60, s60, s61")
    e(f"s_mul_i32 s60, s60, {NQ*1024}"); e(f"s_add_u32 s60, s60, {WS_KVP:#x}")
    nr = 4*NQ; B0 = 16
    for n in range(4*NQ):
        if n and n % 4 == 0: e("s_add_u32 s60, s60, 4096")
        e(f"buffer_load_dwordx4 v[{B0+4*n}:{B0+3+4*n}], v3, s[16:19], s60 offen offset:{(n%4)*1024} sc1")
    for pp in (1, 2, 3):
        e(f"s_waitcnt vmcnt({(3-pp)*NQ})")
        for r in range(0, nr, 2): e(f"v_pk_add_f32 v[{B0+r}:{B0+r+1}], v[{B0+r}:{B0+r+1}], v[{B0+pp*nr+r}:{B0+pp*nr+r+1}]")
    e(f"s_mul_i32 s60, s3, {NQ*1024}"); e("v_add_u32 v7, s60, v3")
    for qd in range(NQ): e(f"ds_write_b128 v7, v[{B0+4*qd}:{B0+3+4*qd}] offset:{qd*1024}")
    e("s_waitcnt lgkmcnt(0)"); e("s_barrier")
    e("s_cmp_lg_u32 s3, 0"); e("s_cbranch_scc1 a_end")
    for w_ in range(1, 4):
        for qd in range(NQ): e(f"ds_read_b128 v[{B0+w_*nr+4*qd}:{B0+w_*nr+3+4*qd}], v3 offset:{(w_*NQ+qd)*1024}")
    e("s_waitcnt lgkmcnt(0)")
    for pp in (1, 2, 3):
        for r in range(0, nr, 2): e(f"v_pk_add_f32 v[{B0+r}:{B0+r+1}], v[{B0+r}:{B0+r+1}], v[{B0+pp*nr+r}:{B0+pp*nr+r+1}]")
    FQ, KO_, ZO_ = B0, 64, 80
    for sg in range(2):
        for db in range(2):
            d = KO_ + (sg*2+db)*4
            for fb in range(2):
                a = FQ + ((sg*2+fb)*2+db)*4
                e(f"v_cvt_pk_bf16_f32 v{d+2*fb}, v{a}, v{a+1}"); e(f"v_cvt_pk_bf16_f32 v{d+2*fb+1}, v{a+2}, v{a+3}")
    zq = FQ + 32
    for fbk in range(4):
        for r in range(4):
            e(f"v_mov_b32_dpp v{96+fbk*4+r}, v{zq+r} quad_perm:[{fbk},{fbk},{fbk},{fbk}] row_mask:0xf bank_mask:0xf")
    e("v_and_b32 v6, 3, v2"); e("v_mov_b32 v7, 0x3f803f80")
    e("v_cmp_eq_u32 vcc, 1, v6"); e("s_nop 1"); e("v_cndmask_b32 v7, 0, v7, vcc")
    e("v_cmp_eq_u32 vcc, 0, v6")
    for n in range(8): e(f"v_cvt_pk_bf16_f32 v{ZO_+n}, v{96+2*n}, v{97+2*n}")
    for n in range(8): e(f"v_cndmask_b32 v{ZO_+n}, v7, v{ZO_+n}, vcc")
    e(f"s_mul_i32 s60, s59, 6144"); e(f"s_add_u32 s60, s60, {WS_KVF:#x}"); e("s_add_u32 s61, s60, 4096")
    for n in range(6):
        e(f"buffer_store_dwordx4 v[{KO_+4*n}:{KO_+3+4*n}], v3, s[16:19], s{60 + n//4} offen offset:{(n%4)*1024} sc1")
    e("s_lshl_b32 s61, s59, 7"); e(f"s_add_u32 s61, s61, {WS_FLAG2:#x}")
    e("s_waitcnt vmcnt(0)")
    e(lane0("buffer_store_dword v5, v4, s[16:19], s61 offen sc1"))
    e("s_branch a_stamp")
    e("a_end:")
    return k

def gen_b(opts):
    NS = opts.get("NSb", 5)
    c = GemmCfg(128, 2, NS, 64)
    k = Kern("b_kernel", 256, 512, NS*c.SB, vgpr=160, sgpr=100)
    e = k.e
    stamps = opts.get("stamps", False)
    NT = " nt" if opts.get("nt", False) else ""
    NTT = " nt" if opts.get("ntt", False) else ""
    DPF = 14
    W2, B2 = 72, 74
    e("s_cmp_ge_u32 s2, 256"); e("s_cbranch_scc1 b_end")
    e("s_load_dwordx2 s[70:71], s[0:1], 24")
    e("s_load_dwordx4 s[72:75], s[0:1], 56")
    e("s_load_dwordx2 s[78:79], s[0:1], 80")
    e("s_load_dwordx2 s[6:7], s[0:1], 96")
    if stamps: e("s_memrealtime s[80:81]")
    e("s_mov_b32 s92, s2")
    e("v_lshrrev_b32 v1, 6, v0"); e("v_and_b32 v2, 63, v0"); e("v_lshlrev_b32 v3, 4, v2")
    e("s_lshr_b32 s56, s2, 3")
    e("v_readfirstlane_b32 s3, v1")
    e("s_and_b32 s52, s2, 1")
    e("s_lshr_b32 s54, s56, 2")
    e("s_bfe_u32 s55, s2, 0x20001"); e("s_lshl_b32 s55, s55, 2"); e("s_and_b32 s60, s56, 3"); e("s_add_u32 s55, s55, s60")
    e("s_waitcnt lgkmcnt(0)")
    k.srd(16, WS, WS_SIZE)
    e("s_cmp_lt_u32 s3, 4"); e("s_cbranch_scc1 b_cons")
    k.srd(24, W2, F_*S_*2)
    e(f"s_mul_i32 s29, s52, {2304*4096}"); e("s_lshl_b32 s60, s55, 8"); e("s_add_u32 s29, s29, s60")
    e("s_cmp_ge_u32 s3, 6"); e("s_cbranch_scc1 b_pref")
    k.srd(20, WO, D_*D_*2)
    e("s_sub_u32 s3, s3, 4")
    for n in range(1, 4):
        sl, cg = divmod(n, 2); e(f"v_add_u32 v{8+n}, {(cg*4+sl*2)*D_*16}, v3"); e(f"v_add_u32 v{12+n}, {(cg*4+sl*2)*S_*16}, v3")
    lane_T_dma_off(e, 16, 24, 2, 6, S_*2, 3)
    for n in range(1, 8):
        sl, r = divmod(n, 4); sg, kg = divmod(r, 2); e(f"v_add_u32 v{24+n}, {sg*128 + kg*32*S_*2 + sl*16*S_*2}, v24")
    e("s_mul_i32 s28, s52, 288"); e("s_add_u32 s28, s28, s3"); e("s_lshl_b32 s28, s28, 14"); e("s_lshl_b32 s60, s54, 11"); e("s_add_u32 s28, s28, s60")
    e(f"s_add_u32 s28, s28, {WS_UT:#x}")
    e("s_lshl_b32 s30, s3, 11")
    e("s_lshl_b32 s31, s3, 10"); e(f"s_add_u32 s31, s31, {c.PB}")
    R3 = dict(nsl=2, vP=[3, 9, 10, 11], vT=list(range(24, 32)), sP=28, sT=29, srdP=16, srdT=24, sBase=30, sLds=32, sStage=34, sCnt=35,
              stepP=8*D_*16, stepT=64*S_*2, flags=("", NT))
    e("s_cmp_eq_u32 s52, 0"); e("s_cbranch_scc0 b_prod1")
    producer_loop(k, c, 36, R3)
    e("s_endpgm")
    e("b_prod1:")
    lane_T_dma_off(e, 16, 32, 2, 6, D_*2, 3)
    for n in range(1, 8):
        sl, r = divmod(n, 4); sg, kg = divmod(r, 2); e(f"v_add_u32 v{32+n}, {sg*128 + kg*32*D_*2 + sl*16*D_*2}, v32")
    e("s_lshl_b32 s36, s3, 15"); e("s_lshl_b32 s60, s55, 11"); e("s_add_u32 s36, s36, s60"); e(f"s_add_u32 s36, s36, {WS_OT:#x}")
    e("s_lshl_b32 s37, s54, 8")
    R4 = dict(R3, vP=[3, 13, 14, 15], vT=list(range(32, 40)), sP=36, sT=37, srdT=20, stepP=8*S_*16, stepT=64*D_*2, flags=("", ""))
    producer_loop(k, c, 36, [(20, R3), (16, R4)])
    e("s_endpgm")
    e("b_pref:")
    e("s_sub_u32 s3, s3, 6")
    e("v_and_b32 v4, 7, v2"); e("s_lshl_b32 s60, s54, 3"); e("v_add_u32 v4, s60, v4"); e("v_lshlrev_b32 v4, 12, v4")
    e("s_lshl_b32 s60, s3, 7"); e("s_add_u32 s29, s29, s60"); e(f"s_add_u32 s29, s29, {DPF*64*4096}")
    e("s_cmp_eq_u32 s52, 0"); e(f"s_cselect_b32 s35, {36-DPF}, {20-DPF}")
    e("s_mov_b64 exec, 0xff")
    if opts.get("pf", True):
        e("b_pl:")
        e(f"buffer_load_dword v5, v4, s[24:27], s29 offen{NTT}"); e(f"s_add_u32 s29, s29, {64*4096}")
        e("s_barrier")
        e("s_sub_u32 s35, s35, 1"); e("s_cmp_lg_u32 s35, 0"); e("s_cbranch_scc1 b_pl")
    e("s_endpgm")
    e("b_cons:")
    e("s_lshr_b32 s57, s3, 1"); e("s_and_b32 s58, s3, 1")
    k.srd(24, B2, S_*2)
    k.srd(20, OUT, S_*D_*2)
    e("v_and_b32 v15, 15, v2"); e("v_lshrrev_b32 v14, 4, v2")
    e("s_lshl_b32 s60, s55, 7"); e("s_lshl_b32 s61, s58, 5"); e("s_add_u32 s60, s60, s61"); e("v_add_u32 v8, s60, v15")
    e("v_lshlrev_b32 v9, 2, v8"); e("v_lshlrev_b32 v8, 1, v8")
    e(f"s_mov_b32 s60, {WS_G:#x}")
    GO, BO = 80, 88
    for j in range(4):
        e(f"buffer_load_dword v{GO+2*j}, v9, s[16:19], s60 offen offset:{((j//2)*64 + (j%2)*16)*4}")
        e(f"buffer_load_ushort v{BO+j}, v8, s[24:27], 0 offen offset:{((j//2)*64 + (j%2)*16)*2}")
    acc = [[96 + (i*4+j)*4 for j in range(4)] for i in range(4)]
    e("v_lshlrev_b32 v4, 11, v14"); e("v_lshl_add_u32 v4, v15, 4, v4")
    e("v_mov_b32 v5, v4")
    e("s_lshl_b32 s60, s57, 10"); e("v_add_u32 v4, s60, v4")
    lane_T_read_off(e, 16, 10, 2, 12, 13)
    e("s_lshl_b32 s60, s58, 6"); e("v_xor_b32 v6, s60, v10"); e("v_xor_b32 v7, 32, v6")
    e("s_waitcnt vmcnt(0)")
    e("s_cmp_eq_u32 s52, 0"); e("s_cselect_b32 s60, -65536, 0")
    for j in range(4):
        e(f"v_sub_f32 v{GO+2*j}, 1.0, v{GO+2*j}")
        e(f"v_lshlrev_b32 v{BO+j}, 16, v{BO+j}"); e(f"v_and_b32 v{BO+j}, s60, v{BO+j}")
        for i in range(4):
            for q in range(4): e(f"v_mov_b32 v{acc[i][j]+q}, v{BO+j}")
    p_off = [(0, kk*8192 + i*256) for kk in range(2) for i in range(4)]
    t_desc = [(j % 2, c.PB + (j//2)*8192 + kk*4096) for kk in range(2) for j in range(4)]
    order = [(kk*4+i, kk*4+j, i, j) for kk in range(2) for i in range(4) for j in range(4)]
    pbufs = [16 + 4*i for i in range(8)]; tbufs = [48 + 4*j for j in range(8)]
    def scale():
        e("s_waitcnt lgkmcnt(0)"); e("s_nop 7")
        for j in range(4):
            for i in range(4):
                for q in (0, 2):
                    a = acc[i][j] + q
                    e(f"v_pk_mul_f32 v[{a}:{a+1}], v[{a}:{a+1}], v[{GO+2*j}:{GO+2*j+1}] op_sel_hi:[1,0]")
    if stamps: e("s_memrealtime s[82:83]")
    e("s_cmp_eq_u32 s52, 0"); e("s_cbranch_scc0 b_cons1")
    consumer_loop(k, c, 36, 16, 8, 8, p_off, t_desc, acc, pbufs, tbufs, [4], [6, 7], True, order, 36, 37, 38, rpg=1, bar_pos=18)
    scale()
    e("s_branch b_exch")
    e("b_cons1:")
    consumer_loop(k, c, 20, 16, 8, 8, p_off, t_desc, acc, pbufs, tbufs, [4], [6, 7], True, order, 36, 37, 38, rpg=1, bar_pos=18)
    slot = 20 % NS
    e("s_lshl_b32 s60, s58, 9"); e(f"s_add_u32 s60, s60, {slot*c.SB}"); e("v_add_u32 v4, s60, v5")
    e("s_lshl_b32 s60, s57, 13"); e(f"s_add_u32 s60, s60, {slot*c.SB}"); e("v_add_u32 v10, s60, v10")
    for q in range(1, 4): e(f"v_xor_b32 v{10+q}, {32*q}, v10")
    scale()
    p_off4 = [(0, kk*8192 + (j//2)*1024 + (j%2)*256) for kk in range(2) for j in range(4)]
    t_desc4 = [(i, c.PB + kk*4096) for kk in range(2) for i in range(4)]
    order4 = [(kk*4+j, kk*4+i, i, j) for kk in range(2) for j in range(4) for i in range(4)]
    consumer_loop(k, c, 16, 16, 8, 8, p_off4, t_desc4, acc, pbufs, tbufs, [4], [10, 11, 12, 13], False, order4, 36, 37, 38, rpg=1, bar_pos=18, slot0=slot)
    e("s_waitcnt lgkmcnt(0)"); e("s_nop 7")
    e("b_exch:")
    if stamps: e("s_memrealtime s[84:85]")
    e("s_lshl_b32 s60, s2, 2"); e("s_add_u32 s60, s60, s3"); e("s_lshl_b32 s60, s60, 13"); e(f"s_add_u32 s60, s60, {WS_PART:#x}")
    e("s_add_u32 s61, s60, 4096")
    e("s_xor_b32 s62, s60, 0x8000"); e("s_add_u32 s63, s62, 4096")
    e("s_lshl_b32 s40, s2, 10"); e("s_lshl_b32 s41, s3, 7"); e("s_add_u32 s40, s40, s41"); e(f"s_add_u32 s40, s40, {WS_FLAG:#x}"); e("s_xor_b32 s41, s40, 0x400")
    e("v_mov_b32 v8, 0"); e("v_mov_b32 v9, 1")
    def exch(hk, lab):
        snd = [acc[i][2*(1-hk)+jj] for jj in range(2) for i in range(4)]
        keep = [acc[i][2*hk+jj] for jj in range(2) for i in range(4)]
        for n, a in enumerate(snd):
            e(f"buffer_store_dwordx4 v[{a}:{a+3}], v3, s[16:19], s{60 + n//4} offen offset:{(n%4)*1024} sc1")
        e("s_waitcnt vmcnt(0)")
        e(lane0("buffer_store_dword v9, v8, s[16:19], s40 offen sc1"))
        e("buffer_load_dword v10, v8, s[16:19], s41 offen sc1"); e("s_waitcnt vmcnt(0)")
        spin_until(k, 10, 8, 16, "s41", 1, 42, sleep=1)
        for n in range(8):
            e(f"buffer_load_dwordx4 v[{16+4*n}:{19+4*n}], v3, s[16:19], s{62 + n//4} offen offset:{(n%4)*1024} sc1")
        for n, a in enumerate(keep):
            e(f"s_waitcnt vmcnt({7-n})")
            for q in (0, 2): e(f"v_pk_add_f32 v[{a+q}:{a+q+1}], v[{a+q}:{a+q+1}], v[{16+4*n+q}:{17+4*n+q}]")
        for i in range(4):
            for jj in range(2):
                a = acc[i][2*hk+jj]; o = 48 + i*4 + jj*2
                e(f"v_cvt_pk_bf16_f32 v{o}, v{a}, v{a+1}"); e(f"v_cvt_pk_bf16_f32 v{o+1}, v{a+2}, v{a+3}")
    e("s_cmp_eq_u32 s52, 0"); e("s_cbranch_scc0 b_ex1")
    exch(0, "b_ex0")
    e("s_branch b_fin")
    e("b_ex1:")
    exch(1, "b_ex1")
    e("b_fin:")
    e("v_and_b32 v8, 31, v2"); e("v_lshlrev_b32 v8, 11, v8"); e("v_lshrrev_b32 v9, 5, v2"); e("v_lshl_add_u32 v8, v9, 4, v8")
    e("s_lshl_b32 s60, s55, 2"); e("s_lshl_b32 s61, s52, 1"); e("s_add_u32 s60, s60, s61"); e("s_add_u32 s60, s60, s58"); e("s_lshl_b32 s60, s60, 16")
    e("s_lshl_b32 s61, s54, 8"); e("s_add_u32 s60, s60, s61"); e("s_lshl_b32 s61, s57, 7"); e("s_add_u32 s60, s60, s61")
    for i in range(4):
        o = 48 + i*4
        e(f"v_permlane16_swap_b32 v{o}, v{o+2}"); e(f"v_permlane16_swap_b32 v{o+1}, v{o+3}")
    for i in range(4):
        o = 48 + i*4
        e(f"buffer_store_dwordx4 v[{o}:{o+3}], v8, s[20:23], s60 offen offset:{i*32}")
    if stamps:
        e("s_waitcnt vmcnt(0)")
        e("s_memrealtime s[86:87]"); e("s_waitcnt lgkmcnt(0)")
        for n, sr in enumerate((80, 82, 84, 86)): e(f"v_mov_b32 v{8+n}, s{sr}")
        e("s_lshl_b32 s41, s92, 5"); e(f"s_add_u32 s41, s41, {WS_STAMP+0x10000:#x}"); e("v_mov_b32 v7, s41")
        e("v_cmp_eq_u32 vcc, 0, v0"); e("s_and_saveexec_b64 s[42:43], vcc"); e(f"s_cbranch_execz b_end")
        e(f"global_store_dwordx4 v7, v[8:11], s[{WS}:{WS+1}]")
    e("b_end:")
    return k

if __name__ == "__main__":
    out = sys.argv[1]
    opts = eval("dict(" + (sys.argv[2] if len(sys.argv) > 2 else "") + ")")
    write_file(out, [gen_a(opts), gen_b(opts)])
```

```python
import sys
from gen import *
import gen2, gen3, gen4
from gen2 import spin_until, softmax_units, DBG, WS, X, WQKV, WPHI, WO, W1, B1, GW, OUT, WS_KVP, NQ
from gen3 import Stream, Work, WS_KVF
from gen4 import lane0, HP

WS_SIZE = 0x4000000
WS_FLAGL = 0x14E0000
WS_FLAG1 = 0x14C0000
WS_FLAG2 = 0x14D0000
WS_PART = 0x2000000
TOK = 44

def poll_tok(k, vaddr, srd, soff, nl_mask, vd, sleep=4, first_loaded=False):
    e = k.e
    L = k.lab("pt"); Lok = k.lab("ptok")
    if nl_mask is not None: e(f"s_mov_b64 exec, {nl_mask:#x}")
    e("s_mov_b32 s63, 0x8000")
    e(f"{L}:")
    vs = vaddr if isinstance(vaddr, list) else [vaddr]
    for n, va in enumerate(vs):
        e(f"buffer_load_dwordx2 v[{vd+2*n}:{vd+1+2*n}], v{va}, s[{srd}:{srd+3}], {soff} offen sc1")
    e("s_waitcnt vmcnt(0)")
    e(f"v_cmp_ne_u64 vcc, s[{TOK}:{TOK+1}], v[{vd}:{vd+1}]")
    for n in range(1, len(vs)):
        e(f"v_cmp_ne_u64 s[60:61], s[{TOK}:{TOK+1}], v[{vd+2*n}:{vd+1+2*n}]"); e("s_or_b64 vcc, vcc, s[60:61]")
    e("s_sub_u32 s63, s63, 1"); e(f"s_cbranch_scc1 {Lok}")
    e(f"s_cbranch_vccz {Lok}")
    e(f"s_sleep {sleep}")
    e(f"s_branch {L}")
    e(f"{Lok}:")
    if nl_mask is not None: e("s_mov_b64 exec, -1")

def get_token(k, vz, vd):
    e = k.e
    L = k.lab("tk"); Lok = k.lab("tkok")
    e("s_mov_b32 s63, 0x8000")
    e(f"{L}:")
    e(f"buffer_load_dwordx2 v[{vd}:{vd+1}], v{vz}, s[40:43], 0 offen sc1"); e("s_waitcnt vmcnt(0)")
    e(f"v_readfirstlane_b32 s{TOK}, v{vd}"); e(f"v_readfirstlane_b32 s{TOK+1}, v{vd+1}")
    e("s_sub_u32 s63, s63, 1"); e(f"s_cbranch_scc1 {Lok}")
    e(f"s_cmp_eq_u32 s{TOK}, 0"); e(f"s_cbranch_scc1 {L}")
    e(f"{Lok}:")

def stamp_store(e, regs, base, endlab, cond="v0"):
    e("s_waitcnt vmcnt(0)")
    e("s_memrealtime s[86:87]"); e("s_waitcnt lgkmcnt(0)")
    for n, sr in enumerate(regs): e(f"v_mov_b32 v{8+n}, s{sr}")
    e("s_lshl_b32 s41, s92, 5"); e(f"s_add_u32 s41, s41, {base:#x}"); e("v_mov_b32 v7, s41")
    e(f"v_cmp_eq_u32 vcc, 0, {cond}"); e("s_and_saveexec_b64 s[42:43], vcc"); e(f"s_cbranch_execz {endlab}")
    e(f"global_store_dwordx4 v7, v[8:11], s[{WS}:{WS+1}]")
    e(f"global_store_dwordx4 v7, v[12:15], s[{WS}:{WS+1}] offset:16")

def gen_a(opts):
    c2 = GemmCfg(256, 2, 6, 32)
    k = Kern("a_kernel", 256, 512, 160*1024, vgpr=256, sgpr=100)
    e = k.e
    stamps = opts.get("stamps", False)
    pf = opts.get("pf", True)
    e("s_cmp_ge_u32 s2, 256"); e("s_cbranch_scc1 a_end")
    e("s_load_dwordx8 s[64:71], s[0:1], 0")
    e("s_load_dwordx4 s[72:75], s[0:1], 40")
    e("s_load_dwordx4 s[76:79], s[0:1], 72")
    e("s_load_dwordx4 s[4:7], s[0:1], 88")
    e("s_load_dwordx2 s[12:13], s[0:1], 56")
    e(f"s_memrealtime s[{TOK}:{TOK+1}]")
    e("s_mov_b32 s92, s2")
    e("v_lshrrev_b32 v1, 6, v0"); e("v_and_b32 v2, 63, v0"); e("v_lshlrev_b32 v3, 4, v2")
    e("s_lshr_b32 s56, s2, 3"); e("s_and_b32 s57, s2, 7")
    e("v_readfirstlane_b32 s3, v1")
    e("v_mov_b32 v14, 0")
    e("s_waitcnt lgkmcnt(0)")
    if stamps: e(f"s_mov_b32 s80, s{TOK}")
    k.srd(16, WS, WS_SIZE)
    k.srd(40, DBG, 256)
    k.srd(20, X, S_*D_*2)
    e("s_lshl_b32 s60, s2, 3"); e("s_add_u32 s60, s60, s3"); e("s_cmp_lg_u32 s60, 7"); e("s_cbranch_scc1 a_ntp")
    e(f"s_or_b32 s{TOK}, s{TOK}, 1"); e(f"v_mov_b32 v4, s{TOK}"); e(f"v_mov_b32 v5, s{TOK+1}")
    e(lane0("buffer_store_dwordx2 v[4:5], v14, s[40:43], 0 offen sc1"))
    e("a_ntp:")
    e("s_lshr_b32 s58, s57, 1")
    e("s_and_b32 s60, s57, 1"); e("s_cmp_eq_u32 s60, 1"); e("s_cbranch_scc1 a_bchain")
    e("s_and_b32 s52, s56, 7")
    e("s_lshl_b32 s53, s58, 2"); e("s_lshr_b32 s60, s56, 3"); e("s_add_u32 s53, s53, s60")
    e("s_cmp_lt_u32 s3, 4"); e("s_cbranch_scc1 a_g1c")
    st = Stream(k)
    k.srd(24, WQKV, D_*3*D_*2)
    e("s_sub_u32 s3, s3, 4")
    e("v_lshrrev_b32 v7, 3, v2")
    e("s_lshl_b32 s60, s3, 6"); e("v_add_u32 v4, s60, v7"); e("v_lshlrev_b32 v4, 11, v4")
    e("v_lshrrev_b32 v5, 1, v7"); e("v_xor_b32 v5, v5, v2"); e("v_and_b32 v5, 7, v5")
    e("v_lshl_add_u32 v16, v5, 4, v4")
    e("v_xor_b32 v17, 64, v16"); e(f"v_add_u32 v17, {8*2048}, v17")
    for n in range(2, 8): e(f"v_add_u32 v{16+n}, {(n//2)*16*2048}, v{16+n%2}")
    lane_T_dma_off(e, 16, 24, 2, 6, 6144, 3)
    for n in (1, 2): e(f"v_add_u32 v{24+n}, {n*2048}, v24")
    e("s_lshl_b32 s9, s52, 19"); e("s_lshl_b32 s10, s53, 7")
    e("s_lshl_b32 s30, s3, 13"); e("s_lshl_b32 s31, s3, 10"); e(f"s_add_u32 s31, s31, {96*1024}")
    def issueP(n, half):
        if half == 0:
            st.e(f"s_add_u32 s11, s52, {n}\ns_and_b32 s11, s11, 15\ns_lshl_b32 s11, s11, 7\ns_add_u32 s28, s9, s11")
        for rb in range(4*half, 4*half+4):
            st.e(f"s_add_u32 m0, s30, {(n % 3)*32768 + rb*1024}\ns_nop 0\nbuffer_load_dwordx4 v{16+rb}, s[20:23], s28 offen lds")
        st.mark(f"P{n}")
    def issueT(t):
        st.e(f"s_lshl_b32 s11, s52, 1\ns_add_u32 s11, s11, {t}\ns_and_b32 s11, s11, 31\ns_mul_i32 s11, s11, {32*6144}\ns_add_u32 s29, s10, s11")
        for sg in range(3):
            st.e(f"s_add_u32 m0, s31, {(t % 5)*12288 + sg*4096}\ns_nop 0\nbuffer_load_dwordx4 v{24+sg}, s[24:27], s29 offen lds")
        st.mark(f"T{t}")
    issueP(0, 0); issueP(0, 1); issueT(0); st.mark("S0"); issueT(1); issueP(1, 0); issueP(1, 1); issueT(2); issueT(3); issueP(2, 0); issueP(2, 1); issueT(4)
    k.srd(48, WPHI, 32*2048)
    e("s_lshl_b32 s60, s53, 12"); e("s_lshl_b32 s61, s3, 10"); e("s_add_u32 s60, s60, s61"); e(f"s_add_u32 m0, s61, {156*1024}"); e("s_nop 0")
    st.e("buffer_load_dwordx4 v3, s[48:51], s60 offen lds")
    st.e("@wait S0"); e("s_barrier")
    for t in range(32):
        if t + 1 < 32:
            st.e(f"@wait T{t+1}")
            if t % 2 == 1: st.e(f"@wait P{(t+1)//2}")
        e("s_barrier")
        if t + 5 < 32: issueT(t + 5)
        m = (t - 1) // 2 + 3
        if t >= 1 and m < 16: issueP(m, (t + 1) % 2)
    e("s_lshr_b32 s54, s3, 1"); e("s_and_b32 s55, s3, 1"); e("s_lshl_b32 s59, s53, 1"); e("s_add_u32 s59, s59, s55")
    e("s_mul_i32 s60, s3, 12288"); e("v_add_u32 v8, s60, v3"); e(f"v_mov_b32 v9, {152*1024}")
    e("s_add_u32 s3, s3, 4"); e("s_mov_b32 s35, 1"); e("s_mov_b64 s[8:9], s[12:13]")
    e("s_barrier")
    e("ds_read_b64 v[12:13], v9")
    for n in range(4):
        for part in range(3): e(f"ds_read_b128 v[{64+24*n+4*part}:{64+24*n+4*part+3}], v8 offset:{(n*3+part)*1024}")
    e("s_waitcnt lgkmcnt(0)")
    e(f"v_readfirstlane_b32 s{TOK}, v12"); e(f"v_readfirstlane_b32 s{TOK+1}, v13")
    e("s_branch a_epi")
    e("a_g1c:")
    e("s_lshr_b32 s54, s3, 1"); e("s_and_b32 s55, s3, 1")
    e("s_lshl_b32 s59, s53, 1"); e("s_add_u32 s59, s59, s55")
    e("s_mov_b64 s[8:9], s[12:13]")
    e("v_lshlrev_b32 v4, 7, v2"); e("s_lshl_b32 s60, s2, 10"); e(f"s_add_u32 s60, s60, {WS_FLAG:#x}")
    e("s_mov_b64 exec, 15"); e("buffer_store_dword v14, v4, s[16:19], s60 offen"); e("s_mov_b64 exec, -1")
    acc = [[64 + (i*6+j)*4 for j in range(6)] for i in range(8)]
    for r in range(64, 256, 2): e(f"v_mov_b64 v[{r}:{r+1}], 0")
    e("v_and_b32 v8, 15, v2"); e("v_lshrrev_b32 v9, 4, v2")
    e("v_lshrrev_b32 v10, 1, v8"); e("v_xor_b32 v10, v10, v9")
    e("s_lshl_b32 s60, s54, 7"); e("v_add_u32 v4, s60, v8"); e("v_lshlrev_b32 v4, 7, v4"); e("v_lshl_add_u32 v4, v10, 4, v4")
    lane_T_read_off(e, 16, 6, 2, 8, 9)
    e("s_lshl_b32 s60, s55, 6"); e("v_xor_b32 v6, s60, v6"); e(f"v_add_u32 v6, {96*1024}, v6"); e("v_xor_b32 v7, 32, v6")
    get_token(k, 14, 12)
    p_off = [(0, i*2048) for i in range(8)]
    t_desc = [(j % 2, (j//2)*4096) for j in range(6)]
    order = [(2*a+b, j, 2*a+b, j) for a in range(4) for j in range(6) for b in range(2)]
    pbufs = [16 + 4*i for i in range(4)]; tbufs = [32 + 4*j for j in range(8)]
    ringT = ["s_cmp_eq_u32 s36, 4", "s_cselect_b32 s37, s39, 12288", "s_cselect_b32 s36, -1, s36", "s_add_u32 s36, s36, 1"]
    ringP = ["s_cmp_eq_u32 s32, 2", "s_cselect_b32 s33, s34, 0x8000", "s_cselect_b32 s32, -1, s32", "s_add_u32 s32, s32, 1"]
    salu = lambda s: ringT + (ringP if s % 2 else [])
    valu = lambda s: ["v_add_u32 v6, s37, v6", "v_add_u32 v7, s37, v7", "v_xor_b32 v4, 64, v4"] + (["v_add_u32 v4, s33, v4"] if s % 2 else [])
    tail = ["s_sub_u32 s38, s38, 1", "s_cmp_lg_u32 s38, 0"]
    ahead, body, U = build_consumer(None, 16, 8, 6, p_off, t_desc, acc, pbufs, tbufs, [4], [6, 7], lambda i, j: j >= 4, order,
                                    opts.get("bar1", 38), 1, salu, valu, tail, minU=2, salu_at=0)
    e(f"s_mov_b32 s39, {(-4*12288) & 0xffffffff:#x}"); e(f"s_mov_b32 s34, {(-2*32768) & 0xffffffff:#x}"); e("s_mov_b32 s36, 0"); e("s_mov_b32 s32, 0")
    if stamps: e("s_memrealtime s[82:83]")
    e("s_barrier")
    for l in ahead: e(l)
    e("s_waitcnt lgkmcnt(0)")
    e(f"s_mov_b32 s38, {32//U}"); e(".p2align 3"); e("a_g1loop:")
    for l in body: e(l)
    e("s_cbranch_scc1 a_g1loop")
    if stamps: e("s_memrealtime s[84:85]")
    e("s_waitcnt lgkmcnt(0)")
    Bk = lambda sb: 64 + 24*sb
    def cvt_units(sbs):
        for sb in sbs:
            B = Bk(sb)
            for n in range(8): e(f"v_cvt_pk_bf16_f32 v{B+n}, v{B+2*n}, v{B+2*n+1}")
        for p in sorted(set(sb//2 for sb in sbs)):
            for db in range(2):
                d = Bk(2*p+db) + 8
                for h in range(2):
                    a = Bk(2*p+h) + 16 + 4*db
                    e(f"v_cvt_pk_bf16_f32 v{d+2*h}, v{a}, v{a+1}"); e(f"v_cvt_pk_bf16_f32 v{d+2*h+1}, v{a+2}, v{a+3}")
    e("s_mul_i32 s60, s3, 12288"); e("v_add_u32 v8, s60, v3"); e(f"v_mov_b32 v9, {152*1024}")
    e("ds_write_b64 v9, v[12:13]")
    e("s_nop 4")
    cvt_units([4, 5, 6, 7])
    for n in range(4):
        for part in range(3): e(f"ds_write_b128 v8, v[{Bk(4+n)+4*part}:{Bk(4+n)+4*part+3}] offset:{(n*3+part)*1024}")
    cvt_units([0, 1, 2, 3])
    e("s_mov_b32 s35, 0")
    e("s_waitcnt lgkmcnt(0)"); e("s_barrier")
    if opts.get("estamp"): e("s_memrealtime s[82:83]")
    e("a_epi:")
    holes = [Bk(sb) + 12 + 4*n for sb in range(4) for n in range(3)]
    KVq = holes[0:9]; WPq = holes[9:11]
    PK, ST, EP, EF, ZB = 16, 48, 160, 224, 240
    e("v_lshrrev_b32 v8, 2, v2"); e("v_lshlrev_b32 v8, 6, v8"); e("v_and_b32 v9, 3, v2"); e("v_lshl_add_u32 v8, v9, 3, v8")
    e("s_lshl_b32 s60, s55, 11"); e(f"s_add_u32 s60, s60, {156*1024}"); e("v_add_u32 v8, s60, v8")
    for fb in range(2):
        for t in range(2): e(f"ds_read_b64_tr_b16 v[{WPq[fb]+2*t}:{WPq[fb]+2*t+1}], v8 offset:{t*1024 + fb*32}")
    e(f"s_mov_b32 s62, {f32(LOG2E)}"); e(f"s_mov_b32 s63, {f32(LOG2E)}")
    e("v_and_b32 v8, 15, v2"); e("v_lshrrev_b32 v9, 4, v2"); e("s_mul_i32 s34, s3, 10240"); e(f"s_add_u32 s34, s34, {48*1024}")
    e("v_mul_u32_u24 v10, 160, v8"); e("v_lshl_add_u32 v10, v9, 3, v10"); e("v_add_u32 v10, s34, v10")
    e("v_lshrrev_b32 v8, 2, v8"); e("v_lshl_add_u32 v8, v9, 2, v8"); e("v_mul_u32_u24 v11, 160, v8")
    def pmfma(off):
        for u in range(4):
            for fb in range(2):
                d = PK + (u*2+fb)*4; s = Bk(u) + off
                e(f"v_mfma_f32_16x16x32_bf16 v[{d}:{d+3}], v[{WPq[fb]}:{WPq[fb]+3}], v[{s}:{s+3}], 0")
    e("s_waitcnt lgkmcnt(0)")
    pmfma(4)
    e("v_and_b32 v8, 3, v2"); e("v_lshl_add_u32 v11, v8, 3, v11"); e("v_add_u32 v11, s34, v11"); e("v_mov_b32 v9, 0x3f803f80")
    for fbk in range(4):
        e(f"v_cmp_eq_u32 vcc, {fbk}, v8"); e("s_nop 1"); e(f"v_cndmask_b32 v{ZB+4*fbk}, 0, v9, vcc")
        for r in range(1, 4): e(f"v_mov_b32 v{ZB+4*fbk+r}, v{ZB+4*fbk}")
    units = [dict(x=[PK+u*8, PK+u*8+4], ep=EP+u*16, em=EP+8+u*16, st=ST+u*4, out=EP+u*16) for u in range(4)]
    softmax_units(e, units, 62, True)
    for u in range(4):
        o = units[u]["out"]
        for fbk in range(4): e(f"ds_write_b64 v10, v[{o+2*fbk}:{o+2*fbk+1}] offset:{u*16*160 + fbk*32}")
    pmfma(0)
    e("s_waitcnt lgkmcnt(0)")
    EFs = [EF, EP + 8]
    efq = [[EF + 4*n for n in range(4)], [EP+8, EP+12, EP+24, EP+28]]
    for p in range(2):
        for fbk in range(4):
            for t in range(2): e(f"ds_read_b64_tr_b16 v[{efq[p][fbk]+2*t}:{efq[p][fbk]+2*t+1}], v11 offset:{(2*p+t)*16*160 + fbk*32}")
    for p in range(2):
        for fbk in range(4):
            e(f"s_waitcnt lgkmcnt({14-8*p-2*fbk})")
            for db in range(3):
                d = KVq[fbk*2+db] if db < 2 else KVq[8]
                b = Bk(2*p+db) + 8 if db < 2 else ZB + 4*fbk
                cc = "0" if (p == 0 and (db < 2 or fbk == 0)) else f"v[{d}:{d+3}]"
                e(f"v_mfma_f32_16x16x32_bf16 v[{d}:{d+3}], v[{efq[p][fbk]}:{efq[p][fbk]+3}], v[{b}:{b+3}], {cc}")
    e("v_add_u32 v10, s34, v3")
    e("s_lshr_b32 s33, s3, 1"); e("s_mul_i32 s60, s55, 10240"); e("s_lshl_b32 s61, s33, 10"); e("s_add_u32 s60, s60, s61"); e(f"s_add_u32 s60, s60, {48*1024}"); e("v_add_u32 v11, s60, v3"); e("v_add_u32 v15, 0xa000, v11")
    e("s_lshl_b32 s60, s59, 3"); e("s_add_u32 s60, s60, s52")
    e("s_lshl_b32 s36, s60, 7"); e(f"s_add_u32 s36, s36, {WS_FLAG1:#x}")
    e(f"s_mul_i32 s37, s60, {NQ*1024}"); e("s_add_u32 s37, s37, s61"); e(f"s_add_u32 s37, s37, {WS_KVP:#x}"); e("s_add_u32 s38, s37, 4096")
    for qd in range(NQ): e(f"ds_write_b128 v10, v[{KVq[qd]}:{KVq[qd]+3}] offset:{qd*1024}")
    e("s_waitcnt lgkmcnt(0)"); e("s_barrier")
    if opts.get("estamp"): e("s_memrealtime s[94:95]"); e("s_waitcnt lgkmcnt(0)")
    C0 = 224
    for hq in range(2):
        for src in range(4): e(f"ds_read_b128 v[{C0+(hq*4+src)*4}:{C0+(hq*4+src)*4+3}], v{11 if src < 2 else 15} offset:{(src%2)*20480 + hq*4096}")
    e("s_cmp_lg_u32 s33, 0"); e("s_cbranch_scc1 a_noz")
    for src in range(4): e(f"ds_read_b128 v[{holes[src]}:{holes[src]+3}], v{11 if src < 2 else 15} offset:{(src%2)*20480 + 8192}")
    e("s_waitcnt lgkmcnt(0)")
    for src in range(1, 4):
        for q in (0, 2): e(f"v_pk_add_f32 v[{holes[0]+q}:{holes[0]+q+1}], v[{holes[0]+q}:{holes[0]+q+1}], v[{holes[src]+q}:{holes[src]+q+1}]")
    e("s_add_u32 s39, s37, 8192")
    e(f"buffer_store_dwordx4 v[{holes[0]}:{holes[0]+3}], v3, s[16:19], s39 offen sc1")
    e("a_noz:")
    e("s_waitcnt lgkmcnt(0)")
    for hq in range(2):
        a = C0 + hq*16
        for src in range(1, 4):
            for q in (0, 2): e(f"v_pk_add_f32 v[{a+q}:{a+q+1}], v[{a+q}:{a+q+1}], v[{a+4*src+q}:{a+4*src+q+1}]")
        e(f"buffer_store_dwordx4 v[{a}:{a+3}], v3, s[16:19], s{37+hq} offen sc1")
    units = [dict(x=[PK+u*8, PK+u*8+4], ep=EP+u*16, em=EP+8+u*16, st=ST+u*4, out=Bk(u)+4) for u in range(4)]
    w = Work(); softmax_units(w.e, units, 62, False)
    cut = len(w.q) * opts.get("e3cut", 40) // 100
    for l in w.q[:cut]: e(l)
    e("s_waitcnt vmcnt(0)"); e("s_barrier")
    if opts.get("estamp"): e("s_memrealtime s[96:97]"); e("s_waitcnt lgkmcnt(0)")
    e("s_cmp_lg_u32 s33, 0"); e("s_cbranch_scc1 a_nof")
    e(lane0("buffer_store_dwordx2 v[12:13], v14, s[16:19], s36 offen sc1"))
    e("a_nof:")
    if pf:
        k.srd(24, 8, F_*S_*2); k.srd(48, WO, D_*D_*2)
        e("s_lshl_b32 s60, s58, 5"); e("s_add_u32 s60, s60, s56"); e("s_lshl_b32 s60, s60, 3"); e("s_add_u32 s60, s60, s3"); e("s_lshl_b32 s60, s60, 10")
        e("s_mov_b32 s61, s60")
        for n in range(14): e(f"buffer_load_dwordx4 v[240:243], v3, s[24:27], s60 offen"); e(f"s_add_u32 s60, s60, 0x100000")
        for n in range(2): e(f"buffer_load_dwordx4 v[240:243], v3, s[48:51], s61 offen"); e(f"s_add_u32 s61, s61, 0x100000")
    for l in w.q[cut:]: e(l)
    if stamps: e("s_memrealtime s[88:89]")
    KOq = holes[0:4]; ZOq = holes[4:6]; GG = holes[6]
    e("s_lshl_b32 s36, s59, 7"); e(f"s_add_u32 s36, s36, {WS_FLAG2:#x}")
    poll_tok(k, 14, 16, "s36", None, 8, sleep=2)
    if stamps: e("s_memrealtime s[90:91]")
    e(f"s_mul_i32 s36, s59, 6144"); e(f"s_add_u32 s36, s36, {WS_KVF:#x}"); e("s_add_u32 s37, s36, 4096")
    for n, d in enumerate([ZOq[0], KOq[0], KOq[1], ZOq[1], KOq[2], KOq[3]]):
        idx = [4, 0, 1, 5, 2, 3][n]
        e(f"buffer_load_dwordx4 v[{d}:{d+3}], v3, s[16:19], s{36 + idx//4} offen offset:{(idx%4)*1024} sc1")
    e("v_and_b32 v8, 15, v2"); e("v_lshlrev_b32 v8, 2, v8")
    e("s_lshl_b32 s38, s52, 2"); e("s_lshl_b32 s39, s54, 1"); e("s_add_u32 s38, s38, s39"); e("s_add_u32 s38, s38, s35")
    e("s_lshl_b32 s36, s38, 8"); e(f"s_add_u32 s36, s36, {WS_G:#x}")
    for u in range(4): e(f"buffer_load_dword v{GG+u}, v8, s[16:19], s36 offen offset:{u*64} sc1")
    e("v_lshrrev_b32 v8, 5, v2"); e("v_lshlrev_b32 v9, 15, v8"); e("v_and_b32 v8, 31, v2"); e("v_lshl_add_u32 v9, v8, 4, v9")
    e("s_lshl_b32 s36, s59, 17"); e("s_lshl_b32 s37, s38, 10"); e("s_add_u32 s36, s36, s37")
    e(f"s_add_u32 s36, s36, {WS_OT:#x}"); e("s_add_u32 s37, s36, 0x10000")
    e(f"v_mov_b32 v8, {f32(1e-6)}")
    e("s_waitcnt vmcnt(0)")
    nq = [160 + 4*n for n in range(24)]
    for u in range(4):
        for sg in range(2):
            b = Bk(u) + 4 + sg*4
            for db in (2, 0, 1):
                d = nq[u*6 + sg*3 + db]; a = KOq[sg*2+db] if db < 2 else ZOq[sg]
                e(f"v_mfma_f32_16x16x32_bf16 v[{d}:{d+3}], v[{a}:{a+3}], v[{b}:{b+3}], 0")
    e("s_nop 1")
    for u in range(4):
        xp, xm = nq[u*6+2], nq[u*6+5]
        e(f"v_rcp_f32 v{xp+2}, v{xp+1}"); e(f"v_rcp_f32 v{xp+3}, v{xm+1}")
    for u in range(4):
        xp, xm = nq[u*6+2], nq[u*6+5]
        e(f"v_fma_f32 v{xp}, v{xp}, v{xp+2}, v8"); e(f"v_fma_f32 v{xp}, v{xm}, v{xp+3}, v{xp}")
    for u in range(4): xp = nq[u*6+2]; e(f"v_rcp_f32 v{xp}, v{xp}")
    for u in range(4): xp = nq[u*6+2]; e(f"v_mul_f32 v{xp}, v{xp}, v{GG+u}")
    for u in range(4):
        xp = nq[u*6+2]; e(f"v_pk_mul_f32 v[{xp+2}:{xp+3}], v[{xp+2}:{xp+3}], v[{xp}:{xp+1}] op_sel_hi:[1,0]")
    for u in range(4):
        xp = nq[u*6+2]
        for db in range(2):
            np_, nm = nq[u*6+db], nq[u*6+3+db]
            for q in (0, 2):
                e(f"v_pk_mul_f32 v[{np_+q}:{np_+q+1}], v[{np_+q}:{np_+q+1}], v[{xp+2}:{xp+3}] op_sel:[0,0] op_sel_hi:[1,0]")
                e(f"v_pk_fma_f32 v[{np_+q}:{np_+q+1}], v[{nm+q}:{nm+q+1}], v[{xp+2}:{xp+3}], v[{np_+q}:{np_+q+1}] op_sel:[0,1,0] op_sel_hi:[1,1,1]")
    for u in range(4):
        for db in range(2):
            np_ = nq[u*6+db]; o = 16 + ((u//2)*2+db)*4 + (u % 2)*2
            e(f"v_cvt_pk_bf16_f32 v{o}, v{np_}, v{np_+1}"); e(f"v_cvt_pk_bf16_f32 v{o+1}, v{np_+2}, v{np_+3}")
    e("s_nop 1")
    for n in range(4):
        o = 16 + n*4; e(f"v_permlane16_swap_b32 v{o}, v{o+2}"); e(f"v_permlane16_swap_b32 v{o+1}, v{o+3}")
    for n in range(4):
        o = 16 + n*4; pr, db = divmod(n, 2)
        e(f"buffer_store_dwordx4 v[{o}:{o+3}], v9, s[16:19], s{36+db} offen offset:{pr*512}")
    if stamps: stamp_store(e, (80, 84, 82, 94, 96, 88, 86, 86) if opts.get("estamp") else (80, 82, 84, 88, 90, 86, 86, 86), WS_STAMP, "a_end")
    e("s_endpgm")
    e("a_bchain:")
    e("s_lshl_b32 s52, s58, 5"); e("s_add_u32 s52, s52, s56")
    e("s_and_b32 s54, s56, 3")
    e("s_mul_i32 s55, s58, 7"); e("s_lshr_b32 s60, s56, 2"); e("s_add_u32 s55, s55, s60")
    e("s_cmp_lt_u32 s3, 4"); e("s_cbranch_scc1 a_lnc")
    e("s_cmp_ge_u32 s56, 28"); e("s_cbranch_scc1 a_sp_hi")
    st = Stream(k)
    k.srd(24, W1, S_*F_*2)
    e("s_sub_u32 s3, s3, 4")
    lane_T_dma_off(e, 16, 24, 2, 6, F_*2, 3)
    e("v_add_u32 v25, 128, v24")
    e("s_lshl_b32 s60, s3, 14"); e(f"s_lshl_b32 s28, s54, 12"); e("s_add_u32 s28, s28, s60"); e(f"s_add_u32 s28, s28, {WS_HT:#x}")
    e("s_lshl_b32 s29, s55, 8")
    e("s_lshl_b32 s30, s3, 12"); e("s_lshl_b32 s31, s3, 10"); e(f"s_add_u32 s31, s31, {c2.PB}")
    R2 = dict(vP=[3], vT=[24, 25], sP=28, sT=29, srdP=16, srdT=24, sBase=30, sLds=32, sStage=34, sCnt=35, stepP=4*D_*16, stepT=32*F_*2)
    fl = (" sc1", "")
    e("s_mov_b32 s32, s30"); e("s_mov_b32 s33, s31")
    for t in range(5): producer_issue(st.e, c2, R2, fl, "T", t*c2.SB)
    def g2_touches():
        e("s_mul_i32 s60, s58, 28"); e("s_add_u32 s60, s60, s56"); e("s_lshl_b32 s60, s60, 2"); e("s_add_u32 s60, s60, s3"); e("s_lshl_b32 s60, s60, 10")
        if opts.get("pf_wq", True):
            k.srd(48, WQKV, D_*3*D_*2)
            e("s_mov_b32 s61, s60")
            for n in range(14): st.e("buffer_load_dwordx4 v[240:243], v3, s[48:51], s61 offen"); e(f"s_add_u32 s61, s61, {448*1024}")
        e(f"s_add_u32 s61, s60, {160*7168}")
        for n in range(opts.get("pf_g2", 0)): st.e("buffer_load_dwordx4 v[240:243], v3, s[24:27], s61 offen"); e(f"s_add_u32 s61, s61, {448*1024}")
    if opts.get("tpos", "L1") == "pre": g2_touches()
    e("v_lshlrev_b32 v8, 7, v2"); e("v_add_u32 v9, 0x2000, v8")
    e("s_barrier")
    e(f"v_mov_b32 v4, {158*1024}"); e("ds_read_b64 v[10:11], v4"); e("s_waitcnt lgkmcnt(0)")
    e(f"v_readfirstlane_b32 s{TOK}, v10"); e(f"v_readfirstlane_b32 s{TOK+1}, v11")
    if opts.get("tpos", "L1") == "L1": g2_touches()
    e("s_barrier")
    producer_issue(st.e, c2, R2, fl, "T", 5*c2.SB)
    e(f"s_mov_b32 s36, {WS_FLAGL:#x}")
    poll_tok(k, [8, 9], 16, "s36", None, 10, sleep=2)
    st = Stream(k)
    for t in range(6):
        producer_issue(st.e, c2, R2, fl, "P", t*c2.SB); st.mark(f"b{t}")
    e("s_mov_b32 s34, 0")
    st.e("@wait b0"); e("s_barrier")
    for t in range(5):
        st.e(f"@wait b{t+1}"); e("s_barrier")
        producer_issue(st.e, c2, R2, fl); ring_advance(e, c2, R2)
    e("s_mov_b32 s35, 53")
    e("a_l2:")
    e("s_waitcnt vmcnt(24)"); e("s_barrier")
    producer_issue(e, c2, R2, fl); ring_advance(e, c2, R2)
    e("s_sub_u32 s35, s35, 1"); e("s_cmp_lg_u32 s35, 0"); e("s_cbranch_scc1 a_l2")
    for r in range(6):
        e(f"s_waitcnt vmcnt({max(4-r, 0)*6})"); e("s_barrier")
    e("s_endpgm")
    e("a_lnc:")
    st = Stream(k)
    e("s_lshl_b32 s37, s52, 15"); e("s_lshl_b32 s38, s3, 13"); e("s_add_u32 s37, s37, s38"); e("s_add_u32 s38, s37, 4096")
    for n in range(8): st.e(f"buffer_load_dwordx4 v[{48+4*n}:{51+4*n}], v3, s[20:23], s{37+n//4} offen offset:{(n%4)*1024}")
    k.srd(24, GW, D_*2)
    st.e("buffer_load_dwordx4 v[80:83], v3, s[24:27], 0 offen"); st.e("@vm lng buffer_load_dwordx4 v[84:87], v3, s[24:27], 0 offen offset:1024")
    k.srd(48, B1, F_*2)
    e("s_lshr_b32 s57, s3, 1"); e("s_and_b32 s58, s3, 1")
    e("v_lshrrev_b32 v7, 4, v2"); e("v_lshlrev_b32 v7, 3, v7")
    e("s_lshl_b32 s60, s55, 8"); e("s_lshl_b32 s61, s58, 6"); e("s_add_u32 s60, s60, s61")
    for j in range(4): st.e(f"buffer_load_dwordx2 v[{96+2*j}:{97+2*j}], v7, s[48:51], s60 offen offset:{(j//2)*128 + (j%2)*32}")
    e("v_lshlrev_b32 v4, 7, v2"); e("s_lshl_b32 s60, s2, 10"); e(f"s_add_u32 s60, s60, {WS_FLAG:#x}")
    e("s_mov_b64 exec, 15"); e("buffer_store_dword v14, v4, s[16:19], s60 offen"); e("s_mov_b64 exec, -1")
    get_token(k, 14, 12)
    e(f"v_mov_b32 v4, {158*1024}"); e("ds_write_b64 v4, v[12:13]")
    LS = 120*1024
    e("s_mov_b32 s36, 0xffff0000")
    e(f"s_mul_i32 s37, s3, {4*HP}"); e(f"s_add_u32 s37, s37, {LS}"); e("v_add_u32 v22, s37, v3")
    e(f"v_bfe_u32 v23, v2, 2, 2"); e(f"v_mul_u32_u24 v23, {HP}, v23"); e("v_and_b32 v120, 3, v2"); e("v_lshl_add_u32 v23, v120, 3, v23")
    e(f"v_lshrrev_b32 v120, 4, v2"); e("v_lshl_add_u32 v23, v120, 5, v23")
    e(f"s_mul_i32 s37, s57, {8*HP}"); e("s_lshl_b32 s38, s58, 10"); e("s_add_u32 s37, s37, s38"); e(f"s_add_u32 s37, s37, {LS}"); e("v_add_u32 v23, s37, v23")
    for i in range(8):
        e(f"v_lshlrev_b32 v{104+2*i}, 16, v{80+i}"); e(f"v_and_b32 v{105+2*i}, s36, v{80+i}")
    w = Work()
    gen4.ln_rows(w, 48, 0); gen4.ln_rows(w, 64, 1)
    for it in w.q: e(it.replace("s_lshl_b32 s37, s2, 5", "s_lshl_b32 s37, s52, 6"))
    e("s_waitcnt lgkmcnt(0)"); e("s_barrier")
    for j in range(8):
        e(f"ds_read_b64_tr_b16 v[{144+4*j}:{145+4*j}], v23 offset:{128*j}")
        e(f"ds_read_b64_tr_b16 v[{146+4*j}:{147+4*j}], v23 offset:{128*j+4*HP}")
    e(f"s_lshl_b32 s37, s52, 15"); e("s_lshl_b32 s38, s3, 13"); e("s_add_u32 s37, s37, s38"); e(f"s_add_u32 s37, s37, {WS_HT:#x}"); e("s_add_u32 s38, s37, 4096")
    for j in range(8):
        e(f"s_waitcnt lgkmcnt({14-2*j})"); e(f"buffer_store_dwordx4 v[{144+4*j}:{147+4*j}], v3, s[16:19], s{37+j//4} offen offset:{(j%4)*1024} sc1")
    acc2 = [[128 + (i*4+j)*4 for j in range(4)] for i in range(8)]
    e("s_nop 1")
    for j in range(4):
        for hh in range(2):
            src = 96 + j*2 + hh; d0 = acc2[0][j] + hh*2
            e(f"v_lshlrev_b32 v{d0}, 16, v{src}"); e(f"v_and_b32 v{d0+1}, s36, v{src}")
        for i in range(1, 8):
            for q in (0, 2): e(f"v_mov_b64 v[{acc2[i][j]+q}:{acc2[i][j]+q+1}], v[{acc2[0][j]+q}:{acc2[0][j]+q+1}]")
    e("v_lshrrev_b32 v8, 4, v2"); e("v_lshlrev_b32 v4, 12, v8"); e("v_and_b32 v9, 15, v2"); e("v_lshl_add_u32 v4, v9, 4, v4")
    e("s_lshl_b32 s60, s57, 11"); e("v_add_u32 v4, s60, v4")
    lane_T_read_off(e, 16, 6, 2, 8, 9)
    e("s_lshl_b32 s60, s58, 6"); e("v_xor_b32 v6, s60, v6"); e("v_xor_b32 v7, 32, v6")
    e("s_waitcnt vmcnt(0)"); e("s_barrier")
    e("s_cmp_lg_u32 s3, 0"); e("s_cbranch_scc1 a_lnf")
    e("s_lshl_b32 s37, s52, 7"); e(f"s_add_u32 s37, s37, {WS_FLAGL:#x}")
    e(lane0("buffer_store_dwordx2 v[12:13], v14, s[16:19], s37 offen sc1"))
    e("a_lnf:")
    if stamps: e("s_memrealtime s[82:83]")
    e("s_cmp_ge_u32 s56, 28"); e("s_cbranch_scc1 a_spare")
    p_off = [(0, i*256) for i in range(8)]
    t_desc = [(j % 2, c2.PB + (j//2)*4096) for j in range(4)]
    order = [(i, j, i, j) for i in range(8) for j in range(4)]
    pbufs = [16 + 4*i for i in range(16)]; tbufs = [80 + 4*j for j in range(8)]
    consumer_loop(k, c2, [(2, ["s_memrealtime s[84:85]", "s_waitcnt lgkmcnt(0)"] if stamps else []), (62, [])], 16, 8, 4, p_off, t_desc, acc2, pbufs, tbufs, [4], [6, 7],
                  False, order, 36, 37, 38, rpg=1, bar_pos=2)
    if stamps: e("s_memrealtime s[88:89]")
    e("s_waitcnt lgkmcnt(0)")
    e("v_lshrrev_b32 v8, 5, v2"); e("v_lshlrev_b32 v7, 14, v8"); e("v_and_b32 v8, 31, v2"); e("v_lshl_add_u32 v7, v8, 4, v7")
    e("s_lshl_b32 s14, s55, 18"); e("s_lshl_b32 s15, s58, 16"); e("s_add_u32 s14, s14, s15")
    e("s_lshl_b32 s15, s54, 12"); e("s_add_u32 s14, s14, s15"); e("s_lshl_b32 s15, s57, 11"); e("s_add_u32 s14, s14, s15")
    e(f"s_add_u32 s14, s14, {WS_UT:#x}")
    e(f"s_mov_b32 s42, {f32(GELU_K3)}"); e(f"s_mov_b32 s43, {f32(GELU_K3)}")
    e(f"v_mov_b32 v10, {f32(GELU_K1)}"); e(f"v_mov_b32 v11, {f32(GELU_K1)}")
    blk = 0
    for j in range(4):
        e(f"s_add_u32 s15, s14, {((j//2)*8 + (j%2)*2)*16384}")
        for i in (0, 4):
            t = 16 + (blk % 2) * 24; o = t + 16; blk += 1
            gelu_block(e, [acc2[i+b][j] + q for b in range(4) for q in (0, 2)], t, o)
            e("s_nop 1")
            for pr in range(2):
                e(f"v_permlane16_swap_b32 v{o+4*pr}, v{o+4*pr+2}"); e(f"v_permlane16_swap_b32 v{o+4*pr+1}, v{o+4*pr+3}")
            for pr in range(2):
                e(f"buffer_store_dwordx4 v[{o+4*pr}:{o+4*pr+3}], v7, s[16:19], s15 offen offset:{(i+2*pr)*256}")
    if stamps: stamp_store(e, (80, 82, 84, 88, 88, 86, 86, 86), WS_STAMP, "a_end")
    e("s_endpgm")
    e("a_sp_hi:")
    e("s_barrier")
    e(f"v_mov_b32 v4, {158*1024}"); e("ds_read_b64 v[12:13], v4"); e("s_waitcnt lgkmcnt(0)")
    e(f"v_readfirstlane_b32 s{TOK}, v12"); e(f"v_readfirstlane_b32 s{TOK+1}, v13")
    e("s_barrier")
    e("a_spare:")
    if opts.get("pf_sp", True):
        k.srd(24, W1, S_*F_*2)
        r0 = opts.get("sp_row0", 192)
        e("s_lshr_b32 s60, s52, 5"); e("s_lshl_b32 s60, s60, 2"); e("s_add_u32 s60, s60, s56"); e("s_sub_u32 s60, s60, 28"); e("s_lshl_b32 s60, s60, 3"); e("s_add_u32 s60, s60, s3")
        e("s_lshl_b32 s61, s60, 10"); e(f"s_add_u32 s61, s61, {r0*7168}")
        e(f"s_mov_b32 s62, {((2048-r0)*7 + 127)//128}"); e("a_spl:")
        e("buffer_load_dwordx4 v[240:243], v3, s[24:27], s61 offen"); e(f"s_add_u32 s61, s61, {128*1024}"); e(f"s_waitcnt vmcnt({opts.get('sp_depth', 16)})")
        e("s_sub_u32 s62, s62, 1"); e("s_cmp_lg_u32 s62, 0"); e("s_cbranch_scc1 a_spl")
    e("s_lshr_b32 s59, s52, 5"); e("s_lshl_b32 s59, s59, 2"); e("s_add_u32 s59, s59, s56"); e("s_sub_u32 s59, s59, 28"); e("s_lshl_b32 s59, s59, 1")
    e("s_lshr_b32 s60, s3, 2"); e("s_add_u32 s59, s59, s60")
    e("v_lshlrev_b32 v8, 7, v2"); e("v_add_u32 v9, 0x2000, v8"); e(f"s_mov_b32 s36, {WS_FLAGL:#x}")
    poll_tok(k, [8, 9], 16, "s36", None, 4, sleep=16)
    e("s_lshl_b32 s60, s59, 3"); e("s_and_b32 s61, s3, 3"); e("s_lshl_b32 s61, s61, 1"); e("s_add_u32 s37, s60, s61")
    e("s_lshl_b32 s36, s37, 7"); e(f"s_add_u32 s36, s36, {WS_FLAG1:#x}")
    poll_tok(k, 8, 16, "s36", 3, 4, sleep=opts.get("osleep", 2))
    if stamps: e("s_memrealtime s[84:85]")
    e(f"s_mul_i32 s60, s37, {NQ*1024}"); e(f"s_add_u32 s60, s60, {WS_KVP:#x}")
    nr = 4*NQ; B0 = 16
    for n in range(2*NQ):
        if n and n % 4 == 0: e("s_add_u32 s60, s60, 4096")
        e(f"buffer_load_dwordx4 v[{B0+4*n}:{B0+3+4*n}], v3, s[16:19], s60 offen offset:{(n%4)*1024} sc1")
    for pp in (1,):
        e(f"s_waitcnt vmcnt(0)")
        for r in range(0, nr, 2): e(f"v_pk_add_f32 v[{B0+r}:{B0+r+1}], v[{B0+r}:{B0+r+1}], v[{B0+pp*nr+r}:{B0+pp*nr+r+1}]")
    e(f"s_mul_i32 s60, s3, {NQ*1024}"); e("v_add_u32 v7, s60, v3")
    for qd in range(NQ): e(f"ds_write_b128 v7, v[{B0+4*qd}:{B0+3+4*qd}] offset:{qd*1024}")
    e("s_waitcnt lgkmcnt(0)"); e("s_barrier")
    e("s_and_b32 s60, s3, 3"); e("s_cmp_lg_u32 s60, 0"); e("s_cbranch_scc1 a_end")
    for w_ in range(1, 4):
        for qd in range(NQ): e(f"ds_read_b128 v[{B0+w_*nr+4*qd}:{B0+w_*nr+3+4*qd}], v7 offset:{(w_*NQ+qd)*1024}")
    e("s_waitcnt lgkmcnt(0)")
    for pp in (1, 2, 3):
        for r in range(0, nr, 2): e(f"v_pk_add_f32 v[{B0+r}:{B0+r+1}], v[{B0+r}:{B0+r+1}], v[{B0+pp*nr+r}:{B0+pp*nr+r+1}]")
    FQ, KO_, ZO_ = B0, 64, 80
    for sg in range(2):
        for db in range(2):
            d = KO_ + (sg*2+db)*4
            for fb in range(2):
                a = FQ + ((sg*2+fb)*2+db)*4
                e(f"v_cvt_pk_bf16_f32 v{d+2*fb}, v{a}, v{a+1}"); e(f"v_cvt_pk_bf16_f32 v{d+2*fb+1}, v{a+2}, v{a+3}")
    zq = FQ + 32
    for fbk in range(4):
        for r in range(4):
            e(f"v_mov_b32_dpp v{96+fbk*4+r}, v{zq+r} quad_perm:[{fbk},{fbk},{fbk},{fbk}] row_mask:0xf bank_mask:0xf")
    e("v_and_b32 v6, 3, v2"); e("v_mov_b32 v7, 0x3f803f80")
    e("v_cmp_eq_u32 vcc, 1, v6"); e("s_nop 1"); e("v_cndmask_b32 v7, 0, v7, vcc")
    e("v_cmp_eq_u32 vcc, 0, v6")
    for n in range(8): e(f"v_cvt_pk_bf16_f32 v{ZO_+n}, v{96+2*n}, v{97+2*n}")
    for n in range(8): e(f"v_cndmask_b32 v{ZO_+n}, v7, v{ZO_+n}, vcc")
    e(f"s_mul_i32 s60, s59, 6144"); e(f"s_add_u32 s60, s60, {WS_KVF:#x}"); e("s_add_u32 s61, s60, 4096")
    for n in range(6):
        e(f"buffer_store_dwordx4 v[{KO_+4*n}:{KO_+3+4*n}], v3, s[16:19], s{60 + n//4} offen offset:{(n%4)*1024} sc1")
    e("s_lshl_b32 s61, s59, 7"); e(f"s_add_u32 s61, s61, {WS_FLAG2:#x}")
    e("s_waitcnt vmcnt(0)")
    e(lane0("buffer_store_dwordx2 v[12:13], v14, s[16:19], s61 offen sc1"))
    if stamps: stamp_store(e, (80, 82, 84, 84, 84, 86, 86, 86), WS_STAMP, "a_end")
    e("a_end:")
    return k

def gen_b(opts):
    NS = 6
    c = GemmCfg(256, 2, NS, 32)
    c4 = GemmCfg(128, 4, NS, 32)
    k = Kern("b_kernel", 256, 512, NS*c.SB, vgpr=256, sgpr=100)
    e = k.e
    stamps = opts.get("stamps", False)
    W2, B2 = 72, 74
    e("s_cmp_ge_u32 s2, 256"); e("s_cbranch_scc1 b_end")
    e("s_load_dwordx2 s[70:71], s[0:1], 24")
    e("s_load_dwordx4 s[72:75], s[0:1], 56")
    e("s_load_dwordx2 s[78:79], s[0:1], 80")
    e("s_load_dwordx2 s[6:7], s[0:1], 96")
    if stamps: e("s_memrealtime s[80:81]")
    e("s_mov_b32 s92, s2")
    e("v_lshrrev_b32 v1, 6, v0"); e("v_and_b32 v2, 63, v0"); e("v_lshlrev_b32 v3, 4, v2")
    e("s_lshr_b32 s56, s2, 3")
    e("v_readfirstlane_b32 s3, v1")
    e("s_bfe_u32 s52, s2, 0x20001")
    e("s_lshr_b32 s54, s56, 3")
    e("s_and_b32 s55, s2, 1"); e("s_lshl_b32 s55, s55, 3"); e("s_and_b32 s60, s56, 7"); e("s_add_u32 s55, s55, s60")
    e("s_waitcnt lgkmcnt(0)")
    k.srd(16, WS, WS_SIZE)
    e("s_cmp_lt_u32 s3, 4"); e("s_cbranch_scc1 b_cons")
    k.srd(24, W2, F_*S_*2)
    k.srd(20, WO, D_*D_*2)
    e("s_sub_u32 s3, s3, 4")
    lane_T_dma_off(e, 16, 24, 2, 6, S_*2, 3)
    e("v_add_u32 v25, 128, v24")
    e("s_mul_i32 s28, s52, 144"); e("s_add_u32 s28, s28, s3"); e("s_lshl_b32 s28, s28, 14"); e("s_lshl_b32 s60, s54, 12"); e("s_add_u32 s28, s28, s60")
    e(f"s_add_u32 s28, s28, {WS_UT:#x}")
    e(f"s_mul_i32 s29, s52, {1152*4096}"); e("s_lshl_b32 s60, s55, 8"); e("s_add_u32 s29, s29, s60")
    e("s_lshl_b32 s30, s3, 12"); e("s_lshl_b32 s31, s3, 10"); e(f"s_add_u32 s31, s31, {c.PB}")
    R3 = dict(vP=[3], vT=[24, 25], sP=28, sT=29, srdP=16, srdT=24, sBase=30, sLds=32, sStage=34, sCnt=35, stepP=4*D_*16, stepT=32*S_*2)
    e("s_cmp_eq_u32 s52, 3"); e("s_cbranch_scc1 b_prod1")
    producer_loop(k, c, 36, R3)
    e("s_endpgm")
    e("b_prod1:")
    lane_T_dma_off(e, 16, 28, 2, 6, D_*2, 3)
    for n in range(1, 4): e(f"v_add_u32 v{28+n}, {n*128}, v28")
    e("s_lshl_b32 s36, s3, 15"); e("s_lshl_b32 s60, s55, 11"); e("s_add_u32 s36, s36, s60"); e(f"s_add_u32 s36, s36, {WS_OT:#x}")
    e("s_lshl_b32 s37, s54, 9")
    e("s_lshl_b32 s38, s3, 11"); e("s_lshl_b32 s39, s3, 10"); e(f"s_add_u32 s39, s39, {c4.PB}")
    R4 = dict(vP=[3], vT=[28, 29, 30, 31], sP=36, sT=37, srdP=16, srdT=20, sBase=38, sLds=32, sStage=34, sCnt=35, stepP=4*S_*16, stepT=32*D_*2)
    e("s_mov_b32 s32, s30"); e("s_mov_b32 s33, s31")
    for t in range(4): producer_issue(e, c, R3, ("", ""), "PT", t*c.SB)
    e(f"s_mov_b32 s34, {4*c.SB}"); e("s_add_u32 s32, s34, s38"); e("s_add_u32 s33, s34, s39")
    for t in range(2): producer_issue(e, c4, R4); ring_advance(e, c4, R4)
    e("s_waitcnt vmcnt(30)"); e("s_barrier")
    e("s_mov_b32 s35, 30")
    e("b_l4:")
    e("s_waitcnt vmcnt(24)"); e("s_barrier")
    producer_issue(e, c4, R4); ring_advance(e, c4, R4)
    e("s_sub_u32 s35, s35, 1"); e("s_cmp_lg_u32 s35, 0"); e("s_cbranch_scc1 b_l4")
    for r in range(6):
        e(f"s_waitcnt vmcnt({max(4-r, 0)*6})"); e("s_barrier")
    e("s_endpgm")
    e("b_cons:")
    e("s_lshr_b32 s57, s3, 1"); e("s_and_b32 s58, s3, 1")
    k.srd(24, B2, S_*2)
    k.srd(20, OUT, S_*D_*2)
    e("v_and_b32 v15, 15, v2"); e("v_lshrrev_b32 v14, 4, v2")
    e("s_lshl_b32 s60, s55, 7"); e("s_lshl_b32 s61, s58, 5"); e("s_add_u32 s60, s60, s61"); e("v_add_u32 v8, s60, v15")
    e("v_lshlrev_b32 v9, 2, v8"); e("v_lshlrev_b32 v8, 1, v8")
    e(f"s_mov_b32 s60, {WS_G:#x}")
    GO, BO = 112, 120
    for j in range(4):
        e(f"buffer_load_dword v{GO+2*j}, v9, s[16:19], s60 offen offset:{((j//2)*64 + (j%2)*16)*4}")
        e(f"buffer_load_ushort v{BO+j}, v8, s[24:27], 0 offen offset:{((j//2)*64 + (j%2)*16)*2}")
    acc = [[128 + (i*4+j)*4 for j in range(4)] for i in range(8)]
    e("v_lshlrev_b32 v4, 12, v14"); e("v_lshl_add_u32 v4, v15, 4, v4")
    e("s_lshl_b32 s60, s57, 11"); e("v_add_u32 v4, s60, v4")
    e("v_lshlrev_b32 v5, 11, v14"); e("v_lshl_add_u32 v5, v15, 4, v5")
    lane_T_read_off(e, 16, 10, 2, 12, 13)
    e("s_lshl_b32 s60, s58, 6"); e("v_xor_b32 v6, s60, v10"); e("v_xor_b32 v7, 32, v6")
    e("s_waitcnt vmcnt(0)")
    e("s_cmp_eq_u32 s52, 0"); e("s_cselect_b32 s60, -65536, 0")
    for j in range(4):
        e(f"v_sub_f32 v{GO+2*j}, 1.0, v{GO+2*j}")
        e(f"v_lshlrev_b32 v{BO+j}, 16, v{BO+j}"); e(f"v_and_b32 v{BO+j}, s60, v{BO+j}")
        for q in range(2): e(f"v_mov_b32 v{acc[0][j]+q}, v{BO+j}")
        for i in range(8):
            for q in (0, 2):
                if i or q: e(f"v_mov_b64 v[{acc[i][j]+q}:{acc[i][j]+q+1}], v[{acc[0][j]}:{acc[0][j]+1}]")
    p_off = [(0, i*256) for i in range(8)]
    t_desc = [(j % 2, c.PB + (j//2)*4096) for j in range(4)]
    order = [(i, j, i, j) for i in range(8) for j in range(4)]
    pbufs = [16 + 4*i for i in range(16)]; tbufs = [80 + 4*j for j in range(8)]
    def scale():
        e("s_waitcnt lgkmcnt(0)"); e("s_nop 7")
        for j in range(4):
            for i in range(8):
                for q in (0, 2):
                    a = acc[i][j] + q
                    e(f"v_pk_mul_f32 v[{a}:{a+1}], v[{a}:{a+1}], v[{GO+2*j}:{GO+2*j+1}] op_sel_hi:[1,0]")
    if stamps: e("s_memrealtime s[82:83]")
    e("s_cmp_eq_u32 s52, 3"); e("s_cbranch_scc1 b_cons1")
    consumer_loop(k, c, 36, 16, 8, 4, p_off, t_desc, acc, pbufs, tbufs, [4], [6, 7], True, order, 36, 37, 38, rpg=1, bar_pos=2)
    scale()
    e("s_branch b_exch")
    e("b_cons1:")
    consumer_loop(k, c, 4, 16, 8, 4, p_off, t_desc, acc, pbufs, tbufs, [4], [6, 7], True, order, 36, 37, 38, rpg=1, bar_pos=2)
    slot = 4
    e("s_lshl_b32 s60, s58, 9"); e(f"s_add_u32 s60, s60, {slot*c.SB}"); e("v_add_u32 v4, s60, v5")
    e("s_lshl_b32 s60, s57, 13"); e(f"s_add_u32 s60, s60, {slot*c.SB}"); e("v_add_u32 v10, s60, v10")
    for q in range(1, 4): e(f"v_xor_b32 v{10+q}, {32*q}, v10")
    scale()
    p_off4 = [(0, (j//2)*1024 + (j%2)*256) for j in range(4)]
    t_desc4 = [(i % 4, c4.PB + (i//4)*4096) for i in range(8)]
    order4 = [(j, i, i, j) for i in range(8) for j in range(4)]
    pb4 = [16 + 4*i for i in range(8)]; tb4 = [48 + 4*i for i in range(16)]
    consumer_loop(k, c4, 32, 16, 4, 8, p_off4, t_desc4, acc, pb4, tb4, [4], [10, 11, 12, 13], False, order4, 36, 37, 38, rpg=1, bar_pos=4, slot0=slot)
    e("s_waitcnt lgkmcnt(0)"); e("s_nop 7")
    e("b_exch:")
    if stamps: e("s_memrealtime s[84:85]")
    e("s_lshl_b32 s60, s2, 2"); e("s_add_u32 s60, s60, s3"); e(f"s_mul_i32 s46, s60, {24*1024}"); e(f"s_add_u32 s46, s46, {WS_PART:#x}")
    e("s_lshl_b32 s40, s2, 10"); e("s_lshl_b32 s41, s3, 7"); e("s_add_u32 s40, s40, s41"); e(f"s_add_u32 s40, s40, {WS_FLAG:#x}")
    e("v_mov_b32 v8, 0"); e("v_mov_b32 v9, 1")
    for kq in range(4):
        lab = f"b_ex{kq}"
        if kq < 3: e(f"s_cmp_lg_u32 s52, {kq}"); e(f"s_cbranch_scc1 b_ex{kq+1}_s")
        others = [o for o in range(4) if o != kq]
        for n, o in enumerate(others):
            for i in range(8):
                if i % 4 == 0: e(f"s_add_u32 s47, s46, {n*8192 + (i//4)*4096}")
                a = acc[i][o]
                e(f"buffer_store_dwordx4 v[{a}:{a+3}], v3, s[16:19], s47 offen offset:{(i%4)*1024} sc1")
        e("v_mov_b32 v10, 0")
        for n, o in enumerate(others):
            e(f"s_add_u32 s47, s40, {((o-kq)*2*1024) & 0xffffffff:#x}"); e(f"v_writelane_b32 v10, s47, {n}")
        e("s_waitcnt vmcnt(0)")
        e(lane0("buffer_store_dword v9, v8, s[16:19], s40 offen sc1"))
        e("s_mov_b64 exec, 7"); e("s_mov_b32 s63, 0x8000")
        e(f"{lab}_p:")
        e("buffer_load_dword v11, v10, s[16:19], 0 offen sc1"); e("s_waitcnt vmcnt(0)")
        e("v_cmp_eq_u32 vcc, 0, v11")
        e("s_sub_u32 s63, s63, 1"); e(f"s_cbranch_scc1 {lab}_g"); e(f"s_cbranch_vccz {lab}_g"); e("s_sleep 1"); e(f"s_branch {lab}_p")
        e(f"{lab}_g:")
        e("s_mov_b64 exec, -1")
        for n, o in enumerate(others):
            idx = kq - (kq > o)
            for i in range(8):
                if i % 4 == 0: e(f"s_add_u32 s47, s46, {((o-kq)*2*4*24*1024 + idx*8192 + (i//4)*4096) & 0xffffffff:#x}")
                d = 16 + (n*8+i)*4
                e(f"buffer_load_dwordx4 v[{d}:{d+3}], v3, s[16:19], s47 offen offset:{(i%4)*1024} sc1")
        for n in range(3):
            for i in range(8):
                e(f"s_waitcnt vmcnt({23 - n*8 - i})")
                a = acc[i][kq]; d = 16 + (n*8+i)*4
                for q in (0, 2): e(f"v_pk_add_f32 v[{a+q}:{a+q+1}], v[{a+q}:{a+q+1}], v[{d+q}:{d+q+1}]")
        for i in range(8):
            a = acc[i][kq]; o = 16 + i*2
            e(f"v_cvt_pk_bf16_f32 v{o}, v{a}, v{a+1}"); e(f"v_cvt_pk_bf16_f32 v{o+1}, v{a+2}, v{a+3}")
        e(f"s_mov_b32 s61, {((kq//2)*64 + (kq%2)*16)*2048}")
        if kq < 3: e("s_branch b_fin")
        if kq < 3: e(f"b_ex{kq+1}_s:")
    e("b_fin:")
    e("v_and_b32 v8, 15, v2"); e("v_lshlrev_b32 v8, 11, v8"); e("v_bfe_u32 v9, v2, 4, 1"); e("v_lshl_add_u32 v8, v9, 5, v8"); e("v_lshrrev_b32 v9, 5, v2"); e("v_lshl_add_u32 v8, v9, 4, v8")
    e("s_lshl_b32 s60, s55, 2"); e("s_add_u32 s60, s60, s58"); e("s_lshl_b32 s60, s60, 16"); e("s_add_u32 s60, s60, s61")
    e("s_lshl_b32 s61, s54, 9"); e("s_add_u32 s60, s60, s61"); e("s_lshl_b32 s61, s57, 8"); e("s_add_u32 s60, s60, s61")
    for pr in range(4):
        o = 16 + pr*4
        e(f"v_permlane16_swap_b32 v{o}, v{o+2}"); e(f"v_permlane16_swap_b32 v{o+1}, v{o+3}")
    for pr in range(4):
        o = 16 + pr*4
        e(f"buffer_store_dwordx4 v[{o}:{o+3}], v8, s[20:23], s60 offen offset:{pr*64}")
    if stamps: stamp_store(e, (80, 82, 84, 86, 86, 86, 86, 86), WS_STAMP + 0x10000, "b_end")
    e("b_end:")
    return k

def gen_b2(opts):
    NS = opts.get("NSb", 5)
    c = GemmCfg(128, 2, NS, 64)
    k = Kern("b_kernel", 256, 512, NS*c.SB, vgpr=160, sgpr=100)
    e = k.e
    stamps = opts.get("stamps", False)
    NT = " nt" if opts.get("nt", False) else ""
    NTT = " nt" if opts.get("ntt", False) else ""
    DPF = 14
    W2, B2 = 72, 74
    e("s_cmp_ge_u32 s2, 256"); e("s_cbranch_scc1 b_end")
    e("s_load_dwordx2 s[70:71], s[0:1], 24")
    e("s_load_dwordx4 s[72:75], s[0:1], 56")
    e("s_load_dwordx2 s[78:79], s[0:1], 80")
    e("s_load_dwordx2 s[6:7], s[0:1], 96")
    if stamps: e("s_memrealtime s[80:81]")
    e("s_mov_b32 s92, s2")
    e("v_lshrrev_b32 v1, 6, v0"); e("v_and_b32 v2, 63, v0"); e("v_lshlrev_b32 v3, 4, v2")
    e("s_lshr_b32 s56, s2, 3")
    e("v_readfirstlane_b32 s3, v1")
    e("s_and_b32 s52, s2, 1")
    if opts.get("bmap", "8d4s") == "8d4s":
        e("s_lshr_b32 s54, s56, 2")
        e("s_bfe_u32 s55, s2, 0x20001"); e("s_lshl_b32 s55, s55, 2"); e("s_and_b32 s60, s56, 3"); e("s_add_u32 s55, s55, s60")
    else:
        e("s_bfe_u32 s54, s2, 0x10001"); e("s_lshl_b32 s54, s54, 2"); e("s_and_b32 s60, s56, 3"); e("s_add_u32 s54, s54, s60")
        e("s_bfe_u32 s55, s2, 0x10002"); e("s_lshl_b32 s55, s55, 3"); e("s_lshr_b32 s60, s56, 2"); e("s_add_u32 s55, s55, s60")
    e("s_waitcnt lgkmcnt(0)")
    k.srd(16, WS, WS_SIZE)
    e("s_cmp_lt_u32 s3, 4"); e("s_cbranch_scc1 b_cons")
    k.srd(24, W2, F_*S_*2)
    e(f"s_mul_i32 s29, s52, {2304*4096}"); e("s_lshl_b32 s60, s55, 8"); e("s_add_u32 s29, s29, s60")
    nl = opts.get("nl", 4); nsl = 4 // nl
    if nl == 2: e("s_cmp_ge_u32 s3, 6"); e("s_cbranch_scc1 b_end")
    k.srd(20, WO, D_*D_*2)
    e("s_sub_u32 s3, s3, 4")
    for n in range(1, 2*nsl):
        sl, cg = divmod(n, 2); e(f"v_add_u32 v{8+n}, {(cg*4+sl*2)*D_*16}, v3"); e(f"v_add_u32 v{12+n}, {(cg*4+sl*2)*S_*16}, v3")
    lane_T_dma_off(e, 16, 24, 2, 6, S_*2, 3)
    for n in range(1, 4*nsl):
        sl, r = divmod(n, 4); sg, kg = divmod(r, 2); e(f"v_add_u32 v{24+n}, {sg*128 + kg*32*S_*2 + sl*16*S_*2}, v24")
    e("s_mul_i32 s28, s52, 288"); e("s_add_u32 s28, s28, s3"); e("s_lshl_b32 s28, s28, 14"); e("s_lshl_b32 s60, s54, 11"); e("s_add_u32 s28, s28, s60")
    e(f"s_add_u32 s28, s28, {WS_UT:#x}")
    e("s_lshl_b32 s30, s3, 11")
    e("s_lshl_b32 s31, s3, 10"); e(f"s_add_u32 s31, s31, {c.PB}")
    R3 = dict(nsl=nsl, vP=[3, 9, 10, 11], vT=list(range(24, 32)), sP=28, sT=29, srdP=16, srdT=24, sBase=30, sLds=32, sStage=34, sCnt=35,
              stepP=8*D_*16, stepT=64*S_*2, flags=("", NT))
    e("s_cmp_eq_u32 s52, 0"); e("s_cbranch_scc0 b_prod1")
    producer_loop(k, c, 36, R3)
    e("s_endpgm")
    e("b_prod1:")
    lane_T_dma_off(e, 16, 32, 2, 6, D_*2, 3)
    for n in range(1, 4*nsl):
        sl, r = divmod(n, 4); sg, kg = divmod(r, 2); e(f"v_add_u32 v{32+n}, {sg*128 + kg*32*D_*2 + sl*16*D_*2}, v32")
    e("s_lshl_b32 s36, s3, 15"); e("s_lshl_b32 s60, s55, 11"); e("s_add_u32 s36, s36, s60"); e(f"s_add_u32 s36, s36, {WS_OT:#x}")
    e("s_lshl_b32 s37, s54, 8")
    R4 = dict(R3, vP=[3, 13, 14, 15], vT=list(range(32, 40)), sP=36, sT=37, srdT=20, stepP=8*S_*16, stepT=64*D_*2, flags=("", ""))
    producer_loop(k, c, 36, [(20, R3), (16, R4)])
    e("s_endpgm")
    e("b_cons:")
    e("s_lshr_b32 s57, s3, 1"); e("s_and_b32 s58, s3, 1")
    k.srd(24, B2, S_*2)
    k.srd(20, OUT, S_*D_*2)
    e("v_and_b32 v15, 15, v2"); e("v_lshrrev_b32 v14, 4, v2")
    e("s_lshl_b32 s60, s55, 7"); e("s_lshl_b32 s61, s58, 5"); e("s_add_u32 s60, s60, s61"); e("v_add_u32 v8, s60, v15")
    e("v_lshlrev_b32 v9, 2, v8"); e("v_lshlrev_b32 v8, 1, v8")
    e(f"s_mov_b32 s60, {WS_G:#x}")
    GO, BO = 80, 88
    for j in range(4):
        e(f"buffer_load_dword v{GO+2*j}, v9, s[16:19], s60 offen offset:{((j//2)*64 + (j%2)*16)*4}")
        e(f"buffer_load_ushort v{BO+j}, v8, s[24:27], 0 offen offset:{((j//2)*64 + (j%2)*16)*2}")
    acc = [[96 + (i*4+j)*4 for j in range(4)] for i in range(4)]
    e("v_lshlrev_b32 v4, 11, v14"); e("v_lshl_add_u32 v4, v15, 4, v4")
    e("v_mov_b32 v5, v4")
    e("s_lshl_b32 s60, s57, 10"); e("v_add_u32 v4, s60, v4")
    lane_T_read_off(e, 16, 10, 2, 12, 13)
    e("s_lshl_b32 s60, s58, 6"); e("v_xor_b32 v6, s60, v10"); e("v_xor_b32 v7, 32, v6")
    e("s_waitcnt vmcnt(0)")
    e("s_cmp_eq_u32 s52, 0"); e("s_cselect_b32 s60, -65536, 0")
    for j in range(4):
        e(f"v_sub_f32 v{GO+2*j}, 1.0, v{GO+2*j}")
        e(f"v_lshlrev_b32 v{BO+j}, 16, v{BO+j}"); e(f"v_and_b32 v{BO+j}, s60, v{BO+j}")
        for i in range(4):
            for q in range(4): e(f"v_mov_b32 v{acc[i][j]+q}, v{BO+j}")
    p_off = [(0, kk*8192 + i*256) for kk in range(2) for i in range(4)]
    t_desc = [(j % 2, c.PB + (j//2)*8192 + kk*4096) for kk in range(2) for j in range(4)]
    order = [(kk*4+i, kk*4+j, i, j) for kk in range(2) for i in range(4) for j in range(4)]
    pbufs = [16 + 4*i for i in range(8)]; tbufs = [48 + 4*j for j in range(8)]
    def scale():
        e("s_waitcnt lgkmcnt(0)"); e("s_nop 7")
        for j in range(4):
            for i in range(4):
                for q in (0, 2):
                    a = acc[i][j] + q
                    e(f"v_pk_mul_f32 v[{a}:{a+1}], v[{a}:{a+1}], v[{GO+2*j}:{GO+2*j+1}] op_sel_hi:[1,0]")
    if stamps: e("s_memrealtime s[82:83]")
    e("s_cmp_eq_u32 s52, 0"); e("s_cbranch_scc0 b_cons1")
    consumer_loop(k, c, 36, 16, 8, 8, p_off, t_desc, acc, pbufs, tbufs, [4], [6, 7], True, order, 36, 37, 38, rpg=1, bar_pos=18)
    scale()
    e("s_branch b_exch")
    e("b_cons1:")
    consumer_loop(k, c, 20, 16, 8, 8, p_off, t_desc, acc, pbufs, tbufs, [4], [6, 7], True, order, 36, 37, 38, rpg=1, bar_pos=18)
    slot = 20 % NS
    e("s_lshl_b32 s60, s58, 9"); e(f"s_add_u32 s60, s60, {slot*c.SB}"); e("v_add_u32 v4, s60, v5")
    e("s_lshl_b32 s60, s57, 13"); e(f"s_add_u32 s60, s60, {slot*c.SB}"); e("v_add_u32 v10, s60, v10")
    for q in range(1, 4): e(f"v_xor_b32 v{10+q}, {32*q}, v10")
    scale()
    p_off4 = [(0, kk*8192 + (j//2)*1024 + (j%2)*256) for kk in range(2) for j in range(4)]
    t_desc4 = [(i, c.PB + kk*4096) for kk in range(2) for i in range(4)]
    order4 = [(kk*4+j, kk*4+i, i, j) for kk in range(2) for j in range(4) for i in range(4)]
    consumer_loop(k, c, 16, 16, 8, 8, p_off4, t_desc4, acc, pbufs, tbufs, [4], [10, 11, 12, 13], False, order4, 36, 37, 38, rpg=1, bar_pos=18, slot0=slot)
    e("s_waitcnt lgkmcnt(0)"); e("s_nop 7")
    e("b_exch:")
    if stamps: e("s_memrealtime s[84:85]")
    e("s_lshl_b32 s60, s2, 2"); e("s_add_u32 s60, s60, s3"); e("s_lshl_b32 s60, s60, 13"); e(f"s_add_u32 s60, s60, {gen2.WS_PART:#x}")
    e("s_add_u32 s61, s60, 4096")
    e("s_xor_b32 s62, s60, 0x8000"); e("s_add_u32 s63, s62, 4096")
    e("s_lshl_b32 s40, s2, 10"); e("s_lshl_b32 s41, s3, 7"); e("s_add_u32 s40, s40, s41"); e(f"s_add_u32 s40, s40, {WS_FLAG:#x}"); e("s_xor_b32 s41, s40, 0x400")
    e("v_mov_b32 v8, 0"); e("v_mov_b32 v9, 1")
    xb = opts.get("xbf16", False)
    def exch(hk, lab):
        snd = [acc[i][2*(1-hk)+jj] for jj in range(2) for i in range(4)]
        keep = [acc[i][2*hk+jj] for jj in range(2) for i in range(4)]
        if xb:
            for n, a in enumerate(snd):
                e(f"v_cvt_pk_bf16_f32 v{64+2*n}, v{a}, v{a+1}"); e(f"v_cvt_pk_bf16_f32 v{65+2*n}, v{a+2}, v{a+3}")
                if n % 2: e(f"buffer_store_dwordx4 v[{62+2*n}:{65+2*n}], v3, s[16:19], s60 offen offset:{(n//2)*1024} sc1")
        else:
            for n, a in enumerate(snd):
                e(f"buffer_store_dwordx4 v[{a}:{a+3}], v3, s[16:19], s{60 + n//4} offen offset:{(n%4)*1024} sc1")
        e("s_waitcnt vmcnt(0)")
        e(lane0("buffer_store_dword v9, v8, s[16:19], s40 offen sc1"))
        e("buffer_load_dword v10, v8, s[16:19], s41 offen sc1"); e("s_waitcnt vmcnt(0)")
        spin_until(k, 10, 8, 16, "s41", 1, 42, sleep=1)
        if xb:
            for n in range(4):
                e(f"buffer_load_dwordx4 v[{16+4*n}:{19+4*n}], v3, s[16:19], s62 offen offset:{n*1024} sc1")
            e("s_mov_b32 s63, 0xffff0000")
            for n, a in enumerate(keep):
                if n % 2 == 0: e(f"s_waitcnt vmcnt({3-n//2})")
                for h in range(2):
                    src = 16 + 2*n + h
                    e(f"v_lshlrev_b32 v32, 16, v{src}"); e(f"v_and_b32 v33, s63, v{src}")
                    e(f"v_pk_add_f32 v[{a+2*h}:{a+2*h+1}], v[{a+2*h}:{a+2*h+1}], v[32:33]")
        else:
            for n in range(8):
                e(f"buffer_load_dwordx4 v[{16+4*n}:{19+4*n}], v3, s[16:19], s{62 + n//4} offen offset:{(n%4)*1024} sc1")
            for n, a in enumerate(keep):
                e(f"s_waitcnt vmcnt({7-n})")
                for q in (0, 2): e(f"v_pk_add_f32 v[{a+q}:{a+q+1}], v[{a+q}:{a+q+1}], v[{16+4*n+q}:{17+4*n+q}]")
        for i in range(4):
            for jj in range(2):
                a = acc[i][2*hk+jj]; o = 48 + i*4 + jj*2
                e(f"v_cvt_pk_bf16_f32 v{o}, v{a}, v{a+1}"); e(f"v_cvt_pk_bf16_f32 v{o+1}, v{a+2}, v{a+3}")
    e("s_cmp_eq_u32 s52, 0"); e("s_cbranch_scc0 b_ex1")
    exch(0, "b_ex0")
    e("s_branch b_fin")
    e("b_ex1:")
    exch(1, "b_ex1")
    e("b_fin:")
    e("v_and_b32 v8, 31, v2"); e("v_lshlrev_b32 v8, 11, v8"); e("v_lshrrev_b32 v9, 5, v2"); e("v_lshl_add_u32 v8, v9, 4, v8")
    e("s_lshl_b32 s60, s55, 2"); e("s_lshl_b32 s61, s52, 1"); e("s_add_u32 s60, s60, s61"); e("s_add_u32 s60, s60, s58"); e("s_lshl_b32 s60, s60, 16")
    e("s_lshl_b32 s61, s54, 8"); e("s_add_u32 s60, s60, s61"); e("s_lshl_b32 s61, s57, 7"); e("s_add_u32 s60, s60, s61")
    for i in range(4):
        o = 48 + i*4
        e(f"v_permlane16_swap_b32 v{o}, v{o+2}"); e(f"v_permlane16_swap_b32 v{o+1}, v{o+3}")
    for i in range(4):
        o = 48 + i*4
        e(f"buffer_store_dwordx4 v[{o}:{o+3}], v8, s[20:23], s60 offen offset:{i*32}")
    if stamps:
        e("s_waitcnt vmcnt(0)")
        e("s_memrealtime s[86:87]"); e("s_waitcnt lgkmcnt(0)")
        for n, sr in enumerate((80, 82, 84, 86)): e(f"v_mov_b32 v{8+n}, s{sr}")
        e("s_lshl_b32 s41, s92, 5"); e(f"s_add_u32 s41, s41, {WS_STAMP+0x10000:#x}"); e("v_mov_b32 v7, s41")
        e("v_cmp_eq_u32 vcc, 0, v0"); e("s_and_saveexec_b64 s[42:43], vcc"); e(f"s_cbranch_execz b_end")
        e(f"global_store_dwordx4 v7, v[8:11], s[{WS}:{WS+1}]")
    e("b_end:")
    return k

if __name__ == "__main__":
    out = sys.argv[1]
    opts = eval("dict(" + (sys.argv[2] if len(sys.argv) > 2 else "") + ")")
    write_file(out, [gen_a(opts), gen_b2(opts)])
```

```python
import sys
from gen import *
import gen2, gen3, gen4
from gen2 import spin_until, softmax_units, DBG, WS, X, WQKV, WPHI, WO, W1, B1, GW, OUT, WS_KVP, NQ
from gen3 import Stream, Work, WS_KVF
from gen4 import lane0, HP

WS_SIZE = 0x4000000
WS_FLAGL = 0x14E0000
WS_FLAG1 = 0x14C0000
WS_FLAG2 = 0x14D0000
WS_PART = 0x2000000
TOK = 44

def poll_tok(k, vaddr, srd, soff, nl_mask, vd, sleep=4, first_loaded=False):
    e = k.e
    L = k.lab("pt"); Lok = k.lab("ptok")
    if nl_mask is not None: e(f"s_mov_b64 exec, {nl_mask:#x}")
    e("s_mov_b32 s63, 0x8000")
    e(f"{L}:")
    vs = vaddr if isinstance(vaddr, list) else [vaddr]
    for n, va in enumerate(vs):
        e(f"buffer_load_dwordx2 v[{vd+2*n}:{vd+1+2*n}], v{va}, s[{srd}:{srd+3}], {soff} offen sc1")
    e("s_waitcnt vmcnt(0)")
    e(f"v_cmp_ne_u64 vcc, s[{TOK}:{TOK+1}], v[{vd}:{vd+1}]")
    for n in range(1, len(vs)):
        e(f"v_cmp_ne_u64 s[60:61], s[{TOK}:{TOK+1}], v[{vd+2*n}:{vd+1+2*n}]"); e("s_or_b64 vcc, vcc, s[60:61]")
    e("s_sub_u32 s63, s63, 1"); e(f"s_cbranch_scc1 {Lok}")
    e(f"s_cbranch_vccz {Lok}")
    e(f"s_sleep {sleep}")
    e(f"s_branch {L}")
    e(f"{Lok}:")
    if nl_mask is not None: e("s_mov_b64 exec, -1")

def get_token(k, vz, vd):
    e = k.e
    L = k.lab("tk"); Lok = k.lab("tkok")
    e("s_mov_b32 s63, 0x8000")
    e(f"{L}:")
    e(f"buffer_load_dwordx2 v[{vd}:{vd+1}], v{vz}, s[40:43], 0 offen sc1"); e("s_waitcnt vmcnt(0)")
    e(f"v_readfirstlane_b32 s{TOK}, v{vd}"); e(f"v_readfirstlane_b32 s{TOK+1}, v{vd+1}")
    e("s_sub_u32 s63, s63, 1"); e(f"s_cbranch_scc1 {Lok}")
    e(f"s_cmp_eq_u32 s{TOK}, 0"); e(f"s_cbranch_scc1 {L}")
    e(f"{Lok}:")

def stamp_store(e, regs, base, endlab, cond="v0"):
    e("s_waitcnt vmcnt(0)")
    e("s_memrealtime s[86:87]"); e("s_waitcnt lgkmcnt(0)")
    for n, sr in enumerate(regs): e(f"v_mov_b32 v{8+n}, s{sr}")
    e("s_lshl_b32 s41, s92, 5"); e(f"s_add_u32 s41, s41, {base:#x}"); e("v_mov_b32 v7, s41")
    e(f"v_cmp_eq_u32 vcc, 0, {cond}"); e("s_and_saveexec_b64 s[42:43], vcc"); e(f"s_cbranch_execz {endlab}")
    e(f"global_store_dwordx4 v7, v[8:11], s[{WS}:{WS+1}]")
    e(f"global_store_dwordx4 v7, v[12:15], s[{WS}:{WS+1}] offset:16")

def gen_a(opts):
    c2 = GemmCfg(256, 2, 6, 32)
    k = Kern("a_kernel", 256, 512, 160*1024, vgpr=256, sgpr=100)
    e = k.e
    stamps = opts.get("stamps", False)
    pf = opts.get("pf", True)
    e("s_cmp_ge_u32 s2, 256"); e("s_cbranch_scc1 a_end")
    e("s_load_dwordx8 s[64:71], s[0:1], 0")
    e("s_load_dwordx4 s[72:75], s[0:1], 40")
    e("s_load_dwordx4 s[76:79], s[0:1], 72")
    e("s_load_dwordx4 s[4:7], s[0:1], 88")
    e("s_load_dwordx2 s[12:13], s[0:1], 56")
    e(f"s_memrealtime s[{TOK}:{TOK+1}]")
    e("s_mov_b32 s92, s2")
    e("v_lshrrev_b32 v1, 6, v0"); e("v_and_b32 v2, 63, v0"); e("v_lshlrev_b32 v3, 4, v2")
    e("s_lshr_b32 s56, s2, 3"); e("s_and_b32 s57, s2, 7")
    e("v_readfirstlane_b32 s3, v1")
    e("v_mov_b32 v14, 0")
    e("s_waitcnt lgkmcnt(0)")
    if stamps: e(f"s_mov_b32 s80, s{TOK}")
    k.srd(16, WS, WS_SIZE)
    k.srd(40, DBG, 256)
    k.srd(20, X, S_*D_*2)
    e("s_lshl_b32 s60, s2, 3"); e("s_add_u32 s60, s60, s3"); e("s_cmp_lg_u32 s60, 7"); e("s_cbranch_scc1 a_ntp")
    e(f"s_or_b32 s{TOK}, s{TOK}, 1"); e(f"v_mov_b32 v4, s{TOK}"); e(f"v_mov_b32 v5, s{TOK+1}")
    e(lane0("buffer_store_dwordx2 v[4:5], v14, s[40:43], 0 offen sc1"))
    e("a_ntp:")
    e("s_lshr_b32 s58, s57, 1")
    e("s_and_b32 s60, s57, 1"); e("s_cmp_eq_u32 s60, 1"); e("s_cbranch_scc1 a_bchain")
    e("s_and_b32 s52, s56, 7")
    e("s_lshl_b32 s53, s58, 2"); e("s_lshr_b32 s60, s56, 3"); e("s_add_u32 s53, s53, s60")
    e("s_cmp_lt_u32 s3, 4"); e("s_cbranch_scc1 a_g1c")
    st = Stream(k)
    k.srd(24, WQKV, D_*3*D_*2)
    e("s_sub_u32 s3, s3, 4")
    e("v_lshrrev_b32 v7, 3, v2")
    e("s_lshl_b32 s60, s3, 6"); e("v_add_u32 v4, s60, v7"); e("v_lshlrev_b32 v4, 11, v4")
    e("v_lshrrev_b32 v5, 1, v7"); e("v_xor_b32 v5, v5, v2"); e("v_and_b32 v5, 7, v5")
    e("v_lshl_add_u32 v16, v5, 4, v4")
    e("v_xor_b32 v17, 64, v16"); e(f"v_add_u32 v17, {8*2048}, v17")
    for n in range(2, 8): e(f"v_add_u32 v{16+n}, {(n//2)*16*2048}, v{16+n%2}")
    lane_T_dma_off(e, 16, 24, 2, 6, 6144, 3)
    for n in (1, 2): e(f"v_add_u32 v{24+n}, {n*2048}, v24")
    e("s_lshl_b32 s9, s52, 19"); e("s_lshl_b32 s10, s53, 7")
    e("s_lshl_b32 s30, s3, 13"); e("s_lshl_b32 s31, s3, 10"); e(f"s_add_u32 s31, s31, {96*1024}")
    def issueP(n, half):
        if half == 0:
            st.e(f"s_add_u32 s11, s52, {n}\ns_and_b32 s11, s11, 15\ns_lshl_b32 s11, s11, 7\ns_add_u32 s28, s9, s11")
        for rb in range(4*half, 4*half+4):
            st.e(f"s_add_u32 m0, s30, {(n % 3)*32768 + rb*1024}\ns_nop 0\nbuffer_load_dwordx4 v{16+rb}, s[20:23], s28 offen lds")
        st.mark(f"P{n}")
    def issueT(t):
        st.e(f"s_lshl_b32 s11, s52, 1\ns_add_u32 s11, s11, {t}\ns_and_b32 s11, s11, 31\ns_mul_i32 s11, s11, {32*6144}\ns_add_u32 s29, s10, s11")
        for sg in range(3):
            st.e(f"s_add_u32 m0, s31, {(t % 5)*12288 + sg*4096}\ns_nop 0\nbuffer_load_dwordx4 v{24+sg}, s[24:27], s29 offen lds")
        st.mark(f"T{t}")
    issueP(0, 0); issueP(0, 1); issueT(0); st.mark("S0"); issueT(1); issueP(1, 0); issueP(1, 1); issueT(2); issueT(3); issueP(2, 0); issueP(2, 1); issueT(4)
    k.srd(48, WPHI, 32*2048)
    e("s_lshl_b32 s60, s53, 12"); e("s_lshl_b32 s61, s3, 10"); e("s_add_u32 s60, s60, s61"); e(f"s_add_u32 m0, s61, {156*1024}"); e("s_nop 0")
    st.e("buffer_load_dwordx4 v3, s[48:51], s60 offen lds")
    st.e("@wait S0"); e("s_barrier")
    for t in range(32):
        if t + 1 < 32:
            st.e(f"@wait T{t+1}")
            if t % 2 == 1: st.e(f"@wait P{(t+1)//2}")
        e("s_barrier")
        if t + 5 < 32: issueT(t + 5)
        m = (t - 1) // 2 + 3
        if t >= 1 and m < 16: issueP(m, (t + 1) % 2)
    e("s_lshr_b32 s54, s3, 1"); e("s_and_b32 s55, s3, 1"); e("s_lshl_b32 s59, s53, 1"); e("s_add_u32 s59, s59, s55")
    e("s_mul_i32 s60, s3, 12288"); e("v_add_u32 v8, s60, v3"); e(f"v_mov_b32 v9, {152*1024}")
    e("s_add_u32 s3, s3, 4"); e("s_mov_b32 s35, 1"); e("s_mov_b64 s[8:9], s[12:13]")
    e("s_barrier")
    e("ds_read_b64 v[12:13], v9")
    for n in range(4):
        for part in range(3): e(f"ds_read_b128 v[{64+24*n+4*part}:{64+24*n+4*part+3}], v8 offset:{(n*3+part)*1024}")
    e("s_waitcnt lgkmcnt(0)")
    e(f"v_readfirstlane_b32 s{TOK}, v12"); e(f"v_readfirstlane_b32 s{TOK+1}, v13")
    e("s_branch a_epi")
    e("a_g1c:")
    e("s_lshr_b32 s54, s3, 1"); e("s_and_b32 s55, s3, 1")
    e("s_lshl_b32 s59, s53, 1"); e("s_add_u32 s59, s59, s55")
    e("s_mov_b64 s[8:9], s[12:13]")
    e("v_lshlrev_b32 v4, 7, v2"); e("s_lshl_b32 s60, s2, 10"); e(f"s_add_u32 s60, s60, {WS_FLAG:#x}")
    e("s_mov_b64 exec, 15"); e("buffer_store_dword v14, v4, s[16:19], s60 offen sc1"); e("s_mov_b64 exec, -1")
    acc = [[64 + (i*6+j)*4 for j in range(6)] for i in range(8)]
    for r in range(64, 256, 2): e(f"v_mov_b64 v[{r}:{r+1}], 0")
    e("v_and_b32 v8, 15, v2"); e("v_lshrrev_b32 v9, 4, v2")
    e("v_lshrrev_b32 v10, 1, v8"); e("v_xor_b32 v10, v10, v9")
    e("s_lshl_b32 s60, s54, 7"); e("v_add_u32 v4, s60, v8"); e("v_lshlrev_b32 v4, 7, v4"); e("v_lshl_add_u32 v4, v10, 4, v4")
    lane_T_read_off(e, 16, 6, 2, 8, 9)
    e("s_lshl_b32 s60, s55, 6"); e("v_xor_b32 v6, s60, v6"); e(f"v_add_u32 v6, {96*1024}, v6"); e("v_xor_b32 v7, 32, v6")
    get_token(k, 14, 12)
    p_off = [(0, i*2048) for i in range(8)]
    t_desc = [(j % 2, (j//2)*4096) for j in range(6)]
    order = [(2*a+b, j, 2*a+b, j) for a in range(4) for j in range(6) for b in range(2)]
    pbufs = [16 + 4*i for i in range(4)]; tbufs = [32 + 4*j for j in range(8)]
    ringT = ["s_cmp_eq_u32 s36, 4", "s_cselect_b32 s37, s39, 12288", "s_cselect_b32 s36, -1, s36", "s_add_u32 s36, s36, 1"]
    ringP = ["s_cmp_eq_u32 s32, 2", "s_cselect_b32 s33, s34, 0x8000", "s_cselect_b32 s32, -1, s32", "s_add_u32 s32, s32, 1"]
    salu = lambda s: ringT + (ringP if s % 2 else [])
    valu = lambda s: ["v_add_u32 v6, s37, v6", "v_add_u32 v7, s37, v7", "v_xor_b32 v4, 64, v4"] + (["v_add_u32 v4, s33, v4"] if s % 2 else [])
    tail = ["s_sub_u32 s38, s38, 1", "s_cmp_lg_u32 s38, 0"]
    ahead, body, U = build_consumer(None, 16, 8, 6, p_off, t_desc, acc, pbufs, tbufs, [4], [6, 7], lambda i, j: j >= 4, order,
                                    opts.get("bar1", 38), 1, salu, valu, tail, minU=2, salu_at=0)
    e(f"s_mov_b32 s39, {(-4*12288) & 0xffffffff:#x}"); e(f"s_mov_b32 s34, {(-2*32768) & 0xffffffff:#x}"); e("s_mov_b32 s36, 0"); e("s_mov_b32 s32, 0")
    if stamps: e("s_memrealtime s[82:83]")
    e("s_barrier")
    for l in ahead: e(l)
    e("s_waitcnt lgkmcnt(0)")
    e(f"s_mov_b32 s38, {32//U}"); e(".p2align 3"); e("a_g1loop:")
    for l in body: e(l)
    e("s_cbranch_scc1 a_g1loop")
    if stamps: e("s_memrealtime s[84:85]")
    e("s_waitcnt lgkmcnt(0)")
    Bk = lambda sb: 64 + 24*sb
    def cvt_units(sbs):
        for sb in sbs:
            B = Bk(sb)
            for n in range(8): e(f"v_cvt_pk_bf16_f32 v{B+n}, v{B+2*n}, v{B+2*n+1}")
        for p in sorted(set(sb//2 for sb in sbs)):
            for db in range(2):
                d = Bk(2*p+db) + 8
                for h in range(2):
                    a = Bk(2*p+h) + 16 + 4*db
                    e(f"v_cvt_pk_bf16_f32 v{d+2*h}, v{a}, v{a+1}"); e(f"v_cvt_pk_bf16_f32 v{d+2*h+1}, v{a+2}, v{a+3}")
    e("s_mul_i32 s60, s3, 12288"); e("v_add_u32 v8, s60, v3"); e(f"v_mov_b32 v9, {152*1024}")
    e("ds_write_b64 v9, v[12:13]")
    e("s_nop 4")
    cvt_units([4, 5, 6, 7])
    for n in range(4):
        for part in range(3): e(f"ds_write_b128 v8, v[{Bk(4+n)+4*part}:{Bk(4+n)+4*part+3}] offset:{(n*3+part)*1024}")
    cvt_units([0, 1, 2, 3])
    e("s_mov_b32 s35, 0")
    e("s_waitcnt lgkmcnt(0)"); e("s_barrier")
    if opts.get("estamp"): e("s_memrealtime s[82:83]")
    e("a_epi:")
    holes = [Bk(sb) + 12 + 4*n for sb in range(4) for n in range(3)]
    KVq = holes[0:9]; WPq = holes[9:11]
    PK, ST, EP, EF, ZB = 16, 48, 160, 224, 240
    e("v_lshrrev_b32 v8, 2, v2"); e("v_lshlrev_b32 v8, 6, v8"); e("v_and_b32 v9, 3, v2"); e("v_lshl_add_u32 v8, v9, 3, v8")
    e("s_lshl_b32 s60, s55, 11"); e(f"s_add_u32 s60, s60, {156*1024}"); e("v_add_u32 v8, s60, v8")
    for fb in range(2):
        for t in range(2): e(f"ds_read_b64_tr_b16 v[{WPq[fb]+2*t}:{WPq[fb]+2*t+1}], v8 offset:{t*1024 + fb*32}")
    e(f"s_mov_b32 s62, {f32(LOG2E)}"); e(f"s_mov_b32 s63, {f32(LOG2E)}")
    e("v_and_b32 v8, 15, v2"); e("v_lshrrev_b32 v9, 4, v2"); e("s_mul_i32 s34, s3, 10240"); e(f"s_add_u32 s34, s34, {48*1024}")
    e("v_mul_u32_u24 v10, 160, v8"); e("v_lshl_add_u32 v10, v9, 3, v10"); e("v_add_u32 v10, s34, v10")
    e("v_lshrrev_b32 v8, 2, v8"); e("v_lshl_add_u32 v8, v9, 2, v8"); e("v_mul_u32_u24 v11, 160, v8")
    def pmfma(off):
        for u in range(4):
            for fb in range(2):
                d = PK + (u*2+fb)*4; s = Bk(u) + off
                e(f"v_mfma_f32_16x16x32_bf16 v[{d}:{d+3}], v[{WPq[fb]}:{WPq[fb]+3}], v[{s}:{s+3}], 0")
    e("s_waitcnt lgkmcnt(0)")
    pmfma(4)
    e("v_and_b32 v8, 3, v2"); e("v_lshl_add_u32 v11, v8, 3, v11"); e("v_add_u32 v11, s34, v11"); e("v_mov_b32 v9, 0x3f803f80")
    for fbk in range(4):
        e(f"v_cmp_eq_u32 vcc, {fbk}, v8"); e("s_nop 1"); e(f"v_cndmask_b32 v{ZB+4*fbk}, 0, v9, vcc")
        for r in range(1, 4): e(f"v_mov_b32 v{ZB+4*fbk+r}, v{ZB+4*fbk}")
    units = [dict(x=[PK+u*8, PK+u*8+4], ep=EP+u*16, em=EP+8+u*16, st=ST+u*4, out=EP+u*16) for u in range(4)]
    softmax_units(e, units, 62, True)
    for u in range(4):
        o = units[u]["out"]
        for fbk in range(4): e(f"ds_write_b64 v10, v[{o+2*fbk}:{o+2*fbk+1}] offset:{u*16*160 + fbk*32}")
    pmfma(0)
    e("s_waitcnt lgkmcnt(0)")
    EFs = [EF, EP + 8]
    efq = [[EF + 4*n for n in range(4)], [EP+8, EP+12, EP+24, EP+28]]
    for p in range(2):
        for fbk in range(4):
            for t in range(2): e(f"ds_read_b64_tr_b16 v[{efq[p][fbk]+2*t}:{efq[p][fbk]+2*t+1}], v11 offset:{(2*p+t)*16*160 + fbk*32}")
    for p in range(2):
        for fbk in range(4):
            e(f"s_waitcnt lgkmcnt({14-8*p-2*fbk})")
            for db in range(3):
                d = KVq[fbk*2+db] if db < 2 else KVq[8]
                b = Bk(2*p+db) + 8 if db < 2 else ZB + 4*fbk
                cc = "0" if (p == 0 and (db < 2 or fbk == 0)) else f"v[{d}:{d+3}]"
                e(f"v_mfma_f32_16x16x32_bf16 v[{d}:{d+3}], v[{efq[p][fbk]}:{efq[p][fbk]+3}], v[{b}:{b+3}], {cc}")
    e("v_add_u32 v10, s34, v3")
    e("s_lshr_b32 s33, s3, 1"); e("s_mul_i32 s60, s55, 10240"); e("s_lshl_b32 s61, s33, 10"); e("s_add_u32 s60, s60, s61"); e(f"s_add_u32 s60, s60, {48*1024}"); e("v_add_u32 v11, s60, v3"); e("v_add_u32 v15, 0xa000, v11")
    e("s_lshl_b32 s60, s59, 3"); e("s_add_u32 s60, s60, s52")
    e("s_lshl_b32 s36, s60, 7"); e(f"s_add_u32 s36, s36, {WS_FLAG1:#x}")
    e(f"s_mul_i32 s37, s60, {NQ*1024}"); e("s_add_u32 s37, s37, s61"); e(f"s_add_u32 s37, s37, {WS_KVP:#x}"); e("s_add_u32 s38, s37, 4096")
    for qd in range(NQ): e(f"ds_write_b128 v10, v[{KVq[qd]}:{KVq[qd]+3}] offset:{qd*1024}")
    e("s_waitcnt lgkmcnt(0)"); e("s_barrier")
    if opts.get("estamp"): e("s_memrealtime s[94:95]"); e("s_waitcnt lgkmcnt(0)")
    C0 = 224
    for hq in range(2):
        for src in range(4): e(f"ds_read_b128 v[{C0+(hq*4+src)*4}:{C0+(hq*4+src)*4+3}], v{11 if src < 2 else 15} offset:{(src%2)*20480 + hq*4096}")
    e("s_cmp_lg_u32 s33, 0"); e("s_cbranch_scc1 a_noz")
    for src in range(4): e(f"ds_read_b128 v[{holes[src]}:{holes[src]+3}], v{11 if src < 2 else 15} offset:{(src%2)*20480 + 8192}")
    e("s_waitcnt lgkmcnt(0)")
    for src in range(1, 4):
        for q in (0, 2): e(f"v_pk_add_f32 v[{holes[0]+q}:{holes[0]+q+1}], v[{holes[0]+q}:{holes[0]+q+1}], v[{holes[src]+q}:{holes[src]+q+1}]")
    e("s_add_u32 s39, s37, 8192")
    e(f"buffer_store_dwordx4 v[{holes[0]}:{holes[0]+3}], v3, s[16:19], s39 offen sc1")
    e("a_noz:")
    e("s_waitcnt lgkmcnt(0)")
    for hq in range(2):
        a = C0 + hq*16
        for src in range(1, 4):
            for q in (0, 2): e(f"v_pk_add_f32 v[{a+q}:{a+q+1}], v[{a+q}:{a+q+1}], v[{a+4*src+q}:{a+4*src+q+1}]")
        e(f"buffer_store_dwordx4 v[{a}:{a+3}], v3, s[16:19], s{37+hq} offen sc1")
    units = [dict(x=[PK+u*8, PK+u*8+4], ep=EP+u*16, em=EP+8+u*16, st=ST+u*4, out=Bk(u)+4) for u in range(4)]
    w = Work(); softmax_units(w.e, units, 62, False)
    cut = len(w.q) * opts.get("e3cut", 40) // 100
    for l in w.q[:cut]: e(l)
    e("s_waitcnt vmcnt(0)"); e("s_barrier")
    if opts.get("estamp"): e("s_memrealtime s[96:97]"); e("s_waitcnt lgkmcnt(0)")
    e("s_cmp_lg_u32 s33, 0"); e("s_cbranch_scc1 a_nof")
    e(lane0("buffer_store_dwordx2 v[12:13], v14, s[16:19], s36 offen sc1"))
    e("a_nof:")
    if pf:
        k.srd(24, 8, F_*S_*2); k.srd(48, WO, D_*D_*2)
        e("s_lshl_b32 s60, s58, 5"); e("s_add_u32 s60, s60, s56"); e("s_lshl_b32 s60, s60, 3"); e("s_add_u32 s60, s60, s3"); e("s_lshl_b32 s60, s60, 10")
        e("s_mov_b32 s61, s60")
        for n in range(14): e(f"buffer_load_dwordx4 v[240:243], v3, s[24:27], s60 offen"); e(f"s_add_u32 s60, s60, 0x100000")
        for n in range(2): e(f"buffer_load_dwordx4 v[240:243], v3, s[48:51], s61 offen"); e(f"s_add_u32 s61, s61, 0x100000")
    for l in w.q[cut:]: e(l)
    if stamps: e("s_memrealtime s[88:89]")
    KOq = holes[0:4]; ZOq = holes[4:6]; GG = holes[6]
    e("s_lshl_b32 s36, s59, 7"); e(f"s_add_u32 s36, s36, {WS_FLAG2:#x}")
    poll_tok(k, 14, 16, "s36", None, 8, sleep=2)
    if stamps: e("s_memrealtime s[90:91]")
    e(f"s_mul_i32 s36, s59, 6144"); e(f"s_add_u32 s36, s36, {WS_KVF:#x}"); e("s_add_u32 s37, s36, 4096")
    for n, d in enumerate([ZOq[0], KOq[0], KOq[1], ZOq[1], KOq[2], KOq[3]]):
        idx = [4, 0, 1, 5, 2, 3][n]
        e(f"buffer_load_dwordx4 v[{d}:{d+3}], v3, s[16:19], s{36 + idx//4} offen offset:{(idx%4)*1024} sc1")
    e("v_and_b32 v8, 15, v2"); e("v_lshlrev_b32 v8, 2, v8")
    e("s_lshl_b32 s38, s52, 2"); e("s_lshl_b32 s39, s54, 1"); e("s_add_u32 s38, s38, s39"); e("s_add_u32 s38, s38, s35")
    e("s_lshl_b32 s36, s38, 8"); e(f"s_add_u32 s36, s36, {WS_G:#x}")
    for u in range(4): e(f"buffer_load_dword v{GG+u}, v8, s[16:19], s36 offen offset:{u*64} sc1")
    e("v_lshrrev_b32 v8, 5, v2"); e("v_lshlrev_b32 v9, 15, v8"); e("v_and_b32 v8, 31, v2"); e("v_lshl_add_u32 v9, v8, 4, v9")
    e("s_lshl_b32 s36, s59, 17"); e("s_lshl_b32 s37, s38, 10"); e("s_add_u32 s36, s36, s37")
    e(f"s_add_u32 s36, s36, {WS_OT:#x}"); e("s_add_u32 s37, s36, 0x10000")
    e(f"v_mov_b32 v8, {f32(1e-6)}")
    e("s_waitcnt vmcnt(0)")
    nq = [160 + 4*n for n in range(24)]
    for u in range(4):
        for sg in range(2):
            b = Bk(u) + 4 + sg*4
            for db in (2, 0, 1):
                d = nq[u*6 + sg*3 + db]; a = KOq[sg*2+db] if db < 2 else ZOq[sg]
                e(f"v_mfma_f32_16x16x32_bf16 v[{d}:{d+3}], v[{a}:{a+3}], v[{b}:{b+3}], 0")
    e("s_nop 1")
    for u in range(4):
        xp, xm = nq[u*6+2], nq[u*6+5]
        e(f"v_rcp_f32 v{xp+2}, v{xp+1}"); e(f"v_rcp_f32 v{xp+3}, v{xm+1}")
    for u in range(4):
        xp, xm = nq[u*6+2], nq[u*6+5]
        e(f"v_fma_f32 v{xp}, v{xp}, v{xp+2}, v8"); e(f"v_fma_f32 v{xp}, v{xm}, v{xp+3}, v{xp}")
    for u in range(4): xp = nq[u*6+2]; e(f"v_rcp_f32 v{xp}, v{xp}")
    for u in range(4): xp = nq[u*6+2]; e(f"v_mul_f32 v{xp}, v{xp}, v{GG+u}")
    for u in range(4):
        xp = nq[u*6+2]; e(f"v_pk_mul_f32 v[{xp+2}:{xp+3}], v[{xp+2}:{xp+3}], v[{xp}:{xp+1}] op_sel_hi:[1,0]")
    for u in range(4):
        xp = nq[u*6+2]
        for db in range(2):
            np_, nm = nq[u*6+db], nq[u*6+3+db]
            for q in (0, 2):
                e(f"v_pk_mul_f32 v[{np_+q}:{np_+q+1}], v[{np_+q}:{np_+q+1}], v[{xp+2}:{xp+3}] op_sel:[0,0] op_sel_hi:[1,0]")
                e(f"v_pk_fma_f32 v[{np_+q}:{np_+q+1}], v[{nm+q}:{nm+q+1}], v[{xp+2}:{xp+3}], v[{np_+q}:{np_+q+1}] op_sel:[0,1,0] op_sel_hi:[1,1,1]")
    for u in range(4):
        for db in range(2):
            np_ = nq[u*6+db]; o = 16 + ((u//2)*2+db)*4 + (u % 2)*2
            e(f"v_cvt_pk_bf16_f32 v{o}, v{np_}, v{np_+1}"); e(f"v_cvt_pk_bf16_f32 v{o+1}, v{np_+2}, v{np_+3}")
    e("s_nop 1")
    for n in range(4):
        o = 16 + n*4; e(f"v_permlane16_swap_b32 v{o}, v{o+2}"); e(f"v_permlane16_swap_b32 v{o+1}, v{o+3}")
    for n in range(4):
        o = 16 + n*4; pr, db = divmod(n, 2)
        e(f"buffer_store_dwordx4 v[{o}:{o+3}], v9, s[16:19], s{36+db} offen offset:{pr*512}{opts.get('ust', '')}")
    if stamps: stamp_store(e, (80, 84, 82, 94, 96, 88, 86, 86) if opts.get("estamp") else (80, 82, 84, 88, 90, 86, 86, 86), WS_STAMP, "a_end")
    e("s_endpgm")
    e("a_bchain:")
    e("s_lshl_b32 s52, s58, 5"); e("s_add_u32 s52, s52, s56")
    e("s_and_b32 s54, s56, 3")
    e("s_mul_i32 s55, s58, 7"); e("s_lshr_b32 s60, s56, 2"); e("s_add_u32 s55, s55, s60")
    e("s_cmp_lt_u32 s3, 4"); e("s_cbranch_scc1 a_lnc")
    e("s_cmp_ge_u32 s56, 28"); e("s_cbranch_scc1 a_sp_hi")
    st = Stream(k)
    k.srd(24, W1, S_*F_*2)
    e("s_sub_u32 s3, s3, 4")
    lane_T_dma_off(e, 16, 24, 2, 6, F_*2, 3)
    e("v_add_u32 v25, 128, v24")
    e("s_lshl_b32 s60, s3, 14"); e(f"s_lshl_b32 s28, s54, 12"); e("s_add_u32 s28, s28, s60"); e(f"s_add_u32 s28, s28, {WS_HT:#x}")
    e("s_lshl_b32 s29, s55, 8")
    e("s_lshl_b32 s30, s3, 12"); e("s_lshl_b32 s31, s3, 10"); e(f"s_add_u32 s31, s31, {c2.PB}")
    R2 = dict(vP=[3], vT=[24, 25], sP=28, sT=29, srdP=16, srdT=24, sBase=30, sLds=32, sStage=34, sCnt=35, stepP=4*D_*16, stepT=32*F_*2)
    fl = (" sc1", "")
    e("s_mov_b32 s32, s30"); e("s_mov_b32 s33, s31")
    for t in range(5): producer_issue(st.e, c2, R2, fl, "T", t*c2.SB)
    def g2_touches():
        e("s_mul_i32 s60, s58, 28"); e("s_add_u32 s60, s60, s56"); e("s_lshl_b32 s60, s60, 2"); e("s_add_u32 s60, s60, s3"); e("s_lshl_b32 s60, s60, 10")
        if opts.get("pf_wq", True):
            k.srd(48, WQKV, D_*3*D_*2)
            e("s_mov_b32 s61, s60")
            for n in range(14): st.e("buffer_load_dwordx4 v[240:243], v3, s[48:51], s61 offen"); e(f"s_add_u32 s61, s61, {448*1024}")
        e(f"s_add_u32 s61, s60, {160*7168}")
        for n in range(opts.get("pf_g2", 0)): st.e("buffer_load_dwordx4 v[240:243], v3, s[24:27], s61 offen"); e(f"s_add_u32 s61, s61, {448*1024}")
    if opts.get("tpos", "L1") == "pre": g2_touches()
    e("v_lshlrev_b32 v8, 7, v2"); e("v_add_u32 v9, 0x2000, v8")
    e("s_barrier")
    e(f"v_mov_b32 v4, {158*1024}"); e("ds_read_b64 v[10:11], v4"); e("s_waitcnt lgkmcnt(0)")
    e(f"v_readfirstlane_b32 s{TOK}, v10"); e(f"v_readfirstlane_b32 s{TOK+1}, v11")
    if opts.get("tpos", "L1") == "L1": g2_touches()
    e("s_barrier")
    producer_issue(st.e, c2, R2, fl, "T", 5*c2.SB)
    e(f"s_mov_b32 s36, {WS_FLAGL:#x}")
    poll_tok(k, [8, 9], 16, "s36", None, 10, sleep=2)
    st = Stream(k)
    for t in range(6):
        producer_issue(st.e, c2, R2, fl, "P", t*c2.SB); st.mark(f"b{t}")
    e("s_mov_b32 s34, 0")
    st.e("@wait b0"); e("s_barrier")
    for t in range(5):
        st.e(f"@wait b{t+1}"); e("s_barrier")
        producer_issue(st.e, c2, R2, fl); ring_advance(e, c2, R2)
    e("s_mov_b32 s35, 53")
    e("a_l2:")
    e("s_waitcnt vmcnt(24)"); e("s_barrier")
    producer_issue(e, c2, R2, fl); ring_advance(e, c2, R2)
    e("s_sub_u32 s35, s35, 1"); e("s_cmp_lg_u32 s35, 0"); e("s_cbranch_scc1 a_l2")
    for r in range(6):
        e(f"s_waitcnt vmcnt({max(4-r, 0)*6})"); e("s_barrier")
    e("s_endpgm")
    e("a_lnc:")
    st = Stream(k)
    e("s_lshl_b32 s37, s52, 15"); e("s_lshl_b32 s38, s3, 13"); e("s_add_u32 s37, s37, s38"); e("s_add_u32 s38, s37, 4096")
    for n in range(8): st.e(f"buffer_load_dwordx4 v[{48+4*n}:{51+4*n}], v3, s[20:23], s{37+n//4} offen offset:{(n%4)*1024}")
    k.srd(24, GW, D_*2)
    st.e("buffer_load_dwordx4 v[80:83], v3, s[24:27], 0 offen"); st.e("@vm lng buffer_load_dwordx4 v[84:87], v3, s[24:27], 0 offen offset:1024")
    k.srd(48, B1, F_*2)
    e("s_lshr_b32 s57, s3, 1"); e("s_and_b32 s58, s3, 1")
    e("v_lshrrev_b32 v7, 4, v2"); e("v_lshlrev_b32 v7, 3, v7")
    e("s_lshl_b32 s60, s55, 8"); e("s_lshl_b32 s61, s58, 6"); e("s_add_u32 s60, s60, s61")
    for j in range(4): st.e(f"buffer_load_dwordx2 v[{96+2*j}:{97+2*j}], v7, s[48:51], s60 offen offset:{(j//2)*128 + (j%2)*32}")
    e("v_lshlrev_b32 v4, 7, v2"); e("s_lshl_b32 s60, s2, 10"); e(f"s_add_u32 s60, s60, {WS_FLAG:#x}")
    e("s_mov_b64 exec, 15"); e("buffer_store_dword v14, v4, s[16:19], s60 offen sc1"); e("s_mov_b64 exec, -1")
    get_token(k, 14, 12)
    e(f"v_mov_b32 v4, {158*1024}"); e("ds_write_b64 v4, v[12:13]")
    LS = 120*1024
    e("s_mov_b32 s36, 0xffff0000")
    e(f"s_mul_i32 s37, s3, {4*HP}"); e(f"s_add_u32 s37, s37, {LS}"); e("v_add_u32 v22, s37, v3")
    e(f"v_bfe_u32 v23, v2, 2, 2"); e(f"v_mul_u32_u24 v23, {HP}, v23"); e("v_and_b32 v120, 3, v2"); e("v_lshl_add_u32 v23, v120, 3, v23")
    e(f"v_lshrrev_b32 v120, 4, v2"); e("v_lshl_add_u32 v23, v120, 5, v23")
    e(f"s_mul_i32 s37, s57, {8*HP}"); e("s_lshl_b32 s38, s58, 10"); e("s_add_u32 s37, s37, s38"); e(f"s_add_u32 s37, s37, {LS}"); e("v_add_u32 v23, s37, v23")
    for i in range(8):
        e(f"v_lshlrev_b32 v{104+2*i}, 16, v{80+i}"); e(f"v_and_b32 v{105+2*i}, s36, v{80+i}")
    w = Work()
    gen4.ln_rows(w, 48, 0); gen4.ln_rows(w, 64, 1)
    for it in w.q: e(it.replace("s_lshl_b32 s37, s2, 5", "s_lshl_b32 s37, s52, 6"))
    e("s_waitcnt lgkmcnt(0)"); e("s_barrier")
    for j in range(8):
        e(f"ds_read_b64_tr_b16 v[{144+4*j}:{145+4*j}], v23 offset:{128*j}")
        e(f"ds_read_b64_tr_b16 v[{146+4*j}:{147+4*j}], v23 offset:{128*j+4*HP}")
    e(f"s_lshl_b32 s37, s52, 15"); e("s_lshl_b32 s38, s3, 13"); e("s_add_u32 s37, s37, s38"); e(f"s_add_u32 s37, s37, {WS_HT:#x}"); e("s_add_u32 s38, s37, 4096")
    for j in range(8):
        e(f"s_waitcnt lgkmcnt({14-2*j})"); e(f"buffer_store_dwordx4 v[{144+4*j}:{147+4*j}], v3, s[16:19], s{37+j//4} offen offset:{(j%4)*1024} sc1")
    acc2 = [[128 + (i*4+j)*4 for j in range(4)] for i in range(8)]
    e("s_nop 1")
    for j in range(4):
        for hh in range(2):
            src = 96 + j*2 + hh; d0 = acc2[0][j] + hh*2
            e(f"v_lshlrev_b32 v{d0}, 16, v{src}"); e(f"v_and_b32 v{d0+1}, s36, v{src}")
        for i in range(1, 8):
            for q in (0, 2): e(f"v_mov_b64 v[{acc2[i][j]+q}:{acc2[i][j]+q+1}], v[{acc2[0][j]+q}:{acc2[0][j]+q+1}]")
    e("v_lshrrev_b32 v8, 4, v2"); e("v_lshlrev_b32 v4, 12, v8"); e("v_and_b32 v9, 15, v2"); e("v_lshl_add_u32 v4, v9, 4, v4")
    e("s_lshl_b32 s60, s57, 11"); e("v_add_u32 v4, s60, v4")
    lane_T_read_off(e, 16, 6, 2, 8, 9)
    e("s_lshl_b32 s60, s58, 6"); e("v_xor_b32 v6, s60, v6"); e("v_xor_b32 v7, 32, v6")
    e("s_waitcnt vmcnt(0)"); e("s_barrier")
    e("s_cmp_lg_u32 s3, 0"); e("s_cbranch_scc1 a_lnf")
    e("s_lshl_b32 s37, s52, 7"); e(f"s_add_u32 s37, s37, {WS_FLAGL:#x}")
    e(lane0("buffer_store_dwordx2 v[12:13], v14, s[16:19], s37 offen sc1"))
    e("a_lnf:")
    if stamps: e("s_memrealtime s[82:83]")
    e("s_cmp_ge_u32 s56, 28"); e("s_cbranch_scc1 a_spare")
    p_off = [(0, i*256) for i in range(8)]
    t_desc = [(j % 2, c2.PB + (j//2)*4096) for j in range(4)]
    order = [(i, j, i, j) for i in range(8) for j in range(4)]
    pbufs = [16 + 4*i for i in range(16)]; tbufs = [80 + 4*j for j in range(8)]
    consumer_loop(k, c2, [(2, ["s_memrealtime s[84:85]", "s_waitcnt lgkmcnt(0)"] if stamps else []), (62, [])], 16, 8, 4, p_off, t_desc, acc2, pbufs, tbufs, [4], [6, 7],
                  False, order, 36, 37, 38, rpg=1, bar_pos=2)
    if stamps: e("s_memrealtime s[88:89]")
    e("s_waitcnt lgkmcnt(0)")
    e("v_lshrrev_b32 v8, 5, v2"); e("v_lshlrev_b32 v7, 14, v8"); e("v_and_b32 v8, 31, v2"); e("v_lshl_add_u32 v7, v8, 4, v7")
    e("s_lshl_b32 s14, s55, 18"); e("s_lshl_b32 s15, s58, 16"); e("s_add_u32 s14, s14, s15")
    e("s_lshl_b32 s15, s54, 12"); e("s_add_u32 s14, s14, s15"); e("s_lshl_b32 s15, s57, 11"); e("s_add_u32 s14, s14, s15")
    e(f"s_add_u32 s14, s14, {WS_UT:#x}")
    e(f"s_mov_b32 s42, {f32(GELU_K3)}"); e(f"s_mov_b32 s43, {f32(GELU_K3)}")
    e(f"v_mov_b32 v10, {f32(GELU_K1)}"); e(f"v_mov_b32 v11, {f32(GELU_K1)}")
    blk = 0
    for j in range(4):
        e(f"s_add_u32 s15, s14, {((j//2)*8 + (j%2)*2)*16384}")
        for i in (0, 4):
            t = 16 + (blk % 2) * 24; o = t + 16; blk += 1
            gelu_block(e, [acc2[i+b][j] + q for b in range(4) for q in (0, 2)], t, o)
            e("s_nop 1")
            for pr in range(2):
                e(f"v_permlane16_swap_b32 v{o+4*pr}, v{o+4*pr+2}"); e(f"v_permlane16_swap_b32 v{o+4*pr+1}, v{o+4*pr+3}")
            for pr in range(2):
                e(f"buffer_store_dwordx4 v[{o+4*pr}:{o+4*pr+3}], v7, s[16:19], s15 offen offset:{(i+2*pr)*256}{opts.get('ust', '')}")
    if stamps: stamp_store(e, (80, 82, 84, 88, 88, 86, 86, 86), WS_STAMP, "a_end")
    e("s_endpgm")
    e("a_sp_hi:")
    e("s_barrier")
    e(f"v_mov_b32 v4, {158*1024}"); e("ds_read_b64 v[12:13], v4"); e("s_waitcnt lgkmcnt(0)")
    e(f"v_readfirstlane_b32 s{TOK}, v12"); e(f"v_readfirstlane_b32 s{TOK+1}, v13")
    e("s_barrier")
    e("a_spare:")
    if opts.get("pf_sp", True):
        k.srd(24, W1, S_*F_*2)
        r0 = opts.get("sp_row0", 192)
        e("s_lshr_b32 s60, s52, 5"); e("s_lshl_b32 s60, s60, 2"); e("s_add_u32 s60, s60, s56"); e("s_sub_u32 s60, s60, 28"); e("s_lshl_b32 s60, s60, 3"); e("s_add_u32 s60, s60, s3")
        e("s_lshl_b32 s61, s60, 10"); e(f"s_add_u32 s61, s61, {r0*7168}")
        e(f"s_mov_b32 s62, {((2048-r0)*7 + 127)//128}"); e("a_spl:")
        e("buffer_load_dwordx4 v[240:243], v3, s[24:27], s61 offen"); e(f"s_add_u32 s61, s61, {128*1024}"); e(f"s_waitcnt vmcnt({opts.get('sp_depth', 16)})")
        e("s_sub_u32 s62, s62, 1"); e("s_cmp_lg_u32 s62, 0"); e("s_cbranch_scc1 a_spl")
    e("s_lshr_b32 s59, s52, 5"); e("s_lshl_b32 s59, s59, 2"); e("s_add_u32 s59, s59, s56"); e("s_sub_u32 s59, s59, 28"); e("s_lshl_b32 s59, s59, 1")
    e("s_lshr_b32 s60, s3, 2"); e("s_add_u32 s59, s59, s60")
    e("v_lshlrev_b32 v8, 7, v2"); e("v_add_u32 v9, 0x2000, v8"); e(f"s_mov_b32 s36, {WS_FLAGL:#x}")
    poll_tok(k, [8, 9], 16, "s36", None, 4, sleep=16)
    e("s_lshl_b32 s60, s59, 3"); e("s_and_b32 s61, s3, 3"); e("s_lshl_b32 s61, s61, 1"); e("s_add_u32 s37, s60, s61")
    e("s_lshl_b32 s36, s37, 7"); e(f"s_add_u32 s36, s36, {WS_FLAG1:#x}")
    poll_tok(k, 8, 16, "s36", 3, 4, sleep=opts.get("osleep", 2))
    if stamps: e("s_memrealtime s[84:85]")
    e(f"s_mul_i32 s60, s37, {NQ*1024}"); e(f"s_add_u32 s60, s60, {WS_KVP:#x}")
    nr = 4*NQ; B0 = 16
    for n in range(2*NQ):
        if n and n % 4 == 0: e("s_add_u32 s60, s60, 4096")
        e(f"buffer_load_dwordx4 v[{B0+4*n}:{B0+3+4*n}], v3, s[16:19], s60 offen offset:{(n%4)*1024} sc1")
    for pp in (1,):
        e(f"s_waitcnt vmcnt(0)")
        for r in range(0, nr, 2): e(f"v_pk_add_f32 v[{B0+r}:{B0+r+1}], v[{B0+r}:{B0+r+1}], v[{B0+pp*nr+r}:{B0+pp*nr+r+1}]")
    e(f"s_mul_i32 s60, s3, {NQ*1024}"); e("v_add_u32 v7, s60, v3")
    for qd in range(NQ): e(f"ds_write_b128 v7, v[{B0+4*qd}:{B0+3+4*qd}] offset:{qd*1024}")
    e("s_waitcnt lgkmcnt(0)"); e("s_barrier")
    e("s_and_b32 s60, s3, 3"); e("s_cmp_lg_u32 s60, 0"); e("s_cbranch_scc1 a_end")
    for w_ in range(1, 4):
        for qd in range(NQ): e(f"ds_read_b128 v[{B0+w_*nr+4*qd}:{B0+w_*nr+3+4*qd}], v7 offset:{(w_*NQ+qd)*1024}")
    e("s_waitcnt lgkmcnt(0)")
    for pp in (1, 2, 3):
        for r in range(0, nr, 2): e(f"v_pk_add_f32 v[{B0+r}:{B0+r+1}], v[{B0+r}:{B0+r+1}], v[{B0+pp*nr+r}:{B0+pp*nr+r+1}]")
    FQ, KO_, ZO_ = B0, 64, 80
    for sg in range(2):
        for db in range(2):
            d = KO_ + (sg*2+db)*4
            for fb in range(2):
                a = FQ + ((sg*2+fb)*2+db)*4
                e(f"v_cvt_pk_bf16_f32 v{d+2*fb}, v{a}, v{a+1}"); e(f"v_cvt_pk_bf16_f32 v{d+2*fb+1}, v{a+2}, v{a+3}")
    zq = FQ + 32
    for fbk in range(4):
        for r in range(4):
            e(f"v_mov_b32_dpp v{96+fbk*4+r}, v{zq+r} quad_perm:[{fbk},{fbk},{fbk},{fbk}] row_mask:0xf bank_mask:0xf")
    e("v_and_b32 v6, 3, v2"); e("v_mov_b32 v7, 0x3f803f80")
    e("v_cmp_eq_u32 vcc, 1, v6"); e("s_nop 1"); e("v_cndmask_b32 v7, 0, v7, vcc")
    e("v_cmp_eq_u32 vcc, 0, v6")
    for n in range(8): e(f"v_cvt_pk_bf16_f32 v{ZO_+n}, v{96+2*n}, v{97+2*n}")
    for n in range(8): e(f"v_cndmask_b32 v{ZO_+n}, v7, v{ZO_+n}, vcc")
    e(f"s_mul_i32 s60, s59, 6144"); e(f"s_add_u32 s60, s60, {WS_KVF:#x}"); e("s_add_u32 s61, s60, 4096")
    for n in range(6):
        e(f"buffer_store_dwordx4 v[{KO_+4*n}:{KO_+3+4*n}], v3, s[16:19], s{60 + n//4} offen offset:{(n%4)*1024} sc1")
    e("s_lshl_b32 s61, s59, 7"); e(f"s_add_u32 s61, s61, {WS_FLAG2:#x}")
    e("s_waitcnt vmcnt(0)")
    e(lane0("buffer_store_dwordx2 v[12:13], v14, s[16:19], s61 offen sc1"))
    if stamps: stamp_store(e, (80, 82, 84, 84, 84, 86, 86, 86), WS_STAMP, "a_end")
    e("a_end:")
    return k

def gen_b(opts):
    NS = 6
    c = GemmCfg(256, 2, NS, 32)
    c4 = GemmCfg(128, 4, NS, 32)
    k = Kern("b_kernel", 256, 512, NS*c.SB, vgpr=256, sgpr=100)
    e = k.e
    stamps = opts.get("stamps", False)
    W2, B2 = 72, 74
    e("s_cmp_ge_u32 s2, 256"); e("s_cbranch_scc1 b_end")
    e("s_load_dwordx2 s[70:71], s[0:1], 24")
    e("s_load_dwordx4 s[72:75], s[0:1], 56")
    e("s_load_dwordx2 s[78:79], s[0:1], 80")
    e("s_load_dwordx2 s[6:7], s[0:1], 96")
    if stamps: e("s_memrealtime s[80:81]")
    e("s_mov_b32 s92, s2")
    e("v_lshrrev_b32 v1, 6, v0"); e("v_and_b32 v2, 63, v0"); e("v_lshlrev_b32 v3, 4, v2")
    e("s_lshr_b32 s56, s2, 3")
    e("v_readfirstlane_b32 s3, v1")
    e("s_bfe_u32 s52, s2, 0x20001")
    e("s_lshr_b32 s54, s56, 3")
    e("s_and_b32 s55, s2, 1"); e("s_lshl_b32 s55, s55, 3"); e("s_and_b32 s60, s56, 7"); e("s_add_u32 s55, s55, s60")
    e("s_waitcnt lgkmcnt(0)")
    k.srd(16, WS, WS_SIZE)
    e("s_cmp_lt_u32 s3, 4"); e("s_cbranch_scc1 b_cons")
    k.srd(24, W2, F_*S_*2)
    k.srd(20, WO, D_*D_*2)
    e("s_sub_u32 s3, s3, 4")
    lane_T_dma_off(e, 16, 24, 2, 6, S_*2, 3)
    e("v_add_u32 v25, 128, v24")
    e("s_mul_i32 s28, s52, 144"); e("s_add_u32 s28, s28, s3"); e("s_lshl_b32 s28, s28, 14"); e("s_lshl_b32 s60, s54, 12"); e("s_add_u32 s28, s28, s60")
    e(f"s_add_u32 s28, s28, {WS_UT:#x}")
    e(f"s_mul_i32 s29, s52, {1152*4096}"); e("s_lshl_b32 s60, s55, 8"); e("s_add_u32 s29, s29, s60")
    e("s_lshl_b32 s30, s3, 12"); e("s_lshl_b32 s31, s3, 10"); e(f"s_add_u32 s31, s31, {c.PB}")
    R3 = dict(vP=[3], vT=[24, 25], sP=28, sT=29, srdP=16, srdT=24, sBase=30, sLds=32, sStage=34, sCnt=35, stepP=4*D_*16, stepT=32*S_*2)
    e("s_cmp_eq_u32 s52, 3"); e("s_cbranch_scc1 b_prod1")
    producer_loop(k, c, 36, R3)
    e("s_endpgm")
    e("b_prod1:")
    lane_T_dma_off(e, 16, 28, 2, 6, D_*2, 3)
    for n in range(1, 4): e(f"v_add_u32 v{28+n}, {n*128}, v28")
    e("s_lshl_b32 s36, s3, 15"); e("s_lshl_b32 s60, s55, 11"); e("s_add_u32 s36, s36, s60"); e(f"s_add_u32 s36, s36, {WS_OT:#x}")
    e("s_lshl_b32 s37, s54, 9")
    e("s_lshl_b32 s38, s3, 11"); e("s_lshl_b32 s39, s3, 10"); e(f"s_add_u32 s39, s39, {c4.PB}")
    R4 = dict(vP=[3], vT=[28, 29, 30, 31], sP=36, sT=37, srdP=16, srdT=20, sBase=38, sLds=32, sStage=34, sCnt=35, stepP=4*S_*16, stepT=32*D_*2)
    e("s_mov_b32 s32, s30"); e("s_mov_b32 s33, s31")
    for t in range(4): producer_issue(e, c, R3, ("", ""), "PT", t*c.SB)
    e(f"s_mov_b32 s34, {4*c.SB}"); e("s_add_u32 s32, s34, s38"); e("s_add_u32 s33, s34, s39")
    for t in range(2): producer_issue(e, c4, R4); ring_advance(e, c4, R4)
    e("s_waitcnt vmcnt(30)"); e("s_barrier")
    e("s_mov_b32 s35, 30")
    e("b_l4:")
    e("s_waitcnt vmcnt(24)"); e("s_barrier")
    producer_issue(e, c4, R4); ring_advance(e, c4, R4)
    e("s_sub_u32 s35, s35, 1"); e("s_cmp_lg_u32 s35, 0"); e("s_cbranch_scc1 b_l4")
    for r in range(6):
        e(f"s_waitcnt vmcnt({max(4-r, 0)*6})"); e("s_barrier")
    e("s_endpgm")
    e("b_cons:")
    e("s_lshr_b32 s57, s3, 1"); e("s_and_b32 s58, s3, 1")
    k.srd(24, B2, S_*2)
    k.srd(20, OUT, S_*D_*2)
    e("v_and_b32 v15, 15, v2"); e("v_lshrrev_b32 v14, 4, v2")
    e("s_lshl_b32 s60, s55, 7"); e("s_lshl_b32 s61, s58, 5"); e("s_add_u32 s60, s60, s61"); e("v_add_u32 v8, s60, v15")
    e("v_lshlrev_b32 v9, 2, v8"); e("v_lshlrev_b32 v8, 1, v8")
    e(f"s_mov_b32 s60, {WS_G:#x}")
    GO, BO = 112, 120
    for j in range(4):
        e(f"buffer_load_dword v{GO+2*j}, v9, s[16:19], s60 offen offset:{((j//2)*64 + (j%2)*16)*4}")
        e(f"buffer_load_ushort v{BO+j}, v8, s[24:27], 0 offen offset:{((j//2)*64 + (j%2)*16)*2}")
    acc = [[128 + (i*4+j)*4 for j in range(4)] for i in range(8)]
    e("v_lshlrev_b32 v4, 12, v14"); e("v_lshl_add_u32 v4, v15, 4, v4")
    e("s_lshl_b32 s60, s57, 11"); e("v_add_u32 v4, s60, v4")
    e("v_lshlrev_b32 v5, 11, v14"); e("v_lshl_add_u32 v5, v15, 4, v5")
    lane_T_read_off(e, 16, 10, 2, 12, 13)
    e("s_lshl_b32 s60, s58, 6"); e("v_xor_b32 v6, s60, v10"); e("v_xor_b32 v7, 32, v6")
    e("s_waitcnt vmcnt(0)")
    e("s_cmp_eq_u32 s52, 0"); e("s_cselect_b32 s60, -65536, 0")
    for j in range(4):
        e(f"v_sub_f32 v{GO+2*j}, 1.0, v{GO+2*j}")
        e(f"v_lshlrev_b32 v{BO+j}, 16, v{BO+j}"); e(f"v_and_b32 v{BO+j}, s60, v{BO+j}")
        for q in range(2): e(f"v_mov_b32 v{acc[0][j]+q}, v{BO+j}")
        for i in range(8):
            for q in (0, 2):
                if i or q: e(f"v_mov_b64 v[{acc[i][j]+q}:{acc[i][j]+q+1}], v[{acc[0][j]}:{acc[0][j]+1}]")
    p_off = [(0, i*256) for i in range(8)]
    t_desc = [(j % 2, c.PB + (j//2)*4096) for j in range(4)]
    order = [(i, j, i, j) for i in range(8) for j in range(4)]
    pbufs = [16 + 4*i for i in range(16)]; tbufs = [80 + 4*j for j in range(8)]
    def scale():
        e("s_waitcnt lgkmcnt(0)"); e("s_nop 7")
        for j in range(4):
            for i in range(8):
                for q in (0, 2):
                    a = acc[i][j] + q
                    e(f"v_pk_mul_f32 v[{a}:{a+1}], v[{a}:{a+1}], v[{GO+2*j}:{GO+2*j+1}] op_sel_hi:[1,0]")
    if stamps: e("s_memrealtime s[82:83]")
    e("s_cmp_eq_u32 s52, 3"); e("s_cbranch_scc1 b_cons1")
    consumer_loop(k, c, 36, 16, 8, 4, p_off, t_desc, acc, pbufs, tbufs, [4], [6, 7], True, order, 36, 37, 38, rpg=1, bar_pos=2)
    scale()
    e("s_branch b_exch")
    e("b_cons1:")
    consumer_loop(k, c, 4, 16, 8, 4, p_off, t_desc, acc, pbufs, tbufs, [4], [6, 7], True, order, 36, 37, 38, rpg=1, bar_pos=2)
    slot = 4
    e("s_lshl_b32 s60, s58, 9"); e(f"s_add_u32 s60, s60, {slot*c.SB}"); e("v_add_u32 v4, s60, v5")
    e("s_lshl_b32 s60, s57, 13"); e(f"s_add_u32 s60, s60, {slot*c.SB}"); e("v_add_u32 v10, s60, v10")
    for q in range(1, 4): e(f"v_xor_b32 v{10+q}, {32*q}, v10")
    scale()
    p_off4 = [(0, (j//2)*1024 + (j%2)*256) for j in range(4)]
    t_desc4 = [(i % 4, c4.PB + (i//4)*4096) for i in range(8)]
    order4 = [(j, i, i, j) for i in range(8) for j in range(4)]
    pb4 = [16 + 4*i for i in range(8)]; tb4 = [48 + 4*i for i in range(16)]
    consumer_loop(k, c4, 32, 16, 4, 8, p_off4, t_desc4, acc, pb4, tb4, [4], [10, 11, 12, 13], False, order4, 36, 37, 38, rpg=1, bar_pos=4, slot0=slot)
    e("s_waitcnt lgkmcnt(0)"); e("s_nop 7")
    e("b_exch:")
    if stamps: e("s_memrealtime s[84:85]")
    e("s_lshl_b32 s60, s2, 2"); e("s_add_u32 s60, s60, s3"); e(f"s_mul_i32 s46, s60, {24*1024}"); e(f"s_add_u32 s46, s46, {WS_PART:#x}")
    e("s_lshl_b32 s40, s2, 10"); e("s_lshl_b32 s41, s3, 7"); e("s_add_u32 s40, s40, s41"); e(f"s_add_u32 s40, s40, {WS_FLAG:#x}")
    e("v_mov_b32 v8, 0"); e("v_mov_b32 v9, 1")
    for kq in range(4):
        lab = f"b_ex{kq}"
        if kq < 3: e(f"s_cmp_lg_u32 s52, {kq}"); e(f"s_cbranch_scc1 b_ex{kq+1}_s")
        others = [o for o in range(4) if o != kq]
        for n, o in enumerate(others):
            for i in range(8):
                if i % 4 == 0: e(f"s_add_u32 s47, s46, {n*8192 + (i//4)*4096}")
                a = acc[i][o]
                e(f"buffer_store_dwordx4 v[{a}:{a+3}], v3, s[16:19], s47 offen offset:{(i%4)*1024} sc1")
        e("v_mov_b32 v10, 0")
        for n, o in enumerate(others):
            e(f"s_add_u32 s47, s40, {((o-kq)*2*1024) & 0xffffffff:#x}"); e(f"v_writelane_b32 v10, s47, {n}")
        e("s_waitcnt vmcnt(0)")
        e(lane0("buffer_store_dword v9, v8, s[16:19], s40 offen sc1"))
        e("s_mov_b64 exec, 7"); e("s_mov_b32 s63, 0x8000")
        e(f"{lab}_p:")
        e("buffer_load_dword v11, v10, s[16:19], 0 offen sc1"); e("s_waitcnt vmcnt(0)")
        e("v_cmp_eq_u32 vcc, 0, v11")
        e("s_sub_u32 s63, s63, 1"); e(f"s_cbranch_scc1 {lab}_g"); e(f"s_cbranch_vccz {lab}_g"); e("s_sleep 1"); e(f"s_branch {lab}_p")
        e(f"{lab}_g:")
        e("s_mov_b64 exec, -1")
        for n, o in enumerate(others):
            idx = kq - (kq > o)
            for i in range(8):
                if i % 4 == 0: e(f"s_add_u32 s47, s46, {((o-kq)*2*4*24*1024 + idx*8192 + (i//4)*4096) & 0xffffffff:#x}")
                d = 16 + (n*8+i)*4
                e(f"buffer_load_dwordx4 v[{d}:{d+3}], v3, s[16:19], s47 offen offset:{(i%4)*1024} sc1")
        for n in range(3):
            for i in range(8):
                e(f"s_waitcnt vmcnt({23 - n*8 - i})")
                a = acc[i][kq]; d = 16 + (n*8+i)*4
                for q in (0, 2): e(f"v_pk_add_f32 v[{a+q}:{a+q+1}], v[{a+q}:{a+q+1}], v[{d+q}:{d+q+1}]")
        for i in range(8):
            a = acc[i][kq]; o = 16 + i*2
            e(f"v_cvt_pk_bf16_f32 v{o}, v{a}, v{a+1}"); e(f"v_cvt_pk_bf16_f32 v{o+1}, v{a+2}, v{a+3}")
        e(f"s_mov_b32 s61, {((kq//2)*64 + (kq%2)*16)*2048}")
        if kq < 3: e("s_branch b_fin")
        if kq < 3: e(f"b_ex{kq+1}_s:")
    e("b_fin:")
    e("v_and_b32 v8, 15, v2"); e("v_lshlrev_b32 v8, 11, v8"); e("v_bfe_u32 v9, v2, 4, 1"); e("v_lshl_add_u32 v8, v9, 5, v8"); e("v_lshrrev_b32 v9, 5, v2"); e("v_lshl_add_u32 v8, v9, 4, v8")
    e("s_lshl_b32 s60, s55, 2"); e("s_add_u32 s60, s60, s58"); e("s_lshl_b32 s60, s60, 16"); e("s_add_u32 s60, s60, s61")
    e("s_lshl_b32 s61, s54, 9"); e("s_add_u32 s60, s60, s61"); e("s_lshl_b32 s61, s57, 8"); e("s_add_u32 s60, s60, s61")
    for pr in range(4):
        o = 16 + pr*4
        e(f"v_permlane16_swap_b32 v{o}, v{o+2}"); e(f"v_permlane16_swap_b32 v{o+1}, v{o+3}")
    for pr in range(4):
        o = 16 + pr*4
        e(f"buffer_store_dwordx4 v[{o}:{o+3}], v8, s[20:23], s60 offen offset:{pr*64}")
    if stamps: stamp_store(e, (80, 82, 84, 86, 86, 86, 86, 86), WS_STAMP + 0x10000, "b_end")
    e("b_end:")
    return k

def gen_b2(opts):
    NS = opts.get("NSb", 5)
    c = GemmCfg(128, 2, NS, 64)
    k = Kern("b_kernel", 256, 512, NS*c.SB, vgpr=160, sgpr=100)
    e = k.e
    stamps = opts.get("stamps", False)
    NT = " nt" if opts.get("nt", False) else ""
    NTT = " nt" if opts.get("ntt", False) else ""
    DPF = 14
    W2, B2 = 72, 74
    e("s_cmp_ge_u32 s2, 256"); e("s_cbranch_scc1 b_end")
    e("s_load_dwordx2 s[70:71], s[0:1], 24")
    e("s_load_dwordx4 s[72:75], s[0:1], 56")
    e("s_load_dwordx2 s[78:79], s[0:1], 80")
    e("s_load_dwordx2 s[6:7], s[0:1], 96")
    if stamps: e("s_memrealtime s[80:81]")
    e("s_mov_b32 s92, s2")
    e("v_lshrrev_b32 v1, 6, v0"); e("v_and_b32 v2, 63, v0"); e("v_lshlrev_b32 v3, 4, v2")
    e("s_lshr_b32 s56, s2, 3")
    e("v_readfirstlane_b32 s3, v1")
    e("s_and_b32 s52, s2, 1")
    if opts.get("bmap", "8d4s") == "8d4s":
        e("s_lshr_b32 s54, s56, 2")
        e("s_bfe_u32 s55, s2, 0x20001"); e("s_lshl_b32 s55, s55, 2"); e("s_and_b32 s60, s56, 3"); e("s_add_u32 s55, s55, s60")
    else:
        e("s_bfe_u32 s54, s2, 0x10001"); e("s_lshl_b32 s54, s54, 2"); e("s_and_b32 s60, s56, 3"); e("s_add_u32 s54, s54, s60")
        e("s_bfe_u32 s55, s2, 0x10002"); e("s_lshl_b32 s55, s55, 3"); e("s_lshr_b32 s60, s56, 2"); e("s_add_u32 s55, s55, s60")
    e("s_waitcnt lgkmcnt(0)")
    k.srd(16, WS, WS_SIZE)
    e("s_cmp_lt_u32 s3, 4"); e("s_cbranch_scc1 b_cons")
    k.srd(24, W2, F_*S_*2)
    e(f"s_mul_i32 s29, s52, {2304*4096}"); e("s_lshl_b32 s60, s55, 8"); e("s_add_u32 s29, s29, s60")
    nl = opts.get("nl", 4); nsl = 4 // nl
    if nl == 2: e("s_cmp_ge_u32 s3, 6"); e("s_cbranch_scc1 b_end")
    k.srd(20, WO, D_*D_*2)
    e("s_sub_u32 s3, s3, 4")
    for n in range(1, 2*nsl):
        sl, cg = divmod(n, 2); e(f"v_add_u32 v{8+n}, {(cg*4+sl*2)*D_*16}, v3"); e(f"v_add_u32 v{12+n}, {(cg*4+sl*2)*S_*16}, v3")
    lane_T_dma_off(e, 16, 24, 2, 6, S_*2, 3)
    for n in range(1, 4*nsl):
        sl, r = divmod(n, 4); sg, kg = divmod(r, 2); e(f"v_add_u32 v{24+n}, {sg*128 + kg*32*S_*2 + sl*16*S_*2}, v24")
    e("s_mul_i32 s28, s52, 288"); e("s_add_u32 s28, s28, s3"); e("s_lshl_b32 s28, s28, 14"); e("s_lshl_b32 s60, s54, 11"); e("s_add_u32 s28, s28, s60")
    e(f"s_add_u32 s28, s28, {WS_UT:#x}")
    e("s_lshl_b32 s30, s3, 11")
    e("s_lshl_b32 s31, s3, 10"); e(f"s_add_u32 s31, s31, {c.PB}")
    R3 = dict(nsl=nsl, vP=[3, 9, 10, 11], vT=list(range(24, 32)), sP=28, sT=29, srdP=16, srdT=24, sBase=30, sLds=32, sStage=34, sCnt=35,
              stepP=8*D_*16, stepT=64*S_*2, flags=("", NT))
    e("s_cmp_eq_u32 s52, 0"); e("s_cbranch_scc0 b_prod1")
    producer_loop(k, c, 36, R3)
    e("s_endpgm")
    e("b_prod1:")
    lane_T_dma_off(e, 16, 32, 2, 6, D_*2, 3)
    for n in range(1, 4*nsl):
        sl, r = divmod(n, 4); sg, kg = divmod(r, 2); e(f"v_add_u32 v{32+n}, {sg*128 + kg*32*D_*2 + sl*16*D_*2}, v32")
    e("s_lshl_b32 s36, s3, 15"); e("s_lshl_b32 s60, s55, 11"); e("s_add_u32 s36, s36, s60"); e(f"s_add_u32 s36, s36, {WS_OT:#x}")
    e("s_lshl_b32 s37, s54, 8")
    R4 = dict(R3, vP=[3, 13, 14, 15], vT=list(range(32, 40)), sP=36, sT=37, srdT=20, stepP=8*S_*16, stepT=64*D_*2, flags=("", ""))
    producer_loop(k, c, 36, [(20, R3), (16, R4)])
    e("s_endpgm")
    e("b_cons:")
    e("s_lshr_b32 s57, s3, 1"); e("s_and_b32 s58, s3, 1")
    k.srd(24, B2, S_*2)
    k.srd(20, OUT, S_*D_*2)
    e("v_and_b32 v15, 15, v2"); e("v_lshrrev_b32 v14, 4, v2")
    e("s_lshl_b32 s60, s55, 7"); e("s_lshl_b32 s61, s58, 5"); e("s_add_u32 s60, s60, s61"); e("v_add_u32 v8, s60, v15")
    e("v_lshlrev_b32 v9, 2, v8"); e("v_lshlrev_b32 v8, 1, v8")
    e(f"s_mov_b32 s60, {WS_G:#x}")
    GO, BO = 80, 88
    for j in range(4):
        e(f"buffer_load_dword v{GO+2*j}, v9, s[16:19], s60 offen offset:{((j//2)*64 + (j%2)*16)*4}")
        e(f"buffer_load_ushort v{BO+j}, v8, s[24:27], 0 offen offset:{((j//2)*64 + (j%2)*16)*2}")
    acc = [[96 + (i*4+j)*4 for j in range(4)] for i in range(4)]
    e("v_lshlrev_b32 v4, 11, v14"); e("v_lshl_add_u32 v4, v15, 4, v4")
    e("v_mov_b32 v5, v4")
    e("s_lshl_b32 s60, s57, 10"); e("v_add_u32 v4, s60, v4")
    lane_T_read_off(e, 16, 10, 2, 12, 13)
    e("s_lshl_b32 s60, s58, 6"); e("v_xor_b32 v6, s60, v10"); e("v_xor_b32 v7, 32, v6")
    e("s_waitcnt vmcnt(0)")
    e("s_cmp_eq_u32 s52, 0"); e("s_cselect_b32 s60, -65536, 0")
    for j in range(4):
        e(f"v_sub_f32 v{GO+2*j}, 1.0, v{GO+2*j}")
        e(f"v_lshlrev_b32 v{BO+j}, 16, v{BO+j}"); e(f"v_and_b32 v{BO+j}, s60, v{BO+j}")
        for i in range(4):
            for q in range(4): e(f"v_mov_b32 v{acc[i][j]+q}, v{BO+j}")
    p_off = [(0, kk*8192 + i*256) for kk in range(2) for i in range(4)]
    t_desc = [(j % 2, c.PB + (j//2)*8192 + kk*4096) for kk in range(2) for j in range(4)]
    order = [(kk*4+i, kk*4+j, i, j) for kk in range(2) for i in range(4) for j in range(4)]
    pbufs = [16 + 4*i for i in range(8)]; tbufs = [48 + 4*j for j in range(8)]
    def scale():
        e("s_waitcnt lgkmcnt(0)"); e("s_nop 7")
        for j in range(4):
            for i in range(4):
                for q in (0, 2):
                    a = acc[i][j] + q
                    e(f"v_pk_mul_f32 v[{a}:{a+1}], v[{a}:{a+1}], v[{GO+2*j}:{GO+2*j+1}] op_sel_hi:[1,0]")
    if stamps: e("s_memrealtime s[82:83]")
    e("s_cmp_eq_u32 s52, 0"); e("s_cbranch_scc0 b_cons1")
    consumer_loop(k, c, 36, 16, 8, 8, p_off, t_desc, acc, pbufs, tbufs, [4], [6, 7], True, order, 36, 37, 38, rpg=1, bar_pos=18)
    scale()
    e("s_branch b_exch")
    e("b_cons1:")
    consumer_loop(k, c, 20, 16, 8, 8, p_off, t_desc, acc, pbufs, tbufs, [4], [6, 7], True, order, 36, 37, 38, rpg=1, bar_pos=18)
    slot = 20 % NS
    e("s_lshl_b32 s60, s58, 9"); e(f"s_add_u32 s60, s60, {slot*c.SB}"); e("v_add_u32 v4, s60, v5")
    e("s_lshl_b32 s60, s57, 13"); e(f"s_add_u32 s60, s60, {slot*c.SB}"); e("v_add_u32 v10, s60, v10")
    for q in range(1, 4): e(f"v_xor_b32 v{10+q}, {32*q}, v10")
    scale()
    p_off4 = [(0, kk*8192 + (j//2)*1024 + (j%2)*256) for kk in range(2) for j in range(4)]
    t_desc4 = [(i, c.PB + kk*4096) for kk in range(2) for i in range(4)]
    order4 = [(kk*4+j, kk*4+i, i, j) for kk in range(2) for j in range(4) for i in range(4)]
    consumer_loop(k, c, 16, 16, 8, 8, p_off4, t_desc4, acc, pbufs, tbufs, [4], [10, 11, 12, 13], False, order4, 36, 37, 38, rpg=1, bar_pos=18, slot0=slot)
    e("s_waitcnt lgkmcnt(0)"); e("s_nop 7")
    e("b_exch:")
    if stamps: e("s_memrealtime s[84:85]")
    e("s_lshl_b32 s60, s2, 2"); e("s_add_u32 s60, s60, s3"); e("s_lshl_b32 s60, s60, 13"); e(f"s_add_u32 s60, s60, {gen2.WS_PART:#x}")
    e("s_add_u32 s61, s60, 4096")
    e("s_xor_b32 s62, s60, 0x8000"); e("s_add_u32 s63, s62, 4096")
    e("s_lshl_b32 s40, s2, 10"); e("s_lshl_b32 s41, s3, 7"); e("s_add_u32 s40, s40, s41"); e(f"s_add_u32 s40, s40, {WS_FLAG:#x}"); e("s_xor_b32 s41, s40, 0x400")
    e("v_mov_b32 v8, 0"); e("v_mov_b32 v9, 1")
    xb = opts.get("xbf16", False)
    def exch(hk, lab):
        snd = [acc[i][2*(1-hk)+jj] for jj in range(2) for i in range(4)]
        keep = [acc[i][2*hk+jj] for jj in range(2) for i in range(4)]
        if xb:
            for n, a in enumerate(snd):
                e(f"v_cvt_pk_bf16_f32 v{64+2*n}, v{a}, v{a+1}"); e(f"v_cvt_pk_bf16_f32 v{65+2*n}, v{a+2}, v{a+3}")
                if n % 2: e(f"buffer_store_dwordx4 v[{62+2*n}:{65+2*n}], v3, s[16:19], s60 offen offset:{(n//2)*1024} sc1")
        else:
            for n, a in enumerate(snd):
                e(f"buffer_store_dwordx4 v[{a}:{a+3}], v3, s[16:19], s{60 + n//4} offen offset:{(n%4)*1024} sc1")
        e("s_waitcnt vmcnt(0)")
        e(lane0("buffer_store_dword v9, v8, s[16:19], s40 offen sc1"))
        e("buffer_load_dword v10, v8, s[16:19], s41 offen sc1"); e("s_waitcnt vmcnt(0)")
        spin_until(k, 10, 8, 16, "s41", 1, 42, sleep=1)
        if xb:
            for n in range(4):
                e(f"buffer_load_dwordx4 v[{16+4*n}:{19+4*n}], v3, s[16:19], s62 offen offset:{n*1024} sc1")
            e("s_mov_b32 s63, 0xffff0000")
            for n, a in enumerate(keep):
                if n % 2 == 0: e(f"s_waitcnt vmcnt({3-n//2})")
                for h in range(2):
                    src = 16 + 2*n + h
                    e(f"v_lshlrev_b32 v32, 16, v{src}"); e(f"v_and_b32 v33, s63, v{src}")
                    e(f"v_pk_add_f32 v[{a+2*h}:{a+2*h+1}], v[{a+2*h}:{a+2*h+1}], v[32:33]")
        else:
            for n in range(8):
                e(f"buffer_load_dwordx4 v[{16+4*n}:{19+4*n}], v3, s[16:19], s{62 + n//4} offen offset:{(n%4)*1024} sc1")
            for n, a in enumerate(keep):
                e(f"s_waitcnt vmcnt({7-n})")
                for q in (0, 2): e(f"v_pk_add_f32 v[{a+q}:{a+q+1}], v[{a+q}:{a+q+1}], v[{16+4*n+q}:{17+4*n+q}]")
        for i in range(4):
            for jj in range(2):
                a = acc[i][2*hk+jj]; o = 48 + i*4 + jj*2
                e(f"v_cvt_pk_bf16_f32 v{o}, v{a}, v{a+1}"); e(f"v_cvt_pk_bf16_f32 v{o+1}, v{a+2}, v{a+3}")
    e("s_cmp_eq_u32 s52, 0"); e("s_cbranch_scc0 b_ex1")
    exch(0, "b_ex0")
    e("s_branch b_fin")
    e("b_ex1:")
    exch(1, "b_ex1")
    e("b_fin:")
    e("v_and_b32 v8, 31, v2"); e("v_lshlrev_b32 v8, 11, v8"); e("v_lshrrev_b32 v9, 5, v2"); e("v_lshl_add_u32 v8, v9, 4, v8")
    e("s_lshl_b32 s60, s55, 2"); e("s_lshl_b32 s61, s52, 1"); e("s_add_u32 s60, s60, s61"); e("s_add_u32 s60, s60, s58"); e("s_lshl_b32 s60, s60, 16")
    e("s_lshl_b32 s61, s54, 8"); e("s_add_u32 s60, s60, s61"); e("s_lshl_b32 s61, s57, 7"); e("s_add_u32 s60, s60, s61")
    for i in range(4):
        o = 48 + i*4
        e(f"v_permlane16_swap_b32 v{o}, v{o+2}"); e(f"v_permlane16_swap_b32 v{o+1}, v{o+3}")
    for i in range(4):
        o = 48 + i*4
        e(f"buffer_store_dwordx4 v[{o}:{o+3}], v8, s[20:23], s60 offen offset:{i*32}{opts.get('ost', '')}")
    if stamps:
        e("s_waitcnt vmcnt(0)")
        e("s_memrealtime s[86:87]"); e("s_waitcnt lgkmcnt(0)")
        for n, sr in enumerate((80, 82, 84, 86)): e(f"v_mov_b32 v{8+n}, s{sr}")
        e("s_lshl_b32 s41, s92, 5"); e(f"s_add_u32 s41, s41, {WS_STAMP+0x10000:#x}"); e("v_mov_b32 v7, s41")
        e("v_cmp_eq_u32 vcc, 0, v0"); e("s_and_saveexec_b64 s[42:43], vcc"); e(f"s_cbranch_execz b_end")
        e(f"global_store_dwordx4 v7, v[8:11], s[{WS}:{WS+1}]")
    e("b_end:")
    return k

if __name__ == "__main__":
    out = sys.argv[1]
    opts = eval("dict(" + (sys.argv[2] if len(sys.argv) > 2 else "") + ")")
    write_file(out, [gen_a(opts), gen_b2(opts)])
```

```python
import sys
from gen import *
import gen2, gen3, gen4
from gen2 import spin_until, softmax_units, DBG, WS, X, WQKV, WPHI, WO, W1, B1, GW, OUT, WS_KVP, NQ
from gen3 import Stream, Work, WS_KVF
from gen4 import lane0, HP

WS_SIZE = 0x4000000
WS_FLAGL = 0x14E0000
WS_FLAG1 = 0x14C0000
WS_FLAG2 = 0x14D0000
WS_FLAGU = 0x14F0000
WS_FLAGO = 0x14F8000
TOK = 44

def poll_tok(k, vaddr, srd, soff, nl_mask, vd, sleep=4, cnt=63):
    e = k.e
    L = k.lab("pt"); Lok = k.lab("ptok")
    if nl_mask is not None: e(f"s_mov_b64 exec, {nl_mask:#x}")
    e(f"s_mov_b32 s{cnt}, 0x40000")
    e(f"{L}:")
    vs = vaddr if isinstance(vaddr, list) else [vaddr]
    for n, va in enumerate(vs):
        e(f"buffer_load_dwordx2 v[{vd+2*n}:{vd+1+2*n}], v{va}, s[{srd}:{srd+3}], {soff} offen sc1")
    e("s_waitcnt vmcnt(0)")
    e(f"v_cmp_ne_u64 vcc, s[{TOK}:{TOK+1}], v[{vd}:{vd+1}]")
    for n in range(1, len(vs)):
        e(f"v_cmp_ne_u64 s[60:61], s[{TOK}:{TOK+1}], v[{vd+2*n}:{vd+1+2*n}]"); e("s_or_b64 vcc, vcc, s[60:61]")
    e(f"s_sub_u32 s{cnt}, s{cnt}, 1"); e(f"s_cbranch_scc1 {Lok}")
    e(f"s_cbranch_vccz {Lok}")
    e(f"s_sleep {sleep}")
    e(f"s_branch {L}")
    e(f"{Lok}:")
    if nl_mask is not None: e("s_mov_b64 exec, -1")

def get_token(k, vz, vd):
    e = k.e
    L = k.lab("tk"); Lok = k.lab("tkok")
    e("s_mov_b32 s63, 0x8000")
    e(f"{L}:")
    e(f"buffer_load_dwordx2 v[{vd}:{vd+1}], v{vz}, s[40:43], 0 offen sc1"); e("s_waitcnt vmcnt(0)")
    e(f"v_readfirstlane_b32 s{TOK}, v{vd}"); e(f"v_readfirstlane_b32 s{TOK+1}, v{vd+1}")
    e("s_sub_u32 s63, s63, 1"); e(f"s_cbranch_scc1 {Lok}")
    e(f"s_cmp_eq_u32 s{TOK}, 0"); e(f"s_cbranch_scc1 {L}")
    e(f"{Lok}:")

_sl = [0]
def stamp_store(e, regs, base, endlab, cond="v0"):
    _sl[0] += 1; endlab = f"stl{_sl[0]}"
    e("s_waitcnt vmcnt(0)")
    e("s_memrealtime s[86:87]"); e("s_waitcnt lgkmcnt(0)")
    for n, sr in enumerate(regs): e(f"v_mov_b32 v{16+n}, s{sr}")
    e("s_lshl_b32 s60, s92, 5"); e(f"s_add_u32 s60, s60, {base:#x}"); e("v_mov_b32 v7, s60")
    e(f"v_cmp_eq_u32 vcc, 0, {cond}"); e("s_and_saveexec_b64 s[60:61], vcc"); e(f"s_cbranch_execz {endlab}")
    e(f"global_store_dwordx4 v7, v[16:19], s[{WS}:{WS+1}]")
    e(f"global_store_dwordx4 v7, v[20:23], s[{WS}:{WS+1}] offset:16")
    e(f"{endlab}:"); e("s_mov_b64 exec, -1")

def gen_a(opts):
    c2 = GemmCfg(256, 2, 6, 32)
    k = Kern("gated_mix__linear_kernel_hedgehog__mixer_token_mlp__prompt_kernel", 256, 512, 160*1024, vgpr=256, sgpr=100)
    e = k.e
    stamps = opts.get("stamps", False)
    pf = opts.get("pf", True)
    e("s_cmp_ge_u32 s2, 256"); e("s_cbranch_scc1 a_end")
    e("s_load_dwordx8 s[64:71], s[0:1], 0")
    e("s_load_dwordx4 s[72:75], s[0:1], 40")
    e("s_load_dwordx4 s[76:79], s[0:1], 72")
    e("s_load_dwordx4 s[4:7], s[0:1], 88")
    e("s_load_dwordx2 s[12:13], s[0:1], 56")
    e(f"s_memrealtime s[{TOK}:{TOK+1}]")
    e("s_mov_b32 s92, s2")
    e("v_lshrrev_b32 v1, 6, v0"); e("v_and_b32 v2, 63, v0"); e("v_lshlrev_b32 v3, 4, v2")
    e("s_lshr_b32 s56, s2, 3"); e("s_and_b32 s57, s2, 7")
    e("v_readfirstlane_b32 s3, v1")
    e("v_mov_b32 v14, 0")
    e("s_waitcnt lgkmcnt(0)")
    if stamps: e(f"s_mov_b32 s80, s{TOK}")
    k.srd(16, WS, WS_SIZE)
    k.srd(40, DBG, 256)
    k.srd(20, X, S_*D_*2)
    e("s_lshl_b32 s60, s2, 3"); e("s_add_u32 s60, s60, s3"); e("s_cmp_lg_u32 s60, 7"); e("s_cbranch_scc1 a_ntp")
    e(f"s_or_b32 s{TOK}, s{TOK}, 1"); e(f"v_mov_b32 v4, s{TOK}"); e(f"v_mov_b32 v5, s{TOK+1}")
    e(lane0("buffer_store_dwordx2 v[4:5], v14, s[40:43], 0 offen sc1"))
    e("a_ntp:")
    e("s_lshr_b32 s58, s57, 1")
    e("s_and_b32 s60, s57, 1"); e("s_cmp_eq_u32 s60, 1"); e("s_cbranch_scc1 a_bchain")
    e("s_and_b32 s52, s56, 7")
    e("s_lshl_b32 s53, s58, 2"); e("s_lshr_b32 s60, s56, 3"); e("s_add_u32 s53, s53, s60")
    e("s_cmp_lt_u32 s3, 4"); e("s_cbranch_scc1 a_g1c")
    st = Stream(k)
    k.srd(24, WQKV, D_*3*D_*2)
    e("s_sub_u32 s3, s3, 4")
    e("v_lshrrev_b32 v7, 3, v2")
    e("s_lshl_b32 s60, s3, 6"); e("v_add_u32 v4, s60, v7"); e("v_lshlrev_b32 v4, 11, v4")
    e("v_lshrrev_b32 v5, 1, v7"); e("v_xor_b32 v5, v5, v2"); e("v_and_b32 v5, 7, v5")
    e("v_lshl_add_u32 v16, v5, 4, v4")
    e("v_xor_b32 v17, 64, v16"); e(f"v_add_u32 v17, {8*2048}, v17")
    for n in range(2, 8): e(f"v_add_u32 v{16+n}, {(n//2)*16*2048}, v{16+n%2}")
    lane_T_dma_off(e, 16, 24, 2, 6, 6144, 3)
    for n in (1, 2): e(f"v_add_u32 v{24+n}, {n*2048}, v24")
    e("s_lshl_b32 s9, s52, 19"); e("s_lshl_b32 s10, s53, 7")
    e("s_lshl_b32 s30, s3, 13"); e("s_lshl_b32 s31, s3, 10"); e(f"s_add_u32 s31, s31, {96*1024}")
    def issueP(n, half):
        if half == 0:
            st.e(f"s_add_u32 s11, s52, {n}\ns_and_b32 s11, s11, 15\ns_lshl_b32 s11, s11, 7\ns_add_u32 s28, s9, s11")
        for rb in range(4*half, 4*half+4):
            st.e(f"s_add_u32 m0, s30, {(n % 3)*32768 + rb*1024}\ns_nop 0\nbuffer_load_dwordx4 v{16+rb}, s[20:23], s28 offen lds")
        st.mark(f"P{n}")
    def issueT(t):
        st.e(f"s_lshl_b32 s11, s52, 1\ns_add_u32 s11, s11, {t}\ns_and_b32 s11, s11, 31\ns_mul_i32 s11, s11, {32*6144}\ns_add_u32 s29, s10, s11")
        for sg in range(3):
            st.e(f"s_add_u32 m0, s31, {(t % 5)*12288 + sg*4096}\ns_nop 0\nbuffer_load_dwordx4 v{24+sg}, s[24:27], s29 offen lds")
        st.mark(f"T{t}")
    issueP(0, 0); issueP(0, 1); issueT(0); st.mark("S0"); issueT(1); issueP(1, 0); issueP(1, 1); issueT(2); issueT(3); issueP(2, 0); issueP(2, 1); issueT(4)
    k.srd(48, WPHI, 32*2048)
    e("s_lshl_b32 s60, s53, 12"); e("s_lshl_b32 s61, s3, 10"); e("s_add_u32 s60, s60, s61"); e(f"s_add_u32 m0, s61, {156*1024}"); e("s_nop 0")
    st.e("buffer_load_dwordx4 v3, s[48:51], s60 offen lds")
    st.e("@wait S0"); e("s_barrier")
    for t in range(32):
        if t + 1 < 32:
            st.e(f"@wait T{t+1}")
            if t % 2 == 1: st.e(f"@wait P{(t+1)//2}")
        e("s_barrier")
        if t + 5 < 32: issueT(t + 5)
        m = (t - 1) // 2 + 3
        if t >= 1 and m < 16: issueP(m, (t + 1) % 2)
    e("s_lshr_b32 s54, s3, 1"); e("s_and_b32 s55, s3, 1"); e("s_lshl_b32 s59, s53, 1"); e("s_add_u32 s59, s59, s55")
    e("s_mul_i32 s60, s3, 12288"); e("v_add_u32 v8, s60, v3"); e(f"v_mov_b32 v9, {152*1024}")
    e("s_add_u32 s3, s3, 4"); e("s_mov_b32 s35, 1"); e("s_mov_b64 s[8:9], s[12:13]")
    e("s_barrier")
    e("ds_read_b64 v[12:13], v9")
    for n in range(4):
        for part in range(3): e(f"ds_read_b128 v[{64+24*n+4*part}:{64+24*n+4*part+3}], v8 offset:{(n*3+part)*1024}")
    e("s_waitcnt lgkmcnt(0)")
    e(f"v_readfirstlane_b32 s{TOK}, v12"); e(f"v_readfirstlane_b32 s{TOK+1}, v13")
    e("s_branch a_epi")
    e("a_g1c:")
    e("s_lshr_b32 s54, s3, 1"); e("s_and_b32 s55, s3, 1")
    e("s_lshl_b32 s59, s53, 1"); e("s_add_u32 s59, s59, s55")
    e("s_mov_b64 s[8:9], s[12:13]")
    acc = [[64 + (i*6+j)*4 for j in range(6)] for i in range(8)]
    for r in range(64, 256, 2): e(f"v_mov_b64 v[{r}:{r+1}], 0")
    e("v_and_b32 v8, 15, v2"); e("v_lshrrev_b32 v9, 4, v2")
    e("v_lshrrev_b32 v10, 1, v8"); e("v_xor_b32 v10, v10, v9")
    e("s_lshl_b32 s60, s54, 7"); e("v_add_u32 v4, s60, v8"); e("v_lshlrev_b32 v4, 7, v4"); e("v_lshl_add_u32 v4, v10, 4, v4")
    lane_T_read_off(e, 16, 6, 2, 8, 9)
    e("s_lshl_b32 s60, s55, 6"); e("v_xor_b32 v6, s60, v6"); e(f"v_add_u32 v6, {96*1024}, v6"); e("v_xor_b32 v7, 32, v6")
    get_token(k, 14, 12)
    p_off = [(0, i*2048) for i in range(8)]
    t_desc = [(j % 2, (j//2)*4096) for j in range(6)]
    order = [(2*a+b, j, 2*a+b, j) for a in range(4) for j in range(6) for b in range(2)]
    pbufs = [16 + 4*i for i in range(4)]; tbufs = [32 + 4*j for j in range(8)]
    ringT = ["s_cmp_eq_u32 s36, 4", "s_cselect_b32 s37, s39, 12288", "s_cselect_b32 s36, -1, s36", "s_add_u32 s36, s36, 1"]
    ringP = ["s_cmp_eq_u32 s32, 2", "s_cselect_b32 s33, s34, 0x8000", "s_cselect_b32 s32, -1, s32", "s_add_u32 s32, s32, 1"]
    salu = lambda s: ringT + (ringP if s % 2 else [])
    valu = lambda s: ["v_add_u32 v6, s37, v6", "v_add_u32 v7, s37, v7", "v_xor_b32 v4, 64, v4"] + (["v_add_u32 v4, s33, v4"] if s % 2 else [])
    tail = ["s_sub_u32 s38, s38, 1", "s_cmp_lg_u32 s38, 0"]
    ahead, body, U = build_consumer(None, 16, 8, 6, p_off, t_desc, acc, pbufs, tbufs, [4], [6, 7], lambda i, j: j >= 4, order,
                                    opts.get("bar1", 38), 1, salu, valu, tail, minU=2, salu_at=0)
    e(f"s_mov_b32 s39, {(-4*12288) & 0xffffffff:#x}"); e(f"s_mov_b32 s34, {(-2*32768) & 0xffffffff:#x}"); e("s_mov_b32 s36, 0"); e("s_mov_b32 s32, 0")
    if stamps: e("s_memrealtime s[82:83]")
    e("s_barrier")
    for l in ahead: e(l)
    e("s_waitcnt lgkmcnt(0)")
    e(f"s_mov_b32 s38, {32//U}"); e(".p2align 3"); e("a_g1loop:")
    for l in body: e(l)
    e("s_cbranch_scc1 a_g1loop")
    if stamps: e("s_memrealtime s[84:85]")
    e("s_waitcnt lgkmcnt(0)")
    Bk = lambda sb: 64 + 24*sb
    def cvt_units(sbs):
        for sb in sbs:
            B = Bk(sb)
            for n in range(8): e(f"v_cvt_pk_bf16_f32 v{B+n}, v{B+2*n}, v{B+2*n+1}")
        for p in sorted(set(sb//2 for sb in sbs)):
            for db in range(2):
                d = Bk(2*p+db) + 8
                for h in range(2):
                    a = Bk(2*p+h) + 16 + 4*db
                    e(f"v_cvt_pk_bf16_f32 v{d+2*h}, v{a}, v{a+1}"); e(f"v_cvt_pk_bf16_f32 v{d+2*h+1}, v{a+2}, v{a+3}")
    e("s_mul_i32 s60, s3, 12288"); e("v_add_u32 v8, s60, v3"); e(f"v_mov_b32 v9, {152*1024}")
    e("ds_write_b64 v9, v[12:13]")
    e("s_nop 4")
    cvt_units([4, 5, 6, 7])
    for n in range(4):
        for part in range(3): e(f"ds_write_b128 v8, v[{Bk(4+n)+4*part}:{Bk(4+n)+4*part+3}] offset:{(n*3+part)*1024}")
    cvt_units([0, 1, 2, 3])
    e("s_mov_b32 s35, 0")
    e("s_waitcnt lgkmcnt(0)"); e("s_barrier")
    if opts.get("estamp"): e("s_memrealtime s[82:83]")
    e("a_epi:")
    holes = [Bk(sb) + 12 + 4*n for sb in range(4) for n in range(3)]
    KVq = holes[0:9]; WPq = holes[9:11]
    PK, ST, EP, EF, ZB = 16, 48, 160, 224, 240
    e("v_lshrrev_b32 v8, 2, v2"); e("v_lshlrev_b32 v8, 6, v8"); e("v_and_b32 v9, 3, v2"); e("v_lshl_add_u32 v8, v9, 3, v8")
    e("s_lshl_b32 s60, s55, 11"); e(f"s_add_u32 s60, s60, {156*1024}"); e("v_add_u32 v8, s60, v8")
    for fb in range(2):
        for t in range(2): e(f"ds_read_b64_tr_b16 v[{WPq[fb]+2*t}:{WPq[fb]+2*t+1}], v8 offset:{t*1024 + fb*32}")
    e(f"s_mov_b32 s62, {f32(LOG2E)}"); e(f"s_mov_b32 s63, {f32(LOG2E)}")
    e("v_and_b32 v8, 15, v2"); e("v_lshrrev_b32 v9, 4, v2"); e("s_mul_i32 s34, s3, 10240"); e(f"s_add_u32 s34, s34, {48*1024}")
    e("v_mul_u32_u24 v10, 160, v8"); e("v_lshl_add_u32 v10, v9, 3, v10"); e("v_add_u32 v10, s34, v10")
    e("v_lshrrev_b32 v8, 2, v8"); e("v_lshl_add_u32 v8, v9, 2, v8"); e("v_mul_u32_u24 v11, 160, v8")
    def pmfma(off):
        for u in range(4):
            for fb in range(2):
                d = PK + (u*2+fb)*4; s = Bk(u) + off
                e(f"v_mfma_f32_16x16x32_bf16 v[{d}:{d+3}], v[{WPq[fb]}:{WPq[fb]+3}], v[{s}:{s+3}], 0")
    e("s_waitcnt lgkmcnt(0)")
    pmfma(4)
    e("v_and_b32 v8, 3, v2"); e("v_lshl_add_u32 v11, v8, 3, v11"); e("v_add_u32 v11, s34, v11"); e("v_mov_b32 v9, 0x3f803f80")
    for fbk in range(4):
        e(f"v_cmp_eq_u32 vcc, {fbk}, v8"); e("s_nop 1"); e(f"v_cndmask_b32 v{ZB+4*fbk}, 0, v9, vcc")
        for r in range(1, 4): e(f"v_mov_b32 v{ZB+4*fbk+r}, v{ZB+4*fbk}")
    units = [dict(x=[PK+u*8, PK+u*8+4], ep=EP+u*16, em=EP+8+u*16, st=ST+u*4, out=EP+u*16) for u in range(4)]
    softmax_units(e, units, 62, True)
    for u in range(4):
        o = units[u]["out"]
        for fbk in range(4): e(f"ds_write_b64 v10, v[{o+2*fbk}:{o+2*fbk+1}] offset:{u*16*160 + fbk*32}")
    pmfma(0)
    e("s_waitcnt lgkmcnt(0)")
    EFs = [EF, EP + 8]
    efq = [[EF + 4*n for n in range(4)], [EP+8, EP+12, EP+24, EP+28]]
    for p in range(2):
        for fbk in range(4):
            for t in range(2): e(f"ds_read_b64_tr_b16 v[{efq[p][fbk]+2*t}:{efq[p][fbk]+2*t+1}], v11 offset:{(2*p+t)*16*160 + fbk*32}")
    for p in range(2):
        for fbk in range(4):
            e(f"s_waitcnt lgkmcnt({14-8*p-2*fbk})")
            for db in range(3):
                d = KVq[fbk*2+db] if db < 2 else KVq[8]
                b = Bk(2*p+db) + 8 if db < 2 else ZB + 4*fbk
                cc = "0" if (p == 0 and (db < 2 or fbk == 0)) else f"v[{d}:{d+3}]"
                e(f"v_mfma_f32_16x16x32_bf16 v[{d}:{d+3}], v[{efq[p][fbk]}:{efq[p][fbk]+3}], v[{b}:{b+3}], {cc}")
    e("v_add_u32 v10, s34, v3")
    e("s_lshr_b32 s33, s3, 1"); e("s_mul_i32 s60, s55, 10240"); e("s_lshl_b32 s61, s33, 10"); e("s_add_u32 s60, s60, s61"); e(f"s_add_u32 s60, s60, {48*1024}"); e("v_add_u32 v11, s60, v3"); e("v_add_u32 v15, 0xa000, v11")
    e("s_lshl_b32 s60, s59, 3"); e("s_add_u32 s60, s60, s52")
    e("s_lshl_b32 s36, s60, 7"); e(f"s_add_u32 s36, s36, {WS_FLAG1:#x}")
    e(f"s_mul_i32 s37, s60, {NQ*1024}"); e("s_add_u32 s37, s37, s61"); e(f"s_add_u32 s37, s37, {WS_KVP:#x}"); e("s_add_u32 s38, s37, 4096")
    for qd in range(NQ): e(f"ds_write_b128 v10, v[{KVq[qd]}:{KVq[qd]+3}] offset:{qd*1024}")
    e("s_waitcnt lgkmcnt(0)"); e("s_barrier")
    if opts.get("estamp"): e("s_memrealtime s[94:95]"); e("s_waitcnt lgkmcnt(0)")
    C0 = 224
    for hq in range(2):
        for src in range(4): e(f"ds_read_b128 v[{C0+(hq*4+src)*4}:{C0+(hq*4+src)*4+3}], v{11 if src < 2 else 15} offset:{(src%2)*20480 + hq*4096}")
    e("s_cmp_lg_u32 s33, 0"); e("s_cbranch_scc1 a_noz")
    for src in range(4): e(f"ds_read_b128 v[{holes[src]}:{holes[src]+3}], v{11 if src < 2 else 15} offset:{(src%2)*20480 + 8192}")
    e("s_waitcnt lgkmcnt(0)")
    for src in range(1, 4):
        for q in (0, 2): e(f"v_pk_add_f32 v[{holes[0]+q}:{holes[0]+q+1}], v[{holes[0]+q}:{holes[0]+q+1}], v[{holes[src]+q}:{holes[src]+q+1}]")
    e("s_add_u32 s39, s37, 8192")
    e(f"buffer_store_dwordx4 v[{holes[0]}:{holes[0]+3}], v3, s[16:19], s39 offen sc1")
    e("a_noz:")
    e("s_waitcnt lgkmcnt(0)")
    for hq in range(2):
        a = C0 + hq*16
        for src in range(1, 4):
            for q in (0, 2): e(f"v_pk_add_f32 v[{a+q}:{a+q+1}], v[{a+q}:{a+q+1}], v[{a+4*src+q}:{a+4*src+q+1}]")
        e(f"buffer_store_dwordx4 v[{a}:{a+3}], v3, s[16:19], s{37+hq} offen sc1")
    units = [dict(x=[PK+u*8, PK+u*8+4], ep=EP+u*16, em=EP+8+u*16, st=ST+u*4, out=Bk(u)+4) for u in range(4)]
    w = Work(); softmax_units(w.e, units, 62, False)
    cut = len(w.q) * opts.get("e3cut", 40) // 100
    for l in w.q[:cut]: e(l)
    e("s_waitcnt vmcnt(0)"); e("s_barrier")
    if opts.get("estamp"): e("s_memrealtime s[96:97]"); e("s_waitcnt lgkmcnt(0)")
    e("s_cmp_lg_u32 s33, 0"); e("s_cbranch_scc1 a_nof")
    e(lane0("buffer_store_dwordx2 v[12:13], v14, s[16:19], s36 offen sc1"))
    e("a_nof:")
    if pf:
        k.srd(24, 8, F_*S_*2); k.srd(48, WO, D_*D_*2)
        e("s_lshl_b32 s60, s58, 5"); e("s_add_u32 s60, s60, s56"); e("s_lshl_b32 s60, s60, 3"); e("s_add_u32 s60, s60, s3"); e("s_lshl_b32 s60, s60, 10")
        e("s_mov_b32 s61, s60")
        for n in range(14): e(f"buffer_load_dwordx4 v[240:243], v3, s[24:27], s60 offen"); e(f"s_add_u32 s60, s60, 0x100000")
        for n in range(2): e(f"buffer_load_dwordx4 v[240:243], v3, s[48:51], s61 offen"); e(f"s_add_u32 s61, s61, 0x100000")
    for l in w.q[cut:]: e(l)
    if stamps: e("s_memrealtime s[88:89]")
    KOq = holes[0:4]; ZOq = holes[4:6]; GG = holes[6]
    e("s_lshl_b32 s36, s59, 7"); e(f"s_add_u32 s36, s36, {WS_FLAG2:#x}")
    poll_tok(k, 14, 16, "s36", None, 8, sleep=2)
    if stamps: e("s_memrealtime s[90:91]")
    e(f"s_mul_i32 s36, s59, 6144"); e(f"s_add_u32 s36, s36, {WS_KVF:#x}"); e("s_add_u32 s37, s36, 4096")
    for n, d in enumerate([ZOq[0], KOq[0], KOq[1], ZOq[1], KOq[2], KOq[3]]):
        idx = [4, 0, 1, 5, 2, 3][n]
        e(f"buffer_load_dwordx4 v[{d}:{d+3}], v3, s[16:19], s{36 + idx//4} offen offset:{(idx%4)*1024} sc1")
    e("v_and_b32 v8, 15, v2"); e("v_lshlrev_b32 v8, 2, v8")
    e("s_lshl_b32 s38, s52, 2"); e("s_lshl_b32 s39, s54, 1"); e("s_add_u32 s38, s38, s39"); e("s_add_u32 s38, s38, s35")
    e("s_lshl_b32 s36, s38, 8"); e(f"s_add_u32 s36, s36, {WS_G:#x}")
    for u in range(4): e(f"buffer_load_dword v{GG+u}, v8, s[16:19], s36 offen offset:{u*64} sc1")
    e("v_lshrrev_b32 v8, 5, v2"); e("v_lshlrev_b32 v9, 15, v8"); e("v_and_b32 v8, 31, v2"); e("v_lshl_add_u32 v9, v8, 4, v9")
    e("s_lshl_b32 s36, s59, 17"); e("s_lshl_b32 s37, s38, 10"); e("s_add_u32 s36, s36, s37")
    e(f"s_add_u32 s36, s36, {WS_OT:#x}"); e("s_add_u32 s37, s36, 0x10000")
    e(f"v_mov_b32 v8, {f32(1e-6)}")
    e("s_waitcnt vmcnt(0)")
    nq = [160 + 4*n for n in range(24)]
    for u in range(4):
        for sg in range(2):
            b = Bk(u) + 4 + sg*4
            for db in (2, 0, 1):
                d = nq[u*6 + sg*3 + db]; a = KOq[sg*2+db] if db < 2 else ZOq[sg]
                e(f"v_mfma_f32_16x16x32_bf16 v[{d}:{d+3}], v[{a}:{a+3}], v[{b}:{b+3}], 0")
    e("s_nop 1")
    for u in range(4):
        xp, xm = nq[u*6+2], nq[u*6+5]
        e(f"v_rcp_f32 v{xp+2}, v{xp+1}"); e(f"v_rcp_f32 v{xp+3}, v{xm+1}")
    for u in range(4):
        xp, xm = nq[u*6+2], nq[u*6+5]
        e(f"v_fma_f32 v{xp}, v{xp}, v{xp+2}, v8"); e(f"v_fma_f32 v{xp}, v{xm}, v{xp+3}, v{xp}")
    for u in range(4): xp = nq[u*6+2]; e(f"v_rcp_f32 v{xp}, v{xp}")
    for u in range(4): xp = nq[u*6+2]; e(f"v_mul_f32 v{xp}, v{xp}, v{GG+u}")
    for u in range(4):
        xp = nq[u*6+2]; e(f"v_pk_mul_f32 v[{xp+2}:{xp+3}], v[{xp+2}:{xp+3}], v[{xp}:{xp+1}] op_sel_hi:[1,0]")
    for u in range(4):
        xp = nq[u*6+2]
        for db in range(2):
            np_, nm = nq[u*6+db], nq[u*6+3+db]
            for q in (0, 2):
                e(f"v_pk_mul_f32 v[{np_+q}:{np_+q+1}], v[{np_+q}:{np_+q+1}], v[{xp+2}:{xp+3}] op_sel:[0,0] op_sel_hi:[1,0]")
                e(f"v_pk_fma_f32 v[{np_+q}:{np_+q+1}], v[{nm+q}:{nm+q+1}], v[{xp+2}:{xp+3}], v[{np_+q}:{np_+q+1}] op_sel:[0,1,0] op_sel_hi:[1,1,1]")
    for u in range(4):
        for db in range(2):
            np_ = nq[u*6+db]; o = 16 + ((u//2)*2+db)*4 + (u % 2)*2
            e(f"v_cvt_pk_bf16_f32 v{o}, v{np_}, v{np_+1}"); e(f"v_cvt_pk_bf16_f32 v{o+1}, v{np_+2}, v{np_+3}")
    e("s_nop 1")
    for n in range(4):
        o = 16 + n*4; e(f"v_permlane16_swap_b32 v{o}, v{o+2}"); e(f"v_permlane16_swap_b32 v{o+1}, v{o+3}")
    for n in range(4):
        o = 16 + n*4; pr, db = divmod(n, 2)
        e(f"buffer_store_dwordx4 v[{o}:{o+3}], v9, s[16:19], s{36+db} offen offset:{pr*512}{opts.get('ust', '')}")
    if stamps: stamp_store(e, (80, 84, 82, 94, 96, 88, 86, 86) if opts.get("estamp") else (80, 82, 84, 88, 90, 86, 86, 86), WS_STAMP, "a_end")
    e("s_lshl_b32 s39, s52, 4"); e("s_add_u32 s39, s39, s53"); e("s_lshl_b32 s39, s39, 7"); e(f"s_add_u32 s39, s39, {WS_FLAGO:#x}")
    e("s_waitcnt vmcnt(0)")
    e("s_branch b_entry")
    e("a_bchain:")
    e("s_lshl_b32 s52, s58, 5"); e("s_add_u32 s52, s52, s56")
    e("s_and_b32 s54, s56, 3")
    e("s_mul_i32 s55, s58, 7"); e("s_lshr_b32 s60, s56, 2"); e("s_add_u32 s55, s55, s60")
    e("s_cmp_lt_u32 s3, 4"); e("s_cbranch_scc1 a_lnc")
    e("s_cmp_ge_u32 s56, 28"); e("s_cbranch_scc1 a_sp_hi")
    st = Stream(k)
    k.srd(24, W1, S_*F_*2)
    e("s_sub_u32 s3, s3, 4")
    lane_T_dma_off(e, 16, 24, 2, 6, F_*2, 3)
    e("v_add_u32 v25, 128, v24")
    e("s_lshl_b32 s60, s3, 14"); e(f"s_lshl_b32 s28, s54, 12"); e("s_add_u32 s28, s28, s60"); e(f"s_add_u32 s28, s28, {WS_HT:#x}")
    e("s_lshl_b32 s29, s55, 8")
    e("s_lshl_b32 s30, s3, 12"); e("s_lshl_b32 s31, s3, 10"); e(f"s_add_u32 s31, s31, {c2.PB}")
    R2 = dict(vP=[3], vT=[24, 25], sP=28, sT=29, srdP=16, srdT=24, sBase=30, sLds=32, sStage=34, sCnt=35, stepP=4*D_*16, stepT=32*F_*2)
    fl = (" sc1", "")
    e("s_mov_b32 s32, s30"); e("s_mov_b32 s33, s31")
    for t in range(5): producer_issue(st.e, c2, R2, fl, "T", t*c2.SB)
    def g2_touches():
        e("s_mul_i32 s60, s58, 28"); e("s_add_u32 s60, s60, s56"); e("s_lshl_b32 s60, s60, 2"); e("s_add_u32 s60, s60, s3"); e("s_lshl_b32 s60, s60, 10")
        if opts.get("pf_wq", True):
            k.srd(48, WQKV, D_*3*D_*2)
            e("s_mov_b32 s61, s60")
            for n in range(14): st.e("buffer_load_dwordx4 v[240:243], v3, s[48:51], s61 offen"); e(f"s_add_u32 s61, s61, {448*1024}")
        e(f"s_add_u32 s61, s60, {160*7168}")
        for n in range(opts.get("pf_g2", 0)): st.e("buffer_load_dwordx4 v[240:243], v3, s[24:27], s61 offen"); e(f"s_add_u32 s61, s61, {448*1024}")
    if opts.get("tpos", "L1") == "pre": g2_touches()
    e("v_lshlrev_b32 v8, 7, v2"); e("v_add_u32 v9, 0x2000, v8")
    e("s_barrier")
    e(f"v_mov_b32 v4, {158*1024}"); e("ds_read_b64 v[10:11], v4"); e("s_waitcnt lgkmcnt(0)")
    e(f"v_readfirstlane_b32 s{TOK}, v10"); e(f"v_readfirstlane_b32 s{TOK+1}, v11")
    if opts.get("tpos", "L1") == "L1": g2_touches()
    e("s_barrier")
    producer_issue(st.e, c2, R2, fl, "T", 5*c2.SB)
    e(f"s_mov_b32 s36, {WS_FLAGL:#x}")
    poll_tok(k, [8, 9], 16, "s36", None, 10, sleep=2)
    st = Stream(k)
    for t in range(6):
        producer_issue(st.e, c2, R2, fl, "P", t*c2.SB); st.mark(f"b{t}")
    e("s_mov_b32 s34, 0")
    st.e("@wait b0"); e("s_barrier")
    for t in range(5):
        st.e(f"@wait b{t+1}"); e("s_barrier")
        producer_issue(st.e, c2, R2, fl); ring_advance(e, c2, R2)
    e("s_mov_b32 s35, 53")
    e("a_l2:")
    e("s_waitcnt vmcnt(24)"); e("s_barrier")
    producer_issue(e, c2, R2, fl); ring_advance(e, c2, R2)
    e("s_sub_u32 s35, s35, 1"); e("s_cmp_lg_u32 s35, 0"); e("s_cbranch_scc1 a_l2")
    for r in range(6):
        e(f"s_waitcnt vmcnt({max(4-r, 0)*6})"); e("s_barrier")
    e("s_branch b_entry")
    e("a_lnc:")
    st = Stream(k)
    e("s_lshl_b32 s37, s52, 15"); e("s_lshl_b32 s38, s3, 13"); e("s_add_u32 s37, s37, s38"); e("s_add_u32 s38, s37, 4096")
    for n in range(8): st.e(f"buffer_load_dwordx4 v[{48+4*n}:{51+4*n}], v3, s[20:23], s{37+n//4} offen offset:{(n%4)*1024}")
    k.srd(24, GW, D_*2)
    st.e("buffer_load_dwordx4 v[80:83], v3, s[24:27], 0 offen"); st.e("@vm lng buffer_load_dwordx4 v[84:87], v3, s[24:27], 0 offen offset:1024")
    k.srd(48, B1, F_*2)
    e("s_lshr_b32 s57, s3, 1"); e("s_and_b32 s58, s3, 1")
    e("v_lshrrev_b32 v7, 4, v2"); e("v_lshlrev_b32 v7, 3, v7")
    e("s_lshl_b32 s60, s55, 8"); e("s_lshl_b32 s61, s58, 6"); e("s_add_u32 s60, s60, s61")
    for j in range(4): st.e(f"buffer_load_dwordx2 v[{96+2*j}:{97+2*j}], v7, s[48:51], s60 offen offset:{(j//2)*128 + (j%2)*32}")
    get_token(k, 14, 12)
    e(f"v_mov_b32 v4, {158*1024}"); e("ds_write_b64 v4, v[12:13]")
    LS = 120*1024
    e("s_mov_b32 s36, 0xffff0000")
    e(f"s_mul_i32 s37, s3, {4*HP}"); e(f"s_add_u32 s37, s37, {LS}"); e("v_add_u32 v22, s37, v3")
    e(f"v_bfe_u32 v23, v2, 2, 2"); e(f"v_mul_u32_u24 v23, {HP}, v23"); e("v_and_b32 v120, 3, v2"); e("v_lshl_add_u32 v23, v120, 3, v23")
    e(f"v_lshrrev_b32 v120, 4, v2"); e("v_lshl_add_u32 v23, v120, 5, v23")
    e(f"s_mul_i32 s37, s57, {8*HP}"); e("s_lshl_b32 s38, s58, 10"); e("s_add_u32 s37, s37, s38"); e(f"s_add_u32 s37, s37, {LS}"); e("v_add_u32 v23, s37, v23")
    for i in range(8):
        e(f"v_lshlrev_b32 v{104+2*i}, 16, v{80+i}"); e(f"v_and_b32 v{105+2*i}, s36, v{80+i}")
    w = Work()
    gen4.ln_rows(w, 48, 0); gen4.ln_rows(w, 64, 1)
    for it in w.q: e(it.replace("s_lshl_b32 s37, s2, 5", "s_lshl_b32 s37, s52, 6"))
    e("s_waitcnt lgkmcnt(0)"); e("s_barrier")
    for j in range(8):
        e(f"ds_read_b64_tr_b16 v[{144+4*j}:{145+4*j}], v23 offset:{128*j}")
        e(f"ds_read_b64_tr_b16 v[{146+4*j}:{147+4*j}], v23 offset:{128*j+4*HP}")
    e(f"s_lshl_b32 s37, s52, 15"); e("s_lshl_b32 s38, s3, 13"); e("s_add_u32 s37, s37, s38"); e(f"s_add_u32 s37, s37, {WS_HT:#x}"); e("s_add_u32 s38, s37, 4096")
    for j in range(8):
        e(f"s_waitcnt lgkmcnt({14-2*j})"); e(f"buffer_store_dwordx4 v[{144+4*j}:{147+4*j}], v3, s[16:19], s{37+j//4} offen offset:{(j%4)*1024} sc1")
    acc2 = [[128 + (i*4+j)*4 for j in range(4)] for i in range(8)]
    e("s_nop 1")
    for j in range(4):
        for hh in range(2):
            src = 96 + j*2 + hh; d0 = acc2[0][j] + hh*2
            e(f"v_lshlrev_b32 v{d0}, 16, v{src}"); e(f"v_and_b32 v{d0+1}, s36, v{src}")
        for i in range(1, 8):
            for q in (0, 2): e(f"v_mov_b64 v[{acc2[i][j]+q}:{acc2[i][j]+q+1}], v[{acc2[0][j]+q}:{acc2[0][j]+q+1}]")
    e("v_lshrrev_b32 v8, 4, v2"); e("v_lshlrev_b32 v4, 12, v8"); e("v_and_b32 v9, 15, v2"); e("v_lshl_add_u32 v4, v9, 4, v4")
    e("s_lshl_b32 s60, s57, 11"); e("v_add_u32 v4, s60, v4")
    lane_T_read_off(e, 16, 6, 2, 8, 9)
    e("s_lshl_b32 s60, s58, 6"); e("v_xor_b32 v6, s60, v6"); e("v_xor_b32 v7, 32, v6")
    e("s_waitcnt vmcnt(0)"); e("s_barrier")
    e("s_cmp_lg_u32 s3, 0"); e("s_cbranch_scc1 a_lnf")
    e("s_lshl_b32 s37, s52, 7"); e(f"s_add_u32 s37, s37, {WS_FLAGL:#x}")
    e(lane0("buffer_store_dwordx2 v[12:13], v14, s[16:19], s37 offen sc1"))
    e("a_lnf:")
    if stamps: e("s_memrealtime s[82:83]")
    e("s_cmp_ge_u32 s56, 28"); e("s_cbranch_scc1 a_spare")
    p_off = [(0, i*256) for i in range(8)]
    t_desc = [(j % 2, c2.PB + (j//2)*4096) for j in range(4)]
    order = [(i, j, i, j) for i in range(8) for j in range(4)]
    pbufs = [16 + 4*i for i in range(16)]; tbufs = [80 + 4*j for j in range(8)]
    consumer_loop(k, c2, [(2, ["s_memrealtime s[84:85]", "s_waitcnt lgkmcnt(0)"] if stamps else []), (62, [])], 16, 8, 4, p_off, t_desc, acc2, pbufs, tbufs, [4], [6, 7],
                  False, order, 36, 37, 38, rpg=1, bar_pos=2)
    if stamps: e("s_memrealtime s[88:89]")
    e("s_waitcnt lgkmcnt(0)")
    e("v_lshrrev_b32 v8, 5, v2"); e("v_lshlrev_b32 v7, 14, v8"); e("v_and_b32 v8, 31, v2"); e("v_lshl_add_u32 v7, v8, 4, v7")
    e("s_lshl_b32 s14, s55, 18"); e("s_lshl_b32 s15, s58, 16"); e("s_add_u32 s14, s14, s15")
    e("s_lshl_b32 s15, s54, 12"); e("s_add_u32 s14, s14, s15"); e("s_lshl_b32 s15, s57, 11"); e("s_add_u32 s14, s14, s15")
    e(f"s_add_u32 s14, s14, {WS_UT:#x}")
    e(f"s_mov_b32 s42, {f32(GELU_K3)}"); e(f"s_mov_b32 s43, {f32(GELU_K3)}")
    e(f"v_mov_b32 v10, {f32(GELU_K1)}"); e(f"v_mov_b32 v11, {f32(GELU_K1)}")
    blk = 0
    for j in range(4):
        e(f"s_add_u32 s15, s14, {((j//2)*8 + (j%2)*2)*16384}")
        for i in (0, 4):
            t = 16 + (blk % 2) * 24; o = t + 16; blk += 1
            gelu_block(e, [acc2[i+b][j] + q for b in range(4) for q in (0, 2)], t, o)
            e("s_nop 1")
            for pr in range(2):
                e(f"v_permlane16_swap_b32 v{o+4*pr}, v{o+4*pr+2}"); e(f"v_permlane16_swap_b32 v{o+4*pr+1}, v{o+4*pr+3}")
            for pr in range(2):
                e(f"buffer_store_dwordx4 v[{o+4*pr}:{o+4*pr+3}], v7, s[16:19], s15 offen offset:{(i+2*pr)*256}{opts.get('ust', '')}")
    if stamps: stamp_store(e, (80, 82, 84, 88, 88, 86, 86, 86), WS_STAMP, "a_end")
    e("s_mul_i32 s39, s54, 28"); e("s_add_u32 s39, s39, s55"); e("s_lshl_b32 s39, s39, 7"); e(f"s_add_u32 s39, s39, {WS_FLAGU:#x}")
    e("s_waitcnt vmcnt(0)")
    e("s_branch b_entry")
    e("a_sp_hi:")
    e("s_barrier")
    e(f"v_mov_b32 v4, {158*1024}"); e("ds_read_b64 v[12:13], v4"); e("s_waitcnt lgkmcnt(0)")
    e(f"v_readfirstlane_b32 s{TOK}, v12"); e(f"v_readfirstlane_b32 s{TOK+1}, v13")
    e("s_barrier")
    e("a_spare:")
    if opts.get("pf_sp", True):
        k.srd(24, W1, S_*F_*2)
        r0 = opts.get("sp_row0", 192)
        e("s_lshr_b32 s60, s52, 5"); e("s_lshl_b32 s60, s60, 2"); e("s_add_u32 s60, s60, s56"); e("s_sub_u32 s60, s60, 28"); e("s_lshl_b32 s60, s60, 3"); e("s_add_u32 s60, s60, s3")
        e("s_lshl_b32 s61, s60, 10"); e(f"s_add_u32 s61, s61, {r0*7168}")
        e(f"s_mov_b32 s62, {((2048-r0)*7 + 127)//128}"); e("a_spl:")
        e("buffer_load_dwordx4 v[240:243], v3, s[24:27], s61 offen"); e(f"s_add_u32 s61, s61, {128*1024}"); e(f"s_waitcnt vmcnt({opts.get('sp_depth', 16)})")
        e("s_sub_u32 s62, s62, 1"); e("s_cmp_lg_u32 s62, 0"); e("s_cbranch_scc1 a_spl")
    e("s_lshr_b32 s59, s52, 5"); e("s_lshl_b32 s59, s59, 2"); e("s_add_u32 s59, s59, s56"); e("s_sub_u32 s59, s59, 28"); e("s_lshl_b32 s59, s59, 1")
    e("s_lshr_b32 s60, s3, 2"); e("s_add_u32 s59, s59, s60")
    e("v_lshlrev_b32 v8, 7, v2"); e("v_add_u32 v9, 0x2000, v8"); e(f"s_mov_b32 s36, {WS_FLAGL:#x}")
    poll_tok(k, [8, 9], 16, "s36", None, 4, sleep=16)
    e("s_lshl_b32 s60, s59, 3"); e("s_and_b32 s61, s3, 3"); e("s_lshl_b32 s61, s61, 1"); e("s_add_u32 s37, s60, s61")
    e("s_lshl_b32 s36, s37, 7"); e(f"s_add_u32 s36, s36, {WS_FLAG1:#x}")
    poll_tok(k, 8, 16, "s36", 3, 4, sleep=opts.get("osleep", 2))
    if stamps: e("s_memrealtime s[84:85]")
    e(f"s_mul_i32 s60, s37, {NQ*1024}"); e(f"s_add_u32 s60, s60, {WS_KVP:#x}")
    nr = 4*NQ; B0 = 16
    for n in range(2*NQ):
        if n and n % 4 == 0: e("s_add_u32 s60, s60, 4096")
        e(f"buffer_load_dwordx4 v[{B0+4*n}:{B0+3+4*n}], v3, s[16:19], s60 offen offset:{(n%4)*1024} sc1")
    for pp in (1,):
        e(f"s_waitcnt vmcnt(0)")
        for r in range(0, nr, 2): e(f"v_pk_add_f32 v[{B0+r}:{B0+r+1}], v[{B0+r}:{B0+r+1}], v[{B0+pp*nr+r}:{B0+pp*nr+r+1}]")
    e(f"s_mul_i32 s60, s3, {NQ*1024}"); e("v_add_u32 v7, s60, v3")
    for qd in range(NQ): e(f"ds_write_b128 v7, v[{B0+4*qd}:{B0+3+4*qd}] offset:{qd*1024}")
    e("s_waitcnt lgkmcnt(0)"); e("s_barrier")
    e(f"s_mov_b32 s39, {WS_FLAGO + 0x4000:#x}")
    e("s_and_b32 s60, s3, 3"); e("s_cmp_lg_u32 s60, 0"); e("s_cbranch_scc0 a_spf")
    e("s_barrier"); e("s_branch b_entry")
    e("a_spf:")
    for w_ in range(1, 4):
        for qd in range(NQ): e(f"ds_read_b128 v[{B0+w_*nr+4*qd}:{B0+w_*nr+3+4*qd}], v7 offset:{(w_*NQ+qd)*1024}")
    e("s_waitcnt lgkmcnt(0)"); e("s_barrier")
    for pp in (1, 2, 3):
        for r in range(0, nr, 2): e(f"v_pk_add_f32 v[{B0+r}:{B0+r+1}], v[{B0+r}:{B0+r+1}], v[{B0+pp*nr+r}:{B0+pp*nr+r+1}]")
    FQ, KO_, ZO_ = B0, 64, 80
    for sg in range(2):
        for db in range(2):
            d = KO_ + (sg*2+db)*4
            for fb in range(2):
                a = FQ + ((sg*2+fb)*2+db)*4
                e(f"v_cvt_pk_bf16_f32 v{d+2*fb}, v{a}, v{a+1}"); e(f"v_cvt_pk_bf16_f32 v{d+2*fb+1}, v{a+2}, v{a+3}")
    zq = FQ + 32
    for fbk in range(4):
        for r in range(4):
            e(f"v_mov_b32_dpp v{96+fbk*4+r}, v{zq+r} quad_perm:[{fbk},{fbk},{fbk},{fbk}] row_mask:0xf bank_mask:0xf")
    e("v_and_b32 v6, 3, v2"); e("v_mov_b32 v7, 0x3f803f80")
    e("v_cmp_eq_u32 vcc, 1, v6"); e("s_nop 1"); e("v_cndmask_b32 v7, 0, v7, vcc")
    e("v_cmp_eq_u32 vcc, 0, v6")
    for n in range(8): e(f"v_cvt_pk_bf16_f32 v{ZO_+n}, v{96+2*n}, v{97+2*n}")
    for n in range(8): e(f"v_cndmask_b32 v{ZO_+n}, v7, v{ZO_+n}, vcc")
    e(f"s_mul_i32 s60, s59, 6144"); e(f"s_add_u32 s60, s60, {WS_KVF:#x}"); e("s_add_u32 s61, s60, 4096")
    for n in range(6):
        e(f"buffer_store_dwordx4 v[{KO_+4*n}:{KO_+3+4*n}], v3, s[16:19], s{60 + n//4} offen offset:{(n%4)*1024} sc1")
    e("s_lshl_b32 s61, s59, 7"); e(f"s_add_u32 s61, s61, {WS_FLAG2:#x}")
    e("s_waitcnt vmcnt(0)")
    e(lane0("buffer_store_dwordx2 v[12:13], v14, s[16:19], s61 offen sc1"))
    if stamps: stamp_store(e, (80, 82, 84, 84, 84, 86, 86, 86), WS_STAMP, "a_end")
    gen_b2(opts, k)
    e("a_end:")
    return k

def gen_b2(opts, k):
    NS = opts.get("NSb", 5)
    c = GemmCfg(128, 2, NS, 64)
    e = k.e
    stamps = opts.get("stamps", False)
    NT = ""
    W2, B2 = 72, 74
    e("b_entry:")
    e("s_load_dwordx4 s[72:75], s[0:1], 56")
    if stamps: e("s_memrealtime s[80:81]")
    e("s_mov_b32 s92, s2")
    e("v_lshrrev_b32 v1, 6, v0"); e("v_and_b32 v2, 63, v0"); e("v_lshlrev_b32 v3, 4, v2")
    e("s_lshr_b32 s56, s2, 3")
    e("v_readfirstlane_b32 s3, v1")
    e("s_and_b32 s52, s2, 1")
    if opts.get("bmap", "8d4s") == "8d4s":
        e("s_lshr_b32 s54, s56, 2")
        e("s_bfe_u32 s55, s2, 0x20001"); e("s_lshl_b32 s55, s55, 2"); e("s_and_b32 s60, s56, 3"); e("s_add_u32 s55, s55, s60")
    else:
        e("s_bfe_u32 s54, s2, 0x10001"); e("s_lshl_b32 s54, s54, 2"); e("s_and_b32 s60, s56, 3"); e("s_add_u32 s54, s54, s60")
        e("s_bfe_u32 s55, s2, 0x10002"); e("s_lshl_b32 s55, s55, 3"); e("s_lshr_b32 s60, s56, 2"); e("s_add_u32 s55, s55, s60")
    e("s_waitcnt lgkmcnt(0)")
    e("s_cmp_lt_u32 s3, 4"); e("s_cbranch_scc1 b_cons")
    k.srd(24, W2, F_*S_*2)
    e(f"s_mul_i32 s29, s52, {2304*4096}"); e("s_lshl_b32 s60, s55, 8"); e("s_add_u32 s29, s29, s60")
    assert NS == 5
    e("s_sub_u32 s3, s3, 4")
    lane_T_dma_off(e, 16, 24, 2, 6, S_*2, 3)
    for n in range(1, 4):
        sg, kg = divmod(n, 2); e(f"v_add_u32 v{24+n}, {sg*128 + kg*32*S_*2}, v24")
    e("s_lshl_b32 s30, s3, 11")
    e("s_lshl_b32 s31, s3, 10"); e(f"s_add_u32 s31, s31, {c.PB}")
    fl = (" sc1", "")
    R3 = dict(vP=[3, 9], vT=list(range(24, 28)), sP=28, sT=29, srdP=16, srdT=24, sBase=30, sLds=32, sStage=34, sCnt=35, stepP=8*D_*16, stepT=64*S_*2)
    e("s_mov_b32 s32, s30"); e("s_mov_b32 s33, s31")
    for t in range(NS): producer_issue(e, c, R3, fl, "T", t*c.SB)
    k.srd(20, WO, D_*D_*2)
    e(f"v_add_u32 v9, {4*D_*16}, v3"); e(f"v_add_u32 v13, {4*S_*16}, v3")
    e("s_mul_i32 s28, s52, 288"); e("s_add_u32 s28, s28, s3"); e("s_lshl_b32 s28, s28, 14"); e("s_lshl_b32 s60, s54, 11"); e("s_add_u32 s28, s28, s60")
    e(f"s_add_u32 s28, s28, {WS_UT:#x}")
    lane_T_dma_off(e, 16, 32, 2, 6, D_*2, 3)
    for n in range(1, 4):
        sg, kg = divmod(n, 2); e(f"v_add_u32 v{32+n}, {sg*128 + kg*32*D_*2}, v32")
    e("s_lshl_b32 s36, s3, 15"); e("s_lshl_b32 s60, s55, 11"); e("s_add_u32 s36, s36, s60"); e(f"s_add_u32 s36, s36, {WS_OT:#x}")
    e("s_lshl_b32 s37, s54, 8")
    R4 = dict(R3, vP=[3, 13], vT=list(range(32, 36)), sP=36, sT=37, srdT=20, stepP=8*S_*16, stepT=64*D_*2)
    e("s_cmp_eq_u32 s52, 0"); e("s_cselect_b32 s60, 17, 9"); e("v_min_u32 v8, s60, v2"); e("v_lshlrev_b32 v8, 7, v8")
    e("s_lshr_b32 s38, s54, 1"); e("s_mul_i32 s38, s38, 28"); e("s_mul_i32 s60, s52, 18"); e("s_add_u32 s38, s38, s60"); e("s_lshl_b32 s38, s38, 7"); e(f"s_add_u32 s38, s38, {WS_FLAGU:#x}")
    e("s_barrier")
    poll_tok(k, 8, 16, "s38", 0x3ffff, 10, sleep=1)
    for t in range(NS): producer_issue(e, c, R3, fl, "P", t*c.SB)
    e("s_mov_b32 s34, 0")
    e("s_waitcnt vmcnt(16)"); e("s_barrier")
    for wn_ in (12, 16, 20):
        e(f"s_waitcnt vmcnt({wn_})"); e("s_barrier")
        producer_issue(e, c, R3, fl); ring_advance(e, c, R3)
    e("s_cmp_eq_u32 s52, 0"); e("s_cselect_b32 s35, 28, 12")
    e("b_l3:")
    e("s_waitcnt vmcnt(24)"); e("s_barrier")
    producer_issue(e, c, R3, fl); ring_advance(e, c, R3)
    e("s_sub_u32 s35, s35, 1"); e("s_cmp_lg_u32 s35, 0"); e("s_cbranch_scc1 b_l3")
    e("s_cmp_eq_u32 s52, 0"); e("s_cbranch_scc1 b_lt")
    e("s_mov_b32 s35, 16")
    e("b_l4:")
    e("s_waitcnt vmcnt(24)"); e("s_barrier")
    producer_issue(e, c, R4, fl); ring_advance(e, c, R4)
    e("s_sub_u32 s35, s35, 1"); e("s_cmp_lg_u32 s35, 0"); e("s_cbranch_scc1 b_l4")
    e("b_lt:")
    for wn_ in (24, 16, 8, 0, 0):
        e(f"s_waitcnt vmcnt({wn_})"); e("s_barrier")
    e("s_endpgm")
    e("b_cons:")
    e(f"v_mov_b32 v92, s{TOK}"); e(f"v_mov_b32 v93, s{TOK+1}"); e("v_mov_b32 v94, 0")
    e("s_barrier")
    e("s_cmp_lg_u32 s3, 0"); e("s_cbranch_scc1 b_nf")
    e(lane0("buffer_store_dwordx2 v[92:93], v94, s[16:19], s39 offen sc1"))
    e("b_nf:")
    e("s_lshr_b32 s57, s3, 1"); e("s_and_b32 s58, s3, 1")
    k.srd(24, B2, S_*2)
    k.srd(20, OUT, S_*D_*2)
    e("v_and_b32 v15, 15, v2"); e("v_lshrrev_b32 v14, 4, v2")
    e("s_lshl_b32 s60, s55, 7"); e("s_lshl_b32 s61, s58, 5"); e("s_add_u32 s60, s60, s61"); e("v_add_u32 v8, s60, v15")
    e("v_lshlrev_b32 v9, 2, v8"); e("v_lshlrev_b32 v8, 1, v8")
    e(f"s_mov_b32 s60, {WS_G:#x}")
    GO, BO = 80, 88
    for j in range(4):
        e(f"buffer_load_dword v{GO+2*j}, v9, s[16:19], s60 offen offset:{((j//2)*64 + (j%2)*16)*4} sc1")
        e(f"buffer_load_ushort v{BO+j}, v8, s[24:27], 0 offen offset:{((j//2)*64 + (j%2)*16)*2}")
    acc = [[96 + (i*4+j)*4 for j in range(4)] for i in range(4)]
    e("v_lshlrev_b32 v4, 11, v14"); e("v_lshl_add_u32 v4, v15, 4, v4")
    e("v_mov_b32 v5, v4")
    e("s_lshl_b32 s60, s57, 10"); e("v_add_u32 v4, s60, v4")
    lane_T_read_off(e, 16, 10, 2, 12, 13)
    e("s_lshl_b32 s60, s58, 6"); e("v_xor_b32 v6, s60, v10"); e("v_xor_b32 v7, 32, v6")
    e("s_waitcnt vmcnt(0)")
    e("s_cmp_eq_u32 s52, 0"); e("s_cselect_b32 s60, -65536, 0")
    for j in range(4):
        e(f"v_sub_f32 v{GO+2*j}, 1.0, v{GO+2*j}")
        e(f"v_lshlrev_b32 v{BO+j}, 16, v{BO+j}"); e(f"v_and_b32 v{BO+j}, s60, v{BO+j}")
        for i in range(4):
            for q in range(4): e(f"v_mov_b32 v{acc[i][j]+q}, v{BO+j}")
    p_off = [(0, kk*8192 + i*256) for kk in range(2) for i in range(4)]
    t_desc = [(j % 2, c.PB + (j//2)*8192 + kk*4096) for kk in range(2) for j in range(4)]
    order = [(kk*4+i, kk*4+j, i, j) for kk in range(2) for i in range(4) for j in range(4)]
    pbufs = [16 + 4*i for i in range(8)]; tbufs = [48 + 4*j for j in range(8)]
    def scale():
        e("s_waitcnt lgkmcnt(0)"); e("s_nop 7")
        for j in range(4):
            for i in range(4):
                for q in (0, 2):
                    a = acc[i][j] + q
                    e(f"v_pk_mul_f32 v[{a}:{a+1}], v[{a}:{a+1}], v[{GO+2*j}:{GO+2*j+1}] op_sel_hi:[1,0]")
    if stamps: e("s_memrealtime s[82:83]")
    e("s_cmp_eq_u32 s52, 0"); e("s_cbranch_scc0 b_cons1")
    consumer_loop(k, c, 36, 16, 8, 8, p_off, t_desc, acc, pbufs, tbufs, [4], [6, 7], True, order, 36, 37, 38, rpg=1, bar_pos=18)
    scale()
    e("s_branch b_exch")
    e("b_cons1:")
    e("v_lshlrev_b32 v95, 7, v15"); e("s_lshr_b32 s46, s55, 1"); e("s_lshl_b32 s46, s46, 11"); e(f"s_add_u32 s46, s46, {WS_FLAGO:#x}")
    chk = Kern("tmp", 0, 0, 0); chk.name = "bo"
    chk.e("s_waitcnt vmcnt(0)"); chk.e(f"v_cmp_ne_u64 vcc, s[{TOK}:{TOK+1}], v[160:161]"); chk.e("s_nop 4"); chk.e("s_cbranch_vccz b_ook")
    poll_tok(chk, 95, 16, "s46", None, 160, sleep=1)
    chk.e("b_ook:")
    consumer_loop(k, c, [(4, ["buffer_load_dwordx2 v[160:161], v95, s[16:19], s46 offen sc1"]), (8, chk.lines), (8, [])], 16, 8, 8, p_off, t_desc, acc, pbufs, tbufs, [4], [6, 7], True, order, 36, 37, 38, rpg=1, bar_pos=18)
    slot = 20 % NS
    e("s_lshl_b32 s60, s58, 9"); e(f"s_add_u32 s60, s60, {slot*c.SB}"); e("v_add_u32 v4, s60, v5")
    e("s_lshl_b32 s60, s57, 13"); e(f"s_add_u32 s60, s60, {slot*c.SB}"); e("v_add_u32 v10, s60, v10")
    for q in range(1, 4): e(f"v_xor_b32 v{10+q}, {32*q}, v10")
    scale()
    p_off4 = [(0, kk*8192 + (j//2)*1024 + (j%2)*256) for kk in range(2) for j in range(4)]
    t_desc4 = [(i, c.PB + kk*4096) for kk in range(2) for i in range(4)]
    order4 = [(kk*4+j, kk*4+i, i, j) for kk in range(2) for j in range(4) for i in range(4)]
    consumer_loop(k, c, 16, 16, 8, 8, p_off4, t_desc4, acc, pbufs, tbufs, [4], [10, 11, 12, 13], False, order4, 36, 37, 38, rpg=1, bar_pos=18, slot0=slot)
    e("s_waitcnt lgkmcnt(0)"); e("s_nop 7")
    e("b_exch:")
    if stamps: e("s_memrealtime s[84:85]")
    e("s_lshl_b32 s60, s2, 2"); e("s_add_u32 s60, s60, s3"); e("s_lshl_b32 s60, s60, 13"); e(f"s_add_u32 s60, s60, {gen2.WS_PART:#x}")
    e("s_add_u32 s61, s60, 4096")
    e("s_xor_b32 s62, s60, 0x8000"); e("s_add_u32 s63, s62, 4096")
    e("s_lshl_b32 s40, s2, 10"); e("s_lshl_b32 s41, s3, 7"); e("s_add_u32 s40, s40, s41"); e(f"s_add_u32 s40, s40, {WS_FLAG:#x}"); e("s_xor_b32 s41, s40, 0x400")
    e("v_mov_b32 v8, 0"); e("v_mov_b32 v9, 1")
    xb = opts.get("xbf16", False)
    def exch(hk, lab):
        snd = [acc[i][2*(1-hk)+jj] for jj in range(2) for i in range(4)]
        keep = [acc[i][2*hk+jj] for jj in range(2) for i in range(4)]
        if xb:
            for n, a in enumerate(snd):
                e(f"v_cvt_pk_bf16_f32 v{64+2*n}, v{a}, v{a+1}"); e(f"v_cvt_pk_bf16_f32 v{65+2*n}, v{a+2}, v{a+3}")
                if n % 2: e(f"buffer_store_dwordx4 v[{62+2*n}:{65+2*n}], v3, s[16:19], s60 offen offset:{(n//2)*1024} sc1")
        else:
            for n, a in enumerate(snd):
                e(f"buffer_store_dwordx4 v[{a}:{a+3}], v3, s[16:19], s{60 + n//4} offen offset:{(n%4)*1024} sc1")
        e("s_waitcnt vmcnt(0)")
        e(lane0("buffer_store_dwordx2 v[92:93], v94, s[16:19], s40 offen sc1"))
        poll_tok(k, 94, 16, "s41", None, 10, sleep=1, cnt=47)
        if xb:
            for n in range(4):
                e(f"buffer_load_dwordx4 v[{16+4*n}:{19+4*n}], v3, s[16:19], s62 offen offset:{n*1024} sc1")
            e("s_mov_b32 s63, 0xffff0000")
            for n, a in enumerate(keep):
                if n % 2 == 0: e(f"s_waitcnt vmcnt({3-n//2})")
                for h in range(2):
                    src = 16 + 2*n + h
                    e(f"v_lshlrev_b32 v32, 16, v{src}"); e(f"v_and_b32 v33, s63, v{src}")
                    e(f"v_pk_add_f32 v[{a+2*h}:{a+2*h+1}], v[{a+2*h}:{a+2*h+1}], v[32:33]")
        else:
            for n in range(8):
                e(f"buffer_load_dwordx4 v[{16+4*n}:{19+4*n}], v3, s[16:19], s{62 + n//4} offen offset:{(n%4)*1024} sc1")
            for n, a in enumerate(keep):
                e(f"s_waitcnt vmcnt({7-n})")
                for q in (0, 2): e(f"v_pk_add_f32 v[{a+q}:{a+q+1}], v[{a+q}:{a+q+1}], v[{16+4*n+q}:{17+4*n+q}]")
        for i in range(4):
            for jj in range(2):
                a = acc[i][2*hk+jj]; o = 48 + i*4 + jj*2
                e(f"v_cvt_pk_bf16_f32 v{o}, v{a}, v{a+1}"); e(f"v_cvt_pk_bf16_f32 v{o+1}, v{a+2}, v{a+3}")
    e("s_cmp_eq_u32 s52, 0"); e("s_cbranch_scc0 b_ex1")
    exch(0, "b_ex0")
    e("s_branch b_fin")
    e("b_ex1:")
    exch(1, "b_ex1")
    e("b_fin:")
    e("v_and_b32 v8, 31, v2"); e("v_lshlrev_b32 v8, 11, v8"); e("v_lshrrev_b32 v9, 5, v2"); e("v_lshl_add_u32 v8, v9, 4, v8")
    e("s_lshl_b32 s60, s55, 2"); e("s_lshl_b32 s61, s52, 1"); e("s_add_u32 s60, s60, s61"); e("s_add_u32 s60, s60, s58"); e("s_lshl_b32 s60, s60, 16")
    e("s_lshl_b32 s61, s54, 8"); e("s_add_u32 s60, s60, s61"); e("s_lshl_b32 s61, s57, 7"); e("s_add_u32 s60, s60, s61")
    for i in range(4):
        o = 48 + i*4
        e(f"v_permlane16_swap_b32 v{o}, v{o+2}"); e(f"v_permlane16_swap_b32 v{o+1}, v{o+3}")
    for i in range(4):
        o = 48 + i*4
        e(f"buffer_store_dwordx4 v[{o}:{o+3}], v8, s[20:23], s60 offen offset:{i*32}{opts.get('ost', '')}")
    if stamps: stamp_store(e, (80, 82, 84, 86, 86, 86, 86, 86), WS_STAMP + 0x10000, "")

if __name__ == "__main__":
    out = sys.argv[1]
    opts = eval("dict(" + (sys.argv[2] if len(sys.argv) > 2 else "") + ")")
    write_file(out, [gen_a(dict(dict(ust=' sc1', ost=' nt', xbf16=True, pf_wq=False, pf_g2=8, sp_row0=672), **opts))], single=True)
```

```python
import sys
from gen import *
import gen2, gen3, gen4
from gen2 import spin_until, softmax_units, DBG, WS, X, WQKV, WPHI, WO, W1, B1, GW, OUT, WS_KVP, NQ
from gen3 import Stream, Work, WS_KVF
from gen4 import lane0, HP

WS_SIZE = 0x4000000
WS_FLAGL = 0x14E0000
WS_FLAG1 = 0x14C0000
WS_FLAG2 = 0x14D0000
WS_FLAGU = 0x14F0000
WS_FLAGO = 0x14F8000
TOK = 44

def poll_tok(k, vaddr, srd, soff, nl_mask, vd, sleep=4, cnt=63):
    e = k.e
    L = k.lab("pt"); Lok = k.lab("ptok")
    if nl_mask is not None: e(f"s_mov_b64 exec, {nl_mask:#x}")
    e(f"s_mov_b32 s{cnt}, 0x40000")
    e(f"{L}:")
    vs = vaddr if isinstance(vaddr, list) else [vaddr]
    for n, va in enumerate(vs):
        e(f"buffer_load_dwordx2 v[{vd+2*n}:{vd+1+2*n}], v{va}, s[{srd}:{srd+3}], {soff} offen sc1")
    e("s_waitcnt vmcnt(0)")
    e(f"v_cmp_ne_u64 vcc, s[{TOK}:{TOK+1}], v[{vd}:{vd+1}]")
    for n in range(1, len(vs)):
        e(f"v_cmp_ne_u64 s[60:61], s[{TOK}:{TOK+1}], v[{vd+2*n}:{vd+1+2*n}]"); e("s_or_b64 vcc, vcc, s[60:61]")
    e(f"s_sub_u32 s{cnt}, s{cnt}, 1"); e(f"s_cbranch_scc1 {Lok}")
    e(f"s_cbranch_vccz {Lok}")
    e(f"s_sleep {sleep}")
    e(f"s_branch {L}")
    e(f"{Lok}:")
    if nl_mask is not None: e("s_mov_b64 exec, -1")

def get_token(k, vz, vd):
    e = k.e
    L = k.lab("tk"); Lok = k.lab("tkok")
    e("s_mov_b32 s63, 0x8000")
    e(f"{L}:")
    e(f"buffer_load_dwordx2 v[{vd}:{vd+1}], v{vz}, s[40:43], 0 offen sc1"); e("s_waitcnt vmcnt(0)")
    e(f"v_readfirstlane_b32 s{TOK}, v{vd}"); e(f"v_readfirstlane_b32 s{TOK+1}, v{vd+1}")
    e("s_sub_u32 s63, s63, 1"); e(f"s_cbranch_scc1 {Lok}")
    e(f"s_cmp_eq_u32 s{TOK}, 0"); e(f"s_cbranch_scc1 {L}")
    e(f"{Lok}:")

_sl = [0]
DBGST = []
def stamp_store(e, regs, base, endlab, cond="v0"):
    _sl[0] += 1; endlab = f"stl{_sl[0]}"
    if DBGST:
        e("s_waitcnt vmcnt(0)")
        e("s_memrealtime s[86:87]"); e("s_waitcnt lgkmcnt(0)")
        slot = DBGST.pop(0)
        e("v_mov_b32 v7, 0")
        e(f"v_cmp_eq_u32 vcc, 0, {cond}"); e("s_and_saveexec_b64 s[60:61], vcc"); e(f"s_cbranch_execz {endlab}")
        for n, (sr, w) in enumerate(slot):
            e(f"s_sub_u32 s62, s{sr}, s{TOK}"); e(f"v_mov_b32 v{16+n}, s62"); e(f"global_atomic_smax v7, v{16+n}, s[4:5] offset:{128 + w*4}" if False else f"global_atomic_smax v7, v{16+n}, s[4:5] offset:{w*4}")
        e(f"{endlab}:"); e("s_mov_b64 exec, -1")
        return
    e("s_waitcnt vmcnt(0)")
    e("s_memrealtime s[86:87]"); e("s_waitcnt lgkmcnt(0)")
    for n, sr in enumerate(regs): e(f"v_mov_b32 v{16+n}, s{sr}")
    e("s_lshl_b32 s60, s92, 5"); e(f"s_add_u32 s60, s60, {base:#x}"); e("v_mov_b32 v7, s60")
    e(f"v_cmp_eq_u32 vcc, 0, {cond}"); e("s_and_saveexec_b64 s[60:61], vcc"); e(f"s_cbranch_execz {endlab}")
    e(f"global_store_dwordx4 v7, v[16:19], s[{WS}:{WS+1}]")
    e(f"global_store_dwordx4 v7, v[20:23], s[{WS}:{WS+1}] offset:16")
    e(f"{endlab}:"); e("s_mov_b64 exec, -1")

def gen_a(opts):
    if opts.get("dbgst"):
        DBGST.extend([[(84, 2), (90, 3), (86, 4)], [(82, 5), (84, 6), (88, 7), (86, 8)], [(84, 9), (86, 10)], [(82, 11), (84, 12), (86, 13)]])
    c2 = GemmCfg(256, 2, 6, 32)
    k = Kern("gated_mix__linear_kernel_hedgehog__mixer_token_mlp__prompt_kernel", 256, 512, 160*1024, vgpr=256, sgpr=100)
    e = k.e
    stamps = opts.get("stamps", False)
    pf = opts.get("pf", True)
    e("s_cmp_ge_u32 s2, 256"); e("s_cbranch_scc1 a_end")
    e("s_load_dwordx8 s[64:71], s[0:1], 0")
    e("s_load_dwordx4 s[72:75], s[0:1], 40")
    e("s_load_dwordx4 s[76:79], s[0:1], 72")
    e("s_load_dwordx4 s[4:7], s[0:1], 88")
    e("s_load_dwordx2 s[12:13], s[0:1], 56")
    e(f"s_memrealtime s[{TOK}:{TOK+1}]")
    e("s_mov_b32 s92, s2")
    e("v_lshrrev_b32 v1, 6, v0"); e("v_and_b32 v2, 63, v0"); e("v_lshlrev_b32 v3, 4, v2")
    e("s_lshr_b32 s56, s2, 3"); e("s_and_b32 s57, s2, 7")
    e("v_readfirstlane_b32 s3, v1")
    e("v_mov_b32 v14, 0")
    e("s_waitcnt lgkmcnt(0)")
    if stamps: e(f"s_mov_b32 s80, s{TOK}")
    k.srd(16, WS, WS_SIZE)
    k.srd(40, DBG, 256)
    k.srd(20, X, S_*D_*2)
    e("s_lshl_b32 s60, s2, 3"); e("s_add_u32 s60, s60, s3"); e("s_cmp_lg_u32 s60, 7"); e("s_cbranch_scc1 a_ntp")
    e(f"s_or_b32 s{TOK}, s{TOK}, 1"); e(f"v_mov_b32 v4, s{TOK}"); e(f"v_mov_b32 v5, s{TOK+1}")
    e(lane0("buffer_store_dwordx2 v[4:5], v14, s[40:43], 0 offen sc1"))
    e("a_ntp:")
    e("s_lshr_b32 s58, s57, 1")
    e("s_and_b32 s60, s57, 1"); e("s_cmp_eq_u32 s60, 1"); e("s_cbranch_scc1 a_bchain")
    e("s_and_b32 s52, s56, 7")
    e("s_lshl_b32 s53, s58, 2"); e("s_lshr_b32 s60, s56, 3"); e("s_add_u32 s53, s53, s60")
    e("s_cmp_lt_u32 s3, 4"); e("s_cbranch_scc1 a_g1c")
    st = Stream(k)
    k.srd(24, WQKV, D_*3*D_*2)
    e("s_sub_u32 s3, s3, 4")
    e("v_lshrrev_b32 v7, 3, v2")
    e("s_lshl_b32 s60, s3, 6"); e("v_add_u32 v4, s60, v7"); e("v_lshlrev_b32 v4, 11, v4")
    e("v_lshrrev_b32 v5, 1, v7"); e("v_xor_b32 v5, v5, v2"); e("v_and_b32 v5, 7, v5")
    e("v_lshl_add_u32 v16, v5, 4, v4")
    e("v_xor_b32 v17, 64, v16"); e(f"v_add_u32 v17, {8*2048}, v17")
    for n in range(2, 8): e(f"v_add_u32 v{16+n}, {(n//2)*16*2048}, v{16+n%2}")
    lane_T_dma_off(e, 16, 24, 2, 6, 6144, 3)
    for n in (1, 2): e(f"v_add_u32 v{24+n}, {n*2048}, v24")
    e("s_lshl_b32 s9, s52, 19"); e("s_lshl_b32 s10, s53, 7")
    e("s_lshl_b32 s30, s3, 13"); e("s_lshl_b32 s31, s3, 10"); e(f"s_add_u32 s31, s31, {96*1024}")
    def issueP(n, half):
        if half == 0:
            st.e(f"s_add_u32 s11, s52, {n}\ns_and_b32 s11, s11, 15\ns_lshl_b32 s11, s11, 7\ns_add_u32 s28, s9, s11")
        for rb in range(4*half, 4*half+4):
            st.e(f"s_add_u32 m0, s30, {(n % 3)*32768 + rb*1024}\ns_nop 0\nbuffer_load_dwordx4 v{16+rb}, s[20:23], s28 offen lds")
        st.mark(f"P{n}")
    def issueT(t):
        st.e(f"s_lshl_b32 s11, s52, 1\ns_add_u32 s11, s11, {t}\ns_and_b32 s11, s11, 31\ns_mul_i32 s11, s11, {32*6144}\ns_add_u32 s29, s10, s11")
        for sg in range(3):
            st.e(f"s_add_u32 m0, s31, {(t % 5)*12288 + sg*4096}\ns_nop 0\nbuffer_load_dwordx4 v{24+sg}, s[24:27], s29 offen lds")
        st.mark(f"T{t}")
    issueP(0, 0); issueP(0, 1); issueT(0); st.mark("S0"); issueT(1); issueP(1, 0); issueP(1, 1); issueT(2); issueT(3); issueP(2, 0); issueP(2, 1); issueT(4)
    k.srd(48, WPHI, 32*2048)
    e("s_lshl_b32 s60, s53, 12"); e("s_lshl_b32 s61, s3, 10"); e("s_add_u32 s60, s60, s61"); e(f"s_add_u32 m0, s61, {156*1024}"); e("s_nop 0")
    st.e("buffer_load_dwordx4 v3, s[48:51], s60 offen lds")
    st.e("@wait S0"); e("s_barrier")
    for t in range(32):
        if t + 1 < 32:
            st.e(f"@wait T{t+1}")
            if t % 2 == 1: st.e(f"@wait P{(t+1)//2}")
        e("s_barrier")
        if t + 5 < 32: issueT(t + 5)
        m = (t - 1) // 2 + 3
        if t >= 1 and m < 16: issueP(m, (t + 1) % 2)
    e("s_lshr_b32 s54, s3, 1"); e("s_and_b32 s55, s3, 1"); e("s_lshl_b32 s59, s53, 1"); e("s_add_u32 s59, s59, s55")
    e("s_mul_i32 s60, s3, 12288"); e("v_add_u32 v8, s60, v3"); e(f"v_mov_b32 v9, {152*1024}")
    e("s_add_u32 s3, s3, 4"); e("s_mov_b32 s35, 1"); e("s_mov_b64 s[8:9], s[12:13]")
    e("s_barrier")
    e("ds_read_b64 v[12:13], v9")
    for n in range(4):
        for part in range(3): e(f"ds_read_b128 v[{64+24*n+4*part}:{64+24*n+4*part+3}], v8 offset:{(n*3+part)*1024}")
    e("s_waitcnt lgkmcnt(0)")
    e(f"v_readfirstlane_b32 s{TOK}, v12"); e(f"v_readfirstlane_b32 s{TOK+1}, v13")
    e("s_branch a_epi")
    e("a_g1c:")
    e("s_lshr_b32 s54, s3, 1"); e("s_and_b32 s55, s3, 1")
    e("s_lshl_b32 s59, s53, 1"); e("s_add_u32 s59, s59, s55")
    e("s_mov_b64 s[8:9], s[12:13]")
    acc = [[64 + (i*6+j)*4 for j in range(6)] for i in range(8)]
    for r in range(64, 256, 2): e(f"v_mov_b64 v[{r}:{r+1}], 0")
    e("v_and_b32 v8, 15, v2"); e("v_lshrrev_b32 v9, 4, v2")
    e("v_lshrrev_b32 v10, 1, v8"); e("v_xor_b32 v10, v10, v9")
    e("s_lshl_b32 s60, s54, 7"); e("v_add_u32 v4, s60, v8"); e("v_lshlrev_b32 v4, 7, v4"); e("v_lshl_add_u32 v4, v10, 4, v4")
    lane_T_read_off(e, 16, 6, 2, 8, 9)
    e("s_lshl_b32 s60, s55, 6"); e("v_xor_b32 v6, s60, v6"); e(f"v_add_u32 v6, {96*1024}, v6"); e("v_xor_b32 v7, 32, v6")
    get_token(k, 14, 12)
    p_off = [(0, i*2048) for i in range(8)]
    t_desc = [(j % 2, (j//2)*4096) for j in range(6)]
    order = [(2*a+b, j, 2*a+b, j) for a in range(4) for j in range(6) for b in range(2)]
    pbufs = [16 + 4*i for i in range(4)]; tbufs = [32 + 4*j for j in range(8)]
    ringT = ["s_cmp_eq_u32 s36, 4", "s_cselect_b32 s37, s39, 12288", "s_cselect_b32 s36, -1, s36", "s_add_u32 s36, s36, 1"]
    ringP = ["s_cmp_eq_u32 s32, 2", "s_cselect_b32 s33, s34, 0x8000", "s_cselect_b32 s32, -1, s32", "s_add_u32 s32, s32, 1"]
    salu = lambda s: ringT + (ringP if s % 2 else [])
    valu = lambda s: ["v_add_u32 v6, s37, v6", "v_add_u32 v7, s37, v7", "v_xor_b32 v4, 64, v4"] + (["v_add_u32 v4, s33, v4"] if s % 2 else [])
    tail = ["s_sub_u32 s38, s38, 1", "s_cmp_lg_u32 s38, 0"]
    ahead, body, U = build_consumer(None, 16, 8, 6, p_off, t_desc, acc, pbufs, tbufs, [4], [6, 7], lambda i, j: j >= 4, order,
                                    opts.get("bar1", 38), 1, salu, valu, tail, minU=2, salu_at=0)
    e(f"s_mov_b32 s39, {(-4*12288) & 0xffffffff:#x}"); e(f"s_mov_b32 s34, {(-2*32768) & 0xffffffff:#x}"); e("s_mov_b32 s36, 0"); e("s_mov_b32 s32, 0")
    if stamps: e("s_memrealtime s[82:83]")
    e("s_barrier")
    for l in ahead: e(l)
    e("s_waitcnt lgkmcnt(0)")
    e(f"s_mov_b32 s38, {32//U}"); e(".p2align 3"); e("a_g1loop:")
    for l in body: e(l)
    e("s_cbranch_scc1 a_g1loop")
    if stamps: e("s_memrealtime s[84:85]")
    e("s_waitcnt lgkmcnt(0)")
    Bk = lambda sb: 64 + 24*sb
    def cvt_units(sbs):
        for sb in sbs:
            B = Bk(sb)
            for n in range(8): e(f"v_cvt_pk_bf16_f32 v{B+n}, v{B+2*n}, v{B+2*n+1}")
        for p in sorted(set(sb//2 for sb in sbs)):
            for db in range(2):
                d = Bk(2*p+db) + 8
                for h in range(2):
                    a = Bk(2*p+h) + 16 + 4*db
                    e(f"v_cvt_pk_bf16_f32 v{d+2*h}, v{a}, v{a+1}"); e(f"v_cvt_pk_bf16_f32 v{d+2*h+1}, v{a+2}, v{a+3}")
    e("s_mul_i32 s60, s3, 12288"); e("v_add_u32 v8, s60, v3"); e(f"v_mov_b32 v9, {152*1024}")
    e("ds_write_b64 v9, v[12:13]")
    e("s_nop 4")
    cvt_units([4, 5, 6, 7])
    for n in range(4):
        for part in range(3): e(f"ds_write_b128 v8, v[{Bk(4+n)+4*part}:{Bk(4+n)+4*part+3}] offset:{(n*3+part)*1024}")
    cvt_units([0, 1, 2, 3])
    e("s_mov_b32 s35, 0")
    e("s_waitcnt lgkmcnt(0)"); e("s_barrier")
    if opts.get("estamp"): e("s_memrealtime s[82:83]")
    e("a_epi:")
    holes = [Bk(sb) + 12 + 4*n for sb in range(4) for n in range(3)]
    KVq = holes[0:9]; WPq = holes[9:11]
    PK, ST, EP, EF, ZB = 16, 48, 160, 224, 240
    e("v_lshrrev_b32 v8, 2, v2"); e("v_lshlrev_b32 v8, 6, v8"); e("v_and_b32 v9, 3, v2"); e("v_lshl_add_u32 v8, v9, 3, v8")
    e("s_lshl_b32 s60, s55, 11"); e(f"s_add_u32 s60, s60, {156*1024}"); e("v_add_u32 v8, s60, v8")
    for fb in range(2):
        for t in range(2): e(f"ds_read_b64_tr_b16 v[{WPq[fb]+2*t}:{WPq[fb]+2*t+1}], v8 offset:{t*1024 + fb*32}")
    e(f"s_mov_b32 s62, {f32(LOG2E)}"); e(f"s_mov_b32 s63, {f32(LOG2E)}")
    e("v_and_b32 v8, 15, v2"); e("v_lshrrev_b32 v9, 4, v2"); e("s_mul_i32 s34, s3, 10240"); e(f"s_add_u32 s34, s34, {48*1024}")
    e("v_mul_u32_u24 v10, 160, v8"); e("v_lshl_add_u32 v10, v9, 3, v10"); e("v_add_u32 v10, s34, v10")
    e("v_lshrrev_b32 v8, 2, v8"); e("v_lshl_add_u32 v8, v9, 2, v8"); e("v_mul_u32_u24 v11, 160, v8")
    def pmfma(off):
        for u in range(4):
            for fb in range(2):
                d = PK + (u*2+fb)*4; s = Bk(u) + off
                e(f"v_mfma_f32_16x16x32_bf16 v[{d}:{d+3}], v[{WPq[fb]}:{WPq[fb]+3}], v[{s}:{s+3}], 0")
    e("s_waitcnt lgkmcnt(0)")
    pmfma(4)
    e("v_and_b32 v8, 3, v2"); e("v_lshl_add_u32 v11, v8, 3, v11"); e("v_add_u32 v11, s34, v11"); e("v_mov_b32 v9, 0x3f803f80")
    for fbk in range(4):
        e(f"v_cmp_eq_u32 vcc, {fbk}, v8"); e("s_nop 1"); e(f"v_cndmask_b32 v{ZB+4*fbk}, 0, v9, vcc")
        for r in range(1, 4): e(f"v_mov_b32 v{ZB+4*fbk+r}, v{ZB+4*fbk}")
    units = [dict(x=[PK+u*8, PK+u*8+4], ep=EP+u*16, em=EP+8+u*16, st=ST+u*4, out=EP+u*16) for u in range(4)]
    softmax_units(e, units, 62, True)
    for u in range(4):
        o = units[u]["out"]
        for fbk in range(4): e(f"ds_write_b64 v10, v[{o+2*fbk}:{o+2*fbk+1}] offset:{u*16*160 + fbk*32}")
    pmfma(0)
    e("s_waitcnt lgkmcnt(0)")
    EFs = [EF, EP + 8]
    efq = [[EF + 4*n for n in range(4)], [EP+8, EP+12, EP+24, EP+28]]
    for p in range(2):
        for fbk in range(4):
            for t in range(2): e(f"ds_read_b64_tr_b16 v[{efq[p][fbk]+2*t}:{efq[p][fbk]+2*t+1}], v11 offset:{(2*p+t)*16*160 + fbk*32}")
    for p in range(2):
        for fbk in range(4):
            e(f"s_waitcnt lgkmcnt({14-8*p-2*fbk})")
            for db in range(3):
                d = KVq[fbk*2+db] if db < 2 else KVq[8]
                b = Bk(2*p+db) + 8 if db < 2 else ZB + 4*fbk
                cc = "0" if (p == 0 and (db < 2 or fbk == 0)) else f"v[{d}:{d+3}]"
                e(f"v_mfma_f32_16x16x32_bf16 v[{d}:{d+3}], v[{efq[p][fbk]}:{efq[p][fbk]+3}], v[{b}:{b+3}], {cc}")
    e("v_add_u32 v10, s34, v3")
    e("s_lshr_b32 s33, s3, 1"); e("s_mul_i32 s60, s55, 10240"); e("s_lshl_b32 s61, s33, 10"); e("s_add_u32 s60, s60, s61"); e(f"s_add_u32 s60, s60, {48*1024}"); e("v_add_u32 v11, s60, v3"); e("v_add_u32 v15, 0xa000, v11")
    e("s_lshl_b32 s60, s59, 3"); e("s_add_u32 s60, s60, s52")
    e("s_lshl_b32 s36, s60, 7"); e(f"s_add_u32 s36, s36, {WS_FLAG1:#x}")
    e(f"s_mul_i32 s37, s60, {NQ*1024}"); e("s_add_u32 s37, s37, s61"); e(f"s_add_u32 s37, s37, {WS_KVP:#x}"); e("s_add_u32 s38, s37, 4096")
    for qd in range(NQ): e(f"ds_write_b128 v10, v[{KVq[qd]}:{KVq[qd]+3}] offset:{qd*1024}")
    e("s_waitcnt lgkmcnt(0)"); e("s_barrier")
    if opts.get("estamp"): e("s_memrealtime s[94:95]"); e("s_waitcnt lgkmcnt(0)")
    C0 = 224
    for hq in range(2):
        for src in range(4): e(f"ds_read_b128 v[{C0+(hq*4+src)*4}:{C0+(hq*4+src)*4+3}], v{11 if src < 2 else 15} offset:{(src%2)*20480 + hq*4096}")
    e("s_cmp_lg_u32 s33, 0"); e("s_cbranch_scc1 a_noz")
    for src in range(4): e(f"ds_read_b128 v[{holes[src]}:{holes[src]+3}], v{11 if src < 2 else 15} offset:{(src%2)*20480 + 8192}")
    e("s_waitcnt lgkmcnt(0)")
    for src in range(1, 4):
        for q in (0, 2): e(f"v_pk_add_f32 v[{holes[0]+q}:{holes[0]+q+1}], v[{holes[0]+q}:{holes[0]+q+1}], v[{holes[src]+q}:{holes[src]+q+1}]")
    e("s_add_u32 s39, s37, 8192")
    e(f"buffer_store_dwordx4 v[{holes[0]}:{holes[0]+3}], v3, s[16:19], s39 offen sc1")
    e("a_noz:")
    e("s_waitcnt lgkmcnt(0)")
    for hq in range(2):
        a = C0 + hq*16
        for src in range(1, 4):
            for q in (0, 2): e(f"v_pk_add_f32 v[{a+q}:{a+q+1}], v[{a+q}:{a+q+1}], v[{a+4*src+q}:{a+4*src+q+1}]")
        e(f"buffer_store_dwordx4 v[{a}:{a+3}], v3, s[16:19], s{37+hq} offen sc1")
    units = [dict(x=[PK+u*8, PK+u*8+4], ep=EP+u*16, em=EP+8+u*16, st=ST+u*4, out=Bk(u)+4) for u in range(4)]
    w = Work(); softmax_units(w.e, units, 62, False)
    cut = len(w.q) * opts.get("e3cut", 40) // 100
    for l in w.q[:cut]: e(l)
    e("s_waitcnt vmcnt(0)"); e("s_barrier")
    if opts.get("estamp"): e("s_memrealtime s[96:97]"); e("s_waitcnt lgkmcnt(0)")
    e("s_cmp_lg_u32 s33, 0"); e("s_cbranch_scc1 a_nof")
    e(lane0("buffer_store_dwordx2 v[12:13], v14, s[16:19], s36 offen sc1"))
    e("a_nof:")
    if pf:
        k.srd(24, 8, F_*S_*2); k.srd(48, WO, D_*D_*2)
        e("s_lshl_b32 s60, s58, 5"); e("s_add_u32 s60, s60, s56"); e("s_lshl_b32 s60, s60, 3"); e("s_add_u32 s60, s60, s3"); e("s_lshl_b32 s60, s60, 10")
        e("s_mov_b32 s61, s60")
        for n in range(14): e(f"buffer_load_dwordx4 v[240:243], v3, s[24:27], s60 offen"); e(f"s_add_u32 s60, s60, 0x100000")
        for n in range(2): e(f"buffer_load_dwordx4 v[240:243], v3, s[48:51], s61 offen"); e(f"s_add_u32 s61, s61, 0x100000")
    for l in w.q[cut:]: e(l)
    if stamps: e("s_memrealtime s[88:89]")
    KOq = holes[0:4]; ZOq = holes[4:6]; GG = holes[6]
    e("s_lshl_b32 s36, s59, 7"); e(f"s_add_u32 s36, s36, {WS_FLAG2:#x}")
    poll_tok(k, 14, 16, "s36", None, 8, sleep=2)
    if stamps: e("s_memrealtime s[90:91]")
    e(f"s_mul_i32 s36, s59, 6144"); e(f"s_add_u32 s36, s36, {WS_KVF:#x}"); e("s_add_u32 s37, s36, 4096")
    for n, d in enumerate([ZOq[0], KOq[0], KOq[1], ZOq[1], KOq[2], KOq[3]]):
        idx = [4, 0, 1, 5, 2, 3][n]
        e(f"buffer_load_dwordx4 v[{d}:{d+3}], v3, s[16:19], s{36 + idx//4} offen offset:{(idx%4)*1024} sc1")
    e("v_and_b32 v8, 15, v2"); e("v_lshlrev_b32 v8, 2, v8")
    e("s_lshl_b32 s38, s52, 2"); e("s_lshl_b32 s39, s54, 1"); e("s_add_u32 s38, s38, s39"); e("s_add_u32 s38, s38, s35")
    e("s_lshl_b32 s36, s38, 8"); e(f"s_add_u32 s36, s36, {WS_G:#x}")
    for u in range(4): e(f"buffer_load_dword v{GG+u}, v8, s[16:19], s36 offen offset:{u*64} sc1")
    e("v_lshrrev_b32 v8, 5, v2"); e("v_lshlrev_b32 v9, 15, v8"); e("v_and_b32 v8, 31, v2"); e("v_lshl_add_u32 v9, v8, 4, v9")
    e("s_lshl_b32 s36, s59, 17"); e("s_lshl_b32 s37, s38, 10"); e("s_add_u32 s36, s36, s37")
    e(f"s_add_u32 s36, s36, {WS_OT:#x}"); e("s_add_u32 s37, s36, 0x10000")
    e(f"v_mov_b32 v8, {f32(1e-6)}")
    e("s_waitcnt vmcnt(0)")
    nq = [160 + 4*n for n in range(24)]
    for u in range(4):
        for sg in range(2):
            b = Bk(u) + 4 + sg*4
            for db in (2, 0, 1):
                d = nq[u*6 + sg*3 + db]; a = KOq[sg*2+db] if db < 2 else ZOq[sg]
                e(f"v_mfma_f32_16x16x32_bf16 v[{d}:{d+3}], v[{a}:{a+3}], v[{b}:{b+3}], 0")
    e("s_nop 1")
    for u in range(4):
        xp, xm = nq[u*6+2], nq[u*6+5]
        e(f"v_rcp_f32 v{xp+2}, v{xp+1}"); e(f"v_rcp_f32 v{xp+3}, v{xm+1}")
    for u in range(4):
        xp, xm = nq[u*6+2], nq[u*6+5]
        e(f"v_fma_f32 v{xp}, v{xp}, v{xp+2}, v8"); e(f"v_fma_f32 v{xp}, v{xm}, v{xp+3}, v{xp}")
    for u in range(4): xp = nq[u*6+2]; e(f"v_rcp_f32 v{xp}, v{xp}")
    for u in range(4): xp = nq[u*6+2]; e(f"v_mul_f32 v{xp}, v{xp}, v{GG+u}")
    for u in range(4):
        xp = nq[u*6+2]; e(f"v_pk_mul_f32 v[{xp+2}:{xp+3}], v[{xp+2}:{xp+3}], v[{xp}:{xp+1}] op_sel_hi:[1,0]")
    for u in range(4):
        xp = nq[u*6+2]
        for db in range(2):
            np_, nm = nq[u*6+db], nq[u*6+3+db]
            for q in (0, 2):
                e(f"v_pk_mul_f32 v[{np_+q}:{np_+q+1}], v[{np_+q}:{np_+q+1}], v[{xp+2}:{xp+3}] op_sel:[0,0] op_sel_hi:[1,0]")
                e(f"v_pk_fma_f32 v[{np_+q}:{np_+q+1}], v[{nm+q}:{nm+q+1}], v[{xp+2}:{xp+3}], v[{np_+q}:{np_+q+1}] op_sel:[0,1,0] op_sel_hi:[1,1,1]")
    for u in range(4):
        for db in range(2):
            np_ = nq[u*6+db]; o = 16 + ((u//2)*2+db)*4 + (u % 2)*2
            e(f"v_cvt_pk_bf16_f32 v{o}, v{np_}, v{np_+1}"); e(f"v_cvt_pk_bf16_f32 v{o+1}, v{np_+2}, v{np_+3}")
    e("s_nop 1")
    for n in range(4):
        o = 16 + n*4; e(f"v_permlane16_swap_b32 v{o}, v{o+2}"); e(f"v_permlane16_swap_b32 v{o+1}, v{o+3}")
    for n in range(4):
        o = 16 + n*4; pr, db = divmod(n, 2)
        e(f"buffer_store_dwordx4 v[{o}:{o+3}], v9, s[16:19], s{36+db} offen offset:{pr*512}{opts.get('ust', '')}")
    if stamps: stamp_store(e, (80, 84, 82, 94, 96, 88, 86, 86) if opts.get("estamp") else (80, 82, 84, 88, 90, 86, 86, 86), WS_STAMP, "a_end")
    e("s_lshl_b32 s39, s52, 4"); e("s_add_u32 s39, s39, s53"); e("s_lshl_b32 s39, s39, 7"); e(f"s_add_u32 s39, s39, {WS_FLAGO:#x}")
    e("s_waitcnt vmcnt(0)")
    e("s_branch b_entry")
    e("a_bchain:")
    e("s_lshl_b32 s52, s58, 5"); e("s_add_u32 s52, s52, s56")
    e("s_and_b32 s54, s56, 3")
    e("s_mul_i32 s55, s58, 7"); e("s_lshr_b32 s60, s56, 2"); e("s_add_u32 s55, s55, s60")
    e("s_cmp_lt_u32 s3, 4"); e("s_cbranch_scc1 a_lnc")
    e("s_cmp_ge_u32 s56, 28"); e("s_cbranch_scc1 a_sp_hi")
    st = Stream(k)
    k.srd(24, W1, S_*F_*2)
    e("s_sub_u32 s3, s3, 4")
    lane_T_dma_off(e, 16, 24, 2, 6, F_*2, 3)
    e("v_add_u32 v25, 128, v24")
    e("s_lshl_b32 s60, s3, 14"); e(f"s_lshl_b32 s28, s54, 12"); e("s_add_u32 s28, s28, s60"); e(f"s_add_u32 s28, s28, {WS_HT:#x}")
    e("s_lshl_b32 s29, s55, 8")
    e("s_lshl_b32 s30, s3, 12"); e("s_lshl_b32 s31, s3, 10"); e(f"s_add_u32 s31, s31, {c2.PB}")
    R2 = dict(vP=[3], vT=[24, 25], sP=28, sT=29, srdP=16, srdT=24, sBase=30, sLds=32, sStage=34, sCnt=35, stepP=4*D_*16, stepT=32*F_*2)
    fl = (" sc1", "")
    e("s_mov_b32 s32, s30"); e("s_mov_b32 s33, s31")
    for t in range(5): producer_issue(st.e, c2, R2, fl, "T", t*c2.SB)
    def g2_touches():
        e("s_mul_i32 s60, s58, 28"); e("s_add_u32 s60, s60, s56"); e("s_lshl_b32 s60, s60, 2"); e("s_add_u32 s60, s60, s3"); e("s_lshl_b32 s60, s60, 10")
        if opts.get("pf_wq", True):
            k.srd(48, WQKV, D_*3*D_*2)
            e("s_mov_b32 s61, s60")
            for n in range(14): st.e("buffer_load_dwordx4 v[240:243], v3, s[48:51], s61 offen"); e(f"s_add_u32 s61, s61, {448*1024}")
        e(f"s_add_u32 s61, s60, {160*7168}")
        for n in range(opts.get("pf_g2", 0)): st.e("buffer_load_dwordx4 v[240:243], v3, s[24:27], s61 offen"); e(f"s_add_u32 s61, s61, {448*1024}")
    if opts.get("tpos", "L1") == "pre": g2_touches()
    e("v_lshlrev_b32 v8, 7, v2"); e("v_add_u32 v9, 0x2000, v8")
    e("s_barrier")
    e(f"v_mov_b32 v4, {158*1024}"); e("ds_read_b64 v[10:11], v4"); e("s_waitcnt lgkmcnt(0)")
    e(f"v_readfirstlane_b32 s{TOK}, v10"); e(f"v_readfirstlane_b32 s{TOK+1}, v11")
    if opts.get("tpos", "L1") == "L1": g2_touches()
    e("s_barrier")
    producer_issue(st.e, c2, R2, fl, "T", 5*c2.SB)
    e(f"s_mov_b32 s36, {WS_FLAGL:#x}")
    poll_tok(k, [8, 9], 16, "s36", None, 10, sleep=2)
    st = Stream(k)
    for t in range(6):
        producer_issue(st.e, c2, R2, fl, "P", t*c2.SB); st.mark(f"b{t}")
    e("s_mov_b32 s34, 0")
    st.e("@wait b0"); e("s_barrier")
    for t in range(5):
        st.e(f"@wait b{t+1}"); e("s_barrier")
        producer_issue(st.e, c2, R2, fl); ring_advance(e, c2, R2)
    e("s_mov_b32 s35, 53")
    e("a_l2:")
    e("s_waitcnt vmcnt(24)"); e("s_barrier")
    producer_issue(e, c2, R2, fl); ring_advance(e, c2, R2)
    e("s_sub_u32 s35, s35, 1"); e("s_cmp_lg_u32 s35, 0"); e("s_cbranch_scc1 a_l2")
    for r in range(6):
        e(f"s_waitcnt vmcnt({max(4-r, 0)*6})"); e("s_barrier")
    e("s_branch b_entry")
    e("a_lnc:")
    st = Stream(k)
    e("s_lshl_b32 s37, s52, 15"); e("s_lshl_b32 s38, s3, 13"); e("s_add_u32 s37, s37, s38"); e("s_add_u32 s38, s37, 4096")
    for n in range(8): st.e(f"buffer_load_dwordx4 v[{48+4*n}:{51+4*n}], v3, s[20:23], s{37+n//4} offen offset:{(n%4)*1024}")
    k.srd(24, GW, D_*2)
    st.e("buffer_load_dwordx4 v[80:83], v3, s[24:27], 0 offen"); st.e("@vm lng buffer_load_dwordx4 v[84:87], v3, s[24:27], 0 offen offset:1024")
    k.srd(48, B1, F_*2)
    e("s_lshr_b32 s57, s3, 1"); e("s_and_b32 s58, s3, 1")
    e("v_lshrrev_b32 v7, 4, v2"); e("v_lshlrev_b32 v7, 3, v7")
    e("s_lshl_b32 s60, s55, 8"); e("s_lshl_b32 s61, s58, 6"); e("s_add_u32 s60, s60, s61")
    for j in range(4): st.e(f"buffer_load_dwordx2 v[{96+2*j}:{97+2*j}], v7, s[48:51], s60 offen offset:{(j//2)*128 + (j%2)*32}")
    get_token(k, 14, 12)
    e(f"v_mov_b32 v4, {158*1024}"); e("ds_write_b64 v4, v[12:13]")
    LS = 120*1024
    e("s_mov_b32 s36, 0xffff0000")
    e(f"s_mul_i32 s37, s3, {4*HP}"); e(f"s_add_u32 s37, s37, {LS}"); e("v_add_u32 v22, s37, v3")
    e(f"v_bfe_u32 v23, v2, 2, 2"); e(f"v_mul_u32_u24 v23, {HP}, v23"); e("v_and_b32 v120, 3, v2"); e("v_lshl_add_u32 v23, v120, 3, v23")
    e(f"v_lshrrev_b32 v120, 4, v2"); e("v_lshl_add_u32 v23, v120, 5, v23")
    e(f"s_mul_i32 s37, s57, {8*HP}"); e("s_lshl_b32 s38, s58, 10"); e("s_add_u32 s37, s37, s38"); e(f"s_add_u32 s37, s37, {LS}"); e("v_add_u32 v23, s37, v23")
    for i in range(8):
        e(f"v_lshlrev_b32 v{104+2*i}, 16, v{80+i}"); e(f"v_and_b32 v{105+2*i}, s36, v{80+i}")
    w = Work()
    gen4.ln_rows(w, 48, 0); gen4.ln_rows(w, 64, 1)
    for it in w.q: e(it.replace("s_lshl_b32 s37, s2, 5", "s_lshl_b32 s37, s52, 6"))
    e("s_waitcnt lgkmcnt(0)"); e("s_barrier")
    for j in range(8):
        e(f"ds_read_b64_tr_b16 v[{144+4*j}:{145+4*j}], v23 offset:{128*j}")
        e(f"ds_read_b64_tr_b16 v[{146+4*j}:{147+4*j}], v23 offset:{128*j+4*HP}")
    e(f"s_lshl_b32 s37, s52, 15"); e("s_lshl_b32 s38, s3, 13"); e("s_add_u32 s37, s37, s38"); e(f"s_add_u32 s37, s37, {WS_HT:#x}"); e("s_add_u32 s38, s37, 4096")
    for j in range(8):
        e(f"s_waitcnt lgkmcnt({14-2*j})"); e(f"buffer_store_dwordx4 v[{144+4*j}:{147+4*j}], v3, s[16:19], s{37+j//4} offen offset:{(j%4)*1024} sc1")
    acc2 = [[128 + (i*4+j)*4 for j in range(4)] for i in range(8)]
    e("s_nop 1")
    for j in range(4):
        for hh in range(2):
            src = 96 + j*2 + hh; d0 = acc2[0][j] + hh*2
            e(f"v_lshlrev_b32 v{d0}, 16, v{src}"); e(f"v_and_b32 v{d0+1}, s36, v{src}")
        for i in range(1, 8):
            for q in (0, 2): e(f"v_mov_b64 v[{acc2[i][j]+q}:{acc2[i][j]+q+1}], v[{acc2[0][j]+q}:{acc2[0][j]+q+1}]")
    e("v_lshrrev_b32 v8, 4, v2"); e("v_lshlrev_b32 v4, 12, v8"); e("v_and_b32 v9, 15, v2"); e("v_lshl_add_u32 v4, v9, 4, v4")
    e("s_lshl_b32 s60, s57, 11"); e("v_add_u32 v4, s60, v4")
    lane_T_read_off(e, 16, 6, 2, 8, 9)
    e("s_lshl_b32 s60, s58, 6"); e("v_xor_b32 v6, s60, v6"); e("v_xor_b32 v7, 32, v6")
    e("s_waitcnt vmcnt(0)"); e("s_barrier")
    e("s_cmp_lg_u32 s3, 0"); e("s_cbranch_scc1 a_lnf")
    e("s_lshl_b32 s37, s52, 7"); e(f"s_add_u32 s37, s37, {WS_FLAGL:#x}")
    e(lane0("buffer_store_dwordx2 v[12:13], v14, s[16:19], s37 offen sc1"))
    e("a_lnf:")
    if stamps: e("s_memrealtime s[82:83]")
    e("s_cmp_ge_u32 s56, 28"); e("s_cbranch_scc1 a_spare")
    p_off = [(0, i*256) for i in range(8)]
    t_desc = [(j % 2, c2.PB + (j//2)*4096) for j in range(4)]
    order = [(i, j, i, j) for i in range(8) for j in range(4)]
    pbufs = [16 + 4*i for i in range(16)]; tbufs = [80 + 4*j for j in range(8)]
    consumer_loop(k, c2, [(2, ["s_memrealtime s[84:85]", "s_waitcnt lgkmcnt(0)"] if stamps else []), (62, [])], 16, 8, 4, p_off, t_desc, acc2, pbufs, tbufs, [4], [6, 7],
                  False, order, 36, 37, 38, rpg=1, bar_pos=2)
    if stamps: e("s_memrealtime s[88:89]")
    e("s_waitcnt lgkmcnt(0)")
    e("v_lshrrev_b32 v8, 5, v2"); e("v_lshlrev_b32 v7, 14, v8"); e("v_and_b32 v8, 31, v2"); e("v_lshl_add_u32 v7, v8, 4, v7")
    e("s_lshl_b32 s14, s55, 18"); e("s_lshl_b32 s15, s58, 16"); e("s_add_u32 s14, s14, s15")
    e("s_lshl_b32 s15, s54, 12"); e("s_add_u32 s14, s14, s15"); e("s_lshl_b32 s15, s57, 11"); e("s_add_u32 s14, s14, s15")
    e(f"s_add_u32 s14, s14, {WS_UT:#x}")
    e(f"s_mov_b32 s42, {f32(GELU_K3)}"); e(f"s_mov_b32 s43, {f32(GELU_K3)}")
    e(f"v_mov_b32 v10, {f32(GELU_K1)}"); e(f"v_mov_b32 v11, {f32(GELU_K1)}")
    blk = 0
    for j in range(4):
        e(f"s_add_u32 s15, s14, {((j//2)*8 + (j%2)*2)*16384}")
        for i in (0, 4):
            t = 16 + (blk % 2) * 24; o = t + 16; blk += 1
            gelu_block(e, [acc2[i+b][j] + q for b in range(4) for q in (0, 2)], t, o)
            e("s_nop 1")
            for pr in range(2):
                e(f"v_permlane16_swap_b32 v{o+4*pr}, v{o+4*pr+2}"); e(f"v_permlane16_swap_b32 v{o+4*pr+1}, v{o+4*pr+3}")
            for pr in range(2):
                e(f"buffer_store_dwordx4 v[{o+4*pr}:{o+4*pr+3}], v7, s[16:19], s15 offen offset:{(i+2*pr)*256}{opts.get('ust', '')}")
    if stamps: stamp_store(e, (80, 82, 84, 88, 88, 86, 86, 86), WS_STAMP, "a_end")
    e("s_mul_i32 s39, s54, 28"); e("s_add_u32 s39, s39, s55"); e("s_lshl_b32 s39, s39, 7"); e(f"s_add_u32 s39, s39, {WS_FLAGU:#x}")
    e("s_waitcnt vmcnt(0)")
    e("s_branch b_entry")
    e("a_sp_hi:")
    e("s_barrier")
    e(f"v_mov_b32 v4, {158*1024}"); e("ds_read_b64 v[12:13], v4"); e("s_waitcnt lgkmcnt(0)")
    e(f"v_readfirstlane_b32 s{TOK}, v12"); e(f"v_readfirstlane_b32 s{TOK+1}, v13")
    e("s_barrier")
    e("a_spare:")
    if opts.get("pf_sp", True):
        k.srd(24, W1, S_*F_*2)
        r0 = opts.get("sp_row0", 192)
        e("s_lshr_b32 s60, s52, 5"); e("s_lshl_b32 s60, s60, 2"); e("s_add_u32 s60, s60, s56"); e("s_sub_u32 s60, s60, 28"); e("s_lshl_b32 s60, s60, 3"); e("s_add_u32 s60, s60, s3")
        e("s_lshl_b32 s61, s60, 10"); e(f"s_add_u32 s61, s61, {r0*7168}")
        e(f"s_mov_b32 s62, {((2048-r0)*7 + 127)//128}"); e("a_spl:")
        e("buffer_load_dwordx4 v[240:243], v3, s[24:27], s61 offen"); e(f"s_add_u32 s61, s61, {128*1024}"); e(f"s_waitcnt vmcnt({opts.get('sp_depth', 16)})")
        e("s_sub_u32 s62, s62, 1"); e("s_cmp_lg_u32 s62, 0"); e("s_cbranch_scc1 a_spl")
    e("s_lshr_b32 s59, s52, 5"); e("s_lshl_b32 s59, s59, 2"); e("s_add_u32 s59, s59, s56"); e("s_sub_u32 s59, s59, 28"); e("s_lshl_b32 s59, s59, 1")
    e("s_lshr_b32 s60, s3, 2"); e("s_add_u32 s59, s59, s60")
    e("v_lshlrev_b32 v8, 7, v2"); e("v_add_u32 v9, 0x2000, v8"); e(f"s_mov_b32 s36, {WS_FLAGL:#x}")
    poll_tok(k, [8, 9], 16, "s36", None, 4, sleep=16)
    e("s_lshl_b32 s60, s59, 3"); e("s_and_b32 s61, s3, 3"); e("s_lshl_b32 s61, s61, 1"); e("s_add_u32 s37, s60, s61")
    e("s_lshl_b32 s36, s37, 7"); e(f"s_add_u32 s36, s36, {WS_FLAG1:#x}")
    poll_tok(k, 8, 16, "s36", 3, 4, sleep=opts.get("osleep", 2))
    if stamps: e("s_memrealtime s[84:85]")
    e(f"s_mul_i32 s60, s37, {NQ*1024}"); e(f"s_add_u32 s60, s60, {WS_KVP:#x}")
    nr = 4*NQ; B0 = 16
    for n in range(2*NQ):
        if n and n % 4 == 0: e("s_add_u32 s60, s60, 4096")
        e(f"buffer_load_dwordx4 v[{B0+4*n}:{B0+3+4*n}], v3, s[16:19], s60 offen offset:{(n%4)*1024} sc1")
    for pp in (1,):
        e(f"s_waitcnt vmcnt(0)")
        for r in range(0, nr, 2): e(f"v_pk_add_f32 v[{B0+r}:{B0+r+1}], v[{B0+r}:{B0+r+1}], v[{B0+pp*nr+r}:{B0+pp*nr+r+1}]")
    e(f"s_mul_i32 s60, s3, {NQ*1024}"); e("v_add_u32 v7, s60, v3")
    for qd in range(NQ): e(f"ds_write_b128 v7, v[{B0+4*qd}:{B0+3+4*qd}] offset:{qd*1024}")
    e("s_waitcnt lgkmcnt(0)"); e("s_barrier")
    e(f"s_mov_b32 s39, {WS_FLAGO + 0x4000:#x}")
    e("s_and_b32 s60, s3, 3"); e("s_cmp_lg_u32 s60, 0"); e("s_cbranch_scc0 a_spf")
    e("s_barrier"); e("s_branch b_entry")
    e("a_spf:")
    for w_ in range(1, 4):
        for qd in range(NQ): e(f"ds_read_b128 v[{B0+w_*nr+4*qd}:{B0+w_*nr+3+4*qd}], v7 offset:{(w_*NQ+qd)*1024}")
    e("s_waitcnt lgkmcnt(0)"); e("s_barrier")
    for pp in (1, 2, 3):
        for r in range(0, nr, 2): e(f"v_pk_add_f32 v[{B0+r}:{B0+r+1}], v[{B0+r}:{B0+r+1}], v[{B0+pp*nr+r}:{B0+pp*nr+r+1}]")
    FQ, KO_, ZO_ = B0, 64, 80
    for sg in range(2):
        for db in range(2):
            d = KO_ + (sg*2+db)*4
            for fb in range(2):
                a = FQ + ((sg*2+fb)*2+db)*4
                e(f"v_cvt_pk_bf16_f32 v{d+2*fb}, v{a}, v{a+1}"); e(f"v_cvt_pk_bf16_f32 v{d+2*fb+1}, v{a+2}, v{a+3}")
    zq = FQ + 32
    for fbk in range(4):
        for r in range(4):
            e(f"v_mov_b32_dpp v{96+fbk*4+r}, v{zq+r} quad_perm:[{fbk},{fbk},{fbk},{fbk}] row_mask:0xf bank_mask:0xf")
    e("v_and_b32 v6, 3, v2"); e("v_mov_b32 v7, 0x3f803f80")
    e("v_cmp_eq_u32 vcc, 1, v6"); e("s_nop 1"); e("v_cndmask_b32 v7, 0, v7, vcc")
    e("v_cmp_eq_u32 vcc, 0, v6")
    for n in range(8): e(f"v_cvt_pk_bf16_f32 v{ZO_+n}, v{96+2*n}, v{97+2*n}")
    for n in range(8): e(f"v_cndmask_b32 v{ZO_+n}, v7, v{ZO_+n}, vcc")
    e(f"s_mul_i32 s60, s59, 6144"); e(f"s_add_u32 s60, s60, {WS_KVF:#x}"); e("s_add_u32 s61, s60, 4096")
    for n in range(6):
        e(f"buffer_store_dwordx4 v[{KO_+4*n}:{KO_+3+4*n}], v3, s[16:19], s{60 + n//4} offen offset:{(n%4)*1024} sc1")
    e("s_lshl_b32 s61, s59, 7"); e(f"s_add_u32 s61, s61, {WS_FLAG2:#x}")
    e("s_waitcnt vmcnt(0)")
    e(lane0("buffer_store_dwordx2 v[12:13], v14, s[16:19], s61 offen sc1"))
    if stamps: stamp_store(e, (80, 82, 84, 84, 84, 86, 86, 86), WS_STAMP, "a_end")
    gen_b2(opts, k)
    e("a_end:")
    return k

def gen_b2(opts, k):
    NS = opts.get("NSb", 5)
    c = GemmCfg(128, 2, NS, 64)
    e = k.e
    stamps = opts.get("stamps", False)
    NT = ""
    W2, B2 = 72, 74
    e("b_entry:")
    e("s_load_dwordx4 s[72:75], s[0:1], 56")
    if stamps: e("s_memrealtime s[80:81]")
    e("s_mov_b32 s92, s2")
    e("v_lshrrev_b32 v1, 6, v0"); e("v_and_b32 v2, 63, v0"); e("v_lshlrev_b32 v3, 4, v2")
    e("s_lshr_b32 s56, s2, 3")
    e("v_readfirstlane_b32 s3, v1")
    e("s_and_b32 s52, s2, 1")
    if opts.get("bmap", "8d4s") == "8d4s":
        e("s_lshr_b32 s54, s56, 2")
        e("s_bfe_u32 s55, s2, 0x20001"); e("s_lshl_b32 s55, s55, 2"); e("s_and_b32 s60, s56, 3"); e("s_add_u32 s55, s55, s60")
    else:
        e("s_bfe_u32 s54, s2, 0x10001"); e("s_lshl_b32 s54, s54, 2"); e("s_and_b32 s60, s56, 3"); e("s_add_u32 s54, s54, s60")
        e("s_bfe_u32 s55, s2, 0x10002"); e("s_lshl_b32 s55, s55, 3"); e("s_lshr_b32 s60, s56, 2"); e("s_add_u32 s55, s55, s60")
    e("s_waitcnt lgkmcnt(0)")
    e("s_cmp_lt_u32 s3, 4"); e("s_cbranch_scc1 b_cons")
    k.srd(24, W2, F_*S_*2)
    e(f"s_mul_i32 s29, s52, {2304*4096}"); e("s_lshl_b32 s60, s55, 8"); e("s_add_u32 s29, s29, s60")
    assert NS == 5
    e("s_sub_u32 s3, s3, 4")
    lane_T_dma_off(e, 16, 24, 2, 6, S_*2, 3)
    for n in range(1, 4):
        sg, kg = divmod(n, 2); e(f"v_add_u32 v{24+n}, {sg*128 + kg*32*S_*2}, v24")
    e("s_lshl_b32 s30, s3, 11")
    e("s_lshl_b32 s31, s3, 10"); e(f"s_add_u32 s31, s31, {c.PB}")
    fl = (" sc1", "")
    R3 = dict(vP=[3, 9], vT=list(range(24, 28)), sP=28, sT=29, srdP=16, srdT=24, sBase=30, sLds=32, sStage=34, sCnt=35, stepP=8*D_*16, stepT=64*S_*2)
    e("s_mov_b32 s32, s30"); e("s_mov_b32 s33, s31")
    for t in range(NS): producer_issue(e, c, R3, fl, "T", t*c.SB)
    k.srd(20, WO, D_*D_*2)
    e(f"v_add_u32 v9, {4*D_*16}, v3"); e(f"v_add_u32 v13, {4*S_*16}, v3")
    e("s_mul_i32 s28, s52, 288"); e("s_add_u32 s28, s28, s3"); e("s_lshl_b32 s28, s28, 14"); e("s_lshl_b32 s60, s54, 11"); e("s_add_u32 s28, s28, s60")
    e(f"s_add_u32 s28, s28, {WS_UT:#x}")
    lane_T_dma_off(e, 16, 32, 2, 6, D_*2, 3)
    for n in range(1, 4):
        sg, kg = divmod(n, 2); e(f"v_add_u32 v{32+n}, {sg*128 + kg*32*D_*2}, v32")
    e("s_lshl_b32 s36, s3, 15"); e("s_lshl_b32 s60, s55, 11"); e("s_add_u32 s36, s36, s60"); e(f"s_add_u32 s36, s36, {WS_OT:#x}")
    e("s_lshl_b32 s37, s54, 8")
    R4 = dict(R3, vP=[3, 13], vT=list(range(32, 36)), sP=36, sT=37, srdT=20, stepP=8*S_*16, stepT=64*D_*2)
    e("s_cmp_eq_u32 s52, 0"); e("s_cselect_b32 s60, 17, 9"); e("v_min_u32 v8, s60, v2"); e("v_lshlrev_b32 v8, 7, v8")
    e("s_lshr_b32 s38, s54, 1"); e("s_mul_i32 s38, s38, 28"); e("s_mul_i32 s60, s52, 18"); e("s_add_u32 s38, s38, s60"); e("s_lshl_b32 s38, s38, 7"); e(f"s_add_u32 s38, s38, {WS_FLAGU:#x}")
    e("s_barrier")
    poll_tok(k, 8, 16, "s38", 0x3ffff, 10, sleep=1)
    for t in range(NS): producer_issue(e, c, R3, fl, "P", t*c.SB)
    e("s_mov_b32 s34, 0")
    e("s_waitcnt vmcnt(16)"); e("s_barrier")
    for wn_ in (12, 16, 20):
        e(f"s_waitcnt vmcnt({wn_})"); e("s_barrier")
        producer_issue(e, c, R3, fl); ring_advance(e, c, R3)
    e("s_cmp_eq_u32 s52, 0"); e("s_cselect_b32 s35, 28, 12")
    e("b_l3:")
    e("s_waitcnt vmcnt(24)"); e("s_barrier")
    producer_issue(e, c, R3, fl); ring_advance(e, c, R3)
    e("s_sub_u32 s35, s35, 1"); e("s_cmp_lg_u32 s35, 0"); e("s_cbranch_scc1 b_l3")
    e("s_cmp_eq_u32 s52, 0"); e("s_cbranch_scc1 b_lt")
    e("s_mov_b32 s35, 16")
    e("b_l4:")
    e("s_waitcnt vmcnt(24)"); e("s_barrier")
    producer_issue(e, c, R4, fl); ring_advance(e, c, R4)
    e("s_sub_u32 s35, s35, 1"); e("s_cmp_lg_u32 s35, 0"); e("s_cbranch_scc1 b_l4")
    e("b_lt:")
    for wn_ in (24, 16, 8, 0, 0):
        e(f"s_waitcnt vmcnt({wn_})"); e("s_barrier")
    e("s_endpgm")
    e("b_cons:")
    e(f"v_mov_b32 v92, s{TOK}"); e(f"v_mov_b32 v93, s{TOK+1}"); e("v_mov_b32 v94, 0")
    e("s_barrier")
    e("s_cmp_lg_u32 s3, 0"); e("s_cbranch_scc1 b_nf")
    e(lane0("buffer_store_dwordx2 v[92:93], v94, s[16:19], s39 offen sc1"))
    e("b_nf:")
    e("s_lshr_b32 s57, s3, 1"); e("s_and_b32 s58, s3, 1")
    k.srd(24, B2, S_*2)
    k.srd(20, OUT, S_*D_*2)
    e("v_and_b32 v15, 15, v2"); e("v_lshrrev_b32 v14, 4, v2")
    e("s_lshl_b32 s60, s55, 7"); e("s_lshl_b32 s61, s58, 5"); e("s_add_u32 s60, s60, s61"); e("v_add_u32 v8, s60, v15")
    e("v_lshlrev_b32 v9, 2, v8"); e("v_lshlrev_b32 v8, 1, v8")
    e(f"s_mov_b32 s60, {WS_G:#x}")
    GO, BO = 80, 88
    for j in range(4):
        e(f"buffer_load_dword v{GO+2*j}, v9, s[16:19], s60 offen offset:{((j//2)*64 + (j%2)*16)*4} sc1")
        e(f"buffer_load_ushort v{BO+j}, v8, s[24:27], 0 offen offset:{((j//2)*64 + (j%2)*16)*2}")
    acc = [[96 + (i*4+j)*4 for j in range(4)] for i in range(4)]
    e("v_lshlrev_b32 v4, 11, v14"); e("v_lshl_add_u32 v4, v15, 4, v4")
    e("v_mov_b32 v5, v4")
    e("s_lshl_b32 s60, s57, 10"); e("v_add_u32 v4, s60, v4")
    lane_T_read_off(e, 16, 10, 2, 12, 13)
    e("s_lshl_b32 s60, s58, 6"); e("v_xor_b32 v6, s60, v10"); e("v_xor_b32 v7, 32, v6")
    e("s_waitcnt vmcnt(0)")
    e("s_cmp_eq_u32 s52, 0"); e("s_cselect_b32 s60, -65536, 0")
    for j in range(4):
        e(f"v_sub_f32 v{GO+2*j}, 1.0, v{GO+2*j}")
        e(f"v_lshlrev_b32 v{BO+j}, 16, v{BO+j}"); e(f"v_and_b32 v{BO+j}, s60, v{BO+j}")
        for i in range(4):
            for q in range(4): e(f"v_mov_b32 v{acc[i][j]+q}, v{BO+j}")
    p_off = [(0, kk*8192 + i*256) for kk in range(2) for i in range(4)]
    t_desc = [(j % 2, c.PB + (j//2)*8192 + kk*4096) for kk in range(2) for j in range(4)]
    order = [(kk*4+i, kk*4+j, i, j) for kk in range(2) for i in range(4) for j in range(4)]
    pbufs = [16 + 4*i for i in range(8)]; tbufs = [48 + 4*j for j in range(8)]
    def scale():
        e("s_waitcnt lgkmcnt(0)"); e("s_nop 7")
        for j in range(4):
            for i in range(4):
                for q in (0, 2):
                    a = acc[i][j] + q
                    e(f"v_pk_mul_f32 v[{a}:{a+1}], v[{a}:{a+1}], v[{GO+2*j}:{GO+2*j+1}] op_sel_hi:[1,0]")
    if stamps: e("s_memrealtime s[82:83]")
    e("s_cmp_eq_u32 s52, 0"); e("s_cbranch_scc0 b_cons1")
    consumer_loop(k, c, 36, 16, 8, 8, p_off, t_desc, acc, pbufs, tbufs, [4], [6, 7], True, order, 36, 37, 38, rpg=1, bar_pos=18)
    scale()
    e("s_branch b_exch")
    e("b_cons1:")
    e("v_lshlrev_b32 v95, 7, v15"); e("s_lshr_b32 s46, s55, 1"); e("s_lshl_b32 s46, s46, 11"); e(f"s_add_u32 s46, s46, {WS_FLAGO:#x}")
    chk = Kern("tmp", 0, 0, 0); chk.name = "bo"
    chk.e("s_waitcnt vmcnt(0)"); chk.e(f"v_cmp_ne_u64 vcc, s[{TOK}:{TOK+1}], v[160:161]"); chk.e("s_nop 4"); chk.e("s_cbranch_vccz b_ook")
    poll_tok(chk, 95, 16, "s46", None, 160, sleep=1)
    chk.e("b_ook:")
    consumer_loop(k, c, [(4, ["buffer_load_dwordx2 v[160:161], v95, s[16:19], s46 offen sc1"]), (8, chk.lines), (8, [])], 16, 8, 8, p_off, t_desc, acc, pbufs, tbufs, [4], [6, 7], True, order, 36, 37, 38, rpg=1, bar_pos=18)
    slot = 20 % NS
    e("s_lshl_b32 s60, s58, 9"); e(f"s_add_u32 s60, s60, {slot*c.SB}"); e("v_add_u32 v4, s60, v5")
    e("s_lshl_b32 s60, s57, 13"); e(f"s_add_u32 s60, s60, {slot*c.SB}"); e("v_add_u32 v10, s60, v10")
    for q in range(1, 4): e(f"v_xor_b32 v{10+q}, {32*q}, v10")
    scale()
    p_off4 = [(0, kk*8192 + (j//2)*1024 + (j%2)*256) for kk in range(2) for j in range(4)]
    t_desc4 = [(i, c.PB + kk*4096) for kk in range(2) for i in range(4)]
    order4 = [(kk*4+j, kk*4+i, i, j) for kk in range(2) for j in range(4) for i in range(4)]
    consumer_loop(k, c, 16, 16, 8, 8, p_off4, t_desc4, acc, pbufs, tbufs, [4], [10, 11, 12, 13], False, order4, 36, 37, 38, rpg=1, bar_pos=18, slot0=slot)
    e("s_waitcnt lgkmcnt(0)"); e("s_nop 7")
    e("b_exch:")
    if stamps: e("s_memrealtime s[84:85]")
    e("s_lshl_b32 s60, s2, 2"); e("s_add_u32 s60, s60, s3"); e("s_lshl_b32 s60, s60, 13"); e(f"s_add_u32 s60, s60, {gen2.WS_PART:#x}")
    e("s_add_u32 s61, s60, 4096")
    e("s_xor_b32 s62, s60, 0x8000"); e("s_add_u32 s63, s62, 4096")
    e("s_lshl_b32 s40, s2, 10"); e("s_lshl_b32 s41, s3, 7"); e("s_add_u32 s40, s40, s41"); e(f"s_add_u32 s40, s40, {WS_FLAG:#x}"); e("s_xor_b32 s41, s40, 0x400")
    e("v_mov_b32 v8, 0"); e("v_mov_b32 v9, 1")
    xb = opts.get("xbf16", False)
    def exch(hk, lab):
        snd = [acc[i][2*(1-hk)+jj] for jj in range(2) for i in range(4)]
        keep = [acc[i][2*hk+jj] for jj in range(2) for i in range(4)]
        if xb:
            for n, a in enumerate(snd):
                e(f"v_cvt_pk_bf16_f32 v{64+2*n}, v{a}, v{a+1}"); e(f"v_cvt_pk_bf16_f32 v{65+2*n}, v{a+2}, v{a+3}")
                if n % 2: e(f"buffer_store_dwordx4 v[{62+2*n}:{65+2*n}], v3, s[16:19], s60 offen offset:{(n//2)*1024} sc1")
        else:
            for n, a in enumerate(snd):
                e(f"buffer_store_dwordx4 v[{a}:{a+3}], v3, s[16:19], s{60 + n//4} offen offset:{(n%4)*1024} sc1")
        e("s_waitcnt vmcnt(0)")
        e(lane0("buffer_store_dwordx2 v[92:93], v94, s[16:19], s40 offen sc1"))
        poll_tok(k, 94, 16, "s41", None, 10, sleep=1, cnt=47)
        if xb:
            for n in range(4):
                e(f"buffer_load_dwordx4 v[{16+4*n}:{19+4*n}], v3, s[16:19], s62 offen offset:{n*1024} sc1")
            e("s_mov_b32 s63, 0xffff0000")
            for n, a in enumerate(keep):
                if n % 2 == 0: e(f"s_waitcnt vmcnt({3-n//2})")
                for h in range(2):
                    src = 16 + 2*n + h
                    e(f"v_lshlrev_b32 v32, 16, v{src}"); e(f"v_and_b32 v33, s63, v{src}")
                    e(f"v_pk_add_f32 v[{a+2*h}:{a+2*h+1}], v[{a+2*h}:{a+2*h+1}], v[32:33]")
        else:
            for n in range(8):
                e(f"buffer_load_dwordx4 v[{16+4*n}:{19+4*n}], v3, s[16:19], s{62 + n//4} offen offset:{(n%4)*1024} sc1")
            for n, a in enumerate(keep):
                e(f"s_waitcnt vmcnt({7-n})")
                for q in (0, 2): e(f"v_pk_add_f32 v[{a+q}:{a+q+1}], v[{a+q}:{a+q+1}], v[{16+4*n+q}:{17+4*n+q}]")
        for i in range(4):
            for jj in range(2):
                a = acc[i][2*hk+jj]; o = 48 + i*4 + jj*2
                e(f"v_cvt_pk_bf16_f32 v{o}, v{a}, v{a+1}"); e(f"v_cvt_pk_bf16_f32 v{o+1}, v{a+2}, v{a+3}")
    e("s_cmp_eq_u32 s52, 0"); e("s_cbranch_scc0 b_ex1")
    exch(0, "b_ex0")
    e("s_branch b_fin")
    e("b_ex1:")
    exch(1, "b_ex1")
    e("b_fin:")
    e("v_and_b32 v8, 31, v2"); e("v_lshlrev_b32 v8, 11, v8"); e("v_lshrrev_b32 v9, 5, v2"); e("v_lshl_add_u32 v8, v9, 4, v8")
    e("s_lshl_b32 s60, s55, 2"); e("s_lshl_b32 s61, s52, 1"); e("s_add_u32 s60, s60, s61"); e("s_add_u32 s60, s60, s58"); e("s_lshl_b32 s60, s60, 16")
    e("s_lshl_b32 s61, s54, 8"); e("s_add_u32 s60, s60, s61"); e("s_lshl_b32 s61, s57, 7"); e("s_add_u32 s60, s60, s61")
    for i in range(4):
        o = 48 + i*4
        e(f"v_permlane16_swap_b32 v{o}, v{o+2}"); e(f"v_permlane16_swap_b32 v{o+1}, v{o+3}")
    for i in range(4):
        o = 48 + i*4
        e(f"buffer_store_dwordx4 v[{o}:{o+3}], v8, s[20:23], s60 offen offset:{i*32}{opts.get('ost', '')}")
    if stamps: stamp_store(e, (80, 82, 84, 86, 86, 86, 86, 86), WS_STAMP + 0x10000, "")

if __name__ == "__main__":
    out = sys.argv[1]
    opts = eval("dict(" + (sys.argv[2] if len(sys.argv) > 2 else "") + ")")
    write_file(out, [gen_a(dict(dict(ust=' sc1', ost=' nt', xbf16=True, pf_wq=False, pf_g2=8, sp_row0=672), **opts))], single=True)
```

```python
import re
HEADER_COMMENT = open("gated_mix__linear_kernel_hedgehog__mixer_token_mlp__prompt.s.ref").read().split("; Override launch")[0]

KA = dict(x=0, wqkv=8, wphi=16, wo=24, bx=32, w1=40, b1=48, w2=56, b2=64, gw=72, out=80, dbg=88, ws=96)

class Kern:
    def __init__(self, name, grid, block, lds, vgpr=256, sgpr=102, accum=None):
        self.name = name; self.grid = grid; self.block = block; self.lds = lds
        self.vgpr = vgpr; self.sgpr = sgpr; self.accum = accum
        self.lines = []
        self._lab = 0
    def e(self, s):
        for l in s.strip("\n").split("\n"):
            m = re.search(r"offset:(\d+)", l)
            if m:
                lim = 4095 if l.strip().startswith(("buffer_", "global_")) else 65535
                assert int(m.group(1)) <= lim, l
            self.lines.append("  " + l.strip() if not l.strip().endswith(":") else l.strip())
    def lab(self, base="L"):
        self._lab += 1
        return f"{self.name}_{base}{self._lab}"
    def srd(self, d, base, nbytes, add=None):
        if add:
            self.e(f"s_add_u32 s{d}, s{base}, {add:#x}")
            self.e(f"s_addc_u32 s{d+1}, s{base+1}, 0")
        else:
            self.e(f"s_mov_b32 s{d}, s{base}")
            self.e(f"s_mov_b32 s{d+1}, s{base+1}")
        self.e(f"s_mov_b32 s{d+2}, {nbytes:#x}")
        self.e(f"s_mov_b32 s{d+3}, 0x00020000")
    def text(self):
        out = [f".globl {self.name}", ".p2align 8", f".type {self.name},@function", f"{self.name}:"]
        out += self.lines
        out += ["  s_endpgm"]
        return "\n".join(out)
    def desc(self):
        accum = self.accum if self.accum is not None else min(256, (self.vgpr + 3) // 4 * 4)
        return "\n".join([
            ".p2align 6",
            f".amdhsa_kernel {self.name}",
            f"  .amdhsa_next_free_vgpr {self.vgpr}",
            f"  .amdhsa_next_free_sgpr {self.sgpr}",
            f"  .amdhsa_accum_offset {accum}",
            "  .amdhsa_group_segment_fixed_size 0",
            "  .amdhsa_kernarg_size 104",
            "  .amdhsa_user_sgpr_count 2",
            "  .amdhsa_user_sgpr_kernarg_segment_ptr 1",
            "  .amdhsa_system_sgpr_workgroup_id_x 1",
            ".end_amdhsa_kernel"])

def write_file(path, kerns, order=None, single=False):
    order = order or kerns
    out = [HEADER_COMMENT.rstrip("\n")]
    for k in order:
        out.append(f"; @launch {'' if single else 'kernel=' + k.name + ' '}grid=({k.grid},1,1) block=({k.block},1,1) lds={k.lds}")
    out.append('.amdgcn_target "amdgcn-amd-amdhsa--gfx950"')
    out.append(".text")
    for k in kerns:
        out.append(k.text())
    out.append('.section .rodata,"a"')
    for k in kerns:
        out.append(k.desc())
    open(path, "w").write("\n".join(out) + "\n")
```

```python
import sys
from gen import *
import gen2, gen3, gen4
from gen2 import spin_until, softmax_units, DBG, WS, X, WQKV, WPHI, WO, W1, B1, GW, OUT, WS_KVP, NQ
from gen3 import Stream, Work, WS_KVF
from gen4 import lane0, HP

WS_SIZE = 0x4000000
WS_FLAGL = 0x14E0000
WS_FLAG1 = 0x14C0000
WS_FLAG2 = 0x14D0000
WS_FLAGU = 0x14F0000
WS_FLAGO = 0x14F8000
TOK = 44

def poll_tok(k, vaddr, srd, soff, nl_mask, vd, sleep=4, cnt=63):
    e = k.e
    L = k.lab("pt"); Lok = k.lab("ptok")
    if nl_mask is not None: e(f"s_mov_b64 exec, {nl_mask:#x}")
    e(f"s_mov_b32 s{cnt}, 0x40000")
    e(f"{L}:")
    vs = vaddr if isinstance(vaddr, list) else [vaddr]
    for n, va in enumerate(vs):
        e(f"buffer_load_dwordx2 v[{vd+2*n}:{vd+1+2*n}], v{va}, s[{srd}:{srd+3}], {soff} offen sc1")
    e("s_waitcnt vmcnt(0)")
    e(f"v_cmp_ne_u64 vcc, s[{TOK}:{TOK+1}], v[{vd}:{vd+1}]")
    for n in range(1, len(vs)):
        e(f"v_cmp_ne_u64 s[60:61], s[{TOK}:{TOK+1}], v[{vd+2*n}:{vd+1+2*n}]"); e("s_or_b64 vcc, vcc, s[60:61]")
    e(f"s_sub_u32 s{cnt}, s{cnt}, 1"); e(f"s_cbranch_scc1 {Lok}")
    e(f"s_cbranch_vccz {Lok}")
    e(f"s_sleep {sleep}")
    e(f"s_branch {L}")
    e(f"{Lok}:")
    if nl_mask is not None: e("s_mov_b64 exec, -1")

def get_token(k, vz, vd):
    e = k.e
    L = k.lab("tk"); Lok = k.lab("tkok")
    e("s_mov_b32 s63, 0x8000")
    e(f"{L}:")
    e(f"buffer_load_dwordx2 v[{vd}:{vd+1}], v{vz}, s[40:43], 0 offen sc1"); e("s_waitcnt vmcnt(0)")
    e(f"v_readfirstlane_b32 s{TOK}, v{vd}"); e(f"v_readfirstlane_b32 s{TOK+1}, v{vd+1}")
    e("s_sub_u32 s63, s63, 1"); e(f"s_cbranch_scc1 {Lok}")
    e(f"s_cmp_eq_u32 s{TOK}, 0"); e(f"s_cbranch_scc1 {L}")
    e(f"{Lok}:")

_sl = [0]
DBGST = []
def stamp_store(e, regs, base, endlab, cond="v0"):
    _sl[0] += 1; endlab = f"stl{_sl[0]}"
    if DBGST:
        e("s_waitcnt vmcnt(0)")
        e("s_memrealtime s[86:87]"); e("s_waitcnt lgkmcnt(0)")
        slot = DBGST.pop(0)
        e("v_mov_b32 v7, 0")
        e(f"v_cmp_eq_u32 vcc, 0, {cond}"); e("s_and_saveexec_b64 s[60:61], vcc"); e(f"s_cbranch_execz {endlab}")
        for n, (sr, w) in enumerate(slot):
            e(f"s_sub_u32 s62, s{sr}, s{TOK}"); e(f"v_mov_b32 v{16+n}, s62"); e(f"global_atomic_smax v7, v{16+n}, s[4:5] offset:{128 + w*4}" if False else f"global_atomic_smax v7, v{16+n}, s[4:5] offset:{w*4}")
        e(f"{endlab}:"); e("s_mov_b64 exec, -1")
        return
    e("s_waitcnt vmcnt(0)")
    e("s_memrealtime s[86:87]"); e("s_waitcnt lgkmcnt(0)")
    for n, sr in enumerate(regs): e(f"v_mov_b32 v{16+n}, s{sr}")
    e("s_lshl_b32 s60, s92, 5"); e(f"s_add_u32 s60, s60, {base:#x}"); e("v_mov_b32 v7, s60")
    e(f"v_cmp_eq_u32 vcc, 0, {cond}"); e("s_and_saveexec_b64 s[60:61], vcc"); e(f"s_cbranch_execz {endlab}")
    e(f"global_store_dwordx4 v7, v[16:19], s[{WS}:{WS+1}]")
    e(f"global_store_dwordx4 v7, v[20:23], s[{WS}:{WS+1}] offset:16")
    e(f"{endlab}:"); e("s_mov_b64 exec, -1")

def gen_a(opts):
    if opts.get("dbgst"):
        DBGST.extend([[(84, 2), (90, 3), (86, 4)], [(82, 5), (84, 6), (88, 7), (86, 8)], [(84, 9), (86, 10)], [(82, 11), (84, 12), (86, 13)]])
    c2 = GemmCfg(256, 2, 6, 32)
    k = Kern("gated_mix__linear_kernel_hedgehog__mixer_token_mlp__prompt_kernel", 256, 512, 160*1024, vgpr=256, sgpr=100)
    e = k.e
    stamps = opts.get("stamps", False)
    pf = opts.get("pf", True)
    e("s_cmp_ge_u32 s2, 256"); e("s_cbranch_scc1 a_end")
    e("s_load_dwordx8 s[64:71], s[0:1], 0")
    e("s_load_dwordx4 s[72:75], s[0:1], 40")
    e("s_load_dwordx4 s[76:79], s[0:1], 72")
    e("s_load_dwordx4 s[4:7], s[0:1], 88")
    e("s_load_dwordx2 s[12:13], s[0:1], 56")
    e(f"s_memrealtime s[{TOK}:{TOK+1}]")
    e("s_mov_b32 s92, s2")
    e("v_lshrrev_b32 v1, 6, v0"); e("v_and_b32 v2, 63, v0"); e("v_lshlrev_b32 v3, 4, v2")
    e("s_lshr_b32 s56, s2, 3"); e("s_and_b32 s57, s2, 7")
    e("v_readfirstlane_b32 s3, v1")
    e("v_mov_b32 v14, 0")
    e("s_waitcnt lgkmcnt(0)")
    if stamps: e(f"s_mov_b32 s80, s{TOK}")
    k.srd(16, WS, WS_SIZE)
    k.srd(40, DBG, 256)
    k.srd(20, X, S_*D_*2)
    e("s_lshl_b32 s60, s2, 3"); e("s_add_u32 s60, s60, s3"); e("s_cmp_lg_u32 s60, 7"); e("s_cbranch_scc1 a_ntp")
    e(f"s_or_b32 s{TOK}, s{TOK}, 1"); e(f"v_mov_b32 v4, s{TOK}"); e(f"v_mov_b32 v5, s{TOK+1}")
    e(lane0("buffer_store_dwordx2 v[4:5], v14, s[40:43], 0 offen sc1"))
    e("a_ntp:")
    e("s_lshr_b32 s58, s57, 1")
    e("s_and_b32 s60, s57, 1"); e("s_cmp_eq_u32 s60, 1"); e("s_cbranch_scc1 a_bchain")
    e("s_and_b32 s52, s56, 7")
    e("s_lshl_b32 s53, s58, 2"); e("s_lshr_b32 s60, s56, 3"); e("s_add_u32 s53, s53, s60")
    e("s_cmp_lt_u32 s3, 4"); e("s_cbranch_scc1 a_g1c")
    st = Stream(k)
    k.srd(24, WQKV, D_*3*D_*2)
    e("s_sub_u32 s3, s3, 4")
    e("v_lshrrev_b32 v7, 3, v2")
    e("s_lshl_b32 s60, s3, 6"); e("v_add_u32 v4, s60, v7"); e("v_lshlrev_b32 v4, 11, v4")
    e("v_lshrrev_b32 v5, 1, v7"); e("v_xor_b32 v5, v5, v2"); e("v_and_b32 v5, 7, v5")
    e("v_lshl_add_u32 v16, v5, 4, v4")
    e("v_xor_b32 v17, 64, v16"); e(f"v_add_u32 v17, {8*2048}, v17")
    for n in range(2, 8): e(f"v_add_u32 v{16+n}, {(n//2)*16*2048}, v{16+n%2}")
    lane_T_dma_off(e, 16, 24, 2, 6, 6144, 3)
    for n in (1, 2): e(f"v_add_u32 v{24+n}, {n*2048}, v24")
    e("s_lshl_b32 s9, s52, 19"); e("s_lshl_b32 s10, s53, 7")
    e("s_lshl_b32 s30, s3, 13"); e("s_lshl_b32 s31, s3, 10"); e(f"s_add_u32 s31, s31, {96*1024}")
    def issueP(n, half):
        if half == 0:
            st.e(f"s_add_u32 s11, s52, {n}\ns_and_b32 s11, s11, 15\ns_lshl_b32 s11, s11, 7\ns_add_u32 s28, s9, s11")
        for rb in range(4*half, 4*half+4):
            st.e(f"s_add_u32 m0, s30, {(n % 3)*32768 + rb*1024}\ns_nop 0\nbuffer_load_dwordx4 v{16+rb}, s[20:23], s28 offen lds")
        st.mark(f"P{n}")
    def issueT(t):
        st.e(f"s_lshl_b32 s11, s52, 1\ns_add_u32 s11, s11, {t}\ns_and_b32 s11, s11, 31\ns_mul_i32 s11, s11, {32*6144}\ns_add_u32 s29, s10, s11")
        for sg in range(3):
            st.e(f"s_add_u32 m0, s31, {(t % 5)*12288 + sg*4096}\ns_nop 0\nbuffer_load_dwordx4 v{24+sg}, s[24:27], s29 offen{opts.get('nt1', '')} lds")
        st.mark(f"T{t}")
    issueP(0, 0); issueP(0, 1); issueT(0); st.mark("S0"); issueT(1); issueP(1, 0); issueP(1, 1); issueT(2); issueT(3); issueP(2, 0); issueP(2, 1); issueT(4)
    k.srd(48, WPHI, 32*2048)
    e("s_lshl_b32 s60, s53, 12"); e("s_lshl_b32 s61, s3, 10"); e("s_add_u32 s60, s60, s61"); e(f"s_add_u32 m0, s61, {156*1024}"); e("s_nop 0")
    st.e("buffer_load_dwordx4 v3, s[48:51], s60 offen lds")
    k.srd(32, 12, F_*S_*2)
    e("s_lshl_b32 s61, s58, 5"); e("s_add_u32 s61, s61, s56"); e("s_lshl_b32 s61, s61, 2"); e("s_add_u32 s61, s61, s3"); e("s_lshl_b32 s61, s61, 10")
    t0, npc = opts.get("g1sw", (8, 0))
    sched = {}
    for n in range(npc): sched[t0 + n*(32-t0)//npc] = sched.get(t0 + n*(32-t0)//npc, 0) + 1
    st.e("@wait S0"); e("s_barrier")
    for t in range(32):
        if t + 1 < 32:
            st.e(f"@wait T{t+1}")
            if t % 2 == 1: st.e(f"@wait P{(t+1)//2}")
        e("s_barrier")
        if t + 5 < 32: issueT(t + 5)
        m = (t - 1) // 2 + 3
        if t >= 1 and m < 16: issueP(m, (t + 1) % 2)
        for n in range(sched.get(t, 0)): st.e(f"buffer_load_dwordx4 v[240:243], v3, s[32:35], s61 offen\ns_add_u32 s61, s61, {512*1024}")
    e("s_lshr_b32 s54, s3, 1"); e("s_and_b32 s55, s3, 1"); e("s_lshl_b32 s59, s53, 1"); e("s_add_u32 s59, s59, s55")
    e("s_mul_i32 s60, s3, 12288"); e("v_add_u32 v8, s60, v3"); e(f"v_mov_b32 v9, {152*1024}")
    e("s_add_u32 s3, s3, 4"); e("s_mov_b32 s35, 1"); e("s_mov_b64 s[8:9], s[12:13]")
    e("s_waitcnt vmcnt(0)")
    e("s_barrier")
    e("ds_read_b64 v[12:13], v9")
    for n in range(4):
        for part in range(3): e(f"ds_read_b128 v[{64+24*n+4*part}:{64+24*n+4*part+3}], v8 offset:{(n*3+part)*1024}")
    e("s_waitcnt lgkmcnt(0)")
    e(f"v_readfirstlane_b32 s{TOK}, v12"); e(f"v_readfirstlane_b32 s{TOK+1}, v13")
    e("s_branch a_epi")
    e("a_g1c:")
    e("s_lshr_b32 s54, s3, 1"); e("s_and_b32 s55, s3, 1")
    e("s_lshl_b32 s59, s53, 1"); e("s_add_u32 s59, s59, s55")
    e("s_mov_b64 s[8:9], s[12:13]")
    acc = [[64 + (i*6+j)*4 for j in range(6)] for i in range(8)]
    for r in range(64, 256, 2): e(f"v_mov_b64 v[{r}:{r+1}], 0")
    e("v_and_b32 v8, 15, v2"); e("v_lshrrev_b32 v9, 4, v2")
    e("v_lshrrev_b32 v10, 1, v8"); e("v_xor_b32 v10, v10, v9")
    e("s_lshl_b32 s60, s54, 7"); e("v_add_u32 v4, s60, v8"); e("v_lshlrev_b32 v4, 7, v4"); e("v_lshl_add_u32 v4, v10, 4, v4")
    lane_T_read_off(e, 16, 6, 2, 8, 9)
    e("s_lshl_b32 s60, s55, 6"); e("v_xor_b32 v6, s60, v6"); e(f"v_add_u32 v6, {96*1024}, v6"); e("v_xor_b32 v7, 32, v6")
    get_token(k, 14, 12)
    p_off = [(0, i*2048) for i in range(8)]
    t_desc = [(j % 2, (j//2)*4096) for j in range(6)]
    order = [(2*a+b, j, 2*a+b, j) for a in range(4) for j in range(6) for b in range(2)]
    pbufs = [16 + 4*i for i in range(4)]; tbufs = [32 + 4*j for j in range(8)]
    ringT = ["s_cmp_eq_u32 s36, 4", "s_cselect_b32 s37, s39, 12288", "s_cselect_b32 s36, -1, s36", "s_add_u32 s36, s36, 1"]
    ringP = ["s_cmp_eq_u32 s32, 2", "s_cselect_b32 s33, s34, 0x8000", "s_cselect_b32 s32, -1, s32", "s_add_u32 s32, s32, 1"]
    salu = lambda s: ringT + (ringP if s % 2 else [])
    valu = lambda s: ["v_add_u32 v6, s37, v6", "v_add_u32 v7, s37, v7", "v_xor_b32 v4, 64, v4"] + (["v_add_u32 v4, s33, v4"] if s % 2 else [])
    tail = ["s_sub_u32 s38, s38, 1", "s_cmp_lg_u32 s38, 0"]
    ahead, body, U = build_consumer(None, 16, 8, 6, p_off, t_desc, acc, pbufs, tbufs, [4], [6, 7], lambda i, j: j >= 4, order,
                                    opts.get("bar1", 38), 1, salu, valu, tail, minU=2, salu_at=0)
    e(f"s_mov_b32 s39, {(-4*12288) & 0xffffffff:#x}"); e(f"s_mov_b32 s34, {(-2*32768) & 0xffffffff:#x}"); e("s_mov_b32 s36, 0"); e("s_mov_b32 s32, 0")
    if stamps: e("s_memrealtime s[82:83]")
    e("s_barrier")
    for l in ahead: e(l)
    e("s_waitcnt lgkmcnt(0)")
    e(f"s_mov_b32 s38, {32//U}"); e(".p2align 3"); e("a_g1loop:")
    for l in body: e(l)
    e("s_cbranch_scc1 a_g1loop")
    if stamps: e("s_memrealtime s[84:85]")
    e("s_waitcnt lgkmcnt(0)")
    Bk = lambda sb: 64 + 24*sb
    def cvt_units(sbs):
        for sb in sbs:
            B = Bk(sb)
            for n in range(8): e(f"v_cvt_pk_bf16_f32 v{B+n}, v{B+2*n}, v{B+2*n+1}")
        for p in sorted(set(sb//2 for sb in sbs)):
            for db in range(2):
                d = Bk(2*p+db) + 8
                for h in range(2):
                    a = Bk(2*p+h) + 16 + 4*db
                    e(f"v_cvt_pk_bf16_f32 v{d+2*h}, v{a}, v{a+1}"); e(f"v_cvt_pk_bf16_f32 v{d+2*h+1}, v{a+2}, v{a+3}")
    e("s_mul_i32 s60, s3, 12288"); e("v_add_u32 v8, s60, v3"); e(f"v_mov_b32 v9, {152*1024}")
    e("ds_write_b64 v9, v[12:13]")
    e("s_nop 4")
    cvt_units([4, 5, 6, 7])
    for n in range(4):
        for part in range(3): e(f"ds_write_b128 v8, v[{Bk(4+n)+4*part}:{Bk(4+n)+4*part+3}] offset:{(n*3+part)*1024}")
    cvt_units([0, 1, 2, 3])
    e("s_mov_b32 s35, 0")
    e("s_waitcnt lgkmcnt(0)"); e("s_barrier")
    if opts.get("estamp"): e("s_memrealtime s[82:83]")
    e("a_epi:")
    ne1 = opts.get("e1sw", 14)
    if ne1:
        k.srd(24, 8, F_*S_*2)
        e("s_lshl_b32 s60, s58, 5"); e("s_add_u32 s60, s60, s56"); e("s_lshl_b32 s60, s60, 3"); e("s_add_u32 s60, s60, s3"); e("s_lshl_b32 s60, s60, 10")
        for n in range(ne1): e(f"buffer_load_dwordx4 v[4:7], v3, s[24:27], s60 offen"); e(f"s_add_u32 s60, s60, 0x100000")
    holes = [Bk(sb) + 12 + 4*n for sb in range(4) for n in range(3)]
    KVq = holes[0:9]; WPq = holes[9:11]
    PK, ST, EP, EF, ZB = 16, 48, 160, 224, 240
    e("v_lshrrev_b32 v8, 2, v2"); e("v_lshlrev_b32 v8, 6, v8"); e("v_and_b32 v9, 3, v2"); e("v_lshl_add_u32 v8, v9, 3, v8")
    e("s_lshl_b32 s60, s55, 11"); e(f"s_add_u32 s60, s60, {156*1024}"); e("v_add_u32 v8, s60, v8")
    for fb in range(2):
        for t in range(2): e(f"ds_read_b64_tr_b16 v[{WPq[fb]+2*t}:{WPq[fb]+2*t+1}], v8 offset:{t*1024 + fb*32}")
    e(f"s_mov_b32 s62, {f32(LOG2E)}"); e(f"s_mov_b32 s63, {f32(LOG2E)}")
    e("v_and_b32 v8, 15, v2"); e("v_lshrrev_b32 v9, 4, v2"); e("s_mul_i32 s34, s3, 10240"); e(f"s_add_u32 s34, s34, {48*1024}")
    e("v_mul_u32_u24 v10, 160, v8"); e("v_lshl_add_u32 v10, v9, 3, v10"); e("v_add_u32 v10, s34, v10")
    e("v_lshrrev_b32 v8, 2, v8"); e("v_lshl_add_u32 v8, v9, 2, v8"); e("v_mul_u32_u24 v11, 160, v8")
    def pmfma(off):
        for u in range(4):
            for fb in range(2):
                d = PK + (u*2+fb)*4; s = Bk(u) + off
                e(f"v_mfma_f32_16x16x32_bf16 v[{d}:{d+3}], v[{WPq[fb]}:{WPq[fb]+3}], v[{s}:{s+3}], 0")
    e("s_waitcnt lgkmcnt(0)")
    pmfma(4)
    e("v_and_b32 v8, 3, v2"); e("v_lshl_add_u32 v11, v8, 3, v11"); e("v_add_u32 v11, s34, v11"); e("v_mov_b32 v9, 0x3f803f80")
    for fbk in range(4):
        e(f"v_cmp_eq_u32 vcc, {fbk}, v8"); e("s_nop 1"); e(f"v_cndmask_b32 v{ZB+4*fbk}, 0, v9, vcc")
        for r in range(1, 4): e(f"v_mov_b32 v{ZB+4*fbk+r}, v{ZB+4*fbk}")
    units = [dict(x=[PK+u*8, PK+u*8+4], ep=EP+u*16, em=EP+8+u*16, st=ST+u*4, out=EP+u*16) for u in range(4)]
    softmax_units(e, units, 62, True)
    for u in range(4):
        o = units[u]["out"]
        for fbk in range(4): e(f"ds_write_b64 v10, v[{o+2*fbk}:{o+2*fbk+1}] offset:{u*16*160 + fbk*32}")
    pmfma(0)
    e("s_waitcnt lgkmcnt(0)")
    EFs = [EF, EP + 8]
    efq = [[EF + 4*n for n in range(4)], [EP+8, EP+12, EP+24, EP+28]]
    for p in range(2):
        for fbk in range(4):
            for t in range(2): e(f"ds_read_b64_tr_b16 v[{efq[p][fbk]+2*t}:{efq[p][fbk]+2*t+1}], v11 offset:{(2*p+t)*16*160 + fbk*32}")
    for p in range(2):
        for fbk in range(4):
            e(f"s_waitcnt lgkmcnt({14-8*p-2*fbk})")
            for db in range(3):
                d = KVq[fbk*2+db] if db < 2 else KVq[8]
                b = Bk(2*p+db) + 8 if db < 2 else ZB + 4*fbk
                cc = "0" if (p == 0 and (db < 2 or fbk == 0)) else f"v[{d}:{d+3}]"
                e(f"v_mfma_f32_16x16x32_bf16 v[{d}:{d+3}], v[{efq[p][fbk]}:{efq[p][fbk]+3}], v[{b}:{b+3}], {cc}")
    e("v_add_u32 v10, s34, v3")
    e("s_lshr_b32 s33, s3, 1"); e("s_lshr_b32 s61, s33, 1"); e("s_lshl_b32 s61, s61, 2"); e("s_and_b32 s60, s33, 1"); e("s_add_u32 s61, s61, s60"); e("s_lshl_b32 s61, s61, 10")
    e("s_mul_i32 s60, s55, 10240"); e("s_add_u32 s60, s60, s61"); e(f"s_add_u32 s60, s60, {48*1024}"); e("v_add_u32 v11, s60, v3"); e("v_add_u32 v15, 0xa000, v11")
    e("s_lshl_b32 s60, s59, 2"); e("s_add_u32 s60, s60, s33"); e("s_lshl_b32 s60, s60, 3")
    e(f"s_lshl_b32 s38, s60, 12"); e(f"s_add_u32 s38, s38, {WS_KVP:#x}"); e("s_lshl_b32 s37, s52, 12"); e("s_add_u32 s37, s37, s38")
    e("s_lshl_b32 s39, s60, 7"); e(f"s_add_u32 s39, s39, {WS_FLAG1:#x}"); e("s_lshl_b32 s36, s52, 7"); e("s_add_u32 s36, s36, s39")
    for qd in range(NQ): e(f"ds_write_b128 v10, v[{KVq[qd]}:{KVq[qd]+3}] offset:{qd*1024}")
    e("s_waitcnt lgkmcnt(0)"); e("s_barrier")
    if opts.get("estamp"): e("s_memrealtime s[94:95]"); e("s_waitcnt lgkmcnt(0)")
    C0 = 224
    for hq in range(2):
        for src in range(4): e(f"ds_read_b128 v[{C0+(hq*4+src)*4}:{C0+(hq*4+src)*4+3}], v{11 if src < 2 else 15} offset:{(src%2)*20480 + hq*2048}")
    e("s_cmp_lg_u32 s33, 0"); e("s_cbranch_scc1 a_noz")
    for src in range(4): e(f"ds_read_b128 v[{holes[src]}:{holes[src]+3}], v{11 if src < 2 else 15} offset:{(src%2)*20480 + 8192}")
    e("s_waitcnt lgkmcnt(0)")
    for src in range(1, 4):
        for q in (0, 2): e(f"v_pk_add_f32 v[{holes[0]+q}:{holes[0]+q+1}], v[{holes[0]+q}:{holes[0]+q+1}], v[{holes[src]+q}:{holes[src]+q+1}]")
    e(f"buffer_store_dwordx4 v[{holes[0]}:{holes[0]+3}], v3, s[16:19], s37 offen offset:2048 sc1")
    e("a_noz:")
    e("s_waitcnt lgkmcnt(0)")
    for hq in range(2):
        a = C0 + hq*16
        for src in range(1, 4):
            for q in (0, 2): e(f"v_pk_add_f32 v[{a+q}:{a+q+1}], v[{a+q}:{a+q+1}], v[{a+4*src+q}:{a+4*src+q+1}]")
        e(f"buffer_store_dwordx4 v[{a}:{a+3}], v3, s[16:19], s37 offen offset:{hq*1024} sc1")
    e("s_lshl_b32 s32, s52, 2"); e("s_lshl_b32 s60, s54, 1"); e("s_add_u32 s32, s32, s60"); e("s_add_u32 s32, s32, s35")
    e("s_lshl_b32 s60, s32, 9"); e(f"s_add_u32 s60, s60, {WS_FLAGL - 8*128:#x}")
    e("v_lshlrev_b32 v10, 7, v2"); e("v_mov_b32 v11, s60"); e("v_mov_b32 v15, s39"); e("v_cmp_gt_u32 vcc, 8, v2"); e("s_nop 1"); e("v_cndmask_b32 v11, v11, v15, vcc"); e("v_add_u32 v10, v10, v11")
    units = [dict(x=[PK+u*8, PK+u*8+4], ep=EP+u*16, em=EP+8+u*16, st=ST+u*4, out=Bk(u)+4) for u in range(4)]
    w = Work(); softmax_units(w.e, units, 62, False)
    cut = len(w.q) * opts.get("e3cut", 30) // 100
    for l in w.q[:cut]: e(l)
    e("s_waitcnt vmcnt(0)")
    e(lane0("buffer_store_dwordx2 v[12:13], v14, s[16:19], s36 offen sc1"))
    if opts.get("estamp"): e("s_memrealtime s[96:97]"); e("s_waitcnt lgkmcnt(0)")
    for l in w.q[cut:]: e(l)
    if stamps: e("s_memrealtime s[88:89]")
    KOq = holes[0:4]; ZOq = holes[4:6]; GG = holes[6]
    poll_tok(k, 10, 16, "0", 0xfff, 8, sleep=1)
    G0 = 160
    for n in range(8):
        e(f"s_add_u32 s36, s38, {n*4096}")
        for hq in range(2):
            e(f"buffer_load_dwordx4 v[{G0+n*8+hq*4}:{G0+n*8+hq*4+3}], v3, s[16:19], s36 offen offset:{hq*1024} sc1")
    e("v_and_b32 v8, 15, v2"); e("v_lshlrev_b32 v8, 2, v8")
    e("s_lshl_b32 s36, s32, 8"); e(f"s_add_u32 s36, s36, {WS_G:#x}")
    for u in range(4): e(f"buffer_load_dword v{GG+u}, v8, s[16:19], s36 offen offset:{u*64} sc1")
    e("s_lshl_b32 s60, s55, 13"); e(f"s_add_u32 s60, s60, {128*1024}"); e("v_add_u32 v10, s60, v3"); e("s_lshl_b32 s60, s33, 10"); e("v_add_u32 v11, s60, v10")
    e("s_cmp_lg_u32 s33, 0"); e("s_cbranch_scc1 a_noz2")
    for n in range(8):
        e(f"s_add_u32 s36, s38, {n*4096 + 2048}"); e(f"buffer_load_dwordx4 v[{224+n*4}:{227+n*4}], v3, s[16:19], s36 offen sc1")
    e("s_waitcnt vmcnt(0)")
    for st_ in (16, 8, 4):
        for r in range(0, st_, 2): e(f"v_pk_add_f32 v[{224+r}:{225+r}], v[{224+r}:{225+r}], v[{224+st_+r}:{225+st_+r}]")
    e("v_and_b32 v8, 3, v2"); e("v_mov_b32 v9, 0x3f803f80")
    for fbk in range(4):
        for r in range(4): e(f"v_mov_b32_dpp v{240+fbk*4+r}, v{224+r} quad_perm:[{fbk},{fbk},{fbk},{fbk}] row_mask:0xf bank_mask:0xf")
    e("v_cmp_eq_u32 vcc, 1, v8"); e("s_nop 1"); e("v_cndmask_b32 v9, 0, v9, vcc"); e("v_cmp_eq_u32 vcc, 0, v8")
    for n in range(8): e(f"v_cvt_pk_bf16_f32 v{224+n}, v{240+2*n}, v{241+2*n}")
    for n in range(8): e(f"v_cndmask_b32 v{224+n}, v9, v{224+n}, vcc")
    e("ds_write_b128 v10, v[224:227] offset:4096"); e("ds_write_b128 v10, v[228:231] offset:5120")
    e("a_noz2:")
    e("s_waitcnt vmcnt(0)")
    for st_ in (32, 16, 8):
        for r in range(0, st_, 2): e(f"v_pk_add_f32 v[{G0+r}:{G0+r+1}], v[{G0+r}:{G0+r+1}], v[{G0+st_+r}:{G0+st_+r+1}]")
    for n in range(4): e(f"v_cvt_pk_bf16_f32 v{G0+n}, v{G0+2*n}, v{G0+2*n+1}")
    e(f"ds_write_b128 v11, v[{G0}:{G0+3}]")
    e("s_waitcnt lgkmcnt(0)"); e("s_barrier")
    if stamps: e("s_memrealtime s[90:91]")
    for n, d in enumerate(KOq + ZOq): e(f"ds_read_b128 v[{d}:{d+3}], v10 offset:{n*1024}")
    e("s_mov_b32 s38, s32")
    e("v_lshrrev_b32 v8, 5, v2"); e("v_lshlrev_b32 v9, 15, v8"); e("v_and_b32 v8, 31, v2"); e("v_lshl_add_u32 v9, v8, 4, v9")
    e("s_lshl_b32 s36, s59, 17"); e("s_lshl_b32 s37, s38, 10"); e("s_add_u32 s36, s36, s37")
    e(f"s_add_u32 s36, s36, {WS_OT:#x}"); e("s_add_u32 s37, s36, 0x10000")
    e(f"v_mov_b32 v8, {f32(1e-6)}")
    e("s_waitcnt lgkmcnt(0)")
    nq = [160 + 4*n for n in range(24)]
    for u in range(4):
        for sg in range(2):
            b = Bk(u) + 4 + sg*4
            for db in (2, 0, 1):
                d = nq[u*6 + sg*3 + db]; a = KOq[sg*2+db] if db < 2 else ZOq[sg]
                e(f"v_mfma_f32_16x16x32_bf16 v[{d}:{d+3}], v[{a}:{a+3}], v[{b}:{b+3}], 0")
    e("s_nop 1")
    for u in range(4):
        xp, xm = nq[u*6+2], nq[u*6+5]
        e(f"v_rcp_f32 v{xp+2}, v{xp+1}"); e(f"v_rcp_f32 v{xp+3}, v{xm+1}")
    for u in range(4):
        xp, xm = nq[u*6+2], nq[u*6+5]
        e(f"v_fma_f32 v{xp}, v{xp}, v{xp+2}, v8"); e(f"v_fma_f32 v{xp}, v{xm}, v{xp+3}, v{xp}")
    for u in range(4): xp = nq[u*6+2]; e(f"v_rcp_f32 v{xp}, v{xp}")
    for u in range(4): xp = nq[u*6+2]; e(f"v_mul_f32 v{xp}, v{xp}, v{GG+u}")
    for u in range(4):
        xp = nq[u*6+2]; e(f"v_pk_mul_f32 v[{xp+2}:{xp+3}], v[{xp+2}:{xp+3}], v[{xp}:{xp+1}] op_sel_hi:[1,0]")
    for u in range(4):
        xp = nq[u*6+2]
        for db in range(2):
            np_, nm = nq[u*6+db], nq[u*6+3+db]
            for q in (0, 2):
                e(f"v_pk_mul_f32 v[{np_+q}:{np_+q+1}], v[{np_+q}:{np_+q+1}], v[{xp+2}:{xp+3}] op_sel:[0,0] op_sel_hi:[1,0]")
                e(f"v_pk_fma_f32 v[{np_+q}:{np_+q+1}], v[{nm+q}:{nm+q+1}], v[{xp+2}:{xp+3}], v[{np_+q}:{np_+q+1}] op_sel:[0,1,0] op_sel_hi:[1,1,1]")
    for u in range(4):
        for db in range(2):
            np_ = nq[u*6+db]; o = 16 + ((u//2)*2+db)*4 + (u % 2)*2
            e(f"v_cvt_pk_bf16_f32 v{o}, v{np_}, v{np_+1}"); e(f"v_cvt_pk_bf16_f32 v{o+1}, v{np_+2}, v{np_+3}")
    e("s_nop 1")
    for n in range(4):
        o = 16 + n*4; e(f"v_permlane16_swap_b32 v{o}, v{o+2}"); e(f"v_permlane16_swap_b32 v{o+1}, v{o+3}")
    for n in range(4):
        o = 16 + n*4; pr, db = divmod(n, 2)
        e(f"buffer_store_dwordx4 v[{o}:{o+3}], v9, s[16:19], s{36+db} offen offset:{pr*512}{opts.get('ust', '')}")
    if stamps: stamp_store(e, (80, 84, 82, 94, 96, 88, 86, 86) if opts.get("estamp") else (80, 82, 84, 88, 90, 86, 86, 86), WS_STAMP, "a_end")
    e("s_lshl_b32 s39, s52, 4"); e("s_add_u32 s39, s39, s53"); e("s_lshl_b32 s39, s39, 7"); e(f"s_add_u32 s39, s39, {WS_FLAGO:#x}")
    e("s_waitcnt vmcnt(0)")
    e("s_branch b_entry")
    e("a_bchain:")
    e("s_lshl_b32 s52, s58, 5"); e("s_add_u32 s52, s52, s56")
    e("s_and_b32 s54, s56, 3")
    e("s_mul_i32 s55, s58, 7"); e("s_lshr_b32 s60, s56, 2"); e("s_add_u32 s55, s55, s60")
    e("s_cmp_lt_u32 s3, 4"); e("s_cbranch_scc1 a_lnc")
    e("s_cmp_ge_u32 s56, 28"); e("s_cbranch_scc1 a_sp_hi")
    st = Stream(k)
    k.srd(24, W1, S_*F_*2)
    e("s_sub_u32 s3, s3, 4")
    lane_T_dma_off(e, 16, 24, 2, 6, F_*2, 3)
    e("v_add_u32 v25, 128, v24")
    e("s_lshl_b32 s60, s3, 14"); e(f"s_lshl_b32 s28, s54, 12"); e("s_add_u32 s28, s28, s60"); e(f"s_add_u32 s28, s28, {WS_HT:#x}")
    e("s_lshl_b32 s29, s55, 8")
    e("s_lshl_b32 s30, s3, 12"); e("s_lshl_b32 s31, s3, 10"); e(f"s_add_u32 s31, s31, {c2.PB}")
    R2 = dict(vP=[3], vT=[24, 25], sP=28, sT=29, srdP=16, srdT=24, sBase=30, sLds=32, sStage=34, sCnt=35, stepP=4*D_*16, stepT=32*F_*2)
    fl = (" sc1", opts.get("nt2", ""))
    e("s_mov_b32 s32, s30"); e("s_mov_b32 s33, s31")
    for t in range(5): producer_issue(st.e, c2, R2, fl, "T", t*c2.SB)
    def g2_touches():
        e("s_mul_i32 s60, s58, 28"); e("s_add_u32 s60, s60, s56"); e("s_lshl_b32 s60, s60, 2"); e("s_add_u32 s60, s60, s3"); e("s_lshl_b32 s60, s60, 10")
        if opts.get("pf_wq", True):
            k.srd(48, WQKV, D_*3*D_*2)
            e("s_mov_b32 s61, s60")
            for n in range(14): st.e("buffer_load_dwordx4 v[240:243], v3, s[48:51], s61 offen"); e(f"s_add_u32 s61, s61, {448*1024}")
        e(f"s_add_u32 s61, s60, {160*7168}")
        for n in range(opts.get("pf_g2", 0)): st.e("buffer_load_dwordx4 v[240:243], v3, s[24:27], s61 offen"); e(f"s_add_u32 s61, s61, {448*1024}")
    if opts.get("tpos", "L1") == "pre": g2_touches()
    e("v_lshlrev_b32 v8, 7, v2"); e("v_add_u32 v9, 0x2000, v8")
    e("s_barrier")
    e(f"v_mov_b32 v4, {158*1024}"); e("ds_read_b64 v[10:11], v4"); e("s_waitcnt lgkmcnt(0)")
    e(f"v_readfirstlane_b32 s{TOK}, v10"); e(f"v_readfirstlane_b32 s{TOK+1}, v11")
    if opts.get("tpos", "L1") == "L1": g2_touches()
    e("s_barrier")
    producer_issue(st.e, c2, R2, fl, "T", 5*c2.SB)
    e(f"s_mov_b32 s36, {WS_FLAGL:#x}")
    poll_tok(k, [8, 9], 16, "s36", None, 10, sleep=2)
    st = Stream(k)
    for t in range(6):
        producer_issue(st.e, c2, R2, fl, "P", t*c2.SB); st.mark(f"b{t}")
    e("s_mov_b32 s34, 0")
    st.e("@wait b0"); e("s_barrier")
    for t in range(5):
        st.e(f"@wait b{t+1}"); e("s_barrier")
        producer_issue(st.e, c2, R2, fl); ring_advance(e, c2, R2)
    e("s_mov_b32 s35, 53")
    e("a_l2:")
    e("s_waitcnt vmcnt(24)"); e("s_barrier")
    producer_issue(e, c2, R2, fl); ring_advance(e, c2, R2)
    e("s_sub_u32 s35, s35, 1"); e("s_cmp_lg_u32 s35, 0"); e("s_cbranch_scc1 a_l2")
    for r in range(6):
        e(f"s_waitcnt vmcnt({max(4-r, 0)*6})"); e("s_barrier")
    e("s_branch b_entry")
    e("a_lnc:")
    st = Stream(k)
    e("s_lshl_b32 s37, s52, 15"); e("s_lshl_b32 s38, s3, 13"); e("s_add_u32 s37, s37, s38"); e("s_add_u32 s38, s37, 4096")
    for n in range(8): st.e(f"buffer_load_dwordx4 v[{48+4*n}:{51+4*n}], v3, s[20:23], s{37+n//4} offen offset:{(n%4)*1024}")
    k.srd(24, GW, D_*2)
    st.e("buffer_load_dwordx4 v[80:83], v3, s[24:27], 0 offen"); st.e("@vm lng buffer_load_dwordx4 v[84:87], v3, s[24:27], 0 offen offset:1024")
    k.srd(48, B1, F_*2)
    e("s_lshr_b32 s57, s3, 1"); e("s_and_b32 s58, s3, 1")
    e("v_lshrrev_b32 v7, 4, v2"); e("v_lshlrev_b32 v7, 3, v7")
    e("s_lshl_b32 s60, s55, 8"); e("s_lshl_b32 s61, s58, 6"); e("s_add_u32 s60, s60, s61")
    for j in range(4): st.e(f"buffer_load_dwordx2 v[{96+2*j}:{97+2*j}], v7, s[48:51], s60 offen offset:{(j//2)*128 + (j%2)*32}")
    get_token(k, 14, 12)
    e(f"v_mov_b32 v4, {158*1024}"); e("ds_write_b64 v4, v[12:13]")
    LS = 120*1024
    e("s_mov_b32 s36, 0xffff0000")
    e(f"s_mul_i32 s37, s3, {4*HP}"); e(f"s_add_u32 s37, s37, {LS}"); e("v_add_u32 v22, s37, v3")
    e(f"v_bfe_u32 v23, v2, 2, 2"); e(f"v_mul_u32_u24 v23, {HP}, v23"); e("v_and_b32 v120, 3, v2"); e("v_lshl_add_u32 v23, v120, 3, v23")
    e(f"v_lshrrev_b32 v120, 4, v2"); e("v_lshl_add_u32 v23, v120, 5, v23")
    e(f"s_mul_i32 s37, s57, {8*HP}"); e("s_lshl_b32 s38, s58, 10"); e("s_add_u32 s37, s37, s38"); e(f"s_add_u32 s37, s37, {LS}"); e("v_add_u32 v23, s37, v23")
    for i in range(8):
        e(f"v_lshlrev_b32 v{104+2*i}, 16, v{80+i}"); e(f"v_and_b32 v{105+2*i}, s36, v{80+i}")
    w = Work()
    gen4.ln_rows(w, 48, 0); gen4.ln_rows(w, 64, 1)
    for it in w.q: e(it.replace("s_lshl_b32 s37, s2, 5", "s_lshl_b32 s37, s52, 6"))
    e("s_waitcnt lgkmcnt(0)"); e("s_barrier")
    for j in range(8):
        e(f"ds_read_b64_tr_b16 v[{144+4*j}:{145+4*j}], v23 offset:{128*j}")
        e(f"ds_read_b64_tr_b16 v[{146+4*j}:{147+4*j}], v23 offset:{128*j+4*HP}")
    e(f"s_lshl_b32 s37, s52, 15"); e("s_lshl_b32 s38, s3, 13"); e("s_add_u32 s37, s37, s38"); e(f"s_add_u32 s37, s37, {WS_HT:#x}"); e("s_add_u32 s38, s37, 4096")
    for j in range(8):
        e(f"s_waitcnt lgkmcnt({14-2*j})"); e(f"buffer_store_dwordx4 v[{144+4*j}:{147+4*j}], v3, s[16:19], s{37+j//4} offen offset:{(j%4)*1024} sc1")
    acc2 = [[128 + (i*4+j)*4 for j in range(4)] for i in range(8)]
    e("s_nop 1")
    for j in range(4):
        for hh in range(2):
            src = 96 + j*2 + hh; d0 = acc2[0][j] + hh*2
            e(f"v_lshlrev_b32 v{d0}, 16, v{src}"); e(f"v_and_b32 v{d0+1}, s36, v{src}")
        for i in range(1, 8):
            for q in (0, 2): e(f"v_mov_b64 v[{acc2[i][j]+q}:{acc2[i][j]+q+1}], v[{acc2[0][j]+q}:{acc2[0][j]+q+1}]")
    e("v_lshrrev_b32 v8, 4, v2"); e("v_lshlrev_b32 v4, 12, v8"); e("v_and_b32 v9, 15, v2"); e("v_lshl_add_u32 v4, v9, 4, v4")
    e("s_lshl_b32 s60, s57, 11"); e("v_add_u32 v4, s60, v4")
    lane_T_read_off(e, 16, 6, 2, 8, 9)
    e("s_lshl_b32 s60, s58, 6"); e("v_xor_b32 v6, s60, v6"); e("v_xor_b32 v7, 32, v6")
    e("s_waitcnt vmcnt(0)"); e("s_barrier")
    e("s_cmp_lg_u32 s3, 0"); e("s_cbranch_scc1 a_lnf")
    e("s_lshl_b32 s37, s52, 7"); e(f"s_add_u32 s37, s37, {WS_FLAGL:#x}")
    e(lane0("buffer_store_dwordx2 v[12:13], v14, s[16:19], s37 offen sc1"))
    e("a_lnf:")
    if stamps: e("s_memrealtime s[82:83]")
    e("s_cmp_ge_u32 s56, 28"); e("s_cbranch_scc1 a_spare")
    p_off = [(0, i*256) for i in range(8)]
    t_desc = [(j % 2, c2.PB + (j//2)*4096) for j in range(4)]
    order = [(i, j, i, j) for i in range(8) for j in range(4)]
    pbufs = [16 + 4*i for i in range(16)]; tbufs = [80 + 4*j for j in range(8)]
    consumer_loop(k, c2, [(2, ["s_memrealtime s[84:85]", "s_waitcnt lgkmcnt(0)"] if stamps else []), (62, [])], 16, 8, 4, p_off, t_desc, acc2, pbufs, tbufs, [4], [6, 7],
                  False, order, 36, 37, 38, rpg=1, bar_pos=2)
    if stamps: e("s_memrealtime s[88:89]")
    e("s_waitcnt lgkmcnt(0)")
    e("v_lshrrev_b32 v8, 5, v2"); e("v_lshlrev_b32 v7, 14, v8"); e("v_and_b32 v8, 31, v2"); e("v_lshl_add_u32 v7, v8, 4, v7")
    e("s_lshl_b32 s14, s55, 18"); e("s_lshl_b32 s15, s58, 16"); e("s_add_u32 s14, s14, s15")
    e("s_lshl_b32 s15, s54, 12"); e("s_add_u32 s14, s14, s15"); e("s_lshl_b32 s15, s57, 11"); e("s_add_u32 s14, s14, s15")
    e(f"s_add_u32 s14, s14, {WS_UT:#x}")
    e(f"s_mov_b32 s42, {f32(GELU_K3)}"); e(f"s_mov_b32 s43, {f32(GELU_K3)}")
    e(f"v_mov_b32 v10, {f32(GELU_K1)}"); e(f"v_mov_b32 v11, {f32(GELU_K1)}")
    blk = 0
    for j in range(4):
        e(f"s_add_u32 s15, s14, {((j//2)*8 + (j%2)*2)*16384}")
        for i in (0, 4):
            t = 16 + (blk % 2) * 24; o = t + 16; blk += 1
            gelu_block(e, [acc2[i+b][j] + q for b in range(4) for q in (0, 2)], t, o)
            e("s_nop 1")
            for pr in range(2):
                e(f"v_permlane16_swap_b32 v{o+4*pr}, v{o+4*pr+2}"); e(f"v_permlane16_swap_b32 v{o+4*pr+1}, v{o+4*pr+3}")
            for pr in range(2):
                e(f"buffer_store_dwordx4 v[{o+4*pr}:{o+4*pr+3}], v7, s[16:19], s15 offen offset:{(i+2*pr)*256}{opts.get('ust', '')}")
    if stamps: stamp_store(e, (80, 82, 84, 88, 88, 86, 86, 86), WS_STAMP, "a_end")
    e("s_mul_i32 s39, s54, 28"); e("s_add_u32 s39, s39, s55"); e("s_lshl_b32 s39, s39, 7"); e(f"s_add_u32 s39, s39, {WS_FLAGU:#x}")
    e("s_waitcnt vmcnt(0)")
    e("s_branch b_entry")
    e("a_sp_hi:")
    e("s_barrier")
    e(f"v_mov_b32 v4, {158*1024}"); e("ds_read_b64 v[12:13], v4"); e("s_waitcnt lgkmcnt(0)")
    e(f"v_readfirstlane_b32 s{TOK}, v12"); e(f"v_readfirstlane_b32 s{TOK+1}, v13")
    e("s_barrier")
    e("a_spare:")
    if opts.get("pf_sp", True):
        k.srd(24, W1, S_*F_*2)
        r0 = opts.get("sp_row0", 192)
        e("s_lshr_b32 s60, s52, 5"); e("s_lshl_b32 s60, s60, 2"); e("s_add_u32 s60, s60, s56"); e("s_sub_u32 s60, s60, 28"); e("s_lshl_b32 s60, s60, 3"); e("s_add_u32 s60, s60, s3")
        e("s_lshl_b32 s59, s60, 10"); e(f"s_add_u32 s61, s59, {r0*7168}")
        e(f"s_mov_b32 s62, {max(1, ((2048-r0)*7 + 127)//128)}"); e("a_spl:")
        e("buffer_load_dwordx4 v[240:243], v3, s[24:27], s61 offen"); e(f"s_add_u32 s61, s61, {128*1024}"); e(f"s_waitcnt vmcnt({opts.get('sp_depth', 16)})")
        e("s_sub_u32 s62, s62, 1"); e("s_cmp_lg_u32 s62, 0"); e("s_cbranch_scc1 a_spl")
        k.srd(48, WO, D_*D_*2)
        e("s_mov_b32 s61, s59")
        for n in range(16): e("buffer_load_dwordx4 v[240:243], v3, s[48:51], s61 offen"); e(f"s_add_u32 s61, s61, {128*1024}")
        if opts.get("sp_w2", 0):
            e("s_load_dwordx2 s[12:13], s[0:1], 56"); e("s_waitcnt lgkmcnt(0)")
            k.srd(24, 12, S_*F_*2)
            e(f"s_mov_b32 s62, {opts.get('sp_w2', 0)}"); e("a_spl2:")
            e("buffer_load_dwordx4 v[240:243], v3, s[24:27], s59 offen"); e(f"s_add_u32 s59, s59, {128*1024}"); e(f"s_waitcnt vmcnt({opts.get('sp_depth', 16)})")
            e("s_sub_u32 s62, s62, 1"); e("s_cmp_lg_u32 s62, 0"); e("s_cbranch_scc1 a_spl2")
    e(f"s_mov_b32 s39, {WS_FLAGO + 0x4000:#x}")
    if stamps: stamp_store(e, (80, 82, 82, 82, 82, 86, 86, 86), WS_STAMP, "")
    gen_b2(opts, k)
    e("a_end:")
    return k

def gen_b2(opts, k):
    NS = opts.get("NSb", 5)
    c = GemmCfg(128, 2, NS, 64)
    e = k.e
    stamps = opts.get("stamps", False)
    NT = ""
    W2, B2 = 72, 74
    e("b_entry:")
    e("s_load_dwordx4 s[72:75], s[0:1], 56")
    if stamps: e("s_memrealtime s[80:81]")
    e("s_mov_b32 s92, s2")
    e("v_lshrrev_b32 v1, 6, v0"); e("v_and_b32 v2, 63, v0"); e("v_lshlrev_b32 v3, 4, v2")
    e("s_lshr_b32 s56, s2, 3")
    e("v_readfirstlane_b32 s3, v1")
    e("s_and_b32 s52, s2, 1")
    if opts.get("bmap", "8d4s") == "8d4s":
        e("s_lshr_b32 s54, s56, 2")
        e("s_bfe_u32 s55, s2, 0x20001"); e("s_lshl_b32 s55, s55, 2"); e("s_and_b32 s60, s56, 3"); e("s_add_u32 s55, s55, s60")
    else:
        e("s_bfe_u32 s54, s2, 0x10001"); e("s_lshl_b32 s54, s54, 2"); e("s_and_b32 s60, s56, 3"); e("s_add_u32 s54, s54, s60")
        e("s_bfe_u32 s55, s2, 0x10002"); e("s_lshl_b32 s55, s55, 3"); e("s_lshr_b32 s60, s56, 2"); e("s_add_u32 s55, s55, s60")
    e("s_waitcnt lgkmcnt(0)")
    e("s_cmp_lt_u32 s3, 4"); e("s_cbranch_scc1 b_cons")
    assert NS == 5
    n2 = opts.get("n2", 30); n1 = 56 - n2
    k.srd(24, W2, F_*S_*2)
    k.srd(20, WO, D_*D_*2)
    e("s_sub_u32 s3, s3, 4")
    e("s_lshl_b32 s30, s3, 11")
    e("s_lshl_b32 s31, s3, 10"); e(f"s_add_u32 s31, s31, {c.PB}")
    e("s_mov_b32 s32, s30"); e("s_mov_b32 s33, s31")
    fl = None
    fl3 = (" sc1", opts.get("nt3", "")); fl4 = (" sc1", "")
    R3 = dict(vP=[3, 9], vT=list(range(24, 28)), sP=28, sT=29, srdP=16, srdT=24, sBase=30, sLds=32, sStage=34, sCnt=35, stepP=8*D_*16, stepT=64*S_*2)
    R4 = dict(R3, vP=[3, 13], vT=list(range(32, 36)), sP=36, sT=37, srdT=20, stepP=8*S_*16, stepT=64*D_*2)
    def setup3():
        lane_T_dma_off(e, 16, 24, 2, 6, S_*2, 3)
        for n in range(1, 4):
            sg, kg = divmod(n, 2); e(f"v_add_u32 v{24+n}, {sg*128 + kg*32*S_*2}, v24")
        e("s_cmp_eq_u32 s52, 0"); e(f"s_cselect_b32 s62, {n2}, 0")
        e(f"s_mul_i32 s29, s62, {64*4096}"); e("s_lshl_b32 s60, s55, 8"); e("s_add_u32 s29, s29, s60")
        e(f"v_add_u32 v9, {4*D_*16}, v3")
        e("s_lshl_b32 s28, s62, 3"); e("s_add_u32 s28, s28, s3"); e("s_lshl_b32 s28, s28, 14"); e("s_lshl_b32 s60, s54, 11"); e("s_add_u32 s28, s28, s60")
        e(f"s_add_u32 s28, s28, {WS_UT:#x}")
    def start(R, lab_cnt):
        for t in range(NS): producer_issue(e, c, R, fl3, "P", t*c.SB)
        e("s_mov_b32 s34, 0")
        e("s_waitcnt vmcnt(16)"); e("s_barrier")
        for wn_ in (12, 16, 20):
            e(f"s_waitcnt vmcnt({wn_})"); e("s_barrier")
            producer_issue(e, c, R, fl3 if R is R3 else fl4); ring_advance(e, c, R)
    def loop(R, lab):
        e(f"{lab}:")
        e("s_waitcnt vmcnt(24)"); e("s_barrier")
        producer_issue(e, c, R, fl3 if R is R3 else fl4); ring_advance(e, c, R)
        e("s_sub_u32 s35, s35, 1"); e("s_cmp_lg_u32 s35, 0"); e(f"s_cbranch_scc1 {lab}")
    e("s_cmp_eq_u32 s52, 0"); e("s_cbranch_scc1 b_ld0")
    setup3()
    for t in range(NS): producer_issue(e, c, R3, fl3, "T", t*c.SB)
    nsw = opts.get("sw2", 0)
    if nsw:
        e("s_lshr_b32 s60, s2, 1"); e("s_lshl_b32 s60, s60, 2"); e("s_add_u32 s60, s60, s3"); e("s_lshl_b32 s60, s60, 10"); e(f"s_add_u32 s60, s60, {(28-nsw)*512*1024}")
        for n in range(nsw): e("buffer_load_dwordx4 v[240:243], v3, s[24:27], s60 offen"); e(f"s_add_u32 s60, s60, {512*1024}")
    e(f"v_min_u32 v8, {n2//2-1}, v2"); e("v_lshlrev_b32 v8, 7, v8")
    e("s_lshr_b32 s38, s54, 1"); e("s_mul_i32 s38, s38, 28"); e("s_lshl_b32 s38, s38, 7"); e(f"s_add_u32 s38, s38, {WS_FLAGU:#x}")
    e("s_barrier")
    poll_tok(k, 8, 16, "s38", 0xffffff, 10, sleep=1)
    start(R3, 0)
    e(f"s_mov_b32 s35, {n2 - 8}")
    e("s_branch b_l3")
    e("b_ld0:")
    lane_T_dma_off(e, 16, 32, 2, 6, D_*2, 3)
    for n in range(1, 4):
        sg, kg = divmod(n, 2); e(f"v_add_u32 v{32+n}, {sg*128 + kg*32*D_*2}, v32")
    e("s_lshl_b32 s37, s54, 8")
    for t in range(NS): producer_issue(e, c, R4, fl4, "T", t*c.SB)
    e(f"v_add_u32 v13, {4*S_*16}, v3")
    e("s_lshl_b32 s36, s3, 15"); e("s_lshl_b32 s60, s55, 11"); e("s_add_u32 s36, s36, s60"); e(f"s_add_u32 s36, s36, {WS_OT:#x}")
    setup3()
    e("v_lshlrev_b32 v8, 7, v2"); e("s_lshr_b32 s38, s55, 1"); e("s_lshl_b32 s38, s38, 11"); e(f"s_add_u32 s38, s38, {WS_FLAGO:#x}")
    e("s_barrier")
    poll_tok(k, 8, 16, "s38", 0xffff, 10, sleep=1)
    start(R4, 0)
    e("s_mov_b32 s35, 8")
    loop(R4, "b_l4")
    e(f"s_mov_b32 s35, {n1}")
    loop(R3, "b_l3")
    for wn_ in (24, 16, 8, 0, 0):
        e(f"s_waitcnt vmcnt({wn_})"); e("s_barrier")
    e("s_endpgm")
    e("b_cons:")
    e(f"v_mov_b32 v92, s{TOK}"); e(f"v_mov_b32 v93, s{TOK+1}"); e("v_mov_b32 v94, 0")
    e("s_barrier")
    e("s_cmp_lg_u32 s3, 0"); e("s_cbranch_scc1 b_nf")
    e(lane0("buffer_store_dwordx2 v[92:93], v94, s[16:19], s39 offen sc1"))
    e("b_nf:")
    e("s_lshr_b32 s57, s3, 1"); e("s_and_b32 s58, s3, 1")
    k.srd(24, B2, S_*2)
    k.srd(20, OUT, S_*D_*2)
    e("v_and_b32 v15, 15, v2"); e("v_lshrrev_b32 v14, 4, v2")
    e("s_lshl_b32 s60, s55, 7"); e("s_lshl_b32 s61, s58, 5"); e("s_add_u32 s60, s60, s61"); e("v_add_u32 v8, s60, v15")
    e("v_lshlrev_b32 v9, 2, v8"); e("v_lshlrev_b32 v8, 1, v8")
    e(f"s_mov_b32 s60, {WS_G:#x}")
    GO, BO = 80, 88
    for j in range(4):
        e(f"buffer_load_dword v{GO+2*j}, v9, s[16:19], s60 offen offset:{((j//2)*64 + (j%2)*16)*4} sc1")
        e(f"buffer_load_ushort v{BO+j}, v8, s[24:27], 0 offen offset:{((j//2)*64 + (j%2)*16)*2}")
    acc = [[96 + (i*4+j)*4 for j in range(4)] for i in range(4)]
    e("v_lshlrev_b32 v4, 11, v14"); e("v_lshl_add_u32 v4, v15, 4, v4")
    e("v_mov_b32 v5, v4")
    e("s_lshl_b32 s60, s57, 10"); e("v_add_u32 v4, s60, v4")
    lane_T_read_off(e, 16, 10, 2, 12, 13)
    e("s_lshl_b32 s60, s58, 6"); e("v_xor_b32 v6, s60, v10"); e("v_xor_b32 v7, 32, v6")
    e("s_waitcnt vmcnt(0)")
    e("s_cmp_eq_u32 s52, 1"); e("s_cselect_b32 s60, -65536, 0")
    for j in range(4):
        e(f"v_sub_f32 v{GO+2*j}, 1.0, v{GO+2*j}")
        e(f"v_lshlrev_b32 v{BO+j}, 16, v{BO+j}"); e(f"v_and_b32 v{BO+j}, s60, v{BO+j}")
        for i in range(4):
            for q in range(4): e(f"v_mov_b32 v{acc[i][j]+q}, v{BO+j}")
    p_off = [(0, kk*8192 + i*256) for kk in range(2) for i in range(4)]
    t_desc = [(j % 2, c.PB + (j//2)*8192 + kk*4096) for kk in range(2) for j in range(4)]
    order = [(kk*4+i, kk*4+j, i, j) for kk in range(2) for i in range(4) for j in range(4)]
    pbufs = [16 + 4*i for i in range(8)]; tbufs = [48 + 4*j for j in range(8)]
    if stamps: e("s_memrealtime s[82:83]")
    e("s_cmp_eq_u32 s52, 0"); e("s_cbranch_scc1 b_cons0")
    consumer_loop(k, c, n2, 16, 8, 8, p_off, t_desc, acc, pbufs, tbufs, [4], [6, 7], True, order, 36, 37, 38, rpg=1, bar_pos=18)
    e("s_waitcnt lgkmcnt(0)"); e("s_nop 7")
    for j in range(4):
        for i in range(4):
            for q in (0, 2):
                a = acc[i][j] + q
                e(f"v_pk_mul_f32 v[{a}:{a+1}], v[{a}:{a+1}], v[{GO+2*j}:{GO+2*j+1}] op_sel_hi:[1,0]")
    e("s_branch b_exch")
    e("b_cons0:")
    e(f"v_min_u32 v95, {n1//2-1}, v2"); e("v_lshlrev_b32 v95, 7, v95")
    e("s_lshr_b32 s46, s54, 1"); e("s_mul_i32 s46, s46, 28"); e(f"s_add_u32 s46, s46, {n2//2}"); e("s_lshl_b32 s46, s46, 7"); e(f"s_add_u32 s46, s46, {WS_FLAGU:#x}")
    e("s_lshl_b32 s60, s58, 9"); e("v_add_u32 v5, s60, v5")
    e("s_lshl_b32 s60, s57, 13"); e("v_add_u32 v10, s60, v10")
    for q in range(1, 4): e(f"v_xor_b32 v{10+q}, {32*q}, v10")
    chk = Kern("tmp", 0, 0, 0); chk.name = "bo"
    chk.e("s_waitcnt vmcnt(0)"); chk.e(f"v_cmp_ne_u64 vcc, s[{TOK}:{TOK+1}], v[224:225]"); chk.e("s_nop 4"); chk.e("s_cbranch_vccz b_ook")
    poll_tok(chk, 95, 16, "s46", None, 224, sleep=1)
    chk.e("b_ook:")
    p_off4 = [(0, kk*8192 + (j//2)*1024 + (j%2)*256) for kk in range(2) for j in range(4)]
    t_desc4 = [(i, c.PB + kk*4096) for kk in range(2) for i in range(4)]
    order4 = [(kk*4+j, kk*4+i, i, j) for kk in range(2) for j in range(4) for i in range(4)]
    consumer_loop(k, c, [(9, ["buffer_load_dwordx2 v[224:225], v95, s[16:19], s46 offen sc1"]), (2, chk.lines), (5, [])], 16, 8, 8, p_off4, t_desc4, acc, pbufs, tbufs,
                  [5], [10, 11, 12, 13], False, order4, 36, 37, 38, rpg=1, bar_pos=18)
    if stamps: e("s_memrealtime s[88:89]")
    slot = 16 % NS
    for v in (4, 6, 7): e(f"v_add_u32 v{v}, {slot*c.SB}, v{v}")
    e("s_waitcnt lgkmcnt(0)"); e("s_nop 4")
    for r in range(0, 64, 2):
        e(f"v_mov_b64 v[{160+r}:{161+r}], v[{96+r}:{97+r}]"); e(f"v_mov_b64 v[{96+r}:{97+r}], 0")
    consumer_loop(k, c, n1, 16, 8, 8, p_off, t_desc, acc, pbufs, tbufs, [4], [6, 7], True, order, 36, 37, 38, rpg=1, bar_pos=18, slot0=slot)
    e("s_waitcnt lgkmcnt(0)"); e("s_nop 7")
    for j in range(4):
        for i in range(4):
            for q in (0, 2):
                a = acc[i][j] + q
                e(f"v_pk_fma_f32 v[{a}:{a+1}], v[{a}:{a+1}], v[{GO+2*j}:{GO+2*j+1}], v[{a+64}:{a+65}] op_sel_hi:[1,0,1]")
    e("b_exch:")
    if stamps: e("s_memrealtime s[84:85]")
    e("s_lshl_b32 s60, s2, 2"); e("s_add_u32 s60, s60, s3"); e("s_lshl_b32 s60, s60, 13"); e(f"s_add_u32 s60, s60, {gen2.WS_PART:#x}")
    e("s_add_u32 s61, s60, 4096")
    e("s_xor_b32 s62, s60, 0x8000"); e("s_add_u32 s63, s62, 4096")
    e("s_lshl_b32 s40, s2, 10"); e("s_lshl_b32 s41, s3, 7"); e("s_add_u32 s40, s40, s41"); e(f"s_add_u32 s40, s40, {WS_FLAG:#x}"); e("s_xor_b32 s41, s40, 0x400")
    e("v_mov_b32 v8, 0"); e("v_mov_b32 v9, 1")
    xb = opts.get("xbf16", False)
    def exch(hk, lab):
        snd = [acc[i][2*(1-hk)+jj] for jj in range(2) for i in range(4)]
        keep = [acc[i][2*hk+jj] for jj in range(2) for i in range(4)]
        if xb:
            for n, a in enumerate(snd):
                e(f"v_cvt_pk_bf16_f32 v{64+2*n}, v{a}, v{a+1}"); e(f"v_cvt_pk_bf16_f32 v{65+2*n}, v{a+2}, v{a+3}")
                if n % 2: e(f"buffer_store_dwordx4 v[{62+2*n}:{65+2*n}], v3, s[16:19], s60 offen offset:{(n//2)*1024} sc1")
        else:
            for n, a in enumerate(snd):
                e(f"buffer_store_dwordx4 v[{a}:{a+3}], v3, s[16:19], s{60 + n//4} offen offset:{(n%4)*1024} sc1")
        e("s_waitcnt vmcnt(0)")
        e(lane0("buffer_store_dwordx2 v[92:93], v94, s[16:19], s40 offen sc1"))
        poll_tok(k, 94, 16, "s41", None, 10, sleep=1, cnt=47)
        if xb:
            for n in range(4):
                e(f"buffer_load_dwordx4 v[{16+4*n}:{19+4*n}], v3, s[16:19], s62 offen offset:{n*1024} sc1")
            e("s_mov_b32 s63, 0xffff0000")
            for n, a in enumerate(keep):
                if n % 2 == 0: e(f"s_waitcnt vmcnt({3-n//2})")
                for h in range(2):
                    src = 16 + 2*n + h
                    e(f"v_lshlrev_b32 v32, 16, v{src}"); e(f"v_and_b32 v33, s63, v{src}")
                    e(f"v_pk_add_f32 v[{a+2*h}:{a+2*h+1}], v[{a+2*h}:{a+2*h+1}], v[32:33]")
        else:
            for n in range(8):
                e(f"buffer_load_dwordx4 v[{16+4*n}:{19+4*n}], v3, s[16:19], s{62 + n//4} offen offset:{(n%4)*1024} sc1")
            for n, a in enumerate(keep):
                e(f"s_waitcnt vmcnt({7-n})")
                for q in (0, 2): e(f"v_pk_add_f32 v[{a+q}:{a+q+1}], v[{a+q}:{a+q+1}], v[{16+4*n+q}:{17+4*n+q}]")
        for i in range(4):
            for jj in range(2):
                a = acc[i][2*hk+jj]; o = 48 + i*4 + jj*2
                e(f"v_cvt_pk_bf16_f32 v{o}, v{a}, v{a+1}"); e(f"v_cvt_pk_bf16_f32 v{o+1}, v{a+2}, v{a+3}")
    e("s_cmp_eq_u32 s52, 0"); e("s_cbranch_scc0 b_ex1")
    exch(0, "b_ex0")
    e("s_branch b_fin")
    e("b_ex1:")
    exch(1, "b_ex1")
    e("b_fin:")
    e("v_and_b32 v8, 31, v2"); e("v_lshlrev_b32 v8, 11, v8"); e("v_lshrrev_b32 v9, 5, v2"); e("v_lshl_add_u32 v8, v9, 4, v8")
    e("s_lshl_b32 s60, s55, 2"); e("s_lshl_b32 s61, s52, 1"); e("s_add_u32 s60, s60, s61"); e("s_add_u32 s60, s60, s58"); e("s_lshl_b32 s60, s60, 16")
    e("s_lshl_b32 s61, s54, 8"); e("s_add_u32 s60, s60, s61"); e("s_lshl_b32 s61, s57, 7"); e("s_add_u32 s60, s60, s61")
    for i in range(4):
        o = 48 + i*4
        e(f"v_permlane16_swap_b32 v{o}, v{o+2}"); e(f"v_permlane16_swap_b32 v{o+1}, v{o+3}")
    for i in range(4):
        o = 48 + i*4
        e(f"buffer_store_dwordx4 v[{o}:{o+3}], v8, s[20:23], s60 offen offset:{i*32}{opts.get('ost', '')}")
    if stamps: stamp_store(e, (80, 82, 84, 86, 86, 86, 86, 86), WS_STAMP + 0x10000, "")

if __name__ == "__main__":
    out = sys.argv[1]
    opts = eval("dict(" + (sys.argv[2] if len(sys.argv) > 2 else "") + ")")
    write_file(out, [gen_a(dict(dict(ust=' sc1', ost=' nt', xbf16=True, pf_wq=False, pf_g2=8, sp_row0=672), **opts))], single=True)
```

```python
import re
HEADER_COMMENT = open("gated_mix__linear_kernel_hedgehog__mixer_token_mlp__prompt.s.ref").read().split("; Override launch")[0]

KA = dict(x=0, wqkv=8, wphi=16, wo=24, bx=32, w1=40, b1=48, w2=56, b2=64, gw=72, out=80, dbg=88, ws=96)

CAP_LGKM = True

class Kern:
    def __init__(self, name, grid, block, lds, vgpr=256, sgpr=102, accum=None):
        self.name = name; self.grid = grid; self.block = block; self.lds = lds
        self.vgpr = vgpr; self.sgpr = sgpr; self.accum = accum
        self.lines = []
        self._lab = 0
    def e(self, s):
        for l in s.strip("\n").split("\n"):
            m = re.search(r"offset:(\d+)", l)
            if m:
                lim = 4095 if l.strip().startswith(("buffer_", "global_")) else 65535
                assert int(m.group(1)) <= lim, l
            self.lines.append("  " + l.strip() if not l.strip().endswith(":") else l.strip())
    def lab(self, base="L"):
        self._lab += 1
        return f"{self.name}_{base}{self._lab}"
    def srd(self, d, base, nbytes, add=None):
        if add:
            self.e(f"s_add_u32 s{d}, s{base}, {add:#x}")
            self.e(f"s_addc_u32 s{d+1}, s{base+1}, 0")
        else:
            self.e(f"s_mov_b32 s{d}, s{base}")
            self.e(f"s_mov_b32 s{d+1}, s{base+1}")
        self.e(f"s_mov_b32 s{d+2}, {nbytes:#x}")
        self.e(f"s_mov_b32 s{d+3}, 0x00020000")
    def cap_lgkm(self, cap=15):
        res = []; n = 0; ins = 0
        for l in self.lines:
            t = l.strip()
            if t.endswith(":"):
                res.append(l); continue
            m = re.match(r"s_waitcnt.*lgkmcnt\((\d+)\)", t)
            if m: n = min(n, int(m.group(1)))
            inc = 1 if t.startswith("ds_") else (2 if t.startswith(("s_load", "s_memtime", "s_memrealtime")) else 0)
            if inc:
                if n + inc > cap:
                    res.append("  s_waitcnt lgkmcnt(%d)" % (cap - inc - 3)); n = cap - inc - 3; ins += 1
                n += inc
            res.append(l)
        self.lines = res
        return ins
    def text(self):
        if CAP_LGKM: print(self.name[:20], "lgkm caps inserted:", self.cap_lgkm())
        out = [f".globl {self.name}", ".p2align 8", f".type {self.name},@function", f"{self.name}:"]
        out += self.lines
        out += ["  s_endpgm"]
        return "\n".join(out)
    def desc(self):
        accum = self.accum if self.accum is not None else min(256, (self.vgpr + 3) // 4 * 4)
        return "\n".join([
            ".p2align 6",
            f".amdhsa_kernel {self.name}",
            f"  .amdhsa_next_free_vgpr {self.vgpr}",
            f"  .amdhsa_next_free_sgpr {self.sgpr}",
            f"  .amdhsa_accum_offset {accum}",
            "  .amdhsa_group_segment_fixed_size 0",
            "  .amdhsa_kernarg_size 104",
            "  .amdhsa_user_sgpr_count 2",
            "  .amdhsa_user_sgpr_kernarg_segment_ptr 1",
            "  .amdhsa_system_sgpr_workgroup_id_x 1",
            ".end_amdhsa_kernel"])

def write_file(path, kerns, order=None, single=False):
    order = order or kerns
    out = [HEADER_COMMENT.rstrip("\n")]
    for k in order:
        out.append(f"; @launch {'' if single else 'kernel=' + k.name + ' '}grid=({k.grid},1,1) block=({k.block},1,1) lds={k.lds}")
    out.append('.amdgcn_target "amdgcn-amd-amdhsa--gfx950"')
    out.append(".text")
    for k in kerns:
        out.append(k.text())
    out.append('.section .rodata,"a"')
    for k in kerns:
        out.append(k.desc())
    open(path, "w").write("\n".join(out) + "\n")
```

```python
import sys
from gen import *

WS_QOP = 0x0000000
WS_KVP = 0x1500000
NQ = 9
WS_PART = 0x2400000
WS_SIZE = 0x4000000
WS_FLAG1 = 0x14C0000
DBG, WS, X, WQKV, WPHI, WO, W1, B1, GW, OUT = 4, 6, 64, 66, 68, 70, 72, 74, 76, 78
SCR = 128*1024

def softmax_units(e, units, sL, norm):
    U = units
    xs = lambda u: [u["x"][0]+i for i in range(4)] + [u["x"][1]+i for i in range(4)]
    for u in U:
        x = xs(u); a = u["st"]; e(f"v_max3_f32 v{a}, v{x[0]}, v{x[1]}, v{x[2]}"); e(f"v_min3_f32 v{a+1}, v{x[0]}, v{x[1]}, v{x[2]}")
    for n in (3, 5):
        for u in U:
            x = xs(u); a = u["st"]; e(f"v_max3_f32 v{a}, v{a}, v{x[n]}, v{x[n+1]}"); e(f"v_min3_f32 v{a+1}, v{a+1}, v{x[n]}, v{x[n+1]}")
    for u in U:
        x = xs(u); a = u["st"]; e(f"v_max_f32 v{a}, v{a}, v{x[7]}"); e(f"v_max_f32_e64 v{a+1}, -v{a+1}, -v{x[7]}")
    def cross(op):
        pad = (lambda: e("s_nop 1")) if len(U) < 3 else (lambda: None)
        pad()
        for u in U: a = u["st"]; e(f"v_permlane32_swap_b32 v{a}, v{a+1}")
        for u in U: a = u["st"]; e(f"{op} v{a}, v{a}, v{a+1}")
        for u in U: a = u["st"]; e(f"v_mov_b32 v{a+1}, v{a}")
        pad()
        for u in U: a = u["st"]; e(f"v_permlane16_swap_b32 v{a}, v{a+1}")
        for u in U: a = u["st"]; e(f"{op} v{a}, v{a}, v{a+1}")
        for u in U: a = u["st"]; e(f"v_mov_b32 v{a+1}, v{a}")
        pad()
        for u in U: a = u["st"]; e(f"v_permlane32_swap_b32 v{a}, v{a+1}")
    cross("v_max_f32")
    for u in U:
        a = u["st"]; e(f"v_mul_f32 v{a+2}, s{sL}, v{a+1}"); e(f"v_mul_f32 v{a}, s{sL}, v{a}")
    for u in U:
        a = u["st"]
        for h in range(2):
            for q in (0, 2):
                x = u["x"][h] + q; n = h*4 + q
                e(f"v_pk_fma_f32 v[{u['ep']+n}:{u['ep']+n+1}], v[{x}:{x+1}], s[{sL}:{sL+1}], v[{a}:{a+1}] op_sel:[0,0,0] op_sel_hi:[1,1,0] neg_lo:[0,0,1] neg_hi:[0,0,1]")
                e(f"v_pk_fma_f32 v[{u['em']+n}:{u['em']+n+1}], v[{x}:{x+1}], s[{sL}:{sL+1}], v[{a+2}:{a+3}] op_sel:[0,0,0] op_sel_hi:[1,1,0] neg_lo:[1,0,1] neg_hi:[1,0,1]")
    for u in U:
        for n in range(8): e(f"v_exp_f32 v{u['ep']+n}, v{u['ep']+n}")
        for n in range(8): e(f"v_exp_f32 v{u['em']+n}, v{u['em']+n}")
    if norm:
        for u in U:
            a = u["st"]
            e(f"v_pk_add_f32 v[{a}:{a+1}], v[{u['ep']}:{u['ep']+1}], v[{u['ep']+2}:{u['ep']+3}]")
            e(f"v_pk_add_f32 v[{a+2}:{a+3}], v[{u['em']}:{u['em']+1}], v[{u['em']+2}:{u['em']+3}]")
        for n in (4, 6):
            for u in U:
                a = u["st"]
                e(f"v_pk_add_f32 v[{a}:{a+1}], v[{a}:{a+1}], v[{u['ep']+n}:{u['ep']+n+1}]")
                e(f"v_pk_add_f32 v[{a+2}:{a+3}], v[{a+2}:{a+3}], v[{u['em']+n}:{u['em']+n+1}]")
        for u in U:
            a = u["st"]; e(f"v_add_f32 v{a}, v{a}, v{a+1}"); e(f"v_add_f32 v{a+1}, v{a+2}, v{a+3}")
        cross("v_add_f32")
        for u in U:
            a = u["st"]; e(f"v_rcp_f32 v{a}, v{a}"); e(f"v_rcp_f32 v{a+2}, v{a+1}")
        if len(U) < 2: e("s_nop 0")
        for u in U:
            a = u["st"]
            for n in range(0, 8, 2):
                e(f"v_pk_mul_f32 v[{u['ep']+n}:{u['ep']+n+1}], v[{u['ep']+n}:{u['ep']+n+1}], v[{a}:{a+1}] op_sel:[0,0] op_sel_hi:[1,0]")
                e(f"v_pk_mul_f32 v[{u['em']+n}:{u['em']+n+1}], v[{u['em']+n}:{u['em']+n+1}], v[{a+2}:{a+3}] op_sel:[0,0] op_sel_hi:[1,0]")
    else:
        e("s_nop 0")
    for u in U:
        for n in range(4): e(f"v_cvt_pk_bf16_f32 v{u['out']+n}, v{u['ep']+2*n}, v{u['ep']+2*n+1}")
        for n in range(4): e(f"v_cvt_pk_bf16_f32 v{u['out']+4+n}, v{u['em']+2*n}, v{u['em']+2*n+1}")

def load_wphi(e, tmp, srd, sOff, vt):
    e(f"v_lshrrev_b32 v{vt}, 4, v2"); e(f"v_lshlrev_b32 v{vt}, 8, v{vt}")
    e(f"v_and_b32 v{vt+1}, 15, v2"); e(f"v_lshl_add_u32 v{vt}, v{vt+1}, 1, v{vt}")
    for fb in range(2):
        for j in range(8):
            d = j if j < 4 else 16 + j - 4
            e(f"buffer_load_ushort v{tmp+fb*8+j}, v{vt}, s[{srd}:{srd+3}], s{sOff} offen offset:{d*64 + fb*32}")

def pack_wphi(e, dst, tmp):
    for n in range(8): e(f"v_lshl_or_b32 v{dst+n}, v{tmp+2*n+1}, 16, v{tmp+2*n}")

def spin_until(k, vtmp, voff, srd, off, target, stmp, sleep=4):
    e = k.e
    L = k.lab("spin"); Lok = k.lab("spinok")
    e(f"s_mov_b32 s{stmp+1}, 0x100000")
    e(f"{L}:")
    e(f"v_readfirstlane_b32 s{stmp}, v{vtmp}")
    e(f"s_sub_u32 s{stmp+1}, s{stmp+1}, 1")
    e(f"s_cbranch_scc1 {Lok}")
    e(f"s_cmp_ge_u32 s{stmp}, {target}")
    e(f"s_cbranch_scc1 {Lok}")
    e(f"s_sleep {sleep}")
    e(f"buffer_load_dword v{vtmp}, v{voff}, s[{srd}:{srd+3}], {off} offen sc1")
    e("s_waitcnt vmcnt(0)")
    e(f"s_branch {L}")
    e(f"{Lok}:")

def gen_a(opts):
    c1 = GemmCfg(128, 3, 3, 64, prow=True)
    c2 = GemmCfg(128, 2, 4, 64)
    k = Kern("a_kernel", 256, 512, 160*1024, vgpr=256, sgpr=100)
    e = k.e
    stamps = opts.get("stamps", False)
    upto = opts.get("upto", 9)
    EST = opts.get("est", " sc1")
    e("s_cmp_ge_u32 s2, 256"); e("s_cbranch_scc1 a_end")
    e("s_load_dwordx8 s[64:71], s[0:1], 0")
    e("s_load_dwordx4 s[72:75], s[0:1], 40")
    e("s_load_dwordx4 s[76:79], s[0:1], 72")
    e("s_load_dwordx4 s[4:7], s[0:1], 88")
    if stamps: e("s_memrealtime s[80:81]")
    e("s_mov_b32 s92, s2")
    e("v_lshrrev_b32 v1, 6, v0"); e("v_and_b32 v2, 63, v0")
    e("s_lshr_b32 s56, s2, 3")
    e("v_readfirstlane_b32 s3, v1")
    if opts.get("map1", "8x4") == "8x4":
        e("s_and_b32 s52, s2, 1"); e("s_lshl_b32 s52, s52, 3"); e("s_and_b32 s60, s56, 7"); e("s_add_u32 s52, s52, s60")
        e("s_bfe_u32 s53, s2, 0x20001"); e("s_lshl_b32 s53, s53, 2"); e("s_lshr_b32 s60, s56, 3"); e("s_add_u32 s53, s53, s60")
    else:
        e("s_and_b32 s52, s2, 3"); e("s_lshl_b32 s52, s52, 2"); e("s_and_b32 s60, s56, 3"); e("s_add_u32 s52, s52, s60")
        e("s_bfe_u32 s53, s2, 0x10002"); e("s_lshl_b32 s53, s53, 3"); e("s_lshr_b32 s60, s56, 2"); e("s_add_u32 s53, s53, s60")
    e("s_and_b32 s54, s2, 1"); e("s_lshl_b32 s54, s54, 2"); e("s_and_b32 s60, s56, 3"); e("s_add_u32 s54, s54, s60")
    e("s_bfe_u32 s55, s2, 0x20001"); e("s_mul_i32 s55, s55, 7"); e("s_lshr_b32 s60, s56, 2"); e("s_add_u32 s55, s55, s60")
    e("s_waitcnt lgkmcnt(0)")
    k.srd(16, WS, WS_SIZE)
    k.srd(20, X, S_*D_*2)
    k.srd(40, DBG, 256)
    e("s_cmp_ge_u32 s3, 4"); e("s_cbranch_scc0 a_cons")
    k.srd(24, WQKV, D_*3*D_*2)
    e("s_sub_u32 s3, s3, 4")
    e("v_lshrrev_b32 v3, 3, v2")
    e("s_lshl_b32 s60, s3, 5"); e("v_add_u32 v4, s60, v3"); e("v_lshlrev_b32 v4, 11, v4")
    e("v_lshrrev_b32 v5, 1, v3"); e("v_xor_b32 v5, v5, v2"); e("v_and_b32 v5, 7, v5")
    e("v_lshl_add_u32 v8, v5, 4, v4")
    e("v_xor_b32 v9, 64, v8"); e(f"v_add_u32 v9, {8*2048}, v9")
    e(f"v_add_u32 v10, {16*2048}, v8"); e(f"v_add_u32 v11, {16*2048}, v9")
    lane_T_dma_off(e, 16, 12, 2, 6, 6144, 3)
    for n in range(1, 6):
        sg, kg = divmod(n, 2)
        e(f"v_add_u32 v{12+n}, {sg*2048 + kg*32*6144}, v12")
    e("s_lshl_b32 s28, s52, 18")
    e("s_lshl_b32 s29, s53, 7")
    e("s_lshl_b32 s30, s3, 12")
    e("s_lshl_b32 s31, s3, 10"); e(f"s_add_u32 s31, s31, {c1.PB}")
    e("v_mov_b32 v20, 0"); e("v_mov_b32 v21, 1")
    R1 = dict(vP=[8, 9, 10, 11], vT=list(range(12, 18)), sP=28, sT=29, srdP=20, srdT=24, sBase=30, sLds=32, sStage=34, sCnt=35, stepP=128, stepT=64*6144)
    rot = opts.get("rot1")
    if rot:
        mask, mul = rot
        e(f"s_and_b32 s8, s52, {mask}"); e(f"s_mul_i32 s8, s8, {mul}"); e("s_and_b32 s8, s8, 15")
        e("s_mov_b32 s9, s28"); e("s_mov_b32 s10, s29")
        e("s_lshl_b32 s11, s8, 7"); e("s_add_u32 s28, s28, s11"); e(f"s_mul_i32 s11, s8, {64*6144}"); e("s_add_u32 s29, s29, s11")
        R1["rot"] = (8, 16, 9, 10, 11)
    def signal(off_sgpr_or_imm, lab):
        return [f"s_cmp_lg_u32 s3, 0", f"s_cbranch_scc1 {lab}", "s_mov_b64 s[62:63], exec", "s_mov_b64 exec, 1",
                f"buffer_atomic_add v21, v20, s[40:43], {off_sgpr_or_imm} offen sc1", "s_mov_b64 exec, s[62:63]", f"{lab}:"]
    inj1 = {3: signal("0", "a_sig1"), 12: ["buffer_load_dword v22, v20, s[40:43], 0 offen sc1"]}
    producer_loop(k, c1, 16, R1, noload=opts.get("noload1"), inject=inj1, unroll_until=13, after_prologue=["s_barrier"], tail_extra=1)
    if upto >= 2:
        e("s_cmp_ge_u32 s56, 28"); e("s_cbranch_scc1 a_ostage_p")
        k.srd(24, W1, S_*F_*2)
        e("v_lshlrev_b32 v8, 4, v2"); e(f"v_add_u32 v9, {4*D_*16}, v8")
        e("s_lshl_b32 s60, s3, 14")
        e(f"s_lshl_b32 s28, s54, 11"); e("s_add_u32 s28, s28, s60"); e(f"s_add_u32 s28, s28, {WS_HT:#x}")
        lane_T_dma_off(e, 16, 12, 2, 6, F_*2, 3)
        for n in range(1, 4):
            sg, kg = divmod(n, 2)
            e(f"v_add_u32 v{12+n}, {sg*128 + kg*32*F_*2}, v12")
        e("s_lshl_b32 s29, s55, 8")
        e("s_lshl_b32 s30, s3, 11")
        e("s_lshl_b32 s31, s3, 10"); e(f"s_add_u32 s31, s31, {c2.PB}")
        e("s_lshl_b32 s59, s53, 4"); e("s_add_u32 s59, s59, s52"); e("s_lshl_b32 s59, s59, 7"); e(f"s_add_u32 s59, s59, {WS_FLAG1:#x}")
        e("s_waitcnt vmcnt(0)")
        spin_until(k, 22, 20, 40, "0", 256, 60)
        R2 = dict(vP=[8, 9], vT=[12, 13, 14, 15], sP=28, sT=29, srdP=16, srdT=24, sBase=30, sLds=32, sStage=34, sCnt=35, stepP=8*D_*16, stepT=64*F_*2)
        producer_loop(k, c2, 32, R2, inject={opts.get("sig2", 2): [l.replace("buffer_atomic_add v21, v20, s[40:43]", "buffer_store_dword v21, v20, s[16:19]") for l in signal("s59", "a_sig2")]}, unroll_until=opts.get("sig2", 2)+1, flags=(" sc1" if opts.get("hsc1", True) else "", ""))
    e("s_endpgm")
    e("a_cons:")
    e("s_lshr_b32 s57, s3, 1"); e("s_and_b32 s58, s3, 1")
    HP = 2112
    e("v_lshlrev_b32 v3, 4, v2")
    e("v_lshl_add_u32 v4, v1, 12, v3")
    e("s_lshl_b32 s33, s2, 14")
    e("buffer_load_dwordx4 v[8:11], v4, s[20:23], s33 offen")
    e("buffer_load_dwordx4 v[12:15], v4, s[20:23], s33 offen offset:1024")
    e("buffer_load_dwordx4 v[16:19], v4, s[20:23], s33 offen offset:2048")
    e("buffer_load_dwordx4 v[20:23], v4, s[20:23], s33 offen offset:3072")
    k.srd(24, GW, D_*2)
    e("buffer_load_dwordx4 v[24:27], v3, s[24:27], 0 offen")
    e("buffer_load_dwordx4 v[28:31], v3, s[24:27], 0 offen offset:1024")
    k.srd(44, WPHI, 32*2048)
    e("s_lshl_b32 s59, s53, 1"); e("s_add_u32 s59, s59, s58")
    e("s_lshl_b32 s60, s59, 11")
    load_wphi(e, 96, 44, 60, 5)
    k.srd(48, B1, F_*2)
    e("v_lshrrev_b32 v7, 4, v2"); e("v_lshlrev_b32 v7, 3, v7")
    e("s_lshl_b32 s60, s55, 8"); e("s_lshl_b32 s61, s58, 6"); e("s_add_u32 s60, s60, s61")
    for j in range(4):
        e(f"buffer_load_dwordx2 v[{152+2*j}:{153+2*j}], v7, s[48:51], s60 offen offset:{(j//2)*128 + (j%2)*32}")
    e("v_mov_b32 v5, 0")
    e(f"s_lshl_b32 s60, s2, 10"); e(f"s_add_u32 s60, s60, {WS_FLAG:#x}")
    e("s_lshl_b32 s61, s53, 4"); e("s_add_u32 s61, s61, s52"); e("s_lshl_b32 s61, s61, 7"); e(f"s_add_u32 s61, s61, {WS_FLAG1:#x}")
    e("v_mov_b32 v6, s60"); e("v_writelane_b32 v6, s61, 1")
    e("s_mov_b64 exec, 3")
    e("buffer_store_dword v5, v6, s[16:19], 0 offen sc1")
    e("s_mov_b64 exec, -1")
    acc = [[160 + (i*6+j)*4 for j in range(6)] for i in range(4)]
    for r in range(160, 256, 2): e(f"v_mov_b64 v[{r}:{r+1}], 0")
    e(f"v_mul_u32_u24 v6, {2*HP}, v1"); e("v_add_u32 v6, v6, v3"); e(f"v_add_u32 v6, {SCR}, v6")
    e("s_mov_b32 s36, 0xffff0000")
    e("s_waitcnt vmcnt(23)")
    for r in range(2):
        for i in range(8):
            src = 8 + 8*r + i
            e(f"v_lshlrev_b32 v{32+16*r+2*i}, 16, v{src}")
            e(f"v_and_b32 v{33+16*r+2*i}, s36, v{src}")
    e("s_waitcnt vmcnt(21)")
    for i in range(8):
        e(f"v_lshlrev_b32 v{64+2*i}, 16, v{24+i}")
        e(f"v_and_b32 v{65+2*i}, s36, v{24+i}")
    for r in range(2):
        b = 32 + 16*r
        e(f"v_pk_add_f32 v[{80+2*r}:{81+2*r}], v[{b}:{b+1}], v[{b+2}:{b+3}]")
        e(f"v_pk_mul_f32 v[{84+2*r}:{85+2*r}], v[{b}:{b+1}], v[64:65]")
    for i in range(4, 16, 2):
        for r in range(2):
            b = 32 + 16*r
            e(f"v_pk_add_f32 v[{80+2*r}:{81+2*r}], v[{80+2*r}:{81+2*r}], v[{b+i}:{b+i+1}]")
    for i in range(2, 16, 2):
        for r in range(2):
            b = 32 + 16*r
            e(f"v_pk_fma_f32 v[{84+2*r}:{85+2*r}], v[{b+i}:{b+i+1}], v[{64+i}:{65+i}], v[{84+2*r}:{85+2*r}]")
    for n in range(4): e(f"v_add_f32 v{80+2*n}, v{80+2*n}, v{81+2*n}")
    dpp_reduce_sum_multi(e, [80, 82, 84, 86])
    e("s_nop 1")
    for n in range(4): e(f"v_readlane_b32 s{28+n}, v{80+2*n}, 63")
    e(f"s_mov_b32 s32, {f32(-1.0/1024)}")
    e("s_nop 0")
    e("v_mov_b32 v88, s28"); e("v_mov_b32 v90, s29")
    e("v_mul_f32 v88, s32, v88"); e("v_mul_f32 v90, s32, v90")
    for i in range(0, 16, 2):
        for r in range(2):
            b = 32 + 16*r
            e(f"v_pk_add_f32 v[{b+i}:{b+i+1}], v[{b+i}:{b+i+1}], v[{88+2*r}:{89+2*r}] op_sel_hi:[1,0]")
    for r in range(2):
        b = 32 + 16*r
        e(f"v_pk_mul_f32 v[{80+2*r}:{81+2*r}], v[{b}:{b+1}], v[{b}:{b+1}]")
    for i in range(2, 16, 2):
        for r in range(2):
            b = 32 + 16*r
            e(f"v_pk_fma_f32 v[{80+2*r}:{81+2*r}], v[{b+i}:{b+i+1}], v[{b+i}:{b+i+1}], v[{80+2*r}:{81+2*r}]")
    e("v_add_f32 v80, v80, v81"); e("v_add_f32 v82, v82, v83")
    e("v_mov_b32 v86, s30"); e("v_mov_b32 v87, s31")
    e("v_cmp_eq_u32 vcc, 1, v2"); e("s_nop 1"); e("v_cndmask_b32 v86, v86, v87, vcc")
    e(f"v_mul_f32 v86, {f32(-LOG2E)}, v86")
    e("v_exp_f32 v86, v86"); e("s_nop 0"); e("v_add_f32 v86, 1.0, v86"); e("v_rcp_f32 v86, v86")
    dpp_reduce_sum_multi(e, [80, 82])
    e("s_nop 1")
    e("v_readlane_b32 s28, v80, 63"); e("v_readlane_b32 s29, v82, 63")
    e(f"s_mov_b32 s32, {f32(1.0/1024)}")
    e(f"v_mov_b32 v84, {f32(1e-5)}")
    e("v_mov_b32 v88, s28"); e("v_mov_b32 v90, s29")
    e("v_fma_f32 v88, v88, s32, v84"); e("v_fma_f32 v90, v90, s32, v84")
    e("v_rsq_f32 v88, v88"); e("v_rsq_f32 v90, v90")
    e("v_lshl_add_u32 v87, v1, 1, v2"); e("v_lshlrev_b32 v87, 2, v87")
    e(f"s_lshl_b32 s60, s2, 5"); e(f"s_add_u32 s60, s60, {WS_G:#x}")
    e("s_mov_b64 exec, 3")
    e("buffer_store_dword v86, v87, s[16:19], s60 offen sc1")
    e("s_mov_b64 exec, -1")
    for r in range(2):
        b = 32 + 16*r
        for i in range(0, 16, 2):
            e(f"v_pk_mul_f32 v[{b+i}:{b+i+1}], v[{b+i}:{b+i+1}], v[{88+2*r}:{89+2*r}] op_sel_hi:[1,0]")
        for i in range(8):
            e(f"v_cvt_pk_bf16_f32 v{8+8*r+i}, v{b+2*i}, v{b+2*i+1}")
    e("ds_write_b128 v6, v[8:11]"); e("ds_write_b128 v6, v[12:15] offset:1024")
    e(f"ds_write_b128 v6, v[16:19] offset:{HP}"); e(f"ds_write_b128 v6, v[20:23] offset:{HP+1024}")
    e("v_and_b32 v32, 15, v0"); e("v_lshrrev_b32 v33, 2, v32")
    e(f"v_mul_u32_u24 v33, {HP}, v33")
    e("v_and_b32 v34, 3, v0"); e("v_lshlrev_b32 v34, 3, v34")
    e("v_lshrrev_b32 v35, 4, v0"); e("v_lshlrev_b32 v35, 5, v35")
    e("v_add3_u32 v33, v33, v34, v35"); e(f"v_add_u32 v33, {SCR}, v33")
    e("v_lshlrev_b32 v36, 4, v0")
    e(f"s_add_u32 s33, s33, {WS_HT:#x}")
    e("v_and_b32 v37, 15, v2"); e("v_lshrrev_b32 v38, 4, v2")
    e("v_lshrrev_b32 v39, 1, v37"); e("v_xor_b32 v39, v39, v38")
    e("s_lshl_b32 s60, s57, 6"); e("v_add_u32 v4, s60, v37"); e("v_lshlrev_b32 v4, 7, v4"); e("v_lshl_add_u32 v4, v39, 4, v4")
    e("v_xor_b32 v5, 64, v4")
    e("s_waitcnt lgkmcnt(0)"); e("s_barrier")
    for j in range(4):
        e(f"ds_read_b64_tr_b16 v[{40+4*j}:{41+4*j}], v33 offset:{512*j}")
        e(f"ds_read_b64_tr_b16 v[{42+4*j}:{43+4*j}], v33 offset:{512*j+4*HP}")
    lane_T_read_off(e, 16, 6, 2, 37, 38)
    e("s_lshl_b32 s60, s58, 6"); e("v_xor_b32 v6, s60, v6"); e("v_xor_b32 v7, 32, v6")
    for j in range(4):
        e(f"s_waitcnt lgkmcnt({6-2*j})")
        e(f"buffer_store_dwordx4 v[{40+4*j}:{43+4*j}], v36, s[16:19], s33 offen sc1")
        if j < 3: e(f"s_add_u32 s33, s33, 4096")
    e("s_nop 1")
    pf1 = []; pf2 = []
    if opts.get("pf", True):
        k.srd(44, W1, S_*F_*2)
        e("s_load_dwordx2 s[12:13], s[0:1], 56")
        e("v_lshlrev_b32 v143, 7, v2")
        e("s_lshl_b32 s8, s2, 2"); e("s_add_u32 s8, s8, s3")
        e("s_mul_i32 s9, s8, 14336"); e("s_add_u32 s10, s9, 8192"); e("s_lshl_b32 s11, s8, 11")
        e("s_waitcnt lgkmcnt(0)")
        k.srd(48, 12, S_*F_*2)
        k.srd(24, WO, D_*D_*2)
        pf1 = ["buffer_load_dword v142, v143, s[44:47], s9 offen", "buffer_load_dword v142, v143, s[44:47], s10 offen"]
        pf2 = ["buffer_load_dword v142, v143, s[48:51], s9 offen", "buffer_load_dword v142, v143, s[48:51], s10 offen",
               "s_mov_b64 exec, 0xffff", "buffer_load_dword v142, v143, s[24:27], s11 offen", "s_mov_b64 exec, -1"]
    p_off = [(kk, i*2048) for kk in range(2) for i in range(4)]
    t_desc = [(j % 2, c1.PB + (j//2)*8192 + kk*4096) for kk in range(2) for j in range(6)]
    order = [(kk*4+i, kk*6+j, i, j) for kk in range(2) for i in range(4) for j in range(6)]
    pbufs = [16 + 4*i for i in range(8)]; tbufs = [48 + 4*j for j in range(12)]
    if stamps: e("s_memrealtime s[82:83]"); e("s_memtime s[94:95]")
    consumer_loop(k, c1, [(3, ["s_waitcnt vmcnt(0)"] + pf1), (13, [])], 16, 8, 12, p_off, t_desc, acc, pbufs, tbufs, [4, 5], [6, 7],
                  lambda i, j: j >= 4, order, 36, 37, 38, rpg=opts.get("rpg1", 1), bar_pos=opts.get("bar1", 26))
    if stamps: e("s_memrealtime s[84:85]"); e("s_memtime s[96:97]")
    e("s_waitcnt lgkmcnt(0)")
    e("s_nop 7")
    Q, K, V, PK, KV, EF = 16, 32, 48, 64, 96, 240
    pack_wphi(e, 144, 96)
    for sb in range(4):
        for db in range(2):
            a = acc[sb][2+db]
            e(f"v_cvt_pk_bf16_f32 v{K+sb*4+db*2}, v{a}, v{a+1}"); e(f"v_cvt_pk_bf16_f32 v{K+sb*4+db*2+1}, v{a+2}, v{a+3}")
    for sb in range(4):
        for db in range(2):
            a = acc[sb][db]
            e(f"v_cvt_pk_bf16_f32 v{Q+sb*4+db*2}, v{a}, v{a+1}"); e(f"v_cvt_pk_bf16_f32 v{Q+sb*4+db*2+1}, v{a+2}, v{a+3}")
    for sb in range(4):
        for fb in range(2):
            d = PK + (sb*2+fb)*4
            e(f"v_mfma_f32_16x16x32_bf16 v[{d}:{d+3}], v[{144+fb*4}:{147+fb*4}], v[{K+sb*4}:{K+sb*4+3}], 0")
    e("s_lshl_b32 s60, s59, 17"); e("s_lshl_b32 s61, s52, 13"); e("s_add_u32 s60, s60, s61"); e("s_lshl_b32 s61, s57, 12"); e("s_add_u32 s60, s60, s61")
    for sb in range(4):
        e(f"buffer_store_dwordx4 v[{Q+sb*4}:{Q+sb*4+3}], v3, s[16:19], s60 offen offset:{sb*1024}{EST}") if EST != "none" else None
    for p in range(2):
        for db in range(2):
            for h in range(2):
                a = acc[2*p+h][4+db]; d = V + (p*2+db)*4 + h*2
                e(f"v_cvt_pk_bf16_f32 v{d}, v{a}, v{a+1}"); e(f"v_cvt_pk_bf16_f32 v{d+1}, v{a+2}, v{a+3}")
    e(f"s_mov_b32 s62, {f32(LOG2E)}"); e(f"s_mov_b32 s63, {f32(LOG2E)}")
    e("v_and_b32 v14, 15, v2"); e("v_lshrrev_b32 v15, 4, v2")
    e(f"s_mul_i32 s60, s3, 5120"); e(f"s_add_u32 s60, s60, {SCR}")
    e("v_mul_u32_u24 v12, 160, v14"); e("v_lshl_add_u32 v12, v15, 3, v12"); e("v_add_u32 v12, s60, v12")
    e("v_lshrrev_b32 v14, 2, v14"); e("v_lshl_add_u32 v14, v15, 2, v14"); e("v_mul_u32_u24 v13, 160, v14")
    e("v_and_b32 v14, 3, v2"); e("v_lshl_add_u32 v13, v14, 3, v13"); e("v_add_u32 v13, s60, v13")
    units = [dict(x=[PK+sb*8, PK+sb*8+4], ep=160+sb*16, em=168+sb*16, st=224+sb*4, out=PK+sb*8) for sb in range(4)]
    softmax_units(e, units, 62, True)
    ZB = 160
    e("v_and_b32 v14, 3, v2"); e("v_mov_b32 v15, 0x3f803f80")
    for fbk in range(4):
        e(f"v_cmp_eq_u32 vcc, {fbk}, v14"); e("s_nop 1"); e(f"v_cndmask_b32 v{ZB+4*fbk}, 0, v15, vcc")
        for r in range(1, 4): e(f"v_mov_b32 v{ZB+4*fbk+r}, v{ZB+4*fbk}")
    for p in range(2):
        for h in range(2):
            o = units[2*p+h]["out"]
            for fbk in range(4):
                e(f"ds_write_b64 v12, v[{o+2*fbk}:{o+2*fbk+1}] offset:{h*16*160 + fbk*32}")
        e("s_waitcnt lgkmcnt(0)")
        for fbk in range(4):
            for t in range(2):
                e(f"ds_read_b64_tr_b16 v[{EF+fbk*4+2*t}:{EF+fbk*4+2*t+1}], v13 offset:{t*16*160 + fbk*32}")
        for fbk in range(4):
            e(f"s_waitcnt lgkmcnt({6-2*fbk})")
            for db in range(3):
                d = KV + (fbk*2+db)*4 if db < 2 else KV + 32
                b = V + (p*2+db)*4 if db < 2 else ZB + 4*fbk
                cc = "0" if (p == 0 and (db < 2 or fbk == 0)) else f"v[{d}:{d+3}]"
                e(f"v_mfma_f32_16x16x32_bf16 v[{d}:{d+3}], v[{EF+fbk*4}:{EF+fbk*4+3}], v[{b}:{b+3}], {cc}")
    e("s_lshl_b32 s60, s59, 5"); e("s_lshl_b32 s61, s52, 1"); e("s_add_u32 s60, s60, s61"); e("s_add_u32 s60, s60, s57")
    e(f"s_mul_i32 s60, s60, {NQ*1024}"); e(f"s_add_u32 s60, s60, {WS_KVP:#x}")
    e("s_nop 7")
    for qd in range(NQ):
        if qd and qd % 4 == 0: e("s_add_u32 s60, s60, 4096")
        e(f"buffer_store_dwordx4 v[{KV+qd*4}:{KV+qd*4+3}], v3, s[16:19], s60 offen offset:{(qd%4)*1024}{EST}") if EST != "none" else None
    if stamps: e("s_memrealtime s[88:89]"); e("s_memtime s[98:99]")
    if upto >= 2:
        e("s_cmp_ge_u32 s56, 28"); e("s_cbranch_scc1 a_ostage_c")
        acc2 = [[192 + (i*4+j)*4 for j in range(4)] for i in range(4)]
        e("s_mov_b32 s36, 0xffff0000")
        for j in range(4):
            for hh in range(2):
                src = 152 + j*2 + hh; d0 = acc2[0][j] + hh*2
                e(f"v_lshlrev_b32 v{d0}, 16, v{src}"); e(f"v_and_b32 v{d0+1}, s36, v{src}")
            for i in range(1, 4):
                for q in (0, 2): e(f"v_mov_b64 v[{acc2[i][j]+q}:{acc2[i][j]+q+1}], v[{acc2[0][j]+q}:{acc2[0][j]+q+1}]")
        e("v_lshrrev_b32 v14, 4, v2"); e("v_lshlrev_b32 v4, 11, v14"); e("v_and_b32 v15, 15, v2"); e("v_lshl_add_u32 v4, v15, 4, v4")
        e("s_lshl_b32 s60, s57, 10"); e("v_add_u32 v4, s60, v4")
        lane_T_read_off(e, 16, 6, 2, 14, 15)
        e("s_lshl_b32 s60, s58, 6"); e("v_xor_b32 v6, s60, v6"); e("v_xor_b32 v7, 32, v6")
        p_off = [(0, kk*8192 + i*256) for kk in range(2) for i in range(4)]
        t_desc = [(j % 2, c2.PB + (j//2)*8192 + kk*4096) for kk in range(2) for j in range(4)]
        order = [(kk*4+i, kk*4+j, i, j) for kk in range(2) for i in range(4) for j in range(4)]
        pbufs = [16 + 4*i for i in range(8)]; tbufs = [48 + 4*j for j in range(8)]
        dbgw = ["s_memtime s[94:95]", "s_waitcnt lgkmcnt(0)", "s_sub_u32 s96, s94, s98", "s_waitcnt vmcnt(0)", "s_memtime s[98:99]", "s_waitcnt lgkmcnt(0)", "s_add_u32 s96, s96, s94", "s_add_u32 s98, s98, s96", "s_sub_u32 s98, s98, s94"] if opts.get("dbgw") else ["s_waitcnt vmcnt(0)"]
        n1 = opts.get("sig2", 2)
        consumer_loop(k, c2, [(n1, dbgw + pf2), (32-n1, [])], 16, 8, 8, p_off, t_desc, acc2, pbufs, tbufs, [4], [6, 7],
                      False, order, 36, 37, 38, rpg=1, bar_pos=18)
        if stamps: e("s_memrealtime s[90:91]")
        e("s_waitcnt lgkmcnt(0)")
        e("s_nop 7")
        e("v_lshrrev_b32 v8, 5, v2"); e("v_lshlrev_b32 v7, 14, v8"); e("v_and_b32 v8, 31, v2"); e("v_lshl_add_u32 v7, v8, 4, v7")
        e("s_lshl_b32 s14, s55, 18"); e("s_lshl_b32 s15, s58, 16"); e("s_add_u32 s14, s14, s15")
        e("s_lshl_b32 s15, s54, 11"); e("s_add_u32 s14, s14, s15"); e("s_lshl_b32 s15, s57, 10"); e("s_add_u32 s14, s14, s15")
        e(f"s_add_u32 s14, s14, {WS_UT:#x}")
        e(f"s_mov_b32 s42, {f32(GELU_K3)}"); e(f"s_mov_b32 s43, {f32(GELU_K3)}")
        e(f"v_mov_b32 v10, {f32(GELU_K1)}"); e(f"v_mov_b32 v11, {f32(GELU_K1)}")
        for j in range(4):
            e(f"s_add_u32 s15, s14, {((j//2)*8 + (j%2)*2)*16384}")
            t = 16 + (j % 2) * 24; o = t + 16
            gelu_block(e, [acc2[b][j] + q for b in range(4) for q in (0, 2)], t, o)
            e("s_nop 1")
            for pr in range(2):
                e(f"v_permlane16_swap_b32 v{o+4*pr}, v{o+4*pr+2}")
                e(f"v_permlane16_swap_b32 v{o+4*pr+1}, v{o+4*pr+3}")
            for pr in range(2):
                e(f"buffer_store_dwordx4 v[{o+4*pr}:{o+4*pr+3}], v7, s[16:19], s15 offen offset:{2*pr*256}")
    e("a_stamp:")
    if stamps:
        e("s_waitcnt vmcnt(0)")
        e("s_memrealtime s[86:87]"); e("s_waitcnt lgkmcnt(0)")
        for n, sr in enumerate((80, 82, 84, 88, 90, 86)): e(f"v_mov_b32 v{8+n}, s{sr}")
        e("s_sub_u32 s98, s98, s96"); e("s_sub_u32 s96, s96, s94"); e("v_mov_b32 v14, s96"); e("v_mov_b32 v15, s98")
        e("s_lshl_b32 s41, s92, 5"); e(f"s_add_u32 s41, s41, {WS_STAMP:#x}"); e("v_mov_b32 v7, s41")
        e("v_cmp_eq_u32 vcc, 0, v0"); e("s_and_saveexec_b64 s[42:43], vcc"); e(f"s_cbranch_execz a_end")
        e(f"global_store_dwordx4 v7, v[8:11], s[{WS}:{WS+1}]")
        e(f"global_store_dwordx4 v7, v[12:15], s[{WS}:{WS+1}] offset:16")
    e("s_endpgm")
    if upto >= 2:
        gen_ostage(k, opts)
    e("a_end:")
    return k

def gen_ostage(k, opts):
    e = k.e
    stamps = opts.get("stamps", False)
    e("a_ostage_p:")
    e("s_add_u32 s3, s3, 4")
    e("v_lshlrev_b32 v3, 4, v2")
    e("a_ostage_c:")
    if opts.get("ocut") == 0: e("s_branch a_stamp")
    e("s_and_b32 s59, s92, 7"); e("s_lshl_b32 s59, s59, 2"); e("s_add_u32 s59, s59, s56"); e("s_sub_u32 s59, s59, 28")
    k.srd(44, WPHI, 32*2048)
    e("s_waitcnt vmcnt(0)")
    e("s_barrier")
    WP, Q, G, KO, ZO, FQ, ST, PK, EP = 8, 16, 80, 96, 112, 120, 152, 160, 192
    e("s_lshl_b32 s60, s59, 11")
    load_wphi(e, 96, 44, 60, 5)
    e("v_mov_b32 v4, 0"); e("v_mov_b32 v5, 1")
    e("s_cmp_lg_u32 s3, 0"); e("s_cbranch_scc1 a_o_wait")
    e("s_lshl_b32 s60, s53, 4"); e("s_add_u32 s60, s60, s52"); e("s_lshl_b32 s60, s60, 7"); e(f"s_add_u32 s60, s60, {WS_FLAG1:#x}")
    e("s_mov_b64 exec, 1")
    e("buffer_store_dword v5, v4, s[16:19], s60 offen sc1")
    e("s_mov_b64 exec, -1")
    e("buffer_load_dword v6, v4, s[40:43], 0 offen sc1"); e("s_waitcnt vmcnt(0)")
    spin_until(k, 6, 4, 40, "0", 256, 62)
    e("s_lshr_b32 s61, s59, 1"); e("s_lshl_b32 s61, s61, 11"); e(f"s_add_u32 s61, s61, {WS_FLAG1:#x}")
    e("v_and_b32 v7, 15, v2"); e("v_lshlrev_b32 v7, 7, v7")
    e("s_mov_b32 s63, 0x100000")
    e("a_o_poll:")
    e("buffer_load_dword v6, v7, s[16:19], s61 offen sc1"); e("s_waitcnt vmcnt(0)")
    e("v_cmp_eq_u32 vcc, 0, v6")
    e("s_sub_u32 s63, s63, 1"); e("s_cbranch_scc1 a_o_wait")
    e("s_cbranch_vccz a_o_wait")
    e(f"s_sleep {opts.get('osleep', 8)}")
    e("s_branch a_o_poll")
    e("a_o_wait:")
    e("s_waitcnt vmcnt(0)")
    pack_wphi(e, WP, 96)
    e("s_barrier")
    if stamps: e("s_memrealtime s[90:91]")
    if opts.get("ocut") == 1: e("s_branch a_stamp")
    e("s_lshl_b32 s60, s59, 5"); e("s_lshl_b32 s61, s3, 2"); e("s_add_u32 s60, s60, s61")
    e(f"s_mul_i32 s60, s60, {NQ*1024}"); e(f"s_add_u32 s60, s60, {WS_KVP:#x}")
    for n in range(4*NQ):
        if n and n % 4 == 0: e("s_add_u32 s60, s60, 4096")
        e(f"buffer_load_dwordx4 v[{112+4*n}:{115+4*n}], v3, s[16:19], s60 offen offset:{(n%4)*1024} sc1")
    e("s_lshl_b32 s60, s59, 17"); e("s_lshl_b32 s61, s3, 14"); e("s_add_u32 s60, s60, s61")
    for n in range(16):
        if n and n % 4 == 0: e("s_add_u32 s60, s60, 4096")
        e(f"buffer_load_dwordx4 v[{Q+4*n}:{Q+4*n+3}], v3, s[16:19], s60 offen offset:{(n%4)*1024} sc1")
    e("s_waitcnt vmcnt(16)")
    e("v_and_b32 v6, 15, v2"); e("v_lshlrev_b32 v6, 2, v6")
    e("s_lshl_b32 s60, s3, 10"); e(f"s_add_u32 s60, s60, {WS_G:#x}")
    for n in range(16):
        e(f"buffer_load_dword v{G+n}, v6, s[16:19], s60 offen offset:{n*64} sc1")
    nr = 4*NQ
    for r in range(0, nr, 2):
        e(f"v_pk_add_f32 v[{112+r}:{113+r}], v[{112+r}:{113+r}], v[{112+nr+r}:{113+nr+r}]")
        e(f"v_pk_add_f32 v[{112+2*nr+r}:{113+2*nr+r}], v[{112+2*nr+r}:{113+2*nr+r}], v[{112+3*nr+r}:{113+3*nr+r}]")
    for r in range(0, nr, 2):
        e(f"v_pk_add_f32 v[{112+r}:{113+r}], v[{112+r}:{113+r}], v[{112+2*nr+r}:{113+2*nr+r}]")
    e(f"s_mul_i32 s60, s3, {NQ*1024}"); e("v_add_u32 v7, s60, v3")
    for qd in range(NQ): e(f"ds_write_b128 v7, v[{112+4*qd}:{115+4*qd}] offset:{qd*1024}")
    e("s_waitcnt lgkmcnt(0)"); e("s_barrier")
    e("s_lshl_b32 s60, s3, 10"); e("v_add_u32 v7, s60, v3")
    def sum8(addr, extra):
        for w in range(8):
            off = w*NQ*1024 + extra
            if off < 65536: e(f"ds_read_b128 v[{160+4*w}:{163+4*w}], v{addr} offset:{off}")
            else: e(f"ds_read_b128 v[{160+4*w}:{163+4*w}], v{addr+1} offset:{off-32768}")
        e("s_waitcnt lgkmcnt(0)")
        for st in (16, 8, 4):
            for r in range(0, st, 2):
                e(f"v_pk_add_f32 v[{160+r}:{161+r}], v[{160+r}:{161+r}], v[{160+st+r}:{161+st+r}]")
    e("v_mov_b32 v6, v7"); e("v_add_u32 v7, 0x8000, v6")
    sum8(6, 0)
    e(f"v_add_u32 v5, {80*1024}, v6")
    e(f"ds_write_b128 v5, v[160:163]")
    e("s_cmp_lg_u32 s3, 0"); e("s_cbranch_scc1 a_o_l2")
    sum8(6, 8*1024)
    e(f"ds_write_b128 v5, v[160:163] offset:8192")
    e("a_o_l2:")
    e("s_waitcnt lgkmcnt(0)"); e("s_barrier")
    e(f"v_add_u32 v5, {80*1024}, v3")
    for qd in range(NQ): e(f"ds_read_b128 v[{FQ+4*qd}:{FQ+4*qd+3}], v5 offset:{qd*1024}")
    e("s_waitcnt lgkmcnt(0)")
    for sg in range(2):
        for db in range(2):
            d = KO + (sg*2+db)*4
            for fb in range(2):
                a = FQ + ((sg*2+fb)*2+db)*4
                e(f"v_cvt_pk_bf16_f32 v{d+2*fb}, v{a}, v{a+1}"); e(f"v_cvt_pk_bf16_f32 v{d+2*fb+1}, v{a+2}, v{a+3}")
    zq = FQ + 32
    for fbk in range(4):
        for r in range(4):
            e(f"v_mov_b32_dpp v{160+fbk*4+r}, v{zq+r} quad_perm:[{fbk},{fbk},{fbk},{fbk}] row_mask:0xf bank_mask:0xf")
    e("v_and_b32 v6, 3, v2"); e("v_mov_b32 v7, 0x3f803f80")
    e("v_cmp_eq_u32 vcc, 1, v6"); e("s_nop 1"); e("v_cndmask_b32 v7, 0, v7, vcc")
    e("v_cmp_eq_u32 vcc, 0, v6")
    for n in range(8): e(f"v_cvt_pk_bf16_f32 v{ZO+n}, v{160+2*n}, v{161+2*n}")
    for n in range(8): e(f"v_cndmask_b32 v{ZO+n}, v7, v{ZO+n}, vcc")
    e(f"s_mov_b32 s62, {f32(LOG2E)}"); e(f"s_mov_b32 s63, {f32(LOG2E)}")
    e("v_lshrrev_b32 v6, 5, v2"); e("v_lshlrev_b32 v7, 15, v6"); e("v_and_b32 v6, 31, v2"); e("v_lshl_add_u32 v7, v6, 4, v7")
    e("s_lshl_b32 s60, s59, 17"); e("s_lshl_b32 s61, s3, 12"); e("s_add_u32 s60, s60, s61"); e(f"s_add_u32 s60, s60, {WS_OT:#x}")
    e(f"s_add_u32 s61, s60, 0x10000")
    e(f"v_mov_b32 v4, {f32(1e-6)}")
    e("s_waitcnt vmcnt(0)")
    nq = [192+4*n for n in range(16)] + [120+4*n for n in range(8)]
    for rd in range(4):
        for u in range(4):
            for fb in range(2):
                d = PK + (u*2+fb)*4; q = Q + (rd*4+u)*4
                e(f"v_mfma_f32_16x16x32_bf16 v[{d}:{d+3}], v[{WP+fb*4}:{WP+fb*4+3}], v[{q}:{q+3}], 0")
        e("s_nop 4")
        units = [dict(x=[PK+u*8, PK+u*8+4], ep=EP+u*16, em=EP+8+u*16, st=ST+u*2, out=PK+u*8) for u in range(4)]
        softmax_units(e, units, 62, False)
        e("s_nop 1")
        for u in range(4):
            for sg in range(2):
                b = PK + u*8 + sg*4
                for db in range(3):
                    d = nq[u*6 + sg*3 + db]
                    a = KO + (sg*2+db)*4 if db < 2 else ZO + sg*4
                    e(f"v_mfma_f32_16x16x32_bf16 v[{d}:{d+3}], v[{a}:{a+3}], v[{b}:{b+3}], 0")
        e("s_nop 4")
        for u in range(4):
            xp, xm = nq[u*6+2], nq[u*6+5]
            e(f"v_rcp_f32 v{xp+2}, v{xp+1}"); e(f"v_rcp_f32 v{xp+3}, v{xm+1}")
        for u in range(4):
            xp, xm = nq[u*6+2], nq[u*6+5]
            e(f"v_fma_f32 v{xp}, v{xp}, v{xp+2}, v4"); e(f"v_fma_f32 v{xp}, v{xm}, v{xp+3}, v{xp}")
        for u in range(4):
            xp = nq[u*6+2]; e(f"v_rcp_f32 v{xp}, v{xp}")
        for u in range(4):
            xp = nq[u*6+2]; e(f"v_mul_f32 v{xp}, v{xp}, v{G+rd*4+u}")
        for u in range(4):
            xp = nq[u*6+2]; e(f"v_pk_mul_f32 v[{xp+2}:{xp+3}], v[{xp+2}:{xp+3}], v[{xp}:{xp+1}] op_sel_hi:[1,0]")
        for u in range(4):
            xp = nq[u*6+2]
            for db in range(2):
                np_, nm = nq[u*6+db], nq[u*6+3+db]
                for q in (0, 2):
                    e(f"v_pk_mul_f32 v[{np_+q}:{np_+q+1}], v[{np_+q}:{np_+q+1}], v[{xp+2}:{xp+3}] op_sel:[0,0] op_sel_hi:[1,0]")
                    e(f"v_pk_fma_f32 v[{np_+q}:{np_+q+1}], v[{nm+q}:{nm+q+1}], v[{xp+2}:{xp+3}], v[{np_+q}:{np_+q+1}] op_sel:[0,1,0] op_sel_hi:[1,1,1]")
        for u in range(4):
            for db in range(2):
                np_ = nq[u*6+db]; o = PK + ((u//2)*2+db)*4 + (u % 2)*2
                e(f"v_cvt_pk_bf16_f32 v{o}, v{np_}, v{np_+1}"); e(f"v_cvt_pk_bf16_f32 v{o+1}, v{np_+2}, v{np_+3}")
        e("s_nop 1")
        for n in range(4):
            o = PK + n*4
            e(f"v_permlane16_swap_b32 v{o}, v{o+2}"); e(f"v_permlane16_swap_b32 v{o+1}, v{o+3}")
        for n in range(4):
            o = PK + n*4; pr, db = divmod(n, 2)
            e(f"buffer_store_dwordx4 v[{o}:{o+3}], v7, s[16:19], s{60+db} offen offset:{rd*1024 + pr*512}")
        e("s_nop 1")
    e("s_branch a_stamp")

def gen_b(opts):
    NS = opts.get("NSb", 5)
    c = GemmCfg(128, 2, NS, 64)
    k = Kern("b_kernel", 256, 512, NS*c.SB, vgpr=160, sgpr=100)
    e = k.e
    stamps = opts.get("stamps", False)
    W2, B2 = 72, 74
    e("s_cmp_ge_u32 s2, 256"); e("s_cbranch_scc1 b_end")
    e("s_load_dwordx2 s[70:71], s[0:1], 24")
    e("s_load_dwordx4 s[72:75], s[0:1], 56")
    e("s_load_dwordx2 s[78:79], s[0:1], 80")
    e("s_load_dwordx2 s[6:7], s[0:1], 96")
    if stamps: e("s_memrealtime s[80:81]")
    e("s_mov_b32 s92, s2")
    e("v_lshrrev_b32 v1, 6, v0"); e("v_and_b32 v2, 63, v0")
    e("s_lshr_b32 s56, s2, 3")
    e("v_readfirstlane_b32 s3, v1")
    e("s_and_b32 s52, s2, 1")
    e("s_bfe_u32 s54, s2, 0x10001"); e("s_lshl_b32 s54, s54, 2"); e("s_and_b32 s60, s56, 3"); e("s_add_u32 s54, s54, s60")
    e("s_bfe_u32 s55, s2, 0x10002"); e("s_lshl_b32 s55, s55, 3"); e("s_lshr_b32 s60, s56, 2"); e("s_add_u32 s55, s55, s60")
    e("s_waitcnt lgkmcnt(0)")
    k.srd(16, WS, WS_SIZE)
    e("s_cmp_ge_u32 s3, 4"); e("s_cbranch_scc0 b_cons")
    k.srd(24, W2, F_*S_*2)
    k.srd(20, WO, D_*D_*2)
    e("s_sub_u32 s3, s3, 4")
    e("v_lshlrev_b32 v8, 4, v2"); e(f"v_add_u32 v9, {4*D_*16}, v8"); e(f"v_add_u32 v10, {4*S_*16}, v8")
    lane_T_dma_off(e, 16, 12, 2, 6, S_*2, 3)
    for n in range(1, 4):
        sg, kg = divmod(n, 2); e(f"v_add_u32 v{12+n}, {sg*128 + kg*32*S_*2}, v12")
    e("s_mul_i32 s28, s52, 288"); e("s_add_u32 s28, s28, s3"); e("s_lshl_b32 s28, s28, 14"); e("s_lshl_b32 s60, s54, 11"); e("s_add_u32 s28, s28, s60")
    e(f"s_add_u32 s28, s28, {WS_UT:#x}")
    e(f"s_mul_i32 s29, s52, {2304*4096}"); e("s_lshl_b32 s60, s55, 8"); e("s_add_u32 s29, s29, s60")
    e("s_lshl_b32 s30, s3, 11")
    e("s_lshl_b32 s31, s3, 10"); e(f"s_add_u32 s31, s31, {c.PB}")
    R3 = dict(vP=[8, 9], vT=[12, 13, 14, 15], sP=28, sT=29, srdP=16, srdT=24, sBase=30, sLds=32, sStage=34, sCnt=35, stepP=8*D_*16, stepT=64*S_*2)
    e("s_cmp_eq_u32 s52, 0"); e("s_cbranch_scc0 b_prod1")
    producer_loop(k, c, 36, R3)
    e("s_endpgm")
    e("b_prod1:")
    lane_T_dma_off(e, 16, 16, 2, 6, D_*2, 3)
    for n in range(1, 4):
        sg, kg = divmod(n, 2); e(f"v_add_u32 v{16+n}, {sg*128 + kg*32*D_*2}, v16")
    e("s_lshl_b32 s36, s3, 15"); e("s_lshl_b32 s60, s55, 11"); e("s_add_u32 s36, s36, s60"); e(f"s_add_u32 s36, s36, {WS_OT:#x}")
    e("s_lshl_b32 s37, s54, 8")
    R4 = dict(R3, vP=[8, 10], vT=[16, 17, 18, 19], sP=36, sT=37, srdT=20, stepP=8*S_*16, stepT=64*D_*2)
    producer_loop(k, c, 36, [(20, R3), (16, R4)])
    e("s_endpgm")
    e("b_cons:")
    e("s_lshr_b32 s57, s3, 1"); e("s_and_b32 s58, s3, 1")
    k.srd(24, B2, S_*2)
    k.srd(20, OUT, S_*D_*2)
    e("v_and_b32 v15, 15, v2"); e("v_lshrrev_b32 v14, 4, v2")
    e("s_lshl_b32 s60, s55, 7"); e("s_lshl_b32 s61, s58, 5"); e("s_add_u32 s60, s60, s61"); e("v_add_u32 v8, s60, v15")
    e("v_lshlrev_b32 v9, 2, v8"); e("v_lshlrev_b32 v8, 1, v8")
    e(f"s_mov_b32 s60, {WS_G:#x}")
    GO, BO = 80, 88
    for j in range(4):
        e(f"buffer_load_dword v{GO+2*j}, v9, s[16:19], s60 offen offset:{((j//2)*64 + (j%2)*16)*4}")
        e(f"buffer_load_ushort v{BO+j}, v8, s[24:27], 0 offen offset:{((j//2)*64 + (j%2)*16)*2}")
    acc = [[96 + (i*4+j)*4 for j in range(4)] for i in range(4)]
    e("v_lshlrev_b32 v4, 11, v14"); e("v_lshl_add_u32 v4, v15, 4, v4")
    e("v_mov_b32 v5, v4")
    e("s_lshl_b32 s60, s57, 10"); e("v_add_u32 v4, s60, v4")
    lane_T_read_off(e, 16, 10, 2, 12, 13)
    e("s_lshl_b32 s60, s58, 6"); e("v_xor_b32 v6, s60, v10"); e("v_xor_b32 v7, 32, v6")
    e("v_lshlrev_b32 v3, 4, v2")
    e("s_waitcnt vmcnt(0)")
    e("s_cmp_eq_u32 s52, 0"); e("s_cselect_b32 s60, -65536, 0")
    for j in range(4):
        e(f"v_sub_f32 v{GO+2*j}, 1.0, v{GO+2*j}")
        e(f"v_lshlrev_b32 v{BO+j}, 16, v{BO+j}"); e(f"v_and_b32 v{BO+j}, s60, v{BO+j}")
        for i in range(4):
            for q in range(4): e(f"v_mov_b32 v{acc[i][j]+q}, v{BO+j}")
    p_off = [(0, kk*8192 + i*256) for kk in range(2) for i in range(4)]
    t_desc = [(j % 2, c.PB + (j//2)*8192 + kk*4096) for kk in range(2) for j in range(4)]
    order = [(kk*4+i, kk*4+j, i, j) for kk in range(2) for i in range(4) for j in range(4)]
    pbufs = [16 + 4*i for i in range(8)]; tbufs = [48 + 4*j for j in range(8)]
    def scale():
        e("s_waitcnt lgkmcnt(0)"); e("s_nop 7")
        for j in range(4):
            for i in range(4):
                for q in (0, 2):
                    a = acc[i][j] + q
                    e(f"v_pk_mul_f32 v[{a}:{a+1}], v[{a}:{a+1}], v[{GO+2*j}:{GO+2*j+1}] op_sel_hi:[1,0]")
    if stamps: e("s_memrealtime s[82:83]")
    e("s_cmp_eq_u32 s52, 0"); e("s_cbranch_scc0 b_cons1")
    consumer_loop(k, c, 36, 16, 8, 8, p_off, t_desc, acc, pbufs, tbufs, [4], [6, 7], True, order, 36, 37, 38, rpg=1, bar_pos=18)
    scale()
    e("s_branch b_exch")
    e("b_cons1:")
    consumer_loop(k, c, 20, 16, 8, 8, p_off, t_desc, acc, pbufs, tbufs, [4], [6, 7], True, order, 36, 37, 38, rpg=1, bar_pos=18)
    slot = 20 % NS
    e("s_lshl_b32 s60, s58, 9"); e(f"s_add_u32 s60, s60, {slot*c.SB}"); e("v_add_u32 v4, s60, v5")
    e("s_lshl_b32 s60, s57, 13"); e(f"s_add_u32 s60, s60, {slot*c.SB}"); e("v_add_u32 v10, s60, v10")
    for q in range(1, 4): e(f"v_xor_b32 v{10+q}, {32*q}, v10")
    scale()
    p_off4 = [(0, kk*8192 + (j//2)*1024 + (j%2)*256) for kk in range(2) for j in range(4)]
    t_desc4 = [(i, c.PB + kk*4096) for kk in range(2) for i in range(4)]
    order4 = [(kk*4+j, kk*4+i, i, j) for kk in range(2) for j in range(4) for i in range(4)]
    consumer_loop(k, c, 16, 16, 8, 8, p_off4, t_desc4, acc, pbufs, tbufs, [4], [10, 11, 12, 13], False, order4, 36, 37, 38, rpg=1, bar_pos=18, slot0=slot)
    e("s_waitcnt lgkmcnt(0)"); e("s_nop 7")
    e("b_exch:")
    if stamps: e("s_memrealtime s[84:85]")
    e("s_lshl_b32 s60, s2, 2"); e("s_add_u32 s60, s60, s3"); e("s_lshl_b32 s60, s60, 13"); e(f"s_add_u32 s60, s60, {WS_PART:#x}")
    e("s_add_u32 s61, s60, 4096")
    e("s_xor_b32 s62, s60, 0x8000"); e("s_add_u32 s63, s62, 4096")
    e("s_lshl_b32 s40, s2, 10"); e(f"s_add_u32 s40, s40, {WS_FLAG:#x}"); e("s_xor_b32 s41, s40, 0x400")
    e("v_mov_b32 v8, 0"); e("v_mov_b32 v9, 1")
    def exch(hk, lab):
        snd = [acc[i][2*(1-hk)+jj] for jj in range(2) for i in range(4)]
        keep = [acc[i][2*hk+jj] for jj in range(2) for i in range(4)]
        for n, a in enumerate(snd):
            e(f"buffer_store_dwordx4 v[{a}:{a+3}], v3, s[16:19], s{60 + n//4} offen offset:{(n%4)*1024} sc1")
        e("s_waitcnt vmcnt(0)"); e("s_barrier")
        e("s_cmp_lg_u32 s3, 0"); e(f"s_cbranch_scc1 {lab}_ns")
        e("s_mov_b64 exec, 1"); e("buffer_store_dword v9, v8, s[16:19], s40 offen sc1"); e("s_mov_b64 exec, -1")
        e(f"{lab}_ns:")
        e("buffer_load_dword v10, v8, s[16:19], s41 offen sc1"); e("s_waitcnt vmcnt(0)")
        spin_until(k, 10, 8, 16, "s41", 1, 42, sleep=1)
        for n in range(8):
            e(f"buffer_load_dwordx4 v[{16+4*n}:{19+4*n}], v3, s[16:19], s{62 + n//4} offen offset:{(n%4)*1024} sc1")
        for n, a in enumerate(keep):
            e(f"s_waitcnt vmcnt({7-n})")
            for q in (0, 2): e(f"v_pk_add_f32 v[{a+q}:{a+q+1}], v[{a+q}:{a+q+1}], v[{16+4*n+q}:{17+4*n+q}]")
        for i in range(4):
            for jj in range(2):
                a = acc[i][2*hk+jj]; o = 48 + i*4 + jj*2
                e(f"v_cvt_pk_bf16_f32 v{o}, v{a}, v{a+1}"); e(f"v_cvt_pk_bf16_f32 v{o+1}, v{a+2}, v{a+3}")
    e("s_cmp_eq_u32 s52, 0"); e("s_cbranch_scc0 b_ex1")
    exch(0, "b_ex0")
    e("s_branch b_fin")
    e("b_ex1:")
    exch(1, "b_ex1")
    e("b_fin:")
    e("v_and_b32 v8, 31, v2"); e("v_lshlrev_b32 v8, 11, v8"); e("v_lshrrev_b32 v9, 5, v2"); e("v_lshl_add_u32 v8, v9, 4, v8")
    e("s_lshl_b32 s60, s55, 2"); e("s_lshl_b32 s61, s52, 1"); e("s_add_u32 s60, s60, s61"); e("s_add_u32 s60, s60, s58"); e("s_lshl_b32 s60, s60, 16")
    e("s_lshl_b32 s61, s54, 8"); e("s_add_u32 s60, s60, s61"); e("s_lshl_b32 s61, s57, 7"); e("s_add_u32 s60, s60, s61")
    for i in range(4):
        o = 48 + i*4
        e(f"v_permlane16_swap_b32 v{o}, v{o+2}"); e(f"v_permlane16_swap_b32 v{o+1}, v{o+3}")
    for i in range(4):
        o = 48 + i*4
        e(f"buffer_store_dwordx4 v[{o}:{o+3}], v8, s[20:23], s60 offen offset:{i*32}")
    if stamps:
        e("s_waitcnt vmcnt(0)")
        e("s_memrealtime s[86:87]"); e("s_waitcnt lgkmcnt(0)")
        for n, sr in enumerate((80, 82, 84, 86)): e(f"v_mov_b32 v{8+n}, s{sr}")
        e("s_lshl_b32 s41, s92, 5"); e(f"s_add_u32 s41, s41, {WS_STAMP+0x10000:#x}"); e("v_mov_b32 v7, s41")
        e("v_cmp_eq_u32 vcc, 0, v0"); e("s_and_saveexec_b64 s[42:43], vcc"); e(f"s_cbranch_execz b_end")
        e(f"global_store_dwordx4 v7, v[8:11], s[{WS}:{WS+1}]")
    e("b_end:")
    return k

if __name__ == "__main__":
    out = sys.argv[1]
    opts = eval("dict(" + (sys.argv[2] if len(sys.argv) > 2 else "") + ")")
    ks = [gen_a(opts)]
    if opts.get("upto", 9) >= 3: ks.append(gen_b(opts))
    write_file(out, ks)
```

```python
import sys
from gen import *
import gen2, gen3, gen4
from gen2 import spin_until, softmax_units, DBG, WS, X, WQKV, WPHI, WO, W1, B1, GW, OUT, WS_KVP, NQ
from gen3 import Stream, Work, WS_KVF
from gen4 import lane0, HP

WS_SIZE = 0x8000000
WS_FLAGL = 0x14E0000
WS_FLAG1 = 0x14C0000
WS_FLAG2 = 0x14D0000
WS_FLAGU = 0x14F0000
WS_FLAGO = 0x14F8000
TOK = 44

def poll_tok(k, vaddr, srd, soff, nl_mask, vd, sleep=4, cnt=63):
    e = k.e
    L = k.lab("pt"); Lok = k.lab("ptok")
    if nl_mask is not None: e(f"s_mov_b64 exec, {nl_mask:#x}")
    e(f"s_mov_b32 s{cnt}, 0x40000")
    e(f"{L}:")
    vs = vaddr if isinstance(vaddr, list) else [vaddr]
    for n, va in enumerate(vs):
        e(f"buffer_load_dwordx2 v[{vd+2*n}:{vd+1+2*n}], v{va}, s[{srd}:{srd+3}], {soff} offen sc1")
    e("s_waitcnt vmcnt(0)")
    e(f"v_cmp_ne_u64 vcc, s[{TOK}:{TOK+1}], v[{vd}:{vd+1}]")
    for n in range(1, len(vs)):
        e(f"v_cmp_ne_u64 s[60:61], s[{TOK}:{TOK+1}], v[{vd+2*n}:{vd+1+2*n}]"); e("s_or_b64 vcc, vcc, s[60:61]")
    e(f"s_sub_u32 s{cnt}, s{cnt}, 1"); e(f"s_cbranch_scc1 {Lok}")
    e(f"s_cbranch_vccz {Lok}")
    e(f"s_sleep {sleep}")
    e(f"s_branch {L}")
    e(f"{Lok}:")
    if nl_mask is not None: e("s_mov_b64 exec, -1")

def get_token(k, vz, vd):
    e = k.e
    L = k.lab("tk"); Lok = k.lab("tkok")
    e("s_mov_b32 s63, 0x8000")
    e(f"{L}:")
    e(f"buffer_load_dwordx2 v[{vd}:{vd+1}], v{vz}, s[40:43], 0 offen sc1"); e("s_waitcnt vmcnt(0)")
    e(f"v_readfirstlane_b32 s{TOK}, v{vd}"); e(f"v_readfirstlane_b32 s{TOK+1}, v{vd+1}")
    e("s_sub_u32 s63, s63, 1"); e(f"s_cbranch_scc1 {Lok}")
    e(f"s_cmp_eq_u32 s{TOK}, 0"); e(f"s_cbranch_scc1 {L}")
    e(f"{Lok}:")

_sl = [0]
DBGST = []
def stamp_store(e, regs, base, endlab, cond="v0"):
    _sl[0] += 1; endlab = f"stl{_sl[0]}"
    if DBGST:
        e("s_waitcnt vmcnt(0)")
        e("s_memrealtime s[86:87]"); e("s_waitcnt lgkmcnt(0)")
        slot = DBGST.pop(0)
        e("v_mov_b32 v7, 0")
        e(f"v_cmp_eq_u32 vcc, 0, {cond}"); e("s_and_saveexec_b64 s[60:61], vcc"); e(f"s_cbranch_execz {endlab}")
        for n, (sr, w) in enumerate(slot):
            e(f"s_sub_u32 s62, s{sr}, s{TOK}"); e(f"v_mov_b32 v{16+n}, s62"); e(f"global_atomic_smax v7, v{16+n}, s[4:5] offset:{128 + w*4}" if False else f"global_atomic_smax v7, v{16+n}, s[4:5] offset:{w*4}")
        e(f"{endlab}:"); e("s_mov_b64 exec, -1")
        return
    e("s_waitcnt vmcnt(0)")
    e("s_memrealtime s[86:87]"); e("s_waitcnt lgkmcnt(0)")
    for n, sr in enumerate(regs): e(f"v_mov_b32 v{16+n}, s{sr}")
    e("s_lshl_b32 s60, s92, 5"); e(f"s_add_u32 s60, s60, {base:#x}"); e("v_mov_b32 v7, s60")
    e(f"v_cmp_eq_u32 vcc, 0, {cond}"); e("s_and_saveexec_b64 s[60:61], vcc"); e(f"s_cbranch_execz {endlab}")
    e(f"global_store_dwordx4 v7, v[16:19], s[{WS}:{WS+1}]")
    e(f"global_store_dwordx4 v7, v[20:23], s[{WS}:{WS+1}] offset:16")
    e(f"{endlab}:"); e("s_mov_b64 exec, -1")

def gen_a(opts):
    if opts.get("dbgst"):
        DBGST.extend([[(84, 2), (90, 3), (86, 4)], [(82, 5), (84, 6), (88, 7), (86, 8)], [(84, 9), (86, 10)], [(82, 11), (84, 12), (86, 13)]])
    c2 = GemmCfg(256, 2, 6, 32)
    k = Kern("gated_mix__linear_kernel_hedgehog__mixer_token_mlp__prompt_kernel", 256, 512, 160*1024, vgpr=256, sgpr=100)
    e = k.e
    stamps = opts.get("stamps", False)
    pf = opts.get("pf", True)
    e("s_cmp_ge_u32 s2, 256"); e("s_cbranch_scc1 a_end")
    e("s_load_dwordx8 s[64:71], s[0:1], 0")
    e("s_load_dwordx4 s[72:75], s[0:1], 40")
    e("s_load_dwordx4 s[76:79], s[0:1], 72")
    e("s_load_dwordx4 s[4:7], s[0:1], 88")
    e("s_load_dwordx2 s[12:13], s[0:1], 56")
    e(f"s_memrealtime s[{TOK}:{TOK+1}]")
    e("s_mov_b32 s92, s2")
    e("v_lshrrev_b32 v1, 6, v0"); e("v_and_b32 v2, 63, v0"); e("v_lshlrev_b32 v3, 4, v2")
    e("s_lshr_b32 s56, s2, 3"); e("s_and_b32 s57, s2, 7")
    e("v_readfirstlane_b32 s3, v1")
    e("v_mov_b32 v14, 0")
    e("s_waitcnt lgkmcnt(0)")
    if stamps: e(f"s_mov_b32 s80, s{TOK}")
    k.srd(16, WS, WS_SIZE)
    k.srd(40, DBG, 256)
    k.srd(20, X, S_*D_*2)
    e("s_lshl_b32 s60, s2, 3"); e("s_add_u32 s60, s60, s3"); e("s_cmp_lg_u32 s60, 7"); e("s_cbranch_scc1 a_ntp")
    e(f"s_or_b32 s{TOK}, s{TOK}, 1"); e(f"v_mov_b32 v4, s{TOK}"); e(f"v_mov_b32 v5, s{TOK+1}")
    e(lane0("buffer_store_dwordx2 v[4:5], v14, s[40:43], 0 offen sc1"))
    e("a_ntp:")
    e("s_lshr_b32 s58, s57, 1")
    e("s_and_b32 s60, s57, 1"); e("s_cmp_eq_u32 s60, 1"); e("s_cbranch_scc1 a_bchain")
    e("s_and_b32 s52, s56, 7")
    e("s_lshl_b32 s53, s58, 2"); e("s_lshr_b32 s60, s56, 3"); e("s_add_u32 s53, s53, s60")
    e("s_cmp_lt_u32 s3, 4"); e("s_cbranch_scc1 a_g1c")
    st = Stream(k)
    k.srd(24, WQKV, D_*3*D_*2)
    e("s_sub_u32 s3, s3, 4")
    e("v_lshrrev_b32 v7, 3, v2")
    e("s_lshl_b32 s60, s3, 6"); e("v_add_u32 v4, s60, v7"); e("v_lshlrev_b32 v4, 11, v4")
    e("v_lshrrev_b32 v5, 1, v7"); e("v_xor_b32 v5, v5, v2"); e("v_and_b32 v5, 7, v5")
    e("v_lshl_add_u32 v16, v5, 4, v4")
    e("v_xor_b32 v17, 64, v16"); e(f"v_add_u32 v17, {8*2048}, v17")
    for n in range(2, 8): e(f"v_add_u32 v{16+n}, {(n//2)*16*2048}, v{16+n%2}")
    lane_T_dma_off(e, 16, 24, 2, 6, 6144, 3)
    for n in (1, 2): e(f"v_add_u32 v{24+n}, {n*2048}, v24")
    e("s_lshl_b32 s9, s52, 19"); e("s_lshl_b32 s10, s53, 7")
    e("s_lshl_b32 s30, s3, 13"); e("s_lshl_b32 s31, s3, 10"); e(f"s_add_u32 s31, s31, {96*1024}")
    def issueP(n, half):
        if half == 0:
            st.e(f"s_add_u32 s11, s52, {n}\ns_and_b32 s11, s11, 15\ns_lshl_b32 s11, s11, 7\ns_add_u32 s28, s9, s11")
        for rb in range(4*half, 4*half+4):
            st.e(f"s_add_u32 m0, s30, {(n % 3)*32768 + rb*1024}\ns_nop 0\nbuffer_load_dwordx4 v{16+rb}, s[20:23], s28 offen lds")
        st.mark(f"P{n}")
    def issueT(t):
        st.e(f"s_lshl_b32 s11, s52, 1\ns_add_u32 s11, s11, {t}\ns_and_b32 s11, s11, 31\ns_mul_i32 s11, s11, {32*6144}\ns_add_u32 s29, s10, s11")
        for sg in range(3):
            st.e(f"s_add_u32 m0, s31, {(t % 5)*12288 + sg*4096}\ns_nop 0\nbuffer_load_dwordx4 v{24+sg}, s[24:27], s29 offen{opts.get('nt1', '')} lds")
        st.mark(f"T{t}")
    issueP(0, 0); issueP(0, 1); issueT(0); st.mark("S0"); issueT(1); issueP(1, 0); issueP(1, 1); issueT(2); issueT(3); issueP(2, 0); issueP(2, 1); issueT(4)
    k.srd(48, WPHI, 32*2048)
    e("s_lshl_b32 s60, s53, 12"); e("s_lshl_b32 s61, s3, 10"); e("s_add_u32 s60, s60, s61"); e(f"s_add_u32 m0, s61, {156*1024}"); e("s_nop 0")
    st.e("buffer_load_dwordx4 v3, s[48:51], s60 offen lds")
    k.srd(32, 12, F_*S_*2)
    e("s_lshl_b32 s61, s58, 5"); e("s_add_u32 s61, s61, s56"); e("s_lshl_b32 s61, s61, 2"); e("s_add_u32 s61, s61, s3"); e("s_lshl_b32 s61, s61, 10")
    t0, npc = opts.get("g1sw", (8, 0))
    sched = {}
    for n in range(npc): sched[t0 + n*(32-t0)//npc] = sched.get(t0 + n*(32-t0)//npc, 0) + 1
    st.e("@wait S0"); e("s_barrier")
    for t in range(32):
        if t + 1 < 32:
            st.e(f"@wait T{t+1}")
            if t % 2 == 1: st.e(f"@wait P{(t+1)//2}")
        e("s_barrier")
        if t + 5 < 32: issueT(t + 5)
        m = (t - 1) // 2 + 3
        if t >= 1 and m < 16: issueP(m, (t + 1) % 2)
        for n in range(sched.get(t, 0)): st.e(f"buffer_load_dwordx4 v[240:243], v3, s[32:35], s61 offen\ns_add_u32 s61, s61, {512*1024}")
    e("s_lshr_b32 s54, s3, 1"); e("s_and_b32 s55, s3, 1"); e("s_lshl_b32 s59, s53, 1"); e("s_add_u32 s59, s59, s55")
    e("s_mul_i32 s60, s3, 12288"); e("v_add_u32 v8, s60, v3"); e(f"v_mov_b32 v9, {152*1024}")
    e("s_add_u32 s3, s3, 4"); e("s_mov_b32 s35, 1"); e("s_mov_b64 s[8:9], s[12:13]")
    e("s_waitcnt vmcnt(0)")
    e("s_barrier")
    e("ds_read_b64 v[12:13], v9")
    for n in range(4):
        for part in range(3): e(f"ds_read_b128 v[{64+24*n+4*part}:{64+24*n+4*part+3}], v8 offset:{(n*3+part)*1024}")
    e("s_waitcnt lgkmcnt(0)")
    e(f"v_readfirstlane_b32 s{TOK}, v12"); e(f"v_readfirstlane_b32 s{TOK+1}, v13")
    e("s_branch a_epi")
    e("a_g1c:")
    e("s_lshr_b32 s54, s3, 1"); e("s_and_b32 s55, s3, 1")
    e("s_lshl_b32 s59, s53, 1"); e("s_add_u32 s59, s59, s55")
    e("s_mov_b64 s[8:9], s[12:13]")
    acc = [[64 + (i*6+j)*4 for j in range(6)] for i in range(8)]
    for r in range(64, 256, 2): e(f"v_mov_b64 v[{r}:{r+1}], 0")
    e("v_and_b32 v8, 15, v2"); e("v_lshrrev_b32 v9, 4, v2")
    e("v_lshrrev_b32 v10, 1, v8"); e("v_xor_b32 v10, v10, v9")
    e("s_lshl_b32 s60, s54, 7"); e("v_add_u32 v4, s60, v8"); e("v_lshlrev_b32 v4, 7, v4"); e("v_lshl_add_u32 v4, v10, 4, v4")
    lane_T_read_off(e, 16, 6, 2, 8, 9)
    e("s_lshl_b32 s60, s55, 6"); e("v_xor_b32 v6, s60, v6"); e(f"v_add_u32 v6, {96*1024}, v6"); e("v_xor_b32 v7, 32, v6")
    get_token(k, 14, 12)
    p_off = [(0, i*2048) for i in range(8)]
    t_desc = [(j % 2, (j//2)*4096) for j in range(6)]
    order = [(2*a+b, j, 2*a+b, j) for a in range(4) for j in range(6) for b in range(2)]
    pbufs = [16 + 4*i for i in range(4)]; tbufs = [32 + 4*j for j in range(8)]
    ringT = ["s_cmp_eq_u32 s36, 4", "s_cselect_b32 s37, s39, 12288", "s_cselect_b32 s36, -1, s36", "s_add_u32 s36, s36, 1"]
    ringP = ["s_cmp_eq_u32 s32, 2", "s_cselect_b32 s33, s34, 0x8000", "s_cselect_b32 s32, -1, s32", "s_add_u32 s32, s32, 1"]
    salu = lambda s: ringT + (ringP if s % 2 else [])
    valu = lambda s: ["v_add_u32 v6, s37, v6", "v_add_u32 v7, s37, v7", "v_xor_b32 v4, 64, v4"] + (["v_add_u32 v4, s33, v4"] if s % 2 else [])
    tail = ["s_sub_u32 s38, s38, 1", "s_cmp_lg_u32 s38, 0"]
    ahead, body, U = build_consumer(None, 16, 8, 6, p_off, t_desc, acc, pbufs, tbufs, [4], [6, 7], lambda i, j: j >= 4, order,
                                    opts.get("bar1", 38), 1, salu, valu, tail, minU=2, salu_at=0)
    e(f"s_mov_b32 s39, {(-4*12288) & 0xffffffff:#x}"); e(f"s_mov_b32 s34, {(-2*32768) & 0xffffffff:#x}"); e("s_mov_b32 s36, 0"); e("s_mov_b32 s32, 0")
    if stamps: e("s_memrealtime s[82:83]")
    e("s_barrier")
    for l in ahead: e(l)
    e("s_waitcnt lgkmcnt(0)")
    e(f"s_mov_b32 s38, {32//U}"); e(".p2align 3"); e("a_g1loop:")
    for l in body: e(l)
    e("s_cbranch_scc1 a_g1loop")
    if stamps: e("s_memrealtime s[84:85]")
    e("s_waitcnt lgkmcnt(0)")
    Bk = lambda sb: 64 + 24*sb
    def cvt_units(sbs):
        for sb in sbs:
            B = Bk(sb)
            for n in range(8): e(f"v_cvt_pk_bf16_f32 v{B+n}, v{B+2*n}, v{B+2*n+1}")
        for p in sorted(set(sb//2 for sb in sbs)):
            for db in range(2):
                d = Bk(2*p+db) + 8
                for h in range(2):
                    a = Bk(2*p+h) + 16 + 4*db
                    e(f"v_cvt_pk_bf16_f32 v{d+2*h}, v{a}, v{a+1}"); e(f"v_cvt_pk_bf16_f32 v{d+2*h+1}, v{a+2}, v{a+3}")
    e("s_mul_i32 s60, s3, 12288"); e("v_add_u32 v8, s60, v3"); e(f"v_mov_b32 v9, {152*1024}")
    e("ds_write_b64 v9, v[12:13]")
    e("s_nop 4")
    cvt_units([4, 5, 6, 7])
    for n in range(4):
        for part in range(3): e(f"ds_write_b128 v8, v[{Bk(4+n)+4*part}:{Bk(4+n)+4*part+3}] offset:{(n*3+part)*1024}")
    cvt_units([0, 1, 2, 3])
    e("s_mov_b32 s35, 0")
    e("s_waitcnt lgkmcnt(0)"); e("s_barrier")
    if opts.get("estamp"): e("s_memrealtime s[82:83]")
    e("a_epi:")
    ne1 = opts.get("e1sw", 14)
    if ne1:
        k.srd(24, 8, F_*S_*2)
        e("s_lshl_b32 s60, s58, 5"); e("s_add_u32 s60, s60, s56"); e("s_lshl_b32 s60, s60, 3"); e("s_add_u32 s60, s60, s3"); e("s_lshl_b32 s60, s60, 10")
        if opts.get("e1lds"):
            e("s_lshl_b32 s61, s3, 10"); e(f"s_add_u32 m0, s61, {144*1024}"); e("s_nop 0")
            for n in range(ne1): e(f"buffer_load_dwordx4 v3, s[24:27], s60 offen lds"); e(f"s_add_u32 s60, s60, 0x100000")
        elif opts.get("e1skew"):
            e("s_cmp_lt_u32 s3, 4"); e("s_cbranch_scc1 a_sk"); e("s_sleep 64"); e("a_sk:")
        else:
            for n in range(ne1): e(f"buffer_load_dwordx4 v[4:7], v3, s[24:27], s60 offen"); e(f"s_add_u32 s60, s60, 0x100000")
    holes = [Bk(sb) + 12 + 4*n for sb in range(4) for n in range(3)]
    KVq = holes[0:9]; WPq = holes[9:11]
    PK, ST, EP, EF, ZB = 16, 48, 160, 224, 240
    e("v_lshrrev_b32 v8, 2, v2"); e("v_lshlrev_b32 v8, 6, v8"); e("v_and_b32 v9, 3, v2"); e("v_lshl_add_u32 v8, v9, 3, v8")
    e("s_lshl_b32 s60, s55, 11"); e(f"s_add_u32 s60, s60, {156*1024}"); e("v_add_u32 v8, s60, v8")
    for fb in range(2):
        for t in range(2): e(f"ds_read_b64_tr_b16 v[{WPq[fb]+2*t}:{WPq[fb]+2*t+1}], v8 offset:{t*1024 + fb*32}")
    e(f"s_mov_b32 s62, {f32(LOG2E)}"); e(f"s_mov_b32 s63, {f32(LOG2E)}")
    e("v_and_b32 v8, 15, v2"); e("v_lshrrev_b32 v9, 4, v2"); e("s_mul_i32 s34, s3, 10240"); e(f"s_add_u32 s34, s34, {48*1024}")
    e("v_mul_u32_u24 v10, 160, v8"); e("v_lshl_add_u32 v10, v9, 3, v10"); e("v_add_u32 v10, s34, v10")
    e("v_lshrrev_b32 v8, 2, v8"); e("v_lshl_add_u32 v8, v9, 2, v8"); e("v_mul_u32_u24 v11, 160, v8")
    def pmfma(off):
        for u in range(4):
            for fb in range(2):
                d = PK + (u*2+fb)*4; s = Bk(u) + off
                e(f"v_mfma_f32_16x16x32_bf16 v[{d}:{d+3}], v[{WPq[fb]}:{WPq[fb]+3}], v[{s}:{s+3}], 0")
    e("s_waitcnt lgkmcnt(0)")
    pmfma(4)
    e("v_and_b32 v8, 3, v2"); e("v_lshl_add_u32 v11, v8, 3, v11"); e("v_add_u32 v11, s34, v11"); e("v_mov_b32 v9, 0x3f803f80")
    for fbk in range(4):
        e(f"v_cmp_eq_u32 vcc, {fbk}, v8"); e("s_nop 1"); e(f"v_cndmask_b32 v{ZB+4*fbk}, 0, v9, vcc")
        for r in range(1, 4): e(f"v_mov_b32 v{ZB+4*fbk+r}, v{ZB+4*fbk}")
    units = [dict(x=[PK+u*8, PK+u*8+4], ep=EP+u*16, em=EP+8+u*16, st=ST+u*4, out=EP+u*16) for u in range(4)]
    softmax_units(e, units, 62, True)
    for u in range(4):
        o = units[u]["out"]
        for fbk in range(4): e(f"ds_write_b64 v10, v[{o+2*fbk}:{o+2*fbk+1}] offset:{u*16*160 + fbk*32}")
    pmfma(0)
    e("s_waitcnt lgkmcnt(0)")
    EFs = [EF, EP + 8]
    efq = [[EF + 4*n for n in range(4)], [EP+8, EP+12, EP+24, EP+28]]
    for p in range(2):
        for fbk in range(4):
            for t in range(2): e(f"ds_read_b64_tr_b16 v[{efq[p][fbk]+2*t}:{efq[p][fbk]+2*t+1}], v11 offset:{(2*p+t)*16*160 + fbk*32}")
    for p in range(2):
        for fbk in range(4):
            e(f"s_waitcnt lgkmcnt({14-8*p-2*fbk})")
            for db in range(3):
                d = KVq[fbk*2+db] if db < 2 else KVq[8]
                b = Bk(2*p+db) + 8 if db < 2 else ZB + 4*fbk
                cc = "0" if (p == 0 and (db < 2 or fbk == 0)) else f"v[{d}:{d+3}]"
                e(f"v_mfma_f32_16x16x32_bf16 v[{d}:{d+3}], v[{efq[p][fbk]}:{efq[p][fbk]+3}], v[{b}:{b+3}], {cc}")
    e("v_add_u32 v10, s34, v3")
    e("s_lshr_b32 s33, s3, 1"); e("s_lshr_b32 s61, s33, 1"); e("s_lshl_b32 s61, s61, 2"); e("s_and_b32 s60, s33, 1"); e("s_add_u32 s61, s61, s60"); e("s_lshl_b32 s61, s61, 10")
    e("s_mul_i32 s60, s55, 10240"); e("s_add_u32 s60, s60, s61"); e(f"s_add_u32 s60, s60, {48*1024}"); e("v_add_u32 v11, s60, v3"); e("v_add_u32 v15, 0xa000, v11")
    e("s_lshl_b32 s60, s59, 2"); e("s_add_u32 s60, s60, s33"); e("s_lshl_b32 s60, s60, 3")
    e(f"s_lshl_b32 s38, s60, 12"); e(f"s_add_u32 s38, s38, {WS_KVP:#x}"); e("s_lshl_b32 s37, s52, 12"); e("s_add_u32 s37, s37, s38")
    e("s_lshl_b32 s39, s60, 7"); e(f"s_add_u32 s39, s39, {WS_FLAG1:#x}"); e("s_lshl_b32 s36, s52, 7"); e("s_add_u32 s36, s36, s39")
    for qd in range(NQ): e(f"ds_write_b128 v10, v[{KVq[qd]}:{KVq[qd]+3}] offset:{qd*1024}")
    e("s_waitcnt lgkmcnt(0)"); e("s_barrier")
    if opts.get("estamp"): e("s_memrealtime s[94:95]"); e("s_waitcnt lgkmcnt(0)")
    if opts.get("dump"):
        e("s_lshl_b32 s60, s2, 3"); e("s_add_u32 s60, s60, s3"); e("s_lshl_b32 s60, s60, 15"); e("s_add_u32 s60, s60, 0x3000000")
        quads = [EP+u*16+h*4 for u in range(4) for h in range(2)] + efq[0] + efq[1] + KVq + [ST+4*u for u in range(4)] + [Bk(u)+4 for u in range(3)]
        for n, q in enumerate(quads):
            e(f"buffer_store_dwordx4 v[{q}:{q+3}], v3, s[16:19], s60 offen"); e("s_add_u32 s60, s60, 1024")
        e("s_nop 1")
    C0 = 224
    for hq in range(2):
        for src in range(4): e(f"ds_read_b128 v[{C0+(hq*4+src)*4}:{C0+(hq*4+src)*4+3}], v{11 if src < 2 else 15} offset:{(src%2)*20480 + hq*2048}")
    e("s_cmp_lg_u32 s33, 0"); e("s_cbranch_scc1 a_noz")
    for src in range(4): e(f"ds_read_b128 v[{holes[src]}:{holes[src]+3}], v{11 if src < 2 else 15} offset:{(src%2)*20480 + 8192}")
    e("s_waitcnt lgkmcnt(0)")
    for src in range(1, 4):
        for q in (0, 2): e(f"v_pk_add_f32 v[{holes[0]+q}:{holes[0]+q+1}], v[{holes[0]+q}:{holes[0]+q+1}], v[{holes[src]+q}:{holes[src]+q+1}]")
    e(f"buffer_store_dwordx4 v[{holes[0]}:{holes[0]+3}], v3, s[16:19], s37 offen offset:2048 sc1")
    e("a_noz:")
    e("s_waitcnt lgkmcnt(0)")
    for hq in range(2):
        a = C0 + hq*16
        for src in range(1, 4):
            for q in (0, 2): e(f"v_pk_add_f32 v[{a+q}:{a+q+1}], v[{a+q}:{a+q+1}], v[{a+4*src+q}:{a+4*src+q+1}]")
        e(f"buffer_store_dwordx4 v[{a}:{a+3}], v3, s[16:19], s37 offen offset:{hq*1024} sc1")
    e("s_lshl_b32 s32, s52, 2"); e("s_lshl_b32 s60, s54, 1"); e("s_add_u32 s32, s32, s60"); e("s_add_u32 s32, s32, s35")
    e("s_lshl_b32 s60, s32, 9"); e(f"s_add_u32 s60, s60, {WS_FLAGL - 8*128:#x}")
    e("v_lshlrev_b32 v10, 7, v2"); e("v_mov_b32 v11, s60"); e("v_mov_b32 v15, s39"); e("v_cmp_gt_u32 vcc, 8, v2"); e("s_nop 1"); e("v_cndmask_b32 v11, v11, v15, vcc"); e("v_add_u32 v10, v10, v11")
    units = [dict(x=[PK+u*8, PK+u*8+4], ep=EP+u*16, em=EP+8+u*16, st=ST+u*4, out=Bk(u)+4) for u in range(4)]
    w = Work(); softmax_units(w.e, units, 62, False)
    cut = len(w.q) * opts.get("e3cut", 30) // 100
    for l in w.q[:cut]: e(l)
    e("s_waitcnt vmcnt(0)")
    e(lane0("buffer_store_dwordx2 v[12:13], v14, s[16:19], s36 offen sc1"))
    if opts.get("estamp"): e("s_memrealtime s[96:97]"); e("s_waitcnt lgkmcnt(0)")
    for l in w.q[cut:]: e(l)
    if stamps: e("s_memrealtime s[88:89]")
    KOq = holes[0:4]; ZOq = holes[4:6]; GG = holes[6]
    poll_tok(k, 10, 16, "0", 0xfff, 8, sleep=1)
    G0 = 160
    for n in range(8):
        e(f"s_add_u32 s36, s38, {n*4096}")
        for hq in range(2):
            e(f"buffer_load_dwordx4 v[{G0+n*8+hq*4}:{G0+n*8+hq*4+3}], v3, s[16:19], s36 offen offset:{hq*1024} sc1")
    e("v_and_b32 v8, 15, v2"); e("v_lshlrev_b32 v8, 2, v8")
    e("s_lshl_b32 s36, s32, 8"); e(f"s_add_u32 s36, s36, {WS_G:#x}")
    for u in range(4): e(f"buffer_load_dword v{GG+u}, v8, s[16:19], s36 offen offset:{u*64} sc1")
    e("s_lshl_b32 s60, s55, 13"); e(f"s_add_u32 s60, s60, {128*1024}"); e("v_add_u32 v10, s60, v3"); e("s_lshl_b32 s60, s33, 10"); e("v_add_u32 v11, s60, v10")
    e("s_cmp_lg_u32 s33, 0"); e("s_cbranch_scc1 a_noz2")
    for n in range(8):
        e(f"s_add_u32 s36, s38, {n*4096 + 2048}"); e(f"buffer_load_dwordx4 v[{224+n*4}:{227+n*4}], v3, s[16:19], s36 offen sc1")
    e("s_waitcnt vmcnt(0)")
    for st_ in (16, 8, 4):
        for r in range(0, st_, 2): e(f"v_pk_add_f32 v[{224+r}:{225+r}], v[{224+r}:{225+r}], v[{224+st_+r}:{225+st_+r}]")
    e("v_and_b32 v8, 3, v2"); e("v_mov_b32 v9, 0x3f803f80")
    for fbk in range(4):
        for r in range(4): e(f"v_mov_b32_dpp v{240+fbk*4+r}, v{224+r} quad_perm:[{fbk},{fbk},{fbk},{fbk}] row_mask:0xf bank_mask:0xf")
    e("v_cmp_eq_u32 vcc, 1, v8"); e("s_nop 1"); e("v_cndmask_b32 v9, 0, v9, vcc"); e("v_cmp_eq_u32 vcc, 0, v8")
    for n in range(8): e(f"v_cvt_pk_bf16_f32 v{224+n}, v{240+2*n}, v{241+2*n}")
    for n in range(8): e(f"v_cndmask_b32 v{224+n}, v9, v{224+n}, vcc")
    e("ds_write_b128 v10, v[224:227] offset:4096"); e("ds_write_b128 v10, v[228:231] offset:5120")
    e("a_noz2:")
    e("s_waitcnt vmcnt(0)")
    for st_ in (32, 16, 8):
        for r in range(0, st_, 2): e(f"v_pk_add_f32 v[{G0+r}:{G0+r+1}], v[{G0+r}:{G0+r+1}], v[{G0+st_+r}:{G0+st_+r+1}]")
    for n in range(4): e(f"v_cvt_pk_bf16_f32 v{G0+n}, v{G0+2*n}, v{G0+2*n+1}")
    e(f"ds_write_b128 v11, v[{G0}:{G0+3}]")
    e("s_waitcnt lgkmcnt(0)"); e("s_barrier")
    if stamps: e("s_memrealtime s[90:91]")
    for n, d in enumerate(KOq + ZOq): e(f"ds_read_b128 v[{d}:{d+3}], v10 offset:{n*1024}")
    e("s_mov_b32 s38, s32")
    e("v_lshrrev_b32 v8, 5, v2"); e("v_lshlrev_b32 v9, 15, v8"); e("v_and_b32 v8, 31, v2"); e("v_lshl_add_u32 v9, v8, 4, v9")
    e("s_lshl_b32 s36, s59, 17"); e("s_lshl_b32 s37, s38, 10"); e("s_add_u32 s36, s36, s37")
    e(f"s_add_u32 s36, s36, {WS_OT:#x}"); e("s_add_u32 s37, s36, 0x10000")
    e(f"v_mov_b32 v8, {f32(1e-6)}")
    e("s_waitcnt lgkmcnt(0)")
    nq = [160 + 4*n for n in range(24)]
    for u in range(4):
        for sg in range(2):
            b = Bk(u) + 4 + sg*4
            for db in (2, 0, 1):
                d = nq[u*6 + sg*3 + db]; a = KOq[sg*2+db] if db < 2 else ZOq[sg]
                e(f"v_mfma_f32_16x16x32_bf16 v[{d}:{d+3}], v[{a}:{a+3}], v[{b}:{b+3}], 0")
    e("s_nop 1")
    for u in range(4):
        xp, xm = nq[u*6+2], nq[u*6+5]
        e(f"v_rcp_f32 v{xp+2}, v{xp+1}"); e(f"v_rcp_f32 v{xm+2}, v{xm+1}")
    for u in range(4):
        xp, xm = nq[u*6+2], nq[u*6+5]
        e(f"v_fma_f32 v{xp}, v{xp}, v{xp+2}, v8"); e(f"v_fma_f32 v{xp}, v{xm}, v{xm+2}, v{xp}")
    for u in range(4): xp = nq[u*6+2]; e(f"v_rcp_f32 v{xp}, v{xp}")
    for u in range(4): xp = nq[u*6+2]; e(f"v_mul_f32 v{xp}, v{xp}, v{GG+u}")
    for u in range(4):
        xp, xm = nq[u*6+2], nq[u*6+5]
        e(f"v_mul_f32 v{xp+2}, v{xp+2}, v{xp}"); e(f"v_mul_f32 v{xm+2}, v{xm+2}, v{xp}")
    for u in range(4):
        xp, xm = nq[u*6+2], nq[u*6+5]
        for db in range(2):
            np_, nm = nq[u*6+db], nq[u*6+3+db]
            for q in (0, 2):
                e(f"v_pk_mul_f32 v[{np_+q}:{np_+q+1}], v[{np_+q}:{np_+q+1}], v[{xp+2}:{xp+3}] op_sel_hi:[1,0]")
                e(f"v_pk_fma_f32 v[{np_+q}:{np_+q+1}], v[{nm+q}:{nm+q+1}], v[{xm+2}:{xm+3}], v[{np_+q}:{np_+q+1}] op_sel_hi:[1,0,1]")
    for u in range(4):
        for db in range(2):
            np_ = nq[u*6+db]; o = 16 + ((u//2)*2+db)*4 + (u % 2)*2
            e(f"v_cvt_pk_bf16_f32 v{o}, v{np_}, v{np_+1}"); e(f"v_cvt_pk_bf16_f32 v{o+1}, v{np_+2}, v{np_+3}")
    e("s_nop 1")
    for n in range(4):
        o = 16 + n*4; e(f"v_permlane16_swap_b32 v{o}, v{o+2}"); e(f"v_permlane16_swap_b32 v{o+1}, v{o+3}")
    for n in range(4):
        o = 16 + n*4; pr, db = divmod(n, 2)
        e(f"buffer_store_dwordx4 v[{o}:{o+3}], v9, s[16:19], s{36+db} offen offset:{pr*512}{opts.get('ust', '')}")
    if stamps: stamp_store(e, (80, 84, 82, 94, 96, 88, 86, 86) if opts.get("estamp") else (80, 82, 84, 88, 90, 86, 86, 86), WS_STAMP, "a_end")
    e("s_lshl_b32 s39, s52, 4"); e("s_add_u32 s39, s39, s53"); e("s_lshl_b32 s39, s39, 7"); e(f"s_add_u32 s39, s39, {WS_FLAGO:#x}")
    e("s_waitcnt vmcnt(0)")
    e("s_branch b_entry")
    e("a_bchain:")
    e("s_lshl_b32 s52, s58, 5"); e("s_add_u32 s52, s52, s56")
    e("s_and_b32 s54, s56, 3")
    e("s_mul_i32 s55, s58, 7"); e("s_lshr_b32 s60, s56, 2"); e("s_add_u32 s55, s55, s60")
    e("s_cmp_lt_u32 s3, 4"); e("s_cbranch_scc1 a_lnc")
    e("s_cmp_ge_u32 s56, 28"); e("s_cbranch_scc1 a_sp_hi")
    st = Stream(k)
    k.srd(24, W1, S_*F_*2)
    e("s_sub_u32 s3, s3, 4")
    lane_T_dma_off(e, 16, 24, 2, 6, F_*2, 3)
    e("v_add_u32 v25, 128, v24")
    e("s_lshl_b32 s60, s3, 14"); e(f"s_lshl_b32 s28, s54, 12"); e("s_add_u32 s28, s28, s60"); e(f"s_add_u32 s28, s28, {WS_HT:#x}")
    e("s_lshl_b32 s29, s55, 8")
    e("s_lshl_b32 s30, s3, 12"); e("s_lshl_b32 s31, s3, 10"); e(f"s_add_u32 s31, s31, {c2.PB}")
    R2 = dict(vP=[3], vT=[24, 25], sP=28, sT=29, srdP=16, srdT=24, sBase=30, sLds=32, sStage=34, sCnt=35, stepP=4*D_*16, stepT=32*F_*2)
    fl = (" sc1", opts.get("nt2", ""))
    e("s_mov_b32 s32, s30"); e("s_mov_b32 s33, s31")
    for t in range(5): producer_issue(st.e, c2, R2, fl, "T", t*c2.SB)
    def g2_touches():
        e("s_mul_i32 s60, s58, 28"); e("s_add_u32 s60, s60, s56"); e("s_lshl_b32 s60, s60, 2"); e("s_add_u32 s60, s60, s3"); e("s_lshl_b32 s60, s60, 10")
        if opts.get("pf_wq", True):
            k.srd(48, WQKV, D_*3*D_*2)
            e("s_mov_b32 s61, s60")
            for n in range(14): st.e("buffer_load_dwordx4 v[240:243], v3, s[48:51], s61 offen"); e(f"s_add_u32 s61, s61, {448*1024}")
        e(f"s_add_u32 s61, s60, {160*7168}")
        for n in range(opts.get("pf_g2", 0)): st.e("buffer_load_dwordx4 v[240:243], v3, s[24:27], s61 offen"); e(f"s_add_u32 s61, s61, {448*1024}")
    if opts.get("tpos", "L1") == "pre": g2_touches()
    e("v_lshlrev_b32 v8, 7, v2"); e("v_add_u32 v9, 0x2000, v8")
    e("s_barrier")
    e(f"v_mov_b32 v4, {158*1024}"); e("ds_read_b64 v[10:11], v4"); e("s_waitcnt lgkmcnt(0)")
    e(f"v_readfirstlane_b32 s{TOK}, v10"); e(f"v_readfirstlane_b32 s{TOK+1}, v11")
    if opts.get("tpos", "L1") == "L1": g2_touches()
    e("s_barrier")
    producer_issue(st.e, c2, R2, fl, "T", 5*c2.SB)
    e(f"s_mov_b32 s36, {WS_FLAGL:#x}")
    poll_tok(k, [8, 9], 16, "s36", None, 10, sleep=2)
    st = Stream(k)
    for t in range(6):
        producer_issue(st.e, c2, R2, fl, "P", t*c2.SB); st.mark(f"b{t}")
    e("s_mov_b32 s34, 0")
    st.e("@wait b0"); e("s_barrier")
    for t in range(5):
        st.e(f"@wait b{t+1}"); e("s_barrier")
        producer_issue(st.e, c2, R2, fl); ring_advance(e, c2, R2)
    e("s_mov_b32 s35, 53")
    e("a_l2:")
    e("s_waitcnt vmcnt(24)"); e("s_barrier")
    producer_issue(e, c2, R2, fl); ring_advance(e, c2, R2)
    e("s_sub_u32 s35, s35, 1"); e("s_cmp_lg_u32 s35, 0"); e("s_cbranch_scc1 a_l2")
    for r in range(6):
        e(f"s_waitcnt vmcnt({max(4-r, 0)*6})"); e("s_barrier")
    e("s_branch b_entry")
    e("a_lnc:")
    st = Stream(k)
    e("s_lshl_b32 s37, s52, 15"); e("s_lshl_b32 s38, s3, 13"); e("s_add_u32 s37, s37, s38"); e("s_add_u32 s38, s37, 4096")
    for n in range(8): st.e(f"buffer_load_dwordx4 v[{48+4*n}:{51+4*n}], v3, s[20:23], s{37+n//4} offen offset:{(n%4)*1024}")
    k.srd(24, GW, D_*2)
    st.e("buffer_load_dwordx4 v[80:83], v3, s[24:27], 0 offen"); st.e("@vm lng buffer_load_dwordx4 v[84:87], v3, s[24:27], 0 offen offset:1024")
    k.srd(48, B1, F_*2)
    e("s_lshr_b32 s57, s3, 1"); e("s_and_b32 s58, s3, 1")
    e("v_lshrrev_b32 v7, 4, v2"); e("v_lshlrev_b32 v7, 3, v7")
    e("s_lshl_b32 s60, s55, 8"); e("s_lshl_b32 s61, s58, 6"); e("s_add_u32 s60, s60, s61")
    for j in range(4): st.e(f"buffer_load_dwordx2 v[{96+2*j}:{97+2*j}], v7, s[48:51], s60 offen offset:{(j//2)*128 + (j%2)*32}")
    get_token(k, 14, 12)
    e(f"v_mov_b32 v4, {158*1024}"); e("ds_write_b64 v4, v[12:13]")
    LS = 120*1024
    e("s_mov_b32 s36, 0xffff0000")
    e(f"s_mul_i32 s37, s3, {4*HP}"); e(f"s_add_u32 s37, s37, {LS}"); e("v_add_u32 v22, s37, v3")
    e(f"v_bfe_u32 v23, v2, 2, 2"); e(f"v_mul_u32_u24 v23, {HP}, v23"); e("v_and_b32 v120, 3, v2"); e("v_lshl_add_u32 v23, v120, 3, v23")
    e(f"v_lshrrev_b32 v120, 4, v2"); e("v_lshl_add_u32 v23, v120, 5, v23")
    e(f"s_mul_i32 s37, s57, {8*HP}"); e("s_lshl_b32 s38, s58, 10"); e("s_add_u32 s37, s37, s38"); e(f"s_add_u32 s37, s37, {LS}"); e("v_add_u32 v23, s37, v23")
    for i in range(8):
        e(f"v_lshlrev_b32 v{104+2*i}, 16, v{80+i}"); e(f"v_and_b32 v{105+2*i}, s36, v{80+i}")
    w = Work()
    gen4.ln_rows(w, 48, 0); gen4.ln_rows(w, 64, 1)
    for it in w.q: e(it.replace("s_lshl_b32 s37, s2, 5", "s_lshl_b32 s37, s52, 6"))
    e("s_waitcnt lgkmcnt(0)"); e("s_barrier")
    for j in range(8):
        e(f"ds_read_b64_tr_b16 v[{144+4*j}:{145+4*j}], v23 offset:{128*j}")
        e(f"ds_read_b64_tr_b16 v[{146+4*j}:{147+4*j}], v23 offset:{128*j+4*HP}")
    e(f"s_lshl_b32 s37, s52, 15"); e("s_lshl_b32 s38, s3, 13"); e("s_add_u32 s37, s37, s38"); e(f"s_add_u32 s37, s37, {WS_HT:#x}"); e("s_add_u32 s38, s37, 4096")
    for j in range(8):
        e(f"s_waitcnt lgkmcnt({14-2*j})"); e(f"buffer_store_dwordx4 v[{144+4*j}:{147+4*j}], v3, s[16:19], s{37+j//4} offen offset:{(j%4)*1024} sc1")
    acc2 = [[128 + (i*4+j)*4 for j in range(4)] for i in range(8)]
    e("s_nop 1")
    for j in range(4):
        for hh in range(2):
            src = 96 + j*2 + hh; d0 = acc2[0][j] + hh*2
            e(f"v_lshlrev_b32 v{d0}, 16, v{src}"); e(f"v_and_b32 v{d0+1}, s36, v{src}")
        for i in range(1, 8):
            for q in (0, 2): e(f"v_mov_b64 v[{acc2[i][j]+q}:{acc2[i][j]+q+1}], v[{acc2[0][j]+q}:{acc2[0][j]+q+1}]")
    e("v_lshrrev_b32 v8, 4, v2"); e("v_lshlrev_b32 v4, 12, v8"); e("v_and_b32 v9, 15, v2"); e("v_lshl_add_u32 v4, v9, 4, v4")
    e("s_lshl_b32 s60, s57, 11"); e("v_add_u32 v4, s60, v4")
    lane_T_read_off(e, 16, 6, 2, 8, 9)
    e("s_lshl_b32 s60, s58, 6"); e("v_xor_b32 v6, s60, v6"); e("v_xor_b32 v7, 32, v6")
    e("s_waitcnt vmcnt(0)"); e("s_barrier")
    e("s_cmp_lg_u32 s3, 0"); e("s_cbranch_scc1 a_lnf")
    e("s_lshl_b32 s37, s52, 7"); e(f"s_add_u32 s37, s37, {WS_FLAGL:#x}")
    e(lane0("buffer_store_dwordx2 v[12:13], v14, s[16:19], s37 offen sc1"))
    e("a_lnf:")
    if stamps: e("s_memrealtime s[82:83]")
    e("s_cmp_ge_u32 s56, 28"); e("s_cbranch_scc1 a_spare")
    p_off = [(0, i*256) for i in range(8)]
    t_desc = [(j % 2, c2.PB + (j//2)*4096) for j in range(4)]
    order = [(i, j, i, j) for i in range(8) for j in range(4)]
    pbufs = [16 + 4*i for i in range(16)]; tbufs = [80 + 4*j for j in range(8)]
    consumer_loop(k, c2, [(2, ["s_memrealtime s[84:85]", "s_waitcnt lgkmcnt(0)"] if stamps else []), (62, [])], 16, 8, 4, p_off, t_desc, acc2, pbufs, tbufs, [4], [6, 7],
                  False, order, 36, 37, 38, rpg=1, bar_pos=2)
    if stamps: e("s_memrealtime s[88:89]")
    e("s_waitcnt lgkmcnt(0)")
    e("v_lshrrev_b32 v8, 5, v2"); e("v_lshlrev_b32 v7, 14, v8"); e("v_and_b32 v8, 31, v2"); e("v_lshl_add_u32 v7, v8, 4, v7")
    e("s_lshl_b32 s14, s55, 18"); e("s_lshl_b32 s15, s58, 16"); e("s_add_u32 s14, s14, s15")
    e("s_lshl_b32 s15, s54, 12"); e("s_add_u32 s14, s14, s15"); e("s_lshl_b32 s15, s57, 11"); e("s_add_u32 s14, s14, s15")
    e(f"s_add_u32 s14, s14, {WS_UT:#x}")
    e(f"s_mov_b32 s42, {f32(GELU_K3)}"); e(f"s_mov_b32 s43, {f32(GELU_K3)}")
    e(f"v_mov_b32 v10, {f32(GELU_K1)}"); e(f"v_mov_b32 v11, {f32(GELU_K1)}")
    blk = 0
    for j in range(4):
        e(f"s_add_u32 s15, s14, {((j//2)*8 + (j%2)*2)*16384}")
        for i in (0, 4):
            t = 16 + (blk % 2) * 24; o = t + 16; blk += 1
            gelu_block(e, [acc2[i+b][j] + q for b in range(4) for q in (0, 2)], t, o)
            e("s_nop 1")
            for pr in range(2):
                e(f"v_permlane16_swap_b32 v{o+4*pr}, v{o+4*pr+2}"); e(f"v_permlane16_swap_b32 v{o+4*pr+1}, v{o+4*pr+3}")
            for pr in range(2):
                e(f"buffer_store_dwordx4 v[{o+4*pr}:{o+4*pr+3}], v7, s[16:19], s15 offen offset:{(i+2*pr)*256}{opts.get('ust', '')}")
    if stamps: stamp_store(e, (80, 82, 84, 88, 88, 86, 86, 86), WS_STAMP, "a_end")
    e("s_mul_i32 s39, s54, 28"); e("s_add_u32 s39, s39, s55"); e("s_lshl_b32 s39, s39, 7"); e(f"s_add_u32 s39, s39, {WS_FLAGU:#x}")
    e("s_waitcnt vmcnt(0)")
    e("s_branch b_entry")
    e("a_sp_hi:")
    e("s_barrier")
    e(f"v_mov_b32 v4, {158*1024}"); e("ds_read_b64 v[12:13], v4"); e("s_waitcnt lgkmcnt(0)")
    e(f"v_readfirstlane_b32 s{TOK}, v12"); e(f"v_readfirstlane_b32 s{TOK+1}, v13")
    e("s_barrier")
    e("a_spare:")
    if opts.get("pf_sp", True):
        k.srd(24, W1, S_*F_*2)
        r0 = opts.get("sp_row0", 192)
        e("s_lshr_b32 s60, s52, 5"); e("s_lshl_b32 s60, s60, 2"); e("s_add_u32 s60, s60, s56"); e("s_sub_u32 s60, s60, 28"); e("s_lshl_b32 s60, s60, 3"); e("s_add_u32 s60, s60, s3")
        e("s_lshl_b32 s59, s60, 10"); e(f"s_add_u32 s61, s59, {r0*7168}")
        e(f"s_mov_b32 s62, {max(1, ((2048-r0)*7 + 127)//128)}"); e("a_spl:")
        e("buffer_load_dwordx4 v[240:243], v3, s[24:27], s61 offen"); e(f"s_add_u32 s61, s61, {128*1024}"); e(f"s_waitcnt vmcnt({opts.get('sp_depth', 16)})")
        e("s_sub_u32 s62, s62, 1"); e("s_cmp_lg_u32 s62, 0"); e("s_cbranch_scc1 a_spl")
        k.srd(48, WO, D_*D_*2)
        e("s_mov_b32 s61, s59")
        for n in range(16): e("buffer_load_dwordx4 v[240:243], v3, s[48:51], s61 offen"); e(f"s_add_u32 s61, s61, {128*1024}")
        if opts.get("sp_w2", 0):
            e("s_load_dwordx2 s[12:13], s[0:1], 56"); e("s_waitcnt lgkmcnt(0)")
            k.srd(24, 12, S_*F_*2)
            e(f"s_mov_b32 s62, {opts.get('sp_w2', 0)}"); e("a_spl2:")
            e("buffer_load_dwordx4 v[240:243], v3, s[24:27], s59 offen"); e(f"s_add_u32 s59, s59, {128*1024}"); e(f"s_waitcnt vmcnt({opts.get('sp_depth', 16)})")
            e("s_sub_u32 s62, s62, 1"); e("s_cmp_lg_u32 s62, 0"); e("s_cbranch_scc1 a_spl2")
    e(f"s_mov_b32 s39, {WS_FLAGO + 0x4000:#x}")
    if stamps: stamp_store(e, (80, 82, 82, 82, 82, 86, 86, 86), WS_STAMP, "")
    gen_b2(opts, k)
    e("a_end:")
    return k

def gen_b2(opts, k):
    NS = opts.get("NSb", 5)
    c = GemmCfg(128, 2, NS, 64)
    e = k.e
    stamps = opts.get("stamps", False)
    NT = ""
    W2, B2 = 72, 74
    e("b_entry:")
    e("s_load_dwordx4 s[72:75], s[0:1], 56")
    if stamps: e("s_memrealtime s[80:81]")
    e("s_mov_b32 s92, s2")
    e("v_lshrrev_b32 v1, 6, v0"); e("v_and_b32 v2, 63, v0"); e("v_lshlrev_b32 v3, 4, v2")
    e("s_lshr_b32 s56, s2, 3")
    e("v_readfirstlane_b32 s3, v1")
    e("s_and_b32 s52, s2, 1")
    if opts.get("bmap", "8d4s") == "8d4s":
        e("s_lshr_b32 s54, s56, 2")
        e("s_bfe_u32 s55, s2, 0x20001"); e("s_lshl_b32 s55, s55, 2"); e("s_and_b32 s60, s56, 3"); e("s_add_u32 s55, s55, s60")
    else:
        e("s_bfe_u32 s54, s2, 0x10001"); e("s_lshl_b32 s54, s54, 2"); e("s_and_b32 s60, s56, 3"); e("s_add_u32 s54, s54, s60")
        e("s_bfe_u32 s55, s2, 0x10002"); e("s_lshl_b32 s55, s55, 3"); e("s_lshr_b32 s60, s56, 2"); e("s_add_u32 s55, s55, s60")
    e("s_waitcnt lgkmcnt(0)")
    e("s_cmp_lt_u32 s3, 4"); e("s_cbranch_scc1 b_cons")
    assert NS == 5
    n2 = opts.get("n2", 30); n1 = 56 - n2
    k.srd(24, W2, F_*S_*2)
    k.srd(20, WO, D_*D_*2)
    e("s_sub_u32 s3, s3, 4")
    e("s_lshl_b32 s30, s3, 11")
    e("s_lshl_b32 s31, s3, 10"); e(f"s_add_u32 s31, s31, {c.PB}")
    e("s_mov_b32 s32, s30"); e("s_mov_b32 s33, s31")
    fl = None
    fl3 = (" sc1", opts.get("nt3", "")); fl4 = (" sc1", "")
    R3 = dict(vP=[3, 9], vT=list(range(24, 28)), sP=28, sT=29, srdP=16, srdT=24, sBase=30, sLds=32, sStage=34, sCnt=35, stepP=8*D_*16, stepT=64*S_*2)
    R4 = dict(R3, vP=[3, 13], vT=list(range(32, 36)), sP=36, sT=37, srdT=20, stepP=8*S_*16, stepT=64*D_*2)
    def setup3():
        lane_T_dma_off(e, 16, 24, 2, 6, S_*2, 3)
        for n in range(1, 4):
            sg, kg = divmod(n, 2); e(f"v_add_u32 v{24+n}, {sg*128 + kg*32*S_*2}, v24")
        e("s_cmp_eq_u32 s52, 0"); e(f"s_cselect_b32 s62, {n2}, 0")
        e(f"s_mul_i32 s29, s62, {64*4096}"); e("s_lshl_b32 s60, s55, 8"); e("s_add_u32 s29, s29, s60")
        e(f"v_add_u32 v9, {4*D_*16}, v3")
        e("s_lshl_b32 s28, s62, 3"); e("s_add_u32 s28, s28, s3"); e("s_lshl_b32 s28, s28, 14"); e("s_lshl_b32 s60, s54, 11"); e("s_add_u32 s28, s28, s60")
        e(f"s_add_u32 s28, s28, {WS_UT:#x}")
    def start(R, lab_cnt):
        for t in range(NS): producer_issue(e, c, R, fl3, "P", t*c.SB)
        e("s_mov_b32 s34, 0")
        e("s_waitcnt vmcnt(16)"); e("s_barrier")
        for wn_ in (12, 16, 20):
            e(f"s_waitcnt vmcnt({wn_})"); e("s_barrier")
            producer_issue(e, c, R, fl3 if R is R3 else fl4); ring_advance(e, c, R)
    def loop(R, lab):
        e(f"{lab}:")
        e("s_waitcnt vmcnt(24)"); e("s_barrier")
        producer_issue(e, c, R, fl3 if R is R3 else fl4); ring_advance(e, c, R)
        e("s_sub_u32 s35, s35, 1"); e("s_cmp_lg_u32 s35, 0"); e(f"s_cbranch_scc1 {lab}")
    e("s_cmp_eq_u32 s52, 0"); e("s_cbranch_scc1 b_ld0")
    setup3()
    for t in range(NS): producer_issue(e, c, R3, fl3, "T", t*c.SB)
    nsw = opts.get("sw2", 0)
    if nsw:
        e("s_lshr_b32 s60, s2, 1"); e("s_lshl_b32 s60, s60, 2"); e("s_add_u32 s60, s60, s3"); e("s_lshl_b32 s60, s60, 10"); e(f"s_add_u32 s60, s60, {(28-nsw)*512*1024}")
        for n in range(nsw): e("buffer_load_dwordx4 v[240:243], v3, s[24:27], s60 offen"); e(f"s_add_u32 s60, s60, {512*1024}")
    e(f"v_min_u32 v8, {n2//2-1}, v2"); e("v_lshlrev_b32 v8, 7, v8")
    e("s_lshr_b32 s38, s54, 1"); e("s_mul_i32 s38, s38, 28"); e("s_lshl_b32 s38, s38, 7"); e(f"s_add_u32 s38, s38, {WS_FLAGU:#x}")
    e("s_barrier")
    poll_tok(k, 8, 16, "s38", 0xffffff, 10, sleep=1)
    start(R3, 0)
    e(f"s_mov_b32 s35, {n2 - 8}")
    e("s_branch b_l3")
    e("b_ld0:")
    lane_T_dma_off(e, 16, 32, 2, 6, D_*2, 3)
    for n in range(1, 4):
        sg, kg = divmod(n, 2); e(f"v_add_u32 v{32+n}, {sg*128 + kg*32*D_*2}, v32")
    e("s_lshl_b32 s37, s54, 8")
    for t in range(NS): producer_issue(e, c, R4, fl4, "T", t*c.SB)
    e(f"v_add_u32 v13, {4*S_*16}, v3")
    e("s_lshl_b32 s36, s3, 15"); e("s_lshl_b32 s60, s55, 11"); e("s_add_u32 s36, s36, s60"); e(f"s_add_u32 s36, s36, {WS_OT:#x}")
    setup3()
    e("v_lshlrev_b32 v8, 7, v2"); e("s_lshr_b32 s38, s55, 1"); e("s_lshl_b32 s38, s38, 11"); e(f"s_add_u32 s38, s38, {WS_FLAGO:#x}")
    e("s_barrier")
    poll_tok(k, 8, 16, "s38", 0xffff, 10, sleep=1)
    start(R4, 0)
    e("s_mov_b32 s35, 8")
    loop(R4, "b_l4")
    e(f"s_mov_b32 s35, {n1}")
    loop(R3, "b_l3")
    for wn_ in (24, 16, 8, 0, 0):
        e(f"s_waitcnt vmcnt({wn_})"); e("s_barrier")
    e("s_endpgm")
    e("b_cons:")
    e(f"v_mov_b32 v92, s{TOK}"); e(f"v_mov_b32 v93, s{TOK+1}"); e("v_mov_b32 v94, 0")
    e("s_barrier")
    e("s_cmp_lg_u32 s3, 0"); e("s_cbranch_scc1 b_nf")
    e(lane0("buffer_store_dwordx2 v[92:93], v94, s[16:19], s39 offen sc1"))
    e("b_nf:")
    e("s_lshr_b32 s57, s3, 1"); e("s_and_b32 s58, s3, 1")
    k.srd(24, B2, S_*2)
    k.srd(20, OUT, S_*D_*2)
    e("v_and_b32 v15, 15, v2"); e("v_lshrrev_b32 v14, 4, v2")
    e("s_lshl_b32 s60, s55, 7"); e("s_lshl_b32 s61, s58, 5"); e("s_add_u32 s60, s60, s61"); e("v_add_u32 v8, s60, v15")
    e("v_lshlrev_b32 v9, 2, v8"); e("v_lshlrev_b32 v8, 1, v8")
    e(f"s_mov_b32 s47, {WS_G:#x}")
    GO, BO = 80, 88
    gld = [f"buffer_load_dword v{GO+2*j}, v9, s[16:19], s47 offen offset:{((j//2)*64 + (j%2)*16)*4} sc1" for j in range(4)]
    gfin = ["s_waitcnt vmcnt(0)"] + [f"v_sub_f32 v{GO+2*j}, 1.0, v{GO+2*j}" for j in range(4)]
    for j in range(4):
        e(f"buffer_load_ushort v{BO+j}, v8, s[24:27], 0 offen offset:{((j//2)*64 + (j%2)*16)*2}")
    acc = [[96 + (i*4+j)*4 for j in range(4)] for i in range(4)]
    e("v_lshlrev_b32 v4, 11, v14"); e("v_lshl_add_u32 v4, v15, 4, v4")
    e("v_mov_b32 v5, v4")
    e("s_lshl_b32 s60, s57, 10"); e("v_add_u32 v4, s60, v4")
    lane_T_read_off(e, 16, 10, 2, 12, 13)
    e("s_lshl_b32 s60, s58, 6"); e("v_xor_b32 v6, s60, v10"); e("v_xor_b32 v7, 32, v6")
    e("s_waitcnt vmcnt(0)")
    e("s_cmp_eq_u32 s52, 1"); e("s_cselect_b32 s60, -65536, 0")
    for j in range(4):
        e(f"v_lshlrev_b32 v{BO+j}, 16, v{BO+j}"); e(f"v_and_b32 v{BO+j}, s60, v{BO+j}")
        for i in range(4):
            for q in range(4): e(f"v_mov_b32 v{acc[i][j]+q}, v{BO+j}")
    p_off = [(0, kk*8192 + i*256) for kk in range(2) for i in range(4)]
    t_desc = [(j % 2, c.PB + (j//2)*8192 + kk*4096) for kk in range(2) for j in range(4)]
    order = [(kk*4+i, kk*4+j, i, j) for kk in range(2) for i in range(4) for j in range(4)]
    pbufs = [16 + 4*i for i in range(8)]; tbufs = [48 + 4*j for j in range(8)]
    if stamps: e("s_memrealtime s[82:83]")
    e("s_cmp_eq_u32 s52, 0"); e("s_cbranch_scc1 b_cons0")
    consumer_loop(k, c, [(2, gld), (n2-2, gfin)], 16, 8, 8, p_off, t_desc, acc, pbufs, tbufs, [4], [6, 7], True, order, 36, 37, 38, rpg=1, bar_pos=18)
    e("s_waitcnt lgkmcnt(0)"); e("s_nop 3")
    for j in range(4):
        for i in range(4):
            for q in (0, 2):
                a = acc[i][j] + q
                e(f"v_pk_mul_f32 v[{a}:{a+1}], v[{a}:{a+1}], v[{GO+2*j}:{GO+2*j+1}] op_sel_hi:[1,0]")
    e("s_branch b_exch")
    e("b_cons0:")
    e(f"v_min_u32 v95, {n1//2-1}, v2"); e("v_lshlrev_b32 v95, 7, v95")
    e("s_lshr_b32 s46, s54, 1"); e("s_mul_i32 s46, s46, 28"); e(f"s_add_u32 s46, s46, {n2//2}"); e("s_lshl_b32 s46, s46, 7"); e(f"s_add_u32 s46, s46, {WS_FLAGU:#x}")
    e("s_lshl_b32 s60, s58, 9"); e("v_add_u32 v5, s60, v5")
    e("s_lshl_b32 s60, s57, 13"); e("v_add_u32 v10, s60, v10")
    for q in range(1, 4): e(f"v_xor_b32 v{10+q}, {32*q}, v10")
    chk = Kern("tmp", 0, 0, 0); chk.name = "bo"
    chk.e("s_waitcnt vmcnt(0)"); chk.e(f"v_cmp_ne_u64 vcc, s[{TOK}:{TOK+1}], v[224:225]"); chk.e("s_nop 4"); chk.e("s_cbranch_vccz b_ook")
    poll_tok(chk, 95, 16, "s46", None, 224, sleep=1)
    chk.e("b_ook:")
    p_off4 = [(0, kk*8192 + (j//2)*1024 + (j%2)*256) for kk in range(2) for j in range(4)]
    t_desc4 = [(i, c.PB + kk*4096) for kk in range(2) for i in range(4)]
    order4 = [(kk*4+j, kk*4+i, i, j) for kk in range(2) for j in range(4) for i in range(4)]
    consumer_loop(k, c, [(9, ["buffer_load_dwordx2 v[224:225], v95, s[16:19], s46 offen sc1"]), (2, chk.lines + gld), (5, [])], 16, 8, 8, p_off4, t_desc4, acc, pbufs, tbufs,
                  [5], [10, 11, 12, 13], False, order4, 36, 37, 38, rpg=1, bar_pos=18)
    if stamps: e("s_memrealtime s[88:89]")
    slot = 16 % NS
    for v in (4, 6, 7): e(f"v_add_u32 v{v}, {slot*c.SB}, v{v}")
    e("s_waitcnt lgkmcnt(0)"); e("s_nop 4")
    for r in range(0, 64, 2):
        e(f"v_mov_b64 v[{160+r}:{161+r}], v[{96+r}:{97+r}]"); e(f"v_mov_b64 v[{96+r}:{97+r}], 0")
    consumer_loop(k, c, [(n1, gfin)], 16, 8, 8, p_off, t_desc, acc, pbufs, tbufs, [4], [6, 7], True, order, 36, 37, 38, rpg=1, bar_pos=18, slot0=slot)
    e("s_waitcnt lgkmcnt(0)"); e("s_nop 3")
    for j in range(4):
        for i in range(4):
            for q in (0, 2):
                a = acc[i][j] + q
                e(f"v_pk_fma_f32 v[{a}:{a+1}], v[{a}:{a+1}], v[{GO+2*j}:{GO+2*j+1}], v[{a+64}:{a+65}] op_sel_hi:[1,0,1]")
    e("b_exch:")
    if stamps: e("s_memrealtime s[84:85]")
    e("s_lshl_b32 s60, s2, 2"); e("s_add_u32 s60, s60, s3"); e("s_lshl_b32 s60, s60, 13"); e(f"s_add_u32 s60, s60, {gen2.WS_PART:#x}")
    e("s_add_u32 s61, s60, 4096")
    e("s_xor_b32 s62, s60, 0x8000"); e("s_add_u32 s63, s62, 4096")
    e("s_lshl_b32 s40, s2, 10"); e("s_lshl_b32 s41, s3, 7"); e("s_add_u32 s40, s40, s41"); e(f"s_add_u32 s40, s40, {WS_FLAG:#x}"); e("s_xor_b32 s41, s40, 0x400")
    e("v_mov_b32 v8, 0"); e("v_mov_b32 v9, 1")
    xb = opts.get("xbf16", False)
    def exch(hk, lab):
        snd = [acc[i][2*(1-hk)+jj] for jj in range(2) for i in range(4)]
        keep = [acc[i][2*hk+jj] for jj in range(2) for i in range(4)]
        if xb:
            for n, a in enumerate(snd):
                e(f"v_cvt_pk_bf16_f32 v{64+2*n}, v{a}, v{a+1}"); e(f"v_cvt_pk_bf16_f32 v{65+2*n}, v{a+2}, v{a+3}")
                if n % 2: e(f"buffer_store_dwordx4 v[{62+2*n}:{65+2*n}], v3, s[16:19], s60 offen offset:{(n//2)*1024} sc1")
        else:
            for n, a in enumerate(snd):
                e(f"buffer_store_dwordx4 v[{a}:{a+3}], v3, s[16:19], s{60 + n//4} offen offset:{(n%4)*1024} sc1")
        e("s_waitcnt vmcnt(0)")
        e(lane0("buffer_store_dwordx2 v[92:93], v94, s[16:19], s40 offen sc1"))
        poll_tok(k, 94, 16, "s41", None, 10, sleep=1, cnt=47)
        if xb:
            for n in range(4):
                e(f"buffer_load_dwordx4 v[{16+4*n}:{19+4*n}], v3, s[16:19], s62 offen offset:{n*1024} sc1")
            e("s_mov_b32 s63, 0xffff0000")
            for n, a in enumerate(keep):
                if n % 2 == 0: e(f"s_waitcnt vmcnt({3-n//2})")
                for h in range(2):
                    src = 16 + 2*n + h
                    e(f"v_lshlrev_b32 v32, 16, v{src}"); e(f"v_and_b32 v33, s63, v{src}")
                    e(f"v_pk_add_f32 v[{a+2*h}:{a+2*h+1}], v[{a+2*h}:{a+2*h+1}], v[32:33]")
        else:
            for n in range(8):
                e(f"buffer_load_dwordx4 v[{16+4*n}:{19+4*n}], v3, s[16:19], s{62 + n//4} offen offset:{(n%4)*1024} sc1")
            for n, a in enumerate(keep):
                e(f"s_waitcnt vmcnt({7-n})")
                for q in (0, 2): e(f"v_pk_add_f32 v[{a+q}:{a+q+1}], v[{a+q}:{a+q+1}], v[{16+4*n+q}:{17+4*n+q}]")
        for i in range(4):
            for jj in range(2):
                a = acc[i][2*hk+jj]; o = 48 + i*4 + jj*2
                e(f"v_cvt_pk_bf16_f32 v{o}, v{a}, v{a+1}"); e(f"v_cvt_pk_bf16_f32 v{o+1}, v{a+2}, v{a+3}")
    e("s_cmp_eq_u32 s52, 0"); e("s_cbranch_scc0 b_ex1")
    exch(0, "b_ex0")
    e("s_branch b_fin")
    e("b_ex1:")
    exch(1, "b_ex1")
    e("b_fin:")
    e("v_and_b32 v8, 31, v2"); e("v_lshlrev_b32 v8, 11, v8"); e("v_lshrrev_b32 v9, 5, v2"); e("v_lshl_add_u32 v8, v9, 4, v8")
    e("s_lshl_b32 s60, s55, 2"); e("s_lshl_b32 s61, s52, 1"); e("s_add_u32 s60, s60, s61"); e("s_add_u32 s60, s60, s58"); e("s_lshl_b32 s60, s60, 16")
    e("s_lshl_b32 s61, s54, 8"); e("s_add_u32 s60, s60, s61"); e("s_lshl_b32 s61, s57, 7"); e("s_add_u32 s60, s60, s61")
    for i in range(4):
        o = 48 + i*4
        e(f"v_permlane16_swap_b32 v{o}, v{o+2}"); e(f"v_permlane16_swap_b32 v{o+1}, v{o+3}")
    for i in range(4):
        o = 48 + i*4
        e(f"buffer_store_dwordx4 v[{o}:{o+3}], v8, s[20:23], s60 offen offset:{i*32}{opts.get('ost', '')}")
    if stamps: stamp_store(e, (80, 82, 84, 86, 86, 86, 86, 86), WS_STAMP + 0x10000, "")

if __name__ == "__main__":
    out = sys.argv[1]
    opts = eval("dict(" + (sys.argv[2] if len(sys.argv) > 2 else "") + ")")
    write_file(out, [gen_a(dict(dict(ust=' sc1', ost=' nt', xbf16=True, pf_wq=False, pf_g2=8, sp_row0=672), **opts))], single=True)
```

```python
import sys
from gen import *
import gen2, gen3, gen4
from gen2 import spin_until, softmax_units, DBG, WS, X, WQKV, WPHI, WO, W1, B1, GW, OUT, WS_KVP, NQ
from gen3 import Stream, Work, WS_KVF
from gen4 import lane0, HP

WS_SIZE = 0x8000000
WS_FLAGL = 0x14E0000
WS_FLAG1 = 0x14C0000
WS_FLAG2 = 0x14D0000
WS_FLAGU = 0x14F0000
WS_FLAGO = 0x14F8000
TOK = 44

def poll_tok(k, vaddr, srd, soff, nl_mask, vd, sleep=4, cnt=63):
    e = k.e
    L = k.lab("pt"); Lok = k.lab("ptok")
    if nl_mask is not None: e(f"s_mov_b64 exec, {nl_mask:#x}")
    e(f"s_mov_b32 s{cnt}, 0x40000")
    e(f"{L}:")
    vs = vaddr if isinstance(vaddr, list) else [vaddr]
    for n, va in enumerate(vs):
        e(f"buffer_load_dwordx2 v[{vd+2*n}:{vd+1+2*n}], v{va}, s[{srd}:{srd+3}], {soff} offen sc1")
    e("s_waitcnt vmcnt(0)")
    e(f"v_cmp_ne_u64 vcc, s[{TOK}:{TOK+1}], v[{vd}:{vd+1}]")
    for n in range(1, len(vs)):
        e(f"v_cmp_ne_u64 s[60:61], s[{TOK}:{TOK+1}], v[{vd+2*n}:{vd+1+2*n}]"); e("s_or_b64 vcc, vcc, s[60:61]")
    e(f"s_sub_u32 s{cnt}, s{cnt}, 1"); e(f"s_cbranch_scc1 {Lok}")
    e(f"s_cbranch_vccz {Lok}")
    e(f"s_sleep {sleep}")
    e(f"s_branch {L}")
    e(f"{Lok}:")
    if nl_mask is not None: e("s_mov_b64 exec, -1")

def get_token(k, vz, vd):
    e = k.e
    L = k.lab("tk"); Lok = k.lab("tkok")
    e("s_mov_b32 s63, 0x8000")
    e(f"{L}:")
    e(f"buffer_load_dwordx2 v[{vd}:{vd+1}], v{vz}, s[40:43], 0 offen sc1"); e("s_waitcnt vmcnt(0)")
    e(f"v_readfirstlane_b32 s{TOK}, v{vd}"); e(f"v_readfirstlane_b32 s{TOK+1}, v{vd+1}")
    e("s_sub_u32 s63, s63, 1"); e(f"s_cbranch_scc1 {Lok}")
    e(f"s_cmp_eq_u32 s{TOK}, 0"); e(f"s_cbranch_scc1 {L}")
    e(f"{Lok}:")

_sl = [0]
DBGST = []
def stamp_store(e, regs, base, endlab, cond="v0"):
    _sl[0] += 1; endlab = f"stl{_sl[0]}"
    if DBGST:
        e("s_waitcnt vmcnt(0)")
        e("s_memrealtime s[86:87]"); e("s_waitcnt lgkmcnt(0)")
        slot = DBGST.pop(0)
        e("v_mov_b32 v7, 0")
        e(f"v_cmp_eq_u32 vcc, 0, {cond}"); e("s_and_saveexec_b64 s[60:61], vcc"); e(f"s_cbranch_execz {endlab}")
        for n, (sr, w) in enumerate(slot):
            e(f"s_sub_u32 s62, s{sr}, s{TOK}"); e(f"v_mov_b32 v{16+n}, s62"); e(f"global_atomic_smax v7, v{16+n}, s[4:5] offset:{128 + w*4}" if False else f"global_atomic_smax v7, v{16+n}, s[4:5] offset:{w*4}")
        e(f"{endlab}:"); e("s_mov_b64 exec, -1")
        return
    e("s_waitcnt vmcnt(0)")
    e("s_memrealtime s[86:87]"); e("s_waitcnt lgkmcnt(0)")
    for n, sr in enumerate(regs): e(f"v_mov_b32 v{16+n}, s{sr}")
    e("s_lshl_b32 s60, s92, 5"); e(f"s_add_u32 s60, s60, {base:#x}"); e("v_mov_b32 v7, s60")
    e(f"v_cmp_eq_u32 vcc, 0, {cond}"); e("s_and_saveexec_b64 s[60:61], vcc"); e(f"s_cbranch_execz {endlab}")
    e(f"global_store_dwordx4 v7, v[16:19], s[{WS}:{WS+1}]")
    e(f"global_store_dwordx4 v7, v[20:23], s[{WS}:{WS+1}] offset:16")
    e(f"{endlab}:"); e("s_mov_b64 exec, -1")

def gen_a(opts):
    if opts.get("dbgst"):
        DBGST.extend([[(84, 2), (90, 3), (86, 4)], [(82, 5), (84, 6), (88, 7), (86, 8)], [(84, 9), (86, 10)], [(82, 11), (84, 12), (86, 13)]])
    c2 = GemmCfg(256, 2, 6, 32)
    k = Kern("gated_mix__linear_kernel_hedgehog__mixer_token_mlp__prompt_kernel", 256, 512, 160*1024, vgpr=256, sgpr=100)
    e = k.e
    stamps = opts.get("stamps", False)
    pf = opts.get("pf", True)
    e("s_cmp_ge_u32 s2, 256"); e("s_cbranch_scc1 a_end")
    e("s_load_dwordx8 s[64:71], s[0:1], 0")
    e("s_load_dwordx4 s[72:75], s[0:1], 40")
    e("s_load_dwordx4 s[76:79], s[0:1], 72")
    e("s_load_dwordx4 s[4:7], s[0:1], 88")
    e("s_load_dwordx2 s[12:13], s[0:1], 56")
    e(f"s_memrealtime s[{TOK}:{TOK+1}]")
    e("s_mov_b32 s92, s2")
    e("v_lshrrev_b32 v1, 6, v0"); e("v_and_b32 v2, 63, v0"); e("v_lshlrev_b32 v3, 4, v2")
    e("s_lshr_b32 s56, s2, 3"); e("s_and_b32 s57, s2, 7")
    e("v_readfirstlane_b32 s3, v1")
    e("v_mov_b32 v14, 0")
    e("s_waitcnt lgkmcnt(0)")
    if stamps: e(f"s_mov_b32 s80, s{TOK}")
    k.srd(16, WS, WS_SIZE)
    k.srd(40, DBG, 256)
    k.srd(20, X, S_*D_*2)
    e("s_lshl_b32 s60, s2, 3"); e("s_add_u32 s60, s60, s3"); e("s_cmp_lg_u32 s60, 7"); e("s_cbranch_scc1 a_ntp")
    e(f"s_or_b32 s{TOK}, s{TOK}, 1"); e(f"v_mov_b32 v4, s{TOK}"); e(f"v_mov_b32 v5, s{TOK+1}")
    e(lane0("buffer_store_dwordx2 v[4:5], v14, s[40:43], 0 offen sc1"))
    e("a_ntp:")
    e("s_lshr_b32 s58, s57, 1")
    e("s_and_b32 s60, s57, 1"); e("s_cmp_eq_u32 s60, 1"); e("s_cbranch_scc1 a_bchain")
    e("s_and_b32 s52, s56, 7")
    e("s_lshl_b32 s53, s58, 2"); e("s_lshr_b32 s60, s56, 3"); e("s_add_u32 s53, s53, s60")
    e("s_cmp_lt_u32 s3, 4"); e("s_cbranch_scc1 a_g1c")
    st = Stream(k)
    k.srd(24, WQKV, D_*3*D_*2)
    e("s_sub_u32 s3, s3, 4")
    e("v_lshrrev_b32 v7, 3, v2")
    e("s_lshl_b32 s60, s3, 6"); e("v_add_u32 v4, s60, v7"); e("v_lshlrev_b32 v4, 11, v4")
    e("v_lshrrev_b32 v5, 1, v7"); e("v_xor_b32 v5, v5, v2"); e("v_and_b32 v5, 7, v5")
    e("v_lshl_add_u32 v16, v5, 4, v4")
    e("v_xor_b32 v17, 64, v16"); e(f"v_add_u32 v17, {8*2048}, v17")
    for n in range(2, 8): e(f"v_add_u32 v{16+n}, {(n//2)*16*2048}, v{16+n%2}")
    lane_T_dma_off(e, 16, 24, 2, 6, 6144, 3)
    for n in (1, 2): e(f"v_add_u32 v{24+n}, {n*2048}, v24")
    e("s_lshl_b32 s9, s52, 19"); e("s_lshl_b32 s10, s53, 7")
    e("s_lshl_b32 s30, s3, 13"); e("s_lshl_b32 s31, s3, 10"); e(f"s_add_u32 s31, s31, {96*1024}")
    e(f"s_mul_i32 s14, s52, {opts.get('rotmul', 1)}")
    def issueP(n, half):
        if half == 0:
            st.e(f"s_add_u32 s11, s14, {n}\ns_and_b32 s11, s11, 15\ns_lshl_b32 s11, s11, 7\ns_add_u32 s28, s9, s11")
        for rb in range(4*half, 4*half+4):
            st.e(f"s_add_u32 m0, s30, {(n % 3)*32768 + rb*1024}\ns_nop 0\nbuffer_load_dwordx4 v{16+rb}, s[20:23], s28 offen lds")
        st.mark(f"P{n}")
    def issueT(t):
        st.e(f"s_lshl_b32 s11, s14, 1\ns_add_u32 s11, s11, {t}\ns_and_b32 s11, s11, 31\ns_mul_i32 s11, s11, {32*6144}\ns_add_u32 s29, s10, s11")
        for sg in range(3):
            st.e(f"s_add_u32 m0, s31, {(t % 5)*12288 + sg*4096}\ns_nop 0\nbuffer_load_dwordx4 v{24+sg}, s[24:27], s29 offen{opts.get('nt1', '')} lds")
        st.mark(f"T{t}")
    issueP(0, 0); issueP(0, 1); issueT(0); st.mark("S0"); issueT(1); issueP(1, 0); issueP(1, 1); issueT(2); issueT(3); issueP(2, 0); issueP(2, 1); issueT(4)
    k.srd(48, WPHI, 32*2048)
    e("s_lshl_b32 s60, s53, 12"); e("s_lshl_b32 s61, s3, 10"); e("s_add_u32 s60, s60, s61"); e(f"s_add_u32 m0, s61, {156*1024}"); e("s_nop 0")
    st.e("buffer_load_dwordx4 v3, s[48:51], s60 offen lds")
    k.srd(32, 12, F_*S_*2)
    e("s_lshl_b32 s61, s58, 5"); e("s_add_u32 s61, s61, s56"); e("s_lshl_b32 s61, s61, 2"); e("s_add_u32 s61, s61, s3"); e("s_lshl_b32 s61, s61, 10")
    t0, npc = opts.get("g1sw", (8, 0))
    sched = {}
    for n in range(npc): sched[t0 + n*(32-t0)//npc] = sched.get(t0 + n*(32-t0)//npc, 0) + 1
    st.e("@wait S0"); e("s_barrier")
    for t in range(32):
        if t + 1 < 32:
            st.e(f"@wait T{t+1}")
            if t % 2 == 1: st.e(f"@wait P{(t+1)//2}")
        e("s_barrier")
        if t + 5 < 32: issueT(t + 5)
        m = (t - 1) // 2 + 3
        if t >= 1 and m < 16: issueP(m, (t + 1) % 2)
        if t == 20: st.e("@vm tok buffer_load_dwordx2 v[12:13], v14, s[40:43], 0 offen sc1")
        for n in range(sched.get(t, 0)): st.e(f"buffer_load_dwordx4 v[240:243], v3, s[32:35], s61 offen\ns_add_u32 s61, s61, {512*1024}")
    e("s_lshr_b32 s54, s3, 1"); e("s_and_b32 s55, s3, 1"); e("s_lshl_b32 s59, s53, 1"); e("s_add_u32 s59, s59, s55")
    e("s_mul_i32 s60, s3, 12288"); e("v_add_u32 v8, s60, v3"); e(f"v_mov_b32 v9, {152*1024}")
    e("s_add_u32 s3, s3, 4"); e("s_mov_b32 s35, 1"); e("s_mov_b64 s[8:9], s[12:13]")
    e("s_waitcnt vmcnt(0)")
    e(f"v_readfirstlane_b32 s{TOK}, v12"); e(f"s_cmp_lg_u32 s{TOK}, 0"); e("s_cbranch_scc1 a_tkok")
    get_token(k, 14, 12)
    e("a_tkok:")
    e("ds_write_b64 v9, v[12:13]"); e("s_waitcnt lgkmcnt(0)")
    e("s_barrier")
    for n in range(4):
        for part in range(3): e(f"ds_read_b128 v[{64+24*n+4*part}:{64+24*n+4*part+3}], v8 offset:{(n*3+part)*1024}")
    e("s_waitcnt lgkmcnt(0)")
    e(f"v_readfirstlane_b32 s{TOK}, v12"); e(f"v_readfirstlane_b32 s{TOK+1}, v13")
    e("s_branch a_epi")
    e("a_g1c:")
    e("s_lshr_b32 s54, s3, 1"); e("s_and_b32 s55, s3, 1")
    e("s_lshl_b32 s59, s53, 1"); e("s_add_u32 s59, s59, s55")
    e("s_mov_b64 s[8:9], s[12:13]")
    acc = [[64 + (i*6+j)*4 for j in range(6)] for i in range(8)]
    for r in range(64, 256, 2): e(f"v_mov_b64 v[{r}:{r+1}], 0")
    e("v_and_b32 v8, 15, v2"); e("v_lshrrev_b32 v9, 4, v2")
    e("v_lshrrev_b32 v10, 1, v8"); e("v_xor_b32 v10, v10, v9")
    e("s_lshl_b32 s60, s54, 7"); e("v_add_u32 v4, s60, v8"); e("v_lshlrev_b32 v4, 7, v4"); e("v_lshl_add_u32 v4, v10, 4, v4")
    lane_T_read_off(e, 16, 6, 2, 8, 9)
    e("s_lshl_b32 s60, s55, 6"); e("v_xor_b32 v6, s60, v6"); e(f"v_add_u32 v6, {96*1024}, v6"); e("v_xor_b32 v7, 32, v6")
    p_off = [(0, i*2048) for i in range(8)]
    t_desc = [(j % 2, (j//2)*4096) for j in range(6)]
    order = [(2*a+b, j, 2*a+b, j) for a in range(4) for j in range(6) for b in range(2)]
    pbufs = [16 + 4*i for i in range(4)]; tbufs = [32 + 4*j for j in range(8)]
    ringT = ["s_cmp_eq_u32 s36, 4", "s_cselect_b32 s37, s39, 12288", "s_cselect_b32 s36, -1, s36", "s_add_u32 s36, s36, 1"]
    ringP = ["s_cmp_eq_u32 s32, 2", "s_cselect_b32 s33, s34, 0x8000", "s_cselect_b32 s32, -1, s32", "s_add_u32 s32, s32, 1"]
    salu = lambda s: ringT + (ringP if s % 2 else [])
    valu = lambda s: ["v_add_u32 v6, s37, v6", "v_add_u32 v7, s37, v7", "v_xor_b32 v4, 64, v4"] + (["v_add_u32 v4, s33, v4"] if s % 2 else [])
    tail = ["s_sub_u32 s38, s38, 1", "s_cmp_lg_u32 s38, 0"]
    ahead, body, U = build_consumer(None, 16, 8, 6, p_off, t_desc, acc, pbufs, tbufs, [4], [6, 7], lambda i, j: j >= 4, order,
                                    opts.get("bar1", 38), 1, salu, valu, tail, minU=2, salu_at=0)
    e(f"s_mov_b32 s39, {(-4*12288) & 0xffffffff:#x}"); e(f"s_mov_b32 s34, {(-2*32768) & 0xffffffff:#x}"); e("s_mov_b32 s36, 0"); e("s_mov_b32 s32, 0")
    if stamps: e("s_memrealtime s[82:83]")
    e("s_barrier")
    if stamps: e("s_memtime s[94:95]"); e("s_memrealtime s[98:99]")
    for l in ahead: e(l)
    e("s_waitcnt lgkmcnt(0)")
    e(f"s_mov_b32 s38, {32//U}"); e(".p2align 3"); e("a_g1loop:")
    for l in body: e(l)
    e("s_cbranch_scc1 a_g1loop")
    if stamps: e("s_memrealtime s[84:85]"); e("s_memtime s[96:97]"); e("s_waitcnt lgkmcnt(0)"); e("s_sub_u32 s93, s96, s94"); e("s_sub_u32 s98, s84, s98")
    e("s_waitcnt lgkmcnt(0)")
    Bk = lambda sb: 64 + 24*sb
    def cvt_units(sbs):
        for sb in sbs:
            B = Bk(sb)
            for n in range(8): e(f"v_cvt_pk_bf16_f32 v{B+n}, v{B+2*n}, v{B+2*n+1}")
        for p in sorted(set(sb//2 for sb in sbs)):
            for db in range(2):
                d = Bk(2*p+db) + 8
                for h in range(2):
                    a = Bk(2*p+h) + 16 + 4*db
                    e(f"v_cvt_pk_bf16_f32 v{d+2*h}, v{a}, v{a+1}"); e(f"v_cvt_pk_bf16_f32 v{d+2*h+1}, v{a+2}, v{a+3}")
    e("s_mul_i32 s60, s3, 12288"); e("v_add_u32 v8, s60, v3"); e(f"v_mov_b32 v9, {152*1024}")
    e("s_nop 4")
    cvt_units([4, 5, 6, 7])
    for n in range(4):
        for part in range(3): e(f"ds_write_b128 v8, v[{Bk(4+n)+4*part}:{Bk(4+n)+4*part+3}] offset:{(n*3+part)*1024}")
    cvt_units([0, 1, 2, 3])
    e("s_mov_b32 s35, 0")
    e("s_nop 0")
    e("s_waitcnt lgkmcnt(0)"); e("s_barrier")
    e("ds_read_b64 v[12:13], v9"); e("s_waitcnt lgkmcnt(0)")
    e(f"v_readfirstlane_b32 s{TOK}, v12"); e(f"v_readfirstlane_b32 s{TOK+1}, v13")
    if opts.get("estamp"): e("s_memrealtime s[82:83]")
    e("a_epi:")
    ne1 = opts.get("e1sw", 14)
    if ne1:
        k.srd(24, 8, F_*S_*2)
        e("s_lshl_b32 s60, s58, 5"); e("s_add_u32 s60, s60, s56"); e("s_lshl_b32 s60, s60, 3"); e("s_add_u32 s60, s60, s3"); e("s_lshl_b32 s60, s60, 10")
        if opts.get("e1lds"):
            e("s_lshl_b32 s61, s3, 10"); e(f"s_add_u32 m0, s61, {144*1024}"); e("s_nop 0")
            for n in range(ne1): e(f"buffer_load_dwordx4 v3, s[24:27], s60 offen lds"); e(f"s_add_u32 s60, s60, 0x100000")
        elif opts.get("e1skew"):
            e("s_cmp_lt_u32 s3, 4"); e("s_cbranch_scc1 a_sk"); e("s_sleep 64"); e("a_sk:")
        else:
            for n in range(ne1): e(f"buffer_load_dwordx4 v[4:7], v3, s[24:27], s60 offen"); e(f"s_add_u32 s60, s60, 0x100000")
    holes = [Bk(sb) + 12 + 4*n for sb in range(4) for n in range(3)]
    KVq = holes[0:9]; WPq = holes[9:11]
    PK, ST, EP, EF, ZB = 16, 48, 160, 224, 240
    e("v_lshrrev_b32 v8, 2, v2"); e("v_lshlrev_b32 v8, 6, v8"); e("v_and_b32 v9, 3, v2"); e("v_lshl_add_u32 v8, v9, 3, v8")
    e("s_lshl_b32 s60, s55, 11"); e(f"s_add_u32 s60, s60, {156*1024}"); e("v_add_u32 v8, s60, v8")
    for fb in range(2):
        for t in range(2): e(f"ds_read_b64_tr_b16 v[{WPq[fb]+2*t}:{WPq[fb]+2*t+1}], v8 offset:{t*1024 + fb*32}")
    e(f"s_mov_b32 s62, {f32(LOG2E)}"); e(f"s_mov_b32 s63, {f32(LOG2E)}")
    e("v_and_b32 v8, 15, v2"); e("v_lshrrev_b32 v9, 4, v2"); e("s_mul_i32 s34, s3, 10240"); e(f"s_add_u32 s34, s34, {48*1024}")
    e("v_mul_u32_u24 v10, 160, v8"); e("v_lshl_add_u32 v10, v9, 3, v10"); e("v_add_u32 v10, s34, v10")
    e("v_lshrrev_b32 v8, 2, v8"); e("v_lshl_add_u32 v8, v9, 2, v8"); e("v_mul_u32_u24 v11, 160, v8")
    def pmfma(off):
        for u in range(4):
            for fb in range(2):
                d = PK + (u*2+fb)*4; s = Bk(u) + off
                e(f"v_mfma_f32_16x16x32_bf16 v[{d}:{d+3}], v[{WPq[fb]}:{WPq[fb]+3}], v[{s}:{s+3}], 0")
    e("s_waitcnt lgkmcnt(0)")
    pmfma(4)
    e("v_and_b32 v8, 3, v2"); e("v_lshl_add_u32 v11, v8, 3, v11"); e("v_add_u32 v11, s34, v11"); e("v_mov_b32 v9, 0x3f803f80")
    for fbk in range(4):
        e(f"v_cmp_eq_u32 vcc, {fbk}, v8"); e("s_nop 1"); e(f"v_cndmask_b32 v{ZB+4*fbk}, 0, v9, vcc")
        for r in range(1, 4): e(f"v_mov_b32 v{ZB+4*fbk+r}, v{ZB+4*fbk}")
    units = [dict(x=[PK+u*8, PK+u*8+4], ep=EP+u*16, em=EP+8+u*16, st=ST+u*4, out=EP+u*16) for u in range(4)]
    softmax_units(e, units, 62, True)
    for u in range(4):
        o = units[u]["out"]
        for fbk in range(4): e(f"ds_write_b64 v10, v[{o+2*fbk}:{o+2*fbk+1}] offset:{u*16*160 + fbk*32}")
    pmfma(0)
    e("s_waitcnt lgkmcnt(0)")
    EFs = [EF, EP + 8]
    efq = [[EF + 4*n for n in range(4)], [EP+8, EP+12, EP+24, EP+28]]
    for p in range(2):
        for fbk in range(4):
            for t in range(2): e(f"ds_read_b64_tr_b16 v[{efq[p][fbk]+2*t}:{efq[p][fbk]+2*t+1}], v11 offset:{(2*p+t)*16*160 + fbk*32}")
    for p in range(2):
        for fbk in range(4):
            e(f"s_waitcnt lgkmcnt({14-8*p-2*fbk})")
            for db in range(3):
                d = KVq[fbk*2+db] if db < 2 else KVq[8]
                b = Bk(2*p+db) + 8 if db < 2 else ZB + 4*fbk
                cc = "0" if (p == 0 and (db < 2 or fbk == 0)) else f"v[{d}:{d+3}]"
                e(f"v_mfma_f32_16x16x32_bf16 v[{d}:{d+3}], v[{efq[p][fbk]}:{efq[p][fbk]+3}], v[{b}:{b+3}], {cc}")
    e("v_add_u32 v10, s34, v3")
    e("s_lshr_b32 s33, s3, 1"); e("s_lshr_b32 s61, s33, 1"); e("s_lshl_b32 s61, s61, 2"); e("s_and_b32 s60, s33, 1"); e("s_add_u32 s61, s61, s60"); e("s_lshl_b32 s61, s61, 10")
    e("s_mul_i32 s60, s55, 10240"); e("s_add_u32 s60, s60, s61"); e(f"s_add_u32 s60, s60, {48*1024}"); e("v_add_u32 v11, s60, v3"); e("v_add_u32 v15, 0xa000, v11")
    e("s_lshl_b32 s60, s59, 2"); e("s_add_u32 s60, s60, s33"); e("s_lshl_b32 s60, s60, 3")
    e(f"s_lshl_b32 s38, s60, 12"); e(f"s_add_u32 s38, s38, {WS_KVP:#x}"); e("s_lshl_b32 s37, s52, 12"); e("s_add_u32 s37, s37, s38")
    e("s_lshl_b32 s39, s60, 7"); e(f"s_add_u32 s39, s39, {WS_FLAG1:#x}"); e("s_lshl_b32 s36, s52, 7"); e("s_add_u32 s36, s36, s39")
    for qd in range(NQ): e(f"ds_write_b128 v10, v[{KVq[qd]}:{KVq[qd]+3}] offset:{qd*1024}")
    e("s_waitcnt lgkmcnt(0)"); e("s_barrier")
    if opts.get("estamp"): e("s_memrealtime s[94:95]"); e("s_waitcnt lgkmcnt(0)")
    if opts.get("dump"):
        e("s_lshl_b32 s60, s2, 3"); e("s_add_u32 s60, s60, s3"); e("s_lshl_b32 s60, s60, 15"); e("s_add_u32 s60, s60, 0x3000000")
        quads = [EP+u*16+h*4 for u in range(4) for h in range(2)] + efq[0] + efq[1] + KVq + [ST+4*u for u in range(4)] + [Bk(u)+4 for u in range(3)]
        for n, q in enumerate(quads):
            e(f"buffer_store_dwordx4 v[{q}:{q+3}], v3, s[16:19], s60 offen"); e("s_add_u32 s60, s60, 1024")
        e("s_nop 1")
    C0 = 224
    for hq in range(2):
        for src in range(4): e(f"ds_read_b128 v[{C0+(hq*4+src)*4}:{C0+(hq*4+src)*4+3}], v{11 if src < 2 else 15} offset:{(src%2)*20480 + hq*2048}")
    e("s_cmp_lg_u32 s33, 0"); e("s_cbranch_scc1 a_noz")
    for src in range(4): e(f"ds_read_b128 v[{holes[src]}:{holes[src]+3}], v{11 if src < 2 else 15} offset:{(src%2)*20480 + 8192}")
    e("s_waitcnt lgkmcnt(0)")
    for src in range(1, 4):
        for q in (0, 2): e(f"v_pk_add_f32 v[{holes[0]+q}:{holes[0]+q+1}], v[{holes[0]+q}:{holes[0]+q+1}], v[{holes[src]+q}:{holes[src]+q+1}]")
    e(f"buffer_store_dwordx4 v[{holes[0]}:{holes[0]+3}], v3, s[16:19], s37 offen offset:2048 sc1")
    e("a_noz:")
    e("s_waitcnt lgkmcnt(0)")
    for hq in range(2):
        a = C0 + hq*16
        for src in range(1, 4):
            for q in (0, 2): e(f"v_pk_add_f32 v[{a+q}:{a+q+1}], v[{a+q}:{a+q+1}], v[{a+4*src+q}:{a+4*src+q+1}]")
        e(f"buffer_store_dwordx4 v[{a}:{a+3}], v3, s[16:19], s37 offen offset:{hq*1024} sc1")
    e("s_lshl_b32 s32, s52, 2"); e("s_lshl_b32 s60, s54, 1"); e("s_add_u32 s32, s32, s60"); e("s_add_u32 s32, s32, s35")
    e("s_lshl_b32 s60, s32, 9"); e(f"s_add_u32 s60, s60, {WS_FLAGL - 8*128:#x}")
    e("v_lshlrev_b32 v10, 7, v2"); e("v_mov_b32 v11, s60"); e("v_mov_b32 v15, s39"); e("v_cmp_gt_u32 vcc, 8, v2"); e("s_nop 1"); e("v_cndmask_b32 v11, v11, v15, vcc"); e("v_add_u32 v10, v10, v11")
    units = [dict(x=[PK+u*8, PK+u*8+4], ep=EP+u*16, em=EP+8+u*16, st=ST+u*4, out=Bk(u)+4) for u in range(4)]
    w = Work(); softmax_units(w.e, units, 62, False)
    cut = len(w.q) * opts.get("e3cut", 30) // 100
    for l in w.q[:cut]: e(l)
    e("s_waitcnt vmcnt(0)")
    e(lane0("buffer_store_dwordx2 v[12:13], v14, s[16:19], s36 offen sc1"))
    if opts.get("estamp"): e("s_memrealtime s[96:97]"); e("s_waitcnt lgkmcnt(0)")
    for l in w.q[cut:]: e(l)
    if stamps: e("s_memrealtime s[88:89]")
    KOq = holes[0:4]; ZOq = holes[4:6]; GG = holes[6]
    poll_tok(k, 10, 16, "0", 0xfff, 8, sleep=1)
    G0 = 160
    for n in range(8):
        e(f"s_add_u32 s36, s38, {n*4096}")
        for hq in range(2):
            e(f"buffer_load_dwordx4 v[{G0+n*8+hq*4}:{G0+n*8+hq*4+3}], v3, s[16:19], s36 offen offset:{hq*1024} sc1")
    e("v_and_b32 v8, 15, v2"); e("v_lshlrev_b32 v8, 2, v8")
    e("s_lshl_b32 s36, s32, 8"); e(f"s_add_u32 s36, s36, {WS_G:#x}")
    for u in range(4): e(f"buffer_load_dword v{GG+u}, v8, s[16:19], s36 offen offset:{u*64} sc1")
    e("s_lshl_b32 s60, s55, 13"); e(f"s_add_u32 s60, s60, {128*1024}"); e("v_add_u32 v10, s60, v3"); e("s_lshl_b32 s60, s33, 10"); e("v_add_u32 v11, s60, v10")
    e("s_cmp_lg_u32 s33, 0"); e("s_cbranch_scc1 a_noz2")
    for n in range(8):
        e(f"s_add_u32 s36, s38, {n*4096 + 2048}"); e(f"buffer_load_dwordx4 v[{224+n*4}:{227+n*4}], v3, s[16:19], s36 offen sc1")
    e("s_waitcnt vmcnt(0)")
    for st_ in (16, 8, 4):
        for r in range(0, st_, 2): e(f"v_pk_add_f32 v[{224+r}:{225+r}], v[{224+r}:{225+r}], v[{224+st_+r}:{225+st_+r}]")
    e("v_and_b32 v8, 3, v2"); e("v_mov_b32 v9, 0x3f803f80")
    for fbk in range(4):
        for r in range(4): e(f"v_mov_b32_dpp v{240+fbk*4+r}, v{224+r} quad_perm:[{fbk},{fbk},{fbk},{fbk}] row_mask:0xf bank_mask:0xf")
    e("v_cmp_eq_u32 vcc, 1, v8"); e("s_nop 1"); e("v_cndmask_b32 v9, 0, v9, vcc"); e("v_cmp_eq_u32 vcc, 0, v8")
    for n in range(8): e(f"v_cvt_pk_bf16_f32 v{224+n}, v{240+2*n}, v{241+2*n}")
    for n in range(8): e(f"v_cndmask_b32 v{224+n}, v9, v{224+n}, vcc")
    e("ds_write_b128 v10, v[224:227] offset:4096"); e("ds_write_b128 v10, v[228:231] offset:5120")
    e("a_noz2:")
    e("s_waitcnt vmcnt(0)")
    for st_ in (32, 16, 8):
        for r in range(0, st_, 2): e(f"v_pk_add_f32 v[{G0+r}:{G0+r+1}], v[{G0+r}:{G0+r+1}], v[{G0+st_+r}:{G0+st_+r+1}]")
    for n in range(4): e(f"v_cvt_pk_bf16_f32 v{G0+n}, v{G0+2*n}, v{G0+2*n+1}")
    e(f"ds_write_b128 v11, v[{G0}:{G0+3}]")
    e("s_waitcnt lgkmcnt(0)"); e("s_barrier")
    if stamps: e("s_memrealtime s[90:91]")
    for n, d in enumerate(KOq + ZOq): e(f"ds_read_b128 v[{d}:{d+3}], v10 offset:{n*1024}")
    e("s_mov_b32 s38, s32")
    e("v_lshrrev_b32 v8, 5, v2"); e("v_lshlrev_b32 v9, 15, v8"); e("v_and_b32 v8, 31, v2"); e("v_lshl_add_u32 v9, v8, 4, v9")
    e("s_lshl_b32 s36, s59, 17"); e("s_lshl_b32 s37, s38, 10"); e("s_add_u32 s36, s36, s37")
    e(f"s_add_u32 s36, s36, {WS_OT:#x}"); e("s_add_u32 s37, s36, 0x10000")
    e(f"v_mov_b32 v8, {f32(1e-6)}")
    e("s_waitcnt lgkmcnt(0)")
    nq = [160 + 4*n for n in range(24)]
    for u in range(4):
        for sg in range(2):
            b = Bk(u) + 4 + sg*4
            for db in (2, 0, 1):
                d = nq[u*6 + sg*3 + db]; a = KOq[sg*2+db] if db < 2 else ZOq[sg]
                e(f"v_mfma_f32_16x16x32_bf16 v[{d}:{d+3}], v[{a}:{a+3}], v[{b}:{b+3}], 0")
    e("s_nop 1")
    for u in range(4):
        xp, xm = nq[u*6+2], nq[u*6+5]
        e(f"v_rcp_f32 v{xp+2}, v{xp+1}"); e(f"v_rcp_f32 v{xm+2}, v{xm+1}")
    for u in range(4):
        xp, xm = nq[u*6+2], nq[u*6+5]
        e(f"v_fma_f32 v{xp}, v{xp}, v{xp+2}, v8"); e(f"v_fma_f32 v{xp}, v{xm}, v{xm+2}, v{xp}")
    for u in range(4): xp = nq[u*6+2]; e(f"v_rcp_f32 v{xp}, v{xp}")
    for u in range(4): xp = nq[u*6+2]; e(f"v_mul_f32 v{xp}, v{xp}, v{GG+u}")
    for u in range(4):
        xp, xm = nq[u*6+2], nq[u*6+5]
        e(f"v_mul_f32 v{xp+2}, v{xp+2}, v{xp}"); e(f"v_mul_f32 v{xm+2}, v{xm+2}, v{xp}")
    for u in range(4):
        xp, xm = nq[u*6+2], nq[u*6+5]
        for db in range(2):
            np_, nm = nq[u*6+db], nq[u*6+3+db]
            for q in (0, 2):
                e(f"v_pk_mul_f32 v[{np_+q}:{np_+q+1}], v[{np_+q}:{np_+q+1}], v[{xp+2}:{xp+3}] op_sel_hi:[1,0]")
                e(f"v_pk_fma_f32 v[{np_+q}:{np_+q+1}], v[{nm+q}:{nm+q+1}], v[{xm+2}:{xm+3}], v[{np_+q}:{np_+q+1}] op_sel_hi:[1,0,1]")
    for u in range(4):
        for db in range(2):
            np_ = nq[u*6+db]; o = 16 + ((u//2)*2+db)*4 + (u % 2)*2
            e(f"v_cvt_pk_bf16_f32 v{o}, v{np_}, v{np_+1}"); e(f"v_cvt_pk_bf16_f32 v{o+1}, v{np_+2}, v{np_+3}")
    e("s_nop 1")
    for n in range(4):
        o = 16 + n*4; e(f"v_permlane16_swap_b32 v{o}, v{o+2}"); e(f"v_permlane16_swap_b32 v{o+1}, v{o+3}")
    for n in range(4):
        o = 16 + n*4; pr, db = divmod(n, 2)
        e(f"buffer_store_dwordx4 v[{o}:{o+3}], v9, s[16:19], s{36+db} offen offset:{pr*512}{opts.get('ust', '')}")
    if stamps: stamp_store(e, (80, 84, 82, 94, 96, 88, 86, 86) if opts.get("estamp") else (80, 82, 84, 88, 90, 86, 93, 98), WS_STAMP, "a_end")
    e("s_lshl_b32 s39, s52, 4"); e("s_add_u32 s39, s39, s53"); e("s_lshl_b32 s39, s39, 7"); e(f"s_add_u32 s39, s39, {WS_FLAGO:#x}")
    e("s_waitcnt vmcnt(0)")
    e("s_branch b_entry")
    e("a_bchain:")
    e("s_lshl_b32 s52, s58, 5"); e("s_add_u32 s52, s52, s56")
    e("s_and_b32 s54, s56, 3")
    e("s_mul_i32 s55, s58, 7"); e("s_lshr_b32 s60, s56, 2"); e("s_add_u32 s55, s55, s60")
    e("s_cmp_lt_u32 s3, 4"); e("s_cbranch_scc1 a_lnc")
    e("s_cmp_ge_u32 s56, 28"); e("s_cbranch_scc1 a_sp_hi")
    st = Stream(k)
    k.srd(24, W1, S_*F_*2)
    e("s_sub_u32 s3, s3, 4")
    lane_T_dma_off(e, 16, 24, 2, 6, F_*2, 3)
    e("v_add_u32 v25, 128, v24")
    e("s_lshl_b32 s60, s3, 14"); e(f"s_lshl_b32 s28, s54, 12"); e("s_add_u32 s28, s28, s60"); e(f"s_add_u32 s28, s28, {WS_HT:#x}")
    e("s_lshl_b32 s29, s55, 8")
    e("s_lshl_b32 s30, s3, 12"); e("s_lshl_b32 s31, s3, 10"); e(f"s_add_u32 s31, s31, {c2.PB}")
    R2 = dict(vP=[3], vT=[24, 25], sP=28, sT=29, srdP=16, srdT=24, sBase=30, sLds=32, sStage=34, sCnt=35, stepP=4*D_*16, stepT=32*F_*2)
    fl = (" sc1", opts.get("nt2", ""))
    e("s_mov_b32 s32, s30"); e("s_mov_b32 s33, s31")
    for t in range(5): producer_issue(st.e, c2, R2, fl, "T", t*c2.SB)
    def g2_touches():
        e("s_mul_i32 s60, s58, 28"); e("s_add_u32 s60, s60, s56"); e("s_lshl_b32 s60, s60, 2"); e("s_add_u32 s60, s60, s3"); e("s_lshl_b32 s60, s60, 10")
        if opts.get("pf_wq", True):
            k.srd(48, WQKV, D_*3*D_*2)
            e("s_mov_b32 s61, s60")
            for n in range(14): st.e("buffer_load_dwordx4 v[240:243], v3, s[48:51], s61 offen"); e(f"s_add_u32 s61, s61, {448*1024}")
        e(f"s_add_u32 s61, s60, {160*7168}")
        for n in range(opts.get("pf_g2", 0)): st.e("buffer_load_dwordx4 v[240:243], v3, s[24:27], s61 offen"); e(f"s_add_u32 s61, s61, {448*1024}")
    if opts.get("tpos", "L1") == "pre": g2_touches()
    e("v_lshlrev_b32 v8, 7, v2"); e("v_add_u32 v9, 0x2000, v8")
    e("s_barrier")
    e(f"v_mov_b32 v4, {158*1024}"); e("ds_read_b64 v[10:11], v4"); e("s_waitcnt lgkmcnt(0)")
    e(f"v_readfirstlane_b32 s{TOK}, v10"); e(f"v_readfirstlane_b32 s{TOK+1}, v11")
    if opts.get("tpos", "L1") == "L1": g2_touches()
    e("s_barrier")
    producer_issue(st.e, c2, R2, fl, "T", 5*c2.SB)
    e(f"s_mov_b32 s36, {WS_FLAGL:#x}")
    poll_tok(k, [8, 9], 16, "s36", None, 10, sleep=2)
    st = Stream(k)
    for t in range(6):
        producer_issue(st.e, c2, R2, fl, "P", t*c2.SB); st.mark(f"b{t}")
    e("s_mov_b32 s34, 0")
    st.e("@wait b0"); e("s_barrier")
    for t in range(5):
        st.e(f"@wait b{t+1}"); e("s_barrier")
        producer_issue(st.e, c2, R2, fl); ring_advance(e, c2, R2)
    e("s_mov_b32 s35, 53")
    e("a_l2:")
    e("s_waitcnt vmcnt(24)"); e("s_barrier")
    producer_issue(e, c2, R2, fl); ring_advance(e, c2, R2)
    e("s_sub_u32 s35, s35, 1"); e("s_cmp_lg_u32 s35, 0"); e("s_cbranch_scc1 a_l2")
    for r in range(6):
        e(f"s_waitcnt vmcnt({max(4-r, 0)*6})"); e("s_barrier")
    e("s_branch b_entry")
    e("a_lnc:")
    st = Stream(k)
    e("s_lshl_b32 s37, s52, 15"); e("s_lshl_b32 s38, s3, 13"); e("s_add_u32 s37, s37, s38"); e("s_add_u32 s38, s37, 4096")
    for n in range(8): st.e(f"buffer_load_dwordx4 v[{48+4*n}:{51+4*n}], v3, s[20:23], s{37+n//4} offen offset:{(n%4)*1024}")
    k.srd(24, GW, D_*2)
    st.e("buffer_load_dwordx4 v[80:83], v3, s[24:27], 0 offen"); st.e("@vm lng buffer_load_dwordx4 v[84:87], v3, s[24:27], 0 offen offset:1024")
    k.srd(48, B1, F_*2)
    e("s_lshr_b32 s57, s3, 1"); e("s_and_b32 s58, s3, 1")
    e("v_lshrrev_b32 v7, 4, v2"); e("v_lshlrev_b32 v7, 3, v7")
    e("s_lshl_b32 s60, s55, 8"); e("s_lshl_b32 s61, s58, 6"); e("s_add_u32 s60, s60, s61")
    for j in range(4): st.e(f"buffer_load_dwordx2 v[{96+2*j}:{97+2*j}], v7, s[48:51], s60 offen offset:{(j//2)*128 + (j%2)*32}")
    get_token(k, 14, 12)
    e(f"v_mov_b32 v4, {158*1024}"); e("ds_write_b64 v4, v[12:13]")
    LS = 120*1024
    e("s_mov_b32 s36, 0xffff0000")
    e(f"s_mul_i32 s37, s3, {4*HP}"); e(f"s_add_u32 s37, s37, {LS}"); e("v_add_u32 v22, s37, v3")
    e(f"v_bfe_u32 v23, v2, 2, 2"); e(f"v_mul_u32_u24 v23, {HP}, v23"); e("v_and_b32 v120, 3, v2"); e("v_lshl_add_u32 v23, v120, 3, v23")
    e(f"v_lshrrev_b32 v120, 4, v2"); e("v_lshl_add_u32 v23, v120, 5, v23")
    e(f"s_mul_i32 s37, s57, {8*HP}"); e("s_lshl_b32 s38, s58, 10"); e("s_add_u32 s37, s37, s38"); e(f"s_add_u32 s37, s37, {LS}"); e("v_add_u32 v23, s37, v23")
    for i in range(8):
        e(f"v_lshlrev_b32 v{104+2*i}, 16, v{80+i}"); e(f"v_and_b32 v{105+2*i}, s36, v{80+i}")
    w = Work()
    gen4.ln_rows(w, 48, 0); gen4.ln_rows(w, 64, 1)
    for it in w.q: e(it.replace("s_lshl_b32 s37, s2, 5", "s_lshl_b32 s37, s52, 6"))
    e("s_waitcnt lgkmcnt(0)"); e("s_barrier")
    for j in range(8):
        e(f"ds_read_b64_tr_b16 v[{144+4*j}:{145+4*j}], v23 offset:{128*j}")
        e(f"ds_read_b64_tr_b16 v[{146+4*j}:{147+4*j}], v23 offset:{128*j+4*HP}")
    e(f"s_lshl_b32 s37, s52, 15"); e("s_lshl_b32 s38, s3, 13"); e("s_add_u32 s37, s37, s38"); e(f"s_add_u32 s37, s37, {WS_HT:#x}"); e("s_add_u32 s38, s37, 4096")
    for j in range(8):
        e(f"s_waitcnt lgkmcnt({14-2*j})"); e(f"buffer_store_dwordx4 v[{144+4*j}:{147+4*j}], v3, s[16:19], s{37+j//4} offen offset:{(j%4)*1024} sc1")
    acc2 = [[128 + (i*4+j)*4 for j in range(4)] for i in range(8)]
    e("s_nop 1")
    for j in range(4):
        for hh in range(2):
            src = 96 + j*2 + hh; d0 = acc2[0][j] + hh*2
            e(f"v_lshlrev_b32 v{d0}, 16, v{src}"); e(f"v_and_b32 v{d0+1}, s36, v{src}")
        for i in range(1, 8):
            for q in (0, 2): e(f"v_mov_b64 v[{acc2[i][j]+q}:{acc2[i][j]+q+1}], v[{acc2[0][j]+q}:{acc2[0][j]+q+1}]")
    e("v_lshrrev_b32 v8, 4, v2"); e("v_lshlrev_b32 v4, 12, v8"); e("v_and_b32 v9, 15, v2"); e("v_lshl_add_u32 v4, v9, 4, v4")
    e("s_lshl_b32 s60, s57, 11"); e("v_add_u32 v4, s60, v4")
    lane_T_read_off(e, 16, 6, 2, 8, 9)
    e("s_lshl_b32 s60, s58, 6"); e("v_xor_b32 v6, s60, v6"); e("v_xor_b32 v7, 32, v6")
    e("s_waitcnt vmcnt(0)"); e("s_barrier")
    e("s_cmp_lg_u32 s3, 0"); e("s_cbranch_scc1 a_lnf")
    e("s_lshl_b32 s37, s52, 7"); e(f"s_add_u32 s37, s37, {WS_FLAGL:#x}")
    e(lane0("buffer_store_dwordx2 v[12:13], v14, s[16:19], s37 offen sc1"))
    e("a_lnf:")
    if stamps: e("s_memrealtime s[82:83]")
    e("s_cmp_ge_u32 s56, 28"); e("s_cbranch_scc1 a_spare")
    p_off = [(0, i*256) for i in range(8)]
    t_desc = [(j % 2, c2.PB + (j//2)*4096) for j in range(4)]
    order = [(i, j, i, j) for i in range(8) for j in range(4)]
    pbufs = [16 + 4*i for i in range(16)]; tbufs = [80 + 4*j for j in range(8)]
    consumer_loop(k, c2, [(2, ["s_memrealtime s[84:85]", "s_memtime s[94:95]", "s_waitcnt lgkmcnt(0)"] if stamps else []), (62, [])], 16, 8, 4, p_off, t_desc, acc2, pbufs, tbufs, [4], [6, 7],
                  False, order, 36, 37, 38, rpg=1, bar_pos=2)
    if stamps: e("s_memrealtime s[88:89]"); e("s_memtime s[96:97]"); e("s_waitcnt lgkmcnt(0)"); e("s_sub_u32 s93, s96, s94"); e("s_sub_u32 s98, s88, s84")
    e("s_waitcnt lgkmcnt(0)")
    e("v_lshrrev_b32 v8, 5, v2"); e("v_lshlrev_b32 v7, 14, v8"); e("v_and_b32 v8, 31, v2"); e("v_lshl_add_u32 v7, v8, 4, v7")
    e("s_lshl_b32 s14, s55, 18"); e("s_lshl_b32 s15, s58, 16"); e("s_add_u32 s14, s14, s15")
    e("s_lshl_b32 s15, s54, 12"); e("s_add_u32 s14, s14, s15"); e("s_lshl_b32 s15, s57, 11"); e("s_add_u32 s14, s14, s15")
    e(f"s_add_u32 s14, s14, {WS_UT:#x}")
    e(f"s_mov_b32 s42, {f32(GELU_K3)}"); e(f"s_mov_b32 s43, {f32(GELU_K3)}")
    e(f"v_mov_b32 v10, {f32(GELU_K1)}"); e(f"v_mov_b32 v11, {f32(GELU_K1)}")
    blk = 0
    for j in range(4):
        e(f"s_add_u32 s15, s14, {((j//2)*8 + (j%2)*2)*16384}")
        for i in (0, 4):
            t = 16 + (blk % 2) * 24; o = t + 16; blk += 1
            gelu_block(e, [acc2[i+b][j] + q for b in range(4) for q in (0, 2)], t, o)
            e("s_nop 1")
            for pr in range(2):
                e(f"v_permlane16_swap_b32 v{o+4*pr}, v{o+4*pr+2}"); e(f"v_permlane16_swap_b32 v{o+4*pr+1}, v{o+4*pr+3}")
            for pr in range(2):
                e(f"buffer_store_dwordx4 v[{o+4*pr}:{o+4*pr+3}], v7, s[16:19], s15 offen offset:{(i+2*pr)*256}{opts.get('ust', '')}")
    if stamps: stamp_store(e, (80, 82, 84, 88, 88, 86, 93, 98), WS_STAMP, "a_end")
    e("s_mul_i32 s39, s54, 28"); e("s_add_u32 s39, s39, s55"); e("s_lshl_b32 s39, s39, 7"); e(f"s_add_u32 s39, s39, {WS_FLAGU:#x}")
    e("s_waitcnt vmcnt(0)")
    e("s_branch b_entry")
    e("a_sp_hi:")
    e("s_barrier")
    e(f"v_mov_b32 v4, {158*1024}"); e("ds_read_b64 v[12:13], v4"); e("s_waitcnt lgkmcnt(0)")
    e(f"v_readfirstlane_b32 s{TOK}, v12"); e(f"v_readfirstlane_b32 s{TOK+1}, v13")
    e("s_barrier")
    e("a_spare:")
    if opts.get("pf_sp", True):
        k.srd(24, W1, S_*F_*2)
        r0 = opts.get("sp_row0", 192)
        e("s_lshr_b32 s60, s52, 5"); e("s_lshl_b32 s60, s60, 2"); e("s_add_u32 s60, s60, s56"); e("s_sub_u32 s60, s60, 28"); e("s_lshl_b32 s60, s60, 3"); e("s_add_u32 s60, s60, s3")
        e("s_lshl_b32 s59, s60, 10")
        q0 = opts.get("sp_wq0")
        if q0 is not None:
            k.srd(48, WQKV, D_*3*D_*2)
            e(f"s_add_u32 s61, s59, {q0*6144}")
            for n in range(((1024-q0)*6 + 127)//128): e("buffer_load_dwordx4 v[240:243], v3, s[48:51], s61 offen"); e(f"s_add_u32 s61, s61, {128*1024}")
        e(f"s_add_u32 s61, s59, {r0*7168}")
        e(f"s_mov_b32 s62, {max(1, ((2048-r0)*7 + 127)//128)}"); e("a_spl:")
        e("buffer_load_dwordx4 v[240:243], v3, s[24:27], s61 offen"); e(f"s_add_u32 s61, s61, {128*1024}"); e(f"s_waitcnt vmcnt({opts.get('sp_depth', 16)})")
        e("s_sub_u32 s62, s62, 1"); e("s_cmp_lg_u32 s62, 0"); e("s_cbranch_scc1 a_spl")
        k.srd(48, WO, D_*D_*2)
        e("s_mov_b32 s61, s59")
        for n in range(16): e("buffer_load_dwordx4 v[240:243], v3, s[48:51], s61 offen"); e(f"s_add_u32 s61, s61, {128*1024}")
        if opts.get("sp_w2", 0):
            e("s_load_dwordx2 s[12:13], s[0:1], 56"); e("s_waitcnt lgkmcnt(0)")
            k.srd(24, 12, S_*F_*2)
            e(f"s_mov_b32 s62, {opts.get('sp_w2', 0)}"); e("a_spl2:")
            e("buffer_load_dwordx4 v[240:243], v3, s[24:27], s59 offen"); e(f"s_add_u32 s59, s59, {128*1024}"); e(f"s_waitcnt vmcnt({opts.get('sp_depth', 16)})")
            e("s_sub_u32 s62, s62, 1"); e("s_cmp_lg_u32 s62, 0"); e("s_cbranch_scc1 a_spl2")
    e(f"s_mov_b32 s39, {WS_FLAGO + 0x4000:#x}")
    if stamps: stamp_store(e, (80, 82, 82, 82, 82, 86, 86, 86), WS_STAMP, "")
    gen_b2(opts, k)
    e("a_end:")
    return k

def gen_b2(opts, k):
    NS = opts.get("NSb", 5)
    c = GemmCfg(128, 2, NS, 64)
    e = k.e
    stamps = opts.get("stamps", False)
    NT = ""
    W2, B2 = 72, 74
    e("b_entry:")
    e("s_load_dwordx4 s[72:75], s[0:1], 56")
    if stamps: e("s_memrealtime s[80:81]")
    e("s_mov_b32 s92, s2")
    e("v_lshrrev_b32 v1, 6, v0"); e("v_and_b32 v2, 63, v0"); e("v_lshlrev_b32 v3, 4, v2")
    e("s_lshr_b32 s56, s2, 3")
    e("v_readfirstlane_b32 s3, v1")
    e("s_and_b32 s52, s2, 1")
    if opts.get("bmap", "8d4s") == "8d4s":
        e("s_lshr_b32 s54, s56, 2")
        e("s_bfe_u32 s55, s2, 0x20001"); e("s_lshl_b32 s55, s55, 2"); e("s_and_b32 s60, s56, 3"); e("s_add_u32 s55, s55, s60")
    else:
        e("s_bfe_u32 s54, s2, 0x10001"); e("s_lshl_b32 s54, s54, 2"); e("s_and_b32 s60, s56, 3"); e("s_add_u32 s54, s54, s60")
        e("s_bfe_u32 s55, s2, 0x10002"); e("s_lshl_b32 s55, s55, 3"); e("s_lshr_b32 s60, s56, 2"); e("s_add_u32 s55, s55, s60")
    e("s_waitcnt lgkmcnt(0)")
    e("s_cmp_lt_u32 s3, 4"); e("s_cbranch_scc1 b_cons")
    assert NS == 5
    n2 = opts.get("n2", 30); n1 = 56 - n2
    k.srd(24, W2, F_*S_*2)
    k.srd(20, WO, D_*D_*2)
    e("s_sub_u32 s3, s3, 4")
    e("s_lshl_b32 s30, s3, 11")
    e("s_lshl_b32 s31, s3, 10"); e(f"s_add_u32 s31, s31, {c.PB}")
    e("s_mov_b32 s32, s30"); e("s_mov_b32 s33, s31")
    fl = None
    fl3 = (" sc1", opts.get("nt3", "")); fl4 = (" sc1", "")
    R3 = dict(vP=[3, 9], vT=list(range(24, 28)), sP=28, sT=29, srdP=16, srdT=24, sBase=30, sLds=32, sStage=34, sCnt=35, stepP=8*D_*16, stepT=64*S_*2)
    R4 = dict(R3, vP=[3, 13], vT=list(range(32, 36)), sP=36, sT=37, srdT=20, stepP=8*S_*16, stepT=64*D_*2)
    def setup3():
        lane_T_dma_off(e, 16, 24, 2, 6, S_*2, 3)
        for n in range(1, 4):
            sg, kg = divmod(n, 2); e(f"v_add_u32 v{24+n}, {sg*128 + kg*32*S_*2}, v24")
        e("s_cmp_eq_u32 s52, 0"); e(f"s_cselect_b32 s62, {n2}, 0")
        e(f"s_mul_i32 s29, s62, {64*4096}"); e("s_lshl_b32 s60, s55, 8"); e("s_add_u32 s29, s29, s60")
        e(f"v_add_u32 v9, {4*D_*16}, v3")
        e("s_lshl_b32 s28, s62, 3"); e("s_add_u32 s28, s28, s3"); e("s_lshl_b32 s28, s28, 14"); e("s_lshl_b32 s60, s54, 11"); e("s_add_u32 s28, s28, s60")
        e(f"s_add_u32 s28, s28, {WS_UT:#x}")
    def start(R, lab_cnt):
        for t in range(NS): producer_issue(e, c, R, fl3, "P", t*c.SB)
        e("s_mov_b32 s34, 0")
        e("s_waitcnt vmcnt(16)"); e("s_barrier")
        for wn_ in (12, 16, 20):
            e(f"s_waitcnt vmcnt({wn_})"); e("s_barrier")
            producer_issue(e, c, R, fl3 if R is R3 else fl4); ring_advance(e, c, R)
    def loop(R, lab):
        e(f"{lab}:")
        e("s_waitcnt vmcnt(24)"); e("s_barrier")
        producer_issue(e, c, R, fl3 if R is R3 else fl4); ring_advance(e, c, R)
        e("s_sub_u32 s35, s35, 1"); e("s_cmp_lg_u32 s35, 0"); e(f"s_cbranch_scc1 {lab}")
    e("s_cmp_eq_u32 s52, 0"); e("s_cbranch_scc1 b_ld0")
    setup3()
    for t in range(NS): producer_issue(e, c, R3, fl3, "T", t*c.SB)
    nsw = opts.get("sw2", 0)
    def sweep2():
        if nsw:
            e("s_lshr_b32 s60, s2, 1"); e("s_lshl_b32 s60, s60, 2"); e("s_add_u32 s60, s60, s3"); e("s_lshl_b32 s60, s60, 10"); e(f"s_add_u32 s60, s60, {(28-nsw)*512*1024}")
            for n in range(nsw): e("buffer_load_dwordx4 v[240:243], v3, s[24:27], s60 offen"); e(f"s_add_u32 s60, s60, {512*1024}")
    if opts.get("sw2pos", "pre") == "pre": sweep2()
    e(f"v_min_u32 v8, {n2//2-1}, v2"); e("v_lshlrev_b32 v8, 7, v8")
    e("s_lshr_b32 s38, s54, 1"); e("s_mul_i32 s38, s38, 28"); e("s_lshl_b32 s38, s38, 7"); e(f"s_add_u32 s38, s38, {WS_FLAGU:#x}")
    e("s_barrier")
    if opts.get("sw2pos", "pre") == "post": sweep2()
    poll_tok(k, 8, 16, "s38", 0xffffff, 10, sleep=1)
    start(R3, 0)
    e(f"s_mov_b32 s35, {n2 - 8}")
    e("s_branch b_l3")
    e("b_ld0:")
    lane_T_dma_off(e, 16, 32, 2, 6, D_*2, 3)
    for n in range(1, 4):
        sg, kg = divmod(n, 2); e(f"v_add_u32 v{32+n}, {sg*128 + kg*32*D_*2}, v32")
    e("s_lshl_b32 s37, s54, 8")
    for t in range(NS): producer_issue(e, c, R4, fl4, "T", t*c.SB)
    e(f"v_add_u32 v13, {4*S_*16}, v3")
    e("s_lshl_b32 s36, s3, 15"); e("s_lshl_b32 s60, s55, 11"); e("s_add_u32 s36, s36, s60"); e(f"s_add_u32 s36, s36, {WS_OT:#x}")
    setup3()
    e("v_lshlrev_b32 v8, 7, v2"); e("s_lshr_b32 s38, s55, 1"); e("s_lshl_b32 s38, s38, 11"); e(f"s_add_u32 s38, s38, {WS_FLAGO:#x}")
    e("s_barrier")
    poll_tok(k, 8, 16, "s38", 0xffff, 10, sleep=1)
    start(R4, 0)
    e("s_mov_b32 s35, 8")
    loop(R4, "b_l4")
    e(f"s_mov_b32 s35, {n1}")
    loop(R3, "b_l3")
    for wn_ in (24, 16, 8, 0, 0):
        e(f"s_waitcnt vmcnt({wn_})"); e("s_barrier")
    e("s_endpgm")
    e("b_cons:")
    e(f"v_mov_b32 v92, s{TOK}"); e(f"v_mov_b32 v93, s{TOK+1}"); e("v_mov_b32 v94, 0")
    e("s_barrier")
    e("s_cmp_lg_u32 s3, 0"); e("s_cbranch_scc1 b_nf")
    e(lane0("buffer_store_dwordx2 v[92:93], v94, s[16:19], s39 offen sc1"))
    e("b_nf:")
    e("s_lshr_b32 s57, s3, 1"); e("s_and_b32 s58, s3, 1")
    k.srd(24, B2, S_*2)
    k.srd(20, OUT, S_*D_*2)
    e("v_and_b32 v15, 15, v2"); e("v_lshrrev_b32 v14, 4, v2")
    e("s_lshl_b32 s60, s55, 7"); e("s_lshl_b32 s61, s58, 5"); e("s_add_u32 s60, s60, s61"); e("v_add_u32 v8, s60, v15")
    e("v_lshlrev_b32 v9, 2, v8"); e("v_lshlrev_b32 v8, 1, v8")
    e(f"s_mov_b32 s47, {WS_G:#x}")
    GO, BO = 80, 88
    gld = [f"buffer_load_dword v{GO+2*j}, v9, s[16:19], s47 offen offset:{((j//2)*64 + (j%2)*16)*4} sc1" for j in range(4)]
    stb = ["s_memrealtime s[98:99]", "s_memtime s[94:95]", "s_waitcnt lgkmcnt(0)"] if stamps else []
    gfin = ["s_waitcnt vmcnt(0)"] + [f"v_sub_f32 v{GO+2*j}, 1.0, v{GO+2*j}" for j in range(4)]
    for j in range(4):
        e(f"buffer_load_ushort v{BO+j}, v8, s[24:27], 0 offen offset:{((j//2)*64 + (j%2)*16)*2}")
    acc = [[96 + (i*4+j)*4 for j in range(4)] for i in range(4)]
    e("v_lshlrev_b32 v4, 11, v14"); e("v_lshl_add_u32 v4, v15, 4, v4")
    e("v_mov_b32 v5, v4")
    e("s_lshl_b32 s60, s57, 10"); e("v_add_u32 v4, s60, v4")
    lane_T_read_off(e, 16, 10, 2, 12, 13)
    e("s_lshl_b32 s60, s58, 6"); e("v_xor_b32 v6, s60, v10"); e("v_xor_b32 v7, 32, v6")
    e("s_waitcnt vmcnt(0)")
    e("s_cmp_eq_u32 s52, 1"); e("s_cselect_b32 s60, -65536, 0")
    for j in range(4):
        e(f"v_lshlrev_b32 v{BO+j}, 16, v{BO+j}"); e(f"v_and_b32 v{BO+j}, s60, v{BO+j}")
        for i in range(4):
            for q in range(4): e(f"v_mov_b32 v{acc[i][j]+q}, v{BO+j}")
    p_off = [(0, kk*8192 + i*256) for kk in range(2) for i in range(4)]
    t_desc = [(j % 2, c.PB + (j//2)*8192 + kk*4096) for kk in range(2) for j in range(4)]
    order = [(kk*4+i, kk*4+j, i, j) for kk in range(2) for i in range(4) for j in range(4)]
    pbufs = [16 + 4*i for i in range(8)]; tbufs = [48 + 4*j for j in range(8)]
    if stamps: e("s_memrealtime s[82:83]")
    e("s_cmp_eq_u32 s52, 0"); e("s_cbranch_scc1 b_cons0")
    consumer_loop(k, c, [(2, gld + stb), (n2-2, gfin)], 16, 8, 8, p_off, t_desc, acc, pbufs, tbufs, [4], [6, 7], True, order, 36, 37, 38, rpg=1, bar_pos=18)
    e("s_waitcnt lgkmcnt(0)"); e("s_nop 3")
    for j in range(4):
        for i in range(4):
            for q in (0, 2):
                a = acc[i][j] + q
                e(f"v_pk_mul_f32 v[{a}:{a+1}], v[{a}:{a+1}], v[{GO+2*j}:{GO+2*j+1}] op_sel_hi:[1,0]")
    e("s_branch b_exch")
    e("b_cons0:")
    e(f"v_min_u32 v95, {n1//2-1}, v2"); e("v_lshlrev_b32 v95, 7, v95")
    e("s_lshr_b32 s46, s54, 1"); e("s_mul_i32 s46, s46, 28"); e(f"s_add_u32 s46, s46, {n2//2}"); e("s_lshl_b32 s46, s46, 7"); e(f"s_add_u32 s46, s46, {WS_FLAGU:#x}")
    e("s_lshl_b32 s60, s58, 9"); e("v_add_u32 v5, s60, v5")
    e("s_lshl_b32 s60, s57, 13"); e("v_add_u32 v10, s60, v10")
    for q in range(1, 4): e(f"v_xor_b32 v{10+q}, {32*q}, v10")
    chk = Kern("tmp", 0, 0, 0); chk.name = "bo"
    chk.e("s_waitcnt vmcnt(0)"); chk.e(f"v_cmp_ne_u64 vcc, s[{TOK}:{TOK+1}], v[224:225]"); chk.e("s_nop 4"); chk.e("s_cbranch_vccz b_ook")
    poll_tok(chk, 95, 16, "s46", None, 224, sleep=1)
    chk.e("b_ook:")
    p_off4 = [(0, kk*8192 + (j//2)*1024 + (j%2)*256) for kk in range(2) for j in range(4)]
    t_desc4 = [(i, c.PB + kk*4096) for kk in range(2) for i in range(4)]
    order4 = [(kk*4+j, kk*4+i, i, j) for kk in range(2) for j in range(4) for i in range(4)]
    consumer_loop(k, c, [(9, ["buffer_load_dwordx2 v[224:225], v95, s[16:19], s46 offen sc1"]), (2, chk.lines + gld), (5, [])], 16, 8, 8, p_off4, t_desc4, acc, pbufs, tbufs,
                  [5], [10, 11, 12, 13], False, order4, 36, 37, 38, rpg=1, bar_pos=18)
    if stamps: e("s_memrealtime s[88:89]")
    slot = 16 % NS
    for v in (4, 6, 7): e(f"v_add_u32 v{v}, {slot*c.SB}, v{v}")
    e("s_waitcnt lgkmcnt(0)"); e("s_nop 4")
    for r in range(0, 64, 2):
        e(f"v_mov_b64 v[{160+r}:{161+r}], v[{96+r}:{97+r}]"); e(f"v_mov_b64 v[{96+r}:{97+r}], 0")
    for l in stb: e(l)
    consumer_loop(k, c, [(n1, gfin)], 16, 8, 8, p_off, t_desc, acc, pbufs, tbufs, [4], [6, 7], True, order, 36, 37, 38, rpg=1, bar_pos=18, slot0=slot)
    e("s_waitcnt lgkmcnt(0)"); e("s_nop 3")
    for j in range(4):
        for i in range(4):
            for q in (0, 2):
                a = acc[i][j] + q
                e(f"v_pk_fma_f32 v[{a}:{a+1}], v[{a}:{a+1}], v[{GO+2*j}:{GO+2*j+1}], v[{a+64}:{a+65}] op_sel_hi:[1,0,1]")
    e("b_exch:")
    if stamps: e("s_memrealtime s[84:85]"); e("s_memtime s[96:97]"); e("s_waitcnt lgkmcnt(0)"); e("s_sub_u32 s93, s96, s94"); e("s_sub_u32 s88, s98, 0"); e("s_sub_u32 s98, s84, s98")
    e("s_lshl_b32 s60, s2, 2"); e("s_add_u32 s60, s60, s3"); e("s_lshl_b32 s60, s60, 13"); e(f"s_add_u32 s60, s60, {gen2.WS_PART:#x}")
    e("s_add_u32 s61, s60, 4096")
    e("s_xor_b32 s62, s60, 0x8000"); e("s_add_u32 s63, s62, 4096")
    e("s_lshl_b32 s40, s2, 10"); e("s_lshl_b32 s41, s3, 7"); e("s_add_u32 s40, s40, s41"); e(f"s_add_u32 s40, s40, {WS_FLAG:#x}"); e("s_xor_b32 s41, s40, 0x400")
    e("v_mov_b32 v8, 0"); e("v_mov_b32 v9, 1")
    xb = opts.get("xbf16", False)
    def exch(hk, lab):
        snd = [acc[i][2*(1-hk)+jj] for jj in range(2) for i in range(4)]
        keep = [acc[i][2*hk+jj] for jj in range(2) for i in range(4)]
        if xb:
            for n, a in enumerate(snd):
                e(f"v_cvt_pk_bf16_f32 v{64+2*n}, v{a}, v{a+1}"); e(f"v_cvt_pk_bf16_f32 v{65+2*n}, v{a+2}, v{a+3}")
                if n % 2: e(f"buffer_store_dwordx4 v[{62+2*n}:{65+2*n}], v3, s[16:19], s60 offen offset:{(n//2)*1024} sc1")
        else:
            for n, a in enumerate(snd):
                e(f"buffer_store_dwordx4 v[{a}:{a+3}], v3, s[16:19], s{60 + n//4} offen offset:{(n%4)*1024} sc1")
        e("s_waitcnt vmcnt(0)")
        e(lane0("buffer_store_dwordx2 v[92:93], v94, s[16:19], s40 offen sc1"))
        poll_tok(k, 94, 16, "s41", None, 10, sleep=1, cnt=47)
        if xb:
            for n in range(4):
                e(f"buffer_load_dwordx4 v[{16+4*n}:{19+4*n}], v3, s[16:19], s62 offen offset:{n*1024} sc1")
            e("s_mov_b32 s63, 0xffff0000")
            for n, a in enumerate(keep):
                if n % 2 == 0: e(f"s_waitcnt vmcnt({3-n//2})")
                for h in range(2):
                    src = 16 + 2*n + h
                    e(f"v_lshlrev_b32 v32, 16, v{src}"); e(f"v_and_b32 v33, s63, v{src}")
                    e(f"v_pk_add_f32 v[{a+2*h}:{a+2*h+1}], v[{a+2*h}:{a+2*h+1}], v[32:33]")
        else:
            for n in range(8):
                e(f"buffer_load_dwordx4 v[{16+4*n}:{19+4*n}], v3, s[16:19], s{62 + n//4} offen offset:{(n%4)*1024} sc1")
            for n, a in enumerate(keep):
                e(f"s_waitcnt vmcnt({7-n})")
                for q in (0, 2): e(f"v_pk_add_f32 v[{a+q}:{a+q+1}], v[{a+q}:{a+q+1}], v[{16+4*n+q}:{17+4*n+q}]")
        for i in range(4):
            for jj in range(2):
                a = acc[i][2*hk+jj]; o = 48 + i*4 + jj*2
                e(f"v_cvt_pk_bf16_f32 v{o}, v{a}, v{a+1}"); e(f"v_cvt_pk_bf16_f32 v{o+1}, v{a+2}, v{a+3}")
    e("s_cmp_eq_u32 s52, 0"); e("s_cbranch_scc0 b_ex1")
    exch(0, "b_ex0")
    e("s_branch b_fin")
    e("b_ex1:")
    exch(1, "b_ex1")
    e("b_fin:")
    e("v_and_b32 v8, 31, v2"); e("v_lshlrev_b32 v8, 11, v8"); e("v_lshrrev_b32 v9, 5, v2"); e("v_lshl_add_u32 v8, v9, 4, v8")
    e("s_lshl_b32 s60, s55, 2"); e("s_lshl_b32 s61, s52, 1"); e("s_add_u32 s60, s60, s61"); e("s_add_u32 s60, s60, s58"); e("s_lshl_b32 s60, s60, 16")
    e("s_lshl_b32 s61, s54, 8"); e("s_add_u32 s60, s60, s61"); e("s_lshl_b32 s61, s57, 7"); e("s_add_u32 s60, s60, s61")
    for i in range(4):
        o = 48 + i*4
        e(f"v_permlane16_swap_b32 v{o}, v{o+2}"); e(f"v_permlane16_swap_b32 v{o+1}, v{o+3}")
    for i in range(4):
        o = 48 + i*4
        e(f"buffer_store_dwordx4 v[{o}:{o+3}], v8, s[20:23], s60 offen offset:{i*32}{opts.get('ost', '')}")
    if stamps: stamp_store(e, (80, 82, 84, 86, 88, 86, 93, 98), WS_STAMP + 0x10000, "")

if __name__ == "__main__":
    out = sys.argv[1]
    opts = eval("dict(" + (sys.argv[2] if len(sys.argv) > 2 else "") + ")")
    write_file(out, [gen_a(dict(dict(ust=' sc1', ost=' nt', xbf16=True, pf_wq=False, pf_g2=8, sp_row0=672), **opts))], single=True)
```

```python
import sys
from gen import *
import gen2, gen3, gen4
from gen2 import spin_until, softmax_units, DBG, WS, X, WQKV, WPHI, WO, W1, B1, GW, OUT, WS_KVP, NQ
from gen3 import Stream, Work, WS_KVF
from gen4 import lane0, HP

WS_SIZE = 0x8000000
WS_FLAGL = 0x14E0000
WS_FLAG1 = 0x14C0000
WS_FLAG2 = 0x14D0000
WS_FLAGU = 0x14F0000
WS_FLAGO = 0x14F8000
TOK = 44

def poll_tok(k, vaddr, srd, soff, nl_mask, vd, sleep=4, cnt=63):
    e = k.e
    L = k.lab("pt"); Lok = k.lab("ptok")
    if nl_mask is not None: e(f"s_mov_b32 exec_lo, {nl_mask:#x}"); e("s_mov_b32 exec_hi, 0")
    e(f"s_mov_b32 s{cnt}, 0x40000")
    e(f"{L}:")
    vs = vaddr if isinstance(vaddr, list) else [vaddr]
    for n, va in enumerate(vs):
        e(f"buffer_load_dwordx2 v[{vd+2*n}:{vd+1+2*n}], v{va}, s[{srd}:{srd+3}], {soff} offen sc1")
    e("s_waitcnt vmcnt(0)")
    e(f"v_cmp_ne_u64 vcc, s[{TOK}:{TOK+1}], v[{vd}:{vd+1}]")
    for n in range(1, len(vs)):
        e(f"v_cmp_ne_u64 s[60:61], s[{TOK}:{TOK+1}], v[{vd+2*n}:{vd+1+2*n}]"); e("s_or_b64 vcc, vcc, s[60:61]")
    e(f"s_sub_u32 s{cnt}, s{cnt}, 1"); e(f"s_cbranch_scc1 {Lok}")
    e(f"s_cbranch_vccz {Lok}")
    e(f"s_sleep {sleep}")
    e(f"s_branch {L}")
    e(f"{Lok}:")
    if nl_mask is not None: e("s_mov_b64 exec, -1")

def get_token(k, vz, vd):
    e = k.e
    L = k.lab("tk"); Lok = k.lab("tkok")
    e("s_mov_b32 s63, 0x8000")
    e(f"{L}:")
    e(f"buffer_load_dwordx2 v[{vd}:{vd+1}], v{vz}, s[40:43], 0 offen sc1"); e("s_waitcnt vmcnt(0)")
    e(f"v_readfirstlane_b32 s{TOK}, v{vd}"); e(f"v_readfirstlane_b32 s{TOK+1}, v{vd+1}")
    e("s_sub_u32 s63, s63, 1"); e(f"s_cbranch_scc1 {Lok}")
    e(f"s_cmp_eq_u32 s{TOK}, 0"); e(f"s_cbranch_scc1 {L}")
    e(f"{Lok}:")

_sl = [0]
DBGST = []
def stamp_store(e, regs, base, endlab, cond="v0"):
    _sl[0] += 1; endlab = f"stl{_sl[0]}"
    if DBGST:
        e("s_waitcnt vmcnt(0)")
        e("s_memrealtime s[86:87]"); e("s_waitcnt lgkmcnt(0)")
        slot = DBGST.pop(0)
        e("v_mov_b32 v7, 0")
        e(f"v_cmp_eq_u32 vcc, 0, {cond}"); e("s_and_saveexec_b64 s[60:61], vcc"); e(f"s_cbranch_execz {endlab}")
        for n, (sr, w) in enumerate(slot):
            e(f"s_sub_u32 s62, s{sr}, s{TOK}"); e(f"v_mov_b32 v{16+n}, s62"); e(f"global_atomic_smax v7, v{16+n}, s[4:5] offset:{128 + w*4}" if False else f"global_atomic_smax v7, v{16+n}, s[4:5] offset:{w*4}")
        e(f"{endlab}:"); e("s_mov_b64 exec, -1")
        return
    e("s_waitcnt vmcnt(0)")
    e("s_memrealtime s[86:87]"); e("s_waitcnt lgkmcnt(0)")
    for n, sr in enumerate(regs): e(f"v_mov_b32 v{16+n}, s{sr}")
    e("s_lshl_b32 s60, s92, 5"); e(f"s_add_u32 s60, s60, {base:#x}"); e("v_mov_b32 v7, s60")
    e(f"v_cmp_eq_u32 vcc, 0, {cond}"); e("s_and_saveexec_b64 s[60:61], vcc"); e(f"s_cbranch_execz {endlab}")
    e(f"global_store_dwordx4 v7, v[16:19], s[{WS}:{WS+1}]")
    e(f"global_store_dwordx4 v7, v[20:23], s[{WS}:{WS+1}] offset:16")
    e(f"{endlab}:"); e("s_mov_b64 exec, -1")

def ln_rows1(e, XR, m, sli):
    XF, GF, A = 144, 104, 120
    for r in range(2):
        for i in range(8):
            e(f"v_lshlrev_b32 v{XF+16*r+2*i}, 16, v{XR+8*r+i}"); e(f"v_and_b32 v{XF+1+16*r+2*i}, s36, v{XR+8*r+i}")
    e(f"v_readfirstlane_b32 s12, v{XF}"); e(f"v_readfirstlane_b32 s14, v{XF+16}")
    for r in range(2):
        b = XF + 16*r
        e(f"v_pk_mul_f32 v[{A+8+2*r}:{A+9+2*r}], v[{b}:{b+1}], v[{GF}:{GF+1}]")
    e("s_mov_b32 s13, s12"); e("s_mov_b32 s15, s14")
    for i in range(2, 16, 2):
        for r in range(2):
            b = XF + 16*r
            e(f"v_pk_fma_f32 v[{A+8+2*r}:{A+9+2*r}], v[{b+i}:{b+i+1}], v[{GF+i}:{GF+i+1}], v[{A+8+2*r}:{A+9+2*r}]")
    for i in range(0, 16, 2):
        for r in range(2):
            b = XF + 16*r
            e(f"v_pk_add_f32 v[{b+i}:{b+i+1}], v[{b+i}:{b+i+1}], s[{12+2*r}:{13+2*r}] neg_lo:[0,1] neg_hi:[0,1]")
    for r in range(2):
        b = XF + 16*r
        e(f"v_pk_add_f32 v[{A+2*r}:{A+1+2*r}], v[{b}:{b+1}], v[{b+2}:{b+3}]")
        e(f"v_pk_mul_f32 v[{A+4+2*r}:{A+5+2*r}], v[{b}:{b+1}], v[{b}:{b+1}]")
    for i in range(2, 16, 2):
        for r in range(2):
            b = XF + 16*r
            if i >= 4: e(f"v_pk_add_f32 v[{A+2*r}:{A+1+2*r}], v[{A+2*r}:{A+1+2*r}], v[{b+i}:{b+i+1}]")
            e(f"v_pk_fma_f32 v[{A+4+2*r}:{A+5+2*r}], v[{b+i}:{b+i+1}], v[{b+i}:{b+i+1}], v[{A+4+2*r}:{A+5+2*r}]")
    for n in range(6): e(f"v_add_f32 v{A+2*n}, v{A+2*n}, v{A+1+2*n}")
    dpp_reduce_sum_multi(e, [A+2*n for n in range(6)])
    e("s_nop 1")
    for n in range(6): e(f"v_readlane_b32 s{28+n}, v{A+2*n}, 63")
    e(f"s_mov_b32 s37, {f32(1.0/1024)}"); e(f"v_mov_b32 v{A+1}, {f32(1e-5)}")
    for r in range(2): e(f"v_mov_b32 v{A+2*r}, s{28+r}"); e(f"v_mov_b32 v{A+4+2*r}, s{30+r}")
    e(f"v_mov_b32 v{A+8}, s32"); e(f"v_mov_b32 v{A+9}, s33"); e("v_cmp_eq_u32 vcc, 1, v2")
    for r in range(2): e(f"v_mul_f32 v{A+2*r}, s37, v{A+2*r}"); e(f"v_fma_f32 v{A+4+2*r}, v{A+4+2*r}, s37, v{A+1}")
    e(f"v_cndmask_b32 v{A+8}, v{A+8}, v{A+9}, vcc")
    for r in range(2): e(f"v_fma_f32 v{A+4+2*r}, -v{A+2*r}, v{A+2*r}, v{A+4+2*r}")
    e(f"v_mul_f32 v{A+8}, {f32(-LOG2E)}, v{A+8}")
    for r in range(2): e(f"v_max_f32 v{A+4+2*r}, v{A+4+2*r}, v{A+1}")
    e(f"v_exp_f32 v{A+8}, v{A+8}")
    for r in range(2): e(f"v_rsq_f32 v{A+4+2*r}, v{A+4+2*r}")
    e(f"v_add_f32 v{A+8}, 1.0, v{A+8}")
    for r in range(2): e(f"v_mul_f32 v{A+2*r}, v{A+2*r}, v{A+4+2*r}")
    e(f"v_rcp_f32 v{A+8}, v{A+8}")
    for r in range(2):
        b = XF + 16*r
        for i in range(0, 16, 2):
            e(f"v_pk_fma_f32 v[{b+i}:{b+i+1}], v[{b+i}:{b+i+1}], v[{A+4+2*r}:{A+5+2*r}], v[{A+2*r}:{A+1+2*r}] op_sel_hi:[1,0,0] neg_lo:[0,0,1] neg_hi:[0,0,1]")
        for i in range(8): e(f"v_cvt_pk_bf16_f32 v{XR+8*r+i}, v{b+2*i}, v{b+2*i+1}")
        for hh in range(2): e(f"ds_write_b128 v22, v[{XR+8*r+4*hh}:{XR+8*r+4*hh+3}] offset:{(2*m+r)*HP + hh*1024}")
    e(f"v_lshlrev_b32 v{A+9}, 2, v2"); e(f"s_lshl_b32 s37, s{sli}, 6"); e("s_lshl_b32 s38, s3, 4"); e("s_add_u32 s37, s37, s38"); e(f"s_add_u32 s37, s37, {WS_G + 8*m:#x}")
    e("s_mov_b64 exec, 3"); e(f"buffer_store_dword v{A+8}, v{A+9}, s[16:19], s37 offen sc1"); e("s_mov_b64 exec, -1")

def gen_a(opts):
    if opts.get("dbgst"):
        DBGST.extend([[(84, 2), (90, 3), (86, 4)], [(82, 5), (84, 6), (88, 7), (86, 8)], [(84, 9), (86, 10)], [(82, 11), (84, 12), (86, 13)]])
    c2 = GemmCfg(256, 2, 6, 32)
    k = Kern("gated_mix__linear_kernel_hedgehog__mixer_token_mlp__prompt_kernel", 256, 512, 160*1024, vgpr=256, sgpr=100)
    e = k.e
    stamps = opts.get("stamps", False)
    pf = opts.get("pf", True)
    e("s_cmp_ge_u32 s2, 256"); e("s_cbranch_scc1 a_end")
    e("s_load_dwordx8 s[64:71], s[0:1], 0")
    e("s_load_dwordx4 s[72:75], s[0:1], 40")
    e("s_load_dwordx4 s[76:79], s[0:1], 72")
    e("s_load_dwordx4 s[4:7], s[0:1], 88")
    e("s_load_dwordx2 s[12:13], s[0:1], 56")
    e(f"s_memrealtime s[{TOK}:{TOK+1}]")
    e("s_mov_b32 s92, s2")
    e("v_lshrrev_b32 v1, 6, v0"); e("v_and_b32 v2, 63, v0"); e("v_lshlrev_b32 v3, 4, v2")
    e("s_lshr_b32 s56, s2, 3"); e("s_and_b32 s57, s2, 7")
    e("v_readfirstlane_b32 s3, v1")
    e("v_mov_b32 v14, 0")
    e("s_waitcnt lgkmcnt(0)")
    if stamps: e(f"s_mov_b32 s80, s{TOK}")
    k.srd(16, WS, WS_SIZE)
    k.srd(40, DBG, 256)
    k.srd(20, X, S_*D_*2)
    e("s_lshl_b32 s60, s2, 3"); e("s_add_u32 s60, s60, s3"); e("s_cmp_lg_u32 s60, 7"); e("s_cbranch_scc1 a_ntp")
    e(f"s_or_b32 s{TOK}, s{TOK}, 1"); e(f"v_mov_b32 v4, s{TOK}"); e(f"v_mov_b32 v5, s{TOK+1}")
    e(lane0("buffer_store_dwordx2 v[4:5], v14, s[40:43], 0 offen sc1"))
    e("a_ntp:")
    e("s_lshr_b32 s58, s57, 1")
    e("s_and_b32 s60, s57, 1"); e("s_cmp_eq_u32 s60, 1"); e("s_cbranch_scc1 a_bchain")
    e("s_and_b32 s52, s56, 7")
    e("s_lshl_b32 s53, s58, 2"); e("s_lshr_b32 s60, s56, 3"); e("s_add_u32 s53, s53, s60")
    e("s_cmp_lt_u32 s3, 4"); e("s_cbranch_scc1 a_g1c")
    st = Stream(k)
    k.srd(24, WQKV, D_*3*D_*2)
    e("s_sub_u32 s3, s3, 4")
    e("v_lshrrev_b32 v7, 3, v2")
    e("s_lshl_b32 s60, s3, 6"); e("v_add_u32 v4, s60, v7"); e("v_lshlrev_b32 v4, 11, v4")
    e("v_lshrrev_b32 v5, 1, v7"); e("v_xor_b32 v5, v5, v2"); e("v_and_b32 v5, 7, v5")
    e("v_lshl_add_u32 v16, v5, 4, v4")
    e("v_xor_b32 v17, 64, v16"); e(f"v_add_u32 v17, {8*2048}, v17")
    for n in range(2, 8): e(f"v_add_u32 v{16+n}, {(n//2)*16*2048}, v{16+n%2}")
    lane_T_dma_off(e, 16, 24, 2, 6, 6144, 3)
    for n in (1, 2): e(f"v_add_u32 v{24+n}, {n*2048}, v24")
    e("s_lshl_b32 s9, s52, 19"); e("s_lshl_b32 s10, s53, 7")
    e("s_lshl_b32 s30, s3, 13"); e("s_lshl_b32 s31, s3, 10"); e(f"s_add_u32 s31, s31, {96*1024}")
    e(f"s_mul_i32 s14, s52, {opts.get('rotmul', 1)}")
    def issueP(n, half):
        if half == 0:
            st.e(f"s_add_u32 s11, s14, {n}\ns_and_b32 s11, s11, 15\ns_lshl_b32 s11, s11, 7\ns_add_u32 s28, s9, s11")
        for rb in range(4*half, 4*half+4):
            st.e(f"s_add_u32 m0, s30, {(n % 3)*32768 + rb*1024}\ns_nop 0\nbuffer_load_dwordx4 v{16+rb}, s[20:23], s28 offen lds")
        st.mark(f"P{n}")
    def issueT(t):
        st.e(f"s_lshl_b32 s11, s14, 1\ns_add_u32 s11, s11, {t}\ns_and_b32 s11, s11, 31\ns_mul_i32 s11, s11, {32*6144}\ns_add_u32 s29, s10, s11")
        for sg in range(3):
            st.e(f"s_add_u32 m0, s31, {(t % 5)*12288 + sg*4096}\ns_nop 0\nbuffer_load_dwordx4 v{24+sg}, s[24:27], s29 offen{opts.get('nt1', '')} lds")
        st.mark(f"T{t}")
    issueP(0, 0); issueP(0, 1); issueT(0); st.mark("S0"); issueT(1); issueP(1, 0); issueP(1, 1); issueT(2); issueT(3); issueP(2, 0); issueP(2, 1); issueT(4)
    k.srd(48, WPHI, 32*2048)
    e("s_lshl_b32 s60, s53, 12"); e("s_lshl_b32 s61, s3, 10"); e("s_add_u32 s60, s60, s61"); e(f"s_add_u32 m0, s61, {156*1024}"); e("s_nop 0")
    st.e("buffer_load_dwordx4 v3, s[48:51], s60 offen lds")
    k.srd(32, 12, F_*S_*2)
    e("s_lshl_b32 s61, s58, 5"); e("s_add_u32 s61, s61, s56"); e("s_lshl_b32 s61, s61, 2"); e("s_add_u32 s61, s61, s3"); e("s_lshl_b32 s61, s61, 10")
    t0, npc = opts.get("g1sw", (8, 0))
    sched = {}
    for n in range(npc): sched[t0 + n*(32-t0)//npc] = sched.get(t0 + n*(32-t0)//npc, 0) + 1
    st.e("@wait S0"); e("s_barrier")
    for t in range(32):
        if t + 1 < 32:
            st.e(f"@wait T{t+1}")
            if t % 2 == 1: st.e(f"@wait P{(t+1)//2}")
        e("s_barrier")
        if t + 5 < 32: issueT(t + 5)
        m = (t - 1) // 2 + 3
        if t >= 1 and m < 16: issueP(m, (t + 1) % 2)
        if t == 20: st.e("@vm tok buffer_load_dwordx2 v[12:13], v14, s[40:43], 0 offen sc1")
        for n in range(sched.get(t, 0)): st.e(f"buffer_load_dwordx4 v[240:243], v3, s[32:35], s61 offen\ns_add_u32 s61, s61, {512*1024}")
    e("s_lshr_b32 s54, s3, 1"); e("s_and_b32 s55, s3, 1"); e("s_lshl_b32 s59, s53, 1"); e("s_add_u32 s59, s59, s55")
    e("s_mul_i32 s60, s3, 12288"); e("v_add_u32 v8, s60, v3"); e(f"v_mov_b32 v9, {152*1024}")
    e("s_add_u32 s3, s3, 4"); e("s_mov_b32 s35, 1"); e("s_mov_b64 s[8:9], s[12:13]")
    e("s_waitcnt vmcnt(0)")
    e(f"v_readfirstlane_b32 s{TOK}, v12"); e(f"s_cmp_lg_u32 s{TOK}, 0"); e("s_cbranch_scc1 a_tkok")
    get_token(k, 14, 12)
    e("a_tkok:")
    e("ds_write_b64 v9, v[12:13]"); e("s_waitcnt lgkmcnt(0)")
    e("s_barrier")
    for n in range(4):
        for part in range(3): e(f"ds_read_b128 v[{64+24*n+4*part}:{64+24*n+4*part+3}], v8 offset:{(n*3+part)*1024}")
    e("s_waitcnt lgkmcnt(0)")
    e(f"v_readfirstlane_b32 s{TOK}, v12"); e(f"v_readfirstlane_b32 s{TOK+1}, v13")
    e("s_branch a_epi")
    e("a_g1c:")
    e("s_lshr_b32 s54, s3, 1"); e("s_and_b32 s55, s3, 1")
    e("s_lshl_b32 s59, s53, 1"); e("s_add_u32 s59, s59, s55")
    e("s_mov_b64 s[8:9], s[12:13]")
    acc = [[64 + (i*6+j)*4 for j in range(6)] for i in range(8)]
    for r in range(64, 256, 2): e(f"v_mov_b64 v[{r}:{r+1}], 0")
    e("v_and_b32 v8, 15, v2"); e("v_lshrrev_b32 v9, 4, v2")
    e("v_lshrrev_b32 v10, 1, v8"); e("v_xor_b32 v10, v10, v9")
    e("s_lshl_b32 s60, s54, 7"); e("v_add_u32 v4, s60, v8"); e("v_lshlrev_b32 v4, 7, v4"); e("v_lshl_add_u32 v4, v10, 4, v4")
    lane_T_read_off(e, 16, 6, 2, 8, 9)
    e("s_lshl_b32 s60, s55, 6"); e("v_xor_b32 v6, s60, v6"); e(f"v_add_u32 v6, {96*1024}, v6"); e("v_xor_b32 v7, 32, v6")
    p_off = [(0, i*2048) for i in range(8)]
    t_desc = [(j % 2, (j//2)*4096) for j in range(6)]
    order = [(2*a+b, j, 2*a+b, j) for a in range(4) for j in range(6) for b in range(2)]
    pbufs = [16 + 4*i for i in range(4)]; tbufs = [32 + 4*j for j in range(8)]
    ringT = ["s_cmp_eq_u32 s36, 4", "s_cselect_b32 s37, s39, 12288", "s_cselect_b32 s36, -1, s36", "s_add_u32 s36, s36, 1"]
    ringP = ["s_cmp_eq_u32 s32, 2", "s_cselect_b32 s33, s34, 0x8000", "s_cselect_b32 s32, -1, s32", "s_add_u32 s32, s32, 1"]
    salu = lambda s: ringT + (ringP if s % 2 else [])
    valu = lambda s: ["v_add_u32 v6, s37, v6", "v_add_u32 v7, s37, v7", "v_xor_b32 v4, 64, v4"] + (["v_add_u32 v4, s33, v4"] if s % 2 else [])
    tail = ["s_sub_u32 s38, s38, 1", "s_cmp_lg_u32 s38, 0"]
    ahead, body, U = build_consumer(None, 16, 8, 6, p_off, t_desc, acc, pbufs, tbufs, [4], [6, 7], lambda i, j: j >= 4, order,
                                    opts.get("bar1", 38), 1, salu, valu, tail, minU=2, salu_at=0)
    e(f"s_mov_b32 s39, {(-4*12288) & 0xffffffff:#x}"); e(f"s_mov_b32 s34, {(-2*32768) & 0xffffffff:#x}"); e("s_mov_b32 s36, 0"); e("s_mov_b32 s32, 0")
    if stamps: e("s_memrealtime s[82:83]")
    e("s_barrier")
    if stamps: e("s_memtime s[94:95]"); e("s_memrealtime s[98:99]")
    for l in ahead: e(l)
    e("s_waitcnt lgkmcnt(0)")
    e(f"s_mov_b32 s38, {32//U}"); e(".p2align 3"); e("a_g1loop:")
    for l in body: e(l)
    e("s_cbranch_scc1 a_g1loop")
    if stamps: e("s_memrealtime s[84:85]"); e("s_memtime s[96:97]"); e("s_waitcnt lgkmcnt(0)"); e("s_sub_u32 s93, s96, s94"); e("s_sub_u32 s98, s84, s98")
    e("s_waitcnt lgkmcnt(0)")
    Bk = lambda sb: 64 + 24*sb
    def cvt_units(sbs):
        for sb in sbs:
            B = Bk(sb)
            for n in range(8): e(f"v_cvt_pk_bf16_f32 v{B+n}, v{B+2*n}, v{B+2*n+1}")
        for p in sorted(set(sb//2 for sb in sbs)):
            for db in range(2):
                d = Bk(2*p+db) + 8
                for h in range(2):
                    a = Bk(2*p+h) + 16 + 4*db
                    e(f"v_cvt_pk_bf16_f32 v{d+2*h}, v{a}, v{a+1}"); e(f"v_cvt_pk_bf16_f32 v{d+2*h+1}, v{a+2}, v{a+3}")
    e("s_mul_i32 s60, s3, 12288"); e("v_add_u32 v8, s60, v3"); e(f"v_mov_b32 v9, {152*1024}")
    e("s_nop 4")
    cvt_units([4, 5, 6, 7])
    for n in range(4):
        for part in range(3): e(f"ds_write_b128 v8, v[{Bk(4+n)+4*part}:{Bk(4+n)+4*part+3}] offset:{(n*3+part)*1024}")
    cvt_units([0, 1, 2, 3])
    e("s_mov_b32 s35, 0")
    e("s_nop 0")
    e("s_waitcnt lgkmcnt(0)"); e("s_barrier")
    e("ds_read_b64 v[12:13], v9"); e("s_waitcnt lgkmcnt(0)")
    e(f"v_readfirstlane_b32 s{TOK}, v12"); e(f"v_readfirstlane_b32 s{TOK+1}, v13")
    if opts.get("estamp"): e("s_memrealtime s[82:83]")
    e("a_epi:")
    ne1 = opts.get("e1sw", 14)
    if ne1:
        k.srd(24, 8, F_*S_*2)
        e("s_lshl_b32 s60, s58, 5"); e("s_add_u32 s60, s60, s56"); e("s_lshl_b32 s60, s60, 3"); e("s_add_u32 s60, s60, s3"); e("s_lshl_b32 s60, s60, 10")
        if opts.get("e1lds"):
            e("s_lshl_b32 s61, s3, 10"); e(f"s_add_u32 m0, s61, {144*1024}"); e("s_nop 0")
            for n in range(ne1): e(f"buffer_load_dwordx4 v3, s[24:27], s60 offen lds"); e(f"s_add_u32 s60, s60, 0x100000")
        elif opts.get("e1skew"):
            e("s_cmp_lt_u32 s3, 4"); e("s_cbranch_scc1 a_sk"); e("s_sleep 64"); e("a_sk:")
        else:
            for n in range(ne1): e(f"buffer_load_dwordx4 v[4:7], v3, s[24:27], s60 offen"); e(f"s_add_u32 s60, s60, 0x100000")
    holes = [Bk(sb) + 12 + 4*n for sb in range(4) for n in range(3)]
    KVq = holes[0:9]; WPq = holes[9:11]
    PK, ST, EP, EF, ZB = 16, 48, 160, 224, 240
    e("v_lshrrev_b32 v8, 2, v2"); e("v_lshlrev_b32 v8, 6, v8"); e("v_and_b32 v9, 3, v2"); e("v_lshl_add_u32 v8, v9, 3, v8")
    e("s_lshl_b32 s60, s55, 11"); e(f"s_add_u32 s60, s60, {156*1024}"); e("v_add_u32 v8, s60, v8")
    for fb in range(2):
        for t in range(2): e(f"ds_read_b64_tr_b16 v[{WPq[fb]+2*t}:{WPq[fb]+2*t+1}], v8 offset:{t*1024 + fb*32}")
    e(f"s_mov_b32 s62, {f32(LOG2E)}"); e(f"s_mov_b32 s63, {f32(LOG2E)}")
    e("v_and_b32 v8, 15, v2"); e("v_lshrrev_b32 v9, 4, v2"); e("s_mul_i32 s34, s3, 10240"); e(f"s_add_u32 s34, s34, {48*1024}")
    e("v_mul_u32_u24 v10, 160, v8"); e("v_lshl_add_u32 v10, v9, 3, v10"); e("v_add_u32 v10, s34, v10")
    e("v_lshrrev_b32 v8, 2, v8"); e("v_lshl_add_u32 v8, v9, 2, v8"); e("v_mul_u32_u24 v11, 160, v8")
    def pmfma(off):
        for u in range(4):
            for fb in range(2):
                d = PK + (u*2+fb)*4; s = Bk(u) + off
                e(f"v_mfma_f32_16x16x32_bf16 v[{d}:{d+3}], v[{WPq[fb]}:{WPq[fb]+3}], v[{s}:{s+3}], 0")
    e("s_waitcnt lgkmcnt(0)")
    pmfma(4)
    e("v_and_b32 v8, 3, v2"); e("v_lshl_add_u32 v11, v8, 3, v11"); e("v_add_u32 v11, s34, v11"); e("v_mov_b32 v9, 0x3f803f80")
    for fbk in range(4):
        e(f"v_cmp_eq_u32 vcc, {fbk}, v8"); e("s_nop 1"); e(f"v_cndmask_b32 v{ZB+4*fbk}, 0, v9, vcc")
        for r in range(1, 4): e(f"v_mov_b32 v{ZB+4*fbk+r}, v{ZB+4*fbk}")
    units = [dict(x=[PK+u*8, PK+u*8+4], ep=EP+u*16, em=EP+8+u*16, st=ST+u*4, out=EP+u*16) for u in range(4)]
    softmax_units(e, units, 62, True)
    for u in range(4):
        o = units[u]["out"]
        for fbk in range(4): e(f"ds_write_b64 v10, v[{o+2*fbk}:{o+2*fbk+1}] offset:{u*16*160 + fbk*32}")
    pmfma(0)
    e("s_waitcnt lgkmcnt(0)")
    EFs = [EF, EP + 8]
    efq = [[EF + 4*n for n in range(4)], [EP+8, EP+12, EP+24, EP+28]]
    for p in range(2):
        for fbk in range(4):
            for t in range(2): e(f"ds_read_b64_tr_b16 v[{efq[p][fbk]+2*t}:{efq[p][fbk]+2*t+1}], v11 offset:{(2*p+t)*16*160 + fbk*32}")
    for p in range(2):
        for fbk in range(4):
            e(f"s_waitcnt lgkmcnt({14-8*p-2*fbk})")
            for db in range(3):
                d = KVq[fbk*2+db] if db < 2 else KVq[8]
                b = Bk(2*p+db) + 8 if db < 2 else ZB + 4*fbk
                cc = "0" if (p == 0 and (db < 2 or fbk == 0)) else f"v[{d}:{d+3}]"
                e(f"v_mfma_f32_16x16x32_bf16 v[{d}:{d+3}], v[{efq[p][fbk]}:{efq[p][fbk]+3}], v[{b}:{b+3}], {cc}")
    e("v_add_u32 v10, s34, v3")
    e("s_lshr_b32 s33, s3, 1"); e("s_lshr_b32 s61, s33, 1"); e("s_lshl_b32 s61, s61, 2"); e("s_and_b32 s60, s33, 1"); e("s_add_u32 s61, s61, s60"); e("s_lshl_b32 s61, s61, 10")
    e("s_mul_i32 s60, s55, 10240"); e("s_add_u32 s60, s60, s61"); e(f"s_add_u32 s60, s60, {48*1024}"); e("v_add_u32 v11, s60, v3"); e("v_add_u32 v15, 0xa000, v11")
    e("s_lshl_b32 s60, s59, 2"); e("s_add_u32 s60, s60, s33"); e("s_lshl_b32 s60, s60, 3")
    e(f"s_lshl_b32 s38, s60, 12"); e(f"s_add_u32 s38, s38, {WS_KVP:#x}"); e("s_lshl_b32 s37, s52, 12"); e("s_add_u32 s37, s37, s38")
    e("s_lshl_b32 s39, s60, 7"); e(f"s_add_u32 s39, s39, {WS_FLAG1:#x}"); e("s_lshl_b32 s36, s52, 7"); e("s_add_u32 s36, s36, s39")
    for qd in range(NQ): e(f"ds_write_b128 v10, v[{KVq[qd]}:{KVq[qd]+3}] offset:{qd*1024}")
    e("s_waitcnt lgkmcnt(0)"); e("s_barrier")
    if opts.get("estamp"): e("s_memrealtime s[94:95]"); e("s_waitcnt lgkmcnt(0)")
    if opts.get("dump"):
        e("s_lshl_b32 s60, s2, 3"); e("s_add_u32 s60, s60, s3"); e("s_lshl_b32 s60, s60, 15"); e("s_add_u32 s60, s60, 0x3000000")
        quads = [EP+u*16+h*4 for u in range(4) for h in range(2)] + efq[0] + efq[1] + KVq + [ST+4*u for u in range(4)] + [Bk(u)+4 for u in range(3)]
        for n, q in enumerate(quads):
            e(f"buffer_store_dwordx4 v[{q}:{q+3}], v3, s[16:19], s60 offen"); e("s_add_u32 s60, s60, 1024")
        e("s_nop 1")
    C0 = 224
    for hq in range(2):
        for src in range(4): e(f"ds_read_b128 v[{C0+(hq*4+src)*4}:{C0+(hq*4+src)*4+3}], v{11 if src < 2 else 15} offset:{(src%2)*20480 + hq*2048}")
    e("s_cmp_lg_u32 s33, 0"); e("s_cbranch_scc1 a_noz")
    for src in range(4): e(f"ds_read_b128 v[{holes[src]}:{holes[src]+3}], v{11 if src < 2 else 15} offset:{(src%2)*20480 + 8192}")
    e("s_waitcnt lgkmcnt(0)")
    for src in range(1, 4):
        for q in (0, 2): e(f"v_pk_add_f32 v[{holes[0]+q}:{holes[0]+q+1}], v[{holes[0]+q}:{holes[0]+q+1}], v[{holes[src]+q}:{holes[src]+q+1}]")
    e(f"buffer_store_dwordx4 v[{holes[0]}:{holes[0]+3}], v3, s[16:19], s37 offen offset:2048 sc1")
    e("a_noz:")
    e("s_waitcnt lgkmcnt(0)")
    for hq in range(2):
        a = C0 + hq*16
        for src in range(1, 4):
            for q in (0, 2): e(f"v_pk_add_f32 v[{a+q}:{a+q+1}], v[{a+q}:{a+q+1}], v[{a+4*src+q}:{a+4*src+q+1}]")
        e(f"buffer_store_dwordx4 v[{a}:{a+3}], v3, s[16:19], s37 offen offset:{hq*1024} sc1")
    e("s_lshl_b32 s32, s52, 2"); e("s_lshl_b32 s60, s54, 1"); e("s_add_u32 s32, s32, s60"); e("s_add_u32 s32, s32, s35")
    e("s_lshl_b32 s60, s32, 9"); e(f"s_add_u32 s60, s60, {WS_FLAGL - 8*128:#x}")
    e("v_lshlrev_b32 v10, 7, v2"); e("v_mov_b32 v11, s60"); e("v_mov_b32 v15, s39"); e("v_cmp_gt_u32 vcc, 8, v2"); e("s_nop 1"); e("v_cndmask_b32 v11, v11, v15, vcc"); e("v_add_u32 v10, v10, v11")
    units = [dict(x=[PK+u*8, PK+u*8+4], ep=EP+u*16, em=EP+8+u*16, st=ST+u*4, out=Bk(u)+4) for u in range(4)]
    w = Work(); softmax_units(w.e, units, 62, False)
    cut = len(w.q) * opts.get("e3cut", 30) // 100
    for l in w.q[:cut]: e(l)
    e("s_waitcnt vmcnt(0)")
    e(lane0("buffer_store_dwordx2 v[12:13], v14, s[16:19], s36 offen sc1"))
    if opts.get("estamp"): e("s_memrealtime s[96:97]"); e("s_waitcnt lgkmcnt(0)")
    for l in w.q[cut:]: e(l)
    if stamps: e("s_memrealtime s[88:89]")
    KOq = holes[0:4]; ZOq = holes[4:6]; GG = holes[6]
    poll_tok(k, 10, 16, "0", 0xfff, 8, sleep=1)
    G0 = 160
    for n in range(8):
        e(f"s_add_u32 s36, s38, {n*4096}")
        for hq in range(2):
            e(f"buffer_load_dwordx4 v[{G0+n*8+hq*4}:{G0+n*8+hq*4+3}], v3, s[16:19], s36 offen offset:{hq*1024} sc1")
    e("v_and_b32 v8, 15, v2"); e("v_lshlrev_b32 v8, 2, v8")
    e("s_lshl_b32 s36, s32, 8"); e(f"s_add_u32 s36, s36, {WS_G:#x}")
    for u in range(4): e(f"buffer_load_dword v{GG+u}, v8, s[16:19], s36 offen offset:{u*64} sc1")
    e("s_lshl_b32 s60, s55, 13"); e(f"s_add_u32 s60, s60, {128*1024}"); e("v_add_u32 v10, s60, v3"); e("s_lshl_b32 s60, s33, 10"); e("v_add_u32 v11, s60, v10")
    e("s_cmp_lg_u32 s33, 0"); e("s_cbranch_scc1 a_noz2")
    for n in range(8):
        e(f"s_add_u32 s36, s38, {n*4096 + 2048}"); e(f"buffer_load_dwordx4 v[{224+n*4}:{227+n*4}], v3, s[16:19], s36 offen sc1")
    e("s_waitcnt vmcnt(0)")
    for st_ in (16, 8, 4):
        for r in range(0, st_, 2): e(f"v_pk_add_f32 v[{224+r}:{225+r}], v[{224+r}:{225+r}], v[{224+st_+r}:{225+st_+r}]")
    e("v_and_b32 v8, 3, v2"); e("v_mov_b32 v9, 0x3f803f80")
    for fbk in range(4):
        for r in range(4): e(f"v_mov_b32_dpp v{240+fbk*4+r}, v{224+r} quad_perm:[{fbk},{fbk},{fbk},{fbk}] row_mask:0xf bank_mask:0xf")
    e("v_cmp_eq_u32 vcc, 1, v8"); e("s_nop 1"); e("v_cndmask_b32 v9, 0, v9, vcc"); e("v_cmp_eq_u32 vcc, 0, v8")
    for n in range(8): e(f"v_cvt_pk_bf16_f32 v{224+n}, v{240+2*n}, v{241+2*n}")
    for n in range(8): e(f"v_cndmask_b32 v{224+n}, v9, v{224+n}, vcc")
    e("ds_write_b128 v10, v[224:227] offset:4096"); e("ds_write_b128 v10, v[228:231] offset:5120")
    e("a_noz2:")
    e("s_waitcnt vmcnt(0)")
    for st_ in (32, 16, 8):
        for r in range(0, st_, 2): e(f"v_pk_add_f32 v[{G0+r}:{G0+r+1}], v[{G0+r}:{G0+r+1}], v[{G0+st_+r}:{G0+st_+r+1}]")
    for n in range(4): e(f"v_cvt_pk_bf16_f32 v{G0+n}, v{G0+2*n}, v{G0+2*n+1}")
    e(f"ds_write_b128 v11, v[{G0}:{G0+3}]")
    e("s_waitcnt lgkmcnt(0)"); e("s_barrier")
    if stamps: e("s_memrealtime s[90:91]")
    for n, d in enumerate(KOq + ZOq): e(f"ds_read_b128 v[{d}:{d+3}], v10 offset:{n*1024}")
    e("s_mov_b32 s38, s32")
    e("v_lshrrev_b32 v8, 5, v2"); e("v_lshlrev_b32 v9, 15, v8"); e("v_and_b32 v8, 31, v2"); e("v_lshl_add_u32 v9, v8, 4, v9")
    e("s_lshl_b32 s36, s59, 17"); e("s_lshl_b32 s37, s38, 10"); e("s_add_u32 s36, s36, s37")
    e(f"s_add_u32 s36, s36, {WS_OT:#x}"); e("s_add_u32 s37, s36, 0x10000")
    e(f"v_mov_b32 v8, {f32(1e-6)}")
    e("s_waitcnt lgkmcnt(0)")
    nq = [160 + 4*n for n in range(24)]
    for u in range(4):
        for sg in range(2):
            b = Bk(u) + 4 + sg*4
            for db in (2, 0, 1):
                d = nq[u*6 + sg*3 + db]; a = KOq[sg*2+db] if db < 2 else ZOq[sg]
                e(f"v_mfma_f32_16x16x32_bf16 v[{d}:{d+3}], v[{a}:{a+3}], v[{b}:{b+3}], 0")
    e("s_nop 1")
    for u in range(4):
        xp, xm = nq[u*6+2], nq[u*6+5]
        e(f"v_rcp_f32 v{xp+2}, v{xp+1}"); e(f"v_rcp_f32 v{xm+2}, v{xm+1}")
    for u in range(4):
        xp, xm = nq[u*6+2], nq[u*6+5]
        e(f"v_fma_f32 v{xp}, v{xp}, v{xp+2}, v8"); e(f"v_fma_f32 v{xp}, v{xm}, v{xm+2}, v{xp}")
    for u in range(4): xp = nq[u*6+2]; e(f"v_rcp_f32 v{xp}, v{xp}")
    for u in range(4): xp = nq[u*6+2]; e(f"v_mul_f32 v{xp}, v{xp}, v{GG+u}")
    for u in range(4):
        xp, xm = nq[u*6+2], nq[u*6+5]
        e(f"v_mul_f32 v{xp+2}, v{xp+2}, v{xp}"); e(f"v_mul_f32 v{xm+2}, v{xm+2}, v{xp}")
    for u in range(4):
        xp, xm = nq[u*6+2], nq[u*6+5]
        for db in range(2):
            np_, nm = nq[u*6+db], nq[u*6+3+db]
            for q in (0, 2):
                e(f"v_pk_mul_f32 v[{np_+q}:{np_+q+1}], v[{np_+q}:{np_+q+1}], v[{xp+2}:{xp+3}] op_sel_hi:[1,0]")
                e(f"v_pk_fma_f32 v[{np_+q}:{np_+q+1}], v[{nm+q}:{nm+q+1}], v[{xm+2}:{xm+3}], v[{np_+q}:{np_+q+1}] op_sel_hi:[1,0,1]")
    for u in range(4):
        for db in range(2):
            np_ = nq[u*6+db]; o = 16 + ((u//2)*2+db)*4 + (u % 2)*2
            e(f"v_cvt_pk_bf16_f32 v{o}, v{np_}, v{np_+1}"); e(f"v_cvt_pk_bf16_f32 v{o+1}, v{np_+2}, v{np_+3}")
    e("s_nop 1")
    for n in range(4):
        o = 16 + n*4; e(f"v_permlane16_swap_b32 v{o}, v{o+2}"); e(f"v_permlane16_swap_b32 v{o+1}, v{o+3}")
    for n in range(4):
        o = 16 + n*4; pr, db = divmod(n, 2)
        e(f"buffer_store_dwordx4 v[{o}:{o+3}], v9, s[16:19], s{36+db} offen offset:{pr*512}{opts.get('ust', '')}")
    if stamps: stamp_store(e, (80, 84, 82, 94, 96, 88, 86, 86) if opts.get("estamp") else (80, 82, 84, 88, 90, 86, 93, 98), WS_STAMP, "a_end")
    e("s_lshl_b32 s39, s52, 4"); e("s_add_u32 s39, s39, s53"); e("s_lshl_b32 s39, s39, 7"); e(f"s_add_u32 s39, s39, {WS_FLAGO:#x}")
    e("s_waitcnt vmcnt(0)")
    e("s_branch b_entry")
    e("a_bchain:")
    e("s_lshl_b32 s52, s58, 5"); e("s_add_u32 s52, s52, s56")
    e("s_and_b32 s54, s56, 3")
    e("s_mul_i32 s55, s58, 7"); e("s_lshr_b32 s60, s56, 2"); e("s_add_u32 s55, s55, s60")
    e("s_cmp_lt_u32 s3, 4"); e("s_cbranch_scc1 a_lnc")
    e("s_cmp_ge_u32 s56, 28"); e("s_cbranch_scc1 a_sp_hi")
    st = Stream(k)
    k.srd(24, W1, S_*F_*2)
    e("s_sub_u32 s3, s3, 4")
    lane_T_dma_off(e, 16, 24, 2, 6, F_*2, 3)
    e("v_add_u32 v25, 128, v24")
    e("s_lshl_b32 s60, s3, 14"); e(f"s_lshl_b32 s28, s54, 12"); e("s_add_u32 s28, s28, s60"); e(f"s_add_u32 s28, s28, {WS_HT:#x}")
    e("s_lshl_b32 s29, s55, 8")
    e("s_lshl_b32 s30, s3, 12"); e("s_lshl_b32 s31, s3, 10"); e(f"s_add_u32 s31, s31, {c2.PB}")
    R2 = dict(vP=[3], vT=[24, 25], sP=28, sT=29, srdP=16, srdT=24, sBase=30, sLds=32, sStage=34, sCnt=35, stepP=4*D_*16, stepT=32*F_*2)
    fl = (" sc1", opts.get("nt2", ""))
    e("s_mov_b32 s32, s30"); e("s_mov_b32 s33, s31")
    for t in range(5): producer_issue(st.e, c2, R2, fl, "T", t*c2.SB)
    def g2_touches():
        e("s_mul_i32 s60, s58, 28"); e("s_add_u32 s60, s60, s56"); e("s_lshl_b32 s60, s60, 2"); e("s_add_u32 s60, s60, s3"); e("s_lshl_b32 s60, s60, 10")
        if opts.get("pf_wq", True):
            k.srd(48, WQKV, D_*3*D_*2)
            e("s_mov_b32 s61, s60")
            for n in range(14): st.e("buffer_load_dwordx4 v[240:243], v3, s[48:51], s61 offen"); e(f"s_add_u32 s61, s61, {448*1024}")
        e(f"s_add_u32 s61, s60, {160*7168}")
        for n in range(opts.get("pf_g2", 0)): st.e("buffer_load_dwordx4 v[240:243], v3, s[24:27], s61 offen"); e(f"s_add_u32 s61, s61, {448*1024}")
    if opts.get("tpos", "L1") == "pre": g2_touches()
    e("v_lshlrev_b32 v8, 7, v2"); e("v_add_u32 v9, 0x2000, v8")
    e("s_barrier")
    e(f"v_mov_b32 v4, {158*1024}"); e("ds_read_b64 v[10:11], v4"); e("s_waitcnt lgkmcnt(0)")
    e(f"v_readfirstlane_b32 s{TOK}, v10"); e(f"v_readfirstlane_b32 s{TOK+1}, v11")
    if opts.get("tpos", "L1") == "L1": g2_touches()
    e("s_barrier")
    producer_issue(st.e, c2, R2, fl, "T", 5*c2.SB)
    e(f"s_mov_b32 s36, {WS_FLAGL:#x}")
    if opts.get("lnsub", True):
        poll_tok(k, 8, 16, "s36", 0xfff, 10, sleep=1)
    else:
        poll_tok(k, [8, 9], 16, "s36", None, 10, sleep=2)
    st = Stream(k)
    for t in range(6):
        producer_issue(st.e, c2, R2, fl, "P", t*c2.SB); st.mark(f"b{t}")
        if t == 1 and opts.get("lnsub", True):
            e("s_lshl_b32 s60, s3, 12"); e("s_add_u32 s36, s36, s60"); e("s_mov_b32 exec_hi, 0")
            st.e("@vm lf buffer_load_dwordx2 v[10:11], v8, s[16:19], s36 offen sc1"); e("s_mov_b32 exec_hi, -1")
    e("s_mov_b32 s34, 0")
    st.e("@wait b0"); e("s_barrier")
    if opts.get("lnsub", True):
        st.e("@wait lf")
        e("s_mov_b32 exec_hi, 0"); e(f"v_cmp_ne_u64 vcc, s[{TOK}:{TOK+1}], v[10:11]"); e("s_mov_b32 exec_hi, -1"); e("s_nop 3"); e("s_cbranch_vccz a_lfok")
        poll_tok(k, 8, 16, "s36", 0xffffffff, 10, sleep=1)
        e("a_lfok:")
    for t in range(5):
        st.e(f"@wait b{t+1}"); e("s_barrier")
        producer_issue(st.e, c2, R2, fl); ring_advance(e, c2, R2)
    e("s_mov_b32 s35, 53")
    e("a_l2:")
    e("s_waitcnt vmcnt(24)"); e("s_barrier")
    producer_issue(e, c2, R2, fl); ring_advance(e, c2, R2)
    e("s_sub_u32 s35, s35, 1"); e("s_cmp_lg_u32 s35, 0"); e("s_cbranch_scc1 a_l2")
    for r in range(6):
        e(f"s_waitcnt vmcnt({max(4-r, 0)*6})"); e("s_barrier")
    e("s_branch b_entry")
    e("a_lnc:")
    st = Stream(k)
    e("s_lshl_b32 s37, s52, 15"); e("s_lshl_b32 s38, s3, 13"); e("s_add_u32 s37, s37, s38"); e("s_add_u32 s38, s37, 4096")
    for n in range(8): st.e(f"buffer_load_dwordx4 v[{48+4*n}:{51+4*n}], v3, s[20:23], s{37+n//4} offen offset:{(n%4)*1024}")
    k.srd(24, GW, D_*2)
    st.e("buffer_load_dwordx4 v[80:83], v3, s[24:27], 0 offen"); st.e("@vm lng buffer_load_dwordx4 v[84:87], v3, s[24:27], 0 offen offset:1024")
    k.srd(48, B1, F_*2)
    e("s_lshr_b32 s57, s3, 1"); e("s_and_b32 s58, s3, 1")
    e("v_lshrrev_b32 v7, 4, v2"); e("v_lshlrev_b32 v7, 3, v7")
    e("s_lshl_b32 s60, s55, 8"); e("s_lshl_b32 s61, s58, 6"); e("s_add_u32 s60, s60, s61")
    for j in range(4): st.e(f"buffer_load_dwordx2 v[{96+2*j}:{97+2*j}], v7, s[48:51], s60 offen offset:{(j//2)*128 + (j%2)*32}")
    st.e("buffer_load_dwordx2 v[12:13], v14, s[40:43], 0 offen sc1")
    LS = 120*1024
    e("s_mov_b32 s36, 0xffff0000")
    e(f"s_mul_i32 s37, s3, {4*HP}"); e(f"s_add_u32 s37, s37, {LS}"); e("v_add_u32 v22, s37, v3")
    e(f"v_bfe_u32 v23, v2, 2, 2"); e(f"v_mul_u32_u24 v23, {HP}, v23"); e("v_and_b32 v120, 3, v2"); e("v_lshl_add_u32 v23, v120, 3, v23")
    e(f"v_lshrrev_b32 v120, 4, v2"); e("v_lshl_add_u32 v23, v120, 5, v23")
    e(f"s_mul_i32 s37, s57, {8*HP}"); e("s_lshl_b32 s38, s58, 10"); e("s_add_u32 s37, s37, s38"); e(f"s_add_u32 s37, s37, {LS}"); e("v_add_u32 v23, s37, v23")
    st.e("@wait lng")
    for i in range(8):
        e(f"v_lshlrev_b32 v{104+2*i}, 16, v{80+i}"); e(f"v_and_b32 v{105+2*i}, s36, v{80+i}")
    if opts.get("ln1", True):
        ln_rows1(e, 48, 0, 52); ln_rows1(e, 64, 1, 52)
    else:
        w = Work()
        gen4.ln_rows(w, 48, 0); gen4.ln_rows(w, 64, 1)
        for it in w.q: e(it.replace("s_lshl_b32 s37, s2, 5", "s_lshl_b32 s37, s52, 6"))
    e("s_waitcnt vmcnt(2)")
    e(f"v_readfirstlane_b32 s{TOK}, v12"); e(f"v_readfirstlane_b32 s{TOK+1}, v13"); e(f"s_cmp_lg_u32 s{TOK}, 0"); e("s_cbranch_scc1 a_tk5")
    get_token(k, 14, 12)
    e("a_tk5:")
    e(f"v_mov_b32 v4, {158*1024}"); e("ds_write_b64 v4, v[12:13]")
    e("s_waitcnt lgkmcnt(0)"); e("s_barrier")
    for j in range(8):
        e(f"ds_read_b64_tr_b16 v[{144+4*j}:{145+4*j}], v23 offset:{128*j}")
        e(f"ds_read_b64_tr_b16 v[{146+4*j}:{147+4*j}], v23 offset:{128*j+4*HP}")
    e(f"s_lshl_b32 s37, s52, 15"); e("s_lshl_b32 s38, s3, 13"); e("s_add_u32 s37, s37, s38"); e(f"s_add_u32 s37, s37, {WS_HT:#x}"); e("s_add_u32 s38, s37, 4096")
    for j in range(8):
        e(f"s_waitcnt lgkmcnt({14-2*j})"); e(f"buffer_store_dwordx4 v[{144+4*j}:{147+4*j}], v3, s[16:19], s{37+j//4} offen offset:{(j%4)*1024} sc1")
    acc2 = [[128 + (i*4+j)*4 for j in range(4)] for i in range(8)]
    e("s_nop 1")
    for j in range(4):
        for hh in range(2):
            src = 96 + j*2 + hh; d0 = acc2[0][j] + hh*2
            e(f"v_lshlrev_b32 v{d0}, 16, v{src}"); e(f"v_and_b32 v{d0+1}, s36, v{src}")
        for i in range(1, 8):
            for q in (0, 2): e(f"v_mov_b64 v[{acc2[i][j]+q}:{acc2[i][j]+q+1}], v[{acc2[0][j]+q}:{acc2[0][j]+q+1}]")
    e("v_lshrrev_b32 v8, 4, v2"); e("v_lshlrev_b32 v4, 12, v8"); e("v_and_b32 v9, 15, v2"); e("v_lshl_add_u32 v4, v9, 4, v4")
    e("s_lshl_b32 s60, s57, 11"); e("v_add_u32 v4, s60, v4")
    lane_T_read_off(e, 16, 6, 2, 8, 9)
    e("s_lshl_b32 s60, s58, 6"); e("v_xor_b32 v6, s60, v6"); e("v_xor_b32 v7, 32, v6")
    e("s_waitcnt vmcnt(0)"); e("s_barrier")
    e("s_cmp_lg_u32 s3, 0"); e("s_cbranch_scc1 a_lnf")
    e("s_lshl_b32 s37, s52, 7"); e(f"s_add_u32 s37, s37, {WS_FLAGL:#x}")
    e(lane0("buffer_store_dwordx2 v[12:13], v14, s[16:19], s37 offen sc1"))
    e("a_lnf:")
    if stamps: e("s_memrealtime s[82:83]")
    e("s_cmp_ge_u32 s56, 28"); e("s_cbranch_scc1 a_spare")
    p_off = [(0, i*256) for i in range(8)]
    t_desc = [(j % 2, c2.PB + (j//2)*4096) for j in range(4)]
    order = [(i, j, i, j) for i in range(8) for j in range(4)]
    pbufs = [16 + 4*i for i in range(16)]; tbufs = [80 + 4*j for j in range(8)]
    consumer_loop(k, c2, [(2, ["s_memrealtime s[84:85]", "s_memtime s[94:95]", "s_waitcnt lgkmcnt(0)"] if stamps else []), (62, [])], 16, 8, 4, p_off, t_desc, acc2, pbufs, tbufs, [4], [6, 7],
                  False, order, 36, 37, 38, rpg=1, bar_pos=2)
    if stamps: e("s_memrealtime s[88:89]"); e("s_memtime s[96:97]"); e("s_waitcnt lgkmcnt(0)"); e("s_sub_u32 s93, s96, s94"); e("s_sub_u32 s98, s88, s84")
    e("s_waitcnt lgkmcnt(0)")
    e("v_lshrrev_b32 v8, 5, v2"); e("v_lshlrev_b32 v7, 14, v8"); e("v_and_b32 v8, 31, v2"); e("v_lshl_add_u32 v7, v8, 4, v7")
    e("s_lshl_b32 s14, s55, 18"); e("s_lshl_b32 s15, s58, 16"); e("s_add_u32 s14, s14, s15")
    e("s_lshl_b32 s15, s54, 12"); e("s_add_u32 s14, s14, s15"); e("s_lshl_b32 s15, s57, 11"); e("s_add_u32 s14, s14, s15")
    e(f"s_add_u32 s14, s14, {WS_UT:#x}")
    e(f"s_mov_b32 s42, {f32(GELU_K3)}"); e(f"s_mov_b32 s43, {f32(GELU_K3)}")
    e(f"v_mov_b32 v10, {f32(GELU_K1)}"); e(f"v_mov_b32 v11, {f32(GELU_K1)}")
    blk = 0
    for j in range(4):
        e(f"s_add_u32 s15, s14, {((j//2)*8 + (j%2)*2)*16384}")
        for i in (0, 4):
            t = 16 + (blk % 2) * 24; o = t + 16; blk += 1
            gelu_block(e, [acc2[i+b][j] + q for b in range(4) for q in (0, 2)], t, o)
            e("s_nop 1")
            for pr in range(2):
                e(f"v_permlane16_swap_b32 v{o+4*pr}, v{o+4*pr+2}"); e(f"v_permlane16_swap_b32 v{o+4*pr+1}, v{o+4*pr+3}")
            for pr in range(2):
                e(f"buffer_store_dwordx4 v[{o+4*pr}:{o+4*pr+3}], v7, s[16:19], s15 offen offset:{(i+2*pr)*256}{opts.get('ust', '')}")
    if stamps: stamp_store(e, (80, 82, 84, 88, 88, 86, 93, 98), WS_STAMP, "a_end")
    e("s_mul_i32 s39, s54, 28"); e("s_add_u32 s39, s39, s55"); e("s_lshl_b32 s39, s39, 7"); e(f"s_add_u32 s39, s39, {WS_FLAGU:#x}")
    e("s_waitcnt vmcnt(0)")
    e("s_branch b_entry")
    e("a_sp_hi:")
    e("s_barrier")
    e(f"v_mov_b32 v4, {158*1024}"); e("ds_read_b64 v[12:13], v4"); e("s_waitcnt lgkmcnt(0)")
    e(f"v_readfirstlane_b32 s{TOK}, v12"); e(f"v_readfirstlane_b32 s{TOK+1}, v13")
    e("s_barrier")
    e("a_spare:")
    if opts.get("pf_sp", True):
        k.srd(24, W1, S_*F_*2)
        r0 = opts.get("sp_row0", 192)
        e("s_lshr_b32 s60, s52, 5"); e("s_lshl_b32 s60, s60, 2"); e("s_add_u32 s60, s60, s56"); e("s_sub_u32 s60, s60, 28"); e("s_lshl_b32 s60, s60, 3"); e("s_add_u32 s60, s60, s3")
        e("s_lshl_b32 s59, s60, 10")
        q0 = opts.get("sp_wq0")
        if q0 is not None:
            k.srd(48, WQKV, D_*3*D_*2)
            e(f"s_add_u32 s61, s59, {q0*6144}")
            for n in range(((1024-q0)*6 + 127)//128): e("buffer_load_dwordx4 v[240:243], v3, s[48:51], s61 offen"); e(f"s_add_u32 s61, s61, {128*1024}")
        e(f"s_add_u32 s61, s59, {r0*7168}")
        e(f"s_mov_b32 s62, {max(1, ((2048-r0)*7 + 127)//128)}"); e("a_spl:")
        e("buffer_load_dwordx4 v[240:243], v3, s[24:27], s61 offen"); e(f"s_add_u32 s61, s61, {128*1024}"); e(f"s_waitcnt vmcnt({opts.get('sp_depth', 16)})")
        e("s_sub_u32 s62, s62, 1"); e("s_cmp_lg_u32 s62, 0"); e("s_cbranch_scc1 a_spl")
        k.srd(48, WO, D_*D_*2)
        e("s_mov_b32 s61, s59")
        for n in range(16): e("buffer_load_dwordx4 v[240:243], v3, s[48:51], s61 offen"); e(f"s_add_u32 s61, s61, {128*1024}")
        if opts.get("sp_w2", 0):
            e("s_load_dwordx2 s[12:13], s[0:1], 56"); e("s_waitcnt lgkmcnt(0)")
            k.srd(24, 12, S_*F_*2)
            e(f"s_mov_b32 s62, {opts.get('sp_w2', 0)}"); e("a_spl2:")
            e("buffer_load_dwordx4 v[240:243], v3, s[24:27], s59 offen"); e(f"s_add_u32 s59, s59, {128*1024}"); e(f"s_waitcnt vmcnt({opts.get('sp_depth', 16)})")
            e("s_sub_u32 s62, s62, 1"); e("s_cmp_lg_u32 s62, 0"); e("s_cbranch_scc1 a_spl2")
    e(f"s_mov_b32 s39, {WS_FLAGO + 0x4000:#x}")
    if stamps: stamp_store(e, (80, 82, 82, 82, 82, 86, 86, 86), WS_STAMP, "")
    gen_b2(opts, k)
    e("a_end:")
    return k

def gen_b2(opts, k):
    NS = opts.get("NSb", 5)
    c = GemmCfg(128, 2, NS, 64)
    e = k.e
    stamps = opts.get("stamps", False)
    NT = ""
    W2, B2 = 72, 74
    e("b_entry:")
    e("s_load_dwordx4 s[72:75], s[0:1], 56")
    if stamps: e("s_memrealtime s[80:81]")
    e("s_mov_b32 s92, s2")
    e("v_lshrrev_b32 v1, 6, v0"); e("v_and_b32 v2, 63, v0"); e("v_lshlrev_b32 v3, 4, v2")
    e("s_lshr_b32 s56, s2, 3")
    e("v_readfirstlane_b32 s3, v1")
    e("s_and_b32 s52, s2, 1")
    if opts.get("bmap", "8d4s") == "8d4s":
        e("s_lshr_b32 s54, s56, 2")
        e("s_bfe_u32 s55, s2, 0x20001"); e("s_lshl_b32 s55, s55, 2"); e("s_and_b32 s60, s56, 3"); e("s_add_u32 s55, s55, s60")
    else:
        e("s_bfe_u32 s54, s2, 0x10001"); e("s_lshl_b32 s54, s54, 2"); e("s_and_b32 s60, s56, 3"); e("s_add_u32 s54, s54, s60")
        e("s_bfe_u32 s55, s2, 0x10002"); e("s_lshl_b32 s55, s55, 3"); e("s_lshr_b32 s60, s56, 2"); e("s_add_u32 s55, s55, s60")
    e("s_waitcnt lgkmcnt(0)")
    e("s_cmp_lt_u32 s3, 4"); e("s_cbranch_scc1 b_cons")
    assert NS == 5
    n2 = opts.get("n2", 30); n1 = 56 - n2
    k.srd(24, W2, F_*S_*2)
    k.srd(20, WO, D_*D_*2)
    e("s_sub_u32 s3, s3, 4")
    e("s_lshl_b32 s30, s3, 11")
    e("s_lshl_b32 s31, s3, 10"); e(f"s_add_u32 s31, s31, {c.PB}")
    e("s_mov_b32 s32, s30"); e("s_mov_b32 s33, s31")
    fl = None
    fl3 = (" sc1", opts.get("nt3", "")); fl4 = (" sc1", "")
    R3 = dict(vP=[3, 9], vT=list(range(24, 28)), sP=28, sT=29, srdP=16, srdT=24, sBase=30, sLds=32, sStage=34, sCnt=35, stepP=8*D_*16, stepT=64*S_*2)
    R4 = dict(R3, vP=[3, 13], vT=list(range(32, 36)), sP=36, sT=37, srdT=20, stepP=8*S_*16, stepT=64*D_*2)
    def setup3():
        lane_T_dma_off(e, 16, 24, 2, 6, S_*2, 3)
        for n in range(1, 4):
            sg, kg = divmod(n, 2); e(f"v_add_u32 v{24+n}, {sg*128 + kg*32*S_*2}, v24")
        e("s_cmp_eq_u32 s52, 0"); e(f"s_cselect_b32 s62, {n2}, 0")
        e(f"s_mul_i32 s29, s62, {64*4096}"); e("s_lshl_b32 s60, s55, 8"); e("s_add_u32 s29, s29, s60")
        e(f"v_add_u32 v9, {4*D_*16}, v3")
        e("s_lshl_b32 s28, s62, 3"); e("s_add_u32 s28, s28, s3"); e("s_lshl_b32 s28, s28, 14"); e("s_lshl_b32 s60, s54, 11"); e("s_add_u32 s28, s28, s60")
        e(f"s_add_u32 s28, s28, {WS_UT:#x}")
    def start(R, lab_cnt):
        for t in range(NS): producer_issue(e, c, R, fl3, "P", t*c.SB)
        e("s_mov_b32 s34, 0")
        e("s_waitcnt vmcnt(16)"); e("s_barrier")
        for wn_ in (12, 16, 20):
            e(f"s_waitcnt vmcnt({wn_})"); e("s_barrier")
            producer_issue(e, c, R, fl3 if R is R3 else fl4); ring_advance(e, c, R)
    def loop(R, lab):
        e(f"{lab}:")
        e("s_waitcnt vmcnt(24)"); e("s_barrier")
        producer_issue(e, c, R, fl3 if R is R3 else fl4); ring_advance(e, c, R)
        e("s_sub_u32 s35, s35, 1"); e("s_cmp_lg_u32 s35, 0"); e(f"s_cbranch_scc1 {lab}")
    e("s_cmp_eq_u32 s52, 0"); e("s_cbranch_scc1 b_ld0")
    setup3()
    for t in range(NS): producer_issue(e, c, R3, fl3, "T", t*c.SB)
    nsw = opts.get("sw2", 0)
    def sweep2():
        if nsw:
            e("s_lshr_b32 s60, s2, 1"); e("s_lshl_b32 s60, s60, 2"); e("s_add_u32 s60, s60, s3"); e("s_lshl_b32 s60, s60, 10"); e(f"s_add_u32 s60, s60, {(28-nsw)*512*1024}")
            for n in range(nsw): e("buffer_load_dwordx4 v[240:243], v3, s[24:27], s60 offen"); e(f"s_add_u32 s60, s60, {512*1024}")
    if opts.get("sw2pos", "pre") == "pre": sweep2()
    e(f"v_min_u32 v8, {n2//2-1}, v2"); e("v_lshlrev_b32 v8, 7, v8")
    e("s_lshr_b32 s38, s54, 1"); e("s_mul_i32 s38, s38, 28"); e("s_lshl_b32 s38, s38, 7"); e(f"s_add_u32 s38, s38, {WS_FLAGU:#x}")
    e("s_barrier")
    if opts.get("sw2pos", "pre") == "post": sweep2()
    poll_tok(k, 8, 16, "s38", 0xffffff, 10, sleep=1)
    start(R3, 0)
    e(f"s_mov_b32 s35, {n2 - 8}")
    e("s_branch b_l3")
    e("b_ld0:")
    lane_T_dma_off(e, 16, 32, 2, 6, D_*2, 3)
    for n in range(1, 4):
        sg, kg = divmod(n, 2); e(f"v_add_u32 v{32+n}, {sg*128 + kg*32*D_*2}, v32")
    e("s_lshl_b32 s37, s54, 8")
    for t in range(NS): producer_issue(e, c, R4, fl4, "T", t*c.SB)
    e(f"v_add_u32 v13, {4*S_*16}, v3")
    e("s_lshl_b32 s36, s3, 15"); e("s_lshl_b32 s60, s55, 11"); e("s_add_u32 s36, s36, s60"); e(f"s_add_u32 s36, s36, {WS_OT:#x}")
    setup3()
    e("v_lshlrev_b32 v8, 7, v2"); e("s_lshr_b32 s38, s55, 1"); e("s_lshl_b32 s38, s38, 11"); e(f"s_add_u32 s38, s38, {WS_FLAGO:#x}")
    e("s_barrier")
    poll_tok(k, 8, 16, "s38", 0xffff, 10, sleep=1)
    start(R4, 0)
    e("s_mov_b32 s35, 8")
    loop(R4, "b_l4")
    e(f"s_mov_b32 s35, {n1}")
    loop(R3, "b_l3")
    for wn_ in (24, 16, 8, 0, 0):
        e(f"s_waitcnt vmcnt({wn_})"); e("s_barrier")
    e("s_endpgm")
    e("b_cons:")
    e(f"v_mov_b32 v92, s{TOK}"); e(f"v_mov_b32 v93, s{TOK+1}"); e("v_mov_b32 v94, 0")
    e("s_barrier")
    e("s_cmp_lg_u32 s3, 0"); e("s_cbranch_scc1 b_nf")
    e(lane0("buffer_store_dwordx2 v[92:93], v94, s[16:19], s39 offen sc1"))
    e("b_nf:")
    e("s_lshr_b32 s57, s3, 1"); e("s_and_b32 s58, s3, 1")
    k.srd(24, B2, S_*2)
    k.srd(20, OUT, S_*D_*2)
    e("v_and_b32 v15, 15, v2"); e("v_lshrrev_b32 v14, 4, v2")
    e("s_lshl_b32 s60, s55, 7"); e("s_lshl_b32 s61, s58, 5"); e("s_add_u32 s60, s60, s61"); e("v_add_u32 v8, s60, v15")
    e("v_lshlrev_b32 v9, 2, v8"); e("v_lshlrev_b32 v8, 1, v8")
    e(f"s_mov_b32 s47, {WS_G:#x}")
    GO, BO = 80, 88
    gld = [f"buffer_load_dword v{GO+2*j}, v9, s[16:19], s47 offen offset:{((j//2)*64 + (j%2)*16)*4} sc1" for j in range(4)]
    stb = ["s_memrealtime s[98:99]", "s_memtime s[94:95]", "s_waitcnt lgkmcnt(0)"] if stamps else []
    gfin = ["s_waitcnt vmcnt(0)"] + [f"v_sub_f32 v{GO+2*j}, 1.0, v{GO+2*j}" for j in range(4)]
    for j in range(4):
        e(f"buffer_load_ushort v{BO+j}, v8, s[24:27], 0 offen offset:{((j//2)*64 + (j%2)*16)*2}")
    acc = [[96 + (i*4+j)*4 for j in range(4)] for i in range(4)]
    e("v_lshlrev_b32 v4, 11, v14"); e("v_lshl_add_u32 v4, v15, 4, v4")
    e("v_mov_b32 v5, v4")
    e("s_lshl_b32 s60, s57, 10"); e("v_add_u32 v4, s60, v4")
    lane_T_read_off(e, 16, 10, 2, 12, 13)
    e("s_lshl_b32 s60, s58, 6"); e("v_xor_b32 v6, s60, v10"); e("v_xor_b32 v7, 32, v6")
    e("s_waitcnt vmcnt(0)")
    e("s_cmp_eq_u32 s52, 1"); e("s_cselect_b32 s60, -65536, 0")
    for j in range(4):
        e(f"v_lshlrev_b32 v{BO+j}, 16, v{BO+j}"); e(f"v_and_b32 v{BO+j}, s60, v{BO+j}")
        for i in range(4):
            for q in range(4): e(f"v_mov_b32 v{acc[i][j]+q}, v{BO+j}")
    p_off = [(0, kk*8192 + i*256) for kk in range(2) for i in range(4)]
    t_desc = [(j % 2, c.PB + (j//2)*8192 + kk*4096) for kk in range(2) for j in range(4)]
    order = [(kk*4+i, kk*4+j, i, j) for kk in range(2) for i in range(4) for j in range(4)]
    pbufs = [16 + 4*i for i in range(8)]; tbufs = [48 + 4*j for j in range(8)]
    if stamps: e("s_memrealtime s[82:83]")
    e("s_cmp_eq_u32 s52, 0"); e("s_cbranch_scc1 b_cons0")
    consumer_loop(k, c, [(2, gld + stb), (n2-2, gfin)], 16, 8, 8, p_off, t_desc, acc, pbufs, tbufs, [4], [6, 7], True, order, 36, 37, 38, rpg=1, bar_pos=18)
    e("s_waitcnt lgkmcnt(0)"); e("s_nop 3")
    for j in range(4):
        for i in range(4):
            for q in (0, 2):
                a = acc[i][j] + q
                e(f"v_pk_mul_f32 v[{a}:{a+1}], v[{a}:{a+1}], v[{GO+2*j}:{GO+2*j+1}] op_sel_hi:[1,0]")
    e("s_branch b_exch")
    e("b_cons0:")
    e(f"v_min_u32 v95, {n1//2-1}, v2"); e("v_lshlrev_b32 v95, 7, v95")
    e("s_lshr_b32 s46, s54, 1"); e("s_mul_i32 s46, s46, 28"); e(f"s_add_u32 s46, s46, {n2//2}"); e("s_lshl_b32 s46, s46, 7"); e(f"s_add_u32 s46, s46, {WS_FLAGU:#x}")
    e("s_lshl_b32 s60, s58, 9"); e("v_add_u32 v5, s60, v5")
    e("s_lshl_b32 s60, s57, 13"); e("v_add_u32 v10, s60, v10")
    for q in range(1, 4): e(f"v_xor_b32 v{10+q}, {32*q}, v10")
    chk = Kern("tmp", 0, 0, 0); chk.name = "bo"
    chk.e("s_waitcnt vmcnt(0)"); chk.e(f"v_cmp_ne_u64 vcc, s[{TOK}:{TOK+1}], v[224:225]"); chk.e("s_nop 4"); chk.e("s_cbranch_vccz b_ook")
    poll_tok(chk, 95, 16, "s46", None, 224, sleep=1)
    chk.e("b_ook:")
    p_off4 = [(0, kk*8192 + (j//2)*1024 + (j%2)*256) for kk in range(2) for j in range(4)]
    t_desc4 = [(i, c.PB + kk*4096) for kk in range(2) for i in range(4)]
    order4 = [(kk*4+j, kk*4+i, i, j) for kk in range(2) for j in range(4) for i in range(4)]
    consumer_loop(k, c, [(9, ["buffer_load_dwordx2 v[224:225], v95, s[16:19], s46 offen sc1"]), (2, chk.lines + gld), (5, [])], 16, 8, 8, p_off4, t_desc4, acc, pbufs, tbufs,
                  [5], [10, 11, 12, 13], False, order4, 36, 37, 38, rpg=1, bar_pos=18)
    if stamps: e("s_memrealtime s[88:89]")
    slot = 16 % NS
    for v in (4, 6, 7): e(f"v_add_u32 v{v}, {slot*c.SB}, v{v}")
    e("s_waitcnt lgkmcnt(0)"); e("s_nop 4")
    for r in range(0, 64, 2):
        e(f"v_mov_b64 v[{160+r}:{161+r}], v[{96+r}:{97+r}]"); e(f"v_mov_b64 v[{96+r}:{97+r}], 0")
    for l in stb: e(l)
    consumer_loop(k, c, [(n1, gfin)], 16, 8, 8, p_off, t_desc, acc, pbufs, tbufs, [4], [6, 7], True, order, 36, 37, 38, rpg=1, bar_pos=18, slot0=slot)
    e("s_waitcnt lgkmcnt(0)"); e("s_nop 3")
    for j in range(4):
        for i in range(4):
            for q in (0, 2):
                a = acc[i][j] + q
                e(f"v_pk_fma_f32 v[{a}:{a+1}], v[{a}:{a+1}], v[{GO+2*j}:{GO+2*j+1}], v[{a+64}:{a+65}] op_sel_hi:[1,0,1]")
    e("b_exch:")
    if stamps: e("s_memrealtime s[84:85]"); e("s_memtime s[96:97]"); e("s_waitcnt lgkmcnt(0)"); e("s_sub_u32 s93, s96, s94"); e("s_sub_u32 s88, s98, 0"); e("s_sub_u32 s98, s84, s98")
    e("s_lshl_b32 s60, s2, 2"); e("s_add_u32 s60, s60, s3"); e("s_lshl_b32 s60, s60, 13"); e(f"s_add_u32 s60, s60, {gen2.WS_PART:#x}")
    e("s_add_u32 s61, s60, 4096")
    e("s_xor_b32 s62, s60, 0x8000"); e("s_add_u32 s63, s62, 4096")
    e("s_lshl_b32 s40, s2, 10"); e("s_lshl_b32 s41, s3, 7"); e("s_add_u32 s40, s40, s41"); e(f"s_add_u32 s40, s40, {WS_FLAG:#x}"); e("s_xor_b32 s41, s40, 0x400")
    e("v_mov_b32 v8, 0"); e("v_mov_b32 v9, 1")
    xb = opts.get("xbf16", False)
    def exch(hk, lab):
        snd = [acc[i][2*(1-hk)+jj] for jj in range(2) for i in range(4)]
        keep = [acc[i][2*hk+jj] for jj in range(2) for i in range(4)]
        if xb:
            for n, a in enumerate(snd):
                e(f"v_cvt_pk_bf16_f32 v{64+2*n}, v{a}, v{a+1}"); e(f"v_cvt_pk_bf16_f32 v{65+2*n}, v{a+2}, v{a+3}")
                if n % 2: e(f"buffer_store_dwordx4 v[{62+2*n}:{65+2*n}], v3, s[16:19], s60 offen offset:{(n//2)*1024} sc1")
        else:
            for n, a in enumerate(snd):
                e(f"buffer_store_dwordx4 v[{a}:{a+3}], v3, s[16:19], s{60 + n//4} offen offset:{(n%4)*1024} sc1")
        e("s_waitcnt vmcnt(0)")
        e(lane0("buffer_store_dwordx2 v[92:93], v94, s[16:19], s40 offen sc1"))
        poll_tok(k, 94, 16, "s41", None, 10, sleep=1, cnt=47)
        if xb:
            for n in range(4):
                e(f"buffer_load_dwordx4 v[{16+4*n}:{19+4*n}], v3, s[16:19], s62 offen offset:{n*1024} sc1")
            e("s_mov_b32 s63, 0xffff0000")
            for n, a in enumerate(keep):
                if n % 2 == 0: e(f"s_waitcnt vmcnt({3-n//2})")
                for h in range(2):
                    src = 16 + 2*n + h
                    e(f"v_lshlrev_b32 v32, 16, v{src}"); e(f"v_and_b32 v33, s63, v{src}")
                    e(f"v_pk_add_f32 v[{a+2*h}:{a+2*h+1}], v[{a+2*h}:{a+2*h+1}], v[32:33]")
        else:
            for n in range(8):
                e(f"buffer_load_dwordx4 v[{16+4*n}:{19+4*n}], v3, s[16:19], s{62 + n//4} offen offset:{(n%4)*1024} sc1")
            for n, a in enumerate(keep):
                e(f"s_waitcnt vmcnt({7-n})")
                for q in (0, 2): e(f"v_pk_add_f32 v[{a+q}:{a+q+1}], v[{a+q}:{a+q+1}], v[{16+4*n+q}:{17+4*n+q}]")
        for i in range(4):
            for jj in range(2):
                a = acc[i][2*hk+jj]; o = 48 + i*4 + jj*2
                e(f"v_cvt_pk_bf16_f32 v{o}, v{a}, v{a+1}"); e(f"v_cvt_pk_bf16_f32 v{o+1}, v{a+2}, v{a+3}")
    e("s_cmp_eq_u32 s52, 0"); e("s_cbranch_scc0 b_ex1")
    exch(0, "b_ex0")
    e("s_branch b_fin")
    e("b_ex1:")
    exch(1, "b_ex1")
    e("b_fin:")
    e("v_and_b32 v8, 31, v2"); e("v_lshlrev_b32 v8, 11, v8"); e("v_lshrrev_b32 v9, 5, v2"); e("v_lshl_add_u32 v8, v9, 4, v8")
    e("s_lshl_b32 s60, s55, 2"); e("s_lshl_b32 s61, s52, 1"); e("s_add_u32 s60, s60, s61"); e("s_add_u32 s60, s60, s58"); e("s_lshl_b32 s60, s60, 16")
    e("s_lshl_b32 s61, s54, 8"); e("s_add_u32 s60, s60, s61"); e("s_lshl_b32 s61, s57, 7"); e("s_add_u32 s60, s60, s61")
    for i in range(4):
        o = 48 + i*4
        e(f"v_permlane16_swap_b32 v{o}, v{o+2}"); e(f"v_permlane16_swap_b32 v{o+1}, v{o+3}")
    for i in range(4):
        o = 48 + i*4
        e(f"buffer_store_dwordx4 v[{o}:{o+3}], v8, s[20:23], s60 offen offset:{i*32}{opts.get('ost', '')}")
    if stamps: stamp_store(e, (80, 82, 84, 86, 88, 86, 93, 98), WS_STAMP + 0x10000, "")

if __name__ == "__main__":
    out = sys.argv[1]
    opts = eval("dict(" + (sys.argv[2] if len(sys.argv) > 2 else "") + ")")
    write_file(out, [gen_a(dict(dict(ust=' sc1', ost=' nt', xbf16=True, pf_wq=False, pf_g2=8, sp_row0=672, rotmul=2, n2=32, e1sw=7, sw2=14), **opts))], single=True)
```

```python
import sys
from gen import *
import gen2, gen3, gen4
from gen2 import spin_until, softmax_units, DBG, WS, X, WQKV, WPHI, WO, W1, B1, GW, OUT, WS_KVP, NQ
from gen3 import Stream, Work, WS_KVF
from gen4 import lane0, HP

WS_SIZE = 0x8000000
WS_FLAGL = 0x14E0000
WS_FLAG1 = 0x14C0000
WS_FLAG2 = 0x14D0000
WS_FLAGU = 0x14F0000
WS_FLAGO = 0x14F8000
TOK = 44

def poll_tok(k, vaddr, srd, soff, nl_mask, vd, sleep=4, cnt=63):
    e = k.e
    L = k.lab("pt"); Lok = k.lab("ptok")
    if nl_mask is not None: e(f"s_mov_b32 exec_lo, {nl_mask:#x}"); e("s_mov_b32 exec_hi, 0")
    e(f"s_mov_b32 s{cnt}, 0x40000")
    e(f"{L}:")
    vs = vaddr if isinstance(vaddr, list) else [vaddr]
    for n, va in enumerate(vs):
        e(f"buffer_load_dwordx2 v[{vd+2*n}:{vd+1+2*n}], v{va}, s[{srd}:{srd+3}], {soff} offen sc1")
    e("s_waitcnt vmcnt(0)")
    e(f"v_cmp_ne_u64 vcc, s[{TOK}:{TOK+1}], v[{vd}:{vd+1}]")
    for n in range(1, len(vs)):
        e(f"v_cmp_ne_u64 s[60:61], s[{TOK}:{TOK+1}], v[{vd+2*n}:{vd+1+2*n}]"); e("s_or_b64 vcc, vcc, s[60:61]")
    e(f"s_sub_u32 s{cnt}, s{cnt}, 1"); e(f"s_cbranch_scc1 {Lok}")
    e(f"s_cbranch_vccz {Lok}")
    e(f"s_sleep {sleep}")
    e(f"s_branch {L}")
    e(f"{Lok}:")
    if nl_mask is not None: e("s_mov_b64 exec, -1")

def get_token(k, vz, vd):
    e = k.e
    L = k.lab("tk"); Lok = k.lab("tkok")
    e("s_mov_b32 s63, 0x8000")
    e(f"{L}:")
    e(f"buffer_load_dwordx2 v[{vd}:{vd+1}], v{vz}, s[40:43], 0 offen sc1"); e("s_waitcnt vmcnt(0)")
    e(f"v_readfirstlane_b32 s{TOK}, v{vd}"); e(f"v_readfirstlane_b32 s{TOK+1}, v{vd+1}")
    e("s_sub_u32 s63, s63, 1"); e(f"s_cbranch_scc1 {Lok}")
    e(f"s_cmp_eq_u32 s{TOK}, 0"); e(f"s_cbranch_scc1 {L}")
    e(f"{Lok}:")

_sl = [0]
DBGST = []
def stamp_store(e, regs, base, endlab, cond="v0"):
    _sl[0] += 1; endlab = f"stl{_sl[0]}"
    if DBGST:
        e("s_waitcnt vmcnt(0)")
        e("s_memrealtime s[86:87]"); e("s_waitcnt lgkmcnt(0)")
        slot = DBGST.pop(0)
        e("v_mov_b32 v7, 0")
        e(f"v_cmp_eq_u32 vcc, 0, {cond}"); e("s_and_saveexec_b64 s[60:61], vcc"); e(f"s_cbranch_execz {endlab}")
        for n, (sr, w) in enumerate(slot):
            e(f"s_sub_u32 s62, s{sr}, s{TOK}"); e(f"v_mov_b32 v{16+n}, s62"); e(f"global_atomic_smax v7, v{16+n}, s[4:5] offset:{128 + w*4}" if False else f"global_atomic_smax v7, v{16+n}, s[4:5] offset:{w*4}")
        e(f"{endlab}:"); e("s_mov_b64 exec, -1")
        return
    e("s_waitcnt vmcnt(0)")
    e("s_memrealtime s[86:87]"); e("s_waitcnt lgkmcnt(0)")
    for n, sr in enumerate(regs): e(f"v_mov_b32 v{16+n}, s{sr}")
    e("s_lshl_b32 s60, s92, 5"); e(f"s_add_u32 s60, s60, {base:#x}"); e("v_mov_b32 v7, s60")
    e(f"v_cmp_eq_u32 vcc, 0, {cond}"); e("s_and_saveexec_b64 s[60:61], vcc"); e(f"s_cbranch_execz {endlab}")
    e(f"global_store_dwordx4 v7, v[16:19], s[{WS}:{WS+1}]")
    e(f"global_store_dwordx4 v7, v[20:23], s[{WS}:{WS+1}] offset:16")
    e(f"{endlab}:"); e("s_mov_b64 exec, -1")

def ln_rows1(e, XR, m, sli):
    XF, GF, A = 144, 104, 120
    for r in range(2):
        for i in range(8):
            e(f"v_lshlrev_b32 v{XF+16*r+2*i}, 16, v{XR+8*r+i}"); e(f"v_and_b32 v{XF+1+16*r+2*i}, s36, v{XR+8*r+i}")
    e(f"v_readfirstlane_b32 s12, v{XF}"); e(f"v_readfirstlane_b32 s14, v{XF+16}")
    for r in range(2):
        b = XF + 16*r
        e(f"v_pk_mul_f32 v[{A+8+2*r}:{A+9+2*r}], v[{b}:{b+1}], v[{GF}:{GF+1}]")
    e("s_mov_b32 s13, s12"); e("s_mov_b32 s15, s14")
    for i in range(2, 16, 2):
        for r in range(2):
            b = XF + 16*r
            e(f"v_pk_fma_f32 v[{A+8+2*r}:{A+9+2*r}], v[{b+i}:{b+i+1}], v[{GF+i}:{GF+i+1}], v[{A+8+2*r}:{A+9+2*r}]")
    for i in range(0, 16, 2):
        for r in range(2):
            b = XF + 16*r
            e(f"v_pk_add_f32 v[{b+i}:{b+i+1}], v[{b+i}:{b+i+1}], s[{12+2*r}:{13+2*r}] neg_lo:[0,1] neg_hi:[0,1]")
    for r in range(2):
        b = XF + 16*r
        e(f"v_pk_add_f32 v[{A+2*r}:{A+1+2*r}], v[{b}:{b+1}], v[{b+2}:{b+3}]")
        e(f"v_pk_mul_f32 v[{A+4+2*r}:{A+5+2*r}], v[{b}:{b+1}], v[{b}:{b+1}]")
    for i in range(2, 16, 2):
        for r in range(2):
            b = XF + 16*r
            if i >= 4: e(f"v_pk_add_f32 v[{A+2*r}:{A+1+2*r}], v[{A+2*r}:{A+1+2*r}], v[{b+i}:{b+i+1}]")
            e(f"v_pk_fma_f32 v[{A+4+2*r}:{A+5+2*r}], v[{b+i}:{b+i+1}], v[{b+i}:{b+i+1}], v[{A+4+2*r}:{A+5+2*r}]")
    for n in range(6): e(f"v_add_f32 v{A+2*n}, v{A+2*n}, v{A+1+2*n}")
    dpp_reduce_sum_multi(e, [A+2*n for n in range(6)])
    e("s_nop 1")
    for n in range(6): e(f"v_readlane_b32 s{28+n}, v{A+2*n}, 63")
    e(f"s_mov_b32 s37, {f32(1.0/1024)}"); e(f"v_mov_b32 v{A+1}, {f32(1e-5)}")
    for r in range(2): e(f"v_mov_b32 v{A+2*r}, s{28+r}"); e(f"v_mov_b32 v{A+4+2*r}, s{30+r}")
    e(f"v_mov_b32 v{A+8}, s32"); e(f"v_mov_b32 v{A+9}, s33"); e("v_cmp_eq_u32 vcc, 1, v2")
    for r in range(2): e(f"v_mul_f32 v{A+2*r}, s37, v{A+2*r}"); e(f"v_fma_f32 v{A+4+2*r}, v{A+4+2*r}, s37, v{A+1}")
    e(f"v_cndmask_b32 v{A+8}, v{A+8}, v{A+9}, vcc")
    for r in range(2): e(f"v_fma_f32 v{A+4+2*r}, -v{A+2*r}, v{A+2*r}, v{A+4+2*r}")
    e(f"v_mul_f32 v{A+8}, {f32(-LOG2E)}, v{A+8}")
    for r in range(2): e(f"v_max_f32 v{A+4+2*r}, v{A+4+2*r}, v{A+1}")
    e(f"v_exp_f32 v{A+8}, v{A+8}")
    for r in range(2): e(f"v_rsq_f32 v{A+4+2*r}, v{A+4+2*r}")
    e(f"v_add_f32 v{A+8}, 1.0, v{A+8}")
    for r in range(2): e(f"v_mul_f32 v{A+2*r}, v{A+2*r}, v{A+4+2*r}")
    e(f"v_rcp_f32 v{A+8}, v{A+8}")
    for r in range(2):
        b = XF + 16*r
        for i in range(0, 16, 2):
            e(f"v_pk_fma_f32 v[{b+i}:{b+i+1}], v[{b+i}:{b+i+1}], v[{A+4+2*r}:{A+5+2*r}], v[{A+2*r}:{A+1+2*r}] op_sel_hi:[1,0,0] neg_lo:[0,0,1] neg_hi:[0,0,1]")
        for i in range(8): e(f"v_cvt_pk_bf16_f32 v{XR+8*r+i}, v{b+2*i}, v{b+2*i+1}")
        for hh in range(2): e(f"ds_write_b128 v22, v[{XR+8*r+4*hh}:{XR+8*r+4*hh+3}] offset:{(2*m+r)*HP + hh*1024}")
    e(f"v_lshlrev_b32 v{A+9}, 2, v2"); e(f"s_lshl_b32 s37, s{sli}, 6"); e("s_lshl_b32 s38, s3, 4"); e("s_add_u32 s37, s37, s38"); e(f"s_add_u32 s37, s37, {WS_G + 8*m:#x}")
    e("s_mov_b64 exec, 3"); e(f"buffer_store_dword v{A+8}, v{A+9}, s[16:19], s37 offen sc1"); e("s_mov_b64 exec, -1")

def code_warm(k, lab):
    e = k.e
    e("s_getpc_b64 s[10:11]"); e(f"{lab}:")
    e(f"s_sub_u32 s10, s10, {lab}-{k.name}"); e("s_subb_u32 s11, s11, 0")
    e("s_lshl_b32 s60, s56, 10"); e("v_add_u32 v15, s60, v3")
    e(f"s_mov_b32 s61, a_end-{k.name}-16"); e("v_min_u32 v15, s61, v15")
    e("global_load_dwordx4 v[236:239], v15, s[10:11]")
    e("v_add_u32 v15, 0x8000, v15"); e("v_min_u32 v15, s61, v15")
    e("global_load_dwordx4 v[236:239], v15, s[10:11]")

def gen_a(opts):
    ALIGN[0] = opts.get("align", 3)
    if opts.get("dbgst"):
        DBGST.extend([[(84, 2), (90, 3), (86, 4)], [(82, 5), (84, 6), (88, 7), (86, 8)], [(84, 9), (86, 10)], [(82, 11), (84, 12), (86, 13)]])
    c2 = GemmCfg(256, 2, 6, 32)
    k = Kern("gated_mix__linear_kernel_hedgehog__mixer_token_mlp__prompt_kernel", 256, 512, 160*1024, vgpr=256, sgpr=100)
    e = k.e
    stamps = opts.get("stamps", False)
    pf = opts.get("pf", True)
    e("s_cmp_ge_u32 s2, 256"); e("s_cbranch_scc1 a_end")
    e("s_load_dwordx8 s[64:71], s[0:1], 0")
    e("s_load_dwordx4 s[72:75], s[0:1], 40")
    e("s_load_dwordx4 s[76:79], s[0:1], 72")
    e("s_load_dwordx4 s[4:7], s[0:1], 88")
    e("s_load_dwordx2 s[12:13], s[0:1], 56")
    e(f"s_memrealtime s[{TOK}:{TOK+1}]")
    if opts.get("mixed", True):
        e("s_lshr_b32 s52, s2, 7"); e("s_bfe_u32 s53, s2, 0x40003"); e("s_and_b32 s54, s2, 1"); e("s_and_b32 s55, s2, 6"); e("s_or_b32 s55, s55, s52")
        e("s_lshr_b32 s56, s53, 2"); e("s_lshl_b32 s56, s56, 3"); e("s_lshl_b32 s57, s54, 2"); e("s_or_b32 s56, s56, s57"); e("s_and_b32 s57, s53, 3"); e("s_or_b32 s56, s56, s57")
        e("s_lshl_b32 s46, s56, 3"); e("s_or_b32 s46, s46, s55")
        e("s_lshr_b32 s56, s53, 1"); e("s_lshl_b32 s56, s56, 2"); e("s_lshl_b32 s57, s54, 1"); e("s_or_b32 s56, s56, s57"); e("s_and_b32 s57, s53, 1"); e("s_or_b32 s56, s56, s57")
        e("s_lshl_b32 s56, s56, 3"); e("s_or_b32 s56, s56, s55")
        e("s_cmp_eq_u32 s52, 0"); e("s_cselect_b32 s2, s46, s56")
    else:
        e("s_mov_b32 s46, s2")
    e("s_mov_b32 s92, s2")
    e("v_lshrrev_b32 v1, 6, v0"); e("v_and_b32 v2, 63, v0"); e("v_lshlrev_b32 v3, 4, v2")
    e("s_lshr_b32 s56, s2, 3"); e("s_and_b32 s57, s2, 7")
    e("v_readfirstlane_b32 s3, v1")
    e("v_mov_b32 v14, 0")
    e("s_waitcnt lgkmcnt(0)")
    if stamps: e(f"s_mov_b32 s80, s{TOK}")
    k.srd(16, WS, WS_SIZE)
    k.srd(40, DBG, 256)
    k.srd(20, X, S_*D_*2)
    e("s_lshl_b32 s60, s2, 3"); e("s_add_u32 s60, s60, s3"); e("s_cmp_lg_u32 s60, 7"); e("s_cbranch_scc1 a_ntp")
    e(f"s_or_b32 s{TOK}, s{TOK}, 1"); e(f"v_mov_b32 v4, s{TOK}"); e(f"v_mov_b32 v5, s{TOK+1}")
    e(lane0("buffer_store_dwordx2 v[4:5], v14, s[40:43], 0 offen sc1"))
    e("a_ntp:")
    e("s_lshr_b32 s58, s57, 1")
    e("s_and_b32 s60, s57, 1"); e("s_cmp_eq_u32 s60, 1"); e("s_cbranch_scc1 a_bchain")
    e("s_and_b32 s52, s56, 7")
    e("s_lshl_b32 s53, s58, 2"); e("s_lshr_b32 s60, s56, 3"); e("s_add_u32 s53, s53, s60")
    e("s_cmp_lt_u32 s3, 4"); e("s_cbranch_scc1 a_g1c")
    st = Stream(k)
    k.srd(24, WQKV, D_*3*D_*2)
    e("s_sub_u32 s3, s3, 4")
    e("v_lshrrev_b32 v7, 3, v2")
    e("s_lshl_b32 s60, s3, 6"); e("v_add_u32 v4, s60, v7"); e("v_lshlrev_b32 v4, 11, v4")
    e("v_lshrrev_b32 v5, 1, v7"); e("v_xor_b32 v5, v5, v2"); e("v_and_b32 v5, 7, v5")
    e("v_lshl_add_u32 v16, v5, 4, v4")
    e("v_xor_b32 v17, 64, v16"); e(f"v_add_u32 v17, {8*2048}, v17")
    for n in range(2, 8): e(f"v_add_u32 v{16+n}, {(n//2)*16*2048}, v{16+n%2}")
    lane_T_dma_off(e, 16, 24, 2, 6, 6144, 3)
    for n in (1, 2): e(f"v_add_u32 v{24+n}, {n*2048}, v24")
    e("s_lshl_b32 s9, s52, 19"); e("s_lshl_b32 s10, s53, 7")
    e("s_lshl_b32 s30, s3, 13"); e("s_lshl_b32 s31, s3, 10"); e(f"s_add_u32 s31, s31, {96*1024}")
    e(f"s_mul_i32 s14, s52, {opts.get('rotmul', 1)}")
    def issueP(n, half):
        if half == 0:
            st.e(f"s_add_u32 s11, s14, {n}\ns_and_b32 s11, s11, 15\ns_lshl_b32 s11, s11, 7\ns_add_u32 s28, s9, s11")
        for rb in range(4*half, 4*half+4):
            st.e(f"s_add_u32 m0, s30, {(n % 3)*32768 + rb*1024}\ns_nop 0\nbuffer_load_dwordx4 v{16+rb}, s[20:23], s28 offen lds")
        st.mark(f"P{n}")
    def issueT(t):
        st.e(f"s_lshl_b32 s11, s14, 1\ns_add_u32 s11, s11, {t}\ns_and_b32 s11, s11, 31\ns_mul_i32 s11, s11, {32*6144}\ns_add_u32 s29, s10, s11")
        for sg in range(3):
            st.e(f"s_add_u32 m0, s31, {(t % 5)*12288 + sg*4096}\ns_nop 0\nbuffer_load_dwordx4 v{24+sg}, s[24:27], s29 offen{opts.get('nt1', '')} lds")
        st.mark(f"T{t}")
    issueP(0, 0); issueP(0, 1); issueT(0); st.mark("S0"); issueT(1); issueP(1, 0); issueP(1, 1); issueT(2); issueT(3); issueP(2, 0); issueP(2, 1); issueT(4)
    k.srd(48, WPHI, 32*2048)
    e("s_lshl_b32 s60, s53, 12"); e("s_lshl_b32 s61, s3, 10"); e("s_add_u32 s60, s60, s61"); e(f"s_add_u32 m0, s61, {156*1024}"); e("s_nop 0")
    st.e("buffer_load_dwordx4 v3, s[48:51], s60 offen lds")
    k.srd(32, 12, F_*S_*2)
    e("s_lshl_b32 s61, s58, 5"); e("s_add_u32 s61, s61, s56"); e("s_lshl_b32 s61, s61, 2"); e("s_add_u32 s61, s61, s3"); e("s_lshl_b32 s61, s61, 10")
    t0, npc = opts.get("g1sw", (8, 0))
    sched = {}
    for n in range(npc): sched[t0 + n*(32-t0)//npc] = sched.get(t0 + n*(32-t0)//npc, 0) + 1
    st.e("@wait S0"); e("s_barrier")
    for t in range(32):
        if t + 1 < 32:
            st.e(f"@wait T{t+1}")
            if t % 2 == 1: st.e(f"@wait P{(t+1)//2}")
        e("s_barrier")
        if t + 5 < 32: issueT(t + 5)
        m = (t - 1) // 2 + 3
        if t >= 1 and m < 16: issueP(m, (t + 1) % 2)
        if t == 20: st.e("@vm tok buffer_load_dwordx2 v[12:13], v14, s[40:43], 0 offen sc1")
        for n in range(sched.get(t, 0)): st.e(f"buffer_load_dwordx4 v[240:243], v3, s[32:35], s61 offen\ns_add_u32 s61, s61, {512*1024}")
    e("s_lshr_b32 s54, s3, 1"); e("s_and_b32 s55, s3, 1"); e("s_lshl_b32 s59, s53, 1"); e("s_add_u32 s59, s59, s55")
    e("s_mul_i32 s60, s3, 12288"); e("v_add_u32 v8, s60, v3"); e(f"v_mov_b32 v9, {152*1024}")
    e("s_add_u32 s3, s3, 4"); e("s_mov_b32 s35, 1"); e("s_mov_b64 s[8:9], s[12:13]")
    e("s_waitcnt vmcnt(0)")
    e(f"v_readfirstlane_b32 s{TOK}, v12"); e(f"s_cmp_lg_u32 s{TOK}, 0"); e("s_cbranch_scc1 a_tkok")
    get_token(k, 14, 12)
    e("a_tkok:")
    e("ds_write_b64 v9, v[12:13]"); e("s_waitcnt lgkmcnt(0)")
    e("s_barrier")
    for n in range(4):
        for part in range(3): e(f"ds_read_b128 v[{64+24*n+4*part}:{64+24*n+4*part+3}], v8 offset:{(n*3+part)*1024}")
    e("s_waitcnt lgkmcnt(0)")
    e(f"v_readfirstlane_b32 s{TOK}, v12"); e(f"v_readfirstlane_b32 s{TOK+1}, v13")
    e("s_branch a_epi")
    e("a_g1c:")
    e("s_lshr_b32 s54, s3, 1"); e("s_and_b32 s55, s3, 1")
    e("s_lshl_b32 s59, s53, 1"); e("s_add_u32 s59, s59, s55")
    e("s_mov_b64 s[8:9], s[12:13]")
    acc = [[64 + (i*6+j)*4 for j in range(6)] for i in range(8)]
    if opts.get("cwarm", False):
        e("s_cmp_lg_u32 s3, 0"); e("s_cbranch_scc1 a_cw1");
        code_warm(k, "a_pc1"); e("s_waitcnt vmcnt(0)")
        e("a_cw1:")
    for r in range(64, 256, 2): e(f"v_mov_b64 v[{r}:{r+1}], 0")
    e("v_and_b32 v8, 15, v2"); e("v_lshrrev_b32 v9, 4, v2")
    e("v_lshrrev_b32 v10, 1, v8"); e("v_xor_b32 v10, v10, v9")
    e("s_lshl_b32 s60, s54, 7"); e("v_add_u32 v4, s60, v8"); e("v_lshlrev_b32 v4, 7, v4"); e("v_lshl_add_u32 v4, v10, 4, v4")
    lane_T_read_off(e, 16, 6, 2, 8, 9)
    e("s_lshl_b32 s60, s55, 6"); e("v_xor_b32 v6, s60, v6"); e(f"v_add_u32 v6, {96*1024}, v6"); e("v_xor_b32 v7, 32, v6")
    p_off = [(0, i*2048) for i in range(8)]
    t_desc = [(j % 2, (j//2)*4096) for j in range(6)]
    order = [(2*a+b, j, 2*a+b, j) for a in range(4) for j in range(6) for b in range(2)]
    pbufs = [16 + 4*i for i in range(4)]; tbufs = [32 + 4*j for j in range(8)]
    ringT = ["s_cmp_eq_u32 s36, 4", "s_cselect_b32 s37, s39, 12288", "s_cselect_b32 s36, -1, s36", "s_add_u32 s36, s36, 1"]
    ringP = ["s_cmp_eq_u32 s32, 2", "s_cselect_b32 s33, s34, 0x8000", "s_cselect_b32 s32, -1, s32", "s_add_u32 s32, s32, 1"]
    salu = lambda s: ringT + (ringP if s % 2 else [])
    valu = lambda s: ["v_add_u32 v6, s37, v6", "v_add_u32 v7, s37, v7", "v_xor_b32 v4, 64, v4"] + (["v_add_u32 v4, s33, v4"] if s % 2 else [])
    tail = ["s_sub_u32 s38, s38, 1", "s_cmp_lg_u32 s38, 0"]
    ahead, body, U = build_consumer(None, 16, 8, 6, p_off, t_desc, acc, pbufs, tbufs, [4], [6, 7], lambda i, j: j >= 4, order,
                                    opts.get("bar1", 38), 1, salu, valu, tail, minU=2, salu_at=0)
    e(f"s_mov_b32 s39, {(-4*12288) & 0xffffffff:#x}"); e(f"s_mov_b32 s34, {(-2*32768) & 0xffffffff:#x}"); e("s_mov_b32 s36, 0"); e("s_mov_b32 s32, 0")
    if stamps: e("s_memrealtime s[82:83]")
    e("s_barrier")
    if stamps: e("s_memtime s[94:95]"); e("s_memrealtime s[98:99]")
    for l in ahead: e(l)
    e("s_waitcnt lgkmcnt(0)")
    e(f"s_mov_b32 s38, {32//U}"); e(f".p2align {ALIGN[0]}"); e("a_g1loop:")
    for l in body: e(l)
    e("s_cbranch_scc1 a_g1loop")
    if stamps: e("s_memrealtime s[84:85]"); e("s_memtime s[96:97]"); e("s_waitcnt lgkmcnt(0)"); e("s_sub_u32 s93, s96, s94"); e("s_sub_u32 s98, s84, s98")
    e("s_waitcnt lgkmcnt(0)")
    Bk = lambda sb: 64 + 24*sb
    def cvt_units(sbs):
        for sb in sbs:
            B = Bk(sb)
            for n in range(8): e(f"v_cvt_pk_bf16_f32 v{B+n}, v{B+2*n}, v{B+2*n+1}")
        for p in sorted(set(sb//2 for sb in sbs)):
            for db in range(2):
                d = Bk(2*p+db) + 8
                for h in range(2):
                    a = Bk(2*p+h) + 16 + 4*db
                    e(f"v_cvt_pk_bf16_f32 v{d+2*h}, v{a}, v{a+1}"); e(f"v_cvt_pk_bf16_f32 v{d+2*h+1}, v{a+2}, v{a+3}")
    e("s_mul_i32 s60, s3, 12288"); e("v_add_u32 v8, s60, v3"); e(f"v_mov_b32 v9, {152*1024}")
    e("s_nop 4")
    cvt_units([4, 5, 6, 7])
    for n in range(4):
        for part in range(3): e(f"ds_write_b128 v8, v[{Bk(4+n)+4*part}:{Bk(4+n)+4*part+3}] offset:{(n*3+part)*1024}")
    cvt_units([0, 1, 2, 3])
    e("s_mov_b32 s35, 0")
    e("s_nop 0")
    e("s_waitcnt lgkmcnt(0)"); e("s_barrier")
    e("ds_read_b64 v[12:13], v9"); e("s_waitcnt lgkmcnt(0)")
    e(f"v_readfirstlane_b32 s{TOK}, v12"); e(f"v_readfirstlane_b32 s{TOK+1}, v13")
    if opts.get("estamp"): e("s_memrealtime s[82:83]")
    e("a_epi:")
    ne1 = opts.get("e1sw", 14)
    if ne1:
        k.srd(24, 8, F_*S_*2)
        e("s_lshl_b32 s60, s58, 5"); e("s_add_u32 s60, s60, s56"); e("s_lshl_b32 s60, s60, 3"); e("s_add_u32 s60, s60, s3"); e("s_lshl_b32 s60, s60, 10")
        if opts.get("e1lds"):
            e("s_lshl_b32 s61, s3, 10"); e(f"s_add_u32 m0, s61, {144*1024}"); e("s_nop 0")
            for n in range(ne1): e(f"buffer_load_dwordx4 v3, s[24:27], s60 offen lds"); e(f"s_add_u32 s60, s60, 0x100000")
        elif opts.get("e1skew"):
            e("s_cmp_lt_u32 s3, 4"); e("s_cbranch_scc1 a_sk"); e("s_sleep 64"); e("a_sk:")
        else:
            for n in range(ne1): e(f"buffer_load_dwordx4 v[4:7], v3, s[24:27], s60 offen"); e(f"s_add_u32 s60, s60, 0x100000")
    holes = [Bk(sb) + 12 + 4*n for sb in range(4) for n in range(3)]
    KVq = holes[0:9]; WPq = holes[9:11]
    PK, ST, EP, EF, ZB = 16, 48, 160, 224, 240
    e("v_lshrrev_b32 v8, 2, v2"); e("v_lshlrev_b32 v8, 6, v8"); e("v_and_b32 v9, 3, v2"); e("v_lshl_add_u32 v8, v9, 3, v8")
    e("s_lshl_b32 s60, s55, 11"); e(f"s_add_u32 s60, s60, {156*1024}"); e("v_add_u32 v8, s60, v8")
    for fb in range(2):
        for t in range(2): e(f"ds_read_b64_tr_b16 v[{WPq[fb]+2*t}:{WPq[fb]+2*t+1}], v8 offset:{t*1024 + fb*32}")
    e(f"s_mov_b32 s62, {f32(LOG2E)}"); e(f"s_mov_b32 s63, {f32(LOG2E)}")
    e("v_and_b32 v8, 15, v2"); e("v_lshrrev_b32 v9, 4, v2"); e("s_mul_i32 s34, s3, 10240"); e(f"s_add_u32 s34, s34, {48*1024}")
    e("v_mul_u32_u24 v10, 160, v8"); e("v_lshl_add_u32 v10, v9, 3, v10"); e("v_add_u32 v10, s34, v10")
    e("v_lshrrev_b32 v8, 2, v8"); e("v_lshl_add_u32 v8, v9, 2, v8"); e("v_mul_u32_u24 v11, 160, v8")
    def pmfma(off):
        for u in range(4):
            for fb in range(2):
                d = PK + (u*2+fb)*4; s = Bk(u) + off
                e(f"v_mfma_f32_16x16x32_bf16 v[{d}:{d+3}], v[{WPq[fb]}:{WPq[fb]+3}], v[{s}:{s+3}], 0")
    e("s_waitcnt lgkmcnt(0)")
    pmfma(4)
    e("v_and_b32 v8, 3, v2"); e("v_lshl_add_u32 v11, v8, 3, v11"); e("v_add_u32 v11, s34, v11"); e("v_mov_b32 v9, 0x3f803f80")
    for fbk in range(4):
        e(f"v_cmp_eq_u32 vcc, {fbk}, v8"); e("s_nop 1"); e(f"v_cndmask_b32 v{ZB+4*fbk}, 0, v9, vcc")
        for r in range(1, 4): e(f"v_mov_b32 v{ZB+4*fbk+r}, v{ZB+4*fbk}")
    units = [dict(x=[PK+u*8, PK+u*8+4], ep=EP+u*16, em=EP+8+u*16, st=ST+u*4, out=EP+u*16) for u in range(4)]
    softmax_units(e, units, 62, True)
    for u in range(4):
        o = units[u]["out"]
        for fbk in range(4): e(f"ds_write_b64 v10, v[{o+2*fbk}:{o+2*fbk+1}] offset:{u*16*160 + fbk*32}")
    pmfma(0)
    e("s_waitcnt lgkmcnt(0)")
    EFs = [EF, EP + 8]
    efq = [[EF + 4*n for n in range(4)], [EP+8, EP+12, EP+24, EP+28]]
    for p in range(2):
        for fbk in range(4):
            for t in range(2): e(f"ds_read_b64_tr_b16 v[{efq[p][fbk]+2*t}:{efq[p][fbk]+2*t+1}], v11 offset:{(2*p+t)*16*160 + fbk*32}")
    for p in range(2):
        for fbk in range(4):
            e(f"s_waitcnt lgkmcnt({14-8*p-2*fbk})")
            for db in range(3):
                d = KVq[fbk*2+db] if db < 2 else KVq[8]
                b = Bk(2*p+db) + 8 if db < 2 else ZB + 4*fbk
                cc = "0" if (p == 0 and (db < 2 or fbk == 0)) else f"v[{d}:{d+3}]"
                e(f"v_mfma_f32_16x16x32_bf16 v[{d}:{d+3}], v[{efq[p][fbk]}:{efq[p][fbk]+3}], v[{b}:{b+3}], {cc}")
    e("v_add_u32 v10, s34, v3")
    e("s_lshr_b32 s33, s3, 1"); e("s_lshr_b32 s61, s33, 1"); e("s_lshl_b32 s61, s61, 2"); e("s_and_b32 s60, s33, 1"); e("s_add_u32 s61, s61, s60"); e("s_lshl_b32 s61, s61, 10")
    e("s_mul_i32 s60, s55, 10240"); e("s_add_u32 s60, s60, s61"); e(f"s_add_u32 s60, s60, {48*1024}"); e("v_add_u32 v11, s60, v3"); e("v_add_u32 v15, 0xa000, v11")
    e("s_lshl_b32 s60, s59, 2"); e("s_add_u32 s60, s60, s33"); e("s_lshl_b32 s60, s60, 3")
    e(f"s_lshl_b32 s38, s60, 12"); e(f"s_add_u32 s38, s38, {WS_KVP:#x}"); e("s_lshl_b32 s37, s52, 12"); e("s_add_u32 s37, s37, s38")
    e("s_lshl_b32 s39, s60, 7"); e(f"s_add_u32 s39, s39, {WS_FLAG1:#x}"); e("s_lshl_b32 s36, s52, 7"); e("s_add_u32 s36, s36, s39")
    for qd in range(NQ): e(f"ds_write_b128 v10, v[{KVq[qd]}:{KVq[qd]+3}] offset:{qd*1024}")
    e("s_waitcnt lgkmcnt(0)"); e("s_barrier")
    if opts.get("estamp"): e("s_memrealtime s[94:95]"); e("s_waitcnt lgkmcnt(0)")
    if opts.get("dump"):
        e("s_lshl_b32 s60, s2, 3"); e("s_add_u32 s60, s60, s3"); e("s_lshl_b32 s60, s60, 15"); e("s_add_u32 s60, s60, 0x3000000")
        quads = [EP+u*16+h*4 for u in range(4) for h in range(2)] + efq[0] + efq[1] + KVq + [ST+4*u for u in range(4)] + [Bk(u)+4 for u in range(3)]
        for n, q in enumerate(quads):
            e(f"buffer_store_dwordx4 v[{q}:{q+3}], v3, s[16:19], s60 offen"); e("s_add_u32 s60, s60, 1024")
        e("s_nop 1")
    C0 = 224
    for hq in range(2):
        for src in range(4): e(f"ds_read_b128 v[{C0+(hq*4+src)*4}:{C0+(hq*4+src)*4+3}], v{11 if src < 2 else 15} offset:{(src%2)*20480 + hq*2048}")
    e("s_cmp_lg_u32 s33, 0"); e("s_cbranch_scc1 a_noz")
    for src in range(4): e(f"ds_read_b128 v[{holes[src]}:{holes[src]+3}], v{11 if src < 2 else 15} offset:{(src%2)*20480 + 8192}")
    e("s_waitcnt lgkmcnt(0)")
    for src in range(1, 4):
        for q in (0, 2): e(f"v_pk_add_f32 v[{holes[0]+q}:{holes[0]+q+1}], v[{holes[0]+q}:{holes[0]+q+1}], v[{holes[src]+q}:{holes[src]+q+1}]")
    e(f"buffer_store_dwordx4 v[{holes[0]}:{holes[0]+3}], v3, s[16:19], s37 offen offset:2048 sc1")
    e("a_noz:")
    e("s_waitcnt lgkmcnt(0)")
    for hq in range(2):
        a = C0 + hq*16
        for src in range(1, 4):
            for q in (0, 2): e(f"v_pk_add_f32 v[{a+q}:{a+q+1}], v[{a+q}:{a+q+1}], v[{a+4*src+q}:{a+4*src+q+1}]")
        e(f"buffer_store_dwordx4 v[{a}:{a+3}], v3, s[16:19], s37 offen offset:{hq*1024} sc1")
    e("s_lshl_b32 s32, s52, 2"); e("s_lshl_b32 s60, s54, 1"); e("s_add_u32 s32, s32, s60"); e("s_add_u32 s32, s32, s35")
    e("s_lshl_b32 s60, s32, 9"); e(f"s_add_u32 s60, s60, {WS_FLAGL - 8*128:#x}")
    e("v_lshlrev_b32 v10, 7, v2"); e("v_mov_b32 v11, s60"); e("v_mov_b32 v15, s39"); e("v_cmp_gt_u32 vcc, 8, v2"); e("s_nop 1"); e("v_cndmask_b32 v11, v11, v15, vcc"); e("v_add_u32 v10, v10, v11")
    units = [dict(x=[PK+u*8, PK+u*8+4], ep=EP+u*16, em=EP+8+u*16, st=ST+u*4, out=Bk(u)+4) for u in range(4)]
    w = Work(); softmax_units(w.e, units, 62, False)
    cut = len(w.q) * opts.get("e3cut", 30) // 100
    for l in w.q[:cut]: e(l)
    e("s_waitcnt vmcnt(0)")
    e(lane0("buffer_store_dwordx2 v[12:13], v14, s[16:19], s36 offen sc1"))
    if opts.get("estamp"): e("s_memrealtime s[96:97]"); e("s_waitcnt lgkmcnt(0)")
    for l in w.q[cut:]: e(l)
    if stamps: e("s_memrealtime s[88:89]")
    KOq = holes[0:4]; ZOq = holes[4:6]; GG = holes[6]
    poll_tok(k, 10, 16, "0", 0xfff, 8, sleep=1)
    G0 = 160
    for n in range(8):
        e(f"s_add_u32 s36, s38, {n*4096}")
        for hq in range(2):
            e(f"buffer_load_dwordx4 v[{G0+n*8+hq*4}:{G0+n*8+hq*4+3}], v3, s[16:19], s36 offen offset:{hq*1024} sc1")
    e("v_and_b32 v8, 15, v2"); e("v_lshlrev_b32 v8, 2, v8")
    e("s_lshl_b32 s36, s32, 8"); e(f"s_add_u32 s36, s36, {WS_G:#x}")
    for u in range(4): e(f"buffer_load_dword v{GG+u}, v8, s[16:19], s36 offen offset:{u*64} sc1")
    e("s_lshl_b32 s60, s55, 13"); e(f"s_add_u32 s60, s60, {128*1024}"); e("v_add_u32 v10, s60, v3"); e("s_lshl_b32 s60, s33, 10"); e("v_add_u32 v11, s60, v10")
    e("s_cmp_lg_u32 s33, 0"); e("s_cbranch_scc1 a_noz2")
    for n in range(8):
        e(f"s_add_u32 s36, s38, {n*4096 + 2048}"); e(f"buffer_load_dwordx4 v[{224+n*4}:{227+n*4}], v3, s[16:19], s36 offen sc1")
    e("s_waitcnt vmcnt(0)")
    for st_ in (16, 8, 4):
        for r in range(0, st_, 2): e(f"v_pk_add_f32 v[{224+r}:{225+r}], v[{224+r}:{225+r}], v[{224+st_+r}:{225+st_+r}]")
    e("v_and_b32 v8, 3, v2"); e("v_mov_b32 v9, 0x3f803f80")
    for fbk in range(4):
        for r in range(4): e(f"v_mov_b32_dpp v{240+fbk*4+r}, v{224+r} quad_perm:[{fbk},{fbk},{fbk},{fbk}] row_mask:0xf bank_mask:0xf")
    e("v_cmp_eq_u32 vcc, 1, v8"); e("s_nop 1"); e("v_cndmask_b32 v9, 0, v9, vcc"); e("v_cmp_eq_u32 vcc, 0, v8")
    for n in range(8): e(f"v_cvt_pk_bf16_f32 v{224+n}, v{240+2*n}, v{241+2*n}")
    for n in range(8): e(f"v_cndmask_b32 v{224+n}, v9, v{224+n}, vcc")
    e("ds_write_b128 v10, v[224:227] offset:4096"); e("ds_write_b128 v10, v[228:231] offset:5120")
    e("a_noz2:")
    e("s_waitcnt vmcnt(0)")
    for st_ in (32, 16, 8):
        for r in range(0, st_, 2): e(f"v_pk_add_f32 v[{G0+r}:{G0+r+1}], v[{G0+r}:{G0+r+1}], v[{G0+st_+r}:{G0+st_+r+1}]")
    for n in range(4): e(f"v_cvt_pk_bf16_f32 v{G0+n}, v{G0+2*n}, v{G0+2*n+1}")
    e(f"ds_write_b128 v11, v[{G0}:{G0+3}]")
    e("s_waitcnt lgkmcnt(0)"); e("s_barrier")
    if stamps: e("s_memrealtime s[90:91]")
    for n, d in enumerate(KOq + ZOq): e(f"ds_read_b128 v[{d}:{d+3}], v10 offset:{n*1024}")
    e("s_mov_b32 s38, s32")
    e("v_lshrrev_b32 v8, 5, v2"); e("v_lshlrev_b32 v9, 15, v8"); e("v_and_b32 v8, 31, v2"); e("v_lshl_add_u32 v9, v8, 4, v9")
    e("s_lshl_b32 s36, s59, 17"); e("s_lshl_b32 s37, s38, 10"); e("s_add_u32 s36, s36, s37")
    e(f"s_add_u32 s36, s36, {WS_OT:#x}"); e("s_add_u32 s37, s36, 0x10000")
    e(f"v_mov_b32 v8, {f32(1e-6)}")
    e("s_waitcnt lgkmcnt(0)")
    nq = [160 + 4*n for n in range(24)]
    for u in range(4):
        for sg in range(2):
            b = Bk(u) + 4 + sg*4
            for db in (2, 0, 1):
                d = nq[u*6 + sg*3 + db]; a = KOq[sg*2+db] if db < 2 else ZOq[sg]
                e(f"v_mfma_f32_16x16x32_bf16 v[{d}:{d+3}], v[{a}:{a+3}], v[{b}:{b+3}], 0")
    e("s_nop 1")
    for u in range(4):
        xp, xm = nq[u*6+2], nq[u*6+5]
        e(f"v_rcp_f32 v{xp+2}, v{xp+1}"); e(f"v_rcp_f32 v{xm+2}, v{xm+1}")
    for u in range(4):
        xp, xm = nq[u*6+2], nq[u*6+5]
        e(f"v_fma_f32 v{xp}, v{xp}, v{xp+2}, v8"); e(f"v_fma_f32 v{xp}, v{xm}, v{xm+2}, v{xp}")
    for u in range(4): xp = nq[u*6+2]; e(f"v_rcp_f32 v{xp}, v{xp}")
    for u in range(4): xp = nq[u*6+2]; e(f"v_mul_f32 v{xp}, v{xp}, v{GG+u}")
    for u in range(4):
        xp, xm = nq[u*6+2], nq[u*6+5]
        e(f"v_mul_f32 v{xp+2}, v{xp+2}, v{xp}"); e(f"v_mul_f32 v{xm+2}, v{xm+2}, v{xp}")
    for u in range(4):
        xp, xm = nq[u*6+2], nq[u*6+5]
        for db in range(2):
            np_, nm = nq[u*6+db], nq[u*6+3+db]
            for q in (0, 2):
                e(f"v_pk_mul_f32 v[{np_+q}:{np_+q+1}], v[{np_+q}:{np_+q+1}], v[{xp+2}:{xp+3}] op_sel_hi:[1,0]")
                e(f"v_pk_fma_f32 v[{np_+q}:{np_+q+1}], v[{nm+q}:{nm+q+1}], v[{xm+2}:{xm+3}], v[{np_+q}:{np_+q+1}] op_sel_hi:[1,0,1]")
    for u in range(4):
        for db in range(2):
            np_ = nq[u*6+db]; o = 16 + ((u//2)*2+db)*4 + (u % 2)*2
            e(f"v_cvt_pk_bf16_f32 v{o}, v{np_}, v{np_+1}"); e(f"v_cvt_pk_bf16_f32 v{o+1}, v{np_+2}, v{np_+3}")
    e("s_nop 1")
    for n in range(4):
        o = 16 + n*4; e(f"v_permlane16_swap_b32 v{o}, v{o+2}"); e(f"v_permlane16_swap_b32 v{o+1}, v{o+3}")
    for n in range(4):
        o = 16 + n*4; pr, db = divmod(n, 2)
        e(f"buffer_store_dwordx4 v[{o}:{o+3}], v9, s[16:19], s{36+db} offen offset:{pr*512}{opts.get('ust', '')}")
    if stamps: stamp_store(e, (80, 84, 82, 94, 96, 88, 86, 86) if opts.get("estamp") else (80, 82, 84, 88, 90, 86, 93, 98), WS_STAMP, "a_end")
    e("s_lshl_b32 s39, s52, 4"); e("s_add_u32 s39, s39, s53"); e("s_lshl_b32 s39, s39, 7"); e(f"s_add_u32 s39, s39, {WS_FLAGO:#x}")
    e("s_waitcnt vmcnt(0)")
    e("s_branch b_entry")
    e("a_bchain:")
    e("s_lshl_b32 s52, s58, 5"); e("s_add_u32 s52, s52, s56")
    e("s_and_b32 s54, s56, 3")
    e("s_mul_i32 s55, s58, 7"); e("s_lshr_b32 s60, s56, 2"); e("s_add_u32 s55, s55, s60")
    e("s_cmp_lt_u32 s3, 4"); e("s_cbranch_scc1 a_lnc")
    e("s_cmp_ge_u32 s56, 28"); e("s_cbranch_scc1 a_sp_hi")
    st = Stream(k)
    k.srd(24, W1, S_*F_*2)
    e("s_sub_u32 s3, s3, 4")
    lane_T_dma_off(e, 16, 24, 2, 6, F_*2, 3)
    e("v_add_u32 v25, 128, v24")
    e("s_lshl_b32 s60, s3, 14"); e(f"s_lshl_b32 s28, s54, 12"); e("s_add_u32 s28, s28, s60"); e(f"s_add_u32 s28, s28, {WS_HT:#x}")
    e("s_lshl_b32 s29, s55, 8")
    e("s_lshl_b32 s30, s3, 12"); e("s_lshl_b32 s31, s3, 10"); e(f"s_add_u32 s31, s31, {c2.PB}")
    R2 = dict(vP=[3], vT=[24, 25], sP=28, sT=29, srdP=16, srdT=24, sBase=30, sLds=32, sStage=34, sCnt=35, stepP=4*D_*16, stepT=32*F_*2)
    fl = (" sc1", opts.get("nt2", ""))
    e("s_mov_b32 s32, s30"); e("s_mov_b32 s33, s31")
    def tpro():
        for t in range(5): producer_issue(st.e, c2, R2, fl, "T", t*c2.SB)
    if opts.get("tpro", "pre") == "pre": tpro()
    def g2_touches():
        e("s_mul_i32 s60, s58, 28"); e("s_add_u32 s60, s60, s56"); e("s_lshl_b32 s60, s60, 2"); e("s_add_u32 s60, s60, s3"); e("s_lshl_b32 s60, s60, 10")
        if opts.get("pf_wq", True):
            k.srd(48, WQKV, D_*3*D_*2)
            e("s_mov_b32 s61, s60")
            for n in range(14): st.e("buffer_load_dwordx4 v[240:243], v3, s[48:51], s61 offen"); e(f"s_add_u32 s61, s61, {448*1024}")
        e(f"s_add_u32 s61, s60, {160*7168}")
        for n in range(opts.get("pf_g2", 0)): st.e("buffer_load_dwordx4 v[240:243], v3, s[24:27], s61 offen"); e(f"s_add_u32 s61, s61, {448*1024}")
    if opts.get("cwarm", False):
        e("s_cmp_lg_u32 s3, 3"); e("s_cbranch_scc1 a_cw2")
        code_warm(k, "a_pc2")
        e("a_cw2:")
    if opts.get("tpos", "L1") == "pre": g2_touches()
    e("v_lshlrev_b32 v8, 7, v2"); e("v_add_u32 v9, 0x2000, v8")
    e("s_barrier")
    e(f"v_mov_b32 v4, {158*1024}"); e("ds_read_b64 v[10:11], v4"); e("s_waitcnt lgkmcnt(0)")
    e(f"v_readfirstlane_b32 s{TOK}, v10"); e(f"v_readfirstlane_b32 s{TOK+1}, v11")
    if opts.get("tpro", "pre") == "L1": tpro()
    if opts.get("tpos", "L1") == "L1": g2_touches()
    e("s_barrier")
    producer_issue(st.e, c2, R2, fl, "T", 5*c2.SB)
    e(f"s_mov_b32 s36, {WS_FLAGL:#x}")
    if opts.get("lnsub", True):
        poll_tok(k, 8, 16, "s36", 0xfff, 10, sleep=1)
    else:
        poll_tok(k, [8, 9], 16, "s36", None, 10, sleep=2)
    st = Stream(k)
    for t in range(6):
        producer_issue(st.e, c2, R2, fl, "P", t*c2.SB); st.mark(f"b{t}")
        if t == 1 and opts.get("lnsub", True):
            e("s_lshl_b32 s60, s3, 12"); e("s_add_u32 s36, s36, s60"); e("s_mov_b32 exec_hi, 0")
            st.e("@vm lf buffer_load_dwordx2 v[10:11], v8, s[16:19], s36 offen sc1"); e("s_mov_b32 exec_hi, -1")
    e("s_mov_b32 s34, 0")
    st.e("@wait b0"); e("s_barrier")
    if opts.get("lnsub", True):
        st.e("@wait lf")
        e("s_mov_b32 exec_hi, 0"); e(f"v_cmp_ne_u64 vcc, s[{TOK}:{TOK+1}], v[10:11]"); e("s_mov_b32 exec_hi, -1"); e("s_nop 3"); e("s_cbranch_vccz a_lfok")
        poll_tok(k, 8, 16, "s36", 0xffffffff, 10, sleep=1)
        e("a_lfok:")
    for t in range(5):
        st.e(f"@wait b{t+1}"); e("s_barrier")
        producer_issue(st.e, c2, R2, fl); ring_advance(e, c2, R2)
    e("s_mov_b32 s35, 53")
    e("a_l2:")
    e("s_waitcnt vmcnt(24)"); e("s_barrier")
    producer_issue(e, c2, R2, fl); ring_advance(e, c2, R2)
    e("s_sub_u32 s35, s35, 1"); e("s_cmp_lg_u32 s35, 0"); e("s_cbranch_scc1 a_l2")
    for r in range(6):
        e(f"s_waitcnt vmcnt({max(4-r, 0)*6})"); e("s_barrier")
    e("s_branch b_entry")
    e("a_lnc:")
    st = Stream(k)
    e("s_lshl_b32 s37, s52, 15"); e("s_lshl_b32 s38, s3, 13"); e("s_add_u32 s37, s37, s38"); e("s_add_u32 s38, s37, 4096")
    for n in range(8): st.e(f"buffer_load_dwordx4 v[{48+4*n}:{51+4*n}], v3, s[20:23], s{37+n//4} offen offset:{(n%4)*1024}")
    k.srd(24, GW, D_*2)
    st.e("buffer_load_dwordx4 v[80:83], v3, s[24:27], 0 offen"); st.e("@vm lng buffer_load_dwordx4 v[84:87], v3, s[24:27], 0 offen offset:1024")
    k.srd(48, B1, F_*2)
    e("s_lshr_b32 s57, s3, 1"); e("s_and_b32 s58, s3, 1")
    e("v_lshrrev_b32 v7, 4, v2"); e("v_lshlrev_b32 v7, 3, v7")
    e("s_lshl_b32 s60, s55, 8"); e("s_lshl_b32 s61, s58, 6"); e("s_add_u32 s60, s60, s61")
    for j in range(4): st.e(f"buffer_load_dwordx2 v[{96+2*j}:{97+2*j}], v7, s[48:51], s60 offen offset:{(j//2)*128 + (j%2)*32}")
    st.e("buffer_load_dwordx2 v[12:13], v14, s[40:43], 0 offen sc1")
    LS = 120*1024
    e("s_mov_b32 s36, 0xffff0000")
    e(f"s_mul_i32 s37, s3, {4*HP}"); e(f"s_add_u32 s37, s37, {LS}"); e("v_add_u32 v22, s37, v3")
    e(f"v_bfe_u32 v23, v2, 2, 2"); e(f"v_mul_u32_u24 v23, {HP}, v23"); e("v_and_b32 v120, 3, v2"); e("v_lshl_add_u32 v23, v120, 3, v23")
    e(f"v_lshrrev_b32 v120, 4, v2"); e("v_lshl_add_u32 v23, v120, 5, v23")
    e(f"s_mul_i32 s37, s57, {8*HP}"); e("s_lshl_b32 s38, s58, 10"); e("s_add_u32 s37, s37, s38"); e(f"s_add_u32 s37, s37, {LS}"); e("v_add_u32 v23, s37, v23")
    st.e("@wait lng")
    for i in range(8):
        e(f"v_lshlrev_b32 v{104+2*i}, 16, v{80+i}"); e(f"v_and_b32 v{105+2*i}, s36, v{80+i}")
    if opts.get("ln1", True):
        ln_rows1(e, 48, 0, 52); ln_rows1(e, 64, 1, 52)
    else:
        w = Work()
        gen4.ln_rows(w, 48, 0); gen4.ln_rows(w, 64, 1)
        for it in w.q: e(it.replace("s_lshl_b32 s37, s2, 5", "s_lshl_b32 s37, s52, 6"))
    e("s_waitcnt vmcnt(2)")
    e(f"v_readfirstlane_b32 s{TOK}, v12"); e(f"v_readfirstlane_b32 s{TOK+1}, v13"); e(f"s_cmp_lg_u32 s{TOK}, 0"); e("s_cbranch_scc1 a_tk5")
    get_token(k, 14, 12)
    e("a_tk5:")
    e(f"v_mov_b32 v4, {158*1024}"); e("ds_write_b64 v4, v[12:13]")
    e("s_waitcnt lgkmcnt(0)"); e("s_barrier")
    for j in range(8):
        e(f"ds_read_b64_tr_b16 v[{144+4*j}:{145+4*j}], v23 offset:{128*j}")
        e(f"ds_read_b64_tr_b16 v[{146+4*j}:{147+4*j}], v23 offset:{128*j+4*HP}")
    e(f"s_lshl_b32 s37, s52, 15"); e("s_lshl_b32 s38, s3, 13"); e("s_add_u32 s37, s37, s38"); e(f"s_add_u32 s37, s37, {WS_HT:#x}"); e("s_add_u32 s38, s37, 4096")
    for j in range(8):
        e(f"s_waitcnt lgkmcnt({14-2*j})"); e(f"buffer_store_dwordx4 v[{144+4*j}:{147+4*j}], v3, s[16:19], s{37+j//4} offen offset:{(j%4)*1024} sc1")
    acc2 = [[128 + (i*4+j)*4 for j in range(4)] for i in range(8)]
    e("s_nop 1")
    for j in range(4):
        for hh in range(2):
            src = 96 + j*2 + hh; d0 = acc2[0][j] + hh*2
            e(f"v_lshlrev_b32 v{d0}, 16, v{src}"); e(f"v_and_b32 v{d0+1}, s36, v{src}")
        for i in range(1, 8):
            for q in (0, 2): e(f"v_mov_b64 v[{acc2[i][j]+q}:{acc2[i][j]+q+1}], v[{acc2[0][j]+q}:{acc2[0][j]+q+1}]")
    e("v_lshrrev_b32 v8, 4, v2"); e("v_lshlrev_b32 v4, 12, v8"); e("v_and_b32 v9, 15, v2"); e("v_lshl_add_u32 v4, v9, 4, v4")
    e("s_lshl_b32 s60, s57, 11"); e("v_add_u32 v4, s60, v4")
    lane_T_read_off(e, 16, 6, 2, 8, 9)
    e("s_lshl_b32 s60, s58, 6"); e("v_xor_b32 v6, s60, v6"); e("v_xor_b32 v7, 32, v6")
    e("s_waitcnt vmcnt(0)"); e("s_barrier")
    e("s_cmp_lg_u32 s3, 0"); e("s_cbranch_scc1 a_lnf")
    e("s_lshl_b32 s37, s52, 7"); e(f"s_add_u32 s37, s37, {WS_FLAGL:#x}")
    e(lane0("buffer_store_dwordx2 v[12:13], v14, s[16:19], s37 offen sc1"))
    e("a_lnf:")
    if stamps: e("s_memrealtime s[82:83]")
    e("s_cmp_ge_u32 s56, 28"); e("s_cbranch_scc1 a_spare")
    p_off = [(0, i*256) for i in range(8)]
    t_desc = [(j % 2, c2.PB + (j//2)*4096) for j in range(4)]
    order = [(i, j, i, j) for i in range(8) for j in range(4)]
    pbufs = [16 + 4*i for i in range(16)]; tbufs = [80 + 4*j for j in range(8)]
    consumer_loop(k, c2, [(2, ["s_memrealtime s[84:85]", "s_memtime s[94:95]", "s_waitcnt lgkmcnt(0)"] if stamps else []), (62, [])], 16, 8, 4, p_off, t_desc, acc2, pbufs, tbufs, [4], [6, 7],
                  False, order, 36, 37, 38, rpg=1, bar_pos=2)
    if stamps: e("s_memrealtime s[88:89]"); e("s_memtime s[96:97]"); e("s_waitcnt lgkmcnt(0)"); e("s_sub_u32 s93, s96, s94"); e("s_sub_u32 s98, s88, s84")
    e("s_waitcnt lgkmcnt(0)")
    e("v_lshrrev_b32 v8, 5, v2"); e("v_lshlrev_b32 v7, 14, v8"); e("v_and_b32 v8, 31, v2"); e("v_lshl_add_u32 v7, v8, 4, v7")
    e("s_lshl_b32 s14, s55, 18"); e("s_lshl_b32 s15, s58, 16"); e("s_add_u32 s14, s14, s15")
    e("s_lshl_b32 s15, s54, 12"); e("s_add_u32 s14, s14, s15"); e("s_lshl_b32 s15, s57, 11"); e("s_add_u32 s14, s14, s15")
    e(f"s_add_u32 s14, s14, {WS_UT:#x}")
    e(f"s_mov_b32 s42, {f32(GELU_K3)}"); e(f"s_mov_b32 s43, {f32(GELU_K3)}")
    e(f"v_mov_b32 v10, {f32(GELU_K1)}"); e(f"v_mov_b32 v11, {f32(GELU_K1)}")
    blk = 0
    for j in range(4):
        e(f"s_add_u32 s15, s14, {((j//2)*8 + (j%2)*2)*16384}")
        for i in (0, 4):
            t = 16 + (blk % 2) * 24; o = t + 16; blk += 1
            gelu_block(e, [acc2[i+b][j] + q for b in range(4) for q in (0, 2)], t, o)
            e("s_nop 1")
            for pr in range(2):
                e(f"v_permlane16_swap_b32 v{o+4*pr}, v{o+4*pr+2}"); e(f"v_permlane16_swap_b32 v{o+4*pr+1}, v{o+4*pr+3}")
            for pr in range(2):
                e(f"buffer_store_dwordx4 v[{o+4*pr}:{o+4*pr+3}], v7, s[16:19], s15 offen offset:{(i+2*pr)*256}{opts.get('ust', '')}")
    if stamps: stamp_store(e, (80, 82, 84, 88, 88, 86, 93, 98), WS_STAMP, "a_end")
    e("s_mul_i32 s39, s54, 28"); e("s_add_u32 s39, s39, s55"); e("s_lshl_b32 s39, s39, 7"); e(f"s_add_u32 s39, s39, {WS_FLAGU:#x}")
    e("s_waitcnt vmcnt(0)")
    e("s_branch b_entry")
    e("a_sp_hi:")
    e("s_barrier")
    e(f"v_mov_b32 v4, {158*1024}"); e("ds_read_b64 v[12:13], v4"); e("s_waitcnt lgkmcnt(0)")
    e(f"v_readfirstlane_b32 s{TOK}, v12"); e(f"v_readfirstlane_b32 s{TOK+1}, v13")
    e("s_barrier")
    e("a_spare:")
    if opts.get("pf_sp", True):
        k.srd(24, W1, S_*F_*2)
        r0 = opts.get("sp_row0", 192)
        e("s_lshr_b32 s60, s52, 5"); e("s_lshl_b32 s60, s60, 2"); e("s_add_u32 s60, s60, s56"); e("s_sub_u32 s60, s60, 28"); e("s_lshl_b32 s60, s60, 3"); e("s_add_u32 s60, s60, s3")
        e("s_lshl_b32 s59, s60, 10")
        q0 = opts.get("sp_wq0")
        if q0 is not None:
            k.srd(48, WQKV, D_*3*D_*2)
            e(f"s_add_u32 s61, s59, {q0*6144}")
            for n in range(((1024-q0)*6 + 127)//128): e("buffer_load_dwordx4 v[240:243], v3, s[48:51], s61 offen"); e(f"s_add_u32 s61, s61, {128*1024}")
        e(f"s_add_u32 s61, s59, {r0*7168}")
        e(f"s_mov_b32 s62, {max(1, ((2048-r0)*7 + 127)//128)}"); e("a_spl:")
        e("buffer_load_dwordx4 v[240:243], v3, s[24:27], s61 offen"); e(f"s_add_u32 s61, s61, {128*1024}"); e(f"s_waitcnt vmcnt({opts.get('sp_depth', 16)})")
        e("s_sub_u32 s62, s62, 1"); e("s_cmp_lg_u32 s62, 0"); e("s_cbranch_scc1 a_spl")
        k.srd(48, WO, D_*D_*2)
        e("s_mov_b32 s61, s59")
        for n in range(16): e("buffer_load_dwordx4 v[240:243], v3, s[48:51], s61 offen"); e(f"s_add_u32 s61, s61, {128*1024}")
        if opts.get("sp_w2", 0):
            e("s_load_dwordx2 s[12:13], s[0:1], 56"); e("s_waitcnt lgkmcnt(0)")
            k.srd(24, 12, S_*F_*2)
            e(f"s_mov_b32 s62, {opts.get('sp_w2', 0)}"); e("a_spl2:")
            e("buffer_load_dwordx4 v[240:243], v3, s[24:27], s59 offen"); e(f"s_add_u32 s59, s59, {128*1024}"); e(f"s_waitcnt vmcnt({opts.get('sp_depth', 16)})")
            e("s_sub_u32 s62, s62, 1"); e("s_cmp_lg_u32 s62, 0"); e("s_cbranch_scc1 a_spl2")
    e(f"s_mov_b32 s39, {WS_FLAGO + 0x4000:#x}")
    if stamps: stamp_store(e, (80, 82, 82, 82, 82, 86, 86, 86), WS_STAMP, "")
    gen_b2(opts, k)
    e("a_end:")
    return k

def gen_b2(opts, k):
    NS = opts.get("NSb", 5)
    c = GemmCfg(128, 2, NS, 64)
    e = k.e
    stamps = opts.get("stamps", False)
    NT = ""
    W2, B2 = 72, 74
    e("b_entry:")
    e("s_load_dwordx4 s[72:75], s[0:1], 56")
    if stamps: e("s_memrealtime s[80:81]")
    e("s_mov_b32 s2, s46"); e("s_mov_b32 s92, s2")
    e("v_lshrrev_b32 v1, 6, v0"); e("v_and_b32 v2, 63, v0"); e("v_lshlrev_b32 v3, 4, v2")
    e("s_lshr_b32 s56, s2, 3")
    e("v_readfirstlane_b32 s3, v1")
    e("s_and_b32 s52, s2, 1")
    if opts.get("bmap", "8d4s") == "8d4s":
        e("s_lshr_b32 s54, s56, 2")
        e("s_bfe_u32 s55, s2, 0x20001"); e("s_lshl_b32 s55, s55, 2"); e("s_and_b32 s60, s56, 3"); e("s_add_u32 s55, s55, s60")
    else:
        e("s_bfe_u32 s54, s2, 0x10001"); e("s_lshl_b32 s54, s54, 2"); e("s_and_b32 s60, s56, 3"); e("s_add_u32 s54, s54, s60")
        e("s_bfe_u32 s55, s2, 0x10002"); e("s_lshl_b32 s55, s55, 3"); e("s_lshr_b32 s60, s56, 2"); e("s_add_u32 s55, s55, s60")
    e("s_waitcnt lgkmcnt(0)")
    e("s_cmp_lt_u32 s3, 4"); e("s_cbranch_scc1 b_cons")
    assert NS == 5
    n2 = opts.get("n2", 30); n1 = 56 - n2
    k.srd(24, W2, F_*S_*2)
    k.srd(20, WO, D_*D_*2)
    e("s_sub_u32 s3, s3, 4")
    e("s_lshl_b32 s30, s3, 11")
    e("s_lshl_b32 s31, s3, 10"); e(f"s_add_u32 s31, s31, {c.PB}")
    e("s_mov_b32 s32, s30"); e("s_mov_b32 s33, s31")
    fl = None
    fl3 = (" sc1", opts.get("nt3", "")); fl4 = (" sc1", "")
    R3 = dict(vP=[3, 9], vT=list(range(24, 28)), sP=28, sT=29, srdP=16, srdT=24, sBase=30, sLds=32, sStage=34, sCnt=35, stepP=8*D_*16, stepT=64*S_*2)
    R4 = dict(R3, vP=[3, 13], vT=list(range(32, 36)), sP=36, sT=37, srdT=20, stepP=8*S_*16, stepT=64*D_*2)
    def setup3():
        lane_T_dma_off(e, 16, 24, 2, 6, S_*2, 3)
        for n in range(1, 4):
            sg, kg = divmod(n, 2); e(f"v_add_u32 v{24+n}, {sg*128 + kg*32*S_*2}, v24")
        e("s_cmp_eq_u32 s52, 0"); e(f"s_cselect_b32 s62, {n2}, 0")
        e(f"s_mul_i32 s29, s62, {64*4096}"); e("s_lshl_b32 s60, s55, 8"); e("s_add_u32 s29, s29, s60")
        e(f"v_add_u32 v9, {4*D_*16}, v3")
        e("s_lshl_b32 s28, s62, 3"); e("s_add_u32 s28, s28, s3"); e("s_lshl_b32 s28, s28, 14"); e("s_lshl_b32 s60, s54, 11"); e("s_add_u32 s28, s28, s60")
        e(f"s_add_u32 s28, s28, {WS_UT:#x}")
    def start(R, lab_cnt):
        for t in range(NS): producer_issue(e, c, R, fl3, "P", t*c.SB)
        e("s_mov_b32 s34, 0")
        e("s_waitcnt vmcnt(16)"); e("s_barrier")
        for wn_ in (12, 16, 20):
            e(f"s_waitcnt vmcnt({wn_})"); e("s_barrier")
            producer_issue(e, c, R, fl3 if R is R3 else fl4); ring_advance(e, c, R)
    def loop(R, lab):
        e(f"{lab}:")
        e("s_waitcnt vmcnt(24)"); e("s_barrier")
        producer_issue(e, c, R, fl3 if R is R3 else fl4); ring_advance(e, c, R)
        e("s_sub_u32 s35, s35, 1"); e("s_cmp_lg_u32 s35, 0"); e(f"s_cbranch_scc1 {lab}")
    e("s_cmp_eq_u32 s52, 0"); e("s_cbranch_scc1 b_ld0")
    setup3()
    for t in range(NS): producer_issue(e, c, R3, fl3, "T", t*c.SB)
    nsw = opts.get("sw2", 0)
    def sweep2():
        if nsw:
            e("s_lshr_b32 s60, s2, 1"); e("s_lshl_b32 s60, s60, 2"); e("s_add_u32 s60, s60, s3"); e("s_lshl_b32 s60, s60, 10"); e(f"s_add_u32 s60, s60, {(28-nsw)*512*1024}")
            for n in range(nsw): e("buffer_load_dwordx4 v[240:243], v3, s[24:27], s60 offen"); e(f"s_add_u32 s60, s60, {512*1024}")
    if opts.get("sw2pos", "pre") == "pre": sweep2()
    e(f"v_min_u32 v8, {n2//2-1}, v2"); e("v_lshlrev_b32 v8, 7, v8")
    e("s_lshr_b32 s38, s54, 1"); e("s_mul_i32 s38, s38, 28"); e("s_lshl_b32 s38, s38, 7"); e(f"s_add_u32 s38, s38, {WS_FLAGU:#x}")
    e("s_barrier")
    if opts.get("sw2pos", "pre") == "post": sweep2()
    poll_tok(k, 8, 16, "s38", 0xffffff, 10, sleep=1)
    start(R3, 0)
    e(f"s_mov_b32 s35, {n2 - 8}")
    e("s_branch b_l3")
    e("b_ld0:")
    lane_T_dma_off(e, 16, 32, 2, 6, D_*2, 3)
    for n in range(1, 4):
        sg, kg = divmod(n, 2); e(f"v_add_u32 v{32+n}, {sg*128 + kg*32*D_*2}, v32")
    e("s_lshl_b32 s37, s54, 8")
    for t in range(NS): producer_issue(e, c, R4, fl4, "T", t*c.SB)
    e(f"v_add_u32 v13, {4*S_*16}, v3")
    e("s_lshl_b32 s36, s3, 15"); e("s_lshl_b32 s60, s55, 11"); e("s_add_u32 s36, s36, s60"); e(f"s_add_u32 s36, s36, {WS_OT:#x}")
    setup3()
    e("v_lshlrev_b32 v8, 7, v2"); e("s_lshr_b32 s38, s55, 1"); e("s_lshl_b32 s38, s38, 11"); e(f"s_add_u32 s38, s38, {WS_FLAGO:#x}")
    e("s_barrier")
    poll_tok(k, 8, 16, "s38", 0xffff, 10, sleep=1)
    start(R4, 0)
    e("s_mov_b32 s35, 8")
    loop(R4, "b_l4")
    e(f"s_mov_b32 s35, {n1}")
    loop(R3, "b_l3")
    for wn_ in (24, 16, 8, 0, 0):
        e(f"s_waitcnt vmcnt({wn_})"); e("s_barrier")
    e("s_endpgm")
    e("b_cons:")
    e(f"v_mov_b32 v92, s{TOK}"); e(f"v_mov_b32 v93, s{TOK+1}"); e("v_mov_b32 v94, 0")
    e("s_barrier")
    e("s_cmp_lg_u32 s3, 0"); e("s_cbranch_scc1 b_nf")
    e(lane0("buffer_store_dwordx2 v[92:93], v94, s[16:19], s39 offen sc1"))
    e("b_nf:")
    e("s_lshr_b32 s57, s3, 1"); e("s_and_b32 s58, s3, 1")
    k.srd(24, B2, S_*2)
    k.srd(20, OUT, S_*D_*2)
    e("v_and_b32 v15, 15, v2"); e("v_lshrrev_b32 v14, 4, v2")
    e("s_lshl_b32 s60, s55, 7"); e("s_lshl_b32 s61, s58, 5"); e("s_add_u32 s60, s60, s61"); e("v_add_u32 v8, s60, v15")
    e("v_lshlrev_b32 v9, 2, v8"); e("v_lshlrev_b32 v8, 1, v8")
    e(f"s_mov_b32 s47, {WS_G:#x}")
    GO, BO = 80, 88
    gld = [f"buffer_load_dword v{GO+2*j}, v9, s[16:19], s47 offen offset:{((j//2)*64 + (j%2)*16)*4} sc1" for j in range(4)]
    stb = ["s_memrealtime s[98:99]", "s_memtime s[94:95]", "s_waitcnt lgkmcnt(0)"] if stamps else []
    gfin = ["s_waitcnt vmcnt(0)"] + [f"v_sub_f32 v{GO+2*j}, 1.0, v{GO+2*j}" for j in range(4)]
    for j in range(4):
        e(f"buffer_load_ushort v{BO+j}, v8, s[24:27], 0 offen offset:{((j//2)*64 + (j%2)*16)*2}")
    acc = [[96 + (i*4+j)*4 for j in range(4)] for i in range(4)]
    e("v_lshlrev_b32 v4, 11, v14"); e("v_lshl_add_u32 v4, v15, 4, v4")
    e("v_mov_b32 v5, v4")
    e("s_lshl_b32 s60, s57, 10"); e("v_add_u32 v4, s60, v4")
    lane_T_read_off(e, 16, 10, 2, 12, 13)
    e("s_lshl_b32 s60, s58, 6"); e("v_xor_b32 v6, s60, v10"); e("v_xor_b32 v7, 32, v6")
    e("s_waitcnt vmcnt(0)")
    e("s_cmp_eq_u32 s52, 1"); e("s_cselect_b32 s60, -65536, 0")
    for j in range(4):
        e(f"v_lshlrev_b32 v{BO+j}, 16, v{BO+j}"); e(f"v_and_b32 v{BO+j}, s60, v{BO+j}")
        for i in range(4):
            for q in range(4): e(f"v_mov_b32 v{acc[i][j]+q}, v{BO+j}")
    p_off = [(0, kk*8192 + i*256) for kk in range(2) for i in range(4)]
    t_desc = [(j % 2, c.PB + (j//2)*8192 + kk*4096) for kk in range(2) for j in range(4)]
    order = [(kk*4+i, kk*4+j, i, j) for kk in range(2) for i in range(4) for j in range(4)]
    pbufs = [16 + 4*i for i in range(8)]; tbufs = [48 + 4*j for j in range(8)]
    if stamps: e("s_memrealtime s[82:83]")
    e("s_cmp_eq_u32 s52, 0"); e("s_cbranch_scc1 b_cons0")
    consumer_loop(k, c, [(2, gld + stb), (n2-2, gfin)], 16, 8, 8, p_off, t_desc, acc, pbufs, tbufs, [4], [6, 7], True, order, 36, 37, 38, rpg=1, bar_pos=18)
    e("s_waitcnt lgkmcnt(0)"); e("s_nop 3")
    for j in range(4):
        for i in range(4):
            for q in (0, 2):
                a = acc[i][j] + q
                e(f"v_pk_mul_f32 v[{a}:{a+1}], v[{a}:{a+1}], v[{GO+2*j}:{GO+2*j+1}] op_sel_hi:[1,0]")
    e("s_branch b_exch")
    e("b_cons0:")
    e(f"v_min_u32 v95, {n1//2-1}, v2"); e("v_lshlrev_b32 v95, 7, v95")
    e("s_lshr_b32 s46, s54, 1"); e("s_mul_i32 s46, s46, 28"); e(f"s_add_u32 s46, s46, {n2//2}"); e("s_lshl_b32 s46, s46, 7"); e(f"s_add_u32 s46, s46, {WS_FLAGU:#x}")
    e("s_lshl_b32 s60, s58, 9"); e("v_add_u32 v5, s60, v5")
    e("s_lshl_b32 s60, s57, 13"); e("v_add_u32 v10, s60, v10")
    for q in range(1, 4): e(f"v_xor_b32 v{10+q}, {32*q}, v10")
    chk = Kern("tmp", 0, 0, 0); chk.name = "bo"
    chk.e("s_waitcnt vmcnt(0)"); chk.e(f"v_cmp_ne_u64 vcc, s[{TOK}:{TOK+1}], v[224:225]"); chk.e("s_nop 4"); chk.e("s_cbranch_vccz b_ook")
    poll_tok(chk, 95, 16, "s46", None, 224, sleep=1)
    chk.e("b_ook:")
    p_off4 = [(0, kk*8192 + (j//2)*1024 + (j%2)*256) for kk in range(2) for j in range(4)]
    t_desc4 = [(i, c.PB + kk*4096) for kk in range(2) for i in range(4)]
    order4 = [(kk*4+j, kk*4+i, i, j) for kk in range(2) for j in range(4) for i in range(4)]
    consumer_loop(k, c, [(9, ["buffer_load_dwordx2 v[224:225], v95, s[16:19], s46 offen sc1"]), (2, chk.lines + gld), (5, [])], 16, 8, 8, p_off4, t_desc4, acc, pbufs, tbufs,
                  [5], [10, 11, 12, 13], False, order4, 36, 37, 38, rpg=1, bar_pos=18)
    if stamps: e("s_memrealtime s[88:89]")
    slot = 16 % NS
    for v in (4, 6, 7): e(f"v_add_u32 v{v}, {slot*c.SB}, v{v}")
    e("s_waitcnt lgkmcnt(0)"); e("s_nop 4")
    for r in range(0, 64, 2):
        e(f"v_mov_b64 v[{160+r}:{161+r}], v[{96+r}:{97+r}]"); e(f"v_mov_b64 v[{96+r}:{97+r}], 0")
    for l in stb: e(l)
    consumer_loop(k, c, [(n1, gfin)], 16, 8, 8, p_off, t_desc, acc, pbufs, tbufs, [4], [6, 7], True, order, 36, 37, 38, rpg=1, bar_pos=18, slot0=slot)
    e("s_waitcnt lgkmcnt(0)"); e("s_nop 3")
    for j in range(4):
        for i in range(4):
            for q in (0, 2):
                a = acc[i][j] + q
                e(f"v_pk_fma_f32 v[{a}:{a+1}], v[{a}:{a+1}], v[{GO+2*j}:{GO+2*j+1}], v[{a+64}:{a+65}] op_sel_hi:[1,0,1]")
    e("b_exch:")
    if stamps: e("s_memrealtime s[84:85]"); e("s_memtime s[96:97]"); e("s_waitcnt lgkmcnt(0)"); e("s_sub_u32 s93, s96, s94"); e("s_sub_u32 s88, s98, 0"); e("s_sub_u32 s98, s84, s98")
    e("s_lshl_b32 s60, s2, 2"); e("s_add_u32 s60, s60, s3"); e("s_lshl_b32 s60, s60, 13"); e(f"s_add_u32 s60, s60, {gen2.WS_PART:#x}")
    e("s_add_u32 s61, s60, 4096")
    e("s_xor_b32 s62, s60, 0x8000"); e("s_add_u32 s63, s62, 4096")
    e("s_lshl_b32 s40, s2, 10"); e("s_lshl_b32 s41, s3, 7"); e("s_add_u32 s40, s40, s41"); e(f"s_add_u32 s40, s40, {WS_FLAG:#x}"); e("s_xor_b32 s41, s40, 0x400")
    e("v_mov_b32 v8, 0"); e("v_mov_b32 v9, 1")
    xb = opts.get("xbf16", False)
    def exch(hk, lab):
        snd = [acc[i][2*(1-hk)+jj] for jj in range(2) for i in range(4)]
        keep = [acc[i][2*hk+jj] for jj in range(2) for i in range(4)]
        if xb:
            for n, a in enumerate(snd):
                e(f"v_cvt_pk_bf16_f32 v{64+2*n}, v{a}, v{a+1}"); e(f"v_cvt_pk_bf16_f32 v{65+2*n}, v{a+2}, v{a+3}")
                if n % 2: e(f"buffer_store_dwordx4 v[{62+2*n}:{65+2*n}], v3, s[16:19], s60 offen offset:{(n//2)*1024} sc1")
        else:
            for n, a in enumerate(snd):
                e(f"buffer_store_dwordx4 v[{a}:{a+3}], v3, s[16:19], s{60 + n//4} offen offset:{(n%4)*1024} sc1")
        e("s_waitcnt vmcnt(0)")
        e(lane0("buffer_store_dwordx2 v[92:93], v94, s[16:19], s40 offen sc1"))
        poll_tok(k, 94, 16, "s41", None, 10, sleep=1, cnt=47)
        if xb:
            for n in range(4):
                e(f"buffer_load_dwordx4 v[{16+4*n}:{19+4*n}], v3, s[16:19], s62 offen offset:{n*1024} sc1")
            e("s_mov_b32 s63, 0xffff0000")
            for n, a in enumerate(keep):
                if n % 2 == 0: e(f"s_waitcnt vmcnt({3-n//2})")
                for h in range(2):
                    src = 16 + 2*n + h
                    e(f"v_lshlrev_b32 v32, 16, v{src}"); e(f"v_and_b32 v33, s63, v{src}")
                    e(f"v_pk_add_f32 v[{a+2*h}:{a+2*h+1}], v[{a+2*h}:{a+2*h+1}], v[32:33]")
        else:
            for n in range(8):
                e(f"buffer_load_dwordx4 v[{16+4*n}:{19+4*n}], v3, s[16:19], s{62 + n//4} offen offset:{(n%4)*1024} sc1")
            for n, a in enumerate(keep):
                e(f"s_waitcnt vmcnt({7-n})")
                for q in (0, 2): e(f"v_pk_add_f32 v[{a+q}:{a+q+1}], v[{a+q}:{a+q+1}], v[{16+4*n+q}:{17+4*n+q}]")
        for i in range(4):
            for jj in range(2):
                a = acc[i][2*hk+jj]; o = 48 + i*4 + jj*2
                e(f"v_cvt_pk_bf16_f32 v{o}, v{a}, v{a+1}"); e(f"v_cvt_pk_bf16_f32 v{o+1}, v{a+2}, v{a+3}")
    e("s_cmp_eq_u32 s52, 0"); e("s_cbranch_scc0 b_ex1")
    exch(0, "b_ex0")
    e("s_branch b_fin")
    e("b_ex1:")
    exch(1, "b_ex1")
    e("b_fin:")
    e("v_and_b32 v8, 31, v2"); e("v_lshlrev_b32 v8, 11, v8"); e("v_lshrrev_b32 v9, 5, v2"); e("v_lshl_add_u32 v8, v9, 4, v8")
    e("s_lshl_b32 s60, s55, 2"); e("s_lshl_b32 s61, s52, 1"); e("s_add_u32 s60, s60, s61"); e("s_add_u32 s60, s60, s58"); e("s_lshl_b32 s60, s60, 16")
    e("s_lshl_b32 s61, s54, 8"); e("s_add_u32 s60, s60, s61"); e("s_lshl_b32 s61, s57, 7"); e("s_add_u32 s60, s60, s61")
    for i in range(4):
        o = 48 + i*4
        e(f"v_permlane16_swap_b32 v{o}, v{o+2}"); e(f"v_permlane16_swap_b32 v{o+1}, v{o+3}")
    for i in range(4):
        o = 48 + i*4
        e(f"buffer_store_dwordx4 v[{o}:{o+3}], v8, s[20:23], s60 offen offset:{i*32}{opts.get('ost', '')}")
    if stamps: stamp_store(e, (80, 82, 84, 86, 88, 86, 93, 98), WS_STAMP + 0x10000, "")

if __name__ == "__main__":
    out = sys.argv[1]
    opts = eval("dict(" + (sys.argv[2] if len(sys.argv) > 2 else "") + ")")
    write_file(out, [gen_a(dict(dict(ust=' sc1', ost=' nt', xbf16=True, pf_wq=False, pf_g2=8, sp_row0=672, rotmul=2, n2=32, e1sw=7, sw2=14), **opts))], single=True)
```

```python
import sys
from gen import *
import gen2, gen3, gen4
from gen2 import spin_until, softmax_units, DBG, WS, X, WQKV, WPHI, WO, W1, B1, GW, OUT, WS_KVP, NQ
from gen3 import Stream, Work, WS_KVF
from gen4 import lane0, HP

WS_SIZE = 0x8000000
WS_FLAGL = 0x14E0000
WS_FLAG1 = 0x14C0000
WS_FLAG2 = 0x14D0000
WS_FLAGU = 0x14F0000
WS_FLAGO = 0x14F8000
WS_FLAGA = 0x1440000
TOK = 44

def poll_tok(k, vaddr, srd, soff, nl_mask, vd, sleep=4, cnt=63):
    e = k.e
    L = k.lab("pt"); Lok = k.lab("ptok")
    if nl_mask is not None: e(f"s_mov_b32 exec_lo, {nl_mask:#x}"); e("s_mov_b32 exec_hi, 0")
    e(f"s_mov_b32 s{cnt}, 0x40000")
    e(f"{L}:")
    vs = vaddr if isinstance(vaddr, list) else [vaddr]
    for n, va in enumerate(vs):
        e(f"buffer_load_dwordx2 v[{vd+2*n}:{vd+1+2*n}], v{va}, s[{srd}:{srd+3}], {soff} offen sc1")
    e("s_waitcnt vmcnt(0)")
    e(f"v_cmp_ne_u64 vcc, s[{TOK}:{TOK+1}], v[{vd}:{vd+1}]")
    for n in range(1, len(vs)):
        e(f"v_cmp_ne_u64 s[60:61], s[{TOK}:{TOK+1}], v[{vd+2*n}:{vd+1+2*n}]"); e("s_or_b64 vcc, vcc, s[60:61]")
    e(f"s_sub_u32 s{cnt}, s{cnt}, 1"); e(f"s_cbranch_scc1 {Lok}")
    e(f"s_cbranch_vccz {Lok}")
    e(f"s_sleep {sleep}")
    e(f"s_branch {L}")
    e(f"{Lok}:")
    if nl_mask is not None: e("s_mov_b64 exec, -1")

def get_token(k, vz, vd):
    e = k.e
    L = k.lab("tk"); Lok = k.lab("tkok")
    e("s_mov_b32 s63, 0x8000")
    e(f"{L}:")
    e(f"buffer_load_dwordx2 v[{vd}:{vd+1}], v{vz}, s[40:43], 0 offen sc1"); e("s_waitcnt vmcnt(0)")
    e(f"v_readfirstlane_b32 s{TOK}, v{vd}"); e(f"v_readfirstlane_b32 s{TOK+1}, v{vd+1}")
    e("s_sub_u32 s63, s63, 1"); e(f"s_cbranch_scc1 {Lok}")
    e(f"s_cmp_eq_u32 s{TOK}, 0"); e(f"s_cbranch_scc1 {L}")
    e(f"{Lok}:")

_sl = [0]
DBGST = []
def stamp_store(e, regs, base, endlab, cond="v0"):
    _sl[0] += 1; endlab = f"stl{_sl[0]}"
    if DBGST:
        e("s_waitcnt vmcnt(0)")
        e("s_memrealtime s[86:87]"); e("s_waitcnt lgkmcnt(0)")
        slot = DBGST.pop(0)
        e("v_mov_b32 v7, 0")
        e(f"v_cmp_eq_u32 vcc, 0, {cond}"); e("s_and_saveexec_b64 s[60:61], vcc"); e(f"s_cbranch_execz {endlab}")
        for n, (sr, w) in enumerate(slot):
            e(f"s_sub_u32 s62, s{sr}, s{TOK}"); e(f"v_mov_b32 v{16+n}, s62"); e(f"global_atomic_smax v7, v{16+n}, s[4:5] offset:{128 + w*4}" if False else f"global_atomic_smax v7, v{16+n}, s[4:5] offset:{w*4}")
        e(f"{endlab}:"); e("s_mov_b64 exec, -1")
        return
    e("s_waitcnt vmcnt(0)")
    e("s_memrealtime s[86:87]"); e("s_waitcnt lgkmcnt(0)")
    for n, sr in enumerate(regs): e(f"v_mov_b32 v{16+n}, s{sr}")
    e("s_lshl_b32 s60, s92, 5"); e(f"s_add_u32 s60, s60, {base:#x}"); e("v_mov_b32 v7, s60")
    e(f"v_cmp_eq_u32 vcc, 0, {cond}"); e("s_and_saveexec_b64 s[60:61], vcc"); e(f"s_cbranch_execz {endlab}")
    e(f"global_store_dwordx4 v7, v[16:19], s[{WS}:{WS+1}]")
    e(f"global_store_dwordx4 v7, v[20:23], s[{WS}:{WS+1}] offset:16")
    e(f"{endlab}:"); e("s_mov_b64 exec, -1")

def ln_rows1(e, XR, m, sli):
    XF, GF, A = 144, 104, 120
    for r in range(2):
        for i in range(8):
            e(f"v_lshlrev_b32 v{XF+16*r+2*i}, 16, v{XR+8*r+i}"); e(f"v_and_b32 v{XF+1+16*r+2*i}, s36, v{XR+8*r+i}")
    e(f"v_readfirstlane_b32 s12, v{XF}"); e(f"v_readfirstlane_b32 s14, v{XF+16}")
    for r in range(2):
        b = XF + 16*r
        e(f"v_pk_mul_f32 v[{A+8+2*r}:{A+9+2*r}], v[{b}:{b+1}], v[{GF}:{GF+1}]")
    e("s_mov_b32 s13, s12"); e("s_mov_b32 s15, s14")
    for i in range(2, 16, 2):
        for r in range(2):
            b = XF + 16*r
            e(f"v_pk_fma_f32 v[{A+8+2*r}:{A+9+2*r}], v[{b+i}:{b+i+1}], v[{GF+i}:{GF+i+1}], v[{A+8+2*r}:{A+9+2*r}]")
    for i in range(0, 16, 2):
        for r in range(2):
            b = XF + 16*r
            e(f"v_pk_add_f32 v[{b+i}:{b+i+1}], v[{b+i}:{b+i+1}], s[{12+2*r}:{13+2*r}] neg_lo:[0,1] neg_hi:[0,1]")
    for r in range(2):
        b = XF + 16*r
        e(f"v_pk_add_f32 v[{A+2*r}:{A+1+2*r}], v[{b}:{b+1}], v[{b+2}:{b+3}]")
        e(f"v_pk_mul_f32 v[{A+4+2*r}:{A+5+2*r}], v[{b}:{b+1}], v[{b}:{b+1}]")
    for i in range(2, 16, 2):
        for r in range(2):
            b = XF + 16*r
            if i >= 4: e(f"v_pk_add_f32 v[{A+2*r}:{A+1+2*r}], v[{A+2*r}:{A+1+2*r}], v[{b+i}:{b+i+1}]")
            e(f"v_pk_fma_f32 v[{A+4+2*r}:{A+5+2*r}], v[{b+i}:{b+i+1}], v[{b+i}:{b+i+1}], v[{A+4+2*r}:{A+5+2*r}]")
    for n in range(6): e(f"v_add_f32 v{A+2*n}, v{A+2*n}, v{A+1+2*n}")
    dpp_reduce_sum_multi(e, [A+2*n for n in range(6)])
    e("s_nop 1")
    for n in range(6): e(f"v_readlane_b32 s{28+n}, v{A+2*n}, 63")
    e(f"s_mov_b32 s37, {f32(1.0/1024)}"); e(f"v_mov_b32 v{A+1}, {f32(1e-5)}")
    for r in range(2): e(f"v_mov_b32 v{A+2*r}, s{28+r}"); e(f"v_mov_b32 v{A+4+2*r}, s{30+r}")
    e(f"v_mov_b32 v{A+8}, s32"); e(f"v_mov_b32 v{A+9}, s33"); e("v_cmp_eq_u32 vcc, 1, v2")
    for r in range(2): e(f"v_mul_f32 v{A+2*r}, s37, v{A+2*r}"); e(f"v_fma_f32 v{A+4+2*r}, v{A+4+2*r}, s37, v{A+1}")
    e(f"v_cndmask_b32 v{A+8}, v{A+8}, v{A+9}, vcc")
    for r in range(2): e(f"v_fma_f32 v{A+4+2*r}, -v{A+2*r}, v{A+2*r}, v{A+4+2*r}")
    e(f"v_mul_f32 v{A+8}, {f32(-LOG2E)}, v{A+8}")
    for r in range(2): e(f"v_max_f32 v{A+4+2*r}, v{A+4+2*r}, v{A+1}")
    e(f"v_exp_f32 v{A+8}, v{A+8}")
    for r in range(2): e(f"v_rsq_f32 v{A+4+2*r}, v{A+4+2*r}")
    e(f"v_add_f32 v{A+8}, 1.0, v{A+8}")
    for r in range(2): e(f"v_mul_f32 v{A+2*r}, v{A+2*r}, v{A+4+2*r}")
    e(f"v_rcp_f32 v{A+8}, v{A+8}")
    for r in range(2):
        b = XF + 16*r
        for i in range(0, 16, 2):
            e(f"v_pk_fma_f32 v[{b+i}:{b+i+1}], v[{b+i}:{b+i+1}], v[{A+4+2*r}:{A+5+2*r}], v[{A+2*r}:{A+1+2*r}] op_sel_hi:[1,0,0] neg_lo:[0,0,1] neg_hi:[0,0,1]")
        for i in range(8): e(f"v_cvt_pk_bf16_f32 v{XR+8*r+i}, v{b+2*i}, v{b+2*i+1}")
        for hh in range(2): e(f"ds_write_b128 v22, v[{XR+8*r+4*hh}:{XR+8*r+4*hh+3}] offset:{(2*m+r)*HP + hh*1024}")
    e(f"v_lshlrev_b32 v{A+9}, 2, v2"); e(f"s_lshl_b32 s37, s{sli}, 6"); e("s_lshl_b32 s38, s3, 4"); e("s_add_u32 s37, s37, s38"); e(f"s_add_u32 s37, s37, {WS_G + 8*m:#x}")
    e("s_mov_b64 exec, 3"); e(f"buffer_store_dword v{A+8}, v{A+9}, s[16:19], s37 offen sc1"); e("s_mov_b64 exec, -1")

def code_warm(k, lab):
    e = k.e
    e("s_getpc_b64 s[10:11]"); e(f"{lab}:")
    e(f"s_sub_u32 s10, s10, {lab}-{k.name}"); e("s_subb_u32 s11, s11, 0")
    e("s_lshl_b32 s60, s56, 10"); e("v_add_u32 v15, s60, v3")
    e(f"s_mov_b32 s61, a_end-{k.name}-16"); e("v_min_u32 v15, s61, v15")
    e("global_load_dwordx4 v[236:239], v15, s[10:11]")
    e("v_add_u32 v15, 0x8000, v15"); e("v_min_u32 v15, s61, v15")
    e("global_load_dwordx4 v[236:239], v15, s[10:11]")

def gen_a(opts):
    ALIGN[0] = opts.get("align", 3)
    if opts.get("dbgst"):
        DBGST.extend([[(84, 2), (90, 3), (86, 4)], [(82, 5), (84, 6), (88, 7), (86, 8)], [(84, 9), (86, 10)], [(82, 11), (84, 12), (86, 13)]])
    c2 = GemmCfg(256, 2, 6, 32)
    k = Kern("gated_mix__linear_kernel_hedgehog__mixer_token_mlp__prompt_kernel", 256, 512, 160*1024, vgpr=256, sgpr=100)
    e = k.e
    stamps = opts.get("stamps", False)
    pf = opts.get("pf", True)
    e("s_cmp_ge_u32 s2, 256"); e("s_cbranch_scc1 a_end")
    e("s_load_dwordx8 s[64:71], s[0:1], 0")
    e("s_load_dwordx4 s[72:75], s[0:1], 40")
    e("s_load_dwordx4 s[76:79], s[0:1], 72")
    e("s_load_dwordx4 s[4:7], s[0:1], 88")
    e("s_load_dwordx2 s[12:13], s[0:1], 56")
    e(f"s_memrealtime s[{TOK}:{TOK+1}]")
    if opts.get("mixed", False):
        e("s_lshr_b32 s52, s2, 7"); e("s_bfe_u32 s53, s2, 0x40003"); e("s_and_b32 s54, s2, 1"); e("s_and_b32 s55, s2, 6"); e("s_or_b32 s55, s55, s52")
        e("s_lshr_b32 s56, s53, 2"); e("s_lshl_b32 s56, s56, 3"); e("s_lshl_b32 s57, s54, 2"); e("s_or_b32 s56, s56, s57"); e("s_and_b32 s57, s53, 3"); e("s_or_b32 s56, s56, s57")
        e("s_lshl_b32 s46, s56, 3"); e("s_or_b32 s46, s46, s55")
        e("s_lshr_b32 s56, s53, 1"); e("s_lshl_b32 s56, s56, 2"); e("s_lshl_b32 s57, s54, 1"); e("s_or_b32 s56, s56, s57"); e("s_and_b32 s57, s53, 1"); e("s_or_b32 s56, s56, s57")
        e("s_lshl_b32 s56, s56, 3"); e("s_or_b32 s56, s56, s55")
        e("s_cmp_eq_u32 s52, 0"); e("s_cselect_b32 s2, s46, s56")
    else:
        e("s_mov_b32 s46, s2")
    e("s_mov_b32 s92, s2")
    e("v_lshrrev_b32 v1, 6, v0"); e("v_and_b32 v2, 63, v0"); e("v_lshlrev_b32 v3, 4, v2")
    e("s_lshr_b32 s56, s2, 3"); e("s_and_b32 s57, s2, 7")
    e("v_readfirstlane_b32 s3, v1")
    e("v_mov_b32 v14, 0")
    if opts.get("prioc") or opts.get("priol"):
        e("s_nop 2"); e("s_cmp_lt_u32 s3, 4"); e("s_cbranch_scc1 a_pc"); e(f"s_setprio {opts.get('priol', 0)}"); e("s_branch a_pd"); e("a_pc:"); e(f"s_setprio {opts.get('prioc', 0)}"); e("a_pd:")
    e("s_waitcnt lgkmcnt(0)")
    if stamps: e(f"s_mov_b32 s80, s{TOK}")
    k.srd(16, WS, WS_SIZE)
    k.srd(40, DBG, 256)
    k.srd(20, X, S_*D_*2)
    e("s_lshl_b32 s60, s2, 3"); e("s_add_u32 s60, s60, s3"); e("s_cmp_lg_u32 s60, 7"); e("s_cbranch_scc1 a_ntp")
    e(f"s_or_b32 s{TOK}, s{TOK}, 1"); e(f"v_mov_b32 v4, s{TOK}"); e(f"v_mov_b32 v5, s{TOK+1}")
    e(lane0("buffer_store_dwordx2 v[4:5], v14, s[40:43], 0 offen sc1"))
    e("a_ntp:")
    e("s_lshr_b32 s58, s57, 1")
    e("s_and_b32 s60, s57, 1"); e("s_cmp_eq_u32 s60, 1"); e("s_cbranch_scc1 a_bchain")
    e("s_and_b32 s52, s56, 7")
    e("s_lshl_b32 s53, s58, 2"); e("s_lshr_b32 s60, s56, 3"); e("s_add_u32 s53, s53, s60")
    e("s_cmp_lt_u32 s3, 4"); e("s_cbranch_scc1 a_g1c")
    st = Stream(k)
    k.srd(24, WQKV, D_*3*D_*2)
    e("s_sub_u32 s3, s3, 4")
    e("v_lshrrev_b32 v7, 3, v2")
    e("s_lshl_b32 s60, s3, 6"); e("v_add_u32 v4, s60, v7"); e("v_lshlrev_b32 v4, 11, v4")
    e("v_lshrrev_b32 v5, 1, v7"); e("v_xor_b32 v5, v5, v2"); e("v_and_b32 v5, 7, v5")
    e("v_lshl_add_u32 v16, v5, 4, v4")
    e("v_xor_b32 v17, 64, v16"); e(f"v_add_u32 v17, {8*2048}, v17")
    for n in range(2, 8): e(f"v_add_u32 v{16+n}, {(n//2)*16*2048}, v{16+n%2}")
    lane_T_dma_off(e, 16, 24, 2, 6, 6144, 3)
    for n in (1, 2): e(f"v_add_u32 v{24+n}, {n*2048}, v24")
    e("s_lshl_b32 s9, s52, 19"); e("s_lshl_b32 s10, s53, 7")
    e("s_lshl_b32 s30, s3, 13"); e("s_lshl_b32 s31, s3, 10"); e(f"s_add_u32 s31, s31, {96*1024}")
    e(f"s_mul_i32 s14, s52, {opts.get('rotmul', 1)}")
    def issueP(n, half):
        if half == 0:
            st.e(f"s_add_u32 s11, s14, {n}\ns_and_b32 s11, s11, 15\ns_lshl_b32 s11, s11, 7\ns_add_u32 s28, s9, s11")
        for rb in range(4*half, 4*half+4):
            st.e(f"s_add_u32 m0, s30, {(n % 3)*32768 + rb*1024}\ns_nop 0\nbuffer_load_dwordx4 v{16+rb}, s[20:23], s28 offen lds")
        st.mark(f"P{n}")
    def issueT(t):
        st.e(f"s_lshl_b32 s11, s14, 1\ns_add_u32 s11, s11, {t}\ns_and_b32 s11, s11, 31\ns_mul_i32 s11, s11, {32*6144}\ns_add_u32 s29, s10, s11")
        for sg in range(3):
            st.e(f"s_add_u32 m0, s31, {(t % 5)*12288 + sg*4096}\ns_nop 0\nbuffer_load_dwordx4 v{24+sg}, s[24:27], s29 offen{opts.get('nt1', '')} lds")
        st.mark(f"T{t}")
    issueP(0, 0); issueP(0, 1); issueT(0); st.mark("S0"); issueT(1); issueP(1, 0); issueP(1, 1); issueT(2); issueT(3); issueP(2, 0); issueP(2, 1); issueT(4)
    k.srd(48, WPHI, 32*2048)
    e("s_lshl_b32 s60, s53, 12"); e("s_lshl_b32 s61, s3, 10"); e("s_add_u32 s60, s60, s61"); e(f"s_add_u32 m0, s61, {156*1024}"); e("s_nop 0")
    st.e("buffer_load_dwordx4 v3, s[48:51], s60 offen lds")
    k.srd(32, 12, F_*S_*2)
    e("s_lshl_b32 s61, s58, 5"); e("s_add_u32 s61, s61, s56"); e("s_lshl_b32 s61, s61, 2"); e("s_add_u32 s61, s61, s3"); e("s_lshl_b32 s61, s61, 10")
    t0, npc = opts.get("g1sw", (8, 0))
    sched = {}
    for n in range(npc): sched[t0 + n*(32-t0)//npc] = sched.get(t0 + n*(32-t0)//npc, 0) + 1
    st.e("@wait S0"); e("s_barrier")
    for t in range(32):
        if t + 1 < 32:
            st.e(f"@wait T{t+1}")
            if t % 2 == 1: st.e(f"@wait P{(t+1)//2}")
        e("s_barrier")
        if t + 5 < 32: issueT(t + 5)
        m = (t - 1) // 2 + 3
        if t >= 1 and m < 16: issueP(m, (t + 1) % 2)
        if t == 20: st.e("@vm tok buffer_load_dwordx2 v[12:13], v14, s[40:43], 0 offen sc1")
        for n in range(sched.get(t, 0)): st.e(f"buffer_load_dwordx4 v[240:243], v3, s[32:35], s61 offen\ns_add_u32 s61, s61, {512*1024}")
    e("s_lshr_b32 s54, s3, 1"); e("s_and_b32 s55, s3, 1"); e("s_lshl_b32 s59, s53, 1"); e("s_add_u32 s59, s59, s55")
    e("s_mul_i32 s60, s3, 12288"); e("v_add_u32 v8, s60, v3"); e(f"v_mov_b32 v9, {152*1024}")
    e("s_add_u32 s3, s3, 4"); e("s_mov_b32 s35, 1"); e("s_mov_b64 s[8:9], s[12:13]")
    e("s_waitcnt vmcnt(0)")
    e(f"v_readfirstlane_b32 s{TOK}, v12"); e(f"s_cmp_lg_u32 s{TOK}, 0"); e("s_cbranch_scc1 a_tkok")
    get_token(k, 14, 12)
    e("a_tkok:")
    e("ds_write_b64 v9, v[12:13]"); e("s_waitcnt lgkmcnt(0)")
    e("s_barrier")
    for n in range(4):
        for part in range(3): e(f"ds_read_b128 v[{64+24*n+4*part}:{64+24*n+4*part+3}], v8 offset:{(n*3+part)*1024}")
    e("s_waitcnt lgkmcnt(0)")
    e(f"v_readfirstlane_b32 s{TOK}, v12"); e(f"v_readfirstlane_b32 s{TOK+1}, v13")
    e("s_branch a_epi")
    e("a_g1c:")
    e("s_lshr_b32 s54, s3, 1"); e("s_and_b32 s55, s3, 1")
    e("s_lshl_b32 s59, s53, 1"); e("s_add_u32 s59, s59, s55")
    e("s_mov_b64 s[8:9], s[12:13]")
    acc = [[64 + (i*6+j)*4 for j in range(6)] for i in range(8)]
    if opts.get("cwarm", False):
        e("s_cmp_lg_u32 s3, 0"); e("s_cbranch_scc1 a_cw1");
        code_warm(k, "a_pc1"); e("s_waitcnt vmcnt(0)")
        e("a_cw1:")
    for r in range(64, 256, 2): e(f"v_mov_b64 v[{r}:{r+1}], 0")
    e("v_and_b32 v8, 15, v2"); e("v_lshrrev_b32 v9, 4, v2")
    e("v_lshrrev_b32 v10, 1, v8"); e("v_xor_b32 v10, v10, v9")
    e("s_lshl_b32 s60, s54, 7"); e("v_add_u32 v4, s60, v8"); e("v_lshlrev_b32 v4, 7, v4"); e("v_lshl_add_u32 v4, v10, 4, v4")
    lane_T_read_off(e, 16, 6, 2, 8, 9)
    e("s_lshl_b32 s60, s55, 6"); e("v_xor_b32 v6, s60, v6"); e(f"v_add_u32 v6, {96*1024}, v6"); e("v_xor_b32 v7, 32, v6")
    p_off = [(0, i*2048) for i in range(8)]
    t_desc = [(j % 2, (j//2)*4096) for j in range(6)]
    order = [(2*a+b, j, 2*a+b, j) for a in range(4) for j in range(6) for b in range(2)]
    pbufs = [16 + 4*i for i in range(4)]; tbufs = [32 + 4*j for j in range(8)]
    ringT = ["s_cmp_eq_u32 s36, 4", "s_cselect_b32 s37, s39, 12288", "s_cselect_b32 s36, -1, s36", "s_add_u32 s36, s36, 1"]
    ringP = ["s_cmp_eq_u32 s32, 2", "s_cselect_b32 s33, s34, 0x8000", "s_cselect_b32 s32, -1, s32", "s_add_u32 s32, s32, 1"]
    salu = lambda s: ringT + (ringP if s % 2 else [])
    valu = lambda s: ["v_add_u32 v6, s37, v6", "v_add_u32 v7, s37, v7", "v_xor_b32 v4, 64, v4"] + (["v_add_u32 v4, s33, v4"] if s % 2 else [])
    tail = ["s_sub_u32 s38, s38, 1", "s_cmp_lg_u32 s38, 0"]
    ahead, body, U = build_consumer(None, 16, 8, 6, p_off, t_desc, acc, pbufs, tbufs, [4], [6, 7], lambda i, j: j >= 4, order,
                                    opts.get("bar1", 38), 1, salu, valu, tail, minU=2, salu_at=0)
    e(f"s_mov_b32 s39, {(-4*12288) & 0xffffffff:#x}"); e(f"s_mov_b32 s34, {(-2*32768) & 0xffffffff:#x}"); e("s_mov_b32 s36, 0"); e("s_mov_b32 s32, 0")
    if stamps: e("s_memrealtime s[82:83]")
    e("s_barrier")
    if stamps: e("s_memtime s[94:95]"); e("s_memrealtime s[98:99]")
    for l in ahead: e(l)
    e("s_waitcnt lgkmcnt(0)")
    e(f"s_mov_b32 s38, {32//U}"); e(f".p2align {ALIGN[0]}"); e("a_g1loop:")
    for l in body: e(l)
    e("s_cbranch_scc1 a_g1loop")
    if stamps: e("s_memrealtime s[84:85]"); e("s_memtime s[96:97]"); e("s_waitcnt lgkmcnt(0)"); e("s_sub_u32 s93, s96, s94"); e("s_sub_u32 s98, s84, s98")
    e("s_waitcnt lgkmcnt(0)")
    Bk = lambda sb: 64 + 24*sb
    def cvt_units(sbs):
        for sb in sbs:
            B = Bk(sb)
            for n in range(8): e(f"v_cvt_pk_bf16_f32 v{B+n}, v{B+2*n}, v{B+2*n+1}")
        for p in sorted(set(sb//2 for sb in sbs)):
            for db in range(2):
                d = Bk(2*p+db) + 8
                for h in range(2):
                    a = Bk(2*p+h) + 16 + 4*db
                    e(f"v_cvt_pk_bf16_f32 v{d+2*h}, v{a}, v{a+1}"); e(f"v_cvt_pk_bf16_f32 v{d+2*h+1}, v{a+2}, v{a+3}")
    e("s_mul_i32 s60, s3, 12288"); e("v_add_u32 v8, s60, v3"); e(f"v_mov_b32 v9, {152*1024}")
    e("s_nop 4")
    cvt_units([4, 5, 6, 7])
    for n in range(4):
        for part in range(3): e(f"ds_write_b128 v8, v[{Bk(4+n)+4*part}:{Bk(4+n)+4*part+3}] offset:{(n*3+part)*1024}")
    cvt_units([0, 1, 2, 3])
    e("s_mov_b32 s35, 0")
    e("s_nop 0")
    e("s_waitcnt lgkmcnt(0)"); e("s_barrier")
    e("ds_read_b64 v[12:13], v9"); e("s_waitcnt lgkmcnt(0)")
    e(f"v_readfirstlane_b32 s{TOK}, v12"); e(f"v_readfirstlane_b32 s{TOK+1}, v13")
    if opts.get("estamp"): e("s_memrealtime s[82:83]")
    e("a_epi:")
    ne1 = opts.get("e1sw", 14)
    if ne1:
        k.srd(24, 8, F_*S_*2)
        e("s_lshl_b32 s60, s58, 5"); e("s_add_u32 s60, s60, s56"); e("s_lshl_b32 s60, s60, 3"); e("s_add_u32 s60, s60, s3"); e("s_lshl_b32 s60, s60, 10")
        if opts.get("e1lds"):
            e("s_lshl_b32 s61, s3, 10"); e(f"s_add_u32 m0, s61, {144*1024}"); e("s_nop 0")
            for n in range(ne1): e(f"buffer_load_dwordx4 v3, s[24:27], s60 offen lds"); e(f"s_add_u32 s60, s60, 0x100000")
        elif opts.get("e1skew"):
            e("s_cmp_lt_u32 s3, 4"); e("s_cbranch_scc1 a_sk"); e("s_sleep 64"); e("a_sk:")
        else:
            for n in range(ne1): e(f"buffer_load_dwordx4 v[4:7], v3, s[24:27], s60 offen"); e(f"s_add_u32 s60, s60, 0x100000")
    holes = [Bk(sb) + 12 + 4*n for sb in range(4) for n in range(3)]
    KVq = holes[0:9]; WPq = holes[9:11]
    PK, ST, EP, EF, ZB = 16, 48, 160, 224, 240
    e("v_lshrrev_b32 v8, 2, v2"); e("v_lshlrev_b32 v8, 6, v8"); e("v_and_b32 v9, 3, v2"); e("v_lshl_add_u32 v8, v9, 3, v8")
    e("s_lshl_b32 s60, s55, 11"); e(f"s_add_u32 s60, s60, {156*1024}"); e("v_add_u32 v8, s60, v8")
    for fb in range(2):
        for t in range(2): e(f"ds_read_b64_tr_b16 v[{WPq[fb]+2*t}:{WPq[fb]+2*t+1}], v8 offset:{t*1024 + fb*32}")
    e(f"s_mov_b32 s62, {f32(LOG2E)}"); e(f"s_mov_b32 s63, {f32(LOG2E)}")
    e("v_and_b32 v8, 15, v2"); e("v_lshrrev_b32 v9, 4, v2"); e("s_mul_i32 s34, s3, 10240"); e(f"s_add_u32 s34, s34, {48*1024}")
    e("v_mul_u32_u24 v10, 160, v8"); e("v_lshl_add_u32 v10, v9, 3, v10"); e("v_add_u32 v10, s34, v10")
    e("v_lshrrev_b32 v8, 2, v8"); e("v_lshl_add_u32 v8, v9, 2, v8"); e("v_mul_u32_u24 v11, 160, v8")
    def pmfma(off):
        for u in range(4):
            for fb in range(2):
                d = PK + (u*2+fb)*4; s = Bk(u) + off
                e(f"v_mfma_f32_16x16x32_bf16 v[{d}:{d+3}], v[{WPq[fb]}:{WPq[fb]+3}], v[{s}:{s+3}], 0")
    e("s_waitcnt lgkmcnt(0)")
    pmfma(4)
    e("v_and_b32 v8, 3, v2"); e("v_lshl_add_u32 v11, v8, 3, v11"); e("v_add_u32 v11, s34, v11"); e("v_mov_b32 v9, 0x3f803f80")
    for fbk in range(4):
        e(f"v_cmp_eq_u32 vcc, {fbk}, v8"); e("s_nop 1"); e(f"v_cndmask_b32 v{ZB+4*fbk}, 0, v9, vcc")
        for r in range(1, 4): e(f"v_mov_b32 v{ZB+4*fbk+r}, v{ZB+4*fbk}")
    units = [dict(x=[PK+u*8, PK+u*8+4], ep=EP+u*16, em=EP+8+u*16, st=ST+u*4, out=EP+u*16) for u in range(4)]
    softmax_units(e, units, 62, True)
    for u in range(4):
        o = units[u]["out"]
        for fbk in range(4): e(f"ds_write_b64 v10, v[{o+2*fbk}:{o+2*fbk+1}] offset:{u*16*160 + fbk*32}")
    pmfma(0)
    e("s_waitcnt lgkmcnt(0)")
    EFs = [EF, EP + 8]
    efq = [[EF + 4*n for n in range(4)], [EP+8, EP+12, EP+24, EP+28]]
    for p in range(2):
        for fbk in range(4):
            for t in range(2): e(f"ds_read_b64_tr_b16 v[{efq[p][fbk]+2*t}:{efq[p][fbk]+2*t+1}], v11 offset:{(2*p+t)*16*160 + fbk*32}")
    for p in range(2):
        for fbk in range(4):
            e(f"s_waitcnt lgkmcnt({14-8*p-2*fbk})")
            for db in range(3):
                d = KVq[fbk*2+db] if db < 2 else KVq[8]
                b = Bk(2*p+db) + 8 if db < 2 else ZB + 4*fbk
                cc = "0" if (p == 0 and (db < 2 or fbk == 0)) else f"v[{d}:{d+3}]"
                e(f"v_mfma_f32_16x16x32_bf16 v[{d}:{d+3}], v[{efq[p][fbk]}:{efq[p][fbk]+3}], v[{b}:{b+3}], {cc}")
    e("v_add_u32 v10, s34, v3")
    e("s_lshr_b32 s33, s3, 1"); e("s_lshr_b32 s61, s33, 1"); e("s_lshl_b32 s61, s61, 2"); e("s_and_b32 s60, s33, 1"); e("s_add_u32 s61, s61, s60"); e("s_lshl_b32 s61, s61, 10")
    e("s_mul_i32 s60, s55, 10240"); e("s_add_u32 s60, s60, s61"); e(f"s_add_u32 s60, s60, {48*1024}"); e("v_add_u32 v11, s60, v3"); e("v_add_u32 v15, 0xa000, v11")
    e("s_lshl_b32 s60, s59, 2"); e("s_add_u32 s60, s60, s33"); e("s_lshl_b32 s60, s60, 3")
    e(f"s_lshl_b32 s38, s60, 12"); e(f"s_add_u32 s38, s38, {WS_KVP:#x}"); e("s_lshl_b32 s37, s52, 12"); e("s_add_u32 s37, s37, s38")
    e("s_lshl_b32 s39, s60, 7"); e(f"s_add_u32 s39, s39, {WS_FLAG1:#x}"); e("s_lshl_b32 s36, s52, 7"); e("s_add_u32 s36, s36, s39")
    for qd in range(NQ): e(f"ds_write_b128 v10, v[{KVq[qd]}:{KVq[qd]+3}] offset:{qd*1024}")
    e("s_waitcnt lgkmcnt(0)"); e("s_barrier")
    if opts.get("estamp"): e("s_memrealtime s[94:95]"); e("s_waitcnt lgkmcnt(0)")
    if opts.get("dump"):
        e("s_lshl_b32 s60, s2, 3"); e("s_add_u32 s60, s60, s3"); e("s_lshl_b32 s60, s60, 15"); e("s_add_u32 s60, s60, 0x3000000")
        quads = [EP+u*16+h*4 for u in range(4) for h in range(2)] + efq[0] + efq[1] + KVq + [ST+4*u for u in range(4)] + [Bk(u)+4 for u in range(3)]
        for n, q in enumerate(quads):
            e(f"buffer_store_dwordx4 v[{q}:{q+3}], v3, s[16:19], s60 offen"); e("s_add_u32 s60, s60, 1024")
        e("s_nop 1")
    C0 = 224
    for hq in range(2):
        for src in range(4): e(f"ds_read_b128 v[{C0+(hq*4+src)*4}:{C0+(hq*4+src)*4+3}], v{11 if src < 2 else 15} offset:{(src%2)*20480 + hq*2048}")
    e("s_cmp_lg_u32 s33, 0"); e("s_cbranch_scc1 a_noz")
    for src in range(4): e(f"ds_read_b128 v[{holes[src]}:{holes[src]+3}], v{11 if src < 2 else 15} offset:{(src%2)*20480 + 8192}")
    e("s_waitcnt lgkmcnt(0)")
    for src in range(1, 4):
        for q in (0, 2): e(f"v_pk_add_f32 v[{holes[0]+q}:{holes[0]+q+1}], v[{holes[0]+q}:{holes[0]+q+1}], v[{holes[src]+q}:{holes[src]+q+1}]")
    e(f"buffer_store_dwordx4 v[{holes[0]}:{holes[0]+3}], v3, s[16:19], s37 offen offset:2048 sc1")
    e("a_noz:")
    e("s_waitcnt lgkmcnt(0)")
    for hq in range(2):
        a = C0 + hq*16
        for src in range(1, 4):
            for q in (0, 2): e(f"v_pk_add_f32 v[{a+q}:{a+q+1}], v[{a+q}:{a+q+1}], v[{a+4*src+q}:{a+4*src+q+1}]")
        e(f"buffer_store_dwordx4 v[{a}:{a+3}], v3, s[16:19], s37 offen offset:{hq*1024} sc1")
    e("s_lshl_b32 s32, s52, 2"); e("s_lshl_b32 s60, s54, 1"); e("s_add_u32 s32, s32, s60"); e("s_add_u32 s32, s32, s35")
    e("s_lshl_b32 s60, s32, 9"); e(f"s_add_u32 s60, s60, {WS_FLAGL - 8*128:#x}")
    e("v_lshlrev_b32 v10, 7, v2"); e("v_mov_b32 v11, s60"); e("v_mov_b32 v15, s39"); e("v_cmp_gt_u32 vcc, 8, v2"); e("s_nop 1"); e("v_cndmask_b32 v11, v11, v15, vcc"); e("v_add_u32 v10, v10, v11")
    units = [dict(x=[PK+u*8, PK+u*8+4], ep=EP+u*16, em=EP+8+u*16, st=ST+u*4, out=Bk(u)+4) for u in range(4)]
    w = Work(); softmax_units(w.e, units, 62, False)
    cut = len(w.q) * opts.get("e3cut", 30) // 100
    for l in w.q[:cut]: e(l)
    e("s_waitcnt vmcnt(0)")
    e(lane0("buffer_store_dwordx2 v[12:13], v14, s[16:19], s36 offen sc1"))
    if opts.get("estamp"): e("s_memrealtime s[96:97]"); e("s_waitcnt lgkmcnt(0)")
    for l in w.q[cut:]: e(l)
    if stamps: e("s_memrealtime s[88:89]")
    KOq = holes[0:4]; ZOq = holes[4:6]; GG = holes[6]
    poll_tok(k, 10, 16, "0", 0xfff, 8, sleep=1)
    G0 = 160
    for n in range(8):
        e(f"s_add_u32 s36, s38, {n*4096}")
        for hq in range(2):
            e(f"buffer_load_dwordx4 v[{G0+n*8+hq*4}:{G0+n*8+hq*4+3}], v3, s[16:19], s36 offen offset:{hq*1024} sc1")
    e("v_and_b32 v8, 15, v2"); e("v_lshlrev_b32 v8, 2, v8")
    e("s_lshl_b32 s36, s32, 8"); e(f"s_add_u32 s36, s36, {WS_G:#x}")
    for u in range(4): e(f"buffer_load_dword v{GG+u}, v8, s[16:19], s36 offen offset:{u*64} sc1")
    e("s_lshl_b32 s60, s55, 13"); e(f"s_add_u32 s60, s60, {128*1024}"); e("v_add_u32 v10, s60, v3"); e("s_lshl_b32 s60, s33, 10"); e("v_add_u32 v11, s60, v10")
    e("s_cmp_lg_u32 s33, 0"); e("s_cbranch_scc1 a_noz2")
    for n in range(8):
        e(f"s_add_u32 s36, s38, {n*4096 + 2048}"); e(f"buffer_load_dwordx4 v[{224+n*4}:{227+n*4}], v3, s[16:19], s36 offen sc1")
    e("s_waitcnt vmcnt(0)")
    for st_ in (16, 8, 4):
        for r in range(0, st_, 2): e(f"v_pk_add_f32 v[{224+r}:{225+r}], v[{224+r}:{225+r}], v[{224+st_+r}:{225+st_+r}]")
    e("v_and_b32 v8, 3, v2"); e("v_mov_b32 v9, 0x3f803f80")
    for fbk in range(4):
        for r in range(4): e(f"v_mov_b32_dpp v{240+fbk*4+r}, v{224+r} quad_perm:[{fbk},{fbk},{fbk},{fbk}] row_mask:0xf bank_mask:0xf")
    e("v_cmp_eq_u32 vcc, 1, v8"); e("s_nop 1"); e("v_cndmask_b32 v9, 0, v9, vcc"); e("v_cmp_eq_u32 vcc, 0, v8")
    for n in range(8): e(f"v_cvt_pk_bf16_f32 v{224+n}, v{240+2*n}, v{241+2*n}")
    for n in range(8): e(f"v_cndmask_b32 v{224+n}, v9, v{224+n}, vcc")
    e("ds_write_b128 v10, v[224:227] offset:4096"); e("ds_write_b128 v10, v[228:231] offset:5120")
    e("a_noz2:")
    e("s_waitcnt vmcnt(0)")
    for st_ in (32, 16, 8):
        for r in range(0, st_, 2): e(f"v_pk_add_f32 v[{G0+r}:{G0+r+1}], v[{G0+r}:{G0+r+1}], v[{G0+st_+r}:{G0+st_+r+1}]")
    for n in range(4): e(f"v_cvt_pk_bf16_f32 v{G0+n}, v{G0+2*n}, v{G0+2*n+1}")
    e(f"ds_write_b128 v11, v[{G0}:{G0+3}]")
    e("s_waitcnt lgkmcnt(0)"); e("s_barrier")
    if stamps: e("s_memrealtime s[90:91]")
    for n, d in enumerate(KOq + ZOq): e(f"ds_read_b128 v[{d}:{d+3}], v10 offset:{n*1024}")
    e("s_mov_b32 s38, s32")
    e("v_lshrrev_b32 v8, 5, v2"); e("v_lshlrev_b32 v9, 15, v8"); e("v_and_b32 v8, 31, v2"); e("v_lshl_add_u32 v9, v8, 4, v9")
    e("s_lshl_b32 s36, s59, 17"); e("s_lshl_b32 s37, s38, 10"); e("s_add_u32 s36, s36, s37")
    e(f"s_add_u32 s36, s36, {WS_OT:#x}"); e("s_add_u32 s37, s36, 0x10000")
    e(f"v_mov_b32 v8, {f32(1e-6)}")
    e("s_waitcnt lgkmcnt(0)")
    nq = [160 + 4*n for n in range(24)]
    for u in range(4):
        for sg in range(2):
            b = Bk(u) + 4 + sg*4
            for db in (2, 0, 1):
                d = nq[u*6 + sg*3 + db]; a = KOq[sg*2+db] if db < 2 else ZOq[sg]
                e(f"v_mfma_f32_16x16x32_bf16 v[{d}:{d+3}], v[{a}:{a+3}], v[{b}:{b+3}], 0")
    e("s_nop 1")
    for u in range(4):
        xp, xm = nq[u*6+2], nq[u*6+5]
        e(f"v_rcp_f32 v{xp+2}, v{xp+1}"); e(f"v_rcp_f32 v{xm+2}, v{xm+1}")
    for u in range(4):
        xp, xm = nq[u*6+2], nq[u*6+5]
        e(f"v_fma_f32 v{xp}, v{xp}, v{xp+2}, v8"); e(f"v_fma_f32 v{xp}, v{xm}, v{xm+2}, v{xp}")
    for u in range(4): xp = nq[u*6+2]; e(f"v_rcp_f32 v{xp}, v{xp}")
    for u in range(4): xp = nq[u*6+2]; e(f"v_mul_f32 v{xp}, v{xp}, v{GG+u}")
    for u in range(4):
        xp, xm = nq[u*6+2], nq[u*6+5]
        e(f"v_mul_f32 v{xp+2}, v{xp+2}, v{xp}"); e(f"v_mul_f32 v{xm+2}, v{xm+2}, v{xp}")
    for u in range(4):
        xp, xm = nq[u*6+2], nq[u*6+5]
        for db in range(2):
            np_, nm = nq[u*6+db], nq[u*6+3+db]
            for q in (0, 2):
                e(f"v_pk_mul_f32 v[{np_+q}:{np_+q+1}], v[{np_+q}:{np_+q+1}], v[{xp+2}:{xp+3}] op_sel_hi:[1,0]")
                e(f"v_pk_fma_f32 v[{np_+q}:{np_+q+1}], v[{nm+q}:{nm+q+1}], v[{xm+2}:{xm+3}], v[{np_+q}:{np_+q+1}] op_sel_hi:[1,0,1]")
    for u in range(4):
        for db in range(2):
            np_ = nq[u*6+db]; o = 16 + ((u//2)*2+db)*4 + (u % 2)*2
            e(f"v_cvt_pk_bf16_f32 v{o}, v{np_}, v{np_+1}"); e(f"v_cvt_pk_bf16_f32 v{o+1}, v{np_+2}, v{np_+3}")
    e("s_nop 1")
    for n in range(4):
        o = 16 + n*4; e(f"v_permlane16_swap_b32 v{o}, v{o+2}"); e(f"v_permlane16_swap_b32 v{o+1}, v{o+3}")
    for n in range(4):
        o = 16 + n*4; pr, db = divmod(n, 2)
        e(f"buffer_store_dwordx4 v[{o}:{o+3}], v9, s[16:19], s{36+db} offen offset:{pr*512}{opts.get('ust', '')}")
    if stamps: stamp_store(e, (80, 84, 82, 94, 96, 88, 86, 86) if opts.get("estamp") else (80, 82, 84, 88, 90, 86, 93, 98), WS_STAMP, "a_end")
    e("s_lshl_b32 s39, s52, 4"); e("s_add_u32 s39, s39, s53"); e("s_lshl_b32 s39, s39, 7"); e(f"s_add_u32 s39, s39, {WS_FLAGO:#x}")
    e("s_waitcnt vmcnt(0)")
    e("s_branch b_entry")
    e("a_bchain:")
    e("s_lshl_b32 s52, s58, 5"); e("s_add_u32 s52, s52, s56")
    e("s_and_b32 s54, s56, 3")
    e("s_mul_i32 s55, s58, 7"); e("s_lshr_b32 s60, s56, 2"); e("s_add_u32 s55, s55, s60")
    e("s_cmp_lt_u32 s3, 4"); e("s_cbranch_scc1 a_lnc")
    e("s_cmp_ge_u32 s56, 28"); e("s_cbranch_scc1 a_sp_hi")
    st = Stream(k)
    k.srd(24, W1, S_*F_*2)
    e("s_sub_u32 s3, s3, 4")
    lane_T_dma_off(e, 16, 24, 2, 6, F_*2, 3)
    e("v_add_u32 v25, 128, v24")
    e("s_lshl_b32 s60, s3, 14"); e(f"s_lshl_b32 s28, s54, 12"); e("s_add_u32 s28, s28, s60"); e(f"s_add_u32 s28, s28, {WS_HT:#x}")
    e("s_lshl_b32 s29, s55, 8")
    e("s_lshl_b32 s30, s3, 12"); e("s_lshl_b32 s31, s3, 10"); e(f"s_add_u32 s31, s31, {c2.PB}")
    R2 = dict(vP=[3], vT=[24, 25], sP=28, sT=29, srdP=16, srdT=24, sBase=30, sLds=32, sStage=34, sCnt=35, stepP=4*D_*16, stepT=32*F_*2)
    fl = (" sc1", opts.get("nt2", ""))
    e("s_mov_b32 s32, s30"); e("s_mov_b32 s33, s31")
    def tpro():
        for t in range(5): producer_issue(st.e, c2, R2, fl, "T", t*c2.SB)
    if opts.get("tpro", "pre") == "pre": tpro()
    def g2_touches():
        e("s_mul_i32 s60, s58, 28"); e("s_add_u32 s60, s60, s56"); e("s_lshl_b32 s60, s60, 2"); e("s_add_u32 s60, s60, s3"); e("s_lshl_b32 s60, s60, 10")
        if opts.get("pf_wq", True):
            k.srd(48, WQKV, D_*3*D_*2)
            e("s_mov_b32 s61, s60")
            for n in range(14): st.e("buffer_load_dwordx4 v[240:243], v3, s[48:51], s61 offen"); e(f"s_add_u32 s61, s61, {448*1024}")
        e(f"s_add_u32 s61, s60, {160*7168}")
        for n in range(opts.get("pf_g2", 0)): st.e("buffer_load_dwordx4 v[240:243], v3, s[24:27], s61 offen"); e(f"s_add_u32 s61, s61, {448*1024}")
    if opts.get("cwarm", False):
        e("s_cmp_lg_u32 s3, 3"); e("s_cbranch_scc1 a_cw2")
        code_warm(k, "a_pc2")
        e("a_cw2:")
    if opts.get("tpos", "L1") == "pre": g2_touches()
    e("v_lshlrev_b32 v8, 7, v2"); e("v_add_u32 v9, 0x2000, v8")
    e("s_barrier")
    e(f"v_mov_b32 v4, {158*1024}"); e("ds_read_b64 v[10:11], v4"); e("s_waitcnt lgkmcnt(0)")
    e(f"v_readfirstlane_b32 s{TOK}, v10"); e(f"v_readfirstlane_b32 s{TOK+1}, v11")
    if opts.get("tpro", "pre") == "L1": tpro()
    if opts.get("tpos", "L1") == "L1": g2_touches()
    e("s_barrier")
    producer_issue(st.e, c2, R2, fl, "T", 5*c2.SB)
    e(f"s_mov_b32 s36, {WS_FLAGL:#x}")
    if opts.get("lnsub", True):
        poll_tok(k, 8, 16, "s36", 0xfff, 10, sleep=1)
    else:
        poll_tok(k, [8, 9], 16, "s36", None, 10, sleep=2)
    st = Stream(k)
    for t in range(6):
        producer_issue(st.e, c2, R2, fl, "P", t*c2.SB); st.mark(f"b{t}")
        if t == 1 and opts.get("lnsub", True):
            e("s_lshl_b32 s60, s3, 12"); e("s_add_u32 s36, s36, s60"); e("s_mov_b32 exec_hi, 0")
            st.e("@vm lf buffer_load_dwordx2 v[10:11], v8, s[16:19], s36 offen sc1"); e("s_mov_b32 exec_hi, -1")
    e("s_mov_b32 s34, 0")
    st.e("@wait b0"); e("s_barrier")
    if opts.get("lnsub", True):
        st.e("@wait lf")
        e("s_mov_b32 exec_hi, 0"); e(f"v_cmp_ne_u64 vcc, s[{TOK}:{TOK+1}], v[10:11]"); e("s_mov_b32 exec_hi, -1"); e("s_nop 3"); e("s_cbranch_vccz a_lfok")
        poll_tok(k, 8, 16, "s36", 0xffffffff, 10, sleep=1)
        e("a_lfok:")
    for t in range(5):
        st.e(f"@wait b{t+1}"); e("s_barrier")
        producer_issue(st.e, c2, R2, fl); ring_advance(e, c2, R2)
    e("s_mov_b32 s35, 53")
    e("a_l2:")
    e("s_waitcnt vmcnt(24)"); e("s_barrier")
    producer_issue(e, c2, R2, fl); ring_advance(e, c2, R2)
    e("s_sub_u32 s35, s35, 1"); e("s_cmp_lg_u32 s35, 0"); e("s_cbranch_scc1 a_l2")
    ntl = opts.get("swtail", 0)
    if ntl:
        k.srd(48, 12, F_*S_*2)
        e("s_mul_i32 s60, s58, 28"); e("s_add_u32 s60, s60, s56"); e("s_lshl_b32 s60, s60, 2"); e("s_add_u32 s60, s60, s3"); e("s_lshl_b32 s60, s60, 10"); e(f"s_add_u32 s60, s60, {(32-ntl)*448*1024}")
        for n in range(ntl): e("buffer_load_dwordx4 v[240:243], v3, s[48:51], s60 offen"); e(f"s_add_u32 s60, s60, {448*1024}")
    for r in range(6):
        e(f"s_waitcnt vmcnt({max(4-r, 0)*6 + ntl})"); e("s_barrier")
    e("s_branch b_entry")
    e("a_lnc:")
    st = Stream(k)
    e("s_lshl_b32 s37, s52, 15"); e("s_lshl_b32 s38, s3, 13"); e("s_add_u32 s37, s37, s38"); e("s_add_u32 s38, s37, 4096")
    for n in range(8): st.e(f"buffer_load_dwordx4 v[{48+4*n}:{51+4*n}], v3, s[20:23], s{37+n//4} offen offset:{(n%4)*1024}")
    k.srd(24, GW, D_*2)
    st.e("buffer_load_dwordx4 v[80:83], v3, s[24:27], 0 offen"); st.e("@vm lng buffer_load_dwordx4 v[84:87], v3, s[24:27], 0 offen offset:1024")
    k.srd(48, B1, F_*2)
    e("s_lshr_b32 s57, s3, 1"); e("s_and_b32 s58, s3, 1")
    e("v_lshrrev_b32 v7, 4, v2"); e("v_lshlrev_b32 v7, 3, v7")
    e("s_lshl_b32 s60, s55, 8"); e("s_lshl_b32 s61, s58, 6"); e("s_add_u32 s60, s60, s61")
    for j in range(4): st.e(f"buffer_load_dwordx2 v[{96+2*j}:{97+2*j}], v7, s[48:51], s60 offen offset:{(j//2)*128 + (j%2)*32}")
    st.e("buffer_load_dwordx2 v[12:13], v14, s[40:43], 0 offen sc1")
    LS = 120*1024
    e("s_mov_b32 s36, 0xffff0000")
    e(f"s_mul_i32 s37, s3, {4*HP}"); e(f"s_add_u32 s37, s37, {LS}"); e("v_add_u32 v22, s37, v3")
    e(f"v_bfe_u32 v23, v2, 2, 2"); e(f"v_mul_u32_u24 v23, {HP}, v23"); e("v_and_b32 v120, 3, v2"); e("v_lshl_add_u32 v23, v120, 3, v23")
    e(f"v_lshrrev_b32 v120, 4, v2"); e("v_lshl_add_u32 v23, v120, 5, v23")
    e(f"s_mul_i32 s37, s57, {8*HP}"); e("s_lshl_b32 s38, s58, 10"); e("s_add_u32 s37, s37, s38"); e(f"s_add_u32 s37, s37, {LS}"); e("v_add_u32 v23, s37, v23")
    st.e("@wait lng")
    for i in range(8):
        e(f"v_lshlrev_b32 v{104+2*i}, 16, v{80+i}"); e(f"v_and_b32 v{105+2*i}, s36, v{80+i}")
    if opts.get("ln1", True):
        ln_rows1(e, 48, 0, 52); ln_rows1(e, 64, 1, 52)
    else:
        w = Work()
        gen4.ln_rows(w, 48, 0); gen4.ln_rows(w, 64, 1)
        for it in w.q: e(it.replace("s_lshl_b32 s37, s2, 5", "s_lshl_b32 s37, s52, 6"))
    e("s_waitcnt vmcnt(2)")
    e(f"v_readfirstlane_b32 s{TOK}, v12"); e(f"v_readfirstlane_b32 s{TOK+1}, v13"); e(f"s_cmp_lg_u32 s{TOK}, 0"); e("s_cbranch_scc1 a_tk5")
    get_token(k, 14, 12)
    e("a_tk5:")
    e(f"v_mov_b32 v4, {158*1024}"); e("ds_write_b64 v4, v[12:13]")
    e("s_waitcnt lgkmcnt(0)"); e("s_barrier")
    for j in range(8):
        e(f"ds_read_b64_tr_b16 v[{144+4*j}:{145+4*j}], v23 offset:{128*j}")
        e(f"ds_read_b64_tr_b16 v[{146+4*j}:{147+4*j}], v23 offset:{128*j+4*HP}")
    e(f"s_lshl_b32 s37, s52, 15"); e("s_lshl_b32 s38, s3, 13"); e("s_add_u32 s37, s37, s38"); e(f"s_add_u32 s37, s37, {WS_HT:#x}"); e("s_add_u32 s38, s37, 4096")
    for j in range(8):
        e(f"s_waitcnt lgkmcnt({14-2*j})"); e(f"buffer_store_dwordx4 v[{144+4*j}:{147+4*j}], v3, s[16:19], s{37+j//4} offen offset:{(j%4)*1024} sc1")
    acc2 = [[128 + (i*4+j)*4 for j in range(4)] for i in range(8)]
    e("s_nop 1")
    for j in range(4):
        for hh in range(2):
            src = 96 + j*2 + hh; d0 = acc2[0][j] + hh*2
            e(f"v_lshlrev_b32 v{d0}, 16, v{src}"); e(f"v_and_b32 v{d0+1}, s36, v{src}")
        for i in range(1, 8):
            for q in (0, 2): e(f"v_mov_b64 v[{acc2[i][j]+q}:{acc2[i][j]+q+1}], v[{acc2[0][j]+q}:{acc2[0][j]+q+1}]")
    e("v_lshrrev_b32 v8, 4, v2"); e("v_lshlrev_b32 v4, 12, v8"); e("v_and_b32 v9, 15, v2"); e("v_lshl_add_u32 v4, v9, 4, v4")
    e("s_lshl_b32 s60, s57, 11"); e("v_add_u32 v4, s60, v4")
    lane_T_read_off(e, 16, 6, 2, 8, 9)
    e("s_lshl_b32 s60, s58, 6"); e("v_xor_b32 v6, s60, v6"); e("v_xor_b32 v7, 32, v6")
    e("s_waitcnt vmcnt(0)"); e("s_barrier")
    e("s_cmp_lg_u32 s3, 0"); e("s_cbranch_scc1 a_lnf")
    e("s_lshl_b32 s37, s52, 7"); e(f"s_add_u32 s37, s37, {WS_FLAGL:#x}")
    e(lane0("buffer_store_dwordx2 v[12:13], v14, s[16:19], s37 offen sc1"))
    e("a_lnf:")
    if stamps: e("s_memrealtime s[82:83]")
    e("s_cmp_ge_u32 s56, 28"); e("s_cbranch_scc1 a_spare")
    p_off = [(0, i*256) for i in range(8)]
    t_desc = [(j % 2, c2.PB + (j//2)*4096) for j in range(4)]
    order = [(i, j, i, j) for i in range(8) for j in range(4)]
    pbufs = [16 + 4*i for i in range(16)]; tbufs = [80 + 4*j for j in range(8)]
    consumer_loop(k, c2, [(2, ["s_memrealtime s[84:85]", "s_memtime s[94:95]", "s_waitcnt lgkmcnt(0)"] if stamps else []), (62, [])], 16, 8, 4, p_off, t_desc, acc2, pbufs, tbufs, [4], [6, 7],
                  False, order, 36, 37, 38, rpg=1, bar_pos=2)
    if stamps: e("s_memrealtime s[88:89]"); e("s_memtime s[96:97]"); e("s_waitcnt lgkmcnt(0)"); e("s_sub_u32 s93, s96, s94"); e("s_sub_u32 s98, s88, s84")
    e("s_waitcnt lgkmcnt(0)")
    e("v_lshrrev_b32 v8, 5, v2"); e("v_lshlrev_b32 v7, 14, v8"); e("v_and_b32 v8, 31, v2"); e("v_lshl_add_u32 v7, v8, 4, v7")
    e("s_lshl_b32 s14, s55, 18"); e("s_lshl_b32 s15, s58, 16"); e("s_add_u32 s14, s14, s15")
    e("s_lshl_b32 s15, s54, 12"); e("s_add_u32 s14, s14, s15"); e("s_lshl_b32 s15, s57, 11"); e("s_add_u32 s14, s14, s15")
    e(f"s_add_u32 s14, s14, {WS_UT:#x}")
    e(f"s_mov_b32 s42, {f32(GELU_K3)}"); e(f"s_mov_b32 s43, {f32(GELU_K3)}")
    e(f"v_mov_b32 v10, {f32(GELU_K1)}"); e(f"v_mov_b32 v11, {f32(GELU_K1)}")
    blk = 0
    half = opts.get("half", False)
    e("s_mul_i32 s47, s54, 28"); e("s_add_u32 s47, s47, s55"); e("s_lshl_b32 s47, s47, 2"); e("s_add_u32 s47, s47, s3"); e("s_lshl_b32 s47, s47, 7"); e(f"s_add_u32 s47, s47, {WS_FLAGA:#x}")
    for j in range(4):
        e(f"s_add_u32 s15, s14, {((j//2)*8 + (j%2)*2)*16384}")
        for i in (0, 4):
            t = 16 + (blk % 2) * 24; o = t + 16; blk += 1
            gelu_block(e, [acc2[i+b][j] + q for b in range(4) for q in (0, 2)], t, o)
            e("s_nop 1")
            for pr in range(2):
                e(f"v_permlane16_swap_b32 v{o+4*pr}, v{o+4*pr+2}"); e(f"v_permlane16_swap_b32 v{o+4*pr+1}, v{o+4*pr+3}")
            for pr in range(2):
                e(f"buffer_store_dwordx4 v[{o+4*pr}:{o+4*pr+3}], v7, s[16:19], s15 offen offset:{(i+2*pr)*256}{opts.get('ust', '')}")
            if half and blk == opts.get("hblk", 5):
                e(f"s_waitcnt vmcnt({2*(blk-4)})"); e(lane0("buffer_store_dwordx2 v[12:13], v14, s[16:19], s47 offen sc1"))
    if stamps: stamp_store(e, (80, 82, 84, 88, 88, 86, 93, 98), WS_STAMP, "a_end")
    e("s_mul_i32 s39, s54, 28"); e("s_add_u32 s39, s39, s55"); e("s_lshl_b32 s39, s39, 7"); e(f"s_add_u32 s39, s39, {WS_FLAGU:#x}")
    e("s_waitcnt vmcnt(0)")
    e("s_branch b_entry")
    e("a_sp_hi:")
    e("s_barrier")
    e(f"v_mov_b32 v4, {158*1024}"); e("ds_read_b64 v[12:13], v4"); e("s_waitcnt lgkmcnt(0)")
    e(f"v_readfirstlane_b32 s{TOK}, v12"); e(f"v_readfirstlane_b32 s{TOK+1}, v13")
    e("s_barrier")
    e("a_spare:")
    if opts.get("pf_sp", True):
        k.srd(24, W1, S_*F_*2)
        r0 = opts.get("sp_row0", 192)
        e("s_lshr_b32 s60, s52, 5"); e("s_lshl_b32 s60, s60, 2"); e("s_add_u32 s60, s60, s56"); e("s_sub_u32 s60, s60, 28"); e("s_lshl_b32 s60, s60, 3"); e("s_add_u32 s60, s60, s3")
        e("s_lshl_b32 s59, s60, 10")
        q0 = opts.get("sp_wq0")
        if q0 is not None:
            k.srd(48, WQKV, D_*3*D_*2)
            e(f"s_add_u32 s61, s59, {q0*6144}")
            for n in range(((1024-q0)*6 + 127)//128): e("buffer_load_dwordx4 v[240:243], v3, s[48:51], s61 offen"); e(f"s_add_u32 s61, s61, {128*1024}")
        e(f"s_add_u32 s61, s59, {r0*7168}")
        e(f"s_mov_b32 s62, {max(1, ((2048-r0)*7 + 127)//128)}"); e("a_spl:")
        e("buffer_load_dwordx4 v[240:243], v3, s[24:27], s61 offen"); e(f"s_add_u32 s61, s61, {128*1024}"); e(f"s_waitcnt vmcnt({opts.get('sp_depth', 16)})")
        e("s_sub_u32 s62, s62, 1"); e("s_cmp_lg_u32 s62, 0"); e("s_cbranch_scc1 a_spl")
        k.srd(48, WO, D_*D_*2)
        e("s_mov_b32 s61, s59")
        for n in range(16): e("buffer_load_dwordx4 v[240:243], v3, s[48:51], s61 offen"); e(f"s_add_u32 s61, s61, {128*1024}")
        if opts.get("sp_w2", 0):
            e("s_load_dwordx2 s[12:13], s[0:1], 56"); e("s_waitcnt lgkmcnt(0)")
            k.srd(24, 12, S_*F_*2)
            e(f"s_mov_b32 s62, {opts.get('sp_w2', 0)}"); e("a_spl2:")
            e("buffer_load_dwordx4 v[240:243], v3, s[24:27], s59 offen"); e(f"s_add_u32 s59, s59, {128*1024}"); e(f"s_waitcnt vmcnt({opts.get('sp_depth', 16)})")
            e("s_sub_u32 s62, s62, 1"); e("s_cmp_lg_u32 s62, 0"); e("s_cbranch_scc1 a_spl2")
    e(f"s_mov_b32 s39, {WS_FLAGO + 0x4000:#x}")
    if stamps: stamp_store(e, (80, 82, 82, 82, 82, 86, 86, 86), WS_STAMP, "")
    gen_b2(opts, k)
    e("a_end:")
    return k

def gen_b2(opts, k):
    NS = opts.get("NSb", 5)
    c = GemmCfg(128, 2, NS, 64)
    e = k.e
    stamps = opts.get("stamps", False)
    NT = ""
    W2, B2 = 72, 74
    e("b_entry:")
    e("s_load_dwordx4 s[72:75], s[0:1], 56")
    if stamps: e("s_memrealtime s[80:81]")
    e("s_mov_b32 s2, s46"); e("s_mov_b32 s92, s2")
    e("v_lshrrev_b32 v1, 6, v0"); e("v_and_b32 v2, 63, v0"); e("v_lshlrev_b32 v3, 4, v2")
    e("s_lshr_b32 s56, s2, 3")
    e("v_readfirstlane_b32 s3, v1")
    e("s_and_b32 s52, s2, 1")
    if opts.get("bmap", "8d4s") == "8d4s":
        e("s_lshr_b32 s54, s56, 2")
        e("s_bfe_u32 s55, s2, 0x20001"); e("s_lshl_b32 s55, s55, 2"); e("s_and_b32 s60, s56, 3"); e("s_add_u32 s55, s55, s60")
    else:
        e("s_bfe_u32 s54, s2, 0x10001"); e("s_lshl_b32 s54, s54, 2"); e("s_and_b32 s60, s56, 3"); e("s_add_u32 s54, s54, s60")
        e("s_bfe_u32 s55, s2, 0x10002"); e("s_lshl_b32 s55, s55, 3"); e("s_lshr_b32 s60, s56, 2"); e("s_add_u32 s55, s55, s60")
    e("s_waitcnt lgkmcnt(0)")
    e("s_cmp_lt_u32 s3, 4"); e("s_cbranch_scc1 b_cons")
    assert NS == 5
    n2 = opts.get("n2", 30); n1 = 56 - n2
    k.srd(24, W2, F_*S_*2)
    k.srd(20, WO, D_*D_*2)
    e("s_sub_u32 s3, s3, 4")
    e("s_lshl_b32 s30, s3, 11")
    e("s_lshl_b32 s31, s3, 10"); e(f"s_add_u32 s31, s31, {c.PB}")
    e("s_mov_b32 s32, s30"); e("s_mov_b32 s33, s31")
    fl = None
    fl3 = (" sc1", opts.get("nt3", "")); fl4 = (" sc1", "")
    R3 = dict(vP=[3, 9], vT=list(range(24, 28)), sP=28, sT=29, srdP=16, srdT=24, sBase=30, sLds=32, sStage=34, sCnt=35, stepP=8*D_*16, stepT=64*S_*2)
    R4 = dict(R3, vP=[3, 13], vT=list(range(32, 36)), sP=36, sT=37, srdT=20, stepP=8*S_*16, stepT=64*D_*2)
    def setup3():
        lane_T_dma_off(e, 16, 24, 2, 6, S_*2, 3)
        for n in range(1, 4):
            sg, kg = divmod(n, 2); e(f"v_add_u32 v{24+n}, {sg*128 + kg*32*S_*2}, v24")
        e("s_cmp_eq_u32 s52, 0"); e(f"s_cselect_b32 s62, {n2}, 0")
        e(f"s_mul_i32 s29, s62, {64*4096}"); e("s_lshl_b32 s60, s55, 8"); e("s_add_u32 s29, s29, s60")
        e(f"v_add_u32 v9, {4*D_*16}, v3")
        e("s_lshl_b32 s28, s62, 3"); e("s_add_u32 s28, s28, s3"); e("s_lshl_b32 s28, s28, 14"); e("s_lshl_b32 s60, s54, 11"); e("s_add_u32 s28, s28, s60")
        e(f"s_add_u32 s28, s28, {WS_UT:#x}")
    def start(R, lab_cnt):
        for t in range(NS): producer_issue(e, c, R, fl3, "P", t*c.SB)
        e("s_mov_b32 s34, 0")
        e("s_waitcnt vmcnt(16)"); e("s_barrier")
        for wn_ in (12, 16, 20):
            e(f"s_waitcnt vmcnt({wn_})"); e("s_barrier")
            producer_issue(e, c, R, fl4); ring_advance(e, c, R)
    def loop(R, lab):
        e(f"{lab}:")
        e("s_waitcnt vmcnt(24)"); e("s_barrier")
        producer_issue(e, c, R, fl4); ring_advance(e, c, R)
        e("s_sub_u32 s35, s35, 1"); e("s_cmp_lg_u32 s35, 0"); e(f"s_cbranch_scc1 {lab}")
    e("s_cmp_eq_u32 s52, 0"); e("s_cbranch_scc1 b_ld0")
    setup3()
    R3h = dict(R3, stepP=2*R3["stepP"], stepT=2*R3["stepT"]) if opts.get("half", False) else R3
    for t in range(NS): producer_issue(e, c, R3h, fl3, "T", t*c.SB)
    nsw = opts.get("sw2", 0)
    def sweep2():
        if nsw:
            e("s_lshr_b32 s60, s2, 1"); e("s_lshl_b32 s60, s60, 2"); e("s_add_u32 s60, s60, s3"); e("s_lshl_b32 s60, s60, 10"); e(f"s_add_u32 s60, s60, {(28-nsw)*512*1024}")
            for n in range(nsw): e("buffer_load_dwordx4 v[240:243], v3, s[24:27], s60 offen"); e(f"s_add_u32 s60, s60, {512*1024}")
    if not opts.get("half", False):
        if opts.get("sw2pos", "pre") == "pre": sweep2()
        e(f"v_min_u32 v8, {n2//2-1}, v2"); e("v_lshlrev_b32 v8, 7, v8")
        e("s_lshr_b32 s38, s54, 1"); e("s_mul_i32 s38, s38, 28"); e("s_lshl_b32 s38, s38, 7"); e(f"s_add_u32 s38, s38, {WS_FLAGU:#x}")
        e("s_barrier")
        if opts.get("sw2pos", "pre") == "post": sweep2()
        poll_tok(k, 8, 16, "s38", 0xffffff, 10, sleep=1)
        start(R3, 0)
        e(f"s_mov_b32 s35, {n2 - 8}")
        e("s_branch b_l3")
    else:
        if opts.get("sw2pos", "pre") == "pre": sweep2()
        e(f"v_min_u32 v8, {n2-1}, v2"); e("v_lshrrev_b32 v10, 1, v8"); e("v_and_b32 v8, 1, v8"); e("v_lshl_add_u32 v8, v10, 2, v8"); e("v_lshlrev_b32 v8, 7, v8")
        e("s_lshr_b32 s38, s54, 1"); e("s_mul_i32 s38, s38, 112"); e("s_and_b32 s60, s54, 1"); e("s_lshl_b32 s60, s60, 1"); e("s_add_u32 s38, s38, s60"); e("s_lshl_b32 s38, s38, 7"); e(f"s_add_u32 s38, s38, {WS_FLAGA:#x}")
        poll_tok(k, 8, 16, "s38", None, 10, sleep=1)
        for t in range(NS): producer_issue(e, c, R3h, fl3, "P", t*c.SB)
        e("s_mov_b32 s34, 0")
        e("s_barrier")
        e("s_waitcnt vmcnt(16)"); e("s_barrier")
        for wn_ in (12, 16, 20):
            e(f"s_waitcnt vmcnt({wn_})"); e("s_barrier")
            producer_issue(e, c, R3h, fl3); ring_advance(e, c, R3h)
        e(f"s_mov_b32 s35, {n2//2 - 8}")
        loop(R3h, "b_lh1")
        e(f"s_sub_u32 s28, s28, {(n2-1)*8*D_*16}"); e(f"s_sub_u32 s29, s29, {(n2-1)*64*S_*2}")
        e(f"s_mov_b32 s35, {n2//2}")
        loop(R3h, "b_lh2")
        e("s_branch b_lt")
    e("b_ld0:")
    lane_T_dma_off(e, 16, 32, 2, 6, D_*2, 3)
    for n in range(1, 4):
        sg, kg = divmod(n, 2); e(f"v_add_u32 v{32+n}, {sg*128 + kg*32*D_*2}, v32")
    e("s_lshl_b32 s37, s54, 8")
    for t in range(NS): producer_issue(e, c, R4, fl4, "T", t*c.SB)
    e(f"v_add_u32 v13, {4*S_*16}, v3")
    e("s_lshl_b32 s36, s3, 15"); e("s_lshl_b32 s60, s55, 11"); e("s_add_u32 s36, s36, s60"); e(f"s_add_u32 s36, s36, {WS_OT:#x}")
    setup3()
    e("v_lshlrev_b32 v8, 7, v2"); e("s_lshr_b32 s38, s55, 1"); e("s_lshl_b32 s38, s38, 11"); e(f"s_add_u32 s38, s38, {WS_FLAGO:#x}")
    e("s_barrier")
    poll_tok(k, 8, 16, "s38", 0xffff, 10, sleep=1)
    start(R4, 0)
    e("s_mov_b32 s35, 8")
    loop(R4, "b_l4")
    e(f"s_mov_b32 s35, {n1}")
    loop(R3, "b_l3")
    e("b_lt:")
    for wn_ in (24, 16, 8, 0, 0):
        e(f"s_waitcnt vmcnt({wn_})"); e("s_barrier")
    e("s_endpgm")
    e("b_cons:")
    e(f"v_mov_b32 v92, s{TOK}"); e(f"v_mov_b32 v93, s{TOK+1}"); e("v_mov_b32 v94, 0")
    e("s_barrier")
    e("s_cmp_lg_u32 s3, 0"); e("s_cbranch_scc1 b_nf")
    e(lane0("buffer_store_dwordx2 v[92:93], v94, s[16:19], s39 offen sc1"))
    e("b_nf:")
    e("s_lshr_b32 s57, s3, 1"); e("s_and_b32 s58, s3, 1")
    k.srd(24, B2, S_*2)
    k.srd(20, OUT, S_*D_*2)
    e("v_and_b32 v15, 15, v2"); e("v_lshrrev_b32 v14, 4, v2")
    e("s_lshl_b32 s60, s55, 7"); e("s_lshl_b32 s61, s58, 5"); e("s_add_u32 s60, s60, s61"); e("v_add_u32 v8, s60, v15")
    e("v_lshlrev_b32 v9, 2, v8"); e("v_lshlrev_b32 v8, 1, v8")
    e(f"s_mov_b32 s47, {WS_G:#x}")
    GO, BO = 80, 88
    gld = [f"buffer_load_dword v{GO+2*j}, v9, s[16:19], s47 offen offset:{((j//2)*64 + (j%2)*16)*4} sc1" for j in range(4)]
    stb = ["s_memrealtime s[98:99]", "s_memtime s[94:95]", "s_waitcnt lgkmcnt(0)"] if stamps else []
    gfin = ["s_waitcnt vmcnt(0)"] + [f"v_sub_f32 v{GO+2*j}, 1.0, v{GO+2*j}" for j in range(4)]
    for j in range(4):
        e(f"buffer_load_ushort v{BO+j}, v8, s[24:27], 0 offen offset:{((j//2)*64 + (j%2)*16)*2}")
    acc = [[96 + (i*4+j)*4 for j in range(4)] for i in range(4)]
    e("v_lshlrev_b32 v4, 11, v14"); e("v_lshl_add_u32 v4, v15, 4, v4")
    e("v_mov_b32 v5, v4")
    e("s_lshl_b32 s60, s57, 10"); e("v_add_u32 v4, s60, v4")
    lane_T_read_off(e, 16, 10, 2, 12, 13)
    e("s_lshl_b32 s60, s58, 6"); e("v_xor_b32 v6, s60, v10"); e("v_xor_b32 v7, 32, v6")
    e("s_waitcnt vmcnt(0)")
    e("s_cmp_eq_u32 s52, 1"); e("s_cselect_b32 s60, -65536, 0")
    for j in range(4):
        e(f"v_lshlrev_b32 v{BO+j}, 16, v{BO+j}"); e(f"v_and_b32 v{BO+j}, s60, v{BO+j}")
        for i in range(4):
            for q in range(4): e(f"v_mov_b32 v{acc[i][j]+q}, v{BO+j}")
    p_off = [(0, kk*8192 + i*256) for kk in range(2) for i in range(4)]
    t_desc = [(j % 2, c.PB + (j//2)*8192 + kk*4096) for kk in range(2) for j in range(4)]
    order = [(kk*4+i, kk*4+j, i, j) for kk in range(2) for i in range(4) for j in range(4)]
    pbufs = [16 + 4*i for i in range(8)]; tbufs = [48 + 4*j for j in range(8)]
    if stamps: e("s_memrealtime s[82:83]")
    e("s_cmp_eq_u32 s52, 0"); e("s_cbranch_scc1 b_cons0")
    if opts.get("half", False):
        e(f"v_min_u32 v95, {n2//2-1}, v2"); e("v_lshlrev_b32 v95, 7, v95")
        e("s_lshr_b32 s46, s54, 1"); e("s_mul_i32 s46, s46, 28"); e("s_lshl_b32 s46, s46, 7"); e(f"s_add_u32 s46, s46, {WS_FLAGU:#x}")
        ck1 = Kern("tmp", 0, 0, 0); ck1.name = "bh"
        ck1.e("s_waitcnt vmcnt(0)"); ck1.e(f"v_cmp_ne_u64 vcc, s[{TOK}:{TOK+1}], v[224:225]"); ck1.e("s_nop 4"); ck1.e("s_cbranch_vccz b_hok")
        poll_tok(ck1, 95, 16, "s46", None, 224, sleep=1)
        ck1.e("b_hok:")
        nchk = n2//2 - 5
        segs1 = [(2, gld + stb), (nchk - 4, ["buffer_load_dwordx2 v[224:225], v95, s[16:19], s46 offen sc1"]), (2, ck1.lines), (n2 - nchk, gfin)]
    else:
        segs1 = [(2, gld + stb), (n2-2, gfin)]
    consumer_loop(k, c, segs1, 16, 8, 8, p_off, t_desc, acc, pbufs, tbufs, [4], [6, 7], True, order, 36, 37, 38, rpg=1, bar_pos=18)
    e("s_waitcnt lgkmcnt(0)"); e("s_nop 3")
    for j in range(4):
        for i in range(4):
            for q in (0, 2):
                a = acc[i][j] + q
                e(f"v_pk_mul_f32 v[{a}:{a+1}], v[{a}:{a+1}], v[{GO+2*j}:{GO+2*j+1}] op_sel_hi:[1,0]")
    e("s_branch b_exch")
    e("b_cons0:")
    e(f"v_min_u32 v95, {n1//2-1}, v2"); e("v_lshlrev_b32 v95, 7, v95")
    e("s_lshr_b32 s46, s54, 1"); e("s_mul_i32 s46, s46, 28"); e(f"s_add_u32 s46, s46, {n2//2}"); e("s_lshl_b32 s46, s46, 7"); e(f"s_add_u32 s46, s46, {WS_FLAGU:#x}")
    e("s_lshl_b32 s60, s58, 9"); e("v_add_u32 v5, s60, v5")
    e("s_lshl_b32 s60, s57, 13"); e("v_add_u32 v10, s60, v10")
    for q in range(1, 4): e(f"v_xor_b32 v{10+q}, {32*q}, v10")
    chk = Kern("tmp", 0, 0, 0); chk.name = "bo"
    chk.e("s_waitcnt vmcnt(0)"); chk.e(f"v_cmp_ne_u64 vcc, s[{TOK}:{TOK+1}], v[224:225]"); chk.e("s_nop 4"); chk.e("s_cbranch_vccz b_ook")
    poll_tok(chk, 95, 16, "s46", None, 224, sleep=1)
    chk.e("b_ook:")
    p_off4 = [(0, kk*8192 + (j//2)*1024 + (j%2)*256) for kk in range(2) for j in range(4)]
    t_desc4 = [(i, c.PB + kk*4096) for kk in range(2) for i in range(4)]
    order4 = [(kk*4+j, kk*4+i, i, j) for kk in range(2) for j in range(4) for i in range(4)]
    consumer_loop(k, c, [(9, ["buffer_load_dwordx2 v[224:225], v95, s[16:19], s46 offen sc1"]), (2, chk.lines + gld), (5, [])], 16, 8, 8, p_off4, t_desc4, acc, pbufs, tbufs,
                  [5], [10, 11, 12, 13], False, order4, 36, 37, 38, rpg=1, bar_pos=18)
    if stamps: e("s_memrealtime s[88:89]")
    slot = 16 % NS
    for v in (4, 6, 7): e(f"v_add_u32 v{v}, {slot*c.SB}, v{v}")
    e("s_waitcnt lgkmcnt(0)"); e("s_nop 4")
    for r in range(0, 64, 2):
        e(f"v_mov_b64 v[{160+r}:{161+r}], v[{96+r}:{97+r}]"); e(f"v_mov_b64 v[{96+r}:{97+r}], 0")
    for l in stb: e(l)
    consumer_loop(k, c, [(n1, gfin)], 16, 8, 8, p_off, t_desc, acc, pbufs, tbufs, [4], [6, 7], True, order, 36, 37, 38, rpg=1, bar_pos=18, slot0=slot)
    e("s_waitcnt lgkmcnt(0)"); e("s_nop 3")
    for j in range(4):
        for i in range(4):
            for q in (0, 2):
                a = acc[i][j] + q
                e(f"v_pk_fma_f32 v[{a}:{a+1}], v[{a}:{a+1}], v[{GO+2*j}:{GO+2*j+1}], v[{a+64}:{a+65}] op_sel_hi:[1,0,1]")
    e("b_exch:")
    if stamps: e("s_memrealtime s[84:85]"); e("s_memtime s[96:97]"); e("s_waitcnt lgkmcnt(0)"); e("s_sub_u32 s93, s96, s94"); e("s_sub_u32 s88, s98, 0"); e("s_sub_u32 s98, s84, s98")
    e("s_lshl_b32 s60, s2, 2"); e("s_add_u32 s60, s60, s3"); e("s_lshl_b32 s60, s60, 13"); e(f"s_add_u32 s60, s60, {gen2.WS_PART:#x}")
    e("s_add_u32 s61, s60, 4096")
    e("s_xor_b32 s62, s60, 0x8000"); e("s_add_u32 s63, s62, 4096")
    e("s_lshl_b32 s40, s2, 10"); e("s_lshl_b32 s41, s3, 7"); e("s_add_u32 s40, s40, s41"); e(f"s_add_u32 s40, s40, {WS_FLAG:#x}"); e("s_xor_b32 s41, s40, 0x400")
    e("v_mov_b32 v8, 0"); e("v_mov_b32 v9, 1")
    xb = opts.get("xbf16", False)
    def exch(hk, lab):
        snd = [acc[i][2*(1-hk)+jj] for jj in range(2) for i in range(4)]
        keep = [acc[i][2*hk+jj] for jj in range(2) for i in range(4)]
        if xb:
            for n, a in enumerate(snd):
                e(f"v_cvt_pk_bf16_f32 v{64+2*n}, v{a}, v{a+1}"); e(f"v_cvt_pk_bf16_f32 v{65+2*n}, v{a+2}, v{a+3}")
                if n % 2: e(f"buffer_store_dwordx4 v[{62+2*n}:{65+2*n}], v3, s[16:19], s60 offen offset:{(n//2)*1024} sc1")
        else:
            for n, a in enumerate(snd):
                e(f"buffer_store_dwordx4 v[{a}:{a+3}], v3, s[16:19], s{60 + n//4} offen offset:{(n%4)*1024} sc1")
        e("s_waitcnt vmcnt(0)")
        e(lane0("buffer_store_dwordx2 v[92:93], v94, s[16:19], s40 offen sc1"))
        poll_tok(k, 94, 16, "s41", None, 10, sleep=1, cnt=47)
        if xb:
            for n in range(4):
                e(f"buffer_load_dwordx4 v[{16+4*n}:{19+4*n}], v3, s[16:19], s62 offen offset:{n*1024} sc1")
            e("s_mov_b32 s63, 0xffff0000")
            for n, a in enumerate(keep):
                if n % 2 == 0: e(f"s_waitcnt vmcnt({3-n//2})")
                for h in range(2):
                    src = 16 + 2*n + h
                    e(f"v_lshlrev_b32 v32, 16, v{src}"); e(f"v_and_b32 v33, s63, v{src}")
                    e(f"v_pk_add_f32 v[{a+2*h}:{a+2*h+1}], v[{a+2*h}:{a+2*h+1}], v[32:33]")
        else:
            for n in range(8):
                e(f"buffer_load_dwordx4 v[{16+4*n}:{19+4*n}], v3, s[16:19], s{62 + n//4} offen offset:{(n%4)*1024} sc1")
            for n, a in enumerate(keep):
                e(f"s_waitcnt vmcnt({7-n})")
                for q in (0, 2): e(f"v_pk_add_f32 v[{a+q}:{a+q+1}], v[{a+q}:{a+q+1}], v[{16+4*n+q}:{17+4*n+q}]")
        for i in range(4):
            for jj in range(2):
                a = acc[i][2*hk+jj]; o = 48 + i*4 + jj*2
                e(f"v_cvt_pk_bf16_f32 v{o}, v{a}, v{a+1}"); e(f"v_cvt_pk_bf16_f32 v{o+1}, v{a+2}, v{a+3}")
    e("s_cmp_eq_u32 s52, 0"); e("s_cbranch_scc0 b_ex1")
    exch(0, "b_ex0")
    e("s_branch b_fin")
    e("b_ex1:")
    exch(1, "b_ex1")
    e("b_fin:")
    e("v_and_b32 v8, 31, v2"); e("v_lshlrev_b32 v8, 11, v8"); e("v_lshrrev_b32 v9, 5, v2"); e("v_lshl_add_u32 v8, v9, 4, v8")
    e("s_lshl_b32 s60, s55, 2"); e("s_lshl_b32 s61, s52, 1"); e("s_add_u32 s60, s60, s61"); e("s_add_u32 s60, s60, s58"); e("s_lshl_b32 s60, s60, 16")
    e("s_lshl_b32 s61, s54, 8"); e("s_add_u32 s60, s60, s61"); e("s_lshl_b32 s61, s57, 7"); e("s_add_u32 s60, s60, s61")
    for i in range(4):
        o = 48 + i*4
        e(f"v_permlane16_swap_b32 v{o}, v{o+2}"); e(f"v_permlane16_swap_b32 v{o+1}, v{o+3}")
    if opts.get("olds", False):
        e("v_and_b32 v10, 31, v2"); e("v_mul_u32_u24 v10, 144, v10"); e("v_lshl_add_u32 v10, v9, 4, v10"); e("s_lshl_b32 s61, s3, 13"); e("v_add_u32 v10, s61, v10")
        e("v_lshrrev_b32 v11, 3, v2"); e("v_and_b32 v12, 7, v2"); e("v_lshlrev_b32 v8, 11, v11"); e("v_lshl_add_u32 v8, v12, 4, v8")
        e("v_mul_u32_u24 v11, 144, v11"); e("v_lshl_add_u32 v11, v12, 4, v11"); e("v_add_u32 v11, s61, v11")
        for i in range(4): e(f"ds_write_b128 v10, v[{48+i*4}:{51+i*4}] offset:{i*32}")
        e("s_waitcnt lgkmcnt(0)")
        for n in range(4): e(f"ds_read_b128 v[{16+n*4}:{19+n*4}], v11 offset:{n*8*144}")
        for n in range(4):
            e(f"s_waitcnt lgkmcnt({3-n})")
            e(f"buffer_store_dwordx4 v[{16+n*4}:{19+n*4}], v8, s[20:23], s60 offen{opts.get('ost', '')}"); e("s_add_u32 s60, s60, 0x4000")
    else:
        for i in range(4):
            o = 48 + i*4
            e(f"buffer_store_dwordx4 v[{o}:{o+3}], v8, s[20:23], s60 offen offset:{i*32}{opts.get('ost', '')}")
    if stamps: stamp_store(e, (80, 82, 84, 86, 88, 86, 93, 98), WS_STAMP + 0x10000, "")

if __name__ == "__main__":
    out = sys.argv[1]
    opts = eval("dict(" + (sys.argv[2] if len(sys.argv) > 2 else "") + ")")
    write_file(out, [gen_a(dict(dict(ust=' sc1', ost=' nt', xbf16=True, pf_wq=False, pf_g2=8, sp_row0=672, rotmul=2, n2=32, e1sw=7, sw2=14), **opts))], single=True)
```

```python
import sys
from gen import *
import gen2, gen3, gen4
from gen2 import spin_until, softmax_units, DBG, WS, X, WQKV, WPHI, WO, W1, B1, GW, OUT, WS_KVP, NQ
from gen3 import Stream, Work, WS_KVF
from gen4 import lane0, HP

WS_SIZE = 0x8000000
WS_FLAGL = 0x14E0000
WS_FLAG1 = 0x14C0000
WS_FLAG2 = 0x14D0000
WS_FLAGU = 0x14F0000
WS_FLAGO = 0x14F8000
WS_FLAGA = 0x1440000
TOK = 44

PSLEEP = [1]
def poll_tok(k, vaddr, srd, soff, nl_mask, vd, sleep=4, cnt=63):
    e = k.e
    L = k.lab("pt"); Lok = k.lab("ptok")
    if nl_mask is not None: e(f"s_mov_b32 exec_lo, {nl_mask:#x}"); e("s_mov_b32 exec_hi, 0")
    e(f"s_mov_b32 s{cnt}, 0x40000")
    e(f"{L}:")
    vs = vaddr if isinstance(vaddr, list) else [vaddr]
    for n, va in enumerate(vs):
        e(f"buffer_load_dwordx2 v[{vd+2*n}:{vd+1+2*n}], v{va}, s[{srd}:{srd+3}], {soff} offen sc1")
    e("s_waitcnt vmcnt(0)")
    e(f"v_cmp_ne_u64 vcc, s[{TOK}:{TOK+1}], v[{vd}:{vd+1}]")
    for n in range(1, len(vs)):
        e(f"v_cmp_ne_u64 s[60:61], s[{TOK}:{TOK+1}], v[{vd+2*n}:{vd+1+2*n}]"); e("s_or_b64 vcc, vcc, s[60:61]")
    e(f"s_sub_u32 s{cnt}, s{cnt}, 1"); e(f"s_cbranch_scc1 {Lok}")
    e(f"s_cbranch_vccz {Lok}")
    e(f"s_sleep {max(sleep, PSLEEP[0])}")
    e(f"s_branch {L}")
    e(f"{Lok}:")
    if nl_mask is not None: e("s_mov_b64 exec, -1")

def get_token(k, vz, vd):
    e = k.e
    L = k.lab("tk"); Lok = k.lab("tkok")
    e("s_mov_b32 s63, 0x40000")
    e(f"{L}:")
    e(f"buffer_load_dwordx2 v[{vd}:{vd+1}], v{vz}, s[40:43], 0 offen sc1"); e("s_waitcnt vmcnt(0)")
    e(f"v_readfirstlane_b32 s{TOK}, v{vd}"); e(f"v_readfirstlane_b32 s{TOK+1}, v{vd+1}")
    e("s_sub_u32 s63, s63, 1"); e(f"s_cbranch_scc1 {Lok}")
    e(f"s_cmp_eq_u32 s{TOK}, 0"); e(f"s_cbranch_scc1 {L}")
    e(f"{Lok}:")

_sl = [0]
DBGST = []
def stamp_store(e, regs, base, endlab, cond="v0"):
    _sl[0] += 1; endlab = f"stl{_sl[0]}"
    if DBGST:
        e("s_waitcnt vmcnt(0)")
        e("s_memrealtime s[86:87]"); e("s_waitcnt lgkmcnt(0)")
        slot = DBGST.pop(0)
        e("v_mov_b32 v7, 0")
        e(f"v_cmp_eq_u32 vcc, 0, {cond}"); e("s_and_saveexec_b64 s[60:61], vcc"); e(f"s_cbranch_execz {endlab}")
        for n, (sr, w) in enumerate(slot):
            e(f"s_sub_u32 s62, s{sr}, s{TOK}"); e(f"v_mov_b32 v{16+n}, s62"); e(f"global_atomic_smax v7, v{16+n}, s[4:5] offset:{128 + w*4}" if False else f"global_atomic_smax v7, v{16+n}, s[4:5] offset:{w*4}")
        e(f"{endlab}:"); e("s_mov_b64 exec, -1")
        return
    e("s_waitcnt vmcnt(0)")
    e("s_memrealtime s[86:87]"); e("s_waitcnt lgkmcnt(0)")
    for n, sr in enumerate(regs): e(f"v_mov_b32 v{16+n}, s{sr}")
    e("s_lshl_b32 s60, s92, 5"); e(f"s_add_u32 s60, s60, {base:#x}"); e("v_mov_b32 v7, s60")
    e(f"v_cmp_eq_u32 vcc, 0, {cond}"); e("s_and_saveexec_b64 s[60:61], vcc"); e(f"s_cbranch_execz {endlab}")
    e(f"global_store_dwordx4 v7, v[16:19], s[{WS}:{WS+1}]")
    e(f"global_store_dwordx4 v7, v[20:23], s[{WS}:{WS+1}] offset:16")
    e(f"{endlab}:"); e("s_mov_b64 exec, -1")

def ln_rows1(e, XR, m, sli):
    XF, GF, A = 144, 104, 120
    for r in range(2):
        for i in range(8):
            e(f"v_lshlrev_b32 v{XF+16*r+2*i}, 16, v{XR+8*r+i}"); e(f"v_and_b32 v{XF+1+16*r+2*i}, s36, v{XR+8*r+i}")
    e(f"v_readfirstlane_b32 s12, v{XF}"); e(f"v_readfirstlane_b32 s14, v{XF+16}")
    for r in range(2):
        b = XF + 16*r
        e(f"v_pk_mul_f32 v[{A+8+2*r}:{A+9+2*r}], v[{b}:{b+1}], v[{GF}:{GF+1}]")
    e("s_mov_b32 s13, s12"); e("s_mov_b32 s15, s14")
    for i in range(2, 16, 2):
        for r in range(2):
            b = XF + 16*r
            e(f"v_pk_fma_f32 v[{A+8+2*r}:{A+9+2*r}], v[{b+i}:{b+i+1}], v[{GF+i}:{GF+i+1}], v[{A+8+2*r}:{A+9+2*r}]")
    for i in range(0, 16, 2):
        for r in range(2):
            b = XF + 16*r
            e(f"v_pk_add_f32 v[{b+i}:{b+i+1}], v[{b+i}:{b+i+1}], s[{12+2*r}:{13+2*r}] neg_lo:[0,1] neg_hi:[0,1]")
    for r in range(2):
        b = XF + 16*r
        e(f"v_pk_add_f32 v[{A+2*r}:{A+1+2*r}], v[{b}:{b+1}], v[{b+2}:{b+3}]")
        e(f"v_pk_mul_f32 v[{A+4+2*r}:{A+5+2*r}], v[{b}:{b+1}], v[{b}:{b+1}]")
    for i in range(2, 16, 2):
        for r in range(2):
            b = XF + 16*r
            if i >= 4: e(f"v_pk_add_f32 v[{A+2*r}:{A+1+2*r}], v[{A+2*r}:{A+1+2*r}], v[{b+i}:{b+i+1}]")
            e(f"v_pk_fma_f32 v[{A+4+2*r}:{A+5+2*r}], v[{b+i}:{b+i+1}], v[{b+i}:{b+i+1}], v[{A+4+2*r}:{A+5+2*r}]")
    for n in range(6): e(f"v_add_f32 v{A+2*n}, v{A+2*n}, v{A+1+2*n}")
    dpp_reduce_sum_multi(e, [A+2*n for n in range(6)])
    e("s_nop 1")
    for n in range(6): e(f"v_readlane_b32 s{28+n}, v{A+2*n}, 63")
    e(f"s_mov_b32 s37, {f32(1.0/1024)}"); e(f"v_mov_b32 v{A+1}, {f32(1e-5)}")
    for r in range(2): e(f"v_mov_b32 v{A+2*r}, s{28+r}"); e(f"v_mov_b32 v{A+4+2*r}, s{30+r}")
    e(f"v_mov_b32 v{A+8}, s32"); e(f"v_mov_b32 v{A+9}, s33"); e("v_cmp_eq_u32 vcc, 1, v2")
    for r in range(2): e(f"v_mul_f32 v{A+2*r}, s37, v{A+2*r}"); e(f"v_fma_f32 v{A+4+2*r}, v{A+4+2*r}, s37, v{A+1}")
    e(f"v_cndmask_b32 v{A+8}, v{A+8}, v{A+9}, vcc")
    for r in range(2): e(f"v_fma_f32 v{A+4+2*r}, -v{A+2*r}, v{A+2*r}, v{A+4+2*r}")
    e(f"v_mul_f32 v{A+8}, {f32(-LOG2E)}, v{A+8}")
    for r in range(2): e(f"v_max_f32 v{A+4+2*r}, v{A+4+2*r}, v{A+1}")
    e(f"v_exp_f32 v{A+8}, v{A+8}")
    for r in range(2): e(f"v_rsq_f32 v{A+4+2*r}, v{A+4+2*r}")
    e(f"v_add_f32 v{A+8}, 1.0, v{A+8}")
    for r in range(2): e(f"v_mul_f32 v{A+2*r}, v{A+2*r}, v{A+4+2*r}")
    e(f"v_rcp_f32 v{A+8}, v{A+8}")
    for r in range(2):
        b = XF + 16*r
        for i in range(0, 16, 2):
            e(f"v_pk_fma_f32 v[{b+i}:{b+i+1}], v[{b+i}:{b+i+1}], v[{A+4+2*r}:{A+5+2*r}], v[{A+2*r}:{A+1+2*r}] op_sel_hi:[1,0,0] neg_lo:[0,0,1] neg_hi:[0,0,1]")
        for i in range(8): e(f"v_cvt_pk_bf16_f32 v{XR+8*r+i}, v{b+2*i}, v{b+2*i+1}")
        for hh in range(2): e(f"ds_write_b128 v22, v[{XR+8*r+4*hh}:{XR+8*r+4*hh+3}] offset:{(2*m+r)*HP + hh*1024}")
    e(f"v_lshlrev_b32 v{A+9}, 2, v2"); e(f"s_lshl_b32 s37, s{sli}, 6"); e("s_lshl_b32 s38, s3, 4"); e("s_add_u32 s37, s37, s38"); e(f"s_add_u32 s37, s37, {WS_G + 8*m:#x}")
    e("s_mov_b64 exec, 3"); e(f"buffer_store_dword v{A+8}, v{A+9}, s[16:19], s37 offen sc1"); e("s_mov_b64 exec, -1")

def code_warm(k, lab):
    e = k.e
    e("s_getpc_b64 s[10:11]"); e(f"{lab}:")
    e(f"s_sub_u32 s10, s10, {lab}-{k.name}"); e("s_subb_u32 s11, s11, 0")
    e("s_lshl_b32 s60, s56, 10"); e("v_add_u32 v15, s60, v3")
    e(f"s_mov_b32 s61, a_end-{k.name}-16"); e("v_min_u32 v15, s61, v15")
    e("global_load_dwordx4 v[236:239], v15, s[10:11]")
    e("v_add_u32 v15, 0x8000, v15"); e("v_min_u32 v15, s61, v15")
    e("global_load_dwordx4 v[236:239], v15, s[10:11]")

def tlb_touch(e, vtmp, vd, pages):
    e(f"v_mov_b32 v{vtmp}, {pages[0]:#x}")
    for n, p in enumerate(pages[1:], 1):
        e(f"s_mov_b32 s60, {p:#x}"); e(f"v_writelane_b32 v{vtmp}, s60, {n}")
    return [f"s_mov_b64 exec, {(1 << len(pages)) - 1:#x}", f"buffer_load_dword v{vd}, v{vtmp}, s[16:19], 0 offen", "s_mov_b64 exec, -1"]

def gen_a(opts):
    ALIGN[0] = opts.get("align", 3); PSLEEP[0] = opts.get("psleep", 1)
    if opts.get("dbgst"):
        DBGST.extend([[(84, 2), (90, 3), (86, 4)], [(82, 5), (84, 6), (88, 7), (86, 8)], [(84, 9), (86, 10)], [(82, 11), (84, 12), (86, 13)]])
    c2 = GemmCfg(256, 2, 6, 32)
    k = Kern("gated_mix__linear_kernel_hedgehog__mixer_token_mlp__prompt_kernel", 256, 512, 160*1024, vgpr=256, sgpr=100)
    e = k.e
    stamps = opts.get("stamps", False)
    pf = opts.get("pf", True)
    e("s_cmp_ge_u32 s2, 256"); e("s_cbranch_scc1 a_end")
    e("s_load_dwordx8 s[64:71], s[0:1], 0")
    e("s_load_dwordx4 s[72:75], s[0:1], 40")
    e("s_load_dwordx4 s[76:79], s[0:1], 72")
    e("s_load_dwordx4 s[4:7], s[0:1], 88")
    e("s_load_dwordx2 s[12:13], s[0:1], 56")
    e(f"s_memrealtime s[{TOK}:{TOK+1}]")
    if opts.get("mixed", False):
        e("s_lshr_b32 s52, s2, 7"); e("s_bfe_u32 s53, s2, 0x40003"); e("s_and_b32 s54, s2, 1"); e("s_and_b32 s55, s2, 6"); e("s_or_b32 s55, s55, s52")
        e("s_lshr_b32 s56, s53, 2"); e("s_lshl_b32 s56, s56, 3"); e("s_lshl_b32 s57, s54, 2"); e("s_or_b32 s56, s56, s57"); e("s_and_b32 s57, s53, 3"); e("s_or_b32 s56, s56, s57")
        e("s_lshl_b32 s46, s56, 3"); e("s_or_b32 s46, s46, s55")
        e("s_lshr_b32 s56, s53, 1"); e("s_lshl_b32 s56, s56, 2"); e("s_lshl_b32 s57, s54, 1"); e("s_or_b32 s56, s56, s57"); e("s_and_b32 s57, s53, 1"); e("s_or_b32 s56, s56, s57")
        e("s_lshl_b32 s56, s56, 3"); e("s_or_b32 s56, s56, s55")
        e("s_cmp_eq_u32 s52, 0"); e("s_cselect_b32 s2, s46, s56")
    else:
        e("s_mov_b32 s46, s2")
    e("s_mov_b32 s92, s2")
    e("v_lshrrev_b32 v1, 6, v0"); e("v_and_b32 v2, 63, v0"); e("v_lshlrev_b32 v3, 4, v2")
    e("s_lshr_b32 s56, s2, 3"); e("s_and_b32 s57, s2, 7")
    e("v_readfirstlane_b32 s3, v1")
    e("v_mov_b32 v14, 0")
    if opts.get("prioc") or opts.get("priol"):
        e("s_nop 2"); e("s_cmp_lt_u32 s3, 4"); e("s_cbranch_scc1 a_pc"); e(f"s_setprio {opts.get('priol', 0)}"); e("s_branch a_pd"); e("a_pc:"); e(f"s_setprio {opts.get('prioc', 0)}"); e("a_pd:")
    e("s_waitcnt lgkmcnt(0)")
    if stamps: e(f"s_mov_b32 s80, s{TOK}")
    k.srd(16, WS, WS_SIZE)
    k.srd(40, DBG, 256)
    k.srd(20, X, S_*D_*2)
    e("s_lshl_b32 s60, s2, 3"); e("s_add_u32 s60, s60, s3"); e("s_cmp_lg_u32 s60, 7"); e("s_cbranch_scc1 a_ntp")
    e(f"s_or_b32 s{TOK}, s{TOK}, 1"); e(f"v_mov_b32 v4, s{TOK}"); e(f"v_mov_b32 v5, s{TOK+1}")
    e(lane0("buffer_store_dwordx2 v[4:5], v14, s[40:43], 0 offen sc1"))
    e("a_ntp:")
    e("s_lshr_b32 s58, s57, 1")
    e("s_and_b32 s60, s57, 1"); e("s_cmp_eq_u32 s60, 1"); e("s_cbranch_scc1 a_bchain")
    e("s_and_b32 s52, s56, 7")
    e("s_lshl_b32 s53, s58, 2"); e("s_lshr_b32 s60, s56, 3"); e("s_add_u32 s53, s53, s60")
    e("s_cmp_lt_u32 s3, 4"); e("s_cbranch_scc1 a_g1c")
    st = Stream(k)
    k.srd(24, WQKV, D_*3*D_*2)
    e("s_sub_u32 s3, s3, 4")
    e("v_lshrrev_b32 v7, 3, v2")
    e("s_lshl_b32 s60, s3, 6"); e("v_add_u32 v4, s60, v7"); e("v_lshlrev_b32 v4, 11, v4")
    e("v_lshrrev_b32 v5, 1, v7"); e("v_xor_b32 v5, v5, v2"); e("v_and_b32 v5, 7, v5")
    e("v_lshl_add_u32 v16, v5, 4, v4")
    e("v_xor_b32 v17, 64, v16"); e(f"v_add_u32 v17, {8*2048}, v17")
    for n in range(2, 8): e(f"v_add_u32 v{16+n}, {(n//2)*16*2048}, v{16+n%2}")
    lane_T_dma_off(e, 16, 24, 2, 6, 6144, 3)
    for n in (1, 2): e(f"v_add_u32 v{24+n}, {n*2048}, v24")
    e("s_lshl_b32 s9, s52, 19"); e("s_lshl_b32 s10, s53, 7")
    e("s_lshl_b32 s30, s3, 13"); e("s_lshl_b32 s31, s3, 10"); e(f"s_add_u32 s31, s31, {96*1024}")
    e(f"s_mul_i32 s14, s52, {opts.get('rotmul', 1)}")
    def issueP(n, half):
        if half == 0:
            st.e(f"s_add_u32 s11, s14, {n}\ns_and_b32 s11, s11, 15\ns_lshl_b32 s11, s11, 7\ns_add_u32 s28, s9, s11")
        for rb in range(4*half, 4*half+4):
            st.e(f"s_add_u32 m0, s30, {(n % 3)*32768 + rb*1024}\ns_nop 0\nbuffer_load_dwordx4 v{16+rb}, s[20:23], s28 offen lds")
        st.mark(f"P{n}")
    def issueT(t):
        st.e(f"s_lshl_b32 s11, s14, 1\ns_add_u32 s11, s11, {t}\ns_and_b32 s11, s11, 31\ns_mul_i32 s11, s11, {32*6144}\ns_add_u32 s29, s10, s11")
        for sg in range(3):
            st.e(f"s_add_u32 m0, s31, {(t % 5)*12288 + sg*4096}\ns_nop 0\nbuffer_load_dwordx4 v{24+sg}, s[24:27], s29 offen{opts.get('nt1', '')} lds")
        st.mark(f"T{t}")
    issueP(0, 0); issueP(0, 1); issueT(0); st.mark("S0"); issueT(1); issueP(1, 0); issueP(1, 1); issueT(2); issueT(3); issueP(2, 0); issueP(2, 1); issueT(4)
    k.srd(48, WPHI, 32*2048)
    e("s_lshl_b32 s60, s53, 12"); e("s_lshl_b32 s61, s3, 10"); e("s_add_u32 s60, s60, s61"); e(f"s_add_u32 m0, s61, {156*1024}"); e("s_nop 0")
    st.e("buffer_load_dwordx4 v3, s[48:51], s60 offen lds")
    k.srd(32, 12, F_*S_*2)
    e("s_lshl_b32 s61, s58, 5"); e("s_add_u32 s61, s61, s56"); e("s_lshl_b32 s61, s61, 2"); e("s_add_u32 s61, s61, s3"); e("s_lshl_b32 s61, s61, 10")
    t0, npc = opts.get("g1sw", (8, 0))
    sched = {}
    for n in range(npc): sched[t0 + n*(32-t0)//npc] = sched.get(t0 + n*(32-t0)//npc, 0) + 1
    st.e("@wait S0"); e("s_barrier")
    for t in range(32):
        if t + 1 < 32:
            st.e(f"@wait T{t+1}")
            if t % 2 == 1: st.e(f"@wait P{(t+1)//2}")
        e("s_barrier")
        if t + 5 < 32: issueT(t + 5)
        m = (t - 1) // 2 + 3
        if t >= 1 and m < 16: issueP(m, (t + 1) % 2)
        if t == 20: st.e("@vm tok buffer_load_dwordx2 v[12:13], v14, s[40:43], 0 offen sc1")
        for n in range(sched.get(t, 0)): st.e(f"buffer_load_dwordx4 v[240:243], v3, s[32:35], s61 offen\ns_add_u32 s61, s61, {512*1024}")
    e("s_lshr_b32 s54, s3, 1"); e("s_and_b32 s55, s3, 1"); e("s_lshl_b32 s59, s53, 1"); e("s_add_u32 s59, s59, s55")
    e("s_mul_i32 s60, s3, 12288"); e("v_add_u32 v8, s60, v3"); e(f"v_mov_b32 v9, {152*1024}")
    e("s_add_u32 s3, s3, 4"); e("s_mov_b32 s35, 1"); e("s_mov_b64 s[8:9], s[12:13]")
    e("s_waitcnt vmcnt(0)")
    e(f"v_readfirstlane_b32 s{TOK}, v12"); e(f"s_cmp_lg_u32 s{TOK}, 0"); e("s_cbranch_scc1 a_tkok")
    get_token(k, 14, 12)
    e("a_tkok:")
    e("ds_write_b64 v9, v[12:13]"); e("s_waitcnt lgkmcnt(0)")
    e("s_barrier")
    for n in range(4):
        for part in range(3): e(f"ds_read_b128 v[{64+24*n+4*part}:{64+24*n+4*part+3}], v8 offset:{(n*3+part)*1024}")
    e("s_waitcnt lgkmcnt(0)")
    e(f"v_readfirstlane_b32 s{TOK}, v12"); e(f"v_readfirstlane_b32 s{TOK+1}, v13")
    e("s_branch a_epi")
    e("a_g1c:")
    e("s_lshr_b32 s54, s3, 1"); e("s_and_b32 s55, s3, 1")
    e("s_lshl_b32 s59, s53, 1"); e("s_add_u32 s59, s59, s55")
    e("s_mov_b64 s[8:9], s[12:13]")
    acc = [[64 + (i*6+j)*4 for j in range(6)] for i in range(8)]
    if opts.get("cwarm", False):
        e("s_cmp_lg_u32 s3, 0"); e("s_cbranch_scc1 a_cw1");
        code_warm(k, "a_pc1"); e("s_waitcnt vmcnt(0)")
        e("a_cw1:")
    for r in range(64, 256, 2): e(f"v_mov_b64 v[{r}:{r+1}], 0")
    e("v_and_b32 v8, 15, v2"); e("v_lshrrev_b32 v9, 4, v2")
    e("v_lshrrev_b32 v10, 1, v8"); e("v_xor_b32 v10, v10, v9")
    e("s_lshl_b32 s60, s54, 7"); e("v_add_u32 v4, s60, v8"); e("v_lshlrev_b32 v4, 7, v4"); e("v_lshl_add_u32 v4, v10, 4, v4")
    lane_T_read_off(e, 16, 6, 2, 8, 9)
    e("s_lshl_b32 s60, s55, 6"); e("v_xor_b32 v6, s60, v6"); e(f"v_add_u32 v6, {96*1024}, v6"); e("v_xor_b32 v7, 32, v6")
    p_off = [(0, i*2048) for i in range(8)]
    t_desc = [(j % 2, (j//2)*4096) for j in range(6)]
    order = [(2*a+b, j, 2*a+b, j) for a in range(4) for j in range(6) for b in range(2)]
    pbufs = [16 + 4*i for i in range(4)]; tbufs = [32 + 4*j for j in range(8)]
    ringT = ["s_cmp_eq_u32 s36, 4", "s_cselect_b32 s37, s39, 12288", "s_cselect_b32 s36, -1, s36", "s_add_u32 s36, s36, 1"]
    ringP = ["s_cmp_eq_u32 s32, 2", "s_cselect_b32 s33, s34, 0x8000", "s_cselect_b32 s32, -1, s32", "s_add_u32 s32, s32, 1"]
    salu = lambda s: ringT + (ringP if s % 2 else [])
    valu = lambda s: ["v_add_u32 v6, s37, v6", "v_add_u32 v7, s37, v7", "v_xor_b32 v4, 64, v4"] + (["v_add_u32 v4, s33, v4"] if s % 2 else [])
    tail = ["s_sub_u32 s38, s38, 1", "s_cmp_lg_u32 s38, 0"]
    ahead, body, U = build_consumer(None, 16, 8, 6, p_off, t_desc, acc, pbufs, tbufs, [4], [6, 7], lambda i, j: j >= 4, order,
                                    opts.get("bar1", 38), 1, salu, valu, tail, minU=2, salu_at=0)
    e(f"s_mov_b32 s39, {(-4*12288) & 0xffffffff:#x}"); e(f"s_mov_b32 s34, {(-2*32768) & 0xffffffff:#x}"); e("s_mov_b32 s36, 0"); e("s_mov_b32 s32, 0")
    if stamps: e("s_memrealtime s[82:83]")
    e("s_barrier")
    if stamps: e("s_memtime s[94:95]"); e("s_memrealtime s[98:99]")
    for l in ahead: e(l)
    e("s_waitcnt lgkmcnt(0)")
    e(f"s_mov_b32 s38, {32//U}"); e(f".p2align {ALIGN[0]}"); e("a_g1loop:")
    for l in body: e(l)
    e("s_cbranch_scc1 a_g1loop")
    if stamps: e("s_memrealtime s[84:85]"); e("s_memtime s[96:97]"); e("s_waitcnt lgkmcnt(0)"); e("s_sub_u32 s93, s96, s94"); e("s_sub_u32 s98, s84, s98")
    e("s_waitcnt lgkmcnt(0)")
    Bk = lambda sb: 64 + 24*sb
    def cvt_units(sbs):
        for sb in sbs:
            B = Bk(sb)
            for n in range(8): e(f"v_cvt_pk_bf16_f32 v{B+n}, v{B+2*n}, v{B+2*n+1}")
        for p in sorted(set(sb//2 for sb in sbs)):
            for db in range(2):
                d = Bk(2*p+db) + 8
                for h in range(2):
                    a = Bk(2*p+h) + 16 + 4*db
                    e(f"v_cvt_pk_bf16_f32 v{d+2*h}, v{a}, v{a+1}"); e(f"v_cvt_pk_bf16_f32 v{d+2*h+1}, v{a+2}, v{a+3}")
    e("s_mul_i32 s60, s3, 12288"); e("v_add_u32 v8, s60, v3"); e(f"v_mov_b32 v9, {152*1024}")
    e("s_nop 4")
    cvt_units([4, 5, 6, 7])
    for n in range(4):
        for part in range(3): e(f"ds_write_b128 v8, v[{Bk(4+n)+4*part}:{Bk(4+n)+4*part+3}] offset:{(n*3+part)*1024}")
    cvt_units([0, 1, 2, 3])
    e("s_mov_b32 s35, 0")
    e("s_nop 0")
    e("s_waitcnt lgkmcnt(0)"); e("s_barrier")
    e("ds_read_b64 v[12:13], v9"); e("s_waitcnt lgkmcnt(0)")
    e(f"v_readfirstlane_b32 s{TOK}, v12"); e(f"v_readfirstlane_b32 s{TOK+1}, v13")
    if opts.get("estamp"): e("s_memrealtime s[82:83]")
    e("a_epi:")
    ne1 = opts.get("e1sw", 14)
    if ne1:
        k.srd(24, 8, F_*S_*2)
        e("s_lshl_b32 s60, s58, 5"); e("s_add_u32 s60, s60, s56"); e("s_lshl_b32 s60, s60, 3"); e("s_add_u32 s60, s60, s3"); e("s_lshl_b32 s60, s60, 10")
        if opts.get("e1lds"):
            e("s_lshl_b32 s61, s3, 10"); e(f"s_add_u32 m0, s61, {144*1024}"); e("s_nop 0")
            for n in range(ne1): e(f"buffer_load_dwordx4 v3, s[24:27], s60 offen lds"); e(f"s_add_u32 s60, s60, 0x100000")
        elif opts.get("e1skew"):
            e("s_cmp_lt_u32 s3, 4"); e("s_cbranch_scc1 a_sk"); e("s_sleep 64"); e("a_sk:")
        else:
            for n in range(ne1): e(f"buffer_load_dwordx4 v[4:7], v3, s[24:27], s60 offen"); e(f"s_add_u32 s60, s60, 0x100000")
    holes = [Bk(sb) + 12 + 4*n for sb in range(4) for n in range(3)]
    KVq = holes[0:9]; WPq = holes[9:11]
    PK, ST, EP, EF, ZB = 16, 48, 160, 224, 240
    e("v_lshrrev_b32 v8, 2, v2"); e("v_lshlrev_b32 v8, 6, v8"); e("v_and_b32 v9, 3, v2"); e("v_lshl_add_u32 v8, v9, 3, v8")
    e("s_lshl_b32 s60, s55, 11"); e(f"s_add_u32 s60, s60, {156*1024}"); e("v_add_u32 v8, s60, v8")
    for fb in range(2):
        for t in range(2): e(f"ds_read_b64_tr_b16 v[{WPq[fb]+2*t}:{WPq[fb]+2*t+1}], v8 offset:{t*1024 + fb*32}")
    e(f"s_mov_b32 s62, {f32(LOG2E)}"); e(f"s_mov_b32 s63, {f32(LOG2E)}")
    e("v_and_b32 v8, 15, v2"); e("v_lshrrev_b32 v9, 4, v2"); e("s_mul_i32 s34, s3, 10240"); e(f"s_add_u32 s34, s34, {48*1024}")
    e("v_mul_u32_u24 v10, 160, v8"); e("v_lshl_add_u32 v10, v9, 3, v10"); e("v_add_u32 v10, s34, v10")
    e("v_lshrrev_b32 v8, 2, v8"); e("v_lshl_add_u32 v8, v9, 2, v8"); e("v_mul_u32_u24 v11, 160, v8")
    def pmfma(off):
        for u in range(4):
            for fb in range(2):
                d = PK + (u*2+fb)*4; s = Bk(u) + off
                e(f"v_mfma_f32_16x16x32_bf16 v[{d}:{d+3}], v[{WPq[fb]}:{WPq[fb]+3}], v[{s}:{s+3}], 0")
    e("s_waitcnt lgkmcnt(0)")
    pmfma(4)
    e("v_and_b32 v8, 3, v2"); e("v_lshl_add_u32 v11, v8, 3, v11"); e("v_add_u32 v11, s34, v11"); e("v_mov_b32 v9, 0x3f803f80")
    for fbk in range(4):
        e(f"v_cmp_eq_u32 vcc, {fbk}, v8"); e("s_nop 1"); e(f"v_cndmask_b32 v{ZB+4*fbk}, 0, v9, vcc")
        for r in range(1, 4): e(f"v_mov_b32 v{ZB+4*fbk+r}, v{ZB+4*fbk}")
    units = [dict(x=[PK+u*8, PK+u*8+4], ep=EP+u*16, em=EP+8+u*16, st=ST+u*4, out=EP+u*16) for u in range(4)]
    softmax_units(e, units, 62, True)
    for u in range(4):
        o = units[u]["out"]
        for fbk in range(4): e(f"ds_write_b64 v10, v[{o+2*fbk}:{o+2*fbk+1}] offset:{u*16*160 + fbk*32}")
    pmfma(0)
    e("s_waitcnt lgkmcnt(0)")
    EFs = [EF, EP + 8]
    efq = [[EF + 4*n for n in range(4)], [EP+8, EP+12, EP+24, EP+28]]
    for p in range(2):
        for fbk in range(4):
            for t in range(2): e(f"ds_read_b64_tr_b16 v[{efq[p][fbk]+2*t}:{efq[p][fbk]+2*t+1}], v11 offset:{(2*p+t)*16*160 + fbk*32}")
    for p in range(2):
        for fbk in range(4):
            e(f"s_waitcnt lgkmcnt({14-8*p-2*fbk})")
            for db in range(3):
                d = KVq[fbk*2+db] if db < 2 else KVq[8]
                b = Bk(2*p+db) + 8 if db < 2 else ZB + 4*fbk
                cc = "0" if (p == 0 and (db < 2 or fbk == 0)) else f"v[{d}:{d+3}]"
                e(f"v_mfma_f32_16x16x32_bf16 v[{d}:{d+3}], v[{efq[p][fbk]}:{efq[p][fbk]+3}], v[{b}:{b+3}], {cc}")
    e("v_add_u32 v10, s34, v3")
    e("s_lshr_b32 s33, s3, 1"); e("s_lshr_b32 s61, s33, 1"); e("s_lshl_b32 s61, s61, 2"); e("s_and_b32 s60, s33, 1"); e("s_add_u32 s61, s61, s60"); e("s_lshl_b32 s61, s61, 10")
    e("s_mul_i32 s60, s55, 10240"); e("s_add_u32 s60, s60, s61"); e(f"s_add_u32 s60, s60, {48*1024}"); e("v_add_u32 v11, s60, v3"); e("v_add_u32 v15, 0xa000, v11")
    e("s_lshl_b32 s60, s59, 2"); e("s_add_u32 s60, s60, s33"); e("s_lshl_b32 s60, s60, 3")
    e(f"s_lshl_b32 s38, s60, 12"); e(f"s_add_u32 s38, s38, {WS_KVP:#x}"); e("s_lshl_b32 s37, s52, 12"); e("s_add_u32 s37, s37, s38")
    e("s_lshl_b32 s39, s60, 7"); e(f"s_add_u32 s39, s39, {WS_FLAG1:#x}"); e("s_lshl_b32 s36, s52, 7"); e("s_add_u32 s36, s36, s39")
    for qd in range(NQ): e(f"ds_write_b128 v10, v[{KVq[qd]}:{KVq[qd]+3}] offset:{qd*1024}")
    e("s_waitcnt lgkmcnt(0)"); e("s_barrier")
    if opts.get("estamp"): e("s_memrealtime s[94:95]"); e("s_waitcnt lgkmcnt(0)")
    if opts.get("dump"):
        e("s_lshl_b32 s60, s2, 3"); e("s_add_u32 s60, s60, s3"); e("s_lshl_b32 s60, s60, 15"); e("s_add_u32 s60, s60, 0x3000000")
        quads = [EP+u*16+h*4 for u in range(4) for h in range(2)] + efq[0] + efq[1] + KVq + [ST+4*u for u in range(4)] + [Bk(u)+4 for u in range(3)]
        for n, q in enumerate(quads):
            e(f"buffer_store_dwordx4 v[{q}:{q+3}], v3, s[16:19], s60 offen"); e("s_add_u32 s60, s60, 1024")
        e("s_nop 1")
    C0 = 224
    for hq in range(2):
        for src in range(4): e(f"ds_read_b128 v[{C0+(hq*4+src)*4}:{C0+(hq*4+src)*4+3}], v{11 if src < 2 else 15} offset:{(src%2)*20480 + hq*2048}")
    e("s_cmp_lg_u32 s33, 0"); e("s_cbranch_scc1 a_noz")
    for src in range(4): e(f"ds_read_b128 v[{holes[src]}:{holes[src]+3}], v{11 if src < 2 else 15} offset:{(src%2)*20480 + 8192}")
    e("s_waitcnt lgkmcnt(0)")
    for src in range(1, 4):
        for q in (0, 2): e(f"v_pk_add_f32 v[{holes[0]+q}:{holes[0]+q+1}], v[{holes[0]+q}:{holes[0]+q+1}], v[{holes[src]+q}:{holes[src]+q+1}]")
    e(f"buffer_store_dwordx4 v[{holes[0]}:{holes[0]+3}], v3, s[16:19], s37 offen offset:2048 sc1")
    e("a_noz:")
    e("s_waitcnt lgkmcnt(0)")
    for hq in range(2):
        a = C0 + hq*16
        for src in range(1, 4):
            for q in (0, 2): e(f"v_pk_add_f32 v[{a+q}:{a+q+1}], v[{a+q}:{a+q+1}], v[{a+4*src+q}:{a+4*src+q+1}]")
        e(f"buffer_store_dwordx4 v[{a}:{a+3}], v3, s[16:19], s37 offen offset:{hq*1024} sc1")
    e("s_lshl_b32 s32, s52, 2"); e("s_lshl_b32 s60, s54, 1"); e("s_add_u32 s32, s32, s60"); e("s_add_u32 s32, s32, s35")
    e("s_lshl_b32 s60, s32, 9"); e(f"s_add_u32 s60, s60, {WS_FLAGL - 8*128:#x}")
    e("v_lshlrev_b32 v10, 7, v2"); e("v_mov_b32 v11, s60"); e("v_mov_b32 v15, s39"); e("v_cmp_gt_u32 vcc, 8, v2"); e("s_nop 1"); e("v_cndmask_b32 v11, v11, v15, vcc"); e("v_add_u32 v10, v10, v11")
    units = [dict(x=[PK+u*8, PK+u*8+4], ep=EP+u*16, em=EP+8+u*16, st=ST+u*4, out=Bk(u)+4) for u in range(4)]
    w = Work(); softmax_units(w.e, units, 62, False)
    cut = len(w.q) * opts.get("e3cut", 30) // 100
    for l in w.q[:cut]: e(l)
    e("s_waitcnt vmcnt(0)")
    e(lane0("buffer_store_dwordx2 v[12:13], v14, s[16:19], s36 offen sc1"))
    if opts.get("estamp"): e("s_memrealtime s[96:97]"); e("s_waitcnt lgkmcnt(0)")
    for l in w.q[cut:]: e(l)
    if stamps: e("s_memrealtime s[88:89]")
    KOq = holes[0:4]; ZOq = holes[4:6]; GG = holes[6]
    poll_tok(k, 10, 16, "0", 0xfff, 8, sleep=1)
    G0 = 160
    for n in range(8):
        e(f"s_add_u32 s36, s38, {n*4096}")
        for hq in range(2):
            e(f"buffer_load_dwordx4 v[{G0+n*8+hq*4}:{G0+n*8+hq*4+3}], v3, s[16:19], s36 offen offset:{hq*1024} sc1")
    e("v_and_b32 v8, 15, v2"); e("v_lshlrev_b32 v8, 2, v8")
    e("s_lshl_b32 s36, s32, 8"); e(f"s_add_u32 s36, s36, {WS_G:#x}")
    for u in range(4): e(f"buffer_load_dword v{GG+u}, v8, s[16:19], s36 offen offset:{u*64} sc1")
    e("s_lshl_b32 s60, s55, 13"); e(f"s_add_u32 s60, s60, {128*1024}"); e("v_add_u32 v10, s60, v3"); e("s_lshl_b32 s60, s33, 10"); e("v_add_u32 v11, s60, v10")
    e("s_cmp_lg_u32 s33, 0"); e("s_cbranch_scc1 a_noz2")
    for n in range(8):
        e(f"s_add_u32 s36, s38, {n*4096 + 2048}"); e(f"buffer_load_dwordx4 v[{224+n*4}:{227+n*4}], v3, s[16:19], s36 offen sc1")
    e("s_waitcnt vmcnt(0)")
    for st_ in (16, 8, 4):
        for r in range(0, st_, 2): e(f"v_pk_add_f32 v[{224+r}:{225+r}], v[{224+r}:{225+r}], v[{224+st_+r}:{225+st_+r}]")
    e("v_and_b32 v8, 3, v2"); e("v_mov_b32 v9, 0x3f803f80")
    for fbk in range(4):
        for r in range(4): e(f"v_mov_b32_dpp v{240+fbk*4+r}, v{224+r} quad_perm:[{fbk},{fbk},{fbk},{fbk}] row_mask:0xf bank_mask:0xf")
    e("v_cmp_eq_u32 vcc, 1, v8"); e("s_nop 1"); e("v_cndmask_b32 v9, 0, v9, vcc"); e("v_cmp_eq_u32 vcc, 0, v8")
    for n in range(8): e(f"v_cvt_pk_bf16_f32 v{224+n}, v{240+2*n}, v{241+2*n}")
    for n in range(8): e(f"v_cndmask_b32 v{224+n}, v9, v{224+n}, vcc")
    e("ds_write_b128 v10, v[224:227] offset:4096"); e("ds_write_b128 v10, v[228:231] offset:5120")
    e("a_noz2:")
    e("s_waitcnt vmcnt(0)")
    for st_ in (32, 16, 8):
        for r in range(0, st_, 2): e(f"v_pk_add_f32 v[{G0+r}:{G0+r+1}], v[{G0+r}:{G0+r+1}], v[{G0+st_+r}:{G0+st_+r+1}]")
    for n in range(4): e(f"v_cvt_pk_bf16_f32 v{G0+n}, v{G0+2*n}, v{G0+2*n+1}")
    e(f"ds_write_b128 v11, v[{G0}:{G0+3}]")
    e("s_waitcnt lgkmcnt(0)"); e("s_barrier")
    if stamps: e("s_memrealtime s[90:91]")
    for n, d in enumerate(KOq + ZOq): e(f"ds_read_b128 v[{d}:{d+3}], v10 offset:{n*1024}")
    e("s_mov_b32 s38, s32")
    e("v_lshrrev_b32 v8, 5, v2"); e("v_lshlrev_b32 v9, 15, v8"); e("v_and_b32 v8, 31, v2"); e("v_lshl_add_u32 v9, v8, 4, v9")
    e("s_lshl_b32 s36, s59, 17"); e("s_lshl_b32 s37, s38, 10"); e("s_add_u32 s36, s36, s37")
    e(f"s_add_u32 s36, s36, {WS_OT:#x}"); e("s_add_u32 s37, s36, 0x10000")
    e(f"v_mov_b32 v8, {f32(1e-6)}")
    e("s_waitcnt lgkmcnt(0)")
    nq = [160 + 4*n for n in range(24)]
    for u in range(4):
        for sg in range(2):
            b = Bk(u) + 4 + sg*4
            for db in (2, 0, 1):
                d = nq[u*6 + sg*3 + db]; a = KOq[sg*2+db] if db < 2 else ZOq[sg]
                e(f"v_mfma_f32_16x16x32_bf16 v[{d}:{d+3}], v[{a}:{a+3}], v[{b}:{b+3}], 0")
    e("s_nop 1")
    for u in range(4):
        xp, xm = nq[u*6+2], nq[u*6+5]
        e(f"v_rcp_f32 v{xp+2}, v{xp+1}"); e(f"v_rcp_f32 v{xm+2}, v{xm+1}")
    for u in range(4):
        xp, xm = nq[u*6+2], nq[u*6+5]
        e(f"v_fma_f32 v{xp}, v{xp}, v{xp+2}, v8"); e(f"v_fma_f32 v{xp}, v{xm}, v{xm+2}, v{xp}")
    for u in range(4): xp = nq[u*6+2]; e(f"v_rcp_f32 v{xp}, v{xp}")
    for u in range(4): xp = nq[u*6+2]; e(f"v_mul_f32 v{xp}, v{xp}, v{GG+u}")
    for u in range(4):
        xp, xm = nq[u*6+2], nq[u*6+5]
        e(f"v_mul_f32 v{xp+2}, v{xp+2}, v{xp}"); e(f"v_mul_f32 v{xm+2}, v{xm+2}, v{xp}")
    for u in range(4):
        xp, xm = nq[u*6+2], nq[u*6+5]
        for db in range(2):
            np_, nm = nq[u*6+db], nq[u*6+3+db]
            for q in (0, 2):
                e(f"v_pk_mul_f32 v[{np_+q}:{np_+q+1}], v[{np_+q}:{np_+q+1}], v[{xp+2}:{xp+3}] op_sel_hi:[1,0]")
                e(f"v_pk_fma_f32 v[{np_+q}:{np_+q+1}], v[{nm+q}:{nm+q+1}], v[{xm+2}:{xm+3}], v[{np_+q}:{np_+q+1}] op_sel_hi:[1,0,1]")
    for u in range(4):
        for db in range(2):
            np_ = nq[u*6+db]; o = 16 + ((u//2)*2+db)*4 + (u % 2)*2
            e(f"v_cvt_pk_bf16_f32 v{o}, v{np_}, v{np_+1}"); e(f"v_cvt_pk_bf16_f32 v{o+1}, v{np_+2}, v{np_+3}")
    e("s_nop 1")
    for n in range(4):
        o = 16 + n*4; e(f"v_permlane16_swap_b32 v{o}, v{o+2}"); e(f"v_permlane16_swap_b32 v{o+1}, v{o+3}")
    for n in range(4):
        o = 16 + n*4; pr, db = divmod(n, 2)
        e(f"buffer_store_dwordx4 v[{o}:{o+3}], v9, s[16:19], s{36+db} offen offset:{pr*512}{opts.get('ust', '')}")
    if stamps: stamp_store(e, (80, 84, 82, 94, 96, 88, 86, 86) if opts.get("estamp") else (80, 82, 84, 88, 90, 86, 93, 98), WS_STAMP, "a_end")
    e("s_lshl_b32 s39, s52, 4"); e("s_add_u32 s39, s39, s53"); e("s_lshl_b32 s39, s39, 7"); e(f"s_add_u32 s39, s39, {WS_FLAGO:#x}")
    e("s_waitcnt vmcnt(0)")
    if opts.get("oearly", False):
        e("s_barrier")
        e("s_cmp_lg_u32 s3, 0"); e("s_cbranch_scc1 b_entry")
        e(lane0("buffer_store_dwordx2 v[12:13], v14, s[16:19], s39 offen sc1"))
        e(f"s_mov_b32 s39, {WS_FLAGO + 0x4000:#x}")
    e("s_branch b_entry")
    e("a_bchain:")
    e("s_lshl_b32 s52, s58, 5"); e("s_add_u32 s52, s52, s56")
    e("s_and_b32 s54, s56, 3")
    e("s_mul_i32 s55, s58, 7"); e("s_lshr_b32 s60, s56, 2"); e("s_add_u32 s55, s55, s60")
    e("s_cmp_lt_u32 s3, 4"); e("s_cbranch_scc1 a_lnc")
    e("s_cmp_ge_u32 s56, 28"); e("s_cbranch_scc1 a_sp_hi")
    st = Stream(k)
    k.srd(24, W1, S_*F_*2)
    e("s_sub_u32 s3, s3, 4")
    lane_T_dma_off(e, 16, 24, 2, 6, F_*2, 3)
    e("v_add_u32 v25, 128, v24")
    e("s_lshl_b32 s60, s3, 14"); e(f"s_lshl_b32 s28, s54, 12"); e("s_add_u32 s28, s28, s60"); e(f"s_add_u32 s28, s28, {WS_HT:#x}")
    e("s_lshl_b32 s29, s55, 8")
    e("s_lshl_b32 s30, s3, 12"); e("s_lshl_b32 s31, s3, 10"); e(f"s_add_u32 s31, s31, {c2.PB}")
    R2 = dict(vP=[3], vT=[24, 25], sP=28, sT=29, srdP=16, srdT=24, sBase=30, sLds=32, sStage=34, sCnt=35, stepP=4*D_*16, stepT=32*F_*2)
    fl = (" sc1", opts.get("nt2", ""))
    e("s_mov_b32 s32, s30"); e("s_mov_b32 s33, s31")
    def tpro():
        for t in range(5): producer_issue(st.e, c2, R2, fl, "T", t*c2.SB)
    if opts.get("tpro", "pre") == "pre": tpro()
    def g2_touches():
        e("s_mul_i32 s60, s58, 28"); e("s_add_u32 s60, s60, s56"); e("s_lshl_b32 s60, s60, 2"); e("s_add_u32 s60, s60, s3"); e("s_lshl_b32 s60, s60, 10")
        if opts.get("pf_wq", True):
            k.srd(48, WQKV, D_*3*D_*2)
            e("s_mov_b32 s61, s60")
            for n in range(14): st.e("buffer_load_dwordx4 v[240:243], v3, s[48:51], s61 offen"); e(f"s_add_u32 s61, s61, {448*1024}")
        e(f"s_add_u32 s61, s60, {160*7168}")
        for n in range(opts.get("pf_g2", 0)): st.e("buffer_load_dwordx4 v[240:243], v3, s[24:27], s61 offen"); e(f"s_add_u32 s61, s61, {448*1024}")
    if opts.get("cwarm", False):
        e("s_cmp_lg_u32 s3, 3"); e("s_cbranch_scc1 a_cw2")
        code_warm(k, "a_pc2")
        e("a_cw2:")
    if opts.get("tpos", "L1") == "pre": g2_touches()
    e("v_lshlrev_b32 v8, 7, v2"); e("v_add_u32 v9, 0x2000, v8")
    e("s_barrier")
    e(f"v_mov_b32 v4, {158*1024}"); e("ds_read_b64 v[10:11], v4"); e("s_waitcnt lgkmcnt(0)")
    e(f"v_readfirstlane_b32 s{TOK}, v10"); e(f"v_readfirstlane_b32 s{TOK+1}, v11")
    if opts.get("tpro", "pre") == "L1": tpro()
    if opts.get("tpos", "L1") == "L1": g2_touches()
    e("s_barrier")
    producer_issue(st.e, c2, R2, fl, "T", 5*c2.SB)
    e(f"s_mov_b32 s36, {WS_FLAGL:#x}")
    if opts.get("lnsub", True):
        poll_tok(k, 8, 16, "s36", 0xfff, 10, sleep=1)
    else:
        poll_tok(k, [8, 9], 16, "s36", None, 10, sleep=2)
    st = Stream(k)
    for t in range(6):
        producer_issue(st.e, c2, R2, fl, "P", t*c2.SB); st.mark(f"b{t}")
        if t == 1 and opts.get("lnsub", True):
            e("s_lshl_b32 s60, s3, 12"); e("s_add_u32 s36, s36, s60"); e("s_mov_b32 exec_hi, 0")
            st.e("@vm lf buffer_load_dwordx2 v[10:11], v8, s[16:19], s36 offen sc1"); e("s_mov_b32 exec_hi, -1")
    e("s_mov_b32 s34, 0")
    st.e("@wait b0"); e("s_barrier")
    if opts.get("lnsub", True):
        st.e("@wait lf")
        e("s_mov_b32 exec_hi, 0"); e(f"v_cmp_ne_u64 vcc, s[{TOK}:{TOK+1}], v[10:11]"); e("s_mov_b32 exec_hi, -1"); e("s_nop 3"); e("s_cbranch_vccz a_lfok")
        poll_tok(k, 8, 16, "s36", 0xffffffff, 10, sleep=1)
        e("a_lfok:")
    for t in range(5):
        st.e(f"@wait b{t+1}"); e("s_barrier")
        producer_issue(st.e, c2, R2, fl); ring_advance(e, c2, R2)
    e("s_mov_b32 s35, 53")
    e("a_l2:")
    e("s_waitcnt vmcnt(24)"); e("s_barrier")
    producer_issue(e, c2, R2, fl); ring_advance(e, c2, R2)
    e("s_sub_u32 s35, s35, 1"); e("s_cmp_lg_u32 s35, 0"); e("s_cbranch_scc1 a_l2")
    ntl = opts.get("swtail", 0)
    tat = opts.get("swat", 1)
    for r in range(6):
        if r == tat and ntl:
            k.srd(48, 12, F_*S_*2)
            e("s_mul_i32 s60, s58, 28"); e("s_add_u32 s60, s60, s56"); e("s_lshl_b32 s60, s60, 2"); e("s_add_u32 s60, s60, s3"); e("s_lshl_b32 s60, s60, 10"); e(f"s_add_u32 s60, s60, {(32-ntl)*448*1024}")
            for n in range(ntl): e("buffer_load_dwordx4 v[240:243], v3, s[48:51], s60 offen"); e(f"s_add_u32 s60, s60, {448*1024}")
        e(f"s_waitcnt vmcnt({max(4-r, 0)*6 + (ntl if r >= tat else 0)})"); e("s_barrier")
    e("s_branch b_entry")
    e("a_lnc:")
    st = Stream(k)
    e("s_lshl_b32 s37, s52, 15"); e("s_lshl_b32 s38, s3, 13"); e("s_add_u32 s37, s37, s38"); e("s_add_u32 s38, s37, 4096")
    for n in range(8): st.e(f"buffer_load_dwordx4 v[{48+4*n}:{51+4*n}], v3, s[20:23], s{37+n//4} offen offset:{(n%4)*1024}")
    k.srd(24, GW, D_*2)
    st.e("buffer_load_dwordx4 v[80:83], v3, s[24:27], 0 offen"); st.e("@vm lng buffer_load_dwordx4 v[84:87], v3, s[24:27], 0 offen offset:1024")
    k.srd(48, B1, F_*2)
    e("s_lshr_b32 s57, s3, 1"); e("s_and_b32 s58, s3, 1")
    e("v_lshrrev_b32 v7, 4, v2"); e("v_lshlrev_b32 v7, 3, v7")
    e("s_lshl_b32 s60, s55, 8"); e("s_lshl_b32 s61, s58, 6"); e("s_add_u32 s60, s60, s61")
    for j in range(4): st.e(f"buffer_load_dwordx2 v[{96+2*j}:{97+2*j}], v7, s[48:51], s60 offen offset:{(j//2)*128 + (j%2)*32}")
    st.e("buffer_load_dwordx2 v[12:13], v14, s[40:43], 0 offen sc1")
    LS = 120*1024
    e("s_mov_b32 s36, 0xffff0000")
    e(f"s_mul_i32 s37, s3, {4*HP}"); e(f"s_add_u32 s37, s37, {LS}"); e("v_add_u32 v22, s37, v3")
    e(f"v_bfe_u32 v23, v2, 2, 2"); e(f"v_mul_u32_u24 v23, {HP}, v23"); e("v_and_b32 v120, 3, v2"); e("v_lshl_add_u32 v23, v120, 3, v23")
    e(f"v_lshrrev_b32 v120, 4, v2"); e("v_lshl_add_u32 v23, v120, 5, v23")
    e(f"s_mul_i32 s37, s57, {8*HP}"); e("s_lshl_b32 s38, s58, 10"); e("s_add_u32 s37, s37, s38"); e(f"s_add_u32 s37, s37, {LS}"); e("v_add_u32 v23, s37, v23")
    st.e("@wait lng")
    for i in range(8):
        e(f"v_lshlrev_b32 v{104+2*i}, 16, v{80+i}"); e(f"v_and_b32 v{105+2*i}, s36, v{80+i}")
    if opts.get("ln1", True):
        ln_rows1(e, 48, 0, 52); ln_rows1(e, 64, 1, 52)
    else:
        w = Work()
        gen4.ln_rows(w, 48, 0); gen4.ln_rows(w, 64, 1)
        for it in w.q: e(it.replace("s_lshl_b32 s37, s2, 5", "s_lshl_b32 s37, s52, 6"))
    e("s_waitcnt vmcnt(2)")
    e(f"v_readfirstlane_b32 s{TOK}, v12"); e(f"v_readfirstlane_b32 s{TOK+1}, v13"); e(f"s_cmp_lg_u32 s{TOK}, 0"); e("s_cbranch_scc1 a_tk5")
    get_token(k, 14, 12)
    e("a_tk5:")
    e(f"v_mov_b32 v4, {158*1024}"); e("ds_write_b64 v4, v[12:13]")
    e("s_waitcnt lgkmcnt(0)"); e("s_barrier")
    for j in range(8):
        e(f"ds_read_b64_tr_b16 v[{144+4*j}:{145+4*j}], v23 offset:{128*j}")
        e(f"ds_read_b64_tr_b16 v[{146+4*j}:{147+4*j}], v23 offset:{128*j+4*HP}")
    e(f"s_lshl_b32 s37, s52, 15"); e("s_lshl_b32 s38, s3, 13"); e("s_add_u32 s37, s37, s38"); e(f"s_add_u32 s37, s37, {WS_HT:#x}"); e("s_add_u32 s38, s37, 4096")
    for j in range(8):
        e(f"s_waitcnt lgkmcnt({14-2*j})"); e(f"buffer_store_dwordx4 v[{144+4*j}:{147+4*j}], v3, s[16:19], s{37+j//4} offen offset:{(j%4)*1024} sc1")
    acc2 = [[128 + (i*4+j)*4 for j in range(4)] for i in range(8)]
    e("s_nop 1")
    for j in range(4):
        for hh in range(2):
            src = 96 + j*2 + hh; d0 = acc2[0][j] + hh*2
            e(f"v_lshlrev_b32 v{d0}, 16, v{src}"); e(f"v_and_b32 v{d0+1}, s36, v{src}")
        for i in range(1, 8):
            for q in (0, 2): e(f"v_mov_b64 v[{acc2[i][j]+q}:{acc2[i][j]+q+1}], v[{acc2[0][j]+q}:{acc2[0][j]+q+1}]")
    e("v_lshrrev_b32 v8, 4, v2"); e("v_lshlrev_b32 v4, 12, v8"); e("v_and_b32 v9, 15, v2"); e("v_lshl_add_u32 v4, v9, 4, v4")
    e("s_lshl_b32 s60, s57, 11"); e("v_add_u32 v4, s60, v4")
    lane_T_read_off(e, 16, 6, 2, 8, 9)
    e("s_lshl_b32 s60, s58, 6"); e("v_xor_b32 v6, s60, v6"); e("v_xor_b32 v7, 32, v6")
    e("s_waitcnt vmcnt(0)"); e("s_barrier")
    e("s_cmp_lg_u32 s3, 0"); e("s_cbranch_scc1 a_lnf")
    e("s_lshl_b32 s37, s52, 7"); e(f"s_add_u32 s37, s37, {WS_FLAGL:#x}")
    e(lane0("buffer_store_dwordx2 v[12:13], v14, s[16:19], s37 offen sc1"))
    e("a_lnf:")
    if stamps: e("s_memrealtime s[82:83]")
    e("s_cmp_ge_u32 s56, 28"); e("s_cbranch_scc1 a_spare")
    p_off = [(0, i*256) for i in range(8)]
    t_desc = [(j % 2, c2.PB + (j//2)*4096) for j in range(4)]
    order = [(i, j, i, j) for i in range(8) for j in range(4)]
    pbufs = [16 + 4*i for i in range(16)]; tbufs = [80 + 4*j for j in range(8)]
    consumer_loop(k, c2, [(2, ["s_memrealtime s[84:85]", "s_memtime s[94:95]", "s_waitcnt lgkmcnt(0)"] if stamps else []), (62, [])], 16, 8, 4, p_off, t_desc, acc2, pbufs, tbufs, [4], [6, 7],
                  False, order, 36, 37, 38, rpg=1, bar_pos=2)
    if stamps: e("s_memrealtime s[88:89]"); e("s_memtime s[96:97]"); e("s_waitcnt lgkmcnt(0)"); e("s_sub_u32 s93, s96, s94"); e("s_sub_u32 s98, s88, s84")
    e("s_waitcnt lgkmcnt(0)")
    e("v_lshrrev_b32 v8, 5, v2"); e("v_lshlrev_b32 v7, 14, v8"); e("v_and_b32 v8, 31, v2"); e("v_lshl_add_u32 v7, v8, 4, v7")
    e("s_lshl_b32 s14, s55, 18"); e("s_lshl_b32 s15, s58, 16"); e("s_add_u32 s14, s14, s15")
    e("s_lshl_b32 s15, s54, 12"); e("s_add_u32 s14, s14, s15"); e("s_lshl_b32 s15, s57, 11"); e("s_add_u32 s14, s14, s15")
    e(f"s_add_u32 s14, s14, {WS_UT:#x}")
    e(f"s_mov_b32 s42, {f32(GELU_K3)}"); e(f"s_mov_b32 s43, {f32(GELU_K3)}")
    e(f"v_mov_b32 v10, {f32(GELU_K1)}"); e(f"v_mov_b32 v11, {f32(GELU_K1)}")
    blk = 0
    half = opts.get("half", False)
    e("s_mul_i32 s47, s54, 28"); e("s_add_u32 s47, s47, s55"); e("s_lshl_b32 s47, s47, 2"); e("s_add_u32 s47, s47, s3"); e("s_lshl_b32 s47, s47, 7"); e(f"s_add_u32 s47, s47, {WS_FLAGA:#x}")
    for j in range(4):
        e(f"s_add_u32 s15, s14, {((j//2)*8 + (j%2)*2)*16384}")
        for i in (0, 4):
            t = 16 + (blk % 2) * 24; o = t + 16; blk += 1
            gelu_block(e, [acc2[i+b][j] + q for b in range(4) for q in (0, 2)], t, o)
            e("s_nop 1")
            for pr in range(2):
                e(f"v_permlane16_swap_b32 v{o+4*pr}, v{o+4*pr+2}"); e(f"v_permlane16_swap_b32 v{o+4*pr+1}, v{o+4*pr+3}")
            for pr in range(2):
                e(f"buffer_store_dwordx4 v[{o+4*pr}:{o+4*pr+3}], v7, s[16:19], s15 offen offset:{(i+2*pr)*256}{opts.get('ust', '')}")
            if half and blk == opts.get("hblk", 5):
                e(f"s_waitcnt vmcnt({2*(blk-4)})"); e(lane0("buffer_store_dwordx2 v[12:13], v14, s[16:19], s47 offen sc1"))
    if stamps: stamp_store(e, (80, 82, 84, 88, 88, 86, 93, 98), WS_STAMP, "a_end")
    e("s_mul_i32 s39, s54, 28"); e("s_add_u32 s39, s39, s55"); e("s_lshl_b32 s39, s39, 7"); e(f"s_add_u32 s39, s39, {WS_FLAGU:#x}")
    e("s_waitcnt vmcnt(0)")
    e("s_branch b_entry")
    e("a_sp_hi:")
    e("s_barrier")
    e(f"v_mov_b32 v4, {158*1024}"); e("ds_read_b64 v[12:13], v4"); e("s_waitcnt lgkmcnt(0)")
    e(f"v_readfirstlane_b32 s{TOK}, v12"); e(f"v_readfirstlane_b32 s{TOK+1}, v13")
    e("s_barrier")
    e("a_spare:")
    if opts.get("pf_sp", True):
        k.srd(24, W1, S_*F_*2)
        r0 = opts.get("sp_row0", 192)
        e("s_lshr_b32 s60, s52, 5"); e("s_lshl_b32 s60, s60, 2"); e("s_add_u32 s60, s60, s56"); e("s_sub_u32 s60, s60, 28"); e("s_lshl_b32 s60, s60, 3"); e("s_add_u32 s60, s60, s3")
        e("s_lshl_b32 s59, s60, 10")
        q0 = opts.get("sp_wq0")
        if q0 is not None:
            k.srd(48, WQKV, D_*3*D_*2)
            e(f"s_add_u32 s61, s59, {q0*6144}")
            for n in range(((1024-q0)*6 + 127)//128): e("buffer_load_dwordx4 v[240:243], v3, s[48:51], s61 offen"); e(f"s_add_u32 s61, s61, {128*1024}")
        e(f"s_add_u32 s61, s59, {r0*7168}")
        e(f"s_mov_b32 s62, {max(1, ((2048-r0)*7 + 127)//128)}"); e("a_spl:")
        e("buffer_load_dwordx4 v[240:243], v3, s[24:27], s61 offen"); e(f"s_add_u32 s61, s61, {128*1024}"); e(f"s_waitcnt vmcnt({opts.get('sp_depth', 16)})")
        e("s_sub_u32 s62, s62, 1"); e("s_cmp_lg_u32 s62, 0"); e("s_cbranch_scc1 a_spl")
        k.srd(48, WO, D_*D_*2)
        e("s_mov_b32 s61, s59")
        for n in range(16): e("buffer_load_dwordx4 v[240:243], v3, s[48:51], s61 offen"); e(f"s_add_u32 s61, s61, {128*1024}")
        if opts.get("sp_w2", 0):
            e("s_load_dwordx2 s[12:13], s[0:1], 56"); e("s_waitcnt lgkmcnt(0)")
            k.srd(24, 12, S_*F_*2)
            e(f"s_mov_b32 s62, {opts.get('sp_w2', 0)}"); e("a_spl2:")
            e("buffer_load_dwordx4 v[240:243], v3, s[24:27], s59 offen"); e(f"s_add_u32 s59, s59, {128*1024}"); e(f"s_waitcnt vmcnt({opts.get('sp_depth', 16)})")
            e("s_sub_u32 s62, s62, 1"); e("s_cmp_lg_u32 s62, 0"); e("s_cbranch_scc1 a_spl2")
    e(f"s_mov_b32 s39, {WS_FLAGO + 0x4000:#x}")
    if stamps: stamp_store(e, (80, 82, 82, 82, 82, 86, 86, 86), WS_STAMP, "")
    gen_b2(opts, k)
    e("a_end:")
    return k

def gen_b2(opts, k):
    NS = opts.get("NSb", 5)
    c = GemmCfg(128, 2, NS, 64)
    e = k.e
    stamps = opts.get("stamps", False)
    NT = ""
    W2, B2 = 72, 74
    e("b_entry:")
    e("s_load_dwordx4 s[72:75], s[0:1], 56")
    if stamps: e("s_memrealtime s[80:81]")
    e("s_mov_b32 s2, s46"); e("s_mov_b32 s92, s2")
    e("v_lshrrev_b32 v1, 6, v0"); e("v_and_b32 v2, 63, v0"); e("v_lshlrev_b32 v3, 4, v2")
    e("s_lshr_b32 s56, s2, 3")
    e("v_readfirstlane_b32 s3, v1")
    e("s_and_b32 s52, s2, 1")
    if opts.get("bmap", "8d4s") == "8d4s":
        e("s_lshr_b32 s54, s56, 2")
        e("s_bfe_u32 s55, s2, 0x20001"); e("s_lshl_b32 s55, s55, 2"); e("s_and_b32 s60, s56, 3"); e("s_add_u32 s55, s55, s60")
    else:
        e("s_bfe_u32 s54, s2, 0x10001"); e("s_lshl_b32 s54, s54, 2"); e("s_and_b32 s60, s56, 3"); e("s_add_u32 s54, s54, s60")
        e("s_bfe_u32 s55, s2, 0x10002"); e("s_lshl_b32 s55, s55, 3"); e("s_lshr_b32 s60, s56, 2"); e("s_add_u32 s55, s55, s60")
    e("s_waitcnt lgkmcnt(0)")
    e("s_cmp_lt_u32 s3, 4"); e("s_cbranch_scc1 b_cons")
    assert NS == 5
    n2 = opts.get("n2", 30); n1 = 56 - n2
    k.srd(24, W2, F_*S_*2)
    k.srd(20, WO, D_*D_*2)
    e("s_sub_u32 s3, s3, 4")
    e("s_lshl_b32 s30, s3, 11")
    e("s_lshl_b32 s31, s3, 10"); e(f"s_add_u32 s31, s31, {c.PB}")
    e("s_mov_b32 s32, s30"); e("s_mov_b32 s33, s31")
    fl = None
    fl3 = (" sc1", opts.get("nt3", "")); fl4 = (" sc1", "")
    R3 = dict(vP=[3, 9], vT=list(range(24, 28)), sP=28, sT=29, srdP=16, srdT=24, sBase=30, sLds=32, sStage=34, sCnt=35, stepP=8*D_*16, stepT=64*S_*2)
    R4 = dict(R3, vP=[3, 13], vT=list(range(32, 36)), sP=36, sT=37, srdT=20, stepP=8*S_*16, stepT=64*D_*2)
    def setup3():
        lane_T_dma_off(e, 16, 24, 2, 6, S_*2, 3)
        for n in range(1, 4):
            sg, kg = divmod(n, 2); e(f"v_add_u32 v{24+n}, {sg*128 + kg*32*S_*2}, v24")
        e("s_cmp_eq_u32 s52, 0"); e(f"s_cselect_b32 s62, {n2}, 0")
        e(f"s_mul_i32 s29, s62, {64*4096}"); e("s_lshl_b32 s60, s55, 8"); e("s_add_u32 s29, s29, s60")
        e(f"v_add_u32 v9, {4*D_*16}, v3")
        e("s_lshl_b32 s28, s62, 3"); e("s_add_u32 s28, s28, s3"); e("s_lshl_b32 s28, s28, 14"); e("s_lshl_b32 s60, s54, 11"); e("s_add_u32 s28, s28, s60")
        e(f"s_add_u32 s28, s28, {WS_UT:#x}")
    def start(R, lab_cnt):
        for t in range(NS): producer_issue(e, c, R, fl3, "P", t*c.SB)
        e("s_mov_b32 s34, 0")
        e("s_waitcnt vmcnt(16)"); e("s_barrier")
        for wn_ in (12, 16, 20):
            e(f"s_waitcnt vmcnt({wn_})"); e("s_barrier")
            producer_issue(e, c, R, fl4); ring_advance(e, c, R)
    def loop(R, lab):
        e(f"{lab}:")
        e("s_waitcnt vmcnt(24)"); e("s_barrier")
        producer_issue(e, c, R, fl4); ring_advance(e, c, R)
        e("s_sub_u32 s35, s35, 1"); e("s_cmp_lg_u32 s35, 0"); e(f"s_cbranch_scc1 {lab}")
    e("s_cmp_eq_u32 s52, 0"); e("s_cbranch_scc1 b_ld0")
    setup3()
    R3h = dict(R3, stepP=2*R3["stepP"], stepT=2*R3["stepT"]) if opts.get("half", False) else R3
    for t in range(NS): producer_issue(e, c, R3h, fl3, "T", t*c.SB)
    nsw = opts.get("sw2", 0)
    def sweep2():
        if nsw:
            e("s_lshr_b32 s60, s2, 1"); e("s_lshl_b32 s60, s60, 2"); e("s_add_u32 s60, s60, s3"); e("s_lshl_b32 s60, s60, 10"); e(f"s_add_u32 s60, s60, {(28-nsw)*512*1024}")
            for n in range(nsw): e("buffer_load_dwordx4 v[240:243], v3, s[24:27], s60 offen"); e(f"s_add_u32 s60, s60, {512*1024}")
    if not opts.get("half", False):
        if opts.get("sw2pos", "pre") == "pre": sweep2()
        e(f"v_min_u32 v8, {n2//2-1}, v2"); e("v_lshlrev_b32 v8, 7, v8")
        e("s_lshr_b32 s38, s54, 1"); e("s_mul_i32 s38, s38, 28"); e("s_lshl_b32 s38, s38, 7"); e(f"s_add_u32 s38, s38, {WS_FLAGU:#x}")
        e("s_barrier")
        if opts.get("sw2pos", "pre") == "post": sweep2()
        poll_tok(k, 8, 16, "s38", 0xffffff, 10, sleep=1)
        start(R3, 0)
        e(f"s_mov_b32 s35, {n2 - 8}")
        e("s_branch b_l3")
    else:
        if opts.get("sw2pos", "pre") == "pre": sweep2()
        e(f"v_min_u32 v8, {n2-1}, v2"); e("v_lshrrev_b32 v10, 1, v8"); e("v_and_b32 v8, 1, v8"); e("v_lshl_add_u32 v8, v10, 2, v8"); e("v_lshlrev_b32 v8, 7, v8")
        e("s_lshr_b32 s38, s54, 1"); e("s_mul_i32 s38, s38, 112"); e("s_and_b32 s60, s54, 1"); e("s_lshl_b32 s60, s60, 1"); e("s_add_u32 s38, s38, s60"); e("s_lshl_b32 s38, s38, 7"); e(f"s_add_u32 s38, s38, {WS_FLAGA:#x}")
        poll_tok(k, 8, 16, "s38", None, 10, sleep=1)
        for t in range(NS): producer_issue(e, c, R3h, fl3, "P", t*c.SB)
        e("s_mov_b32 s34, 0")
        e("s_barrier")
        e("s_waitcnt vmcnt(16)"); e("s_barrier")
        for wn_ in (12, 16, 20):
            e(f"s_waitcnt vmcnt({wn_})"); e("s_barrier")
            producer_issue(e, c, R3h, fl3); ring_advance(e, c, R3h)
        e(f"s_mov_b32 s35, {n2//2 - 8}")
        loop(R3h, "b_lh1")
        e(f"s_sub_u32 s28, s28, {(n2-1)*8*D_*16}"); e(f"s_sub_u32 s29, s29, {(n2-1)*64*S_*2}")
        e(f"s_mov_b32 s35, {n2//2}")
        loop(R3h, "b_lh2")
        e("s_branch b_lt")
    e("b_ld0:")
    lane_T_dma_off(e, 16, 32, 2, 6, D_*2, 3)
    for n in range(1, 4):
        sg, kg = divmod(n, 2); e(f"v_add_u32 v{32+n}, {sg*128 + kg*32*D_*2}, v32")
    e("s_lshl_b32 s37, s54, 8")
    for t in range(NS): producer_issue(e, c, R4, fl4, "T", t*c.SB)
    e(f"v_add_u32 v13, {4*S_*16}, v3")
    e("s_lshl_b32 s36, s3, 15"); e("s_lshl_b32 s60, s55, 11"); e("s_add_u32 s36, s36, s60"); e(f"s_add_u32 s36, s36, {WS_OT:#x}")
    setup3()
    e("v_lshlrev_b32 v8, 7, v2"); e("s_lshr_b32 s38, s55, 1"); e("s_lshl_b32 s38, s38, 11"); e(f"s_add_u32 s38, s38, {WS_FLAGO:#x}")
    ls = opts.get("lstamp")
    if ls: e("s_memrealtime s[82:83]")
    e("s_barrier")
    if ls: e("s_memrealtime s[84:85]")
    poll_tok(k, 8, 16, "s38", 0xffff, 10, sleep=1)
    if ls: e("s_memrealtime s[88:89]")
    start(R4, 0)
    if ls:
        e("s_memrealtime s[90:91]"); e("s_waitcnt lgkmcnt(0)")
        for n, sr in enumerate((80, 82, 84, 88)): e(f"v_mov_b32 v{40+n}, s{sr}")
        e("v_mov_b32 v44, s90")
        e("s_lshl_b32 s60, s92, 5"); e(f"s_add_u32 s60, s60, {WS_STAMP + 0x20000:#x}"); e("v_mov_b32 v46, s60")
        e("s_cmp_lg_u32 s3, 0"); e("s_cbranch_scc1 b_lsx"); e("s_mov_b64 exec, 1")
        e(f"global_store_dwordx4 v46, v[40:43], s[{WS}:{WS+1}]"); e(f"global_store_dword v46, v44, s[{WS}:{WS+1}] offset:16"); e("s_mov_b64 exec, -1"); e("b_lsx:")
    e("s_mov_b32 s35, 8")
    loop(R4, "b_l4")
    e(f"s_mov_b32 s35, {n1}")
    loop(R3, "b_l3")
    e("b_lt:")
    for wn_ in (24, 16, 8, 0, 0):
        e(f"s_waitcnt vmcnt({wn_})"); e("s_barrier")
    e("s_endpgm")
    e("b_cons:")
    e(f"v_mov_b32 v92, s{TOK}"); e(f"v_mov_b32 v93, s{TOK+1}"); e("v_mov_b32 v94, 0")
    e("s_barrier")
    e("s_cmp_lg_u32 s3, 0"); e("s_cbranch_scc1 b_nf")
    e(lane0("buffer_store_dwordx2 v[92:93], v94, s[16:19], s39 offen sc1"))
    e("b_nf:")
    e("s_lshr_b32 s57, s3, 1"); e("s_and_b32 s58, s3, 1")
    k.srd(24, B2, S_*2)
    k.srd(20, OUT, S_*D_*2)
    e("v_and_b32 v15, 15, v2"); e("v_lshrrev_b32 v14, 4, v2")
    e("s_lshl_b32 s60, s55, 7"); e("s_lshl_b32 s61, s58, 5"); e("s_add_u32 s60, s60, s61"); e("v_add_u32 v8, s60, v15")
    e("v_lshlrev_b32 v9, 2, v8"); e("v_lshlrev_b32 v8, 1, v8")
    e(f"s_mov_b32 s47, {WS_G:#x}")
    GO, BO = 80, 88
    gld = [f"buffer_load_dword v{GO+2*j}, v9, s[16:19], s47 offen offset:{((j//2)*64 + (j%2)*16)*4} sc1" for j in range(4)]
    if opts.get("tlb", False):
        e("s_lshl_b32 s48, s2, 15"); e(f"s_add_u32 s48, s48, {gen2.WS_PART + 4096 + 1024:#x}")
        e("s_lshl_b32 s49, s55, 18")
        gld += ["s_mov_b64 exec, 1", "buffer_load_dword v91, v94, s[16:19], s48 offen", "buffer_load_dword v91, v94, s[20:23], s49 offen", "s_mov_b64 exec, -1"]
    stb = ["s_memrealtime s[98:99]", "s_memtime s[94:95]", "s_waitcnt lgkmcnt(0)"] if stamps else []
    gfin = ["s_waitcnt vmcnt(0)"] + [f"v_sub_f32 v{GO+2*j}, 1.0, v{GO+2*j}" for j in range(4)]
    for j in range(4):
        e(f"buffer_load_ushort v{BO+j}, v8, s[24:27], 0 offen offset:{((j//2)*64 + (j%2)*16)*2}")
    acc = [[96 + (i*4+j)*4 for j in range(4)] for i in range(4)]
    e("v_lshlrev_b32 v4, 11, v14"); e("v_lshl_add_u32 v4, v15, 4, v4")
    e("v_mov_b32 v5, v4")
    e("s_lshl_b32 s60, s57, 10"); e("v_add_u32 v4, s60, v4")
    lane_T_read_off(e, 16, 10, 2, 12, 13)
    e("s_lshl_b32 s60, s58, 6"); e("v_xor_b32 v6, s60, v10"); e("v_xor_b32 v7, 32, v6")
    e("s_waitcnt vmcnt(0)")
    e("s_cmp_eq_u32 s52, 1"); e("s_cselect_b32 s60, -65536, 0")
    for j in range(4):
        e(f"v_lshlrev_b32 v{BO+j}, 16, v{BO+j}"); e(f"v_and_b32 v{BO+j}, s60, v{BO+j}")
        for i in range(4):
            for q in range(4): e(f"v_mov_b32 v{acc[i][j]+q}, v{BO+j}")
    p_off = [(0, kk*8192 + i*256) for kk in range(2) for i in range(4)]
    t_desc = [(j % 2, c.PB + (j//2)*8192 + kk*4096) for kk in range(2) for j in range(4)]
    order = [(kk*4+i, kk*4+j, i, j) for kk in range(2) for i in range(4) for j in range(4)]
    pbufs = [16 + 4*i for i in range(8)]; tbufs = [48 + 4*j for j in range(8)]
    if stamps: e("s_memrealtime s[82:83]")
    e("s_cmp_eq_u32 s52, 0"); e("s_cbranch_scc1 b_cons0")
    if opts.get("half", False):
        e(f"v_min_u32 v95, {n2//2-1}, v2"); e("v_lshlrev_b32 v95, 7, v95")
        e("s_lshr_b32 s46, s54, 1"); e("s_mul_i32 s46, s46, 28"); e("s_lshl_b32 s46, s46, 7"); e(f"s_add_u32 s46, s46, {WS_FLAGU:#x}")
        ck1 = Kern("tmp", 0, 0, 0); ck1.name = "bh"
        ck1.e("s_waitcnt vmcnt(0)"); ck1.e(f"v_cmp_ne_u64 vcc, s[{TOK}:{TOK+1}], v[224:225]"); ck1.e("s_nop 4"); ck1.e("s_cbranch_vccz b_hok")
        poll_tok(ck1, 95, 16, "s46", None, 224, sleep=1)
        ck1.e("b_hok:")
        nchk = n2//2 - 5
        segs1 = [(2, gld + stb), (nchk - 4, ["buffer_load_dwordx2 v[224:225], v95, s[16:19], s46 offen sc1"]), (2, ck1.lines), (n2 - nchk, gfin)]
    else:
        segs1 = [(2, gld + stb), (n2-2, gfin)]
    consumer_loop(k, c, segs1, 16, 8, 8, p_off, t_desc, acc, pbufs, tbufs, [4], [6, 7], True, order, 36, 37, 38, rpg=1, bar_pos=18)
    e("s_waitcnt lgkmcnt(0)"); e("s_nop 3")
    for j in range(4):
        for i in range(4):
            for q in (0, 2):
                a = acc[i][j] + q
                e(f"v_pk_mul_f32 v[{a}:{a+1}], v[{a}:{a+1}], v[{GO+2*j}:{GO+2*j+1}] op_sel_hi:[1,0]")
    e("s_branch b_exch")
    e("b_cons0:")
    e(f"v_min_u32 v95, {n1//2-1}, v2"); e("v_lshlrev_b32 v95, 7, v95")
    e("s_lshr_b32 s46, s54, 1"); e("s_mul_i32 s46, s46, 28"); e(f"s_add_u32 s46, s46, {n2//2}"); e("s_lshl_b32 s46, s46, 7"); e(f"s_add_u32 s46, s46, {WS_FLAGU:#x}")
    e("s_lshl_b32 s60, s58, 9"); e("v_add_u32 v5, s60, v5")
    e("s_lshl_b32 s60, s57, 13"); e("v_add_u32 v10, s60, v10")
    for q in range(1, 4): e(f"v_xor_b32 v{10+q}, {32*q}, v10")
    chk = Kern("tmp", 0, 0, 0); chk.name = "bo"
    chk.e("s_waitcnt vmcnt(0)"); chk.e(f"v_cmp_ne_u64 vcc, s[{TOK}:{TOK+1}], v[224:225]"); chk.e("s_nop 4"); chk.e("s_cbranch_vccz b_ook")
    poll_tok(chk, 95, 16, "s46", None, 224, sleep=1)
    chk.e("b_ook:")
    p_off4 = [(0, kk*8192 + (j//2)*1024 + (j%2)*256) for kk in range(2) for j in range(4)]
    t_desc4 = [(i, c.PB + kk*4096) for kk in range(2) for i in range(4)]
    order4 = [(kk*4+j, kk*4+i, i, j) for kk in range(2) for j in range(4) for i in range(4)]
    g4s = opts.get("g4s")
    tA = ["s_memrealtime s[82:83]", "s_waitcnt lgkmcnt(0)"] if g4s else []
    tB = ["s_memrealtime s[80:81]", "s_waitcnt lgkmcnt(0)"] if g4s else []
    tC = ["s_memrealtime s[90:91]", "s_waitcnt lgkmcnt(0)"] if g4s else []
    consumer_loop(k, c, ([(1, tA)] if g4s else []) + [(8 if g4s else 9, ["buffer_load_dwordx2 v[224:225], v95, s[16:19], s46 offen sc1"]), (2, tB + chk.lines + tC + gld), (5, [])], 16, 8, 8, p_off4, t_desc4, acc, pbufs, tbufs,
                  [5], [10, 11, 12, 13], False, order4, 36, 37, 38, rpg=1, bar_pos=18)
    if stamps: e("s_memrealtime s[88:89]")
    slot = 16 % NS
    for v in (4, 6, 7): e(f"v_add_u32 v{v}, {slot*c.SB}, v{v}")
    e("s_waitcnt lgkmcnt(0)"); e("s_nop 4")
    for r in range(0, 64, 2):
        e(f"v_mov_b64 v[{160+r}:{161+r}], v[{96+r}:{97+r}]"); e(f"v_mov_b64 v[{96+r}:{97+r}], 0")
    for l in stb: e(l)
    consumer_loop(k, c, [(n1, gfin)], 16, 8, 8, p_off, t_desc, acc, pbufs, tbufs, [4], [6, 7], True, order, 36, 37, 38, rpg=1, bar_pos=18, slot0=slot)
    e("s_waitcnt lgkmcnt(0)"); e("s_nop 3")
    for j in range(4):
        for i in range(4):
            for q in (0, 2):
                a = acc[i][j] + q
                e(f"v_pk_fma_f32 v[{a}:{a+1}], v[{a}:{a+1}], v[{GO+2*j}:{GO+2*j+1}], v[{a+64}:{a+65}] op_sel_hi:[1,0,1]")
    e("b_exch:")
    if stamps: e("s_memrealtime s[84:85]"); e("s_memtime s[96:97]"); e("s_waitcnt lgkmcnt(0)"); e("s_sub_u32 s93, s96, s94"); e("s_sub_u32 s88, s98, 0"); e("s_sub_u32 s98, s84, s98")
    e("s_lshl_b32 s60, s2, 2"); e("s_add_u32 s60, s60, s3"); e("s_lshl_b32 s60, s60, 13"); e(f"s_add_u32 s60, s60, {gen2.WS_PART:#x}")
    e("s_add_u32 s61, s60, 4096")
    e("s_xor_b32 s62, s60, 0x8000"); e("s_add_u32 s63, s62, 4096")
    e("s_lshl_b32 s40, s2, 10"); e("s_lshl_b32 s41, s3, 7"); e("s_add_u32 s40, s40, s41"); e(f"s_add_u32 s40, s40, {WS_FLAG:#x}"); e("s_xor_b32 s41, s40, 0x400")
    e("v_mov_b32 v8, 0"); e("v_mov_b32 v9, 1")
    xb = opts.get("xbf16", False)
    def exch_old(hk, lab):
        snd = [acc[i][2*(1-hk)+jj] for jj in range(2) for i in range(4)]
        keep = [acc[i][2*hk+jj] for jj in range(2) for i in range(4)]
        if xb:
            for n, a in enumerate(snd):
                e(f"v_cvt_pk_bf16_f32 v{64+2*n}, v{a}, v{a+1}"); e(f"v_cvt_pk_bf16_f32 v{65+2*n}, v{a+2}, v{a+3}")
                if n % 2: e(f"buffer_store_dwordx4 v[{62+2*n}:{65+2*n}], v3, s[16:19], s60 offen offset:{(n//2)*1024} sc1")
        else:
            for n, a in enumerate(snd):
                e(f"buffer_store_dwordx4 v[{a}:{a+3}], v3, s[16:19], s{60 + n//4} offen offset:{(n%4)*1024} sc1")
        e("s_waitcnt vmcnt(0)")
        e(lane0("buffer_store_dwordx2 v[92:93], v94, s[16:19], s40 offen sc1"))
        poll_tok(k, 94, 16, "s41", None, 10, sleep=1, cnt=47)
        if xb:
            for n in range(4):
                e(f"buffer_load_dwordx4 v[{16+4*n}:{19+4*n}], v3, s[16:19], s62 offen offset:{n*1024} sc1")
            e("s_mov_b32 s63, 0xffff0000")
            for n, a in enumerate(keep):
                if n % 2 == 0: e(f"s_waitcnt vmcnt({3-n//2})")
                for h in range(2):
                    src = 16 + 2*n + h
                    e(f"v_lshlrev_b32 v32, 16, v{src}"); e(f"v_and_b32 v33, s63, v{src}")
                    e(f"v_pk_add_f32 v[{a+2*h}:{a+2*h+1}], v[{a+2*h}:{a+2*h+1}], v[32:33]")
        else:
            for n in range(8):
                e(f"buffer_load_dwordx4 v[{16+4*n}:{19+4*n}], v3, s[16:19], s{62 + n//4} offen offset:{(n%4)*1024} sc1")
            for n, a in enumerate(keep):
                e(f"s_waitcnt vmcnt({7-n})")
                for q in (0, 2): e(f"v_pk_add_f32 v[{a+q}:{a+q+1}], v[{a+q}:{a+q+1}], v[{16+4*n+q}:{17+4*n+q}]")
        for i in range(4):
            for jj in range(2):
                a = acc[i][2*hk+jj]; o = 48 + i*4 + jj*2
                e(f"v_cvt_pk_bf16_f32 v{o}, v{a}, v{a+1}"); e(f"v_cvt_pk_bf16_f32 v{o+1}, v{a+2}, v{a+3}")
    def exch(hk, lab):
        if not opts.get("gran", False): return exch_old(hk, lab)
        snd = [acc[i][2*(1-hk)+jj] for jj in range(2) for i in range(4)]
        keep = [acc[i][2*hk+jj] for jj in range(2) for i in range(4)]
        pos = lambda n: 16 + (n // 3)*4 + n % 3
        for g in range(6): e(f"v_mov_b32 v{16+g*4+3}, s{TOK}")
        for n in range(16):
            a = snd[n//2] + 2*(n % 2)
            e(f"v_cvt_pk_bf16_f32 v{pos(n)}, v{a}, v{a+1}")
            if n % 3 == 2 or n == 15:
                g = n // 3
                e(f"buffer_store_dwordx4 v[{16+g*4}:{19+g*4}], v3, s[16:19], s{60 + g//4} offen offset:{(g%4)*1024} sc1")
        e("s_mov_b32 s47, 0x40000")
        e(f"{lab}_p:")
        for g in range(6): e(f"buffer_load_dwordx4 v[{160+g*4}:{163+g*4}], v3, s[16:19], s{62 + g//4} offen offset:{(g%4)*1024} sc1")
        e("s_waitcnt vmcnt(0)")
        e(f"v_xor_b32 v40, s{TOK}, v163")
        for g in range(1, 6): e(f"v_xor_b32 v41, s{TOK}, v{163+g*4}"); e("v_or_b32 v40, v40, v41")
        e("v_cmp_ne_u32 vcc, 0, v40")
        e("s_sub_u32 s47, s47, 1"); e(f"s_cbranch_scc1 {lab}_g"); e("s_nop 2"); e(f"s_cbranch_vccnz {lab}_p")
        e(f"{lab}_g:")
        e("s_mov_b32 s63, 0xffff0000")
        for n in range(16):
            src = 160 + (n // 3)*4 + n % 3; a = keep[n//2] + 2*(n % 2); t = 40 + (n % 4)*2
            e(f"v_lshlrev_b32 v{t}, 16, v{src}"); e(f"v_and_b32 v{t+1}, s63, v{src}")
            e(f"v_pk_add_f32 v[{a}:{a+1}], v[{a}:{a+1}], v[{t}:{t+1}]")
        for i in range(4):
            for jj in range(2):
                a = acc[i][2*hk+jj]; o = 48 + i*4 + jj*2
                e(f"v_cvt_pk_bf16_f32 v{o}, v{a}, v{a+1}"); e(f"v_cvt_pk_bf16_f32 v{o+1}, v{a+2}, v{a+3}")
    e("s_cmp_eq_u32 s52, 0"); e("s_cbranch_scc0 b_ex1")
    exch(0, "b_ex0")
    e("s_branch b_fin")
    e("b_ex1:")
    exch(1, "b_ex1")
    e("b_fin:")
    e("v_and_b32 v8, 31, v2"); e("v_lshlrev_b32 v8, 11, v8"); e("v_lshrrev_b32 v9, 5, v2"); e("v_lshl_add_u32 v8, v9, 4, v8")
    e("s_lshl_b32 s60, s55, 2"); e("s_lshl_b32 s61, s52, 1"); e("s_add_u32 s60, s60, s61"); e("s_add_u32 s60, s60, s58"); e("s_lshl_b32 s60, s60, 16")
    e("s_lshl_b32 s61, s54, 8"); e("s_add_u32 s60, s60, s61"); e("s_lshl_b32 s61, s57, 7"); e("s_add_u32 s60, s60, s61")
    for i in range(4):
        o = 48 + i*4
        e(f"v_permlane16_swap_b32 v{o}, v{o+2}"); e(f"v_permlane16_swap_b32 v{o+1}, v{o+3}")
    if opts.get("olds", False):
        e("v_and_b32 v10, 31, v2"); e("v_mul_u32_u24 v10, 144, v10"); e("v_lshl_add_u32 v10, v9, 4, v10"); e("s_lshl_b32 s61, s3, 13"); e("v_add_u32 v10, s61, v10")
        e("v_lshrrev_b32 v11, 3, v2"); e("v_and_b32 v12, 7, v2"); e("v_lshlrev_b32 v8, 11, v11"); e("v_lshl_add_u32 v8, v12, 4, v8")
        e("v_mul_u32_u24 v11, 144, v11"); e("v_lshl_add_u32 v11, v12, 4, v11"); e("v_add_u32 v11, s61, v11")
        for i in range(4): e(f"ds_write_b128 v10, v[{48+i*4}:{51+i*4}] offset:{i*32}")
        e("s_waitcnt lgkmcnt(0)")
        for n in range(4): e(f"ds_read_b128 v[{16+n*4}:{19+n*4}], v11 offset:{n*8*144}")
        for n in range(4):
            e(f"s_waitcnt lgkmcnt({3-n})")
            e(f"buffer_store_dwordx4 v[{16+n*4}:{19+n*4}], v8, s[20:23], s60 offen{opts.get('ost', '')}"); e("s_add_u32 s60, s60, 0x4000")
    else:
        for i in range(4):
            o = 48 + i*4
            e(f"buffer_store_dwordx4 v[{o}:{o+3}], v8, s[20:23], s60 offen offset:{i*32}{opts.get('ost', '')}")
    if stamps: stamp_store(e, (80, 82, 84, 86, 88, 90, 93, 98), WS_STAMP + 0x10000, "")

if __name__ == "__main__":
    out = sys.argv[1]
    opts = eval("dict(" + (sys.argv[2] if len(sys.argv) > 2 else "") + ")")
    write_file(out, [gen_a(dict(dict(ust=' sc1', ost=' nt', xbf16=True, pf_wq=False, pf_g2=4, sp_row0=416, rotmul=2, n2=32, e1sw=4, sw2=0, swtail=24), **opts))], single=True)
```

```python
import sys
from gen import *
import gen2, gen3, gen4
from gen2 import spin_until, softmax_units, DBG, WS, X, WQKV, WPHI, WO, W1, B1, GW, OUT, WS_KVP, NQ
from gen3 import Stream, Work, WS_KVF
from gen4 import lane0, HP

WS_SIZE = 0x8000000
WS_FLAGL = 0x14E0000
WS_FLAG1 = 0x14C0000
WS_FLAG2 = 0x14D0000
WS_FLAGU = 0x14F0000
WS_FLAGO = 0x14F8000
WS_FLAGA = 0x1440000
TOK = 44

PSLEEP = [1]
def poll_tok(k, vaddr, srd, soff, nl_mask, vd, sleep=4, cnt=63):
    e = k.e
    L = k.lab("pt"); Lok = k.lab("ptok")
    if nl_mask is not None: e(f"s_mov_b32 exec_lo, {nl_mask:#x}"); e("s_mov_b32 exec_hi, 0")
    e(f"s_mov_b32 s{cnt}, 0x40000")
    e(f"{L}:")
    vs = vaddr if isinstance(vaddr, list) else [vaddr]
    for n, va in enumerate(vs):
        e(f"buffer_load_dwordx2 v[{vd+2*n}:{vd+1+2*n}], v{va}, s[{srd}:{srd+3}], {soff} offen sc1")
    e("s_waitcnt vmcnt(0)")
    e(f"v_cmp_ne_u64 vcc, s[{TOK}:{TOK+1}], v[{vd}:{vd+1}]")
    for n in range(1, len(vs)):
        e(f"v_cmp_ne_u64 s[60:61], s[{TOK}:{TOK+1}], v[{vd+2*n}:{vd+1+2*n}]"); e("s_or_b64 vcc, vcc, s[60:61]")
    e(f"s_sub_u32 s{cnt}, s{cnt}, 1"); e(f"s_cbranch_scc1 {Lok}")
    e(f"s_cbranch_vccz {Lok}")
    e(f"s_sleep {max(sleep, PSLEEP[0])}")
    e(f"s_branch {L}")
    e(f"{Lok}:")
    if nl_mask is not None: e("s_mov_b64 exec, -1")

def get_token(k, vz, vd):
    e = k.e
    L = k.lab("tk"); Lok = k.lab("tkok")
    e("s_mov_b32 s63, 0x40000")
    e(f"{L}:")
    e(f"buffer_load_dwordx2 v[{vd}:{vd+1}], v{vz}, s[40:43], 0 offen sc1"); e("s_waitcnt vmcnt(0)")
    e(f"v_readfirstlane_b32 s{TOK}, v{vd}"); e(f"v_readfirstlane_b32 s{TOK+1}, v{vd+1}")
    e("s_sub_u32 s63, s63, 1"); e(f"s_cbranch_scc1 {Lok}")
    e(f"s_cmp_eq_u32 s{TOK}, 0"); e(f"s_cbranch_scc1 {L}")
    e(f"{Lok}:")

_sl = [0]
DBGST = []
def stamp_store(e, regs, base, endlab, cond="v0"):
    _sl[0] += 1; endlab = f"stl{_sl[0]}"
    if DBGST:
        e("s_waitcnt vmcnt(0)")
        e("s_memrealtime s[86:87]"); e("s_waitcnt lgkmcnt(0)")
        slot = DBGST.pop(0)
        e("v_mov_b32 v7, 0")
        e(f"v_cmp_eq_u32 vcc, 0, {cond}"); e("s_and_saveexec_b64 s[60:61], vcc"); e(f"s_cbranch_execz {endlab}")
        for n, (sr, w) in enumerate(slot):
            e(f"s_sub_u32 s62, s{sr}, s{TOK}"); e(f"v_mov_b32 v{16+n}, s62"); e(f"global_atomic_smax v7, v{16+n}, s[4:5] offset:{128 + w*4}" if False else f"global_atomic_smax v7, v{16+n}, s[4:5] offset:{w*4}")
        e(f"{endlab}:"); e("s_mov_b64 exec, -1")
        return
    e("s_waitcnt vmcnt(0)")
    e("s_memrealtime s[86:87]"); e("s_waitcnt lgkmcnt(0)")
    for n, sr in enumerate(regs): e(f"v_mov_b32 v{16+n}, s{sr}")
    e("s_lshl_b32 s60, s92, 5"); e(f"s_add_u32 s60, s60, {base:#x}"); e("v_mov_b32 v7, s60")
    e(f"v_cmp_eq_u32 vcc, 0, {cond}"); e("s_and_saveexec_b64 s[60:61], vcc"); e(f"s_cbranch_execz {endlab}")
    e(f"global_store_dwordx4 v7, v[16:19], s[{WS}:{WS+1}]")
    e(f"global_store_dwordx4 v7, v[20:23], s[{WS}:{WS+1}] offset:16")
    e(f"{endlab}:"); e("s_mov_b64 exec, -1")

def ln_rows1(e, XR, m, sli):
    XF, GF, A = 144, 104, 120
    for r in range(2):
        for i in range(8):
            e(f"v_lshlrev_b32 v{XF+16*r+2*i}, 16, v{XR+8*r+i}"); e(f"v_and_b32 v{XF+1+16*r+2*i}, s36, v{XR+8*r+i}")
    e(f"v_readfirstlane_b32 s12, v{XF}"); e(f"v_readfirstlane_b32 s14, v{XF+16}")
    for r in range(2):
        b = XF + 16*r
        e(f"v_pk_mul_f32 v[{A+8+2*r}:{A+9+2*r}], v[{b}:{b+1}], v[{GF}:{GF+1}]")
    e("s_mov_b32 s13, s12"); e("s_mov_b32 s15, s14")
    for i in range(2, 16, 2):
        for r in range(2):
            b = XF + 16*r
            e(f"v_pk_fma_f32 v[{A+8+2*r}:{A+9+2*r}], v[{b+i}:{b+i+1}], v[{GF+i}:{GF+i+1}], v[{A+8+2*r}:{A+9+2*r}]")
    for i in range(0, 16, 2):
        for r in range(2):
            b = XF + 16*r
            e(f"v_pk_add_f32 v[{b+i}:{b+i+1}], v[{b+i}:{b+i+1}], s[{12+2*r}:{13+2*r}] neg_lo:[0,1] neg_hi:[0,1]")
    for r in range(2):
        b = XF + 16*r
        e(f"v_pk_add_f32 v[{A+2*r}:{A+1+2*r}], v[{b}:{b+1}], v[{b+2}:{b+3}]")
        e(f"v_pk_mul_f32 v[{A+4+2*r}:{A+5+2*r}], v[{b}:{b+1}], v[{b}:{b+1}]")
    for i in range(2, 16, 2):
        for r in range(2):
            b = XF + 16*r
            if i >= 4: e(f"v_pk_add_f32 v[{A+2*r}:{A+1+2*r}], v[{A+2*r}:{A+1+2*r}], v[{b+i}:{b+i+1}]")
            e(f"v_pk_fma_f32 v[{A+4+2*r}:{A+5+2*r}], v[{b+i}:{b+i+1}], v[{b+i}:{b+i+1}], v[{A+4+2*r}:{A+5+2*r}]")
    for n in range(6): e(f"v_add_f32 v{A+2*n}, v{A+2*n}, v{A+1+2*n}")
    dpp_reduce_sum_multi(e, [A+2*n for n in range(6)])
    e("s_nop 1")
    for n in range(6): e(f"v_readlane_b32 s{28+n}, v{A+2*n}, 63")
    e(f"s_mov_b32 s37, {f32(1.0/1024)}"); e(f"v_mov_b32 v{A+1}, {f32(1e-5)}")
    for r in range(2): e(f"v_mov_b32 v{A+2*r}, s{28+r}"); e(f"v_mov_b32 v{A+4+2*r}, s{30+r}")
    e(f"v_mov_b32 v{A+8}, s32"); e(f"v_mov_b32 v{A+9}, s33"); e("v_cmp_eq_u32 vcc, 1, v2")
    for r in range(2): e(f"v_mul_f32 v{A+2*r}, s37, v{A+2*r}"); e(f"v_fma_f32 v{A+4+2*r}, v{A+4+2*r}, s37, v{A+1}")
    e(f"v_cndmask_b32 v{A+8}, v{A+8}, v{A+9}, vcc")
    for r in range(2): e(f"v_fma_f32 v{A+4+2*r}, -v{A+2*r}, v{A+2*r}, v{A+4+2*r}")
    e(f"v_mul_f32 v{A+8}, {f32(-LOG2E)}, v{A+8}")
    for r in range(2): e(f"v_max_f32 v{A+4+2*r}, v{A+4+2*r}, v{A+1}")
    e(f"v_exp_f32 v{A+8}, v{A+8}")
    for r in range(2): e(f"v_rsq_f32 v{A+4+2*r}, v{A+4+2*r}")
    e(f"v_add_f32 v{A+8}, 1.0, v{A+8}")
    for r in range(2): e(f"v_mul_f32 v{A+2*r}, v{A+2*r}, v{A+4+2*r}")
    e(f"v_rcp_f32 v{A+8}, v{A+8}")
    for r in range(2):
        b = XF + 16*r
        for i in range(0, 16, 2):
            e(f"v_pk_fma_f32 v[{b+i}:{b+i+1}], v[{b+i}:{b+i+1}], v[{A+4+2*r}:{A+5+2*r}], v[{A+2*r}:{A+1+2*r}] op_sel_hi:[1,0,0] neg_lo:[0,0,1] neg_hi:[0,0,1]")
        for i in range(8): e(f"v_cvt_pk_bf16_f32 v{XR+8*r+i}, v{b+2*i}, v{b+2*i+1}")
        for hh in range(2): e(f"ds_write_b128 v22, v[{XR+8*r+4*hh}:{XR+8*r+4*hh+3}] offset:{(2*m+r)*HP + hh*1024}")
    e(f"v_lshlrev_b32 v{A+9}, 2, v2"); e(f"s_lshl_b32 s37, s{sli}, 6"); e("s_lshl_b32 s38, s3, 4"); e("s_add_u32 s37, s37, s38"); e(f"s_add_u32 s37, s37, {WS_G + 8*m:#x}")
    e("s_mov_b64 exec, 3"); e(f"buffer_store_dword v{A+8}, v{A+9}, s[16:19], s37 offen sc1"); e("s_mov_b64 exec, -1")

def code_warm(k, lab):
    e = k.e
    e("s_getpc_b64 s[10:11]"); e(f"{lab}:")
    e(f"s_sub_u32 s10, s10, {lab}-{k.name}"); e("s_subb_u32 s11, s11, 0")
    e("s_lshl_b32 s60, s56, 10"); e("v_add_u32 v15, s60, v3")
    e(f"s_mov_b32 s61, a_end-{k.name}-16"); e("v_min_u32 v15, s61, v15")
    e("global_load_dwordx4 v[236:239], v15, s[10:11]")
    e("v_add_u32 v15, 0x8000, v15"); e("v_min_u32 v15, s61, v15")
    e("global_load_dwordx4 v[236:239], v15, s[10:11]")

def tlb_touch(e, vtmp, vd, pages):
    e(f"v_mov_b32 v{vtmp}, {pages[0]:#x}")
    for n, p in enumerate(pages[1:], 1):
        e(f"s_mov_b32 s60, {p:#x}"); e(f"v_writelane_b32 v{vtmp}, s60, {n}")
    return [f"s_mov_b64 exec, {(1 << len(pages)) - 1:#x}", f"buffer_load_dword v{vd}, v{vtmp}, s[16:19], 0 offen", "s_mov_b64 exec, -1"]

def gen_a(opts):
    ALIGN[0] = opts.get("align", 3); PSLEEP[0] = opts.get("psleep", 1)
    if opts.get("dbgst"):
        DBGST.extend([[(84, 2), (90, 3), (86, 4)], [(82, 5), (84, 6), (88, 7), (86, 8)], [(84, 9), (86, 10)], [(82, 11), (84, 12), (86, 13)]])
    c2 = GemmCfg(256, 2, 6, 32)
    k = Kern("gated_mix__linear_kernel_hedgehog__mixer_token_mlp__prompt_kernel", 256, 512, 160*1024, vgpr=256, sgpr=100)
    e = k.e
    stamps = opts.get("stamps", False)
    pf = opts.get("pf", True)
    e("s_cmp_ge_u32 s2, 256"); e("s_cbranch_scc1 a_end")
    e("s_load_dwordx8 s[64:71], s[0:1], 0")
    e("s_load_dwordx4 s[72:75], s[0:1], 40")
    e("s_load_dwordx4 s[76:79], s[0:1], 72")
    e("s_load_dwordx4 s[4:7], s[0:1], 88")
    e("s_load_dwordx2 s[12:13], s[0:1], 56")
    e(f"s_memrealtime s[{TOK}:{TOK+1}]")
    if opts.get("mixed", False):
        e("s_lshr_b32 s52, s2, 7"); e("s_bfe_u32 s53, s2, 0x40003"); e("s_and_b32 s54, s2, 1"); e("s_and_b32 s55, s2, 6"); e("s_or_b32 s55, s55, s52")
        e("s_lshr_b32 s56, s53, 2"); e("s_lshl_b32 s56, s56, 3"); e("s_lshl_b32 s57, s54, 2"); e("s_or_b32 s56, s56, s57"); e("s_and_b32 s57, s53, 3"); e("s_or_b32 s56, s56, s57")
        e("s_lshl_b32 s46, s56, 3"); e("s_or_b32 s46, s46, s55")
        e("s_lshr_b32 s56, s53, 1"); e("s_lshl_b32 s56, s56, 2"); e("s_lshl_b32 s57, s54, 1"); e("s_or_b32 s56, s56, s57"); e("s_and_b32 s57, s53, 1"); e("s_or_b32 s56, s56, s57")
        e("s_lshl_b32 s56, s56, 3"); e("s_or_b32 s56, s56, s55")
        e("s_cmp_eq_u32 s52, 0"); e("s_cselect_b32 s2, s46, s56")
    else:
        e("s_mov_b32 s46, s2")
    e("s_mov_b32 s92, s2")
    e("v_lshrrev_b32 v1, 6, v0"); e("v_and_b32 v2, 63, v0"); e("v_lshlrev_b32 v3, 4, v2")
    e("s_lshr_b32 s56, s2, 3"); e("s_and_b32 s57, s2, 7")
    e("v_readfirstlane_b32 s3, v1")
    e("v_mov_b32 v14, 0")
    if opts.get("prioc") or opts.get("priol"):
        e("s_nop 2"); e("s_cmp_lt_u32 s3, 4"); e("s_cbranch_scc1 a_pc"); e(f"s_setprio {opts.get('priol', 0)}"); e("s_branch a_pd"); e("a_pc:"); e(f"s_setprio {opts.get('prioc', 0)}"); e("a_pd:")
    e("s_waitcnt lgkmcnt(0)")
    if stamps: e(f"s_mov_b32 s80, s{TOK}")
    k.srd(16, WS, WS_SIZE)
    k.srd(40, DBG, 256)
    k.srd(20, X, S_*D_*2)
    e("s_lshl_b32 s60, s2, 3"); e("s_add_u32 s60, s60, s3"); e("s_cmp_lg_u32 s60, 7"); e("s_cbranch_scc1 a_ntp")
    e(f"s_or_b32 s{TOK}, s{TOK}, 1"); e(f"v_mov_b32 v4, s{TOK}"); e(f"v_mov_b32 v5, s{TOK+1}")
    e(lane0("buffer_store_dwordx2 v[4:5], v14, s[40:43], 0 offen sc1"))
    e("a_ntp:")
    e("s_lshr_b32 s58, s57, 1")
    e("s_and_b32 s60, s57, 1"); e("s_cmp_eq_u32 s60, 1"); e("s_cbranch_scc1 a_bchain")
    e("s_and_b32 s52, s56, 7")
    e("s_lshl_b32 s53, s58, 2"); e("s_lshr_b32 s60, s56, 3"); e("s_add_u32 s53, s53, s60")
    e("s_cmp_lt_u32 s3, 4"); e("s_cbranch_scc1 a_g1c")
    st = Stream(k)
    k.srd(24, WQKV, D_*3*D_*2)
    e("s_sub_u32 s3, s3, 4")
    e("v_lshrrev_b32 v7, 3, v2")
    e("s_lshl_b32 s60, s3, 6"); e("v_add_u32 v4, s60, v7"); e("v_lshlrev_b32 v4, 11, v4")
    e("v_lshrrev_b32 v5, 1, v7"); e("v_xor_b32 v5, v5, v2"); e("v_and_b32 v5, 7, v5")
    e("v_lshl_add_u32 v16, v5, 4, v4")
    e("v_xor_b32 v17, 64, v16"); e(f"v_add_u32 v17, {8*2048}, v17")
    for n in range(2, 8): e(f"v_add_u32 v{16+n}, {(n//2)*16*2048}, v{16+n%2}")
    lane_T_dma_off(e, 16, 24, 2, 6, 6144, 3)
    for n in (1, 2): e(f"v_add_u32 v{24+n}, {n*2048}, v24")
    e("s_lshl_b32 s9, s52, 19"); e("s_lshl_b32 s10, s53, 7")
    e("s_lshl_b32 s30, s3, 13"); e("s_lshl_b32 s31, s3, 10"); e(f"s_add_u32 s31, s31, {96*1024}")
    e(f"s_mul_i32 s14, s52, {opts.get('rotmul', 1)}")
    def issueP(n, half):
        if half == 0:
            st.e(f"s_add_u32 s11, s14, {n}\ns_and_b32 s11, s11, 15\ns_lshl_b32 s11, s11, 7\ns_add_u32 s28, s9, s11")
        for rb in range(4*half, 4*half+4):
            st.e(f"s_add_u32 m0, s30, {(n % 3)*32768 + rb*1024}\ns_nop 0\nbuffer_load_dwordx4 v{16+rb}, s[20:23], s28 offen lds")
        st.mark(f"P{n}")
    def issueT(t):
        st.e(f"s_lshl_b32 s11, s14, 1\ns_add_u32 s11, s11, {t}\ns_and_b32 s11, s11, 31\ns_mul_i32 s11, s11, {32*6144}\ns_add_u32 s29, s10, s11")
        for sg in range(3):
            st.e(f"s_add_u32 m0, s31, {(t % 5)*12288 + sg*4096}\ns_nop 0\nbuffer_load_dwordx4 v{24+sg}, s[24:27], s29 offen{opts.get('nt1', '')} lds")
        st.mark(f"T{t}")
    issueP(0, 0); issueP(0, 1); issueT(0); st.mark("S0"); issueT(1); issueP(1, 0); issueP(1, 1); issueT(2); issueT(3); issueP(2, 0); issueP(2, 1); issueT(4)
    k.srd(48, WPHI, 32*2048)
    e("s_lshl_b32 s60, s53, 12"); e("s_lshl_b32 s61, s3, 10"); e("s_add_u32 s60, s60, s61"); e(f"s_add_u32 m0, s61, {156*1024}"); e("s_nop 0")
    st.e("buffer_load_dwordx4 v3, s[48:51], s60 offen lds")
    k.srd(32, 12, F_*S_*2)
    e("s_lshl_b32 s61, s58, 5"); e("s_add_u32 s61, s61, s56"); e("s_lshl_b32 s61, s61, 2"); e("s_add_u32 s61, s61, s3"); e("s_lshl_b32 s61, s61, 10")
    t0, npc = opts.get("g1sw", (8, 0))
    sched = {}
    for n in range(npc): sched[t0 + n*(32-t0)//npc] = sched.get(t0 + n*(32-t0)//npc, 0) + 1
    st.e("@wait S0"); e("s_barrier")
    for t in range(32):
        if t + 1 < 32:
            st.e(f"@wait T{t+1}")
            if t % 2 == 1: st.e(f"@wait P{(t+1)//2}")
        e("s_barrier")
        if t + 5 < 32: issueT(t + 5)
        m = (t - 1) // 2 + 3
        if t >= 1 and m < 16: issueP(m, (t + 1) % 2)
        if t == 20: st.e("@vm tok buffer_load_dwordx2 v[12:13], v14, s[40:43], 0 offen sc1")
        for n in range(sched.get(t, 0)): st.e(f"buffer_load_dwordx4 v[240:243], v3, s[32:35], s61 offen\ns_add_u32 s61, s61, {512*1024}")
    e("s_lshr_b32 s54, s3, 1"); e("s_and_b32 s55, s3, 1"); e("s_lshl_b32 s59, s53, 1"); e("s_add_u32 s59, s59, s55")
    e("s_mul_i32 s60, s3, 12288"); e("v_add_u32 v8, s60, v3"); e(f"v_mov_b32 v9, {152*1024}")
    e("s_add_u32 s3, s3, 4"); e("s_mov_b32 s35, 1"); e("s_mov_b64 s[8:9], s[12:13]")
    e("s_waitcnt vmcnt(0)")
    e(f"v_readfirstlane_b32 s{TOK}, v12"); e(f"s_cmp_lg_u32 s{TOK}, 0"); e("s_cbranch_scc1 a_tkok")
    get_token(k, 14, 12)
    e("a_tkok:")
    e("ds_write_b64 v9, v[12:13]"); e("s_waitcnt lgkmcnt(0)")
    e("s_barrier")
    for n in range(4):
        for part in range(3): e(f"ds_read_b128 v[{64+24*n+4*part}:{64+24*n+4*part+3}], v8 offset:{(n*3+part)*1024}")
    e("s_waitcnt lgkmcnt(0)")
    e(f"v_readfirstlane_b32 s{TOK}, v12"); e(f"v_readfirstlane_b32 s{TOK+1}, v13")
    e("s_branch a_epi")
    e("a_g1c:")
    e("s_lshr_b32 s54, s3, 1"); e("s_and_b32 s55, s3, 1")
    e("s_lshl_b32 s59, s53, 1"); e("s_add_u32 s59, s59, s55")
    e("s_mov_b64 s[8:9], s[12:13]")
    acc = [[64 + (i*6+j)*4 for j in range(6)] for i in range(8)]
    if opts.get("cwarm", False):
        e("s_cmp_lg_u32 s3, 0"); e("s_cbranch_scc1 a_cw1");
        code_warm(k, "a_pc1"); e("s_waitcnt vmcnt(0)")
        e("a_cw1:")
    for r in range(64, 256, 2): e(f"v_mov_b64 v[{r}:{r+1}], 0")
    e("v_and_b32 v8, 15, v2"); e("v_lshrrev_b32 v9, 4, v2")
    e("v_lshrrev_b32 v10, 1, v8"); e("v_xor_b32 v10, v10, v9")
    e("s_lshl_b32 s60, s54, 7"); e("v_add_u32 v4, s60, v8"); e("v_lshlrev_b32 v4, 7, v4"); e("v_lshl_add_u32 v4, v10, 4, v4")
    lane_T_read_off(e, 16, 6, 2, 8, 9)
    e("s_lshl_b32 s60, s55, 6"); e("v_xor_b32 v6, s60, v6"); e(f"v_add_u32 v6, {96*1024}, v6"); e("v_xor_b32 v7, 32, v6")
    p_off = [(0, i*2048) for i in range(8)]
    t_desc = [(j % 2, (j//2)*4096) for j in range(6)]
    order = [(2*a+b, j, 2*a+b, j) for a in range(4) for j in range(6) for b in range(2)]
    pbufs = [16 + 4*i for i in range(4)]; tbufs = [32 + 4*j for j in range(8)]
    ringT = ["s_cmp_eq_u32 s36, 4", "s_cselect_b32 s37, s39, 12288", "s_cselect_b32 s36, -1, s36", "s_add_u32 s36, s36, 1"]
    ringP = ["s_cmp_eq_u32 s32, 2", "s_cselect_b32 s33, s34, 0x8000", "s_cselect_b32 s32, -1, s32", "s_add_u32 s32, s32, 1"]
    salu = lambda s: ringT + (ringP if s % 2 else [])
    valu = lambda s: ["v_add_u32 v6, s37, v6", "v_add_u32 v7, s37, v7", "v_xor_b32 v4, 64, v4"] + (["v_add_u32 v4, s33, v4"] if s % 2 else [])
    tail = ["s_sub_u32 s38, s38, 1", "s_cmp_lg_u32 s38, 0"]
    ahead, body, U = build_consumer(None, 16, 8, 6, p_off, t_desc, acc, pbufs, tbufs, [4], [6, 7], lambda i, j: j >= 4, order,
                                    opts.get("bar1", 38), 1, salu, valu, tail, minU=2, salu_at=0)
    e(f"s_mov_b32 s39, {(-4*12288) & 0xffffffff:#x}"); e(f"s_mov_b32 s34, {(-2*32768) & 0xffffffff:#x}"); e("s_mov_b32 s36, 0"); e("s_mov_b32 s32, 0")
    if stamps: e("s_memrealtime s[82:83]")
    e("s_barrier")
    if stamps: e("s_memtime s[94:95]"); e("s_memrealtime s[98:99]")
    for l in ahead: e(l)
    e("s_waitcnt lgkmcnt(0)")
    e(f"s_mov_b32 s38, {32//U}"); e(f".p2align {ALIGN[0]}"); e("a_g1loop:")
    for l in body: e(l)
    e("s_cbranch_scc1 a_g1loop")
    if stamps: e("s_memrealtime s[84:85]"); e("s_memtime s[96:97]"); e("s_waitcnt lgkmcnt(0)"); e("s_sub_u32 s93, s96, s94"); e("s_sub_u32 s98, s84, s98")
    e("s_waitcnt lgkmcnt(0)")
    Bk = lambda sb: 64 + 24*sb
    def cvt_units(sbs):
        for sb in sbs:
            B = Bk(sb)
            for n in range(8): e(f"v_cvt_pk_bf16_f32 v{B+n}, v{B+2*n}, v{B+2*n+1}")
        for p in sorted(set(sb//2 for sb in sbs)):
            for db in range(2):
                d = Bk(2*p+db) + 8
                for h in range(2):
                    a = Bk(2*p+h) + 16 + 4*db
                    e(f"v_cvt_pk_bf16_f32 v{d+2*h}, v{a}, v{a+1}"); e(f"v_cvt_pk_bf16_f32 v{d+2*h+1}, v{a+2}, v{a+3}")
    e("s_mul_i32 s60, s3, 12288"); e("v_add_u32 v8, s60, v3"); e(f"v_mov_b32 v9, {152*1024}")
    e("s_nop 4")
    cvt_units([4, 5, 6, 7])
    for n in range(4):
        for part in range(3): e(f"ds_write_b128 v8, v[{Bk(4+n)+4*part}:{Bk(4+n)+4*part+3}] offset:{(n*3+part)*1024}")
    cvt_units([0, 1, 2, 3])
    e("s_mov_b32 s35, 0")
    e("s_nop 0")
    e("s_waitcnt lgkmcnt(0)"); e("s_barrier")
    e("ds_read_b64 v[12:13], v9"); e("s_waitcnt lgkmcnt(0)")
    e(f"v_readfirstlane_b32 s{TOK}, v12"); e(f"v_readfirstlane_b32 s{TOK+1}, v13")
    if opts.get("estamp"): e("s_memrealtime s[82:83]")
    e("a_epi:")
    ne1 = opts.get("e1sw", 14)
    if ne1:
        k.srd(24, 8, F_*S_*2)
        e("s_lshl_b32 s60, s58, 5"); e("s_add_u32 s60, s60, s56"); e("s_lshl_b32 s60, s60, 3"); e("s_add_u32 s60, s60, s3"); e("s_lshl_b32 s60, s60, 10")
        if opts.get("e1lds"):
            e("s_lshl_b32 s61, s3, 10"); e(f"s_add_u32 m0, s61, {144*1024}"); e("s_nop 0")
            for n in range(ne1): e(f"buffer_load_dwordx4 v3, s[24:27], s60 offen lds"); e(f"s_add_u32 s60, s60, 0x100000")
        elif opts.get("e1skew"):
            e("s_cmp_lt_u32 s3, 4"); e("s_cbranch_scc1 a_sk"); e("s_sleep 64"); e("a_sk:")
        else:
            for n in range(ne1): e(f"buffer_load_dwordx4 v[4:7], v3, s[24:27], s60 offen"); e(f"s_add_u32 s60, s60, 0x100000")
    holes = [Bk(sb) + 12 + 4*n for sb in range(4) for n in range(3)]
    KVq = holes[0:9]; WPq = holes[9:11]
    PK, ST, EP, EF, ZB = 16, 48, 160, 224, 240
    e("v_lshrrev_b32 v8, 2, v2"); e("v_lshlrev_b32 v8, 6, v8"); e("v_and_b32 v9, 3, v2"); e("v_lshl_add_u32 v8, v9, 3, v8")
    e("s_lshl_b32 s60, s55, 11"); e(f"s_add_u32 s60, s60, {156*1024}"); e("v_add_u32 v8, s60, v8")
    for fb in range(2):
        for t in range(2): e(f"ds_read_b64_tr_b16 v[{WPq[fb]+2*t}:{WPq[fb]+2*t+1}], v8 offset:{t*1024 + fb*32}")
    e(f"s_mov_b32 s62, {f32(LOG2E)}"); e(f"s_mov_b32 s63, {f32(LOG2E)}")
    e("v_and_b32 v8, 15, v2"); e("v_lshrrev_b32 v9, 4, v2"); e("s_mul_i32 s34, s3, 10240"); e(f"s_add_u32 s34, s34, {48*1024}")
    e("v_mul_u32_u24 v10, 160, v8"); e("v_lshl_add_u32 v10, v9, 3, v10"); e("v_add_u32 v10, s34, v10")
    e("v_lshrrev_b32 v8, 2, v8"); e("v_lshl_add_u32 v8, v9, 2, v8"); e("v_mul_u32_u24 v11, 160, v8")
    def pmfma(off):
        for u in range(4):
            for fb in range(2):
                d = PK + (u*2+fb)*4; s = Bk(u) + off
                e(f"v_mfma_f32_16x16x32_bf16 v[{d}:{d+3}], v[{WPq[fb]}:{WPq[fb]+3}], v[{s}:{s+3}], 0")
    e("s_waitcnt lgkmcnt(0)")
    pmfma(4)
    e("v_and_b32 v8, 3, v2"); e("v_lshl_add_u32 v11, v8, 3, v11"); e("v_add_u32 v11, s34, v11"); e("v_mov_b32 v9, 0x3f803f80")
    for fbk in range(4):
        e(f"v_cmp_eq_u32 vcc, {fbk}, v8"); e("s_nop 1"); e(f"v_cndmask_b32 v{ZB+4*fbk}, 0, v9, vcc")
        for r in range(1, 4): e(f"v_mov_b32 v{ZB+4*fbk+r}, v{ZB+4*fbk}")
    units = [dict(x=[PK+u*8, PK+u*8+4], ep=EP+u*16, em=EP+8+u*16, st=ST+u*4, out=EP+u*16) for u in range(4)]
    softmax_units(e, units, 62, True)
    for u in range(4):
        o = units[u]["out"]
        for fbk in range(4): e(f"ds_write_b64 v10, v[{o+2*fbk}:{o+2*fbk+1}] offset:{u*16*160 + fbk*32}")
    pmfma(0)
    e("s_waitcnt lgkmcnt(0)")
    EFs = [EF, EP + 8]
    efq = [[EF + 4*n for n in range(4)], [EP+8, EP+12, EP+24, EP+28]]
    for p in range(2):
        for fbk in range(4):
            for t in range(2): e(f"ds_read_b64_tr_b16 v[{efq[p][fbk]+2*t}:{efq[p][fbk]+2*t+1}], v11 offset:{(2*p+t)*16*160 + fbk*32}")
    for p in range(2):
        for fbk in range(4):
            e(f"s_waitcnt lgkmcnt({14-8*p-2*fbk})")
            for db in range(3):
                d = KVq[fbk*2+db] if db < 2 else KVq[8]
                b = Bk(2*p+db) + 8 if db < 2 else ZB + 4*fbk
                cc = "0" if (p == 0 and (db < 2 or fbk == 0)) else f"v[{d}:{d+3}]"
                e(f"v_mfma_f32_16x16x32_bf16 v[{d}:{d+3}], v[{efq[p][fbk]}:{efq[p][fbk]+3}], v[{b}:{b+3}], {cc}")
    e("v_add_u32 v10, s34, v3")
    e("s_lshr_b32 s33, s3, 1"); e("s_lshr_b32 s61, s33, 1"); e("s_lshl_b32 s61, s61, 2"); e("s_and_b32 s60, s33, 1"); e("s_add_u32 s61, s61, s60"); e("s_lshl_b32 s61, s61, 10")
    e("s_mul_i32 s60, s55, 10240"); e("s_add_u32 s60, s60, s61"); e(f"s_add_u32 s60, s60, {48*1024}"); e("v_add_u32 v11, s60, v3"); e("v_add_u32 v15, 0xa000, v11")
    e("s_lshl_b32 s60, s59, 2"); e("s_add_u32 s60, s60, s33"); e("s_lshl_b32 s60, s60, 3")
    e(f"s_lshl_b32 s38, s60, 12"); e(f"s_add_u32 s38, s38, {WS_KVP:#x}"); e("s_lshl_b32 s37, s52, 12"); e("s_add_u32 s37, s37, s38")
    e("s_lshl_b32 s39, s60, 7"); e(f"s_add_u32 s39, s39, {WS_FLAG1:#x}"); e("s_lshl_b32 s36, s52, 7"); e("s_add_u32 s36, s36, s39")
    for qd in range(NQ): e(f"ds_write_b128 v10, v[{KVq[qd]}:{KVq[qd]+3}] offset:{qd*1024}")
    e("s_waitcnt lgkmcnt(0)"); e("s_barrier")
    if opts.get("estamp"): e("s_memrealtime s[94:95]"); e("s_waitcnt lgkmcnt(0)")
    if opts.get("dump"):
        e("s_lshl_b32 s60, s2, 3"); e("s_add_u32 s60, s60, s3"); e("s_lshl_b32 s60, s60, 15"); e("s_add_u32 s60, s60, 0x3000000")
        quads = [EP+u*16+h*4 for u in range(4) for h in range(2)] + efq[0] + efq[1] + KVq + [ST+4*u for u in range(4)] + [Bk(u)+4 for u in range(3)]
        for n, q in enumerate(quads):
            e(f"buffer_store_dwordx4 v[{q}:{q+3}], v3, s[16:19], s60 offen"); e("s_add_u32 s60, s60, 1024")
        e("s_nop 1")
    C0 = 224
    for hq in range(2):
        for src in range(4): e(f"ds_read_b128 v[{C0+(hq*4+src)*4}:{C0+(hq*4+src)*4+3}], v{11 if src < 2 else 15} offset:{(src%2)*20480 + hq*2048}")
    e("s_cmp_lg_u32 s33, 0"); e("s_cbranch_scc1 a_noz")
    for src in range(4): e(f"ds_read_b128 v[{holes[src]}:{holes[src]+3}], v{11 if src < 2 else 15} offset:{(src%2)*20480 + 8192}")
    e("s_waitcnt lgkmcnt(0)")
    for src in range(1, 4):
        for q in (0, 2): e(f"v_pk_add_f32 v[{holes[0]+q}:{holes[0]+q+1}], v[{holes[0]+q}:{holes[0]+q+1}], v[{holes[src]+q}:{holes[src]+q+1}]")
    e(f"buffer_store_dwordx4 v[{holes[0]}:{holes[0]+3}], v3, s[16:19], s37 offen offset:2048 sc1")
    e("a_noz:")
    e("s_waitcnt lgkmcnt(0)")
    for hq in range(2):
        a = C0 + hq*16
        for src in range(1, 4):
            for q in (0, 2): e(f"v_pk_add_f32 v[{a+q}:{a+q+1}], v[{a+q}:{a+q+1}], v[{a+4*src+q}:{a+4*src+q+1}]")
        e(f"buffer_store_dwordx4 v[{a}:{a+3}], v3, s[16:19], s37 offen offset:{hq*1024} sc1")
    e("s_lshl_b32 s32, s52, 2"); e("s_lshl_b32 s60, s54, 1"); e("s_add_u32 s32, s32, s60"); e("s_add_u32 s32, s32, s35")
    e("s_lshl_b32 s60, s32, 9"); e(f"s_add_u32 s60, s60, {WS_FLAGL - 8*128:#x}")
    e("v_lshlrev_b32 v10, 7, v2"); e("v_mov_b32 v11, s60"); e("v_mov_b32 v15, s39"); e("v_cmp_gt_u32 vcc, 8, v2"); e("s_nop 1"); e("v_cndmask_b32 v11, v11, v15, vcc"); e("v_add_u32 v10, v10, v11")
    units = [dict(x=[PK+u*8, PK+u*8+4], ep=EP+u*16, em=EP+8+u*16, st=ST+u*4, out=Bk(u)+4) for u in range(4)]
    w = Work(); softmax_units(w.e, units, 62, False)
    cut = len(w.q) * opts.get("e3cut", 30) // 100
    for l in w.q[:cut]: e(l)
    e("s_waitcnt vmcnt(0)")
    e(lane0("buffer_store_dwordx2 v[12:13], v14, s[16:19], s36 offen sc1"))
    if opts.get("estamp"): e("s_memrealtime s[96:97]"); e("s_waitcnt lgkmcnt(0)")
    for l in w.q[cut:]: e(l)
    if stamps: e("s_memrealtime s[88:89]")
    KOq = holes[0:4]; ZOq = holes[4:6]; GG = holes[6]
    poll_tok(k, 10, 16, "0", 0xfff, 8, sleep=1)
    G0 = 160
    for n in range(8):
        e(f"s_add_u32 s36, s38, {n*4096}")
        for hq in range(2):
            e(f"buffer_load_dwordx4 v[{G0+n*8+hq*4}:{G0+n*8+hq*4+3}], v3, s[16:19], s36 offen offset:{hq*1024} sc1")
    e("v_and_b32 v8, 15, v2"); e("v_lshlrev_b32 v8, 2, v8")
    e("s_lshl_b32 s36, s32, 8"); e(f"s_add_u32 s36, s36, {WS_G:#x}")
    for u in range(4): e(f"buffer_load_dword v{GG+u}, v8, s[16:19], s36 offen offset:{u*64} sc1")
    e("s_lshl_b32 s60, s55, 13"); e(f"s_add_u32 s60, s60, {128*1024}"); e("v_add_u32 v10, s60, v3"); e("s_lshl_b32 s60, s33, 10"); e("v_add_u32 v11, s60, v10")
    e("s_cmp_lg_u32 s33, 0"); e("s_cbranch_scc1 a_noz2")
    for n in range(8):
        e(f"s_add_u32 s36, s38, {n*4096 + 2048}"); e(f"buffer_load_dwordx4 v[{224+n*4}:{227+n*4}], v3, s[16:19], s36 offen sc1")
    e("s_waitcnt vmcnt(0)")
    for st_ in (16, 8, 4):
        for r in range(0, st_, 2): e(f"v_pk_add_f32 v[{224+r}:{225+r}], v[{224+r}:{225+r}], v[{224+st_+r}:{225+st_+r}]")
    e("v_and_b32 v8, 3, v2"); e("v_mov_b32 v9, 0x3f803f80")
    for fbk in range(4):
        for r in range(4): e(f"v_mov_b32_dpp v{240+fbk*4+r}, v{224+r} quad_perm:[{fbk},{fbk},{fbk},{fbk}] row_mask:0xf bank_mask:0xf")
    e("v_cmp_eq_u32 vcc, 1, v8"); e("s_nop 1"); e("v_cndmask_b32 v9, 0, v9, vcc"); e("v_cmp_eq_u32 vcc, 0, v8")
    for n in range(8): e(f"v_cvt_pk_bf16_f32 v{224+n}, v{240+2*n}, v{241+2*n}")
    for n in range(8): e(f"v_cndmask_b32 v{224+n}, v9, v{224+n}, vcc")
    e("ds_write_b128 v10, v[224:227] offset:4096"); e("ds_write_b128 v10, v[228:231] offset:5120")
    e("a_noz2:")
    e("s_waitcnt vmcnt(0)")
    for st_ in (32, 16, 8):
        for r in range(0, st_, 2): e(f"v_pk_add_f32 v[{G0+r}:{G0+r+1}], v[{G0+r}:{G0+r+1}], v[{G0+st_+r}:{G0+st_+r+1}]")
    for n in range(4): e(f"v_cvt_pk_bf16_f32 v{G0+n}, v{G0+2*n}, v{G0+2*n+1}")
    e(f"ds_write_b128 v11, v[{G0}:{G0+3}]")
    e("s_waitcnt lgkmcnt(0)"); e("s_barrier")
    if stamps: e("s_memrealtime s[90:91]")
    for n, d in enumerate(KOq + ZOq): e(f"ds_read_b128 v[{d}:{d+3}], v10 offset:{n*1024}")
    e("s_mov_b32 s38, s32")
    e("v_lshrrev_b32 v8, 5, v2"); e("v_lshlrev_b32 v9, 15, v8"); e("v_and_b32 v8, 31, v2"); e("v_lshl_add_u32 v9, v8, 4, v9")
    e("s_lshl_b32 s36, s59, 17"); e("s_lshl_b32 s37, s38, 10"); e("s_add_u32 s36, s36, s37")
    e(f"s_add_u32 s36, s36, {WS_OT:#x}"); e("s_add_u32 s37, s36, 0x10000")
    e(f"v_mov_b32 v8, {f32(1e-6)}")
    e("s_waitcnt lgkmcnt(0)")
    nq = [160 + 4*n for n in range(24)]
    for u in range(4):
        for sg in range(2):
            b = Bk(u) + 4 + sg*4
            for db in (2, 0, 1):
                d = nq[u*6 + sg*3 + db]; a = KOq[sg*2+db] if db < 2 else ZOq[sg]
                e(f"v_mfma_f32_16x16x32_bf16 v[{d}:{d+3}], v[{a}:{a+3}], v[{b}:{b+3}], 0")
    e("s_nop 1")
    for u in range(4):
        xp, xm = nq[u*6+2], nq[u*6+5]
        e(f"v_rcp_f32 v{xp+2}, v{xp+1}"); e(f"v_rcp_f32 v{xm+2}, v{xm+1}")
    for u in range(4):
        xp, xm = nq[u*6+2], nq[u*6+5]
        e(f"v_fma_f32 v{xp}, v{xp}, v{xp+2}, v8"); e(f"v_fma_f32 v{xp}, v{xm}, v{xm+2}, v{xp}")
    for u in range(4): xp = nq[u*6+2]; e(f"v_rcp_f32 v{xp}, v{xp}")
    for u in range(4): xp = nq[u*6+2]; e(f"v_mul_f32 v{xp}, v{xp}, v{GG+u}")
    for u in range(4):
        xp, xm = nq[u*6+2], nq[u*6+5]
        e(f"v_mul_f32 v{xp+2}, v{xp+2}, v{xp}"); e(f"v_mul_f32 v{xm+2}, v{xm+2}, v{xp}")
    for u in range(4):
        xp, xm = nq[u*6+2], nq[u*6+5]
        for db in range(2):
            np_, nm = nq[u*6+db], nq[u*6+3+db]
            for q in (0, 2):
                e(f"v_pk_mul_f32 v[{np_+q}:{np_+q+1}], v[{np_+q}:{np_+q+1}], v[{xp+2}:{xp+3}] op_sel_hi:[1,0]")
                e(f"v_pk_fma_f32 v[{np_+q}:{np_+q+1}], v[{nm+q}:{nm+q+1}], v[{xm+2}:{xm+3}], v[{np_+q}:{np_+q+1}] op_sel_hi:[1,0,1]")
    for u in range(4):
        for db in range(2):
            np_ = nq[u*6+db]; o = 16 + ((u//2)*2+db)*4 + (u % 2)*2
            e(f"v_cvt_pk_bf16_f32 v{o}, v{np_}, v{np_+1}"); e(f"v_cvt_pk_bf16_f32 v{o+1}, v{np_+2}, v{np_+3}")
    e("s_nop 1")
    for n in range(4):
        o = 16 + n*4; e(f"v_permlane16_swap_b32 v{o}, v{o+2}"); e(f"v_permlane16_swap_b32 v{o+1}, v{o+3}")
    for n in range(4):
        o = 16 + n*4; pr, db = divmod(n, 2)
        e(f"buffer_store_dwordx4 v[{o}:{o+3}], v9, s[16:19], s{36+db} offen offset:{pr*512}{opts.get('ust', '')}")
    if stamps: stamp_store(e, (80, 84, 82, 94, 96, 88, 86, 86) if opts.get("estamp") else (80, 82, 84, 88, 90, 86, 93, 98), WS_STAMP, "a_end")
    e("s_lshl_b32 s39, s52, 4"); e("s_add_u32 s39, s39, s53"); e("s_lshl_b32 s39, s39, 7"); e(f"s_add_u32 s39, s39, {WS_FLAGO:#x}")
    e("s_waitcnt vmcnt(0)")
    if opts.get("oearly", False):
        e("s_barrier")
        e("s_cmp_lg_u32 s3, 0"); e("s_cbranch_scc1 b_entry")
        e(lane0("buffer_store_dwordx2 v[12:13], v14, s[16:19], s39 offen sc1"))
        e(f"s_mov_b32 s39, {WS_FLAGO + 0x4000:#x}")
    e("s_branch b_entry")
    e("a_bchain:")
    e("s_lshl_b32 s52, s58, 5"); e("s_add_u32 s52, s52, s56")
    e("s_and_b32 s54, s56, 3")
    e("s_mul_i32 s55, s58, 7"); e("s_lshr_b32 s60, s56, 2"); e("s_add_u32 s55, s55, s60")
    e("s_cmp_lt_u32 s3, 4"); e("s_cbranch_scc1 a_lnc")
    e("s_cmp_ge_u32 s56, 28"); e("s_cbranch_scc1 a_sp_hi")
    st = Stream(k)
    k.srd(24, W1, S_*F_*2)
    e("s_sub_u32 s3, s3, 4")
    lane_T_dma_off(e, 16, 24, 2, 6, F_*2, 3)
    e("v_add_u32 v25, 128, v24")
    e("s_lshl_b32 s60, s3, 14"); e(f"s_lshl_b32 s28, s54, 12"); e("s_add_u32 s28, s28, s60"); e(f"s_add_u32 s28, s28, {WS_HT:#x}")
    e("s_lshl_b32 s29, s55, 8")
    e("s_lshl_b32 s30, s3, 12"); e("s_lshl_b32 s31, s3, 10"); e(f"s_add_u32 s31, s31, {c2.PB}")
    R2 = dict(vP=[3], vT=[24, 25], sP=28, sT=29, srdP=16, srdT=24, sBase=30, sLds=32, sStage=34, sCnt=35, stepP=4*D_*16, stepT=32*F_*2)
    fl = (" sc1", opts.get("nt2", ""))
    e("s_mov_b32 s32, s30"); e("s_mov_b32 s33, s31")
    def tpro():
        for t in range(5): producer_issue(st.e, c2, R2, fl, "T", t*c2.SB)
    if opts.get("tpro", "pre") == "pre": tpro()
    def g2_touches():
        e("s_mul_i32 s60, s58, 28"); e("s_add_u32 s60, s60, s56"); e("s_lshl_b32 s60, s60, 2"); e("s_add_u32 s60, s60, s3"); e("s_lshl_b32 s60, s60, 10")
        if opts.get("pf_wq", True):
            k.srd(48, WQKV, D_*3*D_*2)
            e("s_mov_b32 s61, s60")
            for n in range(14): st.e("buffer_load_dwordx4 v[240:243], v3, s[48:51], s61 offen"); e(f"s_add_u32 s61, s61, {448*1024}")
        e(f"s_add_u32 s61, s60, {160*7168}")
        for n in range(opts.get("pf_g2", 0)): st.e("buffer_load_dwordx4 v[240:243], v3, s[24:27], s61 offen"); e(f"s_add_u32 s61, s61, {448*1024}")
    if opts.get("cwarm", False):
        e("s_cmp_lg_u32 s3, 3"); e("s_cbranch_scc1 a_cw2")
        code_warm(k, "a_pc2")
        e("a_cw2:")
    if opts.get("tpos", "L1") == "pre": g2_touches()
    e("v_lshlrev_b32 v8, 7, v2"); e("v_add_u32 v9, 0x2000, v8")
    e("s_barrier")
    e(f"v_mov_b32 v4, {158*1024}"); e("ds_read_b64 v[10:11], v4"); e("s_waitcnt lgkmcnt(0)")
    e(f"v_readfirstlane_b32 s{TOK}, v10"); e(f"v_readfirstlane_b32 s{TOK+1}, v11")
    if opts.get("tpro", "pre") == "L1": tpro()
    if opts.get("tpos", "L1") == "L1": g2_touches()
    e("s_barrier")
    producer_issue(st.e, c2, R2, fl, "T", 5*c2.SB)
    e(f"s_mov_b32 s36, {WS_FLAGL:#x}")
    if opts.get("lnsub", True):
        poll_tok(k, 8, 16, "s36", 0xfff, 10, sleep=1)
    else:
        poll_tok(k, [8, 9], 16, "s36", None, 10, sleep=2)
    st = Stream(k)
    for t in range(6):
        producer_issue(st.e, c2, R2, fl, "P", t*c2.SB); st.mark(f"b{t}")
        if t == 1 and opts.get("lnsub", True):
            e("s_lshl_b32 s60, s3, 12"); e("s_add_u32 s36, s36, s60"); e("s_mov_b32 exec_hi, 0")
            st.e("@vm lf buffer_load_dwordx2 v[10:11], v8, s[16:19], s36 offen sc1"); e("s_mov_b32 exec_hi, -1")
    e("s_mov_b32 s34, 0")
    st.e("@wait b0"); e("s_barrier")
    if opts.get("lnsub", True):
        st.e("@wait lf")
        e("s_mov_b32 exec_hi, 0"); e(f"v_cmp_ne_u64 vcc, s[{TOK}:{TOK+1}], v[10:11]"); e("s_mov_b32 exec_hi, -1"); e("s_nop 3"); e("s_cbranch_vccz a_lfok")
        poll_tok(k, 8, 16, "s36", 0xffffffff, 10, sleep=1)
        e("a_lfok:")
    for t in range(5):
        st.e(f"@wait b{t+1}"); e("s_barrier")
        producer_issue(st.e, c2, R2, fl); ring_advance(e, c2, R2)
    e("s_mov_b32 s35, 53")
    e("a_l2:")
    e("s_waitcnt vmcnt(24)"); e("s_barrier")
    producer_issue(e, c2, R2, fl); ring_advance(e, c2, R2)
    e("s_sub_u32 s35, s35, 1"); e("s_cmp_lg_u32 s35, 0"); e("s_cbranch_scc1 a_l2")
    ntl = opts.get("swtail", 0)
    tat = opts.get("swat", 1)
    for r in range(6):
        if r == tat and ntl:
            k.srd(48, 12, F_*S_*2)
            e("s_mul_i32 s60, s58, 28"); e("s_add_u32 s60, s60, s56"); e("s_lshl_b32 s60, s60, 2"); e("s_add_u32 s60, s60, s3"); e("s_lshl_b32 s60, s60, 10"); e(f"s_add_u32 s60, s60, {(32-ntl)*448*1024}")
            for n in range(ntl): e("buffer_load_dwordx4 v[240:243], v3, s[48:51], s60 offen"); e(f"s_add_u32 s60, s60, {448*1024}")
        e(f"s_waitcnt vmcnt({max(4-r, 0)*6 + (ntl if r >= tat else 0)})"); e("s_barrier")
    e("s_branch b_entry")
    e("a_lnc:")
    st = Stream(k)
    e("s_lshl_b32 s37, s52, 15"); e("s_lshl_b32 s38, s3, 13"); e("s_add_u32 s37, s37, s38"); e("s_add_u32 s38, s37, 4096")
    for n in range(8): st.e(f"buffer_load_dwordx4 v[{48+4*n}:{51+4*n}], v3, s[20:23], s{37+n//4} offen offset:{(n%4)*1024}")
    k.srd(24, GW, D_*2)
    st.e("buffer_load_dwordx4 v[80:83], v3, s[24:27], 0 offen"); st.e("@vm lng buffer_load_dwordx4 v[84:87], v3, s[24:27], 0 offen offset:1024")
    k.srd(48, B1, F_*2)
    e("s_lshr_b32 s57, s3, 1"); e("s_and_b32 s58, s3, 1")
    e("v_lshrrev_b32 v7, 4, v2"); e("v_lshlrev_b32 v7, 3, v7")
    e("s_lshl_b32 s60, s55, 8"); e("s_lshl_b32 s61, s58, 6"); e("s_add_u32 s60, s60, s61")
    for j in range(4): st.e(f"buffer_load_dwordx2 v[{96+2*j}:{97+2*j}], v7, s[48:51], s60 offen offset:{(j//2)*128 + (j%2)*32}")
    st.e("buffer_load_dwordx2 v[12:13], v14, s[40:43], 0 offen sc1")
    LS = 120*1024
    e("s_mov_b32 s36, 0xffff0000")
    e(f"s_mul_i32 s37, s3, {4*HP}"); e(f"s_add_u32 s37, s37, {LS}"); e("v_add_u32 v22, s37, v3")
    e(f"v_bfe_u32 v23, v2, 2, 2"); e(f"v_mul_u32_u24 v23, {HP}, v23"); e("v_and_b32 v120, 3, v2"); e("v_lshl_add_u32 v23, v120, 3, v23")
    e(f"v_lshrrev_b32 v120, 4, v2"); e("v_lshl_add_u32 v23, v120, 5, v23")
    e(f"s_mul_i32 s37, s57, {8*HP}"); e("s_lshl_b32 s38, s58, 10"); e("s_add_u32 s37, s37, s38"); e(f"s_add_u32 s37, s37, {LS}"); e("v_add_u32 v23, s37, v23")
    st.e("@wait lng")
    for i in range(8):
        e(f"v_lshlrev_b32 v{104+2*i}, 16, v{80+i}"); e(f"v_and_b32 v{105+2*i}, s36, v{80+i}")
    if opts.get("ln1", True):
        ln_rows1(e, 48, 0, 52); ln_rows1(e, 64, 1, 52)
    else:
        w = Work()
        gen4.ln_rows(w, 48, 0); gen4.ln_rows(w, 64, 1)
        for it in w.q: e(it.replace("s_lshl_b32 s37, s2, 5", "s_lshl_b32 s37, s52, 6"))
    e("s_waitcnt vmcnt(2)")
    e(f"v_readfirstlane_b32 s{TOK}, v12"); e(f"v_readfirstlane_b32 s{TOK+1}, v13"); e(f"s_cmp_lg_u32 s{TOK}, 0"); e("s_cbranch_scc1 a_tk5")
    get_token(k, 14, 12)
    e("a_tk5:")
    e(f"v_mov_b32 v4, {158*1024}"); e("ds_write_b64 v4, v[12:13]")
    e("s_waitcnt lgkmcnt(0)"); e("s_barrier")
    for j in range(8):
        e(f"ds_read_b64_tr_b16 v[{144+4*j}:{145+4*j}], v23 offset:{128*j}")
        e(f"ds_read_b64_tr_b16 v[{146+4*j}:{147+4*j}], v23 offset:{128*j+4*HP}")
    e(f"s_lshl_b32 s37, s52, 15"); e("s_lshl_b32 s38, s3, 13"); e("s_add_u32 s37, s37, s38"); e(f"s_add_u32 s37, s37, {WS_HT:#x}"); e("s_add_u32 s38, s37, 4096")
    for j in range(8):
        e(f"s_waitcnt lgkmcnt({14-2*j})"); e(f"buffer_store_dwordx4 v[{144+4*j}:{147+4*j}], v3, s[16:19], s{37+j//4} offen offset:{(j%4)*1024} sc1")
    acc2 = [[128 + (i*4+j)*4 for j in range(4)] for i in range(8)]
    e("s_nop 1")
    for j in range(4):
        for hh in range(2):
            src = 96 + j*2 + hh; d0 = acc2[0][j] + hh*2
            e(f"v_lshlrev_b32 v{d0}, 16, v{src}"); e(f"v_and_b32 v{d0+1}, s36, v{src}")
        for i in range(1, 8):
            for q in (0, 2): e(f"v_mov_b64 v[{acc2[i][j]+q}:{acc2[i][j]+q+1}], v[{acc2[0][j]+q}:{acc2[0][j]+q+1}]")
    e("v_lshrrev_b32 v8, 4, v2"); e("v_lshlrev_b32 v4, 12, v8"); e("v_and_b32 v9, 15, v2"); e("v_lshl_add_u32 v4, v9, 4, v4")
    e("s_lshl_b32 s60, s57, 11"); e("v_add_u32 v4, s60, v4")
    lane_T_read_off(e, 16, 6, 2, 8, 9)
    e("s_lshl_b32 s60, s58, 6"); e("v_xor_b32 v6, s60, v6"); e("v_xor_b32 v7, 32, v6")
    e("s_waitcnt vmcnt(0)"); e("s_barrier")
    e("s_cmp_lg_u32 s3, 0"); e("s_cbranch_scc1 a_lnf")
    e("s_lshl_b32 s37, s52, 7"); e(f"s_add_u32 s37, s37, {WS_FLAGL:#x}")
    e(lane0("buffer_store_dwordx2 v[12:13], v14, s[16:19], s37 offen sc1"))
    e("a_lnf:")
    if stamps: e("s_memrealtime s[82:83]")
    e("s_cmp_ge_u32 s56, 28"); e("s_cbranch_scc1 a_spare")
    p_off = [(0, i*256) for i in range(8)]
    t_desc = [(j % 2, c2.PB + (j//2)*4096) for j in range(4)]
    order = [(i, j, i, j) for i in range(8) for j in range(4)]
    pbufs = [16 + 4*i for i in range(16)]; tbufs = [80 + 4*j for j in range(8)]
    consumer_loop(k, c2, [(2, ["s_memrealtime s[84:85]", "s_memtime s[94:95]", "s_waitcnt lgkmcnt(0)"] if stamps else []), (62, [])], 16, 8, 4, p_off, t_desc, acc2, pbufs, tbufs, [4], [6, 7],
                  False, order, 36, 37, 38, rpg=1, bar_pos=2)
    if stamps: e("s_memrealtime s[88:89]"); e("s_memtime s[96:97]"); e("s_waitcnt lgkmcnt(0)"); e("s_sub_u32 s93, s96, s94"); e("s_sub_u32 s98, s88, s84")
    e("s_waitcnt lgkmcnt(0)")
    e("v_lshrrev_b32 v8, 5, v2"); e("v_lshlrev_b32 v7, 14, v8"); e("v_and_b32 v8, 31, v2"); e("v_lshl_add_u32 v7, v8, 4, v7")
    e("s_lshl_b32 s14, s55, 18"); e("s_lshl_b32 s15, s58, 16"); e("s_add_u32 s14, s14, s15")
    e("s_lshl_b32 s15, s54, 12"); e("s_add_u32 s14, s14, s15"); e("s_lshl_b32 s15, s57, 11"); e("s_add_u32 s14, s14, s15")
    e(f"s_add_u32 s14, s14, {WS_UT:#x}")
    e(f"s_mov_b32 s42, {f32(GELU_K3)}"); e(f"s_mov_b32 s43, {f32(GELU_K3)}")
    e(f"v_mov_b32 v10, {f32(GELU_K1)}"); e(f"v_mov_b32 v11, {f32(GELU_K1)}")
    blk = 0
    half = opts.get("half", False)
    e("s_mul_i32 s47, s54, 28"); e("s_add_u32 s47, s47, s55"); e("s_lshl_b32 s47, s47, 2"); e("s_add_u32 s47, s47, s3"); e("s_lshl_b32 s47, s47, 7"); e(f"s_add_u32 s47, s47, {WS_FLAGA:#x}")
    for j in range(4):
        e(f"s_add_u32 s15, s14, {((j//2)*8 + (j%2)*2)*16384}")
        for i in (0, 4):
            t = 16 + (blk % 2) * 24; o = t + 16; blk += 1
            gelu_block(e, [acc2[i+b][j] + q for b in range(4) for q in (0, 2)], t, o)
            e("s_nop 1")
            for pr in range(2):
                e(f"v_permlane16_swap_b32 v{o+4*pr}, v{o+4*pr+2}"); e(f"v_permlane16_swap_b32 v{o+4*pr+1}, v{o+4*pr+3}")
            for pr in range(2):
                e(f"buffer_store_dwordx4 v[{o+4*pr}:{o+4*pr+3}], v7, s[16:19], s15 offen offset:{(i+2*pr)*256}{opts.get('ust', '')}")
            if half and blk == opts.get("hblk", 5):
                e(f"s_waitcnt vmcnt({2*(blk-4)})"); e(lane0("buffer_store_dwordx2 v[12:13], v14, s[16:19], s47 offen sc1"))
    if stamps: stamp_store(e, (80, 82, 84, 88, 88, 86, 93, 98), WS_STAMP, "a_end")
    e("s_mul_i32 s39, s54, 28"); e("s_add_u32 s39, s39, s55"); e("s_lshl_b32 s39, s39, 7"); e(f"s_add_u32 s39, s39, {WS_FLAGU:#x}")
    e("s_waitcnt vmcnt(0)")
    e("s_branch b_entry")
    e("a_sp_hi:")
    spre = opts.get("sp_pre", 0)
    if spre:
        k.srd(24, W1, S_*F_*2)
        e("s_lshl_b32 s60, s58, 2"); e("s_add_u32 s60, s60, s56"); e("s_sub_u32 s60, s60, 29"); e("s_lshl_b32 s60, s60, 2"); e("s_add_u32 s60, s60, s3"); e("s_lshl_b32 s60, s60, 10")
        e(f"s_add_u32 s60, s60, {opts.get('sp_row0', 192)*7168}")
        for n in range(spre): e("buffer_load_dwordx4 v[240:243], v3, s[24:27], s60 offen"); e(f"s_add_u32 s60, s60, {64*1024}")
    e("s_barrier")
    e(f"v_mov_b32 v4, {158*1024}"); e("ds_read_b64 v[12:13], v4"); e("s_waitcnt lgkmcnt(0)")
    e(f"v_readfirstlane_b32 s{TOK}, v12"); e(f"v_readfirstlane_b32 s{TOK+1}, v13")
    e("s_barrier")
    e("a_spare:")
    if opts.get("pf_sp", True):
        k.srd(24, W1, S_*F_*2)
        r0 = opts.get("sp_row0", 192)
        e("s_lshr_b32 s60, s52, 5"); e("s_lshl_b32 s60, s60, 2"); e("s_add_u32 s60, s60, s56"); e("s_sub_u32 s60, s60, 28"); e("s_lshl_b32 s60, s60, 3"); e("s_add_u32 s60, s60, s3")
        e("s_lshl_b32 s59, s60, 10")
        q0 = opts.get("sp_wq0")
        if q0 is not None:
            k.srd(48, WQKV, D_*3*D_*2)
            e(f"s_add_u32 s61, s59, {q0*6144}")
            for n in range(((1024-q0)*6 + 127)//128): e("buffer_load_dwordx4 v[240:243], v3, s[48:51], s61 offen"); e(f"s_add_u32 s61, s61, {128*1024}")
        e(f"s_add_u32 s61, s59, {r0*7168 + spre*64*1024}")
        e(f"s_mov_b32 s62, {max(1, ((2048-r0)*7 - spre*64 + 127)//128)}"); e("a_spl:")
        e("buffer_load_dwordx4 v[240:243], v3, s[24:27], s61 offen"); e(f"s_add_u32 s61, s61, {128*1024}"); e(f"s_waitcnt vmcnt({opts.get('sp_depth', 16)})")
        e("s_sub_u32 s62, s62, 1"); e("s_cmp_lg_u32 s62, 0"); e("s_cbranch_scc1 a_spl")
        k.srd(48, WO, D_*D_*2)
        e("s_mov_b32 s61, s59")
        for n in range(16): e("buffer_load_dwordx4 v[240:243], v3, s[48:51], s61 offen"); e(f"s_add_u32 s61, s61, {128*1024}")
        if opts.get("sp_w2", 0):
            e("s_load_dwordx2 s[12:13], s[0:1], 56"); e("s_waitcnt lgkmcnt(0)")
            k.srd(24, 12, S_*F_*2)
            e(f"s_mov_b32 s62, {opts.get('sp_w2', 0)}"); e("a_spl2:")
            e("buffer_load_dwordx4 v[240:243], v3, s[24:27], s59 offen"); e(f"s_add_u32 s59, s59, {128*1024}"); e(f"s_waitcnt vmcnt({opts.get('sp_depth', 16)})")
            e("s_sub_u32 s62, s62, 1"); e("s_cmp_lg_u32 s62, 0"); e("s_cbranch_scc1 a_spl2")
    e(f"s_mov_b32 s39, {WS_FLAGO + 0x4000:#x}")
    if stamps: stamp_store(e, (80, 82, 82, 82, 82, 86, 86, 86), WS_STAMP, "")
    gen_b2(opts, k)
    e("a_end:")
    return k

def gen_b2(opts, k):
    NS = opts.get("NSb", 5)
    c = GemmCfg(128, 2, NS, 64)
    e = k.e
    stamps = opts.get("stamps", False)
    NT = ""
    W2, B2 = 72, 74
    e("b_entry:")
    e("s_load_dwordx4 s[72:75], s[0:1], 56")
    if stamps: e("s_memrealtime s[80:81]")
    e("s_mov_b32 s2, s46"); e("s_mov_b32 s92, s2")
    e("v_lshrrev_b32 v1, 6, v0"); e("v_and_b32 v2, 63, v0"); e("v_lshlrev_b32 v3, 4, v2")
    e("s_lshr_b32 s56, s2, 3")
    e("v_readfirstlane_b32 s3, v1")
    e("s_and_b32 s52, s2, 1")
    if opts.get("bmap", "8d4s") == "8d4s":
        e("s_lshr_b32 s54, s56, 2")
        e("s_bfe_u32 s55, s2, 0x20001"); e("s_lshl_b32 s55, s55, 2"); e("s_and_b32 s60, s56, 3"); e("s_add_u32 s55, s55, s60")
    else:
        e("s_bfe_u32 s54, s2, 0x10001"); e("s_lshl_b32 s54, s54, 2"); e("s_and_b32 s60, s56, 3"); e("s_add_u32 s54, s54, s60")
        e("s_bfe_u32 s55, s2, 0x10002"); e("s_lshl_b32 s55, s55, 3"); e("s_lshr_b32 s60, s56, 2"); e("s_add_u32 s55, s55, s60")
    e("s_waitcnt lgkmcnt(0)")
    e("s_cmp_lt_u32 s3, 4"); e("s_cbranch_scc1 b_cons")
    assert NS == 5
    n2 = opts.get("n2", 30); n1 = 56 - n2
    k.srd(24, W2, F_*S_*2)
    k.srd(20, WO, D_*D_*2)
    e("s_sub_u32 s3, s3, 4")
    e("s_lshl_b32 s30, s3, 11")
    e("s_lshl_b32 s31, s3, 10"); e(f"s_add_u32 s31, s31, {c.PB}")
    e("s_mov_b32 s32, s30"); e("s_mov_b32 s33, s31")
    fl = None
    fl3 = (" sc1", opts.get("nt3", "")); fl4 = (" sc1", "")
    R3 = dict(vP=[3, 9], vT=list(range(24, 28)), sP=28, sT=29, srdP=16, srdT=24, sBase=30, sLds=32, sStage=34, sCnt=35, stepP=8*D_*16, stepT=64*S_*2)
    R4 = dict(R3, vP=[3, 13], vT=list(range(32, 36)), sP=36, sT=37, srdT=20, stepP=8*S_*16, stepT=64*D_*2)
    def setup3():
        lane_T_dma_off(e, 16, 24, 2, 6, S_*2, 3)
        for n in range(1, 4):
            sg, kg = divmod(n, 2); e(f"v_add_u32 v{24+n}, {sg*128 + kg*32*S_*2}, v24")
        e("s_cmp_eq_u32 s52, 0"); e(f"s_cselect_b32 s62, {n2}, 0")
        e(f"s_mul_i32 s29, s62, {64*4096}"); e("s_lshl_b32 s60, s55, 8"); e("s_add_u32 s29, s29, s60")
        e(f"v_add_u32 v9, {4*D_*16}, v3")
        e("s_lshl_b32 s28, s62, 3"); e("s_add_u32 s28, s28, s3"); e("s_lshl_b32 s28, s28, 14"); e("s_lshl_b32 s60, s54, 11"); e("s_add_u32 s28, s28, s60")
        e(f"s_add_u32 s28, s28, {WS_UT:#x}")
    def start(R, lab_cnt):
        for t in range(NS): producer_issue(e, c, R, fl3, "P", t*c.SB)
        e("s_mov_b32 s34, 0")
        e("s_waitcnt vmcnt(16)"); e("s_barrier")
        for wn_ in (12, 16, 20):
            e(f"s_waitcnt vmcnt({wn_})"); e("s_barrier")
            producer_issue(e, c, R, fl4); ring_advance(e, c, R)
    def loop(R, lab):
        e(f"{lab}:")
        e("s_waitcnt vmcnt(24)"); e("s_barrier")
        producer_issue(e, c, R, fl4); ring_advance(e, c, R)
        e("s_sub_u32 s35, s35, 1"); e("s_cmp_lg_u32 s35, 0"); e(f"s_cbranch_scc1 {lab}")
    e("s_cmp_eq_u32 s52, 0"); e("s_cbranch_scc1 b_ld0")
    setup3()
    R3h = dict(R3, stepP=2*R3["stepP"], stepT=2*R3["stepT"]) if opts.get("half", False) else R3
    for t in range(NS): producer_issue(e, c, R3h, fl3, "T", t*c.SB)
    nsw = opts.get("sw2", 0)
    def sweep2():
        if nsw:
            e("s_lshr_b32 s60, s2, 1"); e("s_lshl_b32 s60, s60, 2"); e("s_add_u32 s60, s60, s3"); e("s_lshl_b32 s60, s60, 10"); e(f"s_add_u32 s60, s60, {(28-nsw)*512*1024}")
            for n in range(nsw): e("buffer_load_dwordx4 v[240:243], v3, s[24:27], s60 offen"); e(f"s_add_u32 s60, s60, {512*1024}")
    if not opts.get("half", False):
        if opts.get("sw2pos", "pre") == "pre": sweep2()
        e(f"v_min_u32 v8, {n2//2-1}, v2"); e("v_lshlrev_b32 v8, 7, v8")
        e("s_lshr_b32 s38, s54, 1"); e("s_mul_i32 s38, s38, 28"); e("s_lshl_b32 s38, s38, 7"); e(f"s_add_u32 s38, s38, {WS_FLAGU:#x}")
        e("s_barrier")
        if opts.get("sw2pos", "pre") == "post": sweep2()
        poll_tok(k, 8, 16, "s38", 0xffffff, 10, sleep=1)
        start(R3, 0)
        e(f"s_mov_b32 s35, {n2 - 8}")
        e("s_branch b_l3")
    else:
        if opts.get("sw2pos", "pre") == "pre": sweep2()
        e(f"v_min_u32 v8, {n2-1}, v2"); e("v_lshrrev_b32 v10, 1, v8"); e("v_and_b32 v8, 1, v8"); e("v_lshl_add_u32 v8, v10, 2, v8"); e("v_lshlrev_b32 v8, 7, v8")
        e("s_lshr_b32 s38, s54, 1"); e("s_mul_i32 s38, s38, 112"); e("s_and_b32 s60, s54, 1"); e("s_lshl_b32 s60, s60, 1"); e("s_add_u32 s38, s38, s60"); e("s_lshl_b32 s38, s38, 7"); e(f"s_add_u32 s38, s38, {WS_FLAGA:#x}")
        poll_tok(k, 8, 16, "s38", None, 10, sleep=1)
        for t in range(NS): producer_issue(e, c, R3h, fl3, "P", t*c.SB)
        e("s_mov_b32 s34, 0")
        e("s_barrier")
        e("s_waitcnt vmcnt(16)"); e("s_barrier")
        for wn_ in (12, 16, 20):
            e(f"s_waitcnt vmcnt({wn_})"); e("s_barrier")
            producer_issue(e, c, R3h, fl3); ring_advance(e, c, R3h)
        e(f"s_mov_b32 s35, {n2//2 - 8}")
        loop(R3h, "b_lh1")
        e(f"s_sub_u32 s28, s28, {(n2-1)*8*D_*16}"); e(f"s_sub_u32 s29, s29, {(n2-1)*64*S_*2}")
        e(f"s_mov_b32 s35, {n2//2}")
        loop(R3h, "b_lh2")
        e("s_branch b_lt")
    e("b_ld0:")
    lane_T_dma_off(e, 16, 32, 2, 6, D_*2, 3)
    for n in range(1, 4):
        sg, kg = divmod(n, 2); e(f"v_add_u32 v{32+n}, {sg*128 + kg*32*D_*2}, v32")
    e("s_lshl_b32 s37, s54, 8")
    for t in range(NS): producer_issue(e, c, R4, fl4, "T", t*c.SB)
    e(f"v_add_u32 v13, {4*S_*16}, v3")
    e("s_lshl_b32 s36, s3, 15"); e("s_lshl_b32 s60, s55, 11"); e("s_add_u32 s36, s36, s60"); e(f"s_add_u32 s36, s36, {WS_OT:#x}")
    setup3()
    e("v_lshlrev_b32 v8, 7, v2"); e("s_lshr_b32 s38, s55, 1"); e("s_lshl_b32 s38, s38, 11"); e(f"s_add_u32 s38, s38, {WS_FLAGO:#x}")
    ls = opts.get("lstamp")
    if ls: e("s_memrealtime s[82:83]")
    e("s_barrier")
    if ls: e("s_memrealtime s[84:85]")
    poll_tok(k, 8, 16, "s38", 0xffff, 10, sleep=1)
    if ls: e("s_memrealtime s[88:89]")
    start(R4, 0)
    if ls:
        e("s_memrealtime s[90:91]"); e("s_waitcnt lgkmcnt(0)")
        for n, sr in enumerate((80, 82, 84, 88)): e(f"v_mov_b32 v{40+n}, s{sr}")
        e("v_mov_b32 v44, s90")
        e("s_lshl_b32 s60, s92, 5"); e(f"s_add_u32 s60, s60, {WS_STAMP + 0x20000:#x}"); e("v_mov_b32 v46, s60")
        e("s_cmp_lg_u32 s3, 0"); e("s_cbranch_scc1 b_lsx"); e("s_mov_b64 exec, 1")
        e(f"global_store_dwordx4 v46, v[40:43], s[{WS}:{WS+1}]"); e(f"global_store_dword v46, v44, s[{WS}:{WS+1}] offset:16"); e("s_mov_b64 exec, -1"); e("b_lsx:")
    e("s_mov_b32 s35, 8")
    loop(R4, "b_l4")
    e(f"s_mov_b32 s35, {n1}")
    loop(R3, "b_l3")
    e("b_lt:")
    for wn_ in (24, 16, 8, 0, 0):
        e(f"s_waitcnt vmcnt({wn_})"); e("s_barrier")
    e("s_endpgm")
    e("b_cons:")
    e(f"v_mov_b32 v92, s{TOK}"); e(f"v_mov_b32 v93, s{TOK+1}"); e("v_mov_b32 v94, 0")
    e("s_barrier")
    e("s_cmp_lg_u32 s3, 0"); e("s_cbranch_scc1 b_nf")
    e(lane0("buffer_store_dwordx2 v[92:93], v94, s[16:19], s39 offen sc1"))
    e("b_nf:")
    e("s_lshr_b32 s57, s3, 1"); e("s_and_b32 s58, s3, 1")
    k.srd(24, B2, S_*2)
    k.srd(20, OUT, S_*D_*2)
    e("v_and_b32 v15, 15, v2"); e("v_lshrrev_b32 v14, 4, v2")
    e("s_lshl_b32 s60, s55, 7"); e("s_lshl_b32 s61, s58, 5"); e("s_add_u32 s60, s60, s61"); e("v_add_u32 v8, s60, v15")
    e("v_lshlrev_b32 v9, 2, v8"); e("v_lshlrev_b32 v8, 1, v8")
    e(f"s_mov_b32 s47, {WS_G:#x}")
    GO, BO = 80, 88
    gld = [f"buffer_load_dword v{GO+2*j}, v9, s[16:19], s47 offen offset:{((j//2)*64 + (j%2)*16)*4} sc1" for j in range(4)]
    if opts.get("tlb", False):
        e("s_lshl_b32 s48, s2, 15"); e(f"s_add_u32 s48, s48, {gen2.WS_PART + 4096 + 1024:#x}")
        e("s_lshl_b32 s49, s55, 18")
        gld += ["s_mov_b64 exec, 1", "buffer_load_dword v91, v94, s[16:19], s48 offen", "buffer_load_dword v91, v94, s[20:23], s49 offen", "s_mov_b64 exec, -1"]
    stb = ["s_memrealtime s[98:99]", "s_memtime s[94:95]", "s_waitcnt lgkmcnt(0)"] if stamps else []
    gfin = ["s_waitcnt vmcnt(0)"] + [f"v_sub_f32 v{GO+2*j}, 1.0, v{GO+2*j}" for j in range(4)]
    for j in range(4):
        e(f"buffer_load_ushort v{BO+j}, v8, s[24:27], 0 offen offset:{((j//2)*64 + (j%2)*16)*2}")
    acc = [[96 + (i*4+j)*4 for j in range(4)] for i in range(4)]
    e("v_lshlrev_b32 v4, 11, v14"); e("v_lshl_add_u32 v4, v15, 4, v4")
    e("v_mov_b32 v5, v4")
    e("s_lshl_b32 s60, s57, 10"); e("v_add_u32 v4, s60, v4")
    lane_T_read_off(e, 16, 10, 2, 12, 13)
    e("s_lshl_b32 s60, s58, 6"); e("v_xor_b32 v6, s60, v10"); e("v_xor_b32 v7, 32, v6")
    e("s_waitcnt vmcnt(0)")
    e("s_cmp_eq_u32 s52, 1"); e("s_cselect_b32 s60, -65536, 0")
    for j in range(4):
        e(f"v_lshlrev_b32 v{BO+j}, 16, v{BO+j}"); e(f"v_and_b32 v{BO+j}, s60, v{BO+j}")
        for i in range(4):
            for q in range(4): e(f"v_mov_b32 v{acc[i][j]+q}, v{BO+j}")
    p_off = [(0, kk*8192 + i*256) for kk in range(2) for i in range(4)]
    t_desc = [(j % 2, c.PB + (j//2)*8192 + kk*4096) for kk in range(2) for j in range(4)]
    order = [(kk*4+i, kk*4+j, i, j) for kk in range(2) for i in range(4) for j in range(4)]
    pbufs = [16 + 4*i for i in range(8)]; tbufs = [48 + 4*j for j in range(8)]
    if stamps: e("s_memrealtime s[82:83]")
    e("s_cmp_eq_u32 s52, 0"); e("s_cbranch_scc1 b_cons0")
    if opts.get("half", False):
        e(f"v_min_u32 v95, {n2//2-1}, v2"); e("v_lshlrev_b32 v95, 7, v95")
        e("s_lshr_b32 s46, s54, 1"); e("s_mul_i32 s46, s46, 28"); e("s_lshl_b32 s46, s46, 7"); e(f"s_add_u32 s46, s46, {WS_FLAGU:#x}")
        ck1 = Kern("tmp", 0, 0, 0); ck1.name = "bh"
        ck1.e("s_waitcnt vmcnt(0)"); ck1.e(f"v_cmp_ne_u64 vcc, s[{TOK}:{TOK+1}], v[224:225]"); ck1.e("s_nop 4"); ck1.e("s_cbranch_vccz b_hok")
        poll_tok(ck1, 95, 16, "s46", None, 224, sleep=1)
        ck1.e("b_hok:")
        nchk = n2//2 - 5
        segs1 = [(2, gld + stb), (nchk - 4, ["buffer_load_dwordx2 v[224:225], v95, s[16:19], s46 offen sc1"]), (2, ck1.lines), (n2 - nchk, gfin)]
    else:
        segs1 = [(2, gld + stb), (n2-2, gfin)]
    consumer_loop(k, c, segs1, 16, 8, 8, p_off, t_desc, acc, pbufs, tbufs, [4], [6, 7], True, order, 36, 37, 38, rpg=1, bar_pos=18)
    e("s_waitcnt lgkmcnt(0)"); e("s_nop 3")
    for j in range(4):
        for i in range(4):
            for q in (0, 2):
                a = acc[i][j] + q
                e(f"v_pk_mul_f32 v[{a}:{a+1}], v[{a}:{a+1}], v[{GO+2*j}:{GO+2*j+1}] op_sel_hi:[1,0]")
    e("s_branch b_exch")
    e("b_cons0:")
    e(f"v_min_u32 v95, {n1//2-1}, v2"); e("v_lshlrev_b32 v95, 7, v95")
    e("s_lshr_b32 s46, s54, 1"); e("s_mul_i32 s46, s46, 28"); e(f"s_add_u32 s46, s46, {n2//2}"); e("s_lshl_b32 s46, s46, 7"); e(f"s_add_u32 s46, s46, {WS_FLAGU:#x}")
    e("s_lshl_b32 s60, s58, 9"); e("v_add_u32 v5, s60, v5")
    e("s_lshl_b32 s60, s57, 13"); e("v_add_u32 v10, s60, v10")
    for q in range(1, 4): e(f"v_xor_b32 v{10+q}, {32*q}, v10")
    chk = Kern("tmp", 0, 0, 0); chk.name = "bo"
    chk.e("s_waitcnt vmcnt(0)"); chk.e(f"v_cmp_ne_u64 vcc, s[{TOK}:{TOK+1}], v[224:225]"); chk.e("s_nop 4"); chk.e("s_cbranch_vccz b_ook")
    poll_tok(chk, 95, 16, "s46", None, 224, sleep=1)
    chk.e("b_ook:")
    p_off4 = [(0, kk*8192 + (j//2)*1024 + (j%2)*256) for kk in range(2) for j in range(4)]
    t_desc4 = [(i, c.PB + kk*4096) for kk in range(2) for i in range(4)]
    order4 = [(kk*4+j, kk*4+i, i, j) for kk in range(2) for j in range(4) for i in range(4)]
    g4s = opts.get("g4s")
    tA = ["s_memrealtime s[82:83]", "s_waitcnt lgkmcnt(0)"] if g4s else []
    tB = ["s_memrealtime s[80:81]", "s_waitcnt lgkmcnt(0)"] if g4s else []
    tC = ["s_memrealtime s[90:91]", "s_waitcnt lgkmcnt(0)"] if g4s else []
    consumer_loop(k, c, ([(1, tA)] if g4s else []) + [(8 if g4s else 9, ["buffer_load_dwordx2 v[224:225], v95, s[16:19], s46 offen sc1"]), (2, tB + chk.lines + tC + gld), (5, [])], 16, 8, 8, p_off4, t_desc4, acc, pbufs, tbufs,
                  [5], [10, 11, 12, 13], False, order4, 36, 37, 38, rpg=1, bar_pos=18)
    if stamps: e("s_memrealtime s[88:89]")
    slot = 16 % NS
    for v in (4, 6, 7): e(f"v_add_u32 v{v}, {slot*c.SB}, v{v}")
    e("s_waitcnt lgkmcnt(0)"); e("s_nop 4")
    for r in range(0, 64, 2):
        e(f"v_mov_b64 v[{160+r}:{161+r}], v[{96+r}:{97+r}]"); e(f"v_mov_b64 v[{96+r}:{97+r}], 0")
    for l in stb: e(l)
    consumer_loop(k, c, [(n1, gfin)], 16, 8, 8, p_off, t_desc, acc, pbufs, tbufs, [4], [6, 7], True, order, 36, 37, 38, rpg=1, bar_pos=18, slot0=slot)
    e("s_waitcnt lgkmcnt(0)"); e("s_nop 3")
    for j in range(4):
        for i in range(4):
            for q in (0, 2):
                a = acc[i][j] + q
                e(f"v_pk_fma_f32 v[{a}:{a+1}], v[{a}:{a+1}], v[{GO+2*j}:{GO+2*j+1}], v[{a+64}:{a+65}] op_sel_hi:[1,0,1]")
    e("b_exch:")
    if stamps: e("s_memrealtime s[84:85]"); e("s_memtime s[96:97]"); e("s_waitcnt lgkmcnt(0)"); e("s_sub_u32 s93, s96, s94"); e("s_sub_u32 s88, s98, 0"); e("s_sub_u32 s98, s84, s98")
    e("s_lshl_b32 s60, s2, 2"); e("s_add_u32 s60, s60, s3"); e("s_lshl_b32 s60, s60, 13"); e(f"s_add_u32 s60, s60, {gen2.WS_PART:#x}")
    e("s_add_u32 s61, s60, 4096")
    e("s_xor_b32 s62, s60, 0x8000"); e("s_add_u32 s63, s62, 4096")
    e("s_lshl_b32 s40, s2, 10"); e("s_lshl_b32 s41, s3, 7"); e("s_add_u32 s40, s40, s41"); e(f"s_add_u32 s40, s40, {WS_FLAG:#x}"); e("s_xor_b32 s41, s40, 0x400")
    e("v_mov_b32 v8, 0"); e("v_mov_b32 v9, 1")
    xb = opts.get("xbf16", False)
    def exch_old(hk, lab):
        snd = [acc[i][2*(1-hk)+jj] for jj in range(2) for i in range(4)]
        keep = [acc[i][2*hk+jj] for jj in range(2) for i in range(4)]
        if xb:
            for n, a in enumerate(snd):
                e(f"v_cvt_pk_bf16_f32 v{64+2*n}, v{a}, v{a+1}"); e(f"v_cvt_pk_bf16_f32 v{65+2*n}, v{a+2}, v{a+3}")
                if n % 2: e(f"buffer_store_dwordx4 v[{62+2*n}:{65+2*n}], v3, s[16:19], s60 offen offset:{(n//2)*1024} sc1")
        else:
            for n, a in enumerate(snd):
                e(f"buffer_store_dwordx4 v[{a}:{a+3}], v3, s[16:19], s{60 + n//4} offen offset:{(n%4)*1024} sc1")
        e("s_waitcnt vmcnt(0)")
        e(lane0("buffer_store_dwordx2 v[92:93], v94, s[16:19], s40 offen sc1"))
        poll_tok(k, 94, 16, "s41", None, 10, sleep=1, cnt=47)
        if xb:
            for n in range(4):
                e(f"buffer_load_dwordx4 v[{16+4*n}:{19+4*n}], v3, s[16:19], s62 offen offset:{n*1024} sc1")
            e("s_mov_b32 s63, 0xffff0000")
            for n, a in enumerate(keep):
                if n % 2 == 0: e(f"s_waitcnt vmcnt({3-n//2})")
                for h in range(2):
                    src = 16 + 2*n + h
                    e(f"v_lshlrev_b32 v32, 16, v{src}"); e(f"v_and_b32 v33, s63, v{src}")
                    e(f"v_pk_add_f32 v[{a+2*h}:{a+2*h+1}], v[{a+2*h}:{a+2*h+1}], v[32:33]")
        else:
            for n in range(8):
                e(f"buffer_load_dwordx4 v[{16+4*n}:{19+4*n}], v3, s[16:19], s{62 + n//4} offen offset:{(n%4)*1024} sc1")
            for n, a in enumerate(keep):
                e(f"s_waitcnt vmcnt({7-n})")
                for q in (0, 2): e(f"v_pk_add_f32 v[{a+q}:{a+q+1}], v[{a+q}:{a+q+1}], v[{16+4*n+q}:{17+4*n+q}]")
        for i in range(4):
            for jj in range(2):
                a = acc[i][2*hk+jj]; o = 48 + i*4 + jj*2
                e(f"v_cvt_pk_bf16_f32 v{o}, v{a}, v{a+1}"); e(f"v_cvt_pk_bf16_f32 v{o+1}, v{a+2}, v{a+3}")
    def exch(hk, lab):
        if not opts.get("gran", False): return exch_old(hk, lab)
        snd = [acc[i][2*(1-hk)+jj] for jj in range(2) for i in range(4)]
        keep = [acc[i][2*hk+jj] for jj in range(2) for i in range(4)]
        pos = lambda n: 16 + (n // 3)*4 + n % 3
        for g in range(6): e(f"v_mov_b32 v{16+g*4+3}, s{TOK}")
        for n in range(16):
            a = snd[n//2] + 2*(n % 2)
            e(f"v_cvt_pk_bf16_f32 v{pos(n)}, v{a}, v{a+1}")
            if n % 3 == 2 or n == 15:
                g = n // 3
                e(f"buffer_store_dwordx4 v[{16+g*4}:{19+g*4}], v3, s[16:19], s{60 + g//4} offen offset:{(g%4)*1024} sc1")
        e("s_mov_b32 s47, 0x40000")
        e(f"{lab}_p:")
        for g in range(6): e(f"buffer_load_dwordx4 v[{160+g*4}:{163+g*4}], v3, s[16:19], s{62 + g//4} offen offset:{(g%4)*1024} sc1")
        e("s_waitcnt vmcnt(0)")
        e(f"v_xor_b32 v40, s{TOK}, v163")
        for g in range(1, 6): e(f"v_xor_b32 v41, s{TOK}, v{163+g*4}"); e("v_or_b32 v40, v40, v41")
        e("v_cmp_ne_u32 vcc, 0, v40")
        e("s_sub_u32 s47, s47, 1"); e(f"s_cbranch_scc1 {lab}_g"); e("s_nop 2"); e(f"s_cbranch_vccnz {lab}_p")
        e(f"{lab}_g:")
        e("s_mov_b32 s63, 0xffff0000")
        for n in range(16):
            src = 160 + (n // 3)*4 + n % 3; a = keep[n//2] + 2*(n % 2); t = 40 + (n % 4)*2
            e(f"v_lshlrev_b32 v{t}, 16, v{src}"); e(f"v_and_b32 v{t+1}, s63, v{src}")
            e(f"v_pk_add_f32 v[{a}:{a+1}], v[{a}:{a+1}], v[{t}:{t+1}]")
        for i in range(4):
            for jj in range(2):
                a = acc[i][2*hk+jj]; o = 48 + i*4 + jj*2
                e(f"v_cvt_pk_bf16_f32 v{o}, v{a}, v{a+1}"); e(f"v_cvt_pk_bf16_f32 v{o+1}, v{a+2}, v{a+3}")
    e("s_cmp_eq_u32 s52, 0"); e("s_cbranch_scc0 b_ex1")
    exch(0, "b_ex0")
    e("s_branch b_fin")
    e("b_ex1:")
    exch(1, "b_ex1")
    e("b_fin:")
    e("v_and_b32 v8, 31, v2"); e("v_lshlrev_b32 v8, 11, v8"); e("v_lshrrev_b32 v9, 5, v2"); e("v_lshl_add_u32 v8, v9, 4, v8")
    e("s_lshl_b32 s60, s55, 2"); e("s_lshl_b32 s61, s52, 1"); e("s_add_u32 s60, s60, s61"); e("s_add_u32 s60, s60, s58"); e("s_lshl_b32 s60, s60, 16")
    e("s_lshl_b32 s61, s54, 8"); e("s_add_u32 s60, s60, s61"); e("s_lshl_b32 s61, s57, 7"); e("s_add_u32 s60, s60, s61")
    for i in range(4):
        o = 48 + i*4
        e(f"v_permlane16_swap_b32 v{o}, v{o+2}"); e(f"v_permlane16_swap_b32 v{o+1}, v{o+3}")
    if opts.get("olds", False):
        e("v_and_b32 v10, 31, v2"); e("v_mul_u32_u24 v10, 144, v10"); e("v_lshl_add_u32 v10, v9, 4, v10"); e("s_lshl_b32 s61, s3, 13"); e("v_add_u32 v10, s61, v10")
        e("v_lshrrev_b32 v11, 3, v2"); e("v_and_b32 v12, 7, v2"); e("v_lshlrev_b32 v8, 11, v11"); e("v_lshl_add_u32 v8, v12, 4, v8")
        e("v_mul_u32_u24 v11, 144, v11"); e("v_lshl_add_u32 v11, v12, 4, v11"); e("v_add_u32 v11, s61, v11")
        for i in range(4): e(f"ds_write_b128 v10, v[{48+i*4}:{51+i*4}] offset:{i*32}")
        e("s_waitcnt lgkmcnt(0)")
        for n in range(4): e(f"ds_read_b128 v[{16+n*4}:{19+n*4}], v11 offset:{n*8*144}")
        for n in range(4):
            e(f"s_waitcnt lgkmcnt({3-n})")
            e(f"buffer_store_dwordx4 v[{16+n*4}:{19+n*4}], v8, s[20:23], s60 offen{opts.get('ost', '')}"); e("s_add_u32 s60, s60, 0x4000")
    else:
        for i in range(4):
            o = 48 + i*4
            e(f"buffer_store_dwordx4 v[{o}:{o+3}], v8, s[20:23], s60 offen offset:{i*32}{opts.get('ost', '')}")
    if stamps: stamp_store(e, (80, 82, 84, 86, 88, 90, 93, 98), WS_STAMP + 0x10000, "")

if __name__ == "__main__":
    out = sys.argv[1]
    opts = eval("dict(" + (sys.argv[2] if len(sys.argv) > 2 else "") + ")")
    write_file(out, [gen_a(dict(dict(ust=' sc1', ost=' nt', xbf16=True, pf_wq=False, pf_g2=4, sp_row0=416, rotmul=2, n2=32, e1sw=4, sw2=0, swtail=24), **opts))], single=True)
```
